```python
import torch

def _softmax(x, axis=-1):
    return torch.softmax(x, dim=axis)
def _gelu(x):
    return torch.nn.functional.gelu(x, approximate="tanh")
def _silu(x):
    return torch.nn.functional.silu(x)
def _sigmoid(x):
    return torch.sigmoid(x)
def _layernorm(x, axis=-1, eps=1e-5):
    m = x.mean(dim=axis, keepdim=True)
    v = x.var(dim=axis, keepdim=True, unbiased=False)
    return (x - m) / torch.sqrt(v + eps)
def _scatter_add(tgt, idx, src, axis=0):
    return tgt.clone().index_add_(axis, idx, src)
def _segment_sum(src, seg, n):
    out = torch.zeros((n,) + src.shape[1:], dtype=src.dtype)
    return out.index_add_(0, seg, src)
def _pad(x, pw):
    flat = tuple(v for pair in reversed(pw) for v in pair)
    return torch.nn.functional.pad(x, flat)

kernel_name = 'gated_mix__sliding_local_dilated__sliding_local_dilated__prompt'

def setup_inputs():

    _w = (lambda a: (lambda t: t.to(torch.bfloat16) if t.is_floating_point() else t)(torch.as_tensor(a)))
    def _A_setup():
        B, S, D = 1, 2048, 640
        return {
            "x": _w((lambda *s: torch.randn(*s, dtype=torch.bfloat16) * 0.05)(B, S, D)),
            "wqkv": _w((lambda *s: torch.randn(*s, dtype=torch.bfloat16) * 0.8)(D, 3 * D)),
            "wo": _w((lambda *s: torch.randn(*s, dtype=torch.bfloat16) * 0.05)(D, D)),
        }
    _A_in = _A_setup()

    def _B_setup():
        B, S, D = 1, 2048, 640
        return {
            "x": _w((lambda *s: torch.randn(*s, dtype=torch.bfloat16) * 0.05)(B, S, D)),
            "wqkv": _w((lambda *s: torch.randn(*s, dtype=torch.bfloat16) * 0.8)(D, 3 * D)),
            "wo": _w((lambda *s: torch.randn(*s, dtype=torch.bfloat16) * 0.05)(D, D)),
        }
    _B_in = _B_setup()

    return {
        "A_x": _A_in["x"],
        "A_wqkv": _A_in["wqkv"],
        "A_wo": _A_in["wo"],
        "B_x": _B_in["x"],
        "B_wqkv": _B_in["wqkv"],
        "B_wo": _B_in["wo"],
        "gate_w": _w((lambda *s: torch.randn(*s, dtype=torch.bfloat16) * 0.05)(640) * 16.0),
    }

def reference(A_x, A_wqkv, A_wo, B_x, B_wqkv, B_wo, gate_w):
    def _A_ref(x, wqkv, wo):
        B, S, D = x.shape
        H = 32; Dh = D // H
        W, dil = 8, 2
        qkv = (lambda x, *d: x.permute(*d))((x @ wqkv).reshape(B, S, 3, H, Dh), 2, 0, 3, 1, 4)
        q, k, v = qkv[0], qkv[1], qkv[2]
        scale = Dh ** -0.5
        pos = torch.arange(S)
        off = torch.arange(W) * dil
        idx = pos[:, None] - off[None, :]
        mask = idx >= 0
        idx_c = torch.where(mask, idx, 0).reshape(-1)
        kg = k[:, :, idx_c, :].reshape(B, H, S, W, Dh)
        vg = v[:, :, idx_c, :].reshape(B, H, S, W, Dh)
        logits = torch.einsum("bhsd,bhswd->bhsw", q, kg) * scale
        logits = torch.where(mask[None, None, :, :], logits, -1e9)
        attn = _softmax(logits, axis=-1)
        o = torch.einsum("bhsw,bhswd->bhsd", attn, vg)
        return (lambda x, *d: x.permute(*d))(o, 0, 2, 1, 3).reshape(B, S, D) @ wo

    def _B_ref(x, wqkv, wo):
        B, S, D = x.shape
        H = 32; Dh = D // H
        W, dil = 8, 2
        qkv = (lambda x, *d: x.permute(*d))((x @ wqkv).reshape(B, S, 3, H, Dh), 2, 0, 3, 1, 4)
        q, k, v = qkv[0], qkv[1], qkv[2]
        scale = Dh ** -0.5
        pos = torch.arange(S)
        off = torch.arange(W) * dil
        idx = pos[:, None] - off[None, :]
        mask = idx >= 0
        idx_c = torch.where(mask, idx, 0).reshape(-1)
        kg = k[:, :, idx_c, :].reshape(B, H, S, W, Dh)
        vg = v[:, :, idx_c, :].reshape(B, H, S, W, Dh)
        logits = torch.einsum("bhsd,bhswd->bhsw", q, kg) * scale
        logits = torch.where(mask[None, None, :, :], logits, -1e9)
        attn = _softmax(logits, axis=-1)
        o = torch.einsum("bhsw,bhswd->bhsd", attn, vg)
        return (lambda x, *d: x.permute(*d))(o, 0, 2, 1, 3).reshape(B, S, D) @ wo

    x = A_x
    g = _sigmoid((x * gate_w).sum(-1, keepdims=True))
    a = _A_ref(x, A_wqkv, A_wo)
    b = _B_ref(x, B_wqkv, B_wo)
    return g * a + (1 - g) * b
```

```python
import re
TRANS = ("v_exp_f32", "v_log_f32", "v_rcp_f32", "v_rsq_f32", "v_sqrt_f32", "v_sin_f32", "v_cos_f32")
_REG = re.compile(r"^(-|\|)?(?:abs\()?([vas])(?:(\d+)|\[(\d+):(\d+)\])\)?\|?$")
def regs(tok):
    tok = tok.strip()
    if tok in ("vcc",): return {("s", 106), ("s", 107)}
    if tok == "exec": return {("s", 126), ("s", 127)}
    if tok == "m0": return {("s", 124)}
    m = _REG.match(tok)
    if not m: return set()
    k = m.group(2)
    if m.group(3) is not None: return {(k, int(m.group(3)))}
    return {(k, i) for i in range(int(m.group(4)), int(m.group(5)) + 1)}
def split_ops(s):
    out, d, cur = [], 0, ""
    for ch in s:
        if ch == "[" or ch == "(": d += 1
        if ch == "]" or ch == ")": d -= 1
        if ch == "," and d == 0: out.append(cur.strip()); cur = ""
        else: cur += ch
    if cur.strip(): out.append(cur.strip())
    return out
class Ins:
    def __init__(self, text):
        self.text = text
        t = text.split(";")[0].strip()
        self.label = t.endswith(":")
        self.dir = t.startswith(".") or t == ""
        self.w = set(); self.r = set(); self.kind = "other"; self.ws = 1
        self.dpp = False; self.perm = False; self.rl = False; self.C = set(); self.AB = set(); self.wide = set(); self.lds_dma = False
        self.mn = ""
        if self.label or self.dir: self.ws = 0; return
        p = t.split(None, 1); mn = p[0]; self.mn = mn
        rest = p[1] if len(p) > 1 else ""
        ops = split_ops(rest)
        if ops:
            lastparts = ops[-1].split()
            mods = lastparts[1:]; ops[-1] = lastparts[0]
        else: mods = []
        R = [regs(o) for o in ops]
        if mn == "s_nop": self.ws = int(ops[0], 0) + 1; return
        if mn.startswith("v_mfma"):
            self.kind = "mfma"; self.w = R[0]; self.AB = R[1] | R[2]; self.C = R[3]; self.r = self.AB | self.C
            self.passes = 8 if "32x32" in mn else 4
        elif mn.startswith("v_"):
            self.kind = "trans" if mn.replace("_e32", "").replace("_e64", "") in TRANS else "valu"
            if mn.startswith("v_permlane") and "swap" in mn:
                self.w = R[0] | R[1]; self.r = R[0] | R[1]; self.perm = True
            elif mn.startswith("v_readfirstlane") or mn.startswith("v_readlane"):
                self.w = R[0]; self.r = set().union(*R[1:]); self.rl = True
            elif mn.startswith("v_cmp"):
                self.w = R[0]; self.r = set().union(*R[1:])
            elif mn.startswith(("v_add_co", "v_sub_co", "v_addc_co", "v_subb_co")):
                self.w = R[0] | R[1]; self.r = set().union(*R[2:])
            else:
                self.w = R[0]; self.r = set().union(*R[1:]) if len(R) > 1 else set()
                if mn.startswith(("v_fmac", "v_dot2c", "v_pk_fmac")): self.r |= R[0]
                if "_dpp" in mn or any(m.startswith(("row_", "quad_perm")) for m in mods):
                    self.dpp = True; self.r |= R[0]; self.dppsrc = R[1]
        elif mn.startswith("ds_"):
            self.kind = "ds"
            if mn.startswith(("ds_read", "ds_bpermute", "ds_permute", "ds_swizzle")): self.w = R[0]; self.r = set().union(*R[1:])
            else: self.r = set().union(*R)
        elif mn.startswith(("buffer_", "global_")):
            self.kind = "vmem"
            if mn in ("buffer_wbl2", "buffer_inv"): return
            if "lds" in mods or "_lds_" in mn:
                self.lds_dma = True; self.r = set().union(*R) | {("s", 124)}
            elif "load" in mn: self.w = R[0]; self.r = set().union(*R[1:])
            elif "atomic" in mn:
                self.r = set().union(*R)
                if "sc0" in mods: self.w = R[0]
            else:
                self.r = set().union(*R)
                if "x3" in mn or "x4" in mn: self.wide = R[0] if mn.startswith("buffer") else R[1]
        elif mn.startswith("s_"):
            self.kind = "salu"
            if mn.startswith(("s_cmp", "s_cbranch", "s_branch", "s_waitcnt", "s_barrier", "s_endpgm", "s_setprio", "s_sleep")):
                self.r = set().union(*R) if R else set()
            else:
                self.w = R[0] if R else set(); self.r = set().union(*R[1:]) if len(R) > 1 else set()
                if "saveexec" in mn: self.w |= regs("exec")
def isv(s): return {x for x in s if x[0] in "va"}
def iss(s): return {x for x in s if x[0] == "s"}
def need(p, c):
    n = 0
    pv = p.kind in ("valu", "trans"); cv = c.kind in ("valu", "trans")
    if pv:
        pw = isv(p.w)
        if c.kind == "mfma" and pw & c.r: n = max(n, 2)
        if cv and c.dpp and pw & c.r: n = max(n, 2)
        if cv and c.perm and pw & c.r: n = max(n, 2)
        if cv and c.rl and pw & c.r: n = max(n, 1)
        if p.kind == "trans" and c.kind == "valu" and pw & c.r: n = max(n, 1)
        if p.mn.startswith("v_dot") and cv and (pw & (c.r | c.w)) and c.mn != p.mn: n = max(n, 3)
        sw = iss(p.w)
        if sw:
            if cv and sw & c.r: n = max(n, 4 if c.rl else 2)
            if c.kind == "vmem" and sw & c.r: n = max(n, 5)
            if c.kind == "salu" and sw & c.r: n = max(n, 1)
    if p.kind == "mfma":
        big = {4: 8, 8: 12}[p.passes]
        if c.kind == "mfma":
            if p.w & c.AB: n = max(n, big)
            if p.w & c.C and (p.w != c.C or p.passes != c.passes): n = max(n, big - 2)
            if p.w & c.w and p.w != c.C: n = max(n, big - 2)
        elif cv:
            if p.w & (c.r | c.w): n = max(n, big)
            if p.C & c.w: n = max(n, {4: 3, 8: 7}[p.passes])
        elif c.kind in ("ds", "vmem"):
            if p.w & (c.r | c.w): n = max(n, big)
            if p.C & c.w: n = max(n, {4: 3, 8: 7}[p.passes])
    if p.kind == "salu" and ("s", 124) in p.w and c.lds_dma: n = max(n, 1)
    if p.wide and p.wide & c.w: n = max(n, 2 if cv else 1)
    return n
def fix(lines, verify=False):
    out = []; issues = []
    for l in lines:
        c = Ins(l)
        if not (c.label or c.dir):
            dist = 0; req = 0
            for p in reversed(out):
                if dist >= 20: break
                if not (p.label or p.dir):
                    k = need(p, c) - dist
                    if k > req: req = k; who = p
                    dist += p.ws
            if req > 0:
                if verify: issues.append((who.text, c.text, req))
                else:
                    while req > 0:
                        k = min(req, 16); out.append(Ins(f"s_nop {k-1}")); req -= k
        out.append(c)
    return ([i.text for i in out], issues)
class Asm:
    def __init__(self): self.L = []
    def __call__(self, s):
        for l in s.split("\n"):
            l = l.strip()
            if l: self.L.append(l)
    def extend(self, o): self.L.extend(o.L)
def vr(b, n=4, k="v"): return f"{k}[{b}:{b+n-1}]" if n > 1 else f"{k}{b}"
def kd(name, vgpr, sgpr=102, acc=None):
    acc = acc if acc is not None else (vgpr + 3) // 4 * 4
    return f""".p2align 6
.amdhsa_kernel {name}
  .amdhsa_next_free_vgpr {vgpr}
  .amdhsa_next_free_sgpr {sgpr}
  .amdhsa_accum_offset {acc}
  .amdhsa_group_segment_fixed_size 0
  .amdhsa_kernarg_size 80
  .amdhsa_user_sgpr_count 2
  .amdhsa_user_sgpr_kernarg_segment_ptr 1
  .amdhsa_system_sgpr_workgroup_id_x 1
.end_amdhsa_kernel"""
```

```python
import sys, struct, math
sys.path.insert(0, "gen")
from asmlib import *
NAME = "gated_mix__sliding_local_dilated__sliding_local_dilated__prompt"
OPT = dict(a.split("=") for a in sys.argv[1:])
STAMP = int(OPT.get("stamp", 0))
def f2u(x): return struct.unpack("<I", struct.pack("<f", x))[0]
STAGE = 49152; XOFF = 30720
GW_LDS = 147456; SCR_LDS = 149504; LDS1 = 159744
XCH = STAGE
WS_O = 0; WS_WOT = 0x600000; WS_G = 0x800000; WS_ST = 0x1000000
NEG = f2u(-1e30)
CEXP = f2u(20 ** -0.5 * math.log2(math.e))
LOG2E = f2u(math.log2(math.e))

def stamp(a, idx, sreg=90):
    if not STAMP: return
    a(f"s_memtime s[{sreg+2*idx}:{sreg+2*idx+1}]")

def k1():
    a = Asm()
    a(f"k1_kernel:")
    a("s_cmp_ge_u32 s2, 256"); a("s_cbranch_scc1 K1_END")
    if STAMP: a("s_memrealtime s[88:89]"); stamp(a, 0)
    a("s_load_dwordx8 s[4:11], s[0:1], 0")
    a("s_load_dwordx4 s[12:15], s[0:1], 32")
    a("s_load_dwordx2 s[16:17], s[0:1], 48")
    a("s_load_dwordx2 s[18:19], s[0:1], 72")
    a(f"s_mov_b32 s63, {STAGE}")
    a("""s_and_b32 s44, s2, 7
    s_lshr_b32 s45, s2, 3
    s_and_b32 s20, s44, 3
    s_lshl_b32 s20, s20, 2
    s_and_b32 s46, s45, 3
    s_add_u32 s20, s20, s46
    s_lshr_b32 s21, s44, 2
    s_lshl_b32 s21, s21, 3
    s_lshr_b32 s46, s45, 2
    s_add_u32 s21, s21, s46
    v_lshrrev_b32 v2, 6, v0
    v_and_b32 v1, 63, v0
    v_readfirstlane_b32 s22, v2
    s_cmp_ge_u32 s22, 4
    s_cbranch_scc1 K1_LOADER""")
    VWA, VWB, VX0, VX1, VGX0, VGX1, VGW = 2, 3, 4, 5, 6, 7, 240
    ACCQ, ACCK, ACCV, ACCH = 8, 48, 88, 128
    RING, XB, GX = 140, 180, 204
    MC, MP, MP0, AM, ONES = 220, 224, 228, 232, 236
    def acc(seg, t, T): return (ACCQ, ACCK, ACCV)[seg] + t * 20 + T * 4
    a(f"""v_lshrrev_b32 v140, 4, v1
    v_and_b32 v141, 15, v1
    v_lshrrev_b32 v142, 5, v1
    v_lshlrev_b32 v142, 4, v142
    v_and_b32 v143, 1, v140
    v_lshl_add_u32 v142, v143, 2, v142
    v_lshrrev_b32 v143, 2, v141
    v_add_u32 v142, v142, v143
    v_mul_u32_u24 v142, 160, v142
    v_and_b32 v143, 3, v141
    v_lshl_add_u32 v{VWA}, v143, 3, v142
    v_mul_u32_u24 v144, 40, v143
    v_add3_u32 v{VWB}, v142, v144, 32
    v_lshrrev_b32 v144, 1, v141
    v_xor_b32 v144, v144, v140
    v_lshlrev_b32 v144, 4, v144
    v_lshl_add_u32 v{VX0}, v141, 7, v144
    v_xor_b32 v{VX1}, 64, v{VX0}
    s_and_b32 s44, s20, 7
    s_lshl_b32 s44, s44, 11
    v_add_u32 v{VGX0}, s44, v{VX0}
    v_add_u32 v{VGX1}, s44, v{VX1}
    v_lshlrev_b32 v{VGW}, 4, v140
    v_add_u32 v{VGW}, {GW_LDS}, v{VGW}""")
    a("s_waitcnt lgkmcnt(0)")
    a(f"""s_mov_b32 s32, s18
    s_mov_b32 s33, s19
    s_mov_b32 s34, 0x10000000
    s_mov_b32 s35, 0x20000
    s_mov_b32 s40, s16
    s_mov_b32 s41, s17
    s_mov_b32 s42, 1280
    s_mov_b32 s43, 0x20000""")
    a("""s_mov_b32 s56, 0
    s_cmp_eq_u32 s22, 3
    s_cbranch_scc1 K1_GWLOAD
    s_cmp_eq_u32 s22, 2
    s_cbranch_scc1 K1_SIDE_ISSUED
    s_lshl_b32 s44, s22, 8
    s_add_u32 s44, s44, s2
    s_cmp_ge_u32 s44, 320
    s_cbranch_scc1 K1_SIDE_ISSUED
    s_mov_b32 s56, 1
    s_and_b32 s45, s44, 7
    s_lshr_b32 s46, s44, 3
    s_mul_i32 s47, s46, 52
    s_lshr_b32 s47, s47, 8
    s_mul_i32 s57, s47, 5
    s_sub_u32 s57, s46, s57
    s_cmp_ge_u32 s47, 4
    s_cselect_b32 s36, s14, s8
    s_cselect_b32 s37, s15, s9
    s_mov_b32 s38, 819200
    s_mov_b32 s39, 0x20000
    s_and_b32 s47, s47, 3
    s_mul_i32 s47, s47, 160
    s_mul_i32 s58, s57, 40
    s_cmp_eq_u32 s57, 4
    s_cselect_b32 s58, 16, s58
    s_cselect_b32 s59, 80, 20
    s_cselect_b32 s60, 20, 4
    s_add_u32 s47, s47, s58
    s_mul_i32 s47, s47, 1280
    s_mul_i32 s58, s45, 160
    s_add_u32 s47, s47, s58
    s_mul_i32 s61, s45, 204800
    s_mul_i32 s58, s46, 5120
    s_add_u32 s61, s61, s58""")
    a(f"s_add_u32 s61, s61, {WS_WOT}")
    a(f"s_mul_i32 s62, s22, 5120"); a(f"s_add_u32 s62, s62, {SCR_LDS}")
    for i in range(5):
        a(f"""v_add_u32 v146, {64*i}, v1
        v_mul_u32_u24 v147, 6554, v146
        v_lshrrev_b32 v147, 16, v147
        v_mul_u32_u24 v148, 10, v147
        v_sub_u32 v148, v146, v148
        v_lshrrev_b32 v149, 4, v147
        v_bfe_u32 v150, v147, 2, 1
        v_lshl_add_u32 v149, v149, 1, v150
        v_and_b32 v150, 3, v147
        v_mad_u32_u24 v149, v149, s60, v150
        v_bfe_u32 v150, v147, 3, 1
        v_mad_u32_u24 v149, v150, s59, v149
        v_mul_u32_u24 v149, 1280, v149
        v_lshl_add_u32 v149, v148, 4, v149
        s_add_u32 m0, s62, {1024*i}
        buffer_load_dwordx4 v149, s[36:39], s47 offen lds""")
    a("s_branch K1_SIDE_ISSUED")
    a("K1_GWLOAD:")
    a(f"""v_lshlrev_b32 v146, 4, v1
    s_mov_b32 m0, {GW_LDS}
    buffer_load_dwordx4 v146, s[40:43], 0 offen lds
    buffer_load_dwordx4 v146, s[40:43], 0 offen offset:1024 lds""")
    a("K1_SIDE_ISSUED:")
    a(f"s_mov_b32 s44, {NEG}")
    a(f"v_mov_b32 v146, s44")
    a("s_lshr_b32 s45, s21, 1"); a("s_or_b32 s45, s45, s22")
    a("v_lshlrev_b32 v145, 2, v140"); a("v_sub_u32 v145, v141, v145")
    for r in range(4):
        a(f"v_subrev_u32 v{150+r}, {r}, v145")
    for r in range(4):
        a(f"v_cmp_gt_u32 vcc, 8, v{150+r}"); a(f"v_cndmask_b32 v{MC+r}, v146, 0, vcc")
        a(f"v_cmp_gt_i32 vcc, -8, v{150+r}"); a(f"v_cndmask_b32 v{MP+r}, v146, 0, vcc")
    a("s_cmp_eq_u32 s45, 0"); a("s_cselect_b64 vcc, -1, 0")
    for r in range(4): a(f"v_cndmask_b32 v{MP0+r}, v{MP+r}, v146, vcc")
    a("s_mov_b32 s44, 0xffff0000")
    for h in range(2):
        a(f"v_ashrrev_i32 v154, 31, v{150+2*h}"); a(f"v_ashrrev_i32 v155, 31, v{151+2*h}")
        a(f"v_bfi_b32 v{AM+h}, s44, v155, v154"); a(f"v_not_b32 v{AM+2+h}, v{AM+h}")
    for r in range(4): a(f"v_mov_b32 v{ONES+r}, 0x3f803f80")
    a("""s_mov_b64 s[48:49], 0xffff
    s_mov_b32 s50, 0xffff0000
    s_mov_b32 s51, 0
    s_mov_b32 s52, 0
    s_mov_b32 s53, 0xffff
    s_mov_b32 s54, 0
    s_mov_b32 s55, 0xffff0000""")
    for r in range(ACCQ, ACCH + 12): a(f"v_mov_b32 v{r}, 0")
    a("s_waitcnt vmcnt(0)")
    a("s_cmp_eq_u32 s56, 0"); a("s_cbranch_scc1 K1_SIDE_DONE")
    a("v_lshl_add_u32 v146, v143, 4, v142"); a("v_add_u32 v146, s62, v146")
    a("v_lshl_add_u32 v147, v143, 3, v142"); a("v_add_u32 v147, s62, v147")
    a("v_lshlrev_b32 v148, 4, v1")
    for T in range(5):
        for j in range(2):
            if T < 4: a(f"ds_read_b64_tr_b16 v[{152+4*T+2*j}:{153+4*T+2*j}], v146 offset:{j*1280 + 64*(T>>1) + 8*(T&1)}")
            else: a(f"ds_read_b64_tr_b16 v[{152+4*T+2*j}:{153+4*T+2*j}], v147 offset:{j*1280 + 128}")
    a("s_waitcnt lgkmcnt(0)")
    for T in range(4): a(f"buffer_store_dwordx4 v[{152+4*T}:{155+4*T}], v148, s[32:35], s61 offen offset:{1024*T}")
    a("s_add_u32 s61, s61, 4096")
    a(f"buffer_store_dwordx4 v[168:171], v148, s[32:35], s61 offen")
    a("s_waitcnt vmcnt(0)")
    a("K1_SIDE_DONE:")
    a("s_mov_b32 s44, 0")
    a(f"s_mov_b32 s45, 0")
    for w in range(1, 4):
        a(f"s_cmp_eq_u32 s22, {w}"); a(f"s_cbranch_scc1 K1_W{w}")
    HALO = [[(1,0),(1,1),(1,2)], [(1,3),(1,4),(2,0)], [(2,1),(2,2)], [(2,3),(2,4)]]
    D = 5
    def istep(f): return f - 5 if f <= 14 else (f - 6 if f <= 21 else f - 7)
    traces = []
    for w in range(4):
        gate = (w == 3)
        q = []
        def rdW(b, f):
            ks, seg, T = f // 15, (f % 15) // 5, f % 5
            d = RING + (f % 10) * 4
            for j in range(2):
                off = seg * 10240 + ks * 5120 + j * 1280 + (40 * T if T < 4 else 0)
                b(f"ds_read_b64_tr_b16 v[{d+2*j}:{d+2*j+1}], v{VWA if T < 4 else VWB} offset:{off}")
                q.append(("W", f))
        def rdX(b, ks):
            for n, tile in enumerate((1 + 2 * w, 2 + 2 * w, 0)):
                d = XB + (ks * 3 + n) * 4
                b(f"ds_read_b128 v[{d}:{d+3}], v{(VX0, VX1)[ks]} offset:{XOFF + tile*2048}")
                q.append(("X", ks))
            if gate:
                d = GX + ks * 8
                b(f"ds_read_b128 v[{d}:{d+3}], v{(VGX0, VGX1)[ks]} offset:{XOFF + 2048}")
                b(f"ds_read_b128 v[{d+4}:{d+7}], v{VGW} offset:{ks*64}")
                q.append(("X", ks)); q.append(("X", ks))
        def wait(b, tags):
            last = max(i for i, t in enumerate(q) if t in tags)
            n = len(q) - 1 - last
            b(f"s_waitcnt lgkmcnt({min(n, 15)})")
        def mm(b, f):
            ks, seg, T = f // 15, (f % 15) // 5, f % 5
            wf = vr(RING + (f % 10) * 4)
            def one(dst, xf):
                if seg < 2: b(f"v_mfma_f32_16x16x32_bf16 {vr(dst)}, {wf}, {xf}, {vr(dst)}")
                else: b(f"v_mfma_f32_16x16x32_bf16 {vr(dst)}, {xf}, {wf}, {vr(dst)}")
            one(acc(seg, 0, T), vr(XB + (ks * 3) * 4)); one(acc(seg, 1, T), vr(XB + (ks * 3 + 1) * 4))
            if (seg, T) in HALO[w]: one(ACCH + 4 * HALO[w].index((seg, T)), vr(XB + (ks * 3 + 2) * 4))
            if gate and seg == 0 and T == 2:
                d = GX + ks * 8
                b(f"v_mfma_f32_16x16x32_bf16 {vr(ACCH+8)}, {vr(d+4)}, {vr(d)}, {vr(ACCH+8)}")
        pre = Asm(); pa = Asm(); pb = Asm(); tail = Asm()
        pre("s_barrier")
        if w == 0: stamp(pre, 1)
        rdX(pre, 0)
        for f in range(D): rdW(pre, f)
        pre(f"s_branch K1_LB{w}")
        q.clear()
        pa("s_barrier")
        pa(f"""s_add_u32 s45, s45, 1
        s_cmp_eq_u32 s45, 3
        s_cselect_b32 s46, {(-2*STAGE) & 0xffffffff}, s63
        s_cselect_b32 s45, 0, s45""")
        for v in (VX0, VWA, VWB, VX1) + ((VGX0, VGX1) if gate else ()): pa(f"v_add_u32 v{v}, s46, v{v}")
        if gate: pa(f"v_add_u32 v{VGW}, 128, v{VGW}")
        rdX(pa, 0)
        for s in range(30 - D, 30):
            rdW(pa, s - (30 - D)); mm(pa, s)
        for s in range(0, 30 - D):
            for f in range(D, 30):
                if istep(f) == s: rdW(pb, f)
            if s == 5: rdX(pb, 1)
            tags = [("W", s)] + ([("X", 0)] if s == 0 else []) + ([("X", 1)] if s == 15 else [])
            wait(pb, tags); mm(pb, s)
        pb("s_waitcnt lgkmcnt(0)")
        pb("s_add_u32 s44, s44, 1"); pb("s_cmp_lt_u32 s44, 10"); pb(f"s_cbranch_scc1 K1_LA{w}")
        for s in range(30 - D, 30): mm(tail, s)
        tail(f"v_lshlrev_b32 v{VWA}, 3, v1")
        for n, (seg, T) in enumerate(HALO[w]):
            tail(f"v_cvt_pk_bf16_f32 v{172+2*n}, v{ACCH+4*n}, v{ACCH+4*n+1}")
            tail(f"v_cvt_pk_bf16_f32 v{173+2*n}, v{ACCH+4*n+2}, v{ACCH+4*n+3}")
            tail(f"ds_write_b64 v{VWA}, v[{172+2*n}:{173+2*n}] offset:{XCH + ((seg-1)*5+T)*512}")
        if gate:
            z = ACCH + 8
            tail(f"""v_cvt_pk_bf16_f32 v178, v{z}, v{z}
            v_and_b32 v178, 0xffff0000, v178
            v_mul_f32 v178, {LOG2E ^ 0x80000000}, v178
            v_exp_f32 v178, v178
            v_add_f32 v178, 1.0, v178
            v_rcp_f32 v178, v178
            v_cvt_pk_bf16_f32 v178, v178, v178
            v_and_b32 v178, 0xffff0000, v178
            v_lshlrev_b32 v179, 2, v1
            s_lshl_b32 s46, s21, 3
            s_add_u32 s46, s46, s20
            s_lshl_b32 s46, s46, 6
            s_add_u32 s46, s46, {WS_G}
            s_cmp_ge_u32 s20, 8
            s_cbranch_scc1 K1_ATT
            s_mov_b64 exec, 0xffff
            buffer_store_dword v178, v179, s[32:35], s46 offen
            s_mov_b64 exec, -1""")
        else: tail("s_branch K1_ATT")
        if w > 0: a(f"K1_W{w}:")
        a.extend(pre); a(f"K1_LA{w}:"); a.extend(pa); a(f"K1_LB{w}:"); a.extend(pb); a.extend(tail)
        traces.append(pre.L + pb.L + pa.L + pb.L + pa.L + pb.L + tail.L)
    a("K1_ATT:")
    a("s_nop 7")
    stamp(a, 2)
    KOP = {1: 140, 0: 156, -1: 180}
    VOP = 48; QOP = 88
    def kop(t, h): return KOP[t] + 4 * h
    def vop(T, t): return VOP + 6 * T + 2 * (t + 1)
    def qop(t, h): return QOP + 16 * t + 4 * h
    def cvt(d, s): a(f"v_cvt_pk_bf16_f32 v{d}, v{s}, v{s+1}"); a(f"v_cvt_pk_bf16_f32 v{d+1}, v{s+2}, v{s+3}")
    a(f"s_mul_i32 s46, s22, 5120"); a(f"v_add_u32 v{VWB}, s46, v{VWA}")
    for t in (1, 0):
        for h in range(4):
            cvt(kop(t, h), acc(1, t, h)); cvt(kop(t, h) + 2, acc(1, t, 4))
        if t == 1:
            for h in range(4): a(f"ds_write_b64 v{VWB}, v[{kop(1,h)}:{kop(1,h)+1}] offset:{XCH + 5120 + h*512}")
            a(f"ds_write_b64 v{VWB}, v[{kop(1,0)+2}:{kop(1,0)+3}] offset:{XCH + 5120 + 4*512}")
    for t in (1, 0):
        for T in range(5): cvt(vop(T, t), acc(2, t, T))
        if t == 1:
            for T in range(5): a(f"ds_write_b64 v{VWB}, v[{vop(T,1)}:{vop(T,1)+1}] offset:{XCH + 5120 + (5+T)*512}")
    for t in (1, 0):
        cvt(172 + 2 * t, acc(0, t, 4))
        for h in range(4):
            cvt(qop(t, h), acc(0, t, h))
        for h in range(4):
            for j in range(2): a(f"v_cndmask_b32 v{qop(t,h)+2+j}, 0, v{172+2*t+j}, s[{48+2*h}:{49+2*h}]")
    a("s_waitcnt lgkmcnt(0)"); a("s_barrier")
    for h in range(4):
        a(f"ds_read_b64 v[{kop(-1,h)}:{kop(-1,h)+1}], v{VWB} offset:{XCH + h*512}")
        a(f"ds_read_b64 v[{kop(-1,h)+2}:{kop(-1,h)+3}], v{VWB} offset:{XCH + 4*512}")
    for T in range(5): a(f"ds_read_b64 v[{vop(T,-1)}:{vop(T,-1)+1}], v{VWB} offset:{XCH + (5+T)*512}")
    SREG = list(range(8, 48, 4)) + list(range(196, 220, 4))
    def dc(t, h): return SREG[t * 4 + h]
    def dp(t, h): return SREG[8 + t * 4 + h]
    MF = "v_mfma_f32_16x16x32_bf16"
    for h in range(4):
        a(f"{MF} {vr(dc(1,h))}, {vr(kop(1,h))}, {vr(qop(1,h))}, {vr(MC)}")
        a(f"{MF} {vr(dp(1,h))}, {vr(kop(0,h))}, {vr(qop(1,h))}, {vr(MP)}")
    for h in range(4): a(f"{MF} {vr(dc(0,h))}, {vr(kop(0,h))}, {vr(qop(0,h))}, {vr(MC)}")
    a("s_waitcnt lgkmcnt(0)")
    for h in range(4): a(f"{MF} {vr(dp(0,h))}, {vr(kop(-1,h))}, {vr(qop(0,h))}, {vr(MP0)}")
    a(f"s_mov_b32 s46, {CEXP}")
    MX = {1: 120, 0: 124}
    TMP = {1: 241, 0: 245}
    for t in (1, 0):
        for h in range(4):
            for r in range(4): a(f"v_max_f32 v{dc(t,h)+r}, v{dc(t,h)+r}, v{dp(t,h)+r}")
            a(f"v_max3_f32 v{MX[t]+h}, v{dc(t,h)}, v{dc(t,h)+1}, v{dc(t,h)+2}")
            a(f"v_max_f32 v{MX[t]+h}, v{MX[t]+h}, v{dc(t,h)+3}")
    def both(fn):
        for t in (1, 0): fn(MX[t])
    both(lambda m: a(f"v_permlane32_swap_b32 v{m}, v{m+1}"))
    both(lambda m: a(f"v_permlane32_swap_b32 v{m+2}, v{m+3}"))
    both(lambda m: a(f"v_max_f32 v{m}, v{m}, v{m+1}"))
    both(lambda m: a(f"v_max_f32 v{m+2}, v{m+2}, v{m+3}"))
    both(lambda m: a(f"v_permlane16_swap_b32 v{m}, v{m+2}"))
    both(lambda m: a(f"v_max_f32 v{m}, v{m}, v{m+2}"))
    both(lambda m: a(f"v_mul_f32 v{m+2}, s46, v{m}"))
    both(lambda m: a(f"v_mul_f32 v{m}, s46, v{m}"))
    both(lambda m: a(f"v_permlane16_swap_b32 v{m}, v{m+2}"))
    both(lambda m: a(f"v_mov_b32 v{m+1}, v{m}"))
    both(lambda m: a(f"v_mov_b32 v{m+3}, v{m+2}"))
    both(lambda m: a(f"v_permlane32_swap_b32 v{m}, v{m+1}"))
    both(lambda m: a(f"v_permlane32_swap_b32 v{m+2}, v{m+3}"))
    OREG = list(range(140, 172, 4)) + list(range(180, 196, 4)) + list(range(88, 120, 4)) + [128, 132, 136, 172]
    def oo(t, h, k): return OREG[(t * 4 + h) * 3 + k]
    for t in (1, 0):
        for h in range(4):
            for r in range(4): a(f"v_fma_f32 v{dc(t,h)+r}, v{dc(t,h)+r}, s46, -v{MX[t]+h}")
        for h in range(4):
            for r in range(4): a(f"v_exp_f32 v{dc(t,h)+r}, v{dc(t,h)+r}")
        for h in range(4):
            d = dc(t, h)
            a(f"v_cvt_pk_bf16_f32 v{d}, v{d}, v{d+1}"); a(f"v_cvt_pk_bf16_f32 v{d+2}, v{d+2}, v{d+3}")
            p = dp(t, h)
            a(f"v_and_b32 v{p}, v{AM}, v{d}"); a(f"v_and_b32 v{p+1}, v{AM+1}, v{d+2}")
            a(f"v_and_b32 v{p+2}, v{AM+2}, v{d}"); a(f"v_and_b32 v{p+3}, v{AM+3}, v{d+2}")
        for h in range(4):
            a(f"{MF} {vr(oo(t,h,2))}, {vr(ONES)}, {vr(dp(t,h))}, 0")
            a(f"{MF} {vr(oo(t,h,0))}, {vr(vop(h,t-1))}, {vr(dp(t,h))}, 0")
            a(f"{MF} {vr(oo(t,h,1))}, {vr(vop(4,t-1))}, {vr(dp(t,h))}, 0")
    a("s_lshl_b32 s46, s21, 3"); a("s_lshl_b32 s47, s22, 1"); a("s_add_u32 s46, s46, s47")
    a("s_mul_i32 s46, s46, 40960"); a("s_mul_i32 s47, s20, 2560"); a("s_add_u32 s46, s46, s47")
    a("s_add_u32 s47, s46, 40960")
    a(f"v_lshlrev_b32 v{VX0}, 4, v1")
    for t in (1, 0):
        for h in range(4): a(f"v_rcp_f32 v{oo(t,h,2)}, v{oo(t,h,2)}")
        for h in range(4):
            for r in range(4): a(f"v_mul_f32 v{oo(t,h,0)+r}, v{oo(t,h,0)+r}, v{oo(t,h,2)}")
        for h in range(4):
            for r in range(4): a(f"v_mul_f32_dpp v{TMP[t]+r}, v{oo(t,h,1)+r}, v{oo(t,h,2)} quad_perm:[0,1,2,3] row_mask:{hex(1<<h)} bank_mask:0xf")
        ob = dc(t, 0)
        for h in range(4): cvt(dc(t, h >> 1) + 2 * (h & 1), oo(t, h, 0))
        cvt(dc(t, 2), TMP[t])
        so = "s47" if t else "s46"
        a(f"buffer_store_dwordx4 {vr(dc(t,0))}, v{VX0}, s[32:35], {so} offen")
        a(f"buffer_store_dwordx4 {vr(dc(t,1))}, v{VX0}, s[32:35], {so} offen offset:1024")
        a(f"buffer_store_dwordx2 {vr(dc(t,2),2)}, v{VWA}, s[32:35], {so} offen offset:2048")
    if STAMP:
        stamp(a, 3)
        a("s_waitcnt vmcnt(0)")
        stamp(a, 4)
        a("s_memrealtime s[100:101]")
        a("s_waitcnt lgkmcnt(0)")
        a("s_cmp_lg_u32 s22, 0"); a("s_cbranch_scc1 K1_END")
        a(f"s_lshl_b32 s46, s2, 6"); a(f"s_add_u32 s46, s46, {WS_ST}")
        a("v_mov_b32 v2, 0")
        for i in range(7):
            a(f"v_mov_b32 v4, s{88+2*i}"); a(f"v_mov_b32 v5, s{89+2*i}")
            a(f"buffer_store_dwordx2 v[4:5], v2, s[32:35], s46 offen offset:{8*i}")
            a("s_nop 1")
    a("s_endpgm")
    a("K1_LOADER:")
    a("v_subrev_u32 v2, 256, v0")
    a("s_sub_u32 s22, s22, 4")
    a("s_lshr_b32 s44, s21, 1"); a("s_lshl_b32 s44, s44, 8"); a("s_and_b32 s45, s21, 1"); a("s_add_u32 s44, s44, s45"); a("s_sub_u32 s44, s44, 32")
    for qq in range(5):
        base = 256 * qq if qq < 4 else 1024 - 128
        a(f"""v_add_u32 v3, {base}, v2
        v_lshrrev_b32 v4, 3, v3
        v_lshrrev_b32 v5, 4, v3
        v_xor_b32 v5, v5, v3
        v_and_b32 v5, 7, v5
        v_lshl_add_u32 v4, v4, 1, s44
        v_max_i32 v4, 0, v4
        v_mul_u32_u24 v4, 1280, v4
        v_lshl_add_u32 v{18+qq}, v5, 4, v4""")
    for qq in range(8):
        a(f"""v_add_u32 v3, {256*qq}, v2
        v_mul_u32_u24 v4, 6554, v3
        v_lshrrev_b32 v4, 16, v4
        v_mul_u32_u24 v5, 10, v4
        v_sub_u32 v5, v3, v5
        v_and_b32 v6, 0x33, v4
        v_bfe_u32 v7, v4, 2, 1
        v_lshl_or_b32 v6, v7, 3, v6
        v_bfe_u32 v7, v4, 3, 1
        v_lshl_or_b32 v6, v7, 2, v6
        v_mul_u32_u24 v6, 3840, v6
        v_lshrrev_b32 v7, 6, v4
        v_mul_u32_u24 v7, 1280, v7
        v_lshlrev_b32 v5, 4, v5
        v_add3_u32 v{10+qq}, v5, v6, v7""")
    a("s_waitcnt lgkmcnt(0)")
    a("""s_cmp_ge_u32 s20, 8
    s_cselect_b32 s24, s12, s6
    s_cselect_b32 s25, s13, s7
    s_mov_b32 s26, 2457600
    s_mov_b32 s27, 0x20000
    s_mov_b32 s28, s4
    s_mov_b32 s29, s5
    s_mov_b32 s30, 2621440
    s_mov_b32 s31, 0x20000
    s_and_b32 s46, s20, 7
    s_mul_i32 s46, s46, 160
    s_mov_b32 s47, 0
    s_lshl_b32 s48, s22, 10
    s_mov_b32 s49, 0
    s_mov_b32 s50, 0""")
    a("K1_LD_ISSUE:")
    for qq in range(4):
        a(f"s_add_u32 m0, s48, {XOFF + 4096*qq}"); a(f"buffer_load_dwordx4 v{18+qq}, s[28:31], s47 offen lds")
        a(f"s_add_u32 m0, s48, {4096*qq}"); a(f"buffer_load_dwordx4 v{10+qq}, s[24:27], s46 offen lds")
    for qq in range(4, 7):
        a(f"s_add_u32 m0, s48, {4096*qq}"); a(f"buffer_load_dwordx4 v{10+qq}, s[24:27], s46 offen lds")
    a("s_cmp_ge_u32 s22, 2"); a("s_cbranch_scc1 K1_LD_X4")
    a(f"s_add_u32 m0, s48, {4096*7}"); a(f"buffer_load_dwordx4 v17, s[24:27], s46 offen lds")
    a("s_branch K1_LD_NEXT")
    a("K1_LD_X4:")
    a(f"s_add_u32 m0, s48, {XOFF + 16384 - 2048}"); a(f"buffer_load_dwordx4 v22, s[28:31], s47 offen lds")
    a("K1_LD_NEXT:")
    a(f"""s_add_u32 s46, s46, 245760
    s_add_u32 s47, s47, 128
    s_add_u32 s49, s49, 1
    s_cmp_eq_u32 s49, 3
    s_cselect_b32 s51, {(-2*STAGE) & 0xffffffff}, s63
    s_cselect_b32 s49, 0, s49
    s_add_u32 s48, s48, s51
    s_add_u32 s50, s50, 1
    s_cmp_lt_u32 s50, 3
    s_cbranch_scc1 K1_LD_ISSUE
    s_cmp_gt_u32 s50, 3
    s_cbranch_scc1 K1_LD_WAIT
    s_waitcnt vmcnt(24)
    s_barrier
    K1_LD_WAIT:
    s_waitcnt vmcnt(12)
    s_barrier
    s_cmp_lt_u32 s50, 10
    s_cbranch_scc1 K1_LD_ISSUE
    s_waitcnt vmcnt(0)
    s_barrier""")
    a("K1_END:"); a("s_endpgm")
    return a, traces

def k2():
    a = Asm()
    a("k2_kernel:")
    a("s_cmp_ge_u32 s2, 256"); a("s_cbranch_scc1 K2_END")
    if STAMP: a("s_memrealtime s[88:89]"); stamp(a, 0)
    a("s_load_dwordx2 s[4:5], s[0:1], 56")
    a("s_load_dwordx2 s[6:7], s[0:1], 72")
    a("""s_and_b32 s44, s2, 7
    s_lshr_b32 s45, s2, 3
    s_and_b32 s20, s44, 1
    s_lshl_b32 s20, s20, 2
    s_and_b32 s46, s45, 3
    s_add_u32 s20, s20, s46
    s_lshr_b32 s21, s44, 1
    s_lshl_b32 s21, s21, 3
    s_lshr_b32 s46, s45, 2
    s_add_u32 s21, s21, s46
    v_lshrrev_b32 v2, 6, v0
    v_and_b32 v1, 63, v0
    v_readfirstlane_b32 s22, v2
    v_lshlrev_b32 v2, 4, v1
    v_lshlrev_b32 v3, 3, v1""")
    for ap in range(4):
        a(f"s_add_u32 s46, s22, {ap}"); a("s_and_b32 s46, s46, 3"); a("s_lshl_b32 s47, s21, 2"); a("s_add_u32 s46, s46, s47")
        if ap == 0: a("s_mov_b32 s23, s46")
        a("s_mul_i32 s46, s46, 40960"); a("s_mul_i32 s47, s22, 10240"); a(f"s_add_u32 s{24+ap}, s46, s47")
    a("s_mul_i32 s28, s20, 204800"); a("s_mul_i32 s47, s22, 51200"); a("s_add_u32 s28, s28, s47"); a(f"s_add_u32 s28, s28, {WS_WOT}")
    a("s_waitcnt lgkmcnt(0)")
    a("""s_mov_b32 s32, s6
    s_mov_b32 s33, s7
    s_mov_b32 s34, 0x10000000
    s_mov_b32 s35, 0x20000
    s_mov_b32 s36, s4
    s_mov_b32 s37, s5
    s_mov_b32 s38, 2621440
    s_mov_b32 s39, 0x20000""")
    OF = 16; ACC = 176
    q = []
    def issue(s):
        m, ss = s // 5, s % 5
        for T in range(5):
            idx = s * 5 + T
            if idx % 4 == 0: a(f"s_add_u32 s29, s28, {idx*1024}")
            a(f"buffer_load_dwordx4 a[{idx*4}:{idx*4+3}], v2, s[32:35], s29 offen offset:{(idx%4)*1024}"); q.append(s)
        for ap in range(4):
            d = OF + (s * 4 + ap) * 4
            if ss < 4:
                off = m * 5120 + (ss >> 1) * 2560 + (ss & 1) * 1024
                a(f"s_add_u32 s30, s{24+ap}, {off}")
                a(f"buffer_load_dwordx4 v[{d}:{d+3}], v2, s[32:35], s30 offen"); q.append(s)
            else:
                a(f"s_add_u32 s30, s{24+ap}, {m*5120 + 2048}")
                a(f"buffer_load_dwordx2 v[{d}:{d+1}], v3, s[32:35], s30 offen"); q.append(s)
                a(f"buffer_load_dwordx2 v[{d+2}:{d+3}], v3, s[32:35], s30 offen offset:2560"); q.append(s)
    a("v_and_b32 v4, 15, v1"); a("v_lshlrev_b32 v5, 2, v4")
    a("s_lshl_b32 s30, s23, 6"); a(f"s_add_u32 s30, s30, {WS_G}")
    a("buffer_load_dword v6, v5, s[32:35], s30 offen"); q.append(-1)
    AH = 6
    for s in range(AH): issue(s)
    stamp(a, 1)
    for s in range(10):
        last = max(i for i, t in enumerate(q) if t == s)
        a(f"s_waitcnt vmcnt({len(q)-1-last})")
        for ap in range(4):
            for T in range(5):
                d = ACC + (ap * 5 + T) * 4
                c = "0" if s == 0 else vr(d)
                a(f"v_mfma_f32_16x16x32_bf16 {vr(d)}, {vr((s*5+T)*4, 4, 'a')}, {vr(OF + (s*4+ap)*4)}, {c}")
        if s + AH < 10: issue(s + AH)
    stamp(a, 2)
    for ap in range(1, 4):
        a(f"s_add_u32 s46, s22, {ap}"); a("s_and_b32 s46, s46, 3"); a("s_mul_i32 s46, s46, 15360")
        a(f"v_add_u32 v{7+ap}, s46, v2")
    a("s_mul_i32 s46, s22, 15360"); a("v_add_u32 v7, s46, v2")
    for ap in range(1, 4):
        for T in range(5):
            a(f"ds_write_b128 v{7+ap}, {vr(ACC + (ap*5+T)*4)} offset:{(ap-1)*5120 + T*1024}")
    a("v_sub_f32 v11, 1.0, v6"); a("v_cvt_pk_bf16_f32 v11, v11, v11"); a("v_and_b32 v11, 0xffff0000, v11")
    for i in range(4):
        a(f"s_sub_u32 s46, s22, {i}"); a("s_and_b32 s46, s46, 2"); a("s_cmp_eq_u32 s46, 0"); a("s_cselect_b64 vcc, -1, 0")
        a(f"v_cndmask_b32 v{12+i}, v11, v6, vcc")
    a("""s_lshr_b32 s46, s23, 4
    s_lshl_b32 s46, s46, 8
    s_bfe_u32 s47, s23, 0x10003
    s_add_u32 s46, s46, s47
    s_and_b32 s47, s23, 7
    s_lshl_b32 s47, s47, 5
    s_add_u32 s46, s46, s47
    s_mul_i32 s46, s46, 1280
    s_mul_i32 s47, s20, 160
    s_add_u32 s46, s46, s47
    v_mul_u32_u24 v4, 2560, v4
    v_lshrrev_b32 v5, 4, v1
    v_lshl_add_u32 v2, v5, 4, v4
    v_lshl_add_u32 v3, v5, 3, v4""")
    for r in range(20): a(f"v_mul_f32 v{ACC+r}, v{ACC+r}, v12")
    a("s_waitcnt lgkmcnt(0)"); a("s_barrier")
    for i in range(3):
        for T in range(5): a(f"ds_read_b128 {vr(OF + (i*5+T)*4)}, v7 offset:{i*5120 + T*1024}")
    for i in range(3):
        a(f"s_waitcnt lgkmcnt({10-5*i})")
        for r in range(20): a(f"v_fmac_f32 v{ACC+r}, v{OF+i*20+r}, v{13+i}")
    for r in range(10): a(f"v_cvt_pk_bf16_f32 v{OF+r}, v{ACC+2*r}, v{ACC+2*r+1}")
    a(f"buffer_store_dwordx4 {vr(OF)}, v2, s[36:39], s46 offen")
    a(f"buffer_store_dwordx4 {vr(OF+4)}, v2, s[36:39], s46 offen offset:64")
    a(f"buffer_store_dwordx2 {vr(OF+8,2)}, v3, s[36:39], s46 offen offset:128")
    if STAMP:
        stamp(a, 3)
        a("s_waitcnt vmcnt(0)")
        stamp(a, 4)
        a("s_memrealtime s[100:101]")
        a("s_waitcnt lgkmcnt(0)")
        a("s_cmp_lg_u32 s22, 0"); a("s_cbranch_scc1 K2_END")
        a(f"s_lshl_b32 s46, s2, 6"); a(f"s_add_u32 s46, s46, {WS_ST + 256*64}")
        a("v_mov_b32 v2, 0")
        for i in range(7):
            a(f"v_mov_b32 v4, s{88+2*i}"); a(f"v_mov_b32 v5, s{89+2*i}")
            a(f"buffer_store_dwordx2 v[4:5], v2, s[32:35], s46 offen offset:{8*i}")
            a("s_nop 1")
    a("K2_END:"); a("s_endpgm")
    return a

a1, traces = k1(); a2 = k2()
l1, _ = fix(a1.L); l2, _ = fix(a2.L)
for tr in traces:
    _, iss_ = fix(tr[:-1], verify=True)
    for x in iss_: print("; TRACE HAZARD", x, file=sys.stderr)
hdr = f"""; gated mix of two dilated sliding-window attention blocks (generated by gen/gen1.py)
; @launch kernel=k1_kernel grid=(256,1,1) block=(512,1,1) lds={LDS1}
; @launch kernel=k2_kernel grid=(256,1,1) block=(256,1,1) lds=61440
.amdgcn_target "amdgcn-amd-amdhsa--gfx950"
.text"""
print(hdr)
for nm, l in (("k1_kernel", l1), ("k2_kernel", l2)):
    print(f".globl {nm}\n.p2align 8\n.type {nm},@function")
    print("\n".join(l))
print('.section .rodata,"a"')
print(kd("k1_kernel", 256, 102, 256))
print(kd("k2_kernel", 456, 102, 256))
```

```python
import sys, struct, math
sys.path.insert(0, "gen")
from asmlib import *
NAME = "gated_mix__sliding_local_dilated__sliding_local_dilated__prompt"
KN = NAME + "_kernel"
OPT = dict(a.split("=") for a in sys.argv[1:])
STAMP = int(OPT.get("stamp", 0)); ROT = int(OPT.get("rot", 1)); CPF = int(OPT.get("cpf", 1))
OA = int(OPT.get("oa", 8))
def f2u(x): return struct.unpack("<I", struct.pack("<f", x))[0]
STAGE = 49152; XOFF = 30720
GW_LDS = 147456; SCR_LDS = 149504; LDS_TOTAL = 163840
XCH = 126976
CNT_LDS = XCH
WS_O = 0; WS_WOT = 0x600000; WS_G = 0x800000; WS_ST = 0x1000000; WS_FO = 0x900000; WS_FW = 0x910000
NEG = f2u(-1e30)
CEXP = f2u(20 ** -0.5 * math.log2(math.e))
LOG2E = f2u(math.log2(math.e))
MF = "v_mfma_f32_16x16x32_bf16"
SPIN_MAX = 1 << 18
SV = 255
def stamp(a, idx, real=False):
    if not STAMP: return
    a(f"{'s_memrealtime' if real else 's_memtime'} s[68:69]"); a("s_waitcnt lgkmcnt(0)"); a(f"v_writelane_b32 v{SV}, s68, {idx}")
def stamp2(a, idx, ridx):
    stamp(a, idx); stamp(a, ridx, True)

a = Asm()
traces = []
a(f"{KN}:")
a("s_load_dwordx8 s[4:11], s[0:1], 0")
a("s_load_dwordx8 s[12:19], s[0:1], 32")
a("s_load_dwordx4 s[76:79], s[0:1], 64")
a("s_cmp_ge_u32 s2, 256"); a("s_cbranch_scc1 L_END")
if STAMP: a(f"v_mov_b32 v{SV}, 0"); stamp(a, 0, True); stamp(a, 1)
a("""v_lshrrev_b32 v2, 6, v0
v_and_b32 v1, 63, v0
v_readfirstlane_b32 s22, v2
s_and_b32 s20, s2, 3
s_lshl_b32 s20, s20, 2
s_bfe_u32 s46, s2, 0x20003
s_add_u32 s20, s20, s46
s_lshr_b32 s47, s2, 5
s_and_b32 s21, s2, 4
s_lshl_b32 s21, s21, 1
s_add_u32 s21, s21, s47""")
if ROT:
    a("""s_mul_i32 s23, s46, 5
    s_add_u32 s23, s23, 1
    s_lshr_b32 s23, s23, 1
    s_add_u32 s23, s23, s47
    s_sub_u32 s46, s23, 10
    s_cselect_b32 s23, s23, s46""")
else: a("s_mov_b32 s23, 0")
a(f"s_mov_b32 s63, {STAGE}")
a("""s_cmp_lt_u32 s22, 4
s_cbranch_scc1 L_COMPUTE""")
a("s_setprio 3")
a("""v_lshrrev_b32 v3, 3, v1
v_mul_u32_u24 v3, 2560, v3
v_lshrrev_b32 v4, 4, v0
v_xor_b32 v4, v4, v1
v_and_b32 v4, 7, v4
v_lshl_add_u32 v11, v4, 4, v3
v_mul_u32_u24 v3, 6554, v1
v_lshrrev_b32 v3, 16, v3
v_mul_u32_u24 v4, 1120, v3
v_lshl_add_u32 v10, v1, 4, v4
s_and_b32 s64, s22, 3
s_lshr_b32 s44, s21, 1
s_lshl_b32 s44, s44, 8
s_and_b32 s45, s21, 1
s_add_u32 s44, s44, s45
s_lshl_b32 s45, s64, 4
s_add_u32 s44, s44, s45
s_mul_i32 s47, s44, 1280
s_lshl_b32 s45, s23, 7
s_add_u32 s47, s47, s45
s_lshr_b32 s44, s21, 1
s_lshr_b32 s45, s64, 1
s_or_b32 s44, s44, s45
s_cselect_b32 s52, -40960, 0
s_and_b32 s46, s20, 7
s_mul_i32 s46, s46, 160
s_lshl_b32 s44, s23, 2
s_add_u32 s44, s44, s64
s_mul_i32 s44, s44, 61440
s_add_u32 s46, s46, s44
s_mul_i32 s48, s64, 7680
s_lshl_b32 s53, s64, 10
s_mov_b32 s49, 0
s_mov_b32 s50, 0
s_mov_b32 s26, 2457600
s_mov_b32 s27, 0x20000
s_mov_b32 s30, 2621440
s_mov_b32 s31, 0x20000
s_cmp_ge_u32 s20, 8
s_waitcnt lgkmcnt(0)
s_cselect_b32 s24, s12, s6
s_cselect_b32 s25, s13, s7
s_mov_b32 s28, s4
s_mov_b32 s29, s5""")
stamp(a, 2)
a("L_LD_ISSUE:")
a(f"s_add_u32 m0, s53, {XOFF}"); a("s_add_u32 s51, s47, s52"); a("buffer_load_dwordx4 v11, s[28:31], s51 offen lds")
for qq in range(1, 4):
    a(f"s_add_u32 m0, s53, {XOFF + 4096*qq}"); a(f"s_add_u32 s51, s47, {(64*qq-32)*1280}"); a("buffer_load_dwordx4 v11, s[28:31], s51 offen lds")
a("s_cmp_ge_u32 s64, 2"); a("s_cbranch_scc1 L_LD_W")
a(f"s_add_u32 m0, s53, {XOFF + 4096*4}"); a(f"s_add_u32 s51, s47, {(64*4-32)*1280}"); a("buffer_load_dwordx4 v11, s[28:31], s51 offen lds")
a("L_LD_W:")
a("s_mov_b32 exec_hi, 0x0fffffff")
for qq in range(8):
    r = 2 * qq; k = (r & 0x33) | ((r & 4) << 1) | ((r & 8) >> 1)
    a(f"s_add_u32 m0, s48, {960*qq}"); a(f"s_add_u32 s51, s46, {k*3840}"); a("buffer_load_dwordx4 v10, s[24:27], s51 offen lds")
a(f"""s_mov_b32 exec_hi, -1
s_add_u32 s23, s23, 1
s_cmp_eq_u32 s23, 10
s_cselect_b32 s23, 0, s23
s_cselect_b32 s51, -9, 1
s_mul_i32 s44, s51, 245760
s_add_u32 s46, s46, s44
s_lshl_b32 s44, s51, 7
s_add_u32 s47, s47, s44
s_add_u32 s49, s49, 1
s_cmp_eq_u32 s49, 3
s_cselect_b32 s51, {(-2*STAGE) & 0xffffffff}, s63
s_cselect_b32 s49, 0, s49
s_add_u32 s48, s48, s51
s_add_u32 s53, s53, s51
s_add_u32 s50, s50, 1""")
def lstamp(base):
    if STAMP == 1: a("s_memtime s[68:69]"); a("s_waitcnt lgkmcnt(0)"); a(f"s_add_u32 m0, s50, {base}"); a(f"v_writelane_b32 v{SV}, s68, m0")
lstamp(9)
a("""s_cmp_ge_u32 s50, 2
s_cbranch_scc1 L_LD_EXTRA""")
a(f"""s_mov_b32 s32, s78
s_mov_b32 s33, s79
s_mov_b32 s34, 0x10000000
s_mov_b32 s35, 0x20000
s_mov_b32 s40, s76
s_mov_b32 s41, s77
s_mov_b32 s42, 256
s_mov_b32 s43, 0x20000
s_mov_b32 s36, s16
s_mov_b32 s37, s17
s_mov_b32 s38, 1280
s_mov_b32 s39, 0x20000
s_mov_b32 s56, 0
v_lshlrev_b32 v12, 4, v1
s_cmp_lt_u32 s64, 2
s_cbranch_scc1 L_LD_ISSUE
s_sub_u32 s44, s64, 2
s_lshl_b32 s45, s44, 10
s_add_u32 m0, s45, {GW_LDS}
s_lshl_b32 s57, s44, 8
buffer_load_dwordx4 v12, s[36:39], s45 offen lds
s_add_u32 s57, s57, s2
s_cmp_lt_u32 s57, 320
s_cselect_b32 s56, 1, 0
s_branch L_LD_ISSUE""")
a("L_LD_EXTRA:")
a("""s_cmp_eq_u32 s50, 3
s_cbranch_scc1 L_TOK_A
s_cmp_eq_u32 s50, 5
s_cbranch_scc1 L_TOK_B
s_cmp_eq_u32 s56, 0
s_cbranch_scc1 L_LD_WAIT
s_cmp_eq_u32 s50, 4
s_cbranch_scc1 L_SIDE_A
s_cmp_eq_u32 s50, 6
s_cbranch_scc1 L_SIDE_B
s_cmp_eq_u32 s50, 8
s_cbranch_scc1 L_SIDE_C""")
a("L_LD_WAIT:")
a("s_waitcnt vmcnt(12)")
a("L_LD_BAR:")
lstamp(18)
a("""s_barrier
s_cmp_lt_u32 s50, 10
s_cbranch_scc1 L_LD_ISSUE""")
a(f"""s_and_b32 s58, s20, 7
s_lshl_b32 s59, s58, 8
s_add_u32 s59, s59, {WS_FW}
v_lshlrev_b32 v13, 2, v1
s_mov_b32 s60, 0
s_mov_b32 exec_hi, 0xff
L_WO_POLL:
buffer_load_dword v14, v13, s[32:35], s59 offen sc1
s_add_u32 s60, s60, 1
s_waitcnt vmcnt(0)
v_cmp_ne_u32 vcc, s75, v14
s_cbranch_vccz L_WO_OK
s_sleep 4
s_cmp_lt_u32 s60, {SPIN_MAX}
s_cbranch_scc1 L_WO_POLL
L_WO_OK:
s_mov_b32 exec_hi, -1
s_setprio 0""")
stamp(a, 29)
a("s_barrier")
def wo_src(f):
    b, l = f // 70, f % 70
    return (b * 20 + 6) * 5120 + l * 1024
def wo_lds(f): return f * 1024 if f < 124 else 147456 + (f - 124) * 1024
a(f"s_mul_i32 s58, s58, 204800"); a(f"s_add_u32 s58, s58, {WS_WOT}")
a("s_lshl_b32 s53, s64, 10"); a("s_add_u32 s59, s58, s53")
def dma_groups(fs):
    for f in fs:
        assert wo_src(f + 3) - wo_src(f) == 3072 and wo_lds(f + 3) - wo_lds(f) == 3072, f
        a(f"s_add_u32 m0, s53, {wo_lds(f)}"); a(f"s_add_u32 s51, s59, {wo_src(f)}")
        a("buffer_load_dwordx4 v12, s[32:35], s51 offen sc1 lds")
g1 = list(range(50, 70, 4)) + list(range(70, 122, 4))
g2 = list(range(0, 48, 4)) + [46] + [120] + list(range(124, 140, 4))
dma_groups(g1)
stamp(a, 30)
a("s_barrier")
dma_groups(g2)
a("s_branch L_P2_PRE")
a("L_SIDE_A:")
a("""s_and_b32 s45, s57, 7
s_lshr_b32 s44, s57, 3
s_mul_i32 s61, s45, 204800
s_mul_i32 s58, s44, 5120
s_add_u32 s61, s61, s58
s_mul_i32 s58, s44, 52
s_lshr_b32 s58, s58, 8
s_mul_i32 s59, s58, 5
s_sub_u32 s59, s44, s59
s_cmp_ge_u32 s58, 4
s_cselect_b32 s36, s14, s8
s_cselect_b32 s37, s15, s9
s_mov_b32 s38, 819200
s_and_b32 s58, s58, 3
s_mul_i32 s58, s58, 160
s_mul_i32 s60, s59, 40
s_cmp_eq_u32 s59, 4
s_cselect_b32 s60, 16, s60
s_cselect_b32 s54, 80, 20
s_cselect_b32 s55, 20, 4
s_add_u32 s58, s58, s60
s_mul_i32 s58, s58, 1280
s_mul_i32 s60, s45, 160
s_add_u32 s58, s58, s60
s_mul_i32 s54, s54, 1280
s_mul_i32 s55, s55, 1280""")
a(f"s_add_u32 s61, s61, {WS_WOT}")
a(f"s_mul_i32 s62, s64, 5120"); a(f"s_add_u32 s62, s62, {SCR_LDS - 2*5120}")
a("s_mov_b32 exec_hi, 0xff")
for g in range(4):
    for jh in range(2):
        a(f"s_add_u32 m0, s62, {(16*(g>>1) + 8*jh + 4*(g&1))*160}")
        if jh == 0: a("s_nop 0"); a("buffer_load_dwordx4 v10, s[36:39], s58 offen lds")
        else: a("s_add_u32 s51, s58, s54"); a("buffer_load_dwordx4 v10, s[36:39], s51 offen lds"); a("s_add_u32 s58, s58, s55")
a("s_mov_b32 exec_hi, -1")
a("s_waitcnt vmcnt(20)"); a("s_branch L_LD_BAR")
a("L_SIDE_B:")
a("""v_lshrrev_b32 v16, 5, v1
v_lshlrev_b32 v16, 4, v16
v_bfe_u32 v17, v1, 4, 1
v_lshl_add_u32 v16, v17, 2, v16
v_bfe_u32 v17, v1, 2, 2
v_add_u32 v16, v16, v17
v_mul_u32_u24 v16, 160, v16
v_add_u32 v16, s62, v16
v_and_b32 v17, 3, v1
v_lshl_add_u32 v18, v17, 4, v16
v_lshl_add_u32 v19, v17, 3, v16""")
for T in range(5):
    for j in range(2):
        if T < 4: a(f"ds_read_b64_tr_b16 v[{20+4*T+2*j}:{21+4*T+2*j}], v18 offset:{j*1280 + 64*(T>>1) + 8*(T&1)}")
        else: a(f"ds_read_b64_tr_b16 v[{20+4*T+2*j}:{21+4*T+2*j}], v19 offset:{j*1280 + 128}")
a("s_waitcnt lgkmcnt(0)")
for T in range(4): a(f"buffer_store_dwordx4 v[{20+4*T}:{23+4*T}], v12, s[32:35], s61 offen offset:{1024*T} sc1")
a("s_add_u32 s61, s61, 4096")
a(f"buffer_store_dwordx4 v[36:39], v12, s[32:35], s61 offen sc1")
a("s_waitcnt vmcnt(17)"); a("s_branch L_LD_BAR")
a("L_SIDE_C:")
a(f"""s_and_b32 s45, s57, 7
s_lshl_b32 s45, s45, 8
s_lshr_b32 s44, s57, 3
s_lshl_b32 s44, s44, 2
s_add_u32 s45, s45, s44
s_add_u32 s45, s45, {WS_FW}
v_mov_b32 v13, 0
v_mov_b32 v14, s75
s_mov_b64 exec, 1
buffer_store_dword v14, v13, s[32:35], s45 offen sc1
s_mov_b64 exec, -1
s_waitcnt vmcnt(13)
s_branch L_LD_BAR""")
a("L_TOK_A:")
a("""v_mov_b32 v13, 0
s_mov_b64 exec, 1
buffer_load_dword v15, v13, s[40:43], 0 offen sc1
s_mov_b64 exec, -1
s_waitcnt vmcnt(13)
s_branch L_LD_BAR""")
a("L_TOK_B:")
a(f"""s_mov_b32 s60, 0
v_mov_b32 v13, 0
L_TOK_CHK:
v_readlane_b32 s75, v15, 0
s_add_u32 s60, s60, 1
s_cmp_lg_u32 s75, 0
s_cbranch_scc1 L_TOK_OK
s_cmp_ge_u32 s60, {SPIN_MAX}
s_cbranch_scc1 L_TOK_OK
s_sleep 4
s_mov_b64 exec, 1
buffer_load_dword v15, v13, s[40:43], 0 offen sc1
s_mov_b64 exec, -1
s_waitcnt vmcnt(0)
s_branch L_TOK_CHK
L_TOK_OK:
v_mov_b32 v14, {GW_LDS + 1536}
v_mov_b32 v15, s75
ds_write_b32 v14, v15
s_waitcnt lgkmcnt(0)
s_branch L_LD_WAIT""")
a("L_COMPUTE:")
if CPF:
    a("s_getpc_b64 s[70:71]")
    a("v_lshlrev_b32 v140, 7, v0")
    a(f"v_cmp_gt_u32 vcc, CODE_END - L_COMPUTE - 32, v140")
    a("s_and_saveexec_b64 s[72:73], vcc")
    a("s_cbranch_execz L_NOPF")
    a("global_load_dword v241, v140, s[70:71]")
    a("L_NOPF:")
    a("s_mov_b64 exec, s[72:73]")
VWA, VWB, VX0, VX1, VGX0, VGX1, VGW = 2, 3, 4, 5, 6, 7, 240
ACCQ, ACCK, ACCV, ACCH = 8, 48, 88, 128
RING, XB, GX = 140, 180, 204
MC, MP, MP0, AM, ONES = 220, 224, 228, 232, 236
def acc(seg, t, T): return (ACCQ, ACCK, ACCV)[seg] + t * 20 + T * 4
a(f"""v_lshrrev_b32 v140, 4, v1
v_and_b32 v141, 15, v1
v_lshrrev_b32 v142, 5, v1
v_lshlrev_b32 v142, 4, v142
v_and_b32 v143, 1, v140
v_lshl_add_u32 v142, v143, 2, v142
v_lshrrev_b32 v143, 2, v141
v_add_u32 v142, v142, v143
v_mul_u32_u24 v145, 480, v142
v_and_b32 v143, 3, v141
v_lshl_add_u32 v{VWA}, v143, 3, v145
v_mul_u32_u24 v144, 40, v143
v_add3_u32 v{VWB}, v145, v144, 32
v_lshrrev_b32 v144, 1, v141
v_xor_b32 v144, v144, v140
v_lshlrev_b32 v144, 4, v144
v_lshl_add_u32 v{VX0}, v141, 7, v144
v_xor_b32 v{VX1}, 64, v{VX0}
s_and_b32 s44, s20, 7
s_lshl_b32 s44, s44, 11
v_add_u32 v{VGX0}, s44, v{VX0}
v_add_u32 v{VGX1}, s44, v{VX1}
v_lshlrev_b32 v{VGW}, 4, v140
s_lshl_b32 s44, s23, 7
s_add_u32 s44, s44, {GW_LDS}
v_add_u32 v{VGW}, s44, v{VGW}""")
a(f"s_mov_b32 s44, {NEG}")
a(f"v_mov_b32 v146, s44")
a("s_lshr_b32 s45, s21, 1"); a("s_or_b32 s45, s45, s22")
a("v_lshlrev_b32 v145, 2, v140"); a("v_sub_u32 v145, v141, v145")
for r in range(4): a(f"v_subrev_u32 v{150+r}, {r}, v145")
for r in range(4):
    a(f"v_cmp_gt_u32 vcc, 8, v{150+r}"); a(f"v_cmp_gt_i32 s[72:73], -8, v{150+r}")
    a(f"v_mov_b32 v{ONES+r}, 0x3f803f80")
    a(f"v_cndmask_b32 v{MC+r}, v146, 0, vcc"); a(f"v_cndmask_b32 v{MP+r}, v146, 0, s[72:73]")
a("s_cmp_eq_u32 s45, 0"); a("s_cselect_b64 vcc, -1, 0")
for r in range(4): a(f"v_cndmask_b32 v{MP0+r}, v{MP+r}, v146, vcc")
a("s_mov_b32 s44, 0xffff0000")
for h in range(2):
    a(f"v_ashrrev_i32 v154, 31, v{150+2*h}"); a(f"v_ashrrev_i32 v155, 31, v{151+2*h}")
    a(f"v_bfi_b32 v{AM+h}, s44, v155, v154"); a(f"v_not_b32 v{AM+2+h}, v{AM+h}")
a("""s_mov_b64 s[48:49], 0xffff
s_mov_b32 s50, 0xffff0000
s_mov_b32 s51, 0
s_mov_b32 s52, 0
s_mov_b32 s53, 0xffff
s_mov_b32 s54, 0
s_mov_b32 s55, 0xffff0000""")
for r in range(ACCQ, ACCH + 12, 2): a(f"v_mov_b64 v[{r}:{r+1}], 0")
a("s_waitcnt lgkmcnt(0)")
a("""s_mov_b32 s32, s78
s_mov_b32 s33, s79
s_mov_b32 s34, 0x10000000
s_mov_b32 s35, 0x20000
s_mov_b32 s40, s76
s_mov_b32 s41, s77
s_mov_b32 s42, 256
s_mov_b32 s43, 0x20000
s_mov_b32 s74, 128
s_or_b32 s44, s2, s22
s_cbranch_scc1 L_NOTOK
s_memrealtime s[44:45]
s_waitcnt lgkmcnt(0)
s_or_b32 s44, s44, 1
v_mov_b32 v146, s44
s_mov_b64 exec, 1
buffer_store_dword v146, v8, s[40:43], 0 offen sc1
s_mov_b64 exec, -1
L_NOTOK:
s_mov_b32 s44, 0
s_mov_b32 s45, 0""")
for w in range(1, 4):
    a(f"s_cmp_eq_u32 s22, {w}"); a(f"s_cbranch_scc1 L_W{w}")
HALO = [[(1,0),(1,1),(1,2)], [(1,3),(1,4),(2,0)], [(2,1),(2,2)], [(2,3),(2,4)]]
D = 5
def istep(f): return f - 5 if f <= 14 else (f - 6 if f <= 21 else f - 7)
for w in range(4):
    gate = (w == 3)
    q = []
    def rdW(f):
        ks, seg, T = f // 15, (f % 15) // 5, f % 5
        d = RING + (f % 10) * 4
        return [(f"ds_read_b64_tr_b16 v[{d+2*j}:{d+2*j+1}], v{VWA if T < 4 else VWB} offset:{seg*160 + ks*15360 + j*3840 + (40*T if T < 4 else 0)}", ("W", f)) for j in range(2)]
    def rdX(ks):
        o = []
        for n, tile in enumerate((1 + 2 * w, 2 + 2 * w, 0)):
            d = XB + (ks * 3 + n) * 4
            o.append((f"ds_read_b128 v[{d}:{d+3}], v{(VX0, VX1)[ks]} offset:{XOFF + tile*2048}", ("X", ks)))
        if gate:
            d = GX + ks * 8
            o.append((f"ds_read_b128 v[{d}:{d+3}], v{(VGX0, VGX1)[ks]} offset:{XOFF + 2048}", ("X", ks)))
            o.append((f"ds_read_b128 v[{d+4}:{d+7}], v{VGW} offset:{ks*64}", ("X", ks)))
        return o
    def wait(b, tags):
        last = max(i for i, t in enumerate(q) if t in tags)
        b(f"s_waitcnt lgkmcnt({min(len(q) - 1 - last, 15)})")
    def mm(f):
        ks, seg, T = f // 15, (f % 15) // 5, f % 5
        wf = vr(RING + (f % 10) * 4); o = []
        def one(dst, xf):
            o.append(f"{MF} {vr(dst)}, {wf}, {xf}, {vr(dst)}" if seg < 2 else f"{MF} {vr(dst)}, {xf}, {wf}, {vr(dst)}")
        one(acc(seg, 0, T), vr(XB + (ks * 3) * 4)); one(acc(seg, 1, T), vr(XB + (ks * 3 + 1) * 4))
        if (seg, T) in HALO[w]: one(ACCH + 4 * HALO[w].index((seg, T)), vr(XB + (ks * 3 + 2) * 4))
        if gate and seg == 0 and T == 2:
            d = GX + ks * 8
            o.append(f"{MF} {vr(ACCH+8)}, {vr(d+4)}, {vr(d)}, {vr(ACCH+8)}")
        return o
    def weave(b, ms, fs, lastless=True):
        n = len(ms); k = len(fs)
        cnt = [0] * n
        for i in range(k):
            load = [cnt[j] + (1 if (lastless and j == n - 1) else 0) for j in range(n)]
            cnt[load.index(min(load))] += 1
        it = iter(fs)
        for m_, c_ in zip(ms, cnt):
            b(m_)
            for _ in range(c_):
                t = next(it)
                b(t[0])
                if t[1] is not None: q.append(t[1])
    FA = {s: [] for s in range(25, 30)}
    x0 = rdX(0)
    FA[25] = x0[:2] + rdW(0); FA[26] = x0[2:4] + rdW(1); FA[27] = x0[4:] + rdW(2); FA[28] = rdW(3); FA[29] = rdW(4)
    FB = {s: [] for s in range(25)}
    for f in range(D, 30): FB[istep(f)] += rdW(f)
    x1 = rdX(1)
    for i, t in enumerate(x1): FB[2 + i].append(t)
    sal = ["s_add_u32 s45, s45, 1", "s_cmp_eq_u32 s45, 3", f"s_cselect_b32 s46, {(-2*STAGE) & 0xffffffff}, s63", "s_cselect_b32 s45, 0, s45"]
    for i, t in enumerate(sal): FB[10 + i].append((t, None))
    if gate:
        sal = ["s_add_u32 s23, s23, 1", "s_cmp_eq_u32 s23, 10", "s_cselect_b32 s23, 0, s23", "s_cselect_b32 s47, -1152, s74"]
        for i, t in enumerate(sal): FB[16 + i].append((t, None))
        FB[20].append((f"v_add_u32 v{VGW}, s47, v{VGW}", None))
        FB[21].append((f"v_add_u32 v{VGX0}, s46, v{VGX0}", None)); FB[22].append((f"v_add_u32 v{VGX1}, s46, v{VGX1}", None))
    FB[20].append((f"v_add_u32 v{VX0}, s46, v{VX0}", None)) if not gate else FB[14].append((f"v_add_u32 v{VX0}, s46, v{VX0}", None))
    FB[23] += [(f"v_add_u32 v{VX1}, s46, v{VX1}", None), (f"v_add_u32 v{VWA}, s46, v{VWA}", None), (f"v_add_u32 v{VWB}, s46, v{VWB}", None)]
    FB[24] += [("s_add_u32 s44, s44, 1", None), ("s_cmp_eq_u32 s44, 10", None)]
    pre = Asm(); pa = Asm(); pb = Asm(); tail = Asm()
    stamp(pre, 5)
    pre("s_barrier")
    if STAMP: stamp2(pre, 6, 50)
    for s in range(25, 30):
        for t in FA[s]: pre(t[0])
    q.clear()
    pa("s_waitcnt lgkmcnt(0)"); pa("s_barrier")
    for s in range(25, 30): weave(pa, mm(s), FA[s], lastless=(s == 29))
    pa(f"s_branch L_LB{w}")
    for s in range(25):
        tags = [("W", s)] + ([("X", 0)] if s == 0 else []) + ([("X", 1)] if s == 15 else [])
        wait(pb, tags); weave(pb, mm(s), FB[s])
    pb(f"s_cbranch_scc1 L_T{w}")
    tail("s_waitcnt lgkmcnt(0)")
    for s in range(25, 30):
        for m_ in mm(s): tail(m_)
    tail(f"v_lshlrev_b32 v{VWA}, 3, v1")
    tail(f"v_add_u32 v{VX1}, {XCH}, v{VWA}")
    for n, (seg, T) in enumerate(HALO[w]):
        tail(f"v_cvt_pk_bf16_f32 v{172+2*n}, v{ACCH+4*n}, v{ACCH+4*n+1}")
        tail(f"v_cvt_pk_bf16_f32 v{173+2*n}, v{ACCH+4*n+2}, v{ACCH+4*n+3}")
        if (seg, T) == (1, 0): tail(f"v_writelane_b32 v{172+2*n}, 0, 0")
        tail(f"ds_write_b64 v{VX1}, v[{172+2*n}:{173+2*n}] offset:{((seg-1)*5+T)*512}")
    if gate:
        z = ACCH + 8
        tail(f"""v_cvt_pk_bf16_f32 v178, v{z}, v{z}
        v_and_b32 v178, 0xffff0000, v178
        v_mul_f32 v178, {LOG2E ^ 0x80000000}, v178
        v_exp_f32 v178, v178
        v_add_f32 v178, 1.0, v178
        v_rcp_f32 v178, v178
        v_cvt_pk_bf16_f32 v178, v178, v178
        v_and_b32 v178, 0xffff0000, v178
        v_lshlrev_b32 v179, 2, v1
        s_lshl_b32 s46, s21, 3
        s_add_u32 s46, s46, s20
        s_lshl_b32 s46, s46, 7
        s_add_u32 s46, s46, {WS_G}
        s_cmp_ge_u32 s20, 8
        s_cbranch_scc1 L_ATT
        s_mov_b32 exec_hi, 0
        buffer_store_dword v178, v179, s[32:35], s46 offen sc1
        s_mov_b32 exec_hi, -1""")
    else: tail("s_branch L_ATT")
    if w > 0: a(f"L_W{w}:")
    a.extend(pre); a(".p2align 3"); a(f"L_LB{w}:"); a.extend(pb); a.extend(pa); a(f"L_T{w}:"); a.extend(tail)
    traces.append(pre.L + pb.L + pa.L + pb.L + tail.L[:12])
a("L_ATT:")
a("s_nop 7")
if STAMP: stamp2(a, 30, 51)
KOP = {1: 140, 0: 156, -1: 180}
VOP = 48; QOP = 88
def kop(t, h): return KOP[t] + 4 * h
def vop(T, t): return VOP + 6 * T + 2 * (t + 1)
def qop(t, h): return QOP + 16 * t + 4 * h
def cvt(d, s): a(f"v_cvt_pk_bf16_f32 v{d}, v{s}, v{s+1}"); a(f"v_cvt_pk_bf16_f32 v{d+1}, v{s+2}, v{s+3}")
a(f"v_mov_b32 v249, {GW_LDS + 1536}"); a("ds_read_b32 v249, v249")
a("s_setprio 2")
a(f"s_mul_i32 s46, s22, 5120"); a(f"v_add_u32 v{VWB}, s46, v{VX1}")
a("s_cmp_eq_u32 s22, 3"); a("s_cselect_b64 s[72:73], 0, -1")
for t in (1, 0):
    for h in range(4):
        cvt(kop(t, h), acc(1, t, h)); cvt(kop(t, h) + 2, acc(1, t, 4))
for t in (1, 0):
    for T in range(5): cvt(vop(T, t), acc(2, t, T))
    if t == 1:
        a("s_cbranch_scc1 L_NOSEND")
        for h in range(4): a(f"ds_write_b64 v{VWB}, v[{kop(1,h)}:{kop(1,h)+1}] offset:{5120 + h*512}")
        a(f"ds_write_b64 v{VWB}, v[{kop(1,0)+2}:{kop(1,0)+3}] offset:{5120 + 4*512}")
        for T in range(5): a(f"ds_write_b64 v{VWB}, v[{vop(T,1)}:{vop(T,1)+1}] offset:{5120 + (5+T)*512}")
        a("L_NOSEND:")
for t in (1, 0):
    cvt(172 + 2 * t, acc(0, t, 4))
    for h in range(4): cvt(qop(t, h), acc(0, t, h))
    for h in range(4):
        for j in range(2): a(f"v_cndmask_b32 v{qop(t,h)+2+j}, 0, v{172+2*t+j}, s[{48+2*h}:{49+2*h}]")
stamp(a, 31)
a("s_waitcnt lgkmcnt(0)"); a("s_barrier")
stamp(a, 32)
for h in range(4):
    a(f"ds_read_b64 v[{kop(-1,h)}:{kop(-1,h)+1}], v{VWB} offset:{h*512}")
    a(f"ds_read_b64 v[{kop(-1,h)+2}:{kop(-1,h)+3}], v{VWB} offset:{4*512}")
for T in range(5): a(f"ds_read_b64 v[{vop(T,-1)}:{vop(T,-1)+1}], v{VWB} offset:{(5+T)*512}")
SREG = list(range(8, 48, 4)) + list(range(196, 220, 4))
def dc(t, h): return SREG[t * 4 + h]
def dp(t, h): return SREG[8 + t * 4 + h]
for h in range(4):
    a(f"{MF} {vr(dc(1,h))}, {vr(kop(1,h))}, {vr(qop(1,h))}, {vr(MC)}")
    a(f"{MF} {vr(dp(1,h))}, {vr(kop(0,h))}, {vr(qop(1,h))}, {vr(MP)}")
for h in range(4): a(f"{MF} {vr(dc(0,h))}, {vr(kop(0,h))}, {vr(qop(0,h))}, {vr(MC)}")
a("s_waitcnt lgkmcnt(0)")
for h in range(4): a(f"{MF} {vr(dp(0,h))}, {vr(kop(-1,h))}, {vr(qop(0,h))}, {vr(MP0)}")
stamp(a, 33)
a(f"s_mov_b32 s46, {CEXP}")
MX = {1: 120, 0: 124}; TMP = {1: 241, 0: 245}
for t in (1, 0):
    for h in range(4):
        for r in range(4): a(f"v_max_f32 v{dc(t,h)+r}, v{dc(t,h)+r}, v{dp(t,h)+r}")
        a(f"v_max3_f32 v{MX[t]+h}, v{dc(t,h)}, v{dc(t,h)+1}, v{dc(t,h)+2}")
        a(f"v_max_f32 v{MX[t]+h}, v{MX[t]+h}, v{dc(t,h)+3}")
def both(fn):
    for t in (1, 0): fn(MX[t])
both(lambda m: a(f"v_permlane32_swap_b32 v{m}, v{m+1}"))
both(lambda m: a(f"v_permlane32_swap_b32 v{m+2}, v{m+3}"))
both(lambda m: a(f"v_max_f32 v{m}, v{m}, v{m+1}"))
both(lambda m: a(f"v_max_f32 v{m+2}, v{m+2}, v{m+3}"))
both(lambda m: a(f"v_permlane16_swap_b32 v{m}, v{m+2}"))
both(lambda m: a(f"v_max_f32 v{m}, v{m}, v{m+2}"))
both(lambda m: a(f"v_mul_f32 v{m+2}, s46, v{m}"))
both(lambda m: a(f"v_mul_f32 v{m}, s46, v{m}"))
both(lambda m: a(f"v_permlane16_swap_b32 v{m}, v{m+2}"))
both(lambda m: a(f"v_mov_b32 v{m+1}, v{m}"))
both(lambda m: a(f"v_mov_b32 v{m+3}, v{m+2}"))
both(lambda m: a(f"v_permlane32_swap_b32 v{m}, v{m+1}"))
both(lambda m: a(f"v_permlane32_swap_b32 v{m+2}, v{m+3}"))
OREG = list(range(140, 172, 4)) + list(range(180, 196, 4)) + list(range(88, 120, 4)) + [128, 132, 136, 172]
def oo(t, h, k): return OREG[(t * 4 + h) * 3 + k]
for t in (1, 0):
    for h in range(4):
        for r in range(4): a(f"v_fma_f32 v{dc(t,h)+r}, v{dc(t,h)+r}, s46, -v{MX[t]+h}")
    for h in range(4):
        for r in range(4): a(f"v_exp_f32 v{dc(t,h)+r}, v{dc(t,h)+r}")
    for h in range(4):
        d = dc(t, h)
        a(f"v_cvt_pk_bf16_f32 v{d}, v{d}, v{d+1}"); a(f"v_cvt_pk_bf16_f32 v{d+2}, v{d+2}, v{d+3}")
        p = dp(t, h)
        a(f"v_and_b32 v{p}, v{AM}, v{d}"); a(f"v_and_b32 v{p+1}, v{AM+1}, v{d+2}")
        a(f"v_and_b32 v{p+2}, v{AM+2}, v{d}"); a(f"v_and_b32 v{p+3}, v{AM+3}, v{d+2}")
    for h in range(4):
        a(f"{MF} {vr(oo(t,h,2))}, {vr(ONES)}, {vr(dp(t,h))}, 0")
        a(f"{MF} {vr(oo(t,h,0))}, {vr(vop(h,t-1))}, {vr(dp(t,h))}, 0")
        a(f"{MF} {vr(oo(t,h,1))}, {vr(vop(4,t-1))}, {vr(dp(t,h))}, 0")
stamp(a, 34)
a("s_lshl_b32 s46, s21, 3"); a("s_lshl_b32 s47, s22, 1"); a("s_add_u32 s46, s46, s47")
a("s_mul_i32 s46, s46, 40960"); a("s_mul_i32 s47, s20, 2560"); a("s_add_u32 s46, s46, s47")
a("s_add_u32 s47, s46, 40960")
a(f"v_lshlrev_b32 v{VX0}, 4, v1")
for t in (1, 0):
    for h in range(4): a(f"v_rcp_f32 v{oo(t,h,2)}, v{oo(t,h,2)}")
    for h in range(4):
        for r in range(4): a(f"v_mul_f32 v{oo(t,h,0)+r}, v{oo(t,h,0)+r}, v{oo(t,h,2)}")
    for h in range(4):
        for r in range(4): a(f"v_mul_f32_dpp v{TMP[t]+r}, v{oo(t,h,1)+r}, v{oo(t,h,2)} quad_perm:[0,1,2,3] row_mask:{hex(1<<h)} bank_mask:0xf")
    for h in range(4): cvt(dc(t, h >> 1) + 2 * (h & 1), oo(t, h, 0))
    cvt(dc(t, 2), TMP[t])
    so = "s47" if t else "s46"
    a(f"buffer_store_dwordx4 {vr(dc(t,0))}, v{VX0}, s[32:35], {so} offen sc1")
    a(f"buffer_store_dwordx4 {vr(dc(t,1))}, v{VX0}, s[32:35], {so} offen offset:1024 sc1")
    a(f"buffer_store_dwordx2 {vr(dc(t,2),2)}, v{VWA}, s[32:35], {so} offen offset:2048 sc1")
if STAMP: stamp2(a, 35, 52)
a(f"v_mov_b32 v2, {CNT_LDS}"); a("v_mov_b32 v3, 1"); a("s_mov_b64 exec, 1")
a("s_waitcnt vmcnt(0)")
stamp(a, 36)
a("ds_add_rtn_u32 v5, v2, v3"); a("s_waitcnt lgkmcnt(0)")
a("v_readfirstlane_b32 s46, v5"); a("s_lshl_b32 s47, s21, 8"); a("s_lshl_b32 s48, s20, 2"); a("s_add_u32 s47, s47, s48"); a(f"s_add_u32 s47, s47, {WS_FO}"); a("v_mov_b32 v2, 0")
a("s_cmp_lg_u32 s46, 3"); a("s_cbranch_scc1 L_NOSIG")
a("buffer_store_dword v249, v2, s[32:35], s47 offen sc1")
a("L_NOSIG:")
a("s_mov_b64 exec, -1")
a("s_and_b32 s58, s20, 7"); a(f"s_mul_i32 s58, s58, 204800"); a(f"s_add_u32 s58, s58, {WS_WOT}")
a("v_lshlrev_b32 v12, 4, v1")
a("L_P2_PRE:")
WR = 16
OR_ = 136
NOR = 12
LR = 184
AC = 224
a("s_lshr_b32 s64, s22, 2")
a("s_mul_i32 s59, s64, 102400"); a("s_add_u32 s59, s59, s58")
for i in range(30):
    if i % 4 == 0 and i: a("s_add_u32 s59, s59, 4096")
    a(f"buffer_load_dwordx4 {vr(WR+4*i)}, v12, s[32:35], s59 offen offset:{(i%4)*1024} sc1")
a("""s_and_b32 s65, s22, 3
s_lshr_b32 s66, s20, 3
s_lshl_b32 s66, s66, 2
s_add_u32 s66, s66, s65
s_lshl_b32 s67, s21, 3
s_add_u32 s67, s67, s66
s_mul_i32 s59, s67, 40960
s_mul_i32 s60, s64, 20480
s_add_u32 s59, s59, s60
v_lshlrev_b32 v13, 3, v1
s_cmp_eq_u32 s64, 0
s_cselect_b32 s60, 0, 71680
v_add_u32 v14, s60, v12
s_mov_b32 s61, 147456
s_cselect_b32 s60, 55296, s61
v_add_u32 v15, s60, v12
v_and_b32 v4, 15, v1
v_lshlrev_b32 v5, 2, v4
s_lshl_b32 s62, s67, 7""")
a(f"s_add_u32 s62, s62, {WS_G}")
a("""s_mov_b32 s28, s18
s_mov_b32 s29, s19
s_mov_b32 s30, 2621440
s_mov_b32 s31, 0x20000""")
stamp(a, 37)
a("s_cmp_lt_u32 s22, 4"); a("s_cbranch_scc1 L_P2_BAR")
a("s_waitcnt vmcnt(0)")
stamp(a, 38)
a("s_cmp_lg_u32 s22, 4"); a("s_cbranch_scc1 L_P2_BAR")
a(f"""s_lshl_b32 s47, s21, 8
s_add_u32 s47, s47, {WS_FO}
v_mov_b32 v2, {CNT_LDS}
s_mov_b32 s60, 0
s_mov_b64 exec, 0xffff
L_C_POLL:
ds_read_b32 v3, v2
s_add_u32 s60, s60, 1
s_waitcnt lgkmcnt(0)
v_cmp_ne_u32 vcc, 4, v3
s_cbranch_vccz L_O_POLL
s_sleep 1
s_cmp_lt_u32 s60, {SPIN_MAX}
s_cbranch_scc1 L_C_POLL
L_O_POLL:
buffer_load_dword v3, v5, s[32:35], s47 offen sc1
s_add_u32 s60, s60, 1
s_waitcnt vmcnt(0)
v_cmp_ne_u32 vcc, s75, v3
s_cbranch_vccz L_O_OK
s_sleep {int(OPT.get("psleep", 2))}
s_cmp_lt_u32 s60, {SPIN_MAX}
s_cbranch_scc1 L_O_POLL
L_O_OK:
s_mov_b64 exec, -1""")
a("L_P2_BAR:")
a("s_barrier")
if STAMP: stamp2(a, 39, 53)
a("s_setprio 0")
order = list(range(6, 20)) + list(range(6))
vq = []; lq = []
def ld_o(i):
    s = order[i]; m, ss = s // 5, s % 5
    d = OR_ + (i % NOR) * 4
    if ss < 4:
        off = m * 5120 + (ss >> 1) * 2560 + (ss & 1) * 1024
        a(f"s_add_u32 s60, s59, {off}"); a(f"buffer_load_dwordx4 {vr(d)}, v12, s[32:35], s60 offen sc1"); vq.append(i)
    else:
        a(f"s_add_u32 s60, s59, {m*5120 + 2048}")
        a(f"buffer_load_dwordx2 {vr(d,2)}, v13, s[32:35], s60 offen sc1"); vq.append(i)
        a(f"buffer_load_dwordx2 {vr(d+2,2)}, v13, s[32:35], s60 offen offset:2560 sc1"); vq.append(i)
def ld_w(i):
    if i >= 14: return []
    o = []
    for T in range(5):
        l = i * 5 + T; d = LR + (l % 10) * 4
        o.append(f"ds_read_b128 {vr(d)}, v{14 if l < 54 else 15} offset:{(l if l < 54 else l - 54) * 1024}")
    return o
for i in range(OA): ld_o(i)
a("buffer_load_dword v6, v5, s[32:35], s62 offen sc1"); vq.append(-1)
for x in ld_w(0): a(x)
for i in range(20):
    nxt = ld_w(i + 1)
    last = max(j for j, t in enumerate(vq) if t == i)
    a(f"s_waitcnt vmcnt({len(vq)-1-last}) lgkmcnt(0)")
    for T in range(5):
        wf = vr(LR + ((i * 5 + T) % 10) * 4) if i < 14 else vr(WR + ((i - 14) * 5 + T) * 4)
        a(f"{MF} {vr(AC+4*T)}, {wf}, {vr(OR_ + (i % NOR)*4)}, {'0' if i == 0 else vr(AC+4*T)}")
        if nxt: a(nxt[T])
    if i + OA < 20: ld_o(i + OA)
if STAMP: stamp2(a, 40 - 40 + 56, 54)
a(f"s_mul_i32 s60, s65, 5120"); a(f"s_add_u32 s60, s60, {XCH}"); a("v_add_u32 v14, s60, v12")
a("s_cmp_eq_u32 s64, 0"); a("s_cbranch_scc1 L_EPI_A")
a("v_sub_f32 v7, 1.0, v6"); a("v_cvt_pk_bf16_f32 v7, v7, v7"); a("v_and_b32 v7, 0xffff0000, v7")
for r in range(20): a(f"v_mul_f32 v{AC+r}, v{AC+r}, v7")
for T in range(5): a(f"ds_write_b128 v14, {vr(AC+4*T)} offset:{T*1024}")
a("s_waitcnt lgkmcnt(0)"); a("s_barrier")
a("s_branch L_FIN")
a("L_EPI_A:")
a("""s_lshr_b32 s46, s67, 4
s_lshl_b32 s46, s46, 8
s_bfe_u32 s47, s67, 0x10003
s_add_u32 s46, s46, s47
s_and_b32 s47, s67, 7
s_lshl_b32 s47, s47, 5
s_add_u32 s46, s46, s47
s_mul_i32 s46, s46, 1280
s_and_b32 s47, s20, 7
s_mul_i32 s47, s47, 160
s_add_u32 s46, s46, s47
v_mul_u32_u24 v4, 2560, v4
v_lshrrev_b32 v5, 4, v1
v_lshl_add_u32 v2, v5, 4, v4
v_lshl_add_u32 v3, v5, 3, v4
s_barrier""")
for T in range(5): a(f"ds_read_b128 {vr(WR+4*T)}, v14 offset:{T*1024}")
for T in range(5):
    a(f"s_waitcnt lgkmcnt({4-T})")
    for r in range(4): a(f"v_fmac_f32 v{WR+4*T+r}, v{AC+4*T+r}, v6")
    a(f"v_cvt_pk_bf16_f32 v{OR_+2*T}, v{WR+4*T}, v{WR+4*T+1}"); a(f"v_cvt_pk_bf16_f32 v{OR_+2*T+1}, v{WR+4*T+2}, v{WR+4*T+3}")
    if T == 1: a(f"buffer_store_dwordx4 {vr(OR_)}, v2, s[28:31], s46 offen")
    if T == 3: a(f"buffer_store_dwordx4 {vr(OR_+4)}, v2, s[28:31], s46 offen offset:64")
a(f"buffer_store_dwordx2 {vr(OR_+8,2)}, v3, s[28:31], s46 offen offset:128")
a("L_FIN:")
if STAMP:
    stamp(a, 57)
    a("s_waitcnt vmcnt(0)")
    stamp(a, 62); stamp(a, 63, True)
    a(f"s_lshl_b32 s46, s2, 3"); a(f"s_add_u32 s46, s46, s22"); a("s_lshl_b32 s46, s46, 8"); a(f"s_add_u32 s46, s46, {WS_ST}")
    a(f"v_lshlrev_b32 v2, 2, v1")
    a(f"buffer_store_dword v{SV}, v2, s[32:35], s46 offen")
a("L_END:"); a("s_endpgm")

l1, _ = fix(a.L)
for tr in traces:
    _, iss_ = fix(tr, verify=True)
    for x in iss_: print("; TRACE HAZARD", x, file=sys.stderr)
print(f"""; gated mix of two dilated sliding-window attention blocks (generated by gen/gen3.py)
; @launch grid=(256,1,1) block=(512,1,1) lds={LDS_TOTAL}
.amdgcn_target "amdgcn-amd-amdhsa--gfx950"
.text
.globl {KN}
.p2align 8
.type {KN},@function""")
print("\n".join(l1))
print("CODE_END:")
print('.section .rodata,"a"')
print(kd(KN, 256, 102, 256))
```

```python
import re
TRANS = ("v_exp_f32", "v_log_f32", "v_rcp_f32", "v_rsq_f32", "v_sqrt_f32", "v_sin_f32", "v_cos_f32")
_REG = re.compile(r"^(-|\|)?(?:abs\()?([vas])(?:(\d+)|\[(\d+):(\d+)\])\)?\|?$")
def regs(tok):
    tok = tok.strip()
    if tok in ("vcc",): return {("s", 106), ("s", 107)}
    if tok == "exec": return {("s", 126), ("s", 127)}
    if tok == "m0": return {("s", 124)}
    m = _REG.match(tok)
    if not m: return set()
    k = m.group(2)
    if m.group(3) is not None: return {(k, int(m.group(3)))}
    return {(k, i) for i in range(int(m.group(4)), int(m.group(5)) + 1)}
def split_ops(s):
    out, d, cur = [], 0, ""
    for ch in s:
        if ch == "[" or ch == "(": d += 1
        if ch == "]" or ch == ")": d -= 1
        if ch == "," and d == 0: out.append(cur.strip()); cur = ""
        else: cur += ch
    if cur.strip(): out.append(cur.strip())
    return out
class Ins:
    def __init__(self, text):
        self.text = text
        t = text.split(";")[0].strip()
        self.label = t.endswith(":")
        self.dir = t.startswith(".") or t == ""
        self.w = set(); self.r = set(); self.kind = "other"; self.ws = 1
        self.dpp = False; self.perm = False; self.rl = False; self.C = set(); self.AB = set(); self.wide = set(); self.lds_dma = False
        self.mn = ""
        if self.label or self.dir: self.ws = 0; return
        p = t.split(None, 1); mn = p[0]; self.mn = mn
        rest = p[1] if len(p) > 1 else ""
        ops = split_ops(rest)
        if ops:
            lastparts = ops[-1].split()
            mods = lastparts[1:]; ops[-1] = lastparts[0]
        else: mods = []
        R = [regs(o) for o in ops]
        if mn == "s_nop": self.ws = int(ops[0], 0) + 1; return
        if mn.startswith("v_mfma"):
            self.kind = "mfma"; self.w = R[0]; self.AB = R[1] | R[2]; self.C = R[3]; self.r = self.AB | self.C
            self.passes = 8 if "32x32" in mn else 4
        elif mn.startswith("v_"):
            self.kind = "trans" if mn.replace("_e32", "").replace("_e64", "") in TRANS else "valu"
            if mn.startswith("v_permlane") and "swap" in mn:
                self.w = R[0] | R[1]; self.r = R[0] | R[1]; self.perm = True
            elif mn.startswith("v_readfirstlane") or mn.startswith("v_readlane"):
                self.w = R[0]; self.r = set().union(*R[1:]); self.rl = True
            elif mn.startswith("v_cmp"):
                self.w = R[0]; self.r = set().union(*R[1:])
            elif mn.startswith(("v_add_co", "v_sub_co", "v_addc_co", "v_subb_co")):
                self.w = R[0] | R[1]; self.r = set().union(*R[2:])
            else:
                self.w = R[0]; self.r = set().union(*R[1:]) if len(R) > 1 else set()
                if mn.startswith(("v_fmac", "v_dot2c", "v_pk_fmac")): self.r |= R[0]
                if "_dpp" in mn or any(m.startswith(("row_", "quad_perm")) for m in mods):
                    self.dpp = True; self.r |= R[0]; self.dppsrc = R[1]
        elif mn.startswith("ds_"):
            self.kind = "ds"
            if mn.startswith(("ds_read", "ds_bpermute", "ds_permute", "ds_swizzle")): self.w = R[0]; self.r = set().union(*R[1:])
            else: self.r = set().union(*R)
        elif mn.startswith(("buffer_", "global_")):
            self.kind = "vmem"
            if mn in ("buffer_wbl2", "buffer_inv"): return
            if "lds" in mods or "_lds_" in mn:
                self.lds_dma = True; self.r = set().union(*R) | {("s", 124)}
            elif "load" in mn: self.w = R[0]; self.r = set().union(*R[1:])
            elif "atomic" in mn:
                self.r = set().union(*R)
                if "sc0" in mods: self.w = R[0]
            else:
                self.r = set().union(*R)
                if "x3" in mn or "x4" in mn: self.wide = R[0] if mn.startswith("buffer") else R[1]
        elif mn.startswith("s_"):
            self.kind = "salu"
            if mn.startswith(("s_cmp", "s_cbranch", "s_branch", "s_waitcnt", "s_barrier", "s_endpgm", "s_setprio", "s_sleep")):
                self.r = set().union(*R) if R else set()
            else:
                self.w = R[0] if R else set(); self.r = set().union(*R[1:]) if len(R) > 1 else set()
                if "saveexec" in mn: self.w |= regs("exec")
def isv(s): return {x for x in s if x[0] in "va"}
def iss(s): return {x for x in s if x[0] == "s"}
def need(p, c):
    n = 0
    pv = p.kind in ("valu", "trans"); cv = c.kind in ("valu", "trans")
    if pv:
        pw = isv(p.w)
        if c.kind == "mfma" and pw & c.r: n = max(n, 2)
        if cv and c.dpp and pw & c.r: n = max(n, 2)
        if cv and c.perm and pw & c.r: n = max(n, 2)
        if cv and c.rl and pw & c.r: n = max(n, 1)
        if p.kind == "trans" and c.kind == "valu" and pw & c.r: n = max(n, 1)
        if p.mn.startswith("v_dot") and cv and (pw & (c.r | c.w)) and c.mn != p.mn: n = max(n, 3)
        sw = iss(p.w)
        if sw:
            if cv and sw & c.r: n = max(n, 4 if c.rl else 2)
            if c.kind == "vmem" and sw & c.r: n = max(n, 5)
            if c.kind == "salu" and sw & c.r: n = max(n, 1)
    if p.kind == "mfma":
        big = {4: 8, 8: 12}[p.passes]
        if c.kind == "mfma":
            if p.w & c.AB: n = max(n, big)
            if p.w & c.C and (p.w != c.C or p.passes != c.passes): n = max(n, big - 2)
            if p.w & c.w and p.w != c.C: n = max(n, big - 2)
        elif cv:
            if p.w & (c.r | c.w): n = max(n, big)
            if p.C & c.w: n = max(n, {4: 3, 8: 7}[p.passes])
        elif c.kind in ("ds", "vmem"):
            if p.w & (c.r | c.w): n = max(n, big)
            if p.C & c.w: n = max(n, {4: 3, 8: 7}[p.passes])
    if p.kind == "salu" and ("s", 124) in p.w and c.lds_dma: n = max(n, 1)
    if p.wide and p.wide & c.w: n = max(n, 2 if cv else 1)
    return n
def fix(lines, verify=False):
    out = []; issues = []
    for l in lines:
        c = Ins(l)
        if not (c.label or c.dir):
            dist = 0; req = 0
            for p in reversed(out):
                if dist >= 20: break
                if not (p.label or p.dir):
                    k = need(p, c) - dist
                    if k > req: req = k; who = p
                    dist += p.ws
            if req > 0:
                if verify: issues.append((who.text, c.text, req))
                else:
                    while req > 0:
                        k = min(req, 16); out.append(Ins(f"s_nop {k-1}")); req -= k
        out.append(c)
    return ([i.text for i in out], issues)
class Asm:
    def __init__(self): self.L = []
    def __call__(self, s):
        for l in s.split("\n"):
            l = l.strip()
            if l: self.L.append(l)
    def extend(self, o): self.L.extend(o.L)
def vr(b, n=4, k="v"): return f"{k}[{b}:{b+n-1}]" if n > 1 else f"{k}{b}"
def kd(name, vgpr, sgpr=102, acc=None):
    acc = acc if acc is not None else (vgpr + 3) // 4 * 4
    return f""".p2align 6
.amdhsa_kernel {name}
  .amdhsa_next_free_vgpr {vgpr}
  .amdhsa_next_free_sgpr {sgpr}
  .amdhsa_accum_offset {acc}
  .amdhsa_group_segment_fixed_size 0
  .amdhsa_kernarg_size 80
  .amdhsa_user_sgpr_count 2
  .amdhsa_user_sgpr_kernarg_segment_ptr 1
  .amdhsa_system_sgpr_workgroup_id_x 1
.end_amdhsa_kernel"""

def schedule(lines, ds_lat=120, st_lat=0, rd_lat=20, wr_lat=24):
    ins = [Ins(l) if not l.startswith("@wait") else None for l in lines]
    n = len(lines)
    R = []; W = []
    pend = set()
    for i, l in enumerate(lines):
        if ins[i] is None:
            x = Ins("s_waitcnt lgkmcnt(0)"); x.kind = "wait"; x.w = set(pend); x.r = set(pend); pend = set(); ins[i] = x
        elif ins[i].kind == "ds" and ins[i].w: pend |= ins[i].w
    def cost(x): return 8 if (x.kind in ("trans", "mfma") or x.perm) else 4
    SCC = ("s", 200)
    for x in ins:
        if x.kind == "salu" and not x.mn.startswith(("s_mov", "s_mul", "s_setprio", "s_nop")):
            if x.mn.startswith("s_cselect"): x.r = x.r | {SCC}
            else: x.w = x.w | {SCC}
    succ = [[] for _ in range(n)]; npred = [0] * n
    for j in range(n):
        for i in range(j):
            p, c = ins[i], ins[j]
            dep = False; lat = 0
            if p.w & c.r or p.w & c.w or p.r & c.w: dep = True
            mem = ("ds", "vmem", "wait")
            if p.kind in mem and c.kind in mem and (p.kind == c.kind or "wait" in (p.kind, c.kind)) and not (p.kind == "vmem" and c.kind == "wait") and not (p.kind == "wait" and c.kind == "vmem"): dep = True
            if dep:
                lat = cost(p) + 4 * need(p, c)
                if p.kind == "mfma" and (p.w & (c.r | c.w)) and not (c.kind == "mfma" and p.w == c.C): lat = max(lat, 44)
                if p.kind == "mfma" and c.kind == "mfma" and p.w == c.C: lat = 16
                if p.kind == "ds" and c.kind == "wait": lat = ds_lat
                if p.mn == "ds_write_b64" and c.mn == "ds_write_b64": lat = max(lat, wr_lat)
                if p.mn == "ds_read_b128" and c.mn == "ds_read_b128": lat = max(lat, rd_lat)
                if p.kind == "vmem" and c.kind == "vmem": lat = max(lat, st_lat)
                if p.kind in ("valu", "trans") and p.w & c.r: lat = max(lat, cost(p) + 4)
                succ[i].append((j, lat)); npred[j] += 1
    prio = [0] * n
    for i in reversed(range(n)):
        prio[i] = cost(ins[i]) + max([l + prio[j] - cost(ins[i]) for j, l in succ[i]] + [0])
    ready_at = [0] * n; done = [False] * n; t = 0; mf_free = 0; out = []
    avail = [i for i in range(n) if npred[i] == 0]
    while avail:
        def start(i): return max(t, ready_at[i], mf_free if ins[i].kind == "mfma" else 0)
        now = [i for i in avail if start(i) <= t]
        if now: i = max(now, key=lambda k: (ins[k].kind == "mfma", prio[k], -k))
        else: i = min(avail, key=lambda k: (start(k), -prio[k]))
        s = start(i); t = s + cost(ins[i])
        if ins[i].kind == "mfma": mf_free = s + 16
        avail.remove(i); out.append(ins[i].text)
        for j, l in succ[i]:
            ready_at[j] = max(ready_at[j], s + l); npred[j] -= 1
            if npred[j] == 0: avail.append(j)
    assert len(out) == n
    return out, t
```

```python
import sys, struct, math
sys.path.insert(0, "gen")
from asmlib import *
NAME = "gated_mix__sliding_local_dilated__sliding_local_dilated__prompt"
KN = NAME + "_kernel"
OPT = dict(a.split("=") for a in sys.argv[1:])
STAMP = int(OPT.get("stamp", 0)); ROT = int(OPT.get("rot", 1)); CPF = int(OPT.get("cpf", 1))
OF = OPT.get("of", "sc1").replace("-", ""); WF = OPT.get("wf", "sc1").replace("-", ""); CM = int(OPT.get("cm", 1)); PF = OPT.get("pf", "0"); ROT2 = int(OPT.get("rot2", 0)); WPF = int(OPT.get("wpf", 0)); PK = int(OPT.get("pk", 1)); SCHED = int(OPT.get("sched", 1)); OA = int(OPT.get("oa", 8))
def f2u(x): return struct.unpack("<I", struct.pack("<f", x))[0]
STAGE = 49152; XOFF = 30720
GW_LDS = 147456; SCR_LDS = 149504; LDS_TOTAL = 163840
XCH = 126976
WS_O = 0; WS_WOT = 0x600000; WS_G = 0x800000; WS_ST = 0x1000000; WS_FO = 0x900000; WS_FW = 0x910000
NEG = f2u(-1e30)
CEXP = f2u(20 ** -0.5 * math.log2(math.e))
LOG2E = f2u(math.log2(math.e))
MF = "v_mfma_f32_16x16x32_bf16"
SPIN_MAX = 1 << 18
SV = 255
def stamp(a, idx, real=False):
    if not STAMP: return
    a(f"{'s_memrealtime' if real else 's_memtime'} s[68:69]"); a("s_waitcnt lgkmcnt(0)"); a(f"v_writelane_b32 v{SV}, s68, {idx}")
SPIN = OPT.get("spin", "")
def ev(a, name):
    if SPIN == name: a("s_memrealtime s[96:97]"); a("s_waitcnt lgkmcnt(0)")
def stamp2(a, idx, ridx):
    stamp(a, idx); stamp(a, ridx, True)

a = Asm()
traces = []
a(f"{KN}:")
a("s_load_dwordx8 s[4:11], s[0:1], 0")
a("s_load_dwordx8 s[12:19], s[0:1], 32")
a("s_load_dwordx4 s[76:79], s[0:1], 64")
a("s_cmp_ge_u32 s2, 256"); a("s_cbranch_scc1 L_END")
if STAMP: a(f"v_mov_b32 v{SV}, 0"); stamp(a, 0, True); stamp(a, 1)
ev(a, "start")
a("""v_lshrrev_b32 v2, 6, v0
v_and_b32 v1, 63, v0
v_readfirstlane_b32 s22, v2
s_and_b32 s20, s2, 3
s_lshl_b32 s20, s20, 2
s_bfe_u32 s46, s2, 0x20003
s_add_u32 s20, s20, s46
s_lshr_b32 s47, s2, 5
s_and_b32 s21, s2, 4
s_lshl_b32 s21, s21, 1
s_add_u32 s21, s21, s47""")
if ROT:
    a("""s_mul_i32 s23, s46, 5
    s_add_u32 s23, s23, 1
    s_lshr_b32 s23, s23, 1
    s_add_u32 s23, s23, s47
    s_sub_u32 s46, s23, 10
    s_cselect_b32 s23, s23, s46""")
else: a("s_mov_b32 s23, 0")
a(f"s_mov_b32 s63, {STAGE}")
def consumer_ids():
    if CM:
        a("s_bfe_u32 s84, s2, 0x30003"); a("s_and_b32 s85, s2, 7"); a("s_lshl_b32 s85, s85, 2"); a("s_lshr_b32 s86, s2, 6"); a("s_add_u32 s85, s85, s86")
    else:
        a("s_and_b32 s84, s20, 7"); a("s_lshl_b32 s85, s21, 1"); a("s_lshr_b32 s86, s20, 3"); a("s_add_u32 s85, s85, s86")
a("""s_mov_b32 s27, 0x20000
s_cmp_ge_u32 s22, 4
s_cbranch_scc1 L_LOADER""")
if PF != "0":
    a("""s_lshr_b32 s44, s2, 3
    s_bitcmp1_b32 s22, 0
    s_cbranch_scc1 L_PFX
    v_mul_u32_u24 v3, 13108, v1
    v_lshrrev_b32 v3, 16, v3
    v_mul_u32_u24 v4, 640, v3
    v_lshl_add_u32 v4, v1, 7, v4
    v_cmp_lt_u32 vcc, 29, v1
    v_mov_b32 v5, 238080
    s_mul_i32 s56, s44, 7680
    s_and_b32 s45, s2, 1
    v_cndmask_b32 v5, 0, v5, vcc
    s_mul_i32 s45, s45, 640
    v_add_u32 v254, v4, v5
    s_add_u32 s56, s56, s45
    s_mov_b32 s57, 491520
    s_mov_b32 s26, 2457600
    s_cmp_ge_u32 s20, 8
    s_waitcnt lgkmcnt(0)
    s_cselect_b32 s24, s12, s6
    s_cselect_b32 s25, s13, s7
    s_branch L_PFGO
    L_PFX:
    v_lshrrev_b32 v3, 1, v1
    v_mul_u32_u24 v3, 1280, v3
    v_and_b32 v4, 1, v1
    v_lshl_add_u32 v254, v4, 7, v3
    s_and_b32 s45, s2, 4
    s_lshl_b32 s45, s45, 3
    s_add_u32 s44, s44, s45
    s_mul_i32 s56, s44, 40960
    s_mov_b32 s57, 256
    s_mov_b32 s26, 2621440
    s_waitcnt lgkmcnt(0)
    s_mov_b32 s24, s4
    s_mov_b32 s25, s5
    L_PFGO:
    s_lshr_b32 s44, s22, 1
    s_mul_i32 s45, s44, s57
    s_add_u32 s56, s56, s45""")
    if PF == "A": a("s_cmp_lg_u32 s44, 0"); a("s_cbranch_scc1 L_COMPUTE")
    a("buffer_load_dword v241, v254, s[24:27], s56 offen")
a("s_branch L_COMPUTE")
a("L_LOADER:")
a("s_setprio 3")
a("""v_lshrrev_b32 v3, 3, v1
v_mul_u32_u24 v3, 2560, v3
v_lshrrev_b32 v4, 4, v0
v_xor_b32 v4, v4, v1
v_and_b32 v4, 7, v4
v_lshl_add_u32 v11, v4, 4, v3
v_mul_u32_u24 v3, 6554, v1
v_lshrrev_b32 v3, 16, v3
v_mul_u32_u24 v4, 1120, v3
v_lshl_add_u32 v10, v1, 4, v4
s_and_b32 s64, s22, 3
s_lshr_b32 s44, s21, 1
s_lshl_b32 s44, s44, 8
s_and_b32 s45, s21, 1
s_add_u32 s44, s44, s45
s_lshl_b32 s45, s64, 4
s_add_u32 s44, s44, s45
s_mul_i32 s47, s44, 1280
s_lshl_b32 s45, s23, 7
s_add_u32 s47, s47, s45
s_lshr_b32 s44, s21, 1
s_lshr_b32 s45, s64, 1
s_or_b32 s44, s44, s45
s_cselect_b32 s52, -40960, 0
s_and_b32 s46, s20, 7
s_mul_i32 s46, s46, 160
s_lshl_b32 s44, s23, 2
s_add_u32 s44, s44, s64
s_mul_i32 s44, s44, 61440
s_add_u32 s46, s46, s44
s_mul_i32 s48, s64, 7680
s_lshl_b32 s53, s64, 10
s_mov_b32 s49, 0
s_mov_b32 s50, 0
s_mov_b32 s26, 2457600
s_mov_b32 s30, 2621440
s_mov_b32 s31, 0x20000
s_cmp_ge_u32 s20, 8
s_waitcnt lgkmcnt(0)
s_cselect_b32 s24, s12, s6
s_cselect_b32 s25, s13, s7
s_mov_b32 s28, s4
s_mov_b32 s29, s5""")
stamp(a, 2)
a("L_LD_ISSUE:")
a(f"s_add_u32 m0, s53, {XOFF}"); a("s_add_u32 s51, s47, s52"); a("buffer_load_dwordx4 v11, s[28:31], s51 offen lds")
for qq in range(1, 4):
    a(f"s_add_u32 m0, s53, {XOFF + 4096*qq}"); a(f"s_add_u32 s51, s47, {(64*qq-32)*1280}"); a("buffer_load_dwordx4 v11, s[28:31], s51 offen lds")
a("s_cmp_ge_u32 s64, 2"); a("s_cbranch_scc1 L_LD_W")
a(f"s_add_u32 m0, s53, {XOFF + 4096*4}"); a(f"s_add_u32 s51, s47, {(64*4-32)*1280}"); a("buffer_load_dwordx4 v11, s[28:31], s51 offen lds")
a("L_LD_W:")
a("s_mov_b32 exec_hi, 0x0fffffff")
for qq in range(8):
    r = 2 * qq; k = (r & 0x33) | ((r & 4) << 1) | ((r & 8) >> 1)
    a(f"s_add_u32 m0, s48, {960*qq}"); a(f"s_add_u32 s51, s46, {k*3840}"); a("buffer_load_dwordx4 v10, s[24:27], s51 offen lds")
a(f"""s_mov_b32 exec_hi, -1
s_add_u32 s23, s23, 1
s_cmp_eq_u32 s23, 10
s_cselect_b32 s23, 0, s23
s_cselect_b32 s51, -9, 1
s_mul_i32 s44, s51, 245760
s_add_u32 s46, s46, s44
s_lshl_b32 s44, s51, 7
s_add_u32 s47, s47, s44
s_add_u32 s49, s49, 1
s_cmp_eq_u32 s49, 3
s_cselect_b32 s51, {(-2*STAGE) & 0xffffffff}, s63
s_cselect_b32 s49, 0, s49
s_add_u32 s48, s48, s51
s_add_u32 s53, s53, s51
s_add_u32 s50, s50, 1""")
def lstamp(base):
    if STAMP == 1: a("s_memtime s[68:69]"); a("s_waitcnt lgkmcnt(0)"); a(f"s_add_u32 m0, s50, {base}"); a(f"v_writelane_b32 v{SV}, s68, m0")
lstamp(9)
a("""s_cmp_ge_u32 s50, 2
s_cbranch_scc1 L_LD_EXTRA""")
a(f"""s_mov_b32 s32, s78
s_mov_b32 s33, s79
s_mov_b32 s34, 0x10000000
s_mov_b32 s35, 0x20000
s_mov_b32 s40, s76
s_mov_b32 s41, s77
s_mov_b32 s42, 256
s_mov_b32 s43, 0x20000
s_mov_b32 s36, s16
s_mov_b32 s37, s17
s_mov_b32 s38, 1280
s_mov_b32 s39, 0x20000
s_mov_b32 s56, 0
v_lshlrev_b32 v12, 4, v1
v_mov_b32 v13, 0
s_cmp_lt_u32 s64, 2
s_cbranch_scc1 L_LD_ISSUE
s_sub_u32 s44, s64, 2
s_lshl_b32 s45, s44, 10
s_add_u32 m0, s45, {GW_LDS}
s_lshl_b32 s57, s44, 8
buffer_load_dwordx4 v12, s[36:39], s45 offen lds
s_add_u32 s57, s57, s2
s_cmp_lt_u32 s57, 320
s_cselect_b32 s56, 1, 0
s_branch L_LD_ISSUE""")
a("L_LD_EXTRA:")
a("""s_bitcmp1_b32 s50, 0
s_cbranch_scc1 L_LD_WAIT
s_cmp_eq_u32 s50, 2
s_cbranch_scc1 L_TOK_A
s_cmp_eq_u32 s50, 4
s_cbranch_scc1 L_TOK_B
s_cmp_eq_u32 s50, 6
s_cbranch_scc1 L_SIDE_C
s_cmp_eq_u32 s50, 8
s_cbranch_scc1 L_WOF_A
s_branch L_WOF_B""")
a("L_LD_WAIT:")
a("s_waitcnt vmcnt(12)")
a("L_LD_BAR:")
lstamp(18)
a("s_barrier")
if STAMP == 1: a("s_memrealtime s[68:69]"); a("s_waitcnt lgkmcnt(0)"); a(f"s_add_u32 m0, s50, 38"); a(f"v_writelane_b32 v{SV}, s68, m0")
a("""s_cmp_lt_u32 s50, 10
s_cbranch_scc1 L_LD_ISSUE""")
a("s_setprio 0")
stamp(a, 28)
CL = {"S1": (0, 24, 49152, 24576), "S2": (24, 14, 98304, 14336), "S0": (38, 24, 0, 24576), "TOP": (62, 8, 147456, 8192),
      "R1": (70, 20, 49152, 24576), "X": (90, 10, XCH, 10240)}
a(f"""s_lshr_b32 s44, s64, 1
s_and_b32 s45, s64, 1
s_lshl_b32 s45, s45, 10
s_mul_i32 s59, s44, 102400
s_add_u32 s59, s59, s58
s_add_u32 s55, s59, 102400
s_and_b32 s54, s20, {3 if ROT2 else 0}
s_mul_i32 s54, s54, 25600
s_add_u32 s59, s59, s54
s_add_u32 s59, s59, s45""")
def dma_class(nm, lo=0, hi=None):
    l0, n, base, delta = CL[nm]
    a(f"s_mul_i32 s53, s44, {delta}"); a("s_add_u32 s53, s53, s45")
    for j in range(lo, n if hi is None else hi, 2):
        a(f"s_add_u32 m0, s53, {base + j*1024}"); a(f"s_add_u32 s51, s59, {(l0 + j)*1024}")
        if ROT2 and l0 + j + 1 >= 25:
            a("s_sub_u32 s54, s51, 102400"); a("s_cmp_ge_u32 s51, s55"); a("s_cselect_b32 s51, s54, s51")
        a(f"buffer_load_dwordx4 v12, s[32:35], s51 offen {WF} lds")
NS1 = int(OPT.get("ns1", 12))
dma_class("S1", 0, NS1)
a(f"s_waitcnt vmcnt({NS1//2 + (1 if WPF else 0)})")
stamp(a, 29)
a("s_barrier")
dma_class("S1", NS1); dma_class("S2")
a("s_waitcnt vmcnt(7)")
stamp(a, 30)
a("s_barrier")
dma_class("S0"); dma_class("TOP")
a("s_branch L_P2_PRE")
a("L_SIDE_A:")
a("""s_and_b32 s45, s57, 7
s_lshr_b32 s44, s57, 3
s_mul_i32 s61, s45, 204800
s_mul_i32 s58, s44, 5120
s_add_u32 s61, s61, s58
s_mul_i32 s58, s44, 52
s_lshr_b32 s58, s58, 8
s_mul_i32 s59, s58, 5
s_sub_u32 s59, s44, s59
s_cmp_ge_u32 s58, 4
s_cselect_b32 s36, s14, s8
s_cselect_b32 s37, s15, s9
s_mov_b32 s38, 819200
s_and_b32 s58, s58, 3
s_mul_i32 s58, s58, 160
s_mul_i32 s60, s59, 40
s_cmp_eq_u32 s59, 4
s_cselect_b32 s60, 16, s60
s_cselect_b32 s54, 80, 20
s_cselect_b32 s55, 20, 4
s_add_u32 s58, s58, s60
s_mul_i32 s58, s58, 1280
s_mul_i32 s60, s45, 160
s_add_u32 s58, s58, s60
s_mul_i32 s54, s54, 1280
s_mul_i32 s55, s55, 1280""")
a(f"s_add_u32 s61, s61, {WS_WOT}")
a(f"s_mul_i32 s62, s64, 5120"); a(f"s_add_u32 s62, s62, {SCR_LDS - 2*5120}")
a("s_mov_b32 exec_hi, 0xff")
for g in range(4):
    for jh in range(2):
        a(f"s_add_u32 m0, s62, {(16*(g>>1) + 8*jh + 4*(g&1))*160}")
        if jh == 0: a("s_nop 0"); a("buffer_load_dwordx4 v10, s[36:39], s58 offen lds")
        else: a("s_add_u32 s51, s58, s54"); a("buffer_load_dwordx4 v10, s[36:39], s51 offen lds"); a("s_add_u32 s58, s58, s55")
a("s_mov_b32 exec_hi, -1")
a("s_waitcnt vmcnt(21)"); a("s_branch L_LD_BAR")
a("L_SIDE_B:")
a("""v_lshrrev_b32 v16, 5, v1
v_lshlrev_b32 v16, 4, v16
v_bfe_u32 v17, v1, 4, 1
v_lshl_add_u32 v16, v17, 2, v16
v_bfe_u32 v17, v1, 2, 2
v_add_u32 v16, v16, v17
v_mul_u32_u24 v16, 160, v16
v_add_u32 v16, s62, v16
v_and_b32 v17, 3, v1
v_lshl_add_u32 v18, v17, 4, v16
v_lshl_add_u32 v19, v17, 3, v16""")
for T in range(5):
    for j in range(2):
        if T < 4: a(f"ds_read_b64_tr_b16 v[{20+4*T+2*j}:{21+4*T+2*j}], v18 offset:{j*1280 + 64*(T>>1) + 8*(T&1)}")
        else: a(f"ds_read_b64_tr_b16 v[{20+4*T+2*j}:{21+4*T+2*j}], v19 offset:{j*1280 + 128}")
a("s_waitcnt lgkmcnt(0)")
for T in range(4): a(f"buffer_store_dwordx4 v[{20+4*T}:{23+4*T}], v12, s[32:35], s61 offen offset:{1024*T} sc1")
a("s_add_u32 s61, s61, 4096")
a(f"buffer_store_dwordx4 v[36:39], v12, s[32:35], s61 offen sc1")
a("s_waitcnt vmcnt(17)"); a("s_branch L_LD_BAR")
a("L_SIDE_C:")
a(f"""s_cmp_eq_u32 s56, 0
s_cbranch_scc1 L_LD_WAIT
s_and_b32 s45, s57, 7
s_lshl_b32 s45, s45, 8
s_lshr_b32 s44, s57, 3
s_lshl_b32 s44, s44, 2
s_add_u32 s45, s45, s44
s_add_u32 s45, s45, {WS_FW}
v_mov_b32 v13, 0
v_mov_b32 v14, s75
s_mov_b64 exec, 1
buffer_store_dword v14, v13, s[32:35], s45 offen sc1
s_mov_b64 exec, -1
s_waitcnt vmcnt(13)
s_branch L_LD_BAR""")
a("L_TOK_A:")
a("""v_mov_b32 v13, 0
s_mov_b64 exec, 1
buffer_load_dword v15, v13, s[40:43], 0 offen sc1
s_mov_b64 exec, -1
s_cmp_lg_u32 s56, 0
s_cbranch_scc1 L_SIDE_A
s_waitcnt vmcnt(13)
s_branch L_LD_BAR""")
a("L_TOK_B:")
a(f"""s_mov_b32 s60, 0
v_mov_b32 v13, 0
L_TOK_CHK:
v_readlane_b32 s75, v15, 0
s_add_u32 s60, s60, 1
s_cmp_lg_u32 s75, 0
s_cbranch_scc1 L_TOK_OK
s_cmp_ge_u32 s60, {SPIN_MAX}
s_cbranch_scc1 L_TOK_OK
s_sleep 4
s_mov_b64 exec, 1
buffer_load_dword v15, v13, s[40:43], 0 offen sc1
s_mov_b64 exec, -1
s_waitcnt vmcnt(0)
s_branch L_TOK_CHK
L_TOK_OK:
v_mov_b32 v14, {GW_LDS + 1536}
v_mov_b32 v15, s75
ds_write_b32 v14, v15
s_waitcnt lgkmcnt(0)
s_cmp_lg_u32 s56, 0
s_cbranch_scc1 L_SIDE_B
s_branch L_LD_WAIT""")
a("L_WOF_A:")
consumer_ids()
a(f"""s_mov_b32 s58, s84
s_lshl_b32 s59, s58, 8
s_add_u32 s59, s59, {WS_FW}
v_lshlrev_b32 v13, 2, v1
s_mov_b32 exec_hi, 0xff
buffer_load_dword v14, v13, s[32:35], s59 offen sc1
s_mov_b32 exec_hi, -1
s_waitcnt vmcnt(13)
s_branch L_LD_BAR""")
a("L_WOF_B:")
a(f"""s_mov_b32 s60, 0
s_mov_b32 exec_hi, 0xff
L_WO_POLL:
v_cmp_ne_u32 vcc, s75, v14
s_cbranch_vccz L_WO_OK
s_add_u32 s60, s60, 1
s_cmp_ge_u32 s60, {SPIN_MAX}
s_cbranch_scc1 L_WO_OK
s_sleep 4
buffer_load_dword v14, v13, s[32:35], s59 offen sc1
s_waitcnt vmcnt(0)
s_branch L_WO_POLL
L_WO_OK:
s_mov_b32 exec_hi, -1
s_mul_i32 s58, s58, 204800
s_add_u32 s58, s58, {WS_WOT}""")
if WPF:
    assert not CM
    a("""s_and_b32 s44, s21, 7
    s_lshl_b32 s44, s44, 2
    s_add_u32 s44, s44, s64
    s_mul_i32 s44, s44, 6400
    s_add_u32 s44, s44, s58
    v_lshlrev_b32 v13, 7, v1
    s_mov_b32 exec_hi, 0x3ffff
    buffer_load_dword v14, v13, s[32:35], s44 offen sc1
    s_mov_b32 exec_hi, -1
    s_waitcnt vmcnt(13)
    s_branch L_LD_BAR""")
else: a("s_branch L_LD_WAIT")
a("L_COMPUTE:")
if CPF:
    a("s_getpc_b64 s[70:71]")
    a("v_lshlrev_b32 v140, 7, v0")
    a(f"v_cmp_gt_u32 vcc, CODE_END - L_COMPUTE - 32, v140")
    a("s_and_saveexec_b64 s[72:73], vcc")
    a("s_cbranch_execz L_NOPF")
    a("global_load_dword v241, v140, s[70:71]")
    a("L_NOPF:")
    a("s_mov_b64 exec, s[72:73]")
VWA, VWB, VX0, VX1, VGX0, VGX1, VGW = 2, 3, 4, 5, 6, 7, 240
ACCQ, ACCK, ACCV, ACCH = 8, 48, 88, 128
RING, XB, GX = 140, 180, 204
MC, MP, MP0, AM, ONES = 220, 224, 228, 232, 236
def acc(seg, t, T): return (ACCQ, ACCK, ACCV)[seg] + t * 20 + T * 4
a(f"""v_lshrrev_b32 v140, 4, v1
v_and_b32 v141, 15, v1
v_lshrrev_b32 v142, 5, v1
v_lshlrev_b32 v142, 4, v142
v_and_b32 v143, 1, v140
v_lshl_add_u32 v142, v143, 2, v142
v_lshrrev_b32 v143, 2, v141
v_add_u32 v142, v142, v143
v_mul_u32_u24 v145, 480, v142
v_and_b32 v143, 3, v141
v_lshl_add_u32 v{VWA}, v143, 3, v145
v_mul_u32_u24 v144, 40, v143
v_add3_u32 v{VWB}, v145, v144, 32
v_lshrrev_b32 v144, 1, v141
v_xor_b32 v144, v144, v140
v_lshlrev_b32 v144, 4, v144
v_lshl_add_u32 v{VX0}, v141, 7, v144
v_xor_b32 v{VX1}, 64, v{VX0}
s_and_b32 s44, s20, 7
s_lshl_b32 s44, s44, 11
v_add_u32 v{VGX0}, s44, v{VX0}
v_add_u32 v{VGX1}, s44, v{VX1}
v_lshlrev_b32 v{VGW}, 4, v140
s_lshl_b32 s44, s23, 7
s_add_u32 s44, s44, {GW_LDS}
v_add_u32 v{VGW}, s44, v{VGW}""")
a(f"s_mov_b32 s44, {NEG}")
a(f"v_mov_b32 v146, s44")
a("s_lshr_b32 s45, s21, 1"); a("s_or_b32 s45, s45, s22")
a("v_lshlrev_b32 v145, 2, v140"); a("v_sub_u32 v145, v141, v145")
for r in range(4): a(f"v_subrev_u32 v{150+r}, {r}, v145")
for r in range(4):
    a(f"v_cmp_gt_u32 vcc, 8, v{150+r}"); a(f"v_cmp_gt_i32 s[72:73], -8, v{150+r}")
    a(f"v_mov_b32 v{ONES+r}, 0x3f803f80")
    a(f"v_cndmask_b32 v{MC+r}, v146, 0, vcc"); a(f"v_cndmask_b32 v{MP+r}, v146, 0, s[72:73]")
a("s_cmp_eq_u32 s45, 0"); a("s_cselect_b64 vcc, -1, 0")
for r in range(4): a(f"v_cndmask_b32 v{MP0+r}, v{MP+r}, v146, vcc")
a("s_mov_b32 s44, 0xffff0000")
for h in range(2):
    a(f"v_ashrrev_i32 v154, 31, v{150+2*h}"); a(f"v_ashrrev_i32 v155, 31, v{151+2*h}")
    a(f"v_bfi_b32 v{AM+h}, s44, v155, v154"); a(f"v_not_b32 v{AM+2+h}, v{AM+h}")
a("""s_mov_b64 s[48:49], 0xffff
s_mov_b32 s50, 0xffff0000
s_mov_b32 s51, 0
s_mov_b32 s52, 0
s_mov_b32 s53, 0xffff
s_mov_b32 s54, 0
s_mov_b32 s55, 0xffff0000""")
for r in range(ACCQ, ACCH + 12, 2): a(f"v_mov_b64 v[{r}:{r+1}], 0")
a("s_waitcnt lgkmcnt(0)")
a("""s_mov_b32 s32, s78
s_mov_b32 s33, s79
s_mov_b32 s34, 0x10000000
s_mov_b32 s35, 0x20000
s_mov_b32 s40, s76
s_mov_b32 s41, s77
s_mov_b32 s42, 256
s_mov_b32 s43, 0x20000
s_mov_b32 s74, 128
s_or_b32 s44, s2, s22
s_cbranch_scc1 L_NOTOK
s_memrealtime s[44:45]
s_waitcnt lgkmcnt(0)
s_or_b32 s44, s44, 1
v_mov_b32 v146, s44
s_mov_b64 exec, 1
buffer_store_dword v146, v8, s[40:43], 0 offen sc1
s_mov_b64 exec, -1
L_NOTOK:""")
if PF != "0":
    a("s_lshl_b32 s57, s57, 1")
    if PF == "A":
        a("s_cmp_lt_u32 s22, 2"); a("s_cbranch_scc1 L_PF2")
        a("buffer_load_dword v241, v254, s[24:27], s56 offen")
        a("L_PF2:")
    if PF == "C": a("s_waitcnt vmcnt(0)")
    a("s_add_u32 s56, s56, s57")
    a("buffer_load_dword v241, v254, s[24:27], s56 offen")
    a("s_cmp_ge_u32 s22, 2"); a("s_cbranch_scc1 L_PF3")
    a("s_add_u32 s56, s56, s57")
    a("buffer_load_dword v241, v254, s[24:27], s56 offen")
    a("L_PF3:")
a("""s_mov_b32 s44, 0
s_mov_b32 s45, 0""")
for w in range(1, 4):
    a(f"s_cmp_eq_u32 s22, {w}"); a(f"s_cbranch_scc1 L_W{w}")
HALO = [[(1,0),(1,1),(1,2)], [(1,3),(1,4),(2,0)], [(2,1),(2,2)], [(2,3),(2,4)]]
D = 5
def istep(f): return f - 5 if f <= 14 else (f - 6 if f <= 21 else f - 7)
for w in range(4):
    gate = (w == 3)
    q = []
    def rdW(f):
        ks, seg, T = f // 15, (f % 15) // 5, f % 5
        d = RING + (f % 10) * 4
        return [(f"ds_read_b64_tr_b16 v[{d+2*j}:{d+2*j+1}], v{VWA if T < 4 else VWB} offset:{seg*160 + ks*15360 + j*3840 + (40*T if T < 4 else 0)}", ("W", f)) for j in range(2)]
    def rdX(ks):
        o = []
        for n, tile in enumerate((1 + 2 * w, 2 + 2 * w, 0)):
            d = XB + (ks * 3 + n) * 4
            o.append((f"ds_read_b128 v[{d}:{d+3}], v{(VX0, VX1)[ks]} offset:{XOFF + tile*2048}", ("X", ks)))
        if gate:
            d = GX + ks * 8
            o.append((f"ds_read_b128 v[{d}:{d+3}], v{(VGX0, VGX1)[ks]} offset:{XOFF + 2048}", ("X", ks)))
            o.append((f"ds_read_b128 v[{d+4}:{d+7}], v{VGW} offset:{ks*64}", ("X", ks)))
        return o
    def wait(b, tags):
        last = max(i for i, t in enumerate(q) if t in tags)
        b(f"s_waitcnt lgkmcnt({min(len(q) - 1 - last, 15)})")
    def mm(f):
        ks, seg, T = f // 15, (f % 15) // 5, f % 5
        wf = vr(RING + (f % 10) * 4); o = []
        def one(dst, xf):
            o.append(f"{MF} {vr(dst)}, {wf}, {xf}, {vr(dst)}" if seg < 2 else f"{MF} {vr(dst)}, {xf}, {wf}, {vr(dst)}")
        one(acc(seg, 0, T), vr(XB + (ks * 3) * 4)); one(acc(seg, 1, T), vr(XB + (ks * 3 + 1) * 4))
        if (seg, T) in HALO[w]: one(ACCH + 4 * HALO[w].index((seg, T)), vr(XB + (ks * 3 + 2) * 4))
        if gate and seg == 0 and T == 2:
            d = GX + ks * 8
            o.append(f"{MF} {vr(ACCH+8)}, {vr(d+4)}, {vr(d)}, {vr(ACCH+8)}")
        return o
    def weave(b, ms, fs, lastless=True):
        n = len(ms); k = len(fs)
        cnt = [0] * n
        for i in range(k):
            load = [cnt[j] + (1 if (lastless and j == n - 1) else 0) for j in range(n)]
            cnt[load.index(min(load))] += 1
        it = iter(fs)
        for m_, c_ in zip(ms, cnt):
            b(m_)
            for _ in range(c_):
                t = next(it)
                b(t[0])
                if t[1] is not None: q.append(t[1])
    FA = {s: [] for s in range(25, 30)}
    x0 = rdX(0)
    FA[25] = x0[:2] + rdW(0); FA[26] = x0[2:4] + rdW(1); FA[27] = x0[4:] + rdW(2); FA[28] = rdW(3); FA[29] = rdW(4)
    FB = {s: [] for s in range(25)}
    for f in range(D, 30): FB[istep(f)] += rdW(f)
    x1 = rdX(1)
    for i, t in enumerate(x1): FB[2 + i].append(t)
    sal = ["s_add_u32 s45, s45, 1", "s_cmp_eq_u32 s45, 3", f"s_cselect_b32 s46, {(-2*STAGE) & 0xffffffff}, s63", "s_cselect_b32 s45, 0, s45"]
    for i, t in enumerate(sal): FB[10 + i].append((t, None))
    if gate:
        sal = ["s_add_u32 s23, s23, 1", "s_cmp_eq_u32 s23, 10", "s_cselect_b32 s23, 0, s23", "s_cselect_b32 s47, -1152, s74"]
        for i, t in enumerate(sal): FB[16 + i].append((t, None))
        FB[20].append((f"v_add_u32 v{VGW}, s47, v{VGW}", None))
        FB[21].append((f"v_add_u32 v{VGX0}, s46, v{VGX0}", None)); FB[22].append((f"v_add_u32 v{VGX1}, s46, v{VGX1}", None))
    FB[20].append((f"v_add_u32 v{VX0}, s46, v{VX0}", None)) if not gate else FB[14].append((f"v_add_u32 v{VX0}, s46, v{VX0}", None))
    FB[23] += [(f"v_add_u32 v{VX1}, s46, v{VX1}", None), (f"v_add_u32 v{VWA}, s46, v{VWA}", None), (f"v_add_u32 v{VWB}, s46, v{VWB}", None)]
    FB[24] += [("s_add_u32 s44, s44, 1", None), ("s_cmp_eq_u32 s44, 10", None)]
    pre = Asm(); pa = Asm(); pb = Asm(); tail = Asm()
    stamp(pre, 5)
    pre("s_barrier")
    if STAMP: stamp2(pre, 6, 50)
    ev(pre, "b0")
    for s in range(25, 30):
        for t in FA[s]: pre(t[0])
    q.clear()
    pa("s_waitcnt lgkmcnt(0)"); pa("s_barrier")
    for s in range(25, 30): weave(pa, mm(s), FA[s], lastless=(s == 29))
    pa(f"s_branch L_LB{w}")
    for s in range(25):
        tags = [("W", s)] + ([("X", 0)] if s == 0 else []) + ([("X", 1)] if s == 15 else [])
        wait(pb, tags); weave(pb, mm(s), FB[s])
    pb(f"s_cbranch_scc1 L_T{w}")
    tail("s_waitcnt lgkmcnt(0)")
    for s in range(25, 30):
        for m_ in mm(s): tail(m_)
    tail(f"v_lshlrev_b32 v{VWA}, 3, v1")
    tail(f"v_add_u32 v{VX1}, {XCH}, v{VWA}")
    for n, (seg, T) in enumerate(HALO[w]):
        tail(f"v_cvt_pk_bf16_f32 v{242+2*n}, v{ACCH+4*n}, v{ACCH+4*n+1}")
        tail(f"v_cvt_pk_bf16_f32 v{243+2*n}, v{ACCH+4*n+2}, v{ACCH+4*n+3}")
        tail(f"ds_write_b64 v{VX1}, v[{242+2*n}:{243+2*n}] offset:{((seg-1)*5+T)*512}")
    if gate:
        z = ACCH + 8
        tail(f"""v_cvt_pk_bf16_f32 v248, v{z}, v{z}
        v_and_b32 v248, 0xffff0000, v248
        v_mul_f32 v248, {LOG2E ^ 0x80000000}, v248
        v_exp_f32 v248, v248
        v_add_f32 v248, 1.0, v248
        v_rcp_f32 v248, v248
        v_cvt_pk_bf16_f32 v248, v248, v248
        v_and_b32 v248, 0xffff0000, v248
        v_lshlrev_b32 v249, 2, v1
        s_lshl_b32 s46, s21, 3
        s_add_u32 s46, s46, s20
        s_lshl_b32 s46, s46, 7
        s_add_u32 s46, s46, {WS_G}
        s_cmp_ge_u32 s20, 8
        s_cbranch_scc1 L_ATT
        s_mov_b32 exec_hi, 0
        buffer_store_dword v248, v249, s[32:35], s46 offen sc1
        s_mov_b32 exec_hi, -1""")
    else: tail("s_branch L_ATT")
    if w > 0: a(f"L_W{w}:")
    a.extend(pre); a(".p2align 3"); a(f"L_LB{w}:"); a.extend(pb); a.extend(pa); a(f"L_T{w}:"); a.extend(tail)
    traces.append(pre.L + pb.L + pa.L + pb.L + tail.L[:12])
a("L_ATT:")
a("s_nop 7")
if STAMP: stamp2(a, 30, 51)
ev(a, "gemm")
KOP = {1: 140, 0: 156, -1: 204}
VOP = 172; QOP = {1: 68, 0: 108}; TOK = 253
def kop(t, h): return KOP[t] + 4 * h
def vop(T, t): return VOP + 6 * T + 2 * (t + 1)
def qop(t, h): return QOP[t] + 4 * h
g = Asm()
def cvt(d, s): g(f"v_cvt_pk_bf16_f32 v{d}, v{s}, v{s+1}"); g(f"v_cvt_pk_bf16_f32 v{d+1}, v{s+2}, v{s+3}")
def flush(name):
    global g
    if SCHED:
        o, t = schedule(g.L); print(f"; sched {name}: {len(o)} instrs, est {t} cycles", file=sys.stderr)
    else: o = [("s_waitcnt lgkmcnt(0)" if l.startswith("@wait") else l) for l in g.L]
    for l in o: a(l)
    g = Asm()
a(f"v_mov_b32 v{TOK}, {GW_LDS + 1536}"); a(f"ds_read_b32 v{TOK}, v{TOK}")
a("s_setprio 2")
a(f"s_mul_i32 s46, s22, 5120"); a(f"v_add_u32 v{VWB}, s46, v{VX1}")
a("s_add_u32 s46, s46, 5120"); a("s_cmp_eq_u32 s22, 3"); a(f"s_cselect_b32 s46, {SCR_LDS - XCH}, s46"); a(f"v_add_u32 v{VX1}, s46, v{VX1}")
for h in range(4):
    cvt(kop(1, h), acc(1, 1, h)); g(f"ds_write_b64 v{VX1}, v[{kop(1,h)}:{kop(1,h)+1}] offset:{h*512}")
cvt(kop(1, 0) + 2, acc(1, 1, 4)); g(f"ds_write_b64 v{VX1}, v[{kop(1,0)+2}:{kop(1,0)+3}] offset:{4*512}")
for T in range(5):
    cvt(vop(T, 1), acc(2, 1, T)); g(f"ds_write_b64 v{VX1}, v[{vop(T,1)}:{vop(T,1)+1}] offset:{(5+T)*512}")
for l in g.L: a(l)
g = Asm()
for h in range(1, 4): cvt(kop(1, h) + 2, acc(1, 1, 4))
cvt(250, acc(0, 1, 4))
for h in range(4): cvt(qop(1, h), acc(0, 1, h))
for h in range(4):
    for j in range(2): g(f"v_cndmask_b32 v{qop(1,h)+2+j}, 0, v{250+j}, s[{48+2*h}:{49+2*h}]")
for l in g.L: a(l)
g = Asm()
stamp(a, 31)
a("s_waitcnt lgkmcnt(0)"); a("s_barrier")
stamp(a, 32)
a(f"s_mov_b32 s46, {CEXP}"); a(f"s_mov_b32 s47, {CEXP}")
a("s_lshl_b32 s56, s21, 3"); a("s_lshl_b32 s57, s22, 1"); a("s_add_u32 s56, s56, s57")
a("s_mul_i32 s56, s56, 40960"); a("s_mul_i32 s57, s20, 2560"); a("s_add_u32 s56, s56, s57")
a("s_add_u32 s57, s56, 40960")
for h in range(4):
    g(f"ds_read_b64 v[{kop(-1,h)}:{kop(-1,h)+1}], v{VWB} offset:{h*512}")
    g(f"ds_read_b64 v[{kop(-1,h)+2}:{kop(-1,h)+3}], v{VWB} offset:{4*512}")
for T in range(5): g(f"ds_read_b64 v[{vop(T,-1)}:{vop(T,-1)+1}], v{VWB} offset:{(5+T)*512}")
g("@wait")
g(f"v_lshlrev_b32 v{VX0}, 4, v1")
for h in range(4): cvt(kop(0, h), acc(1, 0, h)); cvt(kop(0, h) + 2, acc(1, 0, 4))
for T in range(5): cvt(vop(T, 0), acc(2, 0, T))
cvt(246, acc(0, 0, 4))
for h in range(4): cvt(qop(0, h), acc(0, 0, h))
for h in range(4):
    for j in range(2): g(f"v_cndmask_b32 v{qop(0,h)+2+j}, 0, v{246+j}, s[{48+2*h}:{49+2*h}]")
SR = {1: [28, 32, 36, 40, 44, 48, 52, 56], 0: [8, 12, 16, 20, 24, 88, 92, 96]}
def dc(t, h): return SR[t][h]
def dp(t, h): return SR[t][4 + h]
MX = {1: 84, 0: 124}; TMP = {1: 128, 0: 132}
OREG = {1: [68, 72, 76, 80, 140, 144, 148, 152, 60, 64, 100, 104], 0: [108, 112, 116, 120, 156, 160, 164, 168, 204, 208, 212, 216]}
def oo(t, h, k): return OREG[t][k * 4 + h]
for t in (1, 0):
    for h in range(4):
        g(f"{MF} {vr(dc(t,h))}, {vr(kop(t,h))}, {vr(qop(t,h))}, {vr(MC)}")
        g(f"{MF} {vr(dp(t,h))}, {vr(kop(t-1,h))}, {vr(qop(t,h))}, {vr(MP if t else MP0)}")
for t in (1, 0):
    for h in range(4):
        for r in range(4): g(f"v_max_f32 v{dc(t,h)+r}, v{dc(t,h)+r}, v{dp(t,h)+r}")
        g(f"v_max3_f32 v{MX[t]+h}, v{dc(t,h)}, v{dc(t,h)+1}, v{dc(t,h)+2}")
        g(f"v_max_f32 v{MX[t]+h}, v{MX[t]+h}, v{dc(t,h)+3}")
    m = MX[t]
    g(f"""v_permlane32_swap_b32 v{m}, v{m+1}
    v_permlane32_swap_b32 v{m+2}, v{m+3}
    v_max_f32 v{m}, v{m}, v{m+1}
    v_max_f32 v{m+2}, v{m+2}, v{m+3}
    v_permlane16_swap_b32 v{m}, v{m+2}
    v_max_f32 v{m}, v{m}, v{m+2}
    v_mul_f32 v{m+2}, s46, v{m}
    v_mul_f32 v{m}, s46, v{m}
    v_permlane16_swap_b32 v{m}, v{m+2}
    v_mov_b32 v{m+1}, v{m}
    v_mov_b32 v{m+3}, v{m+2}
    v_permlane32_swap_b32 v{m}, v{m+1}
    v_permlane32_swap_b32 v{m+2}, v{m+3}""")
    for h in range(4):
        d = dc(t, h); p = dp(t, h)
        if PK:
            mp_ = m + (h & 2); e = h & 1
            for r in (0, 2): g(f"v_pk_fma_f32 v[{d+r}:{d+r+1}], v[{d+r}:{d+r+1}], s[46:47], v[{mp_}:{mp_+1}] op_sel:[0,0,{e}] op_sel_hi:[1,1,{e}] neg_lo:[0,0,1] neg_hi:[0,0,1]")
        else:
            for r in range(4): g(f"v_fma_f32 v{d+r}, v{d+r}, s46, -v{m+h}")
        for r in range(4): g(f"v_exp_f32 v{d+r}, v{d+r}")
        g(f"v_cvt_pk_bf16_f32 v{d}, v{d}, v{d+1}"); g(f"v_cvt_pk_bf16_f32 v{d+2}, v{d+2}, v{d+3}")
        g(f"v_and_b32 v{p}, v{AM}, v{d}"); g(f"v_and_b32 v{p+1}, v{AM+1}, v{d+2}")
        g(f"v_and_b32 v{p+2}, v{AM+2}, v{d}"); g(f"v_and_b32 v{p+3}, v{AM+3}, v{d+2}")
    for h in range(4):
        g(f"{MF} {vr(oo(t,h,2))}, {vr(ONES)}, {vr(dp(t,h))}, 0")
        g(f"{MF} {vr(oo(t,h,0))}, {vr(vop(h,t-1))}, {vr(dp(t,h))}, 0")
        g(f"{MF} {vr(oo(t,h,1))}, {vr(vop(4,t-1))}, {vr(dp(t,h))}, 0")
    for h in range(4):
        o0 = oo(t, h, 0); rc = oo(t, h, 2)
        g(f"v_rcp_f32 v{rc}, v{rc}")
        if PK:
            for r in (0, 2): g(f"v_pk_mul_f32 v[{o0+r}:{o0+r+1}], v[{o0+r}:{o0+r+1}], v[{rc}:{rc+1}] op_sel_hi:[1,0]")
        else:
            for r in range(4): g(f"v_mul_f32 v{o0+r}, v{o0+r}, v{rc}")
        for r in range(4): g(f"v_mul_f32_dpp v{TMP[t]+r}, v{oo(t,h,1)+r}, v{rc} quad_perm:[0,1,2,3] row_mask:{hex(1<<h)} bank_mask:0xf")
        cvt(dc(t, h >> 1) + 2 * (h & 1), o0)
    cvt(dc(t, 2), TMP[t])
    so = "s57" if t else "s56"
    g(f"buffer_store_dwordx4 {vr(dc(t,0))}, v{VX0}, s[32:35], {so} offen sc1")
    g(f"buffer_store_dwordx4 {vr(dc(t,1))}, v{VX0}, s[32:35], {so} offen offset:1024 sc1")
    g(f"buffer_store_dwordx2 {vr(dc(t,2),2)}, v{VWA}, s[32:35], {so} offen offset:2048 sc1")
flush("attention")
if STAMP: stamp2(a, 35, 52)
ev(a, "att")
WR = 48
OR_ = 128
LR = 8
AC = 228
BA = {"S1": 248, "S2": 249, "S0": 250, "TOP": 251, "R1": 248, "X": 252}
def lring(l):
    k = l % 15
    return LR + 4 * k if k < 10 else 208 + 4 * (k - 10)
a("L_P2_PRE:")
a("v_lshlrev_b32 v2, 4, v1")
a("s_lshr_b32 s64, s22, 2")
for nm in ("S1", "S2", "S0", "TOP", "X"):
    a(f"s_mul_i32 s60, s64, {CL[nm][3]}"); a(f"s_add_u32 s60, s60, {CL[nm][2]}"); a(f"v_add_u32 v{BA[nm]}, s60, v2")
for l in range(20): a(f"ds_read_b128 {vr(WR+4*l)}, v{BA['S1']} offset:{l*1024}")
consumer_ids()
a("""s_and_b32 s65, s22, 3
s_lshl_b32 s67, s85, 2
s_add_u32 s67, s67, s65
s_mul_i32 s61, s67, 40960
s_mul_i32 s60, s64, 20480
s_add_u32 s61, s61, s60
v_lshlrev_b32 v3, 3, v1
v_add_u32 v3, 2048, v3
v_and_b32 v4, 15, v1
v_lshlrev_b32 v5, 2, v4
s_lshl_b32 s62, s67, 7""")
a(f"s_add_u32 s62, s62, {WS_G}")
for m in range(4):
    a(f"s_add_u32 s60, s20, {m}" if ROT2 else f"s_mov_b32 s60, {m}"); a("s_and_b32 s60, s60, 3"); a("s_mul_i32 s60, s60, 5120"); a(f"s_add_u32 s{80+m}, s61, s60")
a(f"""s_mov_b32 s28, s18
s_mov_b32 s29, s19
s_mov_b32 s30, 2621440
s_mov_b32 s31, 0x20000
s_lshr_b32 s47, s85, 1
s_lshl_b32 s47, s47, 11
s_add_u32 s47, s47, {WS_FO}
s_lshl_b32 s48, s21, 4
s_add_u32 s48, s48, s20
s_lshl_b32 s48, s48, 7
s_add_u32 s48, s48, {WS_FO}
v_lshlrev_b32 v7, 2, v1
v_lshlrev_b32 v254, 7, v4""")
stamp(a, 36)
a("s_cmp_ge_u32 s22, 4"); a("s_cbranch_scc1 L_P2_LD")
a("s_waitcnt vmcnt(0) lgkmcnt(0)")
stamp(a, 37)
a("s_barrier")
a("s_cmp_lg_u32 s22, 0"); a("s_cbranch_scc1 L_P2_BAR")
a(f"""s_mov_b32 exec_hi, 0
buffer_store_dword v{TOK}, v7, s[32:35], s48 offen sc1
s_mov_b64 exec, -1""")
if STAMP: stamp(a, 58); a("s_waitcnt vmcnt(0)"); stamp(a, 59)
a("s_branch L_P2_BAR")
a("L_P2_LD:")
a("s_waitcnt lgkmcnt(0)")
a("s_barrier")
stamp(a, 37)
dma_class("R1", 0, 4); stamp(a, 31); dma_class("R1", 4, 12); stamp(a, 32); dma_class("R1", 12); stamp(a, 33); dma_class("X"); stamp(a, 34)
if STAMP: a("s_waitcnt vmcnt(14)"); stamp(a, 58); a("s_waitcnt vmcnt(8)"); stamp(a, 59); a("s_waitcnt vmcnt(0)"); stamp(a, 60)
a("s_cmp_lg_u32 s22, 7"); a("s_cbranch_scc1 L_P2_W")
a(f"""s_mov_b64 exec, 0xffff
s_mov_b32 s60, 0
L_O_POLL:
buffer_load_dword v6, v254, s[32:35], s47 offen sc1
s_add_u32 s60, s60, 1
s_waitcnt vmcnt(0)
v_cmp_ne_u32 vcc, s75, v6
s_cbranch_vccz L_O_OK
s_sleep {int(OPT.get("psleep", 1))}
s_cmp_lt_u32 s60, {SPIN_MAX}
s_cbranch_scc1 L_O_POLL
L_O_OK:
s_mov_b64 exec, -1""")
a("L_P2_W:")
a("s_waitcnt vmcnt(0)")
stamp(a, 38)
a("L_P2_BAR:")
a("s_barrier")
if STAMP: stamp2(a, 39, 53)
ev(a, "bp")
a("s_setprio 0")
vq = []; lq = []
def ld_o(s):
    m, ss = s // 5, s % 5
    d = OR_ + s * 4
    if ss < 4:
        off = (ss >> 1) * 2560 + (ss & 1) * 1024
        a(f"buffer_load_dwordx4 {vr(d)}, v2, s[32:35], s{80+m} offen offset:{off} {OF}"); vq.append(s)
    else:
        a(f"buffer_load_dwordx2 {vr(d,2)}, v3, s[32:35], s{80+m} offen {OF}"); vq.append(s)
        a(f"buffer_load_dwordx2 {vr(d+2,2)}, v3, s[32:35], s{80+m} offen offset:2560 {OF}"); vq.append(s)
def ld_w(i):
    if i < 4 or i >= 20: return []
    o = []
    for T in range(5):
        l = i * 5 + T
        nm = [k for k, v in CL.items() if v[0] <= l < v[0] + v[1]][0]
        o.append(f"ds_read_b128 {vr(lring(l))}, v{BA[nm]} offset:{(l - CL[nm][0]) * 1024}")
    return o
for i in range(OA): ld_o(i)
a("buffer_load_dword v6, v5, s[32:35], s62 offen sc1"); vq.append(-1)
for i in range(20):
    nxt = ld_w(i + 2)
    last = max(j for j, t in enumerate(vq) if t == i)
    lg = "" if i < 4 else f" lgkmcnt({5 if i < 19 else 0})"
    a(f"s_waitcnt vmcnt({len(vq)-1-last}){lg}")
    for T in range(5):
        wf = vr(lring(i * 5 + T)) if i >= 4 else vr(WR + (i * 5 + T) * 4)
        a(f"{MF} {vr(AC+4*T)}, {wf}, {vr(OR_ + i*4)}, {'0' if i == 0 else vr(AC+4*T)}")
        if nxt: a(nxt[T])
    if i + OA < 20: ld_o(i + OA)
if STAMP: stamp2(a, 56, 54)
a("s_barrier")
a(f"s_mul_i32 s60, s65, 5120"); a("v_add_u32 v14, s60, v2")
a("s_cmp_eq_u32 s64, 0"); a("s_cbranch_scc1 L_EPI_A")
a("v_sub_f32 v7, 1.0, v6"); a("v_cvt_pk_bf16_f32 v7, v7, v7"); a("v_and_b32 v7, 0xffff0000, v7")
for T in range(5):
    for r in range(4): a(f"v_mul_f32 v{AC+4*T+r}, v{AC+4*T+r}, v7")
    a(f"ds_write_b128 v14, {vr(AC+4*T)} offset:{T*1024}")
a("s_waitcnt lgkmcnt(0)"); a("s_barrier")
a("s_branch L_FIN")
a("L_EPI_A:")
a("""s_lshr_b32 s46, s67, 4
s_lshl_b32 s46, s46, 8
s_bfe_u32 s47, s67, 0x10003
s_add_u32 s46, s46, s47
s_and_b32 s47, s67, 7
s_lshl_b32 s47, s47, 5
s_add_u32 s46, s46, s47
s_mul_i32 s46, s46, 1280
s_mul_i32 s47, s84, 160
s_add_u32 s46, s46, s47
v_mul_u32_u24 v4, 2560, v4
v_lshrrev_b32 v5, 4, v1
v_lshl_add_u32 v2, v5, 4, v4
v_lshl_add_u32 v3, v5, 3, v4
s_barrier""")
for T in range(5): a(f"ds_read_b128 {vr(WR+4*T)}, v14 offset:{T*1024}")
for T in range(5):
    a(f"s_waitcnt lgkmcnt({4-T})")
    for r in range(4): a(f"v_fmac_f32 v{WR+4*T+r}, v{AC+4*T+r}, v6")
    a(f"v_cvt_pk_bf16_f32 v{OR_+2*T}, v{WR+4*T}, v{WR+4*T+1}"); a(f"v_cvt_pk_bf16_f32 v{OR_+2*T+1}, v{WR+4*T+2}, v{WR+4*T+3}")
    if T == 1: a(f"buffer_store_dwordx4 {vr(OR_)}, v2, s[28:31], s46 offen")
    if T == 3: a(f"buffer_store_dwordx4 {vr(OR_+4)}, v2, s[28:31], s46 offen offset:64")
a(f"buffer_store_dwordx2 {vr(OR_+8,2)}, v3, s[28:31], s46 offen offset:128")
ev(a, "end")
if SPIN:
    a("""s_mov_b32 s60, 0
    L_SPIN:
    s_memrealtime s[98:99]
    s_waitcnt lgkmcnt(0)
    s_sub_u32 s98, s98, s96
    s_add_u32 s60, s60, 1
    s_cmp_ge_u32 s60, 20000
    s_cbranch_scc1 L_FIN
    s_cmp_lt_u32 s98, 4000
    s_cbranch_scc1 L_SPIN""")
a("L_FIN:")
if STAMP:
    stamp(a, 57)
    a("s_waitcnt vmcnt(0)")
    stamp(a, 62); stamp(a, 63, True)
    a(f"s_lshl_b32 s46, s2, 3"); a(f"s_add_u32 s46, s46, s22"); a("s_lshl_b32 s46, s46, 8"); a(f"s_add_u32 s46, s46, {WS_ST}")
    a(f"v_lshlrev_b32 v2, 2, v1")
    a(f"buffer_store_dword v{SV}, v2, s[32:35], s46 offen")
a("L_END:"); a("s_endpgm")

l1, _ = fix(a.L)
for tr in traces:
    _, iss_ = fix(tr, verify=True)
    for x in iss_: print("; TRACE HAZARD", x, file=sys.stderr)
print(f"""; gated mix of two dilated sliding-window attention blocks (generated by gen/gen5.py)
; @launch grid=(256,1,1) block=(512,1,1) lds={LDS_TOTAL}
.amdgcn_target "amdgcn-amd-amdhsa--gfx950"
.text
.globl {KN}
.p2align 8
.type {KN},@function""")
print("\n".join(l1))
print("CODE_END:")
print('.section .rodata,"a"')
print(kd(KN, 256, 102, 256))
```

```python
import sys, struct, math
sys.path.insert(0, "gen")
from asmlib import *
NAME = "gated_mix__sliding_local_dilated__sliding_local_dilated__prompt"
KN = NAME + "_kernel"
OPT = dict(a.split("=") for a in sys.argv[1:])
STAMP = int(OPT.get("stamp", 0)); CM = int(OPT.get("cm", 1)); PK = int(OPT.get("pk", 1))
NS1 = int(OPT.get("ns1", 12)); RSLEEP = int(OPT.get("rsleep", 2)); OWAIT = int(OPT.get("owait", 2)); SB = int(OPT.get("sb", 5)); SA = int(OPT.get("sa", 3)); XP = OPT.get("xp", ""); R2 = int(OPT.get("r2", 0)); SF = OPT.get("sf", "").replace("+", " "); PD = int(OPT.get("pd", 1))
def f2u(x): return struct.unpack("<I", struct.pack("<f", x))[0]
STAGE = 49152; XOFF = 30720
GW_LDS = 147456; TOK_LDS = GW_LDS + 1536; SCR_LDS = 149504; LDS_TOTAL = 163840
XCH = 126976
RED = 98304
OBLK = 2816; OTT = 16 * OBLK
WS_WOT = 0x700000; WS_G = 0x900000; WS_FW = 0x910000; WS_ST = 0x1000000
NEG = f2u(-1e30)
CEXP = f2u(20 ** -0.5 * math.log2(math.e))
LOG2E = f2u(math.log2(math.e))
MF = "v_mfma_f32_16x16x32_bf16"
SPIN_MAX = 1 << 17
SV = 255
def stamp(a, idx, real=False):
    if not STAMP: return
    a(f"{'s_memrealtime' if real else 's_memtime'} s[68:69]"); a("s_waitcnt lgkmcnt(0)"); a(f"v_writelane_b32 v{SV}, s68, {idx}")
SPIN = OPT.get("spin", "")
def ev(a, name):
    if SPIN == name: a("s_memrealtime s[96:97]"); a("s_waitcnt lgkmcnt(0)")
def stamp2(a, idx, ridx):
    stamp(a, idx); stamp(a, ridx, True)
def stamp0(a):
    if STAMP: a(f"v_mov_b32 v{SV}, 0"); a(f"v_writelane_b32 v{SV}, s66, 0"); a(f"v_writelane_b32 v{SV}, s68, 1")

a = Asm()
traces = []
def ids():
    a("""v_and_b32 v1, 63, v0
    s_and_b32 s20, s2, 3
    s_lshl_b32 s20, s20, 2
    s_bfe_u32 s46, s2, 0x20003
    s_add_u32 s20, s20, s46
    s_lshr_b32 s47, s2, 5
    s_and_b32 s21, s2, 4
    s_lshl_b32 s21, s21, 1
    s_add_u32 s21, s21, s47
    s_mul_i32 s23, s46, 5
    s_add_u32 s23, s23, 1
    s_lshr_b32 s23, s23, 1
    s_add_u32 s23, s23, s47
    s_sub_u32 s46, s23, 10
    s_cselect_b32 s23, s23, s46""")
def srd_ws_dbg():
    a("""s_mov_b32 s32, s78
    s_mov_b32 s33, s79
    s_mov_b32 s34, 0x10000000
    s_mov_b32 s35, 0x20000
    s_mov_b32 s40, s76
    s_mov_b32 s41, s77
    s_mov_b32 s42, 256
    s_mov_b32 s43, 0x20000""")
def consumer_ids():
    if CM:
        a("s_bfe_u32 s84, s2, 0x30003"); a("s_and_b32 s85, s2, 7"); a("s_lshl_b32 s85, s85, 2"); a("s_lshr_b32 s86, s2, 6"); a("s_add_u32 s85, s85, s86")
    else:
        a("s_and_b32 s84, s20, 7"); a("s_lshl_b32 s85, s21, 1"); a("s_lshr_b32 s86, s20, 3"); a("s_add_u32 s85, s85, s86")
def rotbit(dst):
    a(f"s_xor_b32 {dst}, s84, s85"); a(f"s_and_b32 {dst}, {dst}, {R2}")
a(f"{KN}:")
if STAMP: a("s_memrealtime s[66:67]"); a("s_memtime s[68:69]")
a("""v_readfirstlane_b32 s22, v0
s_load_dwordx8 s[4:11], s[0:1], 0
s_load_dwordx8 s[12:19], s[0:1], 32
s_load_dwordx4 s[76:79], s[0:1], 64
s_lshr_b32 s3, s2, 8
s_cbranch_scc1 L_END
s_lshr_b32 s22, s22, 6
s_cmp_eq_u32 s22, 3
s_cbranch_scc1 L_HOP
s_cmp_lt_u32 s22, 4
s_cbranch_scc1 L_COMPUTE""")
ids()
a("""v_lshrrev_b32 v3, 3, v1
v_mul_u32_u24 v3, 2560, v3
v_lshrrev_b32 v4, 4, v0
v_xor_b32 v4, v4, v1
v_xor_b32 v4, 4, v4
v_and_b32 v4, 7, v4
v_lshl_add_u32 v11, v4, 4, v3
s_and_b32 s64, s22, 3
s_lshr_b32 s44, s21, 1
s_or_b32 s45, s44, s64
s_cselect_b32 s52, -20480, 0
s_lshl_b32 s44, s44, 8
s_and_b32 s45, s21, 1
s_add_u32 s44, s44, s45
s_lshl_b32 s45, s64, 4
s_add_u32 s44, s44, s45
s_mul_i32 s47, s44, 1280
s_lshl_b32 s45, s23, 7
s_add_u32 s47, s47, s45
s_lshl_b32 s53, s64, 10
s_mov_b32 s30, 2621440
s_mov_b32 s31, 0x20000
s_mov_b32 s27, s31
s_setprio 2
v_mul_u32_u24 v3, 6554, v1
v_lshrrev_b32 v3, 16, v3
s_branch L_LD0
L_HOP:
s_branch L_COMPUTE
L_LD0:
v_mul_u32_u24 v4, 1120, v3
v_lshl_add_u32 v10, v1, 4, v4
s_and_b32 s46, s20, 7
s_mul_i32 s46, s46, 160
s_lshl_b32 s44, s23, 2
s_add_u32 s44, s44, s64
s_mul_i32 s44, s44, 61440
s_add_u32 s46, s46, s44
s_mul_i32 s48, s64, 7680
s_mov_b32 s49, 0
s_mov_b32 s50, 0
s_mov_b32 s26, 2457600
s_cmp_ge_u32 s20, 8
s_waitcnt lgkmcnt(0)
s_cselect_b32 s24, s12, s6
s_cselect_b32 s25, s13, s7
s_mov_b32 s28, s4
s_mov_b32 s29, s5""")
stamp0(a); stamp(a, 2)
a("L_LD_ISSUE:")
a(f"s_add_u32 m0, s53, {XOFF + 1024}"); a("s_add_u32 s51, s47, s52"); a("buffer_load_dwordx4 v11, s[28:31], s51 offen lds")
for qq in range(1, 4):
    a(f"s_add_u32 m0, s53, {XOFF + 1024 + 4096*qq}"); a(f"s_add_u32 s51, s47, {(64*qq-16)*1280}"); a("buffer_load_dwordx4 v11, s[28:31], s51 offen lds")
a("s_cmp_lg_u32 s64, 0"); a("s_cbranch_scc1 L_LD_W")
a(f"s_add_u32 m0, s53, {XOFF + 1024 + 4096*4}"); a(f"s_add_u32 s51, s47, {(64*4-16)*1280}"); a("buffer_load_dwordx4 v11, s[28:31], s51 offen lds")
a("L_LD_W:")
a("s_mov_b32 exec_hi, 0x0fffffff")
for qq in range(8):
    r = 2 * qq; k = (r & 0x33) | ((r & 4) << 1) | ((r & 8) >> 1)
    a(f"s_add_u32 m0, s48, {960*qq}"); a(f"s_add_u32 s51, s46, {k*3840}"); a("buffer_load_dwordx4 v10, s[24:27], s51 offen lds")
a(f"""s_mov_b32 exec_hi, -1
s_mov_b32 s63, {STAGE}
s_add_u32 s23, s23, 1
s_cmp_eq_u32 s23, 10
s_cselect_b32 s23, 0, s23
s_cselect_b32 s51, -9, 1
s_mul_i32 s44, s51, 245760
s_add_u32 s46, s46, s44
s_lshl_b32 s44, s51, 7
s_add_u32 s47, s47, s44
s_add_u32 s49, s49, 1
s_cmp_eq_u32 s49, 3
s_cselect_b32 s51, {(-2*STAGE) & 0xffffffff}, s63
s_cselect_b32 s49, 0, s49
s_add_u32 s48, s48, s51
s_add_u32 s53, s53, s51
s_add_u32 s50, s50, 1""")
def lstamp(base):
    if STAMP == 1: a("s_memtime s[68:69]"); a("s_waitcnt lgkmcnt(0)"); a(f"s_add_u32 m0, s50, {base}"); a(f"v_writelane_b32 v{SV}, s68, m0")
lstamp(9)
a(f"""s_cmp_eq_u32 s50, {SA}
s_cbranch_scc1 L_SIDE_A
L_SA_RET:
s_cmp_lt_u32 s50, 2
s_cbranch_scc1 L_LD_ISSUE
s_cmp_eq_u32 s50, {SB}
s_cbranch_scc1 L_TOK_A
s_cmp_eq_u32 s50, {SB+2}
s_cbranch_scc1 L_TOK_B
s_cmp_eq_u32 s50, 10
s_cbranch_scc1 L_WOF_A""")
a("L_LD_WAIT:")
a("s_waitcnt vmcnt(12)")
a("L_LD_BAR:")
lstamp(18)
if "nobar" in XP: a("s_cmp_lg_u32 s50, 2"); a("s_cbranch_scc1 L_LD_ISSUE")
a("s_barrier")
if STAMP == 1: a("s_memrealtime s[68:69]"); a("s_waitcnt lgkmcnt(0)"); a(f"s_add_u32 m0, s50, 38"); a(f"v_writelane_b32 v{SV}, s68, m0")
a("s_branch L_LD_ISSUE")
a("L_SIDE_A:")
a("""s_mov_b32 s56, 0
s_sub_u32 s44, s64, 2
s_lshl_b32 s57, s44, 8
s_add_u32 s57, s57, s2
s_cmp_ge_u32 s57, 320
s_cbranch_scc1 L_SA_RET
s_mov_b32 s56, 1
s_mov_b32 s39, 0x20000
s_and_b32 s45, s57, 7
s_lshr_b32 s44, s57, 3
s_mul_i32 s58, s44, 52
s_lshr_b32 s58, s58, 8
s_mul_i32 s59, s58, 5
s_sub_u32 s59, s44, s59
s_cmp_ge_u32 s58, 4
s_cselect_b32 s36, s14, s8
s_cselect_b32 s37, s15, s9
s_mov_b32 s38, 819200
s_and_b32 s58, s58, 3
s_mul_i32 s58, s58, 160
s_mul_i32 s60, s59, 40
s_cmp_eq_u32 s59, 4
s_cselect_b32 s60, 16, s60
s_cselect_b32 s54, 80, 20
s_cselect_b32 s55, 20, 4
s_add_u32 s58, s58, s60
s_mul_i32 s58, s58, 1280
s_mul_i32 s60, s45, 160
s_add_u32 s58, s58, s60
s_mul_i32 s54, s54, 1280
s_mul_i32 s55, s55, 1280""")
a(f"s_mul_i32 s62, s64, 5120"); a(f"s_add_u32 s62, s62, {SCR_LDS - 10240}")
a("s_mov_b32 exec_hi, 0xff")
for g in range(4):
    for jh in range(2):
        a(f"s_add_u32 m0, s62, {(16*(g>>1) + 8*jh + 4*(g&1))*160}")
        if jh == 0: a("s_add_u32 s51, s58, s54"); a("buffer_load_dwordx4 v10, s[36:39], s58 offen lds")
        else: a("s_add_u32 s58, s58, s55"); a("buffer_load_dwordx4 v10, s[36:39], s51 offen lds")
a("s_mov_b32 exec_hi, -1")
a(f"""s_mul_i32 s61, s45, 204800
s_mul_i32 s58, s44, 5120
s_add_u32 s61, s61, s58
s_add_u32 s61, s61, {WS_WOT}
""")
if SA < 2: a("s_branch L_LD_ISSUE")
else: a("s_waitcnt vmcnt(20)"); a("s_branch L_LD_BAR")
a("L_SIDE_B:")
if SB == SA + 1: a("s_waitcnt vmcnt(13)")
a("""v_lshrrev_b32 v16, 5, v1
v_lshlrev_b32 v16, 4, v16
v_bfe_u32 v17, v1, 4, 1
v_lshl_add_u32 v16, v17, 2, v16
v_bfe_u32 v17, v1, 2, 2
v_add_u32 v16, v16, v17
v_mul_u32_u24 v16, 160, v16
v_add_u32 v16, s62, v16
v_and_b32 v17, 3, v1
v_lshl_add_u32 v18, v17, 4, v16
v_lshl_add_u32 v19, v17, 3, v16""")
for T in range(5):
    for j in range(2):
        if T < 4: a(f"ds_read_b64_tr_b16 v[{20+4*T+2*j}:{21+4*T+2*j}], v18 offset:{j*1280 + 64*(T>>1) + 8*(T&1)}")
        else: a(f"ds_read_b64_tr_b16 v[{20+4*T+2*j}:{21+4*T+2*j}], v19 offset:{j*1280 + 128}")
a("s_waitcnt lgkmcnt(0)")
for T in range(4): a(f"buffer_store_dwordx4 v[{20+4*T}:{23+4*T}], v12, s[32:35], s61 offen offset:{1024*T} sc1")
a("s_add_u32 s61, s61, 4096")
a(f"buffer_store_dwordx4 v[36:39], v12, s[32:35], s61 offen sc1")
a("s_waitcnt vmcnt(18)"); a("s_branch L_LD_BAR")
a("L_TOK_A:")
srd_ws_dbg()
a("""v_lshlrev_b32 v12, 4, v1
v_mov_b32 v13, 0
s_mov_b64 exec, 1
buffer_load_dword v15, v13, s[40:43], 0 offen sc1
s_mov_b64 exec, -1
s_cmp_lg_u32 s56, 0
s_cbranch_scc1 L_SIDE_B
s_waitcnt vmcnt(13)
s_branch L_LD_BAR""")
a("L_TOK_B:")
srd_ws_dbg()
a(f"""s_mov_b32 s60, 0
v_mov_b32 v13, 0
L_TOK_CHK:
v_readlane_b32 s75, v15, 0
s_add_u32 s60, s60, 1
s_cmp_lg_u32 s75, 0
s_cbranch_scc1 L_TOK_OK
s_cmp_ge_u32 s60, {SPIN_MAX}
s_cbranch_scc1 L_TOK_OK
s_sleep 4
s_mov_b64 exec, 1
buffer_load_dword v15, v13, s[40:43], 0 offen sc1
s_mov_b64 exec, -1
s_waitcnt vmcnt(0)
s_branch L_TOK_CHK
L_TOK_OK:
v_mov_b32 v14, {TOK_LDS}
v_mov_b32 v15, s75
ds_write_b32 v14, v15
s_cmp_eq_u32 s56, 0
s_waitcnt lgkmcnt(0)
s_cbranch_scc1 L_LD_WAIT
s_and_b32 s45, s57, 7
s_lshl_b32 s45, s45, 13
s_lshr_b32 s44, s57, 3
s_lshl_b32 s44, s44, 7
s_add_u32 s45, s45, s44
s_add_u32 s45, s45, {WS_FW}
v_lshlrev_b32 v13, 2, v1
s_mov_b32 exec_hi, 0
buffer_store_dword v15, v13, s[32:35], s45 offen sc1
s_mov_b32 exec_hi, -1
s_waitcnt vmcnt(13)
s_branch L_LD_BAR""")
a("L_WOF_A:")
srd_ws_dbg()
consumer_ids()
a(f"""s_lshl_b32 s59, s84, 13
s_add_u32 s59, s59, {WS_FW}
v_lshlrev_b32 v13, 7, v1
v_lshlrev_b32 v12, 4, v1
s_mov_b32 exec_hi, 0xff
buffer_load_dword v14, v13, s[32:35], s59 offen sc1
s_mov_b32 s60, 0
s_waitcnt vmcnt(13)""")
lstamp(18)
if "nobar" not in XP: a("s_barrier")
a(f"""L_WO_POLL:
s_waitcnt vmcnt(0)
v_cmp_ne_u32 vcc, s75, v14
s_cbranch_vccz L_WO_OK
s_add_u32 s60, s60, 1
s_cmp_ge_u32 s60, {SPIN_MAX}
s_cbranch_scc1 L_WO_OK
s_sleep 4
buffer_load_dword v14, v13, s[32:35], s59 offen sc1
s_branch L_WO_POLL
L_WO_OK:
s_mov_b32 exec_hi, -1
s_setprio 0""")
stamp(a, 29)
CL = {"S1": (0, 24, 49152, 24576), "S2": (24, 14, 98304, 14336), "S0": (38, 24, 0, 24576), "TOP": (62, 8, 147456, 8192),
      "R1": (70, 20, 49152, 24576), "X": (90, 10, XCH, 10240)}
a(f"""s_mul_i32 s58, s84, 204800
s_add_u32 s58, s58, {WS_WOT}
s_lshr_b32 s44, s64, 1
s_and_b32 s45, s64, 1
s_lshl_b32 s45, s45, 10
s_mul_i32 s59, s44, 102400
s_add_u32 s59, s59, s58
s_add_u32 s59, s59, s45""")
rotbit("s54"); a("s_mul_i32 s54, s54, 51200"); a("s_sub_u32 s55, s59, s54"); a("s_add_u32 s59, s59, s54")
def dma_class(nm, lo=0, hi=None):
    l0, n, base, delta = CL[nm]
    a(f"s_mul_i32 s53, s44, {delta}"); a("s_add_u32 s53, s53, s45")
    for j in range(lo, n if hi is None else hi, 2):
        a(f"s_add_u32 m0, s53, {base + j*1024}"); a(f"s_add_u32 s51, {'s59' if l0 + j < 50 else 's55'}, {(l0 + j)*1024}")
        a(f"buffer_load_dwordx4 v12, s[32:35], s51 offen sc1 lds")
dma_class("S1", 0, NS1)
if "nobar" not in XP: a("s_barrier")
dma_class("S1", NS1); dma_class("S2")
a("s_waitcnt vmcnt(7)")
stamp(a, 30)
a("s_barrier")
dma_class("S0"); dma_class("TOP")
TOK = 253
a(f"v_mov_b32 v{TOK}, s75")
a("s_branch L_P2_PRE")
a("L_COMPUTE:")
ev(a, "start")
a(f"s_setprio {OPT.get('cprio', 3)}")
ids()
a("s_waitcnt lgkmcnt(0)")
stamp0(a); stamp(a, 2)
srd_ws_dbg()
a("""s_mov_b32 s39, 0x20000
s_mov_b32 s56, 0
s_cmp_eq_u32 s22, 3
s_cbranch_scc1 L_C_GW
s_cmp_eq_u32 s22, 2
s_cbranch_scc1 L_C_TOK
s_branch L_C_SETUP""")
a("L_C_GW:")
a(f"""s_mov_b32 s36, s16
s_mov_b32 s37, s17
s_mov_b32 s38, 1280
v_lshlrev_b32 v140, 4, v1
s_mov_b32 m0, {GW_LDS}
v_mov_b64 v[144:145], 0
buffer_load_dwordx4 v140, s[36:39], 0 offen lds
buffer_load_dwordx4 v140, s[36:39], 0 offen offset:1024 lds
v_mov_b64 v[146:147], 0
ds_write_b128 v140, v[144:147] offset:{XOFF}
v_add_u32 v140, {STAGE}, v140
ds_write_b128 v140, v[144:147] offset:{XOFF}
v_add_u32 v140, {STAGE}, v140
ds_write_b128 v140, v[144:147] offset:{XOFF}
s_branch L_C_SETUP""")
a("L_C_TOK:")
a("""s_cmp_lg_u32 s2, 0
s_cbranch_scc1 L_C_CPF
s_memrealtime s[44:45]
v_mov_b32 v147, 0
s_waitcnt lgkmcnt(0)
s_or_b32 s44, s44, 1
v_mov_b32 v146, s44
s_mov_b64 exec, 1
buffer_atomic_cmpswap v[146:147], v147, s[40:43], 0 offen sc1
s_mov_b64 exec, -1
L_C_CPF:
s_getpc_b64 s[70:71]
L_PC:
s_sub_u32 s70, s70, L_PC - L_SIDE_B
s_subb_u32 s71, s71, 0
v_lshlrev_b32 v140, 7, v1
global_load_dword v241, v140, s[70:71]
v_add_u32 v140, 8192, v140
v_cmp_gt_u32 vcc, CODE_END - L_SIDE_B - 4, v140
s_and_saveexec_b64 s[72:73], vcc
s_cbranch_execz L_NOPF
global_load_dword v241, v140, s[70:71]
L_NOPF:
s_mov_b64 exec, s[72:73]""")
a("L_C_SETUP:")
stamp(a, 3)
VWA, VWB, VX0, VX1, VGX0, VGX1, VGW = 2, 3, 4, 5, 6, 7, 240
ACCQ, ACCK, ACCV, ACCH = 8, 48, 88, 128
RING, XB, GX = 140, 180, 204
MC, MP, MP0, AM, ONES = 220, 224, 228, 232, 236
def acc(seg, t, T): return (ACCQ, ACCK, ACCV)[seg] + t * 20 + T * 4
a("s_setprio 0")
a(f"""v_lshrrev_b32 v140, 4, v1
v_and_b32 v141, 15, v1
v_lshrrev_b32 v142, 5, v1
v_lshlrev_b32 v142, 4, v142
v_and_b32 v143, 1, v140
v_lshl_add_u32 v142, v143, 2, v142
v_lshrrev_b32 v143, 2, v141
v_add_u32 v142, v142, v143
v_mul_u32_u24 v145, 480, v142
v_and_b32 v143, 3, v141
v_lshl_add_u32 v{VWA}, v143, 3, v145
v_mul_u32_u24 v144, 40, v143
v_add3_u32 v{VWB}, v145, v144, 32
v_lshrrev_b32 v144, 1, v141
v_xor_b32 v144, v144, v140
v_lshlrev_b32 v144, 4, v144
v_lshl_add_u32 v{VX0}, v141, 7, v144
v_xor_b32 v{VX1}, 64, v{VX0}
s_and_b32 s44, s20, 7
s_lshl_b32 s44, s44, 11
v_add_u32 v{VGX0}, s44, v{VX0}
v_add_u32 v{VGX1}, s44, v{VX1}
v_lshlrev_b32 v{VGW}, 4, v140
s_lshl_b32 s44, s23, 7
s_add_u32 s44, s44, {GW_LDS}
v_add_u32 v{VGW}, s44, v{VGW}""")
a(f"s_mov_b32 s44, {NEG}")
a(f"v_mov_b32 v146, s44")
a("s_lshr_b32 s45, s21, 1"); a("s_or_b32 s45, s45, s22")
a("v_lshlrev_b32 v145, 2, v140"); a("v_sub_u32 v145, v141, v145")
for r in range(4): a(f"v_subrev_u32 v{150+r}, {r}, v145")
for r in range(4):
    a(f"v_cmp_gt_u32 vcc, 8, v{150+r}"); a(f"v_cmp_gt_i32 s[72:73], -8, v{150+r}")
    a(f"v_mov_b32 v{ONES+r}, 0x3f803f80")
    a(f"v_cndmask_b32 v{MC+r}, v146, 0, vcc"); a(f"v_cndmask_b32 v{MP+r}, v146, 0, s[72:73]")
a("s_cmp_eq_u32 s45, 0"); a("s_cselect_b64 vcc, -1, 0")
for r in range(4): a(f"v_cndmask_b32 v{MP0+r}, v{MP+r}, v146, vcc")
a("s_mov_b32 s44, 0xffff0000")
for h in range(2):
    a(f"v_ashrrev_i32 v154, 31, v{150+2*h}"); a(f"v_ashrrev_i32 v155, 31, v{151+2*h}")
    a(f"v_bfi_b32 v{AM+h}, s44, v155, v154"); a(f"v_not_b32 v{AM+2+h}, v{AM+h}")
a(f"""s_mov_b64 s[48:49], 0xffff
s_mov_b32 s50, 0xffff0000
s_mov_b32 s51, 0
s_mov_b32 s52, 0
s_mov_b32 s53, 0xffff
s_mov_b32 s54, 0
s_mov_b32 s55, 0xffff0000
s_mov_b32 s63, {STAGE}
s_mov_b32 s74, 128""")
for r in range(ACCQ, ACCH + 12, 2): a(f"v_mov_b64 v[{r}:{r+1}], 0")
a("s_waitcnt vmcnt(0) lgkmcnt(0)")
stamp(a, 4)
a("L_C_GO:")
a("""s_mov_b32 s44, 0
s_mov_b32 s45, 0""")
for w in range(1, 4):
    a(f"s_cmp_eq_u32 s22, {w}"); a(f"s_cbranch_scc1 L_W{w}")
HALO = [[(1,0),(1,1),(1,2)], [(1,3),(1,4),(2,0)], [(2,1),(2,2)], [(2,3),(2,4)]]
D = 5
def istep(f): return f - 5 if f <= 14 else (f - 6 if f <= 21 else f - 7)
for w in range(4):
    gate = (w == 3)
    q = []
    def rdW(f):
        ks, seg, T = f // 15, (f % 15) // 5, f % 5
        d = RING + (f % 10) * 4
        if "nods" in XP: return [("s_nop 0", ("W", f))] * 2
        return [(f"ds_read_b64_tr_b16 v[{d+2*j}:{d+2*j+1}], v{VWA if T < 4 else VWB} offset:{seg*160 + ks*15360 + j*3840 + (40*T if T < 4 else 0)}", ("W", f)) for j in range(2)]
    def rdX(ks):
        o = []
        for n, tile in enumerate((1 + 2 * w, 2 + 2 * w, 0)):
            d = XB + (ks * 3 + n) * 4
            o.append((f"ds_read_b128 v[{d}:{d+3}], v{(VX0, VX1)[ks]} offset:{XOFF + tile*2048}", ("X", ks)))
        if gate:
            d = GX + ks * 8
            o.append((f"ds_read_b128 v[{d}:{d+3}], v{(VGX0, VGX1)[ks]} offset:{XOFF + 2048}", ("X", ks)))
            o.append((f"ds_read_b128 v[{d+4}:{d+7}], v{VGW} offset:{ks*64}", ("X", ks)))
        return o
    def wait(b, tags):
        last = max(i for i, t in enumerate(q) if t in tags)
        b(f"s_waitcnt lgkmcnt({min(len(q) - 1 - last, 15)})")
    def mm(f):
        ks, seg, T = f // 15, (f % 15) // 5, f % 5
        wf = vr(RING + (f % 10) * 4); o = []
        def one(dst, xf):
            o.append(f"{MF} {vr(dst)}, {wf}, {xf}, {vr(dst)}" if seg < 2 else f"{MF} {vr(dst)}, {xf}, {wf}, {vr(dst)}")
        one(acc(seg, 0, T), vr(XB + (ks * 3) * 4)); one(acc(seg, 1, T), vr(XB + (ks * 3 + 1) * 4))
        if (seg, T) in HALO[w]: one(ACCH + 4 * HALO[w].index((seg, T)), vr(XB + (ks * 3 + 2) * 4))
        if gate and seg == 0 and T == 2:
            d = GX + ks * 8
            o.append(f"{MF} {vr(ACCH+8)}, {vr(d+4)}, {vr(d)}, {vr(ACCH+8)}")
        return o
    def weave(b, ms, fs, lastless=True):
        n = len(ms); k = len(fs)
        cnt = [0] * n
        for i in range(k):
            load = [cnt[j] + (1 if (lastless and j == n - 1) else 0) for j in range(n)]
            cnt[load.index(min(load))] += 1
        it = iter(fs)
        for m_, c_ in zip(ms, cnt):
            b(m_)
            for _ in range(c_):
                t = next(it)
                b(t[0])
                if t[1] is not None: q.append(t[1])
    FA = {s: [] for s in range(25, 30)}
    x0 = rdX(0)
    FA[25] = x0[:2] + rdW(0); FA[26] = x0[2:4] + rdW(1); FA[27] = x0[4:] + rdW(2); FA[28] = rdW(3); FA[29] = rdW(4)
    FB = {s: [] for s in range(25)}
    for f in range(D, 30): FB[istep(f)] += rdW(f)
    x1 = rdX(1)
    for i, t in enumerate(x1): FB[2 + i].append(t)
    sal = ["s_add_u32 s45, s45, 1", "s_cmp_eq_u32 s45, 3", f"s_cselect_b32 s46, {(-2*STAGE) & 0xffffffff}, s63", "s_cselect_b32 s45, 0, s45"]
    for i, t in enumerate(sal): FB[10 + i].append((t, None))
    if gate:
        sal = ["s_add_u32 s23, s23, 1", "s_cmp_eq_u32 s23, 10", "s_cselect_b32 s23, 0, s23", "s_cselect_b32 s47, -1152, s74"]
        for i, t in enumerate(sal): FB[16 + i].append((t, None))
        FB[20].append((f"v_add_u32 v{VGW}, s47, v{VGW}", None))
        FB[21].append((f"v_add_u32 v{VGX0}, s46, v{VGX0}", None)); FB[22].append((f"v_add_u32 v{VGX1}, s46, v{VGX1}", None))
    FB[20].append((f"v_add_u32 v{VX0}, s46, v{VX0}", None)) if not gate else FB[14].append((f"v_add_u32 v{VX0}, s46, v{VX0}", None))
    FB[23] += [(f"v_add_u32 v{VX1}, s46, v{VX1}", None), (f"v_add_u32 v{VWA}, s46, v{VWA}", None), (f"v_add_u32 v{VWB}, s46, v{VWB}", None)]
    FB[24] += [("s_add_u32 s44, s44, 1", None), ("s_cmp_eq_u32 s44, 10", None)]
    pre = Asm(); pa = Asm(); pb = Asm(); tail = Asm()
    stamp(pre, 5)
    pre("s_barrier")
    if STAMP: stamp2(pre, 6, 50)
    ev(pre, "b0")
    for s in range(25, 30):
        for t in FA[s]: pre(t[0])
    q.clear()
    pa("s_waitcnt lgkmcnt(0)"); pa("s_nop 0" if "nobar" in XP else "s_barrier")
    for s in range(25, 30): weave(pa, mm(s), FA[s], lastless=(s == 29))
    pa(f"s_branch L_LB{w}")
    for s in range(25):
        tags = [("W", s)] + ([("X", 0)] if s == 0 else []) + ([("X", 1)] if s == 15 else [])
        wait(pb, tags); weave(pb, mm(s), FB[s])
    pb(f"s_cbranch_scc1 L_T{w}")
    tail(f"v_mov_b32 v{TOK}, {TOK_LDS}")
    tail("s_waitcnt lgkmcnt(0)")
    tail(f"ds_read_b32 v{TOK}, v{TOK}")
    for s in range(25, 30):
        for m_ in mm(s): tail(m_)
    tail(f"v_lshlrev_b32 v{VWA}, 3, v1")
    tail(f"v_add_u32 v{VX1}, {XCH}, v{VWA}")
    if gate:
        z = ACCH + 8
        tail(f"""v_cvt_pk_bf16_f32 v248, v{z}, v{z}
        v_and_b32 v248, 0xffff0000, v248
        v_mul_f32 v248, {LOG2E ^ 0x80000000}, v248
        v_exp_f32 v248, v248
        s_lshl_b32 s46, s21, 3
        v_add_f32 v248, 1.0, v248
        v_rcp_f32 v248, v248
        s_add_u32 s46, s46, s20
        v_cvt_pk_bf16_f32 v248, v248, v248
        v_and_b32 v248, 0xffff0000, v248
        s_lshl_b32 s46, s46, 7
        s_add_u32 s46, s46, {WS_G}
        s_waitcnt lgkmcnt(0)
        v_sub_u32 v249, v{TOK}, v248""")
    for n, (seg, T) in enumerate(HALO[w]):
        tail(f"v_cvt_pk_bf16_f32 v{242+2*n}, v{ACCH+4*n}, v{ACCH+4*n+1}")
        tail(f"v_cvt_pk_bf16_f32 v{243+2*n}, v{ACCH+4*n+2}, v{ACCH+4*n+3}")
        tail(f"ds_write_b64 v{VX1}, v[{242+2*n}:{243+2*n}] offset:{((seg-1)*5+T)*512}")
    if gate:
        tail(f"""s_cmp_ge_u32 s20, 8
        s_cbranch_scc1 L_ATT
        s_mov_b64 exec, 0xffff
        buffer_store_dwordx2 v[248:249], v{VWA}, s[32:35], s46 offen sc1
        s_mov_b64 exec, -1""")
    else: tail("s_branch L_ATT")
    if w > 0: a(f"L_W{w}:")
    a.extend(pre); a(".p2align 3"); a(f"L_LB{w}:"); a.extend(pb); a.extend(pa); a(f"L_T{w}:"); a.extend(tail)
    traces.append(pre.L + pb.L + pa.L + pb.L + tail.L[:14])
a("L_ATT:")
if STAMP: stamp2(a, 30, 51)
ev(a, "gemm")
KOP = {1: 140, 0: 156, -1: 204}
VOP = 172; QOP = {1: 68, 0: 108}
def kop(t, h): return KOP[t] + 4 * h
def vop(T, t): return VOP + 6 * T + 2 * (t + 1)
def qop(t, h): return QOP[t] + 4 * h
g = Asm()
def cvt(d, s): g(f"v_cvt_pk_bf16_f32 v{d}, v{s}, v{s+1}"); g(f"v_cvt_pk_bf16_f32 v{d+1}, v{s+2}, v{s+3}")
def flush(name):
    global g
    o, t = schedule(g.L); print(f"; sched {name}: {len(o)} instrs, est {t} cycles", file=sys.stderr)
    for l in o: a(l)
    g = Asm()
a("s_setprio 2")
a(f"s_mul_i32 s46, s22, 5120"); a(f"v_add_u32 v{VWB}, s46, v{VX1}")
a("s_add_u32 s46, s46, 5120"); a("s_cmp_eq_u32 s22, 3"); a(f"s_cselect_b32 s46, {SCR_LDS - XCH}, s46"); a(f"v_add_u32 v{VX1}, s46, v{VX1}")
for h in range(4):
    cvt(kop(1, h), acc(1, 1, h)); g(f"ds_write_b64 v{VX1}, v[{kop(1,h)}:{kop(1,h)+1}] offset:{h*512}")
cvt(kop(1, 0) + 2, acc(1, 1, 4)); g(f"ds_write_b64 v{VX1}, v[{kop(1,0)+2}:{kop(1,0)+3}] offset:{4*512}")
for T in range(5):
    cvt(vop(T, 1), acc(2, 1, T)); g(f"ds_write_b64 v{VX1}, v[{vop(T,1)}:{vop(T,1)+1}] offset:{(5+T)*512}")
for h in range(1, 4): cvt(kop(1, h) + 2, acc(1, 1, 4))
cvt(250, acc(0, 1, 4))
for h in range(4): cvt(qop(1, h), acc(0, 1, h))
for h in range(4):
    for j in range(2): g(f"v_cndmask_b32 v{qop(1,h)+2+j}, 0, v{250+j}, s[{48+2*h}:{49+2*h}]")
for l in g.L: a(l)
g = Asm()
a(f"s_mov_b32 s46, {CEXP}"); a(f"s_mov_b32 s47, {CEXP}")
a("s_lshl_b32 s56, s21, 3"); a("s_lshl_b32 s57, s22, 1"); a("s_add_u32 s56, s56, s57")
a(f"s_mul_i32 s56, s56, {OTT}"); a(f"s_mul_i32 s57, s20, {OBLK}"); a("s_add_u32 s56, s56, s57")
a(f"s_add_u32 s57, s56, {OTT}")
stamp(a, 31)
a("s_waitcnt lgkmcnt(0)"); a("s_barrier")
stamp(a, 32)
for h in range(4):
    g(f"ds_read_b64 v[{kop(-1,h)}:{kop(-1,h)+1}], v{VWB} offset:{h*512}")
    g(f"ds_read_b64 v[{kop(-1,h)+2}:{kop(-1,h)+3}], v{VWB} offset:{4*512}")
for T in range(5): g(f"ds_read_b64 v[{vop(T,-1)}:{vop(T,-1)+1}], v{VWB} offset:{(5+T)*512}")
g("@wait")
g(f"v_lshlrev_b32 v{VX0}, 4, v1"); g(f"v_mul_u32_u24 v{VWA}, 12, v1")
for h in range(4): cvt(kop(0, h), acc(1, 0, h)); cvt(kop(0, h) + 2, acc(1, 0, 4))
for T in range(5): cvt(vop(T, 0), acc(2, 0, T))
cvt(246, acc(0, 0, 4))
for h in range(4): cvt(qop(0, h), acc(0, 0, h))
for h in range(4):
    for j in range(2): g(f"v_cndmask_b32 v{qop(0,h)+2+j}, 0, v{246+j}, s[{48+2*h}:{49+2*h}]")
SR = {1: [28, 32, 36, 40, 44, 48, 52, 56], 0: [8, 12, 16, 20, 24, 88, 92, 96]}
def dc(t, h): return SR[t][h]
def dp(t, h): return SR[t][4 + h]
MX = {1: 84, 0: 124}; TMP = {1: 128, 0: 132}
OREG = {1: [68, 72, 76, 80, 140, 144, 148, 152, 60, 64, 100, 104], 0: [108, 112, 116, 120, 156, 160, 164, 168, 204, 208, 212, 216]}
def oo(t, h, k): return OREG[t][k * 4 + h]
for t in (1, 0):
    for h in range(4):
        g(f"{MF} {vr(dc(t,h))}, {vr(kop(t,h))}, {vr(qop(t,h))}, {vr(MC)}")
        g(f"{MF} {vr(dp(t,h))}, {vr(kop(t-1,h))}, {vr(qop(t,h))}, {vr(MP if t else MP0)}")
for t in (1, 0):
    for h in range(4):
        for r in range(4): g(f"v_max_f32 v{dc(t,h)+r}, v{dc(t,h)+r}, v{dp(t,h)+r}")
        g(f"v_max3_f32 v{MX[t]+h}, v{dc(t,h)}, v{dc(t,h)+1}, v{dc(t,h)+2}")
        g(f"v_max_f32 v{MX[t]+h}, v{MX[t]+h}, v{dc(t,h)+3}")
    m = MX[t]
    g(f"""v_permlane32_swap_b32 v{m}, v{m+1}
    v_permlane32_swap_b32 v{m+2}, v{m+3}
    v_max_f32 v{m}, v{m}, v{m+1}
    v_max_f32 v{m+2}, v{m+2}, v{m+3}
    v_permlane16_swap_b32 v{m}, v{m+2}
    v_max_f32 v{m}, v{m}, v{m+2}
    v_mul_f32 v{m+2}, s46, v{m}
    v_mul_f32 v{m}, s46, v{m}
    v_permlane16_swap_b32 v{m}, v{m+2}
    v_mov_b32 v{m+1}, v{m}
    v_mov_b32 v{m+3}, v{m+2}
    v_permlane32_swap_b32 v{m}, v{m+1}
    v_permlane32_swap_b32 v{m+2}, v{m+3}""")
    for h in range(4):
        d = dc(t, h); p = dp(t, h)
        if PK:
            mp_ = m + (h & 2); e = h & 1
            for r in (0, 2): g(f"v_pk_fma_f32 v[{d+r}:{d+r+1}], v[{d+r}:{d+r+1}], s[46:47], v[{mp_}:{mp_+1}] op_sel:[0,0,{e}] op_sel_hi:[1,1,{e}] neg_lo:[0,0,1] neg_hi:[0,0,1]")
        else:
            for r in range(4): g(f"v_fma_f32 v{d+r}, v{d+r}, s46, -v{m+h}")
        for r in range(4): g(f"v_exp_f32 v{d+r}, v{d+r}")
        g(f"v_cvt_pk_bf16_f32 v{d}, v{d}, v{d+1}"); g(f"v_cvt_pk_bf16_f32 v{d+2}, v{d+2}, v{d+3}")
        g(f"v_and_b32 v{p}, v{AM}, v{d}"); g(f"v_and_b32 v{p+1}, v{AM+1}, v{d+2}")
        g(f"v_and_b32 v{p+2}, v{AM+2}, v{d}"); g(f"v_and_b32 v{p+3}, v{AM+3}, v{d+2}")
    for h in range(4):
        g(f"{MF} {vr(oo(t,h,2))}, {vr(ONES)}, {vr(dp(t,h))}, 0")
        g(f"{MF} {vr(oo(t,h,0))}, {vr(vop(h,t-1))}, {vr(dp(t,h))}, 0")
        g(f"{MF} {vr(oo(t,h,1))}, {vr(vop(4,t-1))}, {vr(dp(t,h))}, 0")
    for h in range(4):
        o0 = oo(t, h, 0); rc = oo(t, h, 2)
        g(f"v_rcp_f32 v{rc}, v{rc}")
        if PK:
            for r in (0, 2): g(f"v_pk_mul_f32 v[{o0+r}:{o0+r+1}], v[{o0+r}:{o0+r+1}], v[{rc}:{rc+1}] op_sel_hi:[1,0]")
        else:
            for r in range(4): g(f"v_mul_f32 v{o0+r}, v{o0+r}, v{rc}")
        for r in range(4): g(f"v_mul_f32_dpp v{TMP[t]+r}, v{oo(t,h,1)+r}, v{rc} quad_perm:[0,1,2,3] row_mask:{hex(1<<h)} bank_mask:0xf")
        cvt(dc(t, h >> 1) + 2 * (h & 1), o0)
    cvt(dc(t, 2), TMP[t])
    so = "s57" if t else "s56"
    c = dc(t, 2)
    for p in range(2):
        g(f"buffer_store_dwordx4 {vr(dc(t, p))}, v{VX0}, s[32:35], {so} offen offset:{1024*p} sc1")
    d = dc(t, 0); e = dc(t, 1)
    g(f"v_add3_u32 v{c+2}, v{d}, v{d+1}, v{d+2}"); g(f"v_add3_u32 v{c+3}, v{e}, v{e+1}, v{e+2}")
    g(f"v_add3_u32 v{c+2}, v{c+2}, v{d+3}, v{e+3}"); g(f"v_add3_u32 v{c+2}, v{c+2}, v{c+3}, v{TOK}")
    g(f"v_add3_u32 v{c+2}, v{c+2}, v{c}, v{c+1}")
    g(f"buffer_store_dwordx3 {vr(c,3)}, v{VWA}, s[32:35], {so} offen offset:2048 sc1")
flush("attention")
if STAMP: stamp2(a, 35, 52)
ev(a, "att")
WR = 48
OR_ = 128
AC = 224
CK = 244
BA = {"S1": 248, "S2": 249, "S0": 250, "TOP": 251, "R1": 248, "X": 252}
def lring(l):
    k = (l - 20) % 15
    return 8 + 4 * k
a("L_P2_PRE:")
a("v_lshlrev_b32 v2, 4, v1")
a("s_lshr_b32 s64, s22, 2")
a(f"s_mul_i32 s60, s64, {CL['S1'][3]}"); a(f"s_add_u32 s60, s60, {CL['S1'][2]}"); a(f"v_add_u32 v{BA['S1']}, s60, v2")
for l in range(20): a(f"ds_read_b128 {vr(WR+4*l)}, v{BA['S1']} offset:{l*1024}")
for nm in ("S2", "S0", "TOP", "X"):
    a(f"s_mul_i32 s60, s64, {CL[nm][3]}"); a(f"s_add_u32 s60, s60, {CL[nm][2]}"); a(f"v_add_u32 v{BA[nm]}, s60, v2")
consumer_ids()
rotbit("s86")
a(f"""s_and_b32 s65, s22, 3
s_lshl_b32 s67, s85, 2
s_add_u32 s67, s67, s65
s_mul_i32 s80, s67, {OTT}
s_mul_i32 s60, s64, {8*OBLK}
s_add_u32 s80, s80, s60
v_mul_u32_u24 v3, 12, v1
v_add_u32 v3, 2048, v3
v_and_b32 v4, 15, v1
v_lshlrev_b32 v5, 3, v4
s_lshl_b32 s62, s67, 7
s_add_u32 s62, s62, {WS_G}
v_sub_u32 v254, 0, v{TOK}
s_add_u32 s82, s80, {4*OBLK}
s_mul_i32 s86, s86, {4*OBLK}
s_add_u32 s80, s80, s86
s_sub_u32 s82, s82, s86
s_add_u32 s81, s80, {2*OBLK}
s_add_u32 s83, s82, {2*OBLK}
s_mov_b32 s28, s18
s_mov_b32 s29, s19
s_mov_b32 s30, 2621440
s_mov_b32 s31, 0x20000
s_mov_b32 s61, 0""")
stamp(a, 36)
a("s_waitcnt lgkmcnt(0)")
a("s_barrier")
stamp(a, 37)
a("s_cmp_lt_u32 s22, 4"); a("s_cbranch_scc1 L_P2_C")
dma_class("R1"); dma_class("X")
if OWAIT >= 2: a("s_waitcnt vmcnt(0)"); stamp(a, 38)
a("s_branch L_P2_GO")
a("L_P2_C:")
if OWAIT: a("s_waitcnt vmcnt(0)"); stamp(a, 38)
a("s_setprio 0")
a("L_P2_GO:")
if OWAIT >= 2: a("s_barrier")
if OWAIT >= 3: a(f"s_sleep {OWAIT}")
if STAMP: stamp2(a, 39, 53)
ev(a, "bp")
def og(m, e, k): return OR_ + m * 24 + e * 12 + k * 4
def ld_pair(m):
    o = []
    for e in range(2):
        for k in range(2): o.append(f"buffer_load_dwordx4 {vr(og(m, e, k))}, v2, s[32:35], s{80+m} offen offset:{e*OBLK + k*1024} sc1")
        o.append(f"buffer_load_dwordx3 {vr(og(m, e, 2), 3)}, v3, s[32:35], s{80+m} offen offset:{e*OBLK} sc1")
    return o
def chk_pair(m):
    o = []
    for e in range(2):
        d = og(m, e, 0); f = og(m, e, 1); c = og(m, e, 2); x = CK + 2 * e
        o.append([f"v_add3_u32 v{x}, v{d}, v{d+1}, v{d+2}", f"v_add3_u32 v{x+1}, v{f}, v{f+1}, v{f+2}", f"v_add3_u32 v{x}, v{x}, v{d+3}, v{f+3}",
                  f"v_add3_u32 v{x}, v{x}, v{x+1}, v{TOK}", f"v_add3_u32 v{x}, v{x}, v{c}, v{c+1}", f"v_xor_b32 v{x}, v{x}, v{c+2}"])
    o = [o[j][i] for i in range(6) for j in range(2)]
    o += [f"v_or_b32 v{CK}, v{CK}, v{CK+2}", f"v_cmp_ne_u32 vcc, 0, v{CK}"]
    return o
def ofrag(i):
    m, ss = i // 5, i % 5
    return og(m, ss >> 1, ss & 1) if ss < 4 else og(m, 0, 2)
def ld_w(i):
    if i < 4 or i >= 20: return []
    o = []
    for T in range(5):
        l = i * 5 + T
        nm = [k for k, v in CL.items() if v[0] <= l < v[0] + v[1]][0]
        o.append(f"ds_read_b128 {vr(lring(l))}, v{BA[nm]} offset:{(l - CL[nm][0]) * 1024}")
    return o
GLD = "buffer_load_dwordx2 v[6:7], v5, s[32:35], s62 offen sc1"
if PD == 2:
    for x in ld_pair(0) + ld_pair(1): a(x)
    a("s_waitcnt vmcnt(6)")
else:
    for x in ld_pair(0): a(x)
    a("s_waitcnt vmcnt(0)")
    for x in ld_pair(1): a(x)
stamp(a, 33)
for x in chk_pair(0): a(x)
PRE = ["s_lshr_b32 s46, s67, 4", "s_lshl_b32 s46, s46, 8", "s_bfe_u32 s47, s67, 0x10003", "s_add_u32 s46, s46, s47", "s_and_b32 s47, s67, 7",
       "s_lshl_b32 s47, s47, 5", "s_add_u32 s46, s46, s47", "s_mul_i32 s46, s46, 1280", "s_mul_i32 s47, s84, 160", "s_add_u32 s46, s46, s47",
       "s_mul_i32 s60, s65, 5120", f"v_add_u32 v{WR+76}, s60, v2", "v_mul_u32_u24 v4, 2560, v4", f"v_lshrrev_b32 v{WR+79}, 4, v1",
       f"v_lshl_add_u32 v{WR+77}, v{WR+79}, 4, v4", f"v_lshl_add_u32 v{WR+78}, v{WR+79}, 3, v4",
       "s_waitcnt vmcnt(0)", f"v_add3_u32 v{CK}, v6, v7, v254", f"v_cmp_ne_u32 vcc, 0, v{CK}"]
for m in range(4):
    a(f"s_cbranch_vccnz L_RETRY{m}")
    a(f"L_OK{m}:")
    if m == 0: stamp(a, 34)
    a(f"v_mov_b32 v{og(m,0,2)+2}, v{og(m,1,2)}"); a(f"v_mov_b32 v{og(m,0,2)+3}, v{og(m,1,2)+1}")
    lds_ = ld_pair(m + 2) if m < 2 else ([GLD] if m == 2 else [])
    chk = chk_pair(m + 1) if m < 3 else []
    for ss in range(5):
        i = m * 5 + ss
        nxt = ld_w(i + 2)
        w_ = []
        if i >= 4: w_.append(f"lgkmcnt({5 if i < 19 else 0})")
        if PD == 2 and ss == 3 and m < 3: w_.insert(0, f"vmcnt({len(lds_)})")
        if w_: a("s_waitcnt " + " ".join(w_))
        for T in range(5):
            wf = vr(lring(i * 5 + T)) if i >= 4 else vr(WR + (i * 5 + T) * 4)
            a(f"{MF} {vr(AC+4*T)}, {wf}, {vr(ofrag(i))}, {'0' if i == 0 else vr(AC+4*T)}")
            if nxt: a(nxt[T])
            if PD == 2:
                if ss < 3 and T in (1, 3):
                    k = ss * 2 + (T >> 1)
                    if k < len(lds_): a(lds_[k])
                if ss >= 3 and chk:
                    k = (ss - 3) * 5 + T
                    for x in chk[k * 14 // 10:(k + 1) * 14 // 10]: a(x)
            if m == 3:
                k = ss * 5 + T
                if k < len(PRE): a(PRE[k])
    if PD == 1 and m < 3:
        a("s_waitcnt vmcnt(0)")
        for x in lds_: a(x)
        for x in chk: a(x)
if STAMP: stamp2(a, 56, 54)
a("s_cbranch_vccnz L_RETRYG")
a("L_OKG:")
a("s_cmp_eq_u32 s64, 0")
a("s_cbranch_scc1 L_EPI_A")
def epi(send, keep, sc):
    RA, O4, O2 = WR + 76, WR + 77, WR + 78
    for T in send:
        for r in (0, 2): a(f"v_pk_mul_f32 v[{AC+4*T+r}:{AC+4*T+r+1}], v[{AC+4*T+r}:{AC+4*T+r+1}], v[{sc}:{sc+1}] op_sel_hi:[1,0]")
    a("s_barrier")
    for T in send: a(f"ds_write_b128 v{RA}, {vr(AC+4*T)} offset:{T*1024}")
    a("s_waitcnt lgkmcnt(0)"); a("s_barrier")
    for n, T in enumerate(keep): a(f"ds_read_b128 {vr(8+4*n)}, v{RA} offset:{T*1024}")
    for n, T in enumerate(keep):
        a(f"s_waitcnt lgkmcnt({len(keep)-1-n})")
        for r in (0, 2): a(f"v_pk_fma_f32 v[{8+4*n+r}:{8+4*n+r+1}], v[{AC+4*T+r}:{AC+4*T+r+1}], v[{sc}:{sc+1}], v[{8+4*n+r}:{8+4*n+r+1}] op_sel_hi:[1,0,1]")
        a(f"v_cvt_pk_bf16_f32 v{OR_+2*n}, v{8+4*n}, v{8+4*n+1}"); a(f"v_cvt_pk_bf16_f32 v{OR_+2*n+1}, v{8+4*n+2}, v{8+4*n+3}")
        if n == 1: a(f"buffer_store_dwordx4 {vr(OR_)}, v{O4}, s[28:31], s46 offen offset:{32*keep[0]} {SF}")
        if n == 2: a(f"buffer_store_dwordx2 {vr(OR_+4,2)}, v{O2}, s[28:31], s46 offen offset:128 {SF}")
a("v_sub_f32 v6, 1.0, v6"); a("v_cvt_pk_bf16_f32 v6, v6, v6"); a("v_and_b32 v6, 0xffff0000, v6")
epi([0, 1], [2, 3, 4], 6)
a("s_branch L_FIN")
a("L_EPI_A:")
a("s_nop 4")
epi([2, 3, 4], [0, 1], 6)
ev(a, "end")
if SPIN:
    a("""s_mov_b32 s60, 0
    L_SPIN:
    s_memrealtime s[98:99]
    s_waitcnt lgkmcnt(0)
    s_sub_u32 s98, s98, s96
    s_add_u32 s60, s60, 1
    s_cmp_ge_u32 s60, 20000
    s_cbranch_scc1 L_FIN
    s_cmp_lt_u32 s98, 4000
    s_cbranch_scc1 L_SPIN""")
a("L_FIN:")
if STAMP:
    stamp(a, 57)
    a("s_add_u32 s61, s61, 1"); a(f"v_writelane_b32 v{SV}, s61, 61")
    a("s_waitcnt vmcnt(0)")
    stamp(a, 62); stamp(a, 63, True)
    a(f"s_lshl_b32 s46, s2, 3"); a(f"s_add_u32 s46, s46, s22"); a("s_lshl_b32 s46, s46, 8"); a(f"s_add_u32 s46, s46, {WS_ST}")
    a(f"v_lshlrev_b32 v2, 2, v1")
    a(f"buffer_store_dword v{SV}, v2, s[32:35], s46 offen")
a("L_END:"); a("s_endpgm")
for m in range(4):
    a(f"L_RETRY{m}:")
    a("s_add_u32 s61, s61, 1"); a(f"s_cmp_ge_u32 s61, {SPIN_MAX}"); a(f"s_cbranch_scc1 L_OK{m}")
    a(f"s_sleep {RSLEEP}")
    for x in ld_pair(m): a(x)
    a("s_waitcnt vmcnt(0)")
    for x in chk_pair(m): a(x)
    a(f"s_cbranch_vccnz L_RETRY{m}"); a(f"s_branch L_OK{m}")
a("L_RETRYG:")
a("s_add_u32 s61, s61, 1"); a(f"s_cmp_ge_u32 s61, {SPIN_MAX}"); a("s_cbranch_scc1 L_OKG")
a(f"s_sleep {RSLEEP}")
a("buffer_load_dwordx2 v[6:7], v5, s[32:35], s62 offen sc1"); a("s_waitcnt vmcnt(0)")
a(f"v_add3_u32 v{CK}, v6, v7, v254"); a(f"v_cmp_ne_u32 vcc, 0, v{CK}")
a("s_cbranch_vccnz L_RETRYG"); a("s_branch L_OKG")

l1, _ = fix(a.L)
for tr in traces:
    _, iss_ = fix(tr, verify=True)
    for x in iss_: print("; TRACE HAZARD", x, file=sys.stderr)
print(f"""; gated mix of two dilated sliding-window attention blocks (generated by gen/gen8.py)
; @launch grid=(256,1,1) block=(512,1,1) lds={LDS_TOTAL}
.amdgcn_target "amdgcn-amd-amdhsa--gfx950"
.text
.globl {KN}
.p2align 8
.type {KN},@function""")
print("\n".join(l1))
print("CODE_END:")
print('.section .rodata,"a"')
print(kd(KN, 256, 102, 256))
```

```python
import sys, struct, math
sys.path.insert(0, "gen")
from asmlib import *
NAME = "gated_mix__sliding_local_dilated__sliding_local_dilated__prompt"
KN = NAME + "_kernel"
OPT = dict(a.split("=") for a in sys.argv[1:])
STAMP = int(OPT.get("stamp", 0)); CM = int(OPT.get("cm", 1)); PK = int(OPT.get("pk", 1))
NS1 = int(OPT.get("ns1", 12)); RSLEEP = int(OPT.get("rsleep", 2)); OWAIT = int(OPT.get("owait", 2)); SB = int(OPT.get("sb", 5)); SA = int(OPT.get("sa", 3)); XP = OPT.get("xp", ""); R2 = int(OPT.get("r2", 0)); WNT = "nt " if int(OPT.get("wnt", 0)) else ""; XNT = "nt " if int(OPT.get("xnt", 0)) else ""; SNT = "nt " if int(OPT.get("snt", 0)) else ""; ROT = int(OPT.get("rot", 0)); EP = int(OPT.get("ep", 0)); LPOS = int(OPT.get("lpos", 2)); COV = int(OPT.get("cov", 0)); SF = OPT.get("sf", "nt").replace("+", " "); PD = int(OPT.get("pd", 1))
def f2u(x): return struct.unpack("<I", struct.pack("<f", x))[0]
STAGE = 49152; XOFF = 30720
GW_LDS = 147456; TOK_LDS = GW_LDS + 1536; SCR_LDS = 149504; LDS_TOTAL = 163840
XCH = 126976
RED = 98304
OBLK = 2816; OTT = 16 * OBLK
WS_WOT = 0x700000; WS_G = 0x900000; WS_FW = 0x910000; WS_ST = 0x1000000
NEG = f2u(-1e30)
CEXP = f2u(20 ** -0.5 * math.log2(math.e))
LOG2E = f2u(math.log2(math.e))
MF = "v_mfma_f32_16x16x32_bf16"
SPIN_MAX = 1 << 17
SV = 255
def stamp(a, idx, real=False):
    if not STAMP: return
    a(f"{'s_memrealtime' if real else 's_memtime'} s[68:69]"); a("s_waitcnt lgkmcnt(0)"); a(f"v_writelane_b32 v{SV}, s68, {idx}")
SPIN = OPT.get("spin", "")
def ev(a, name):
    if SPIN == name: a("s_memrealtime s[96:97]"); a("s_waitcnt lgkmcnt(0)")
def stamp2(a, idx, ridx):
    stamp(a, idx); stamp(a, ridx, True)
def stamp0(a):
    if STAMP: a(f"v_mov_b32 v{SV}, 0"); a(f"v_writelane_b32 v{SV}, s66, 0"); a(f"v_writelane_b32 v{SV}, s68, 1")

a = Asm()
traces = []
def ids():
    a("""v_and_b32 v1, 63, v0
    s_and_b32 s20, s2, 3
    s_lshl_b32 s20, s20, 2
    s_bfe_u32 s46, s2, 0x20003
    s_add_u32 s20, s20, s46
    s_lshr_b32 s47, s2, 5
    s_and_b32 s21, s2, 4
    s_lshl_b32 s21, s21, 1
    s_add_u32 s21, s21, s47
    s_mul_i32 s23, s46, 5
    s_add_u32 s23, s23, 1
    s_lshr_b32 s23, s23, 1
    s_add_u32 s23, s23, s47
    s_sub_u32 s46, s23, 10""")
    a("s_cselect_b32 s23, s23, s46" if ROT else "s_mov_b32 s23, 0")
def srd_ws_dbg():
    a("""s_mov_b32 s32, s78
    s_mov_b32 s33, s79
    s_mov_b32 s34, 0x10000000
    s_mov_b32 s35, 0x20000
    s_mov_b32 s40, s76
    s_mov_b32 s41, s77
    s_mov_b32 s42, 256
    s_mov_b32 s43, 0x20000""")
def consumer_ids():
    if CM:
        a("s_bfe_u32 s84, s2, 0x30003"); a("s_and_b32 s85, s2, 7"); a("s_lshl_b32 s85, s85, 2"); a("s_lshr_b32 s86, s2, 6"); a("s_add_u32 s85, s85, s86")
    else:
        a("s_and_b32 s84, s20, 7"); a("s_lshl_b32 s85, s21, 1"); a("s_lshr_b32 s86, s20, 3"); a("s_add_u32 s85, s85, s86")
def rotbit(dst):
    a(f"s_xor_b32 {dst}, s84, s85"); a(f"s_and_b32 {dst}, {dst}, {R2}")
a(f"{KN}:")
if STAMP: a("s_memrealtime s[66:67]"); a("s_memtime s[68:69]")
a("""v_readfirstlane_b32 s22, v0
s_load_dwordx8 s[4:11], s[0:1], 0
s_load_dwordx8 s[12:19], s[0:1], 32
s_load_dwordx4 s[76:79], s[0:1], 64
s_lshr_b32 s3, s2, 8
s_cbranch_scc1 L_END
s_lshr_b32 s22, s22, 6
s_cmp_eq_u32 s22, 3
s_cbranch_scc1 L_HOP
s_cmp_lt_u32 s22, 4
s_cbranch_scc1 L_COMPUTE""")
ids()
a("""v_lshrrev_b32 v3, 3, v1
v_mul_u32_u24 v3, 2560, v3
v_lshrrev_b32 v4, 4, v0
v_xor_b32 v4, v4, v1
v_xor_b32 v4, 4, v4
v_and_b32 v4, 7, v4
v_lshl_add_u32 v11, v4, 4, v3
s_and_b32 s64, s22, 3
s_lshr_b32 s44, s21, 1
s_or_b32 s45, s44, s64
s_cselect_b32 s52, -20480, 0
s_lshl_b32 s44, s44, 8
s_and_b32 s45, s21, 1
s_add_u32 s44, s44, s45
s_lshl_b32 s45, s64, 4
s_add_u32 s44, s44, s45
s_mul_i32 s47, s44, 1280
s_lshl_b32 s45, s23, 7
s_add_u32 s47, s47, s45
s_lshl_b32 s53, s64, 10
s_mov_b32 s30, 2621440
s_mov_b32 s31, 0x20000
s_mov_b32 s27, s31
s_setprio 2
v_mul_u32_u24 v3, 6554, v1
v_lshrrev_b32 v3, 16, v3
s_branch L_LD0
L_HOP:
s_branch L_COMPUTE
L_LD0:
v_mul_u32_u24 v4, 1120, v3
v_lshl_add_u32 v10, v1, 4, v4
s_and_b32 s46, s20, 7
s_mul_i32 s46, s46, 160
s_lshl_b32 s44, s23, 2
s_add_u32 s44, s44, s64
s_mul_i32 s44, s44, 61440
s_add_u32 s46, s46, s44
s_mul_i32 s48, s64, 7680
s_mov_b32 s49, 0
s_mov_b32 s50, 0
s_mov_b32 s26, 2457600
s_cmp_ge_u32 s20, 8
s_waitcnt lgkmcnt(0)
s_cselect_b32 s24, s12, s6
s_cselect_b32 s25, s13, s7
s_mov_b32 s28, s4
s_mov_b32 s29, s5""")
stamp0(a); stamp(a, 2)
a("L_LD_ISSUE:")
a(f"s_add_u32 m0, s53, {XOFF + 1024}"); a("s_add_u32 s51, s47, s52"); a(f"buffer_load_dwordx4 v11, s[28:31], s51 offen {XNT}lds")
for qq in range(1, 4):
    a(f"s_add_u32 m0, s53, {XOFF + 1024 + 4096*qq}"); a(f"s_add_u32 s51, s47, {(64*qq-16)*1280}"); a(f"buffer_load_dwordx4 v11, s[28:31], s51 offen {XNT}lds")
a("s_cmp_lg_u32 s64, 0"); a("s_cbranch_scc1 L_LD_W")
a(f"s_add_u32 m0, s53, {XOFF + 1024 + 4096*4}"); a(f"s_add_u32 s51, s47, {(64*4-16)*1280}"); a(f"buffer_load_dwordx4 v11, s[28:31], s51 offen {XNT}lds")
a("L_LD_W:")
a("s_mov_b32 exec_hi, 0x0fffffff")
for qq in range(8):
    r = 2 * qq; k = (r & 0x33) | ((r & 4) << 1) | ((r & 8) >> 1)
    a(f"s_add_u32 m0, s48, {960*qq}"); a(f"s_add_u32 s51, s46, {k*3840}"); a(f"buffer_load_dwordx4 v10, s[24:27], s51 offen {WNT}lds")
a(f"""s_mov_b32 exec_hi, -1
s_mov_b32 s63, {STAGE}
s_add_u32 s23, s23, 1
s_cmp_eq_u32 s23, 10
s_cselect_b32 s23, 0, s23
s_cselect_b32 s51, -9, 1
s_mul_i32 s44, s51, 245760
s_add_u32 s46, s46, s44
s_lshl_b32 s44, s51, 7
s_add_u32 s47, s47, s44
s_add_u32 s49, s49, 1
s_cmp_eq_u32 s49, 3
s_cselect_b32 s51, {(-2*STAGE) & 0xffffffff}, s63
s_cselect_b32 s49, 0, s49
s_add_u32 s48, s48, s51
s_add_u32 s53, s53, s51
s_add_u32 s50, s50, 1""")
def lstamp(base):
    if STAMP == 1: a("s_memtime s[68:69]"); a("s_waitcnt lgkmcnt(0)"); a(f"s_add_u32 m0, s50, {base}"); a(f"v_writelane_b32 v{SV}, s68, m0")
lstamp(9)
a(f"""s_cmp_eq_u32 s50, {SA}
s_cbranch_scc1 L_SIDE_A
L_SA_RET:
s_cmp_lt_u32 s50, 2
s_cbranch_scc1 L_LD_ISSUE
s_cmp_eq_u32 s50, {SB}
s_cbranch_scc1 L_TOK_A
s_cmp_eq_u32 s50, {SB+2}
s_cbranch_scc1 L_TOK_B
s_cmp_eq_u32 s50, 10
s_cbranch_scc1 L_WOF_A""")
a("L_LD_WAIT:")
a("s_waitcnt vmcnt(12)")
a("L_LD_BAR:")
lstamp(18)
if "nobar" in XP: a("s_cmp_lg_u32 s50, 2"); a("s_cbranch_scc1 L_LD_ISSUE")
a("s_barrier")
if STAMP == 1: a("s_memrealtime s[68:69]"); a("s_waitcnt lgkmcnt(0)"); a(f"s_add_u32 m0, s50, 38"); a(f"v_writelane_b32 v{SV}, s68, m0")
a("s_branch L_LD_ISSUE")
a("L_SIDE_A:")
a("""s_mov_b32 s56, 0
s_sub_u32 s44, s64, 2
s_lshl_b32 s57, s44, 8
s_add_u32 s57, s57, s2
s_cmp_ge_u32 s57, 320
s_cbranch_scc1 L_SA_RET
s_mov_b32 s56, 1
s_mov_b32 s39, 0x20000
s_and_b32 s45, s57, 7
s_lshr_b32 s44, s57, 3
s_mul_i32 s58, s44, 52
s_lshr_b32 s58, s58, 8
s_mul_i32 s59, s58, 5
s_sub_u32 s59, s44, s59
s_cmp_ge_u32 s58, 4
s_cselect_b32 s36, s14, s8
s_cselect_b32 s37, s15, s9
s_mov_b32 s38, 819200
s_and_b32 s58, s58, 3
s_mul_i32 s58, s58, 160
s_mul_i32 s60, s59, 40
s_cmp_eq_u32 s59, 4
s_cselect_b32 s60, 16, s60
s_cselect_b32 s54, 80, 20
s_cselect_b32 s55, 20, 4
s_add_u32 s58, s58, s60
s_mul_i32 s58, s58, 1280
s_mul_i32 s60, s45, 160
s_add_u32 s58, s58, s60
s_mul_i32 s54, s54, 1280
s_mul_i32 s55, s55, 1280""")
a(f"s_mul_i32 s62, s64, 5120"); a(f"s_add_u32 s62, s62, {SCR_LDS - 10240}")
a("s_mov_b32 exec_hi, 0xff")
for g in range(4):
    for jh in range(2):
        a(f"s_add_u32 m0, s62, {(16*(g>>1) + 8*jh + 4*(g&1))*160}")
        if jh == 0: a("s_add_u32 s51, s58, s54"); a(f"buffer_load_dwordx4 v10, s[36:39], s58 offen {SNT}lds")
        else: a("s_add_u32 s58, s58, s55"); a(f"buffer_load_dwordx4 v10, s[36:39], s51 offen {SNT}lds")
a("s_mov_b32 exec_hi, -1")
a(f"""s_mul_i32 s61, s45, 204800
s_mul_i32 s58, s44, 5120
s_add_u32 s61, s61, s58
s_add_u32 s61, s61, {WS_WOT}
""")
if SA < 2: a("s_branch L_LD_ISSUE")
else: a("s_waitcnt vmcnt(20)"); a("s_branch L_LD_BAR")
a("L_SIDE_B:")
if SB == SA + 1: a("s_waitcnt vmcnt(13)")
a("""v_lshrrev_b32 v16, 5, v1
v_lshlrev_b32 v16, 4, v16
v_bfe_u32 v17, v1, 4, 1
v_lshl_add_u32 v16, v17, 2, v16
v_bfe_u32 v17, v1, 2, 2
v_add_u32 v16, v16, v17
v_mul_u32_u24 v16, 160, v16
v_add_u32 v16, s62, v16
v_and_b32 v17, 3, v1
v_lshl_add_u32 v18, v17, 4, v16
v_lshl_add_u32 v19, v17, 3, v16""")
for T in range(5):
    for j in range(2):
        if T < 4: a(f"ds_read_b64_tr_b16 v[{20+4*T+2*j}:{21+4*T+2*j}], v18 offset:{j*1280 + 64*(T>>1) + 8*(T&1)}")
        else: a(f"ds_read_b64_tr_b16 v[{20+4*T+2*j}:{21+4*T+2*j}], v19 offset:{j*1280 + 128}")
a("s_waitcnt lgkmcnt(0)")
for T in range(4): a(f"buffer_store_dwordx4 v[{20+4*T}:{23+4*T}], v12, s[32:35], s61 offen offset:{1024*T} sc1")
a("s_add_u32 s61, s61, 4096")
a(f"buffer_store_dwordx4 v[36:39], v12, s[32:35], s61 offen sc1")
a("s_waitcnt vmcnt(18)"); a("s_branch L_LD_BAR")
a("L_TOK_A:")
srd_ws_dbg()
a("""v_lshlrev_b32 v12, 4, v1
v_mov_b32 v13, 0
s_mov_b64 exec, 1
buffer_load_dword v15, v13, s[40:43], 0 offen sc1
s_mov_b64 exec, -1
s_cmp_lg_u32 s56, 0
s_cbranch_scc1 L_SIDE_B
s_waitcnt vmcnt(13)
s_branch L_LD_BAR""")
a("L_TOK_B:")
srd_ws_dbg()
a(f"""s_mov_b32 s60, 0
v_mov_b32 v13, 0
L_TOK_CHK:
v_readlane_b32 s75, v15, 0
s_add_u32 s60, s60, 1
s_cmp_lg_u32 s75, 0
s_cbranch_scc1 L_TOK_OK
s_cmp_ge_u32 s60, {SPIN_MAX}
s_cbranch_scc1 L_TOK_OK
s_sleep 4
s_mov_b64 exec, 1
buffer_load_dword v15, v13, s[40:43], 0 offen sc1
s_mov_b64 exec, -1
s_waitcnt vmcnt(0)
s_branch L_TOK_CHK
L_TOK_OK:
v_mov_b32 v14, {TOK_LDS}
v_mov_b32 v15, s75
ds_write_b32 v14, v15
s_cmp_eq_u32 s56, 0
s_waitcnt lgkmcnt(0)
s_cbranch_scc1 L_LD_WAIT
s_and_b32 s45, s57, 7
s_lshl_b32 s45, s45, 13
s_lshr_b32 s44, s57, 3
s_lshl_b32 s44, s44, 7
s_add_u32 s45, s45, s44
s_add_u32 s45, s45, {WS_FW}
v_lshlrev_b32 v13, 2, v1
s_mov_b32 exec_hi, 0
buffer_store_dword v15, v13, s[32:35], s45 offen sc1
s_mov_b32 exec_hi, -1
s_waitcnt vmcnt(13)
s_branch L_LD_BAR""")
a("L_WOF_A:")
srd_ws_dbg()
consumer_ids()
a(f"""s_lshl_b32 s59, s84, 13
s_add_u32 s59, s59, {WS_FW}
v_lshlrev_b32 v13, 7, v1
v_lshlrev_b32 v12, 4, v1
s_mov_b32 exec_hi, 0xff
buffer_load_dword v14, v13, s[32:35], s59 offen sc1
s_mov_b32 s60, 0
s_waitcnt vmcnt(13)""")
lstamp(18)
if "nobar" not in XP: a("s_barrier")
a(f"""L_WO_POLL:
s_waitcnt vmcnt(0)
v_cmp_ne_u32 vcc, s75, v14
s_cbranch_vccz L_WO_OK
s_add_u32 s60, s60, 1
s_cmp_ge_u32 s60, {SPIN_MAX}
s_cbranch_scc1 L_WO_OK
s_sleep 4
buffer_load_dword v14, v13, s[32:35], s59 offen sc1
s_branch L_WO_POLL
L_WO_OK:
s_mov_b32 exec_hi, -1
s_setprio 0""")
stamp(a, 29)
CL = {"S1": (0, 24, 49152, 24576), "S2": (24, 14, 98304, 14336), "S0": (38, 24, 0, 24576), "TOP": (62, 8, 147456, 8192),
      "R1": (70, 20, 49152, 24576), "X": (90, 10, XCH, 10240)}
a(f"""s_mul_i32 s58, s84, 204800
s_add_u32 s58, s58, {WS_WOT}
s_lshr_b32 s44, s64, 1
s_and_b32 s45, s64, 1
s_lshl_b32 s45, s45, 10
s_mul_i32 s59, s44, 102400
s_add_u32 s59, s59, s58
s_add_u32 s59, s59, s45""")
rotbit("s54"); a("s_mul_i32 s54, s54, 51200"); a("s_sub_u32 s55, s59, s54"); a("s_add_u32 s59, s59, s54")
def dma_class(nm, lo=0, hi=None):
    l0, n, base, delta = CL[nm]
    a(f"s_mul_i32 s53, s44, {delta}"); a("s_add_u32 s53, s53, s45")
    for j in range(lo, n if hi is None else hi, 2):
        a(f"s_add_u32 m0, s53, {base + j*1024}"); a(f"s_add_u32 s51, {'s59' if l0 + j < 50 else 's55'}, {(l0 + j)*1024}")
        a(f"buffer_load_dwordx4 v12, s[32:35], s51 offen sc1 lds")
dma_class("S1", 0, NS1)
if "nobar" not in XP: a("s_barrier")
dma_class("S1", NS1); dma_class("S2")
a("s_waitcnt vmcnt(7)")
stamp(a, 30)
a("s_barrier")
dma_class("S0"); dma_class("TOP")
TOK = 253
a(f"v_mov_b32 v{TOK}, s75")
a("s_branch L_P2_PRE")
a("L_COMPUTE:")
ev(a, "start")
a(f"s_setprio {OPT.get('cprio', 3)}")
ids()
a("s_waitcnt lgkmcnt(0)")
stamp0(a); stamp(a, 2)
srd_ws_dbg()
a("""s_mov_b32 s39, 0x20000
s_mov_b32 s56, 0
s_cmp_eq_u32 s22, 3
s_cbranch_scc1 L_C_GW
s_cmp_eq_u32 s22, 2
s_cbranch_scc1 L_C_TOK""")
if COV:
    a("""s_bfe_u32 s44, s2, 0x20003
    s_lshr_b32 s45, s2, 5
    s_cmp_eq_u32 s22, 1
    s_cbranch_scc1 L_C_CW
    s_mov_b32 s36, s4
    s_mov_b32 s37, s5
    s_mov_b32 s38, 2621440
    s_lshr_b32 s57, s44, 1
    s_mul_i32 s57, s57, 5
    s_add_u32 s57, s57, s45
    s_add_u32 s57, s57, 2
    s_sub_u32 s58, s57, 10
    s_cselect_b32 s57, s57, s58
    s_lshl_b32 s57, s57, 7
    s_lshr_b32 s58, s21, 1
    s_lshl_b32 s58, s58, 8
    s_and_b32 s59, s21, 1
    s_add_u32 s58, s58, s59
    s_and_b32 s59, s44, 1
    s_lshl_b32 s59, s59, 7
    s_add_u32 s59, s59, s58
    s_mul_i32 s59, s59, 1280
    s_add_u32 s57, s57, s59
    v_mul_u32_u24 v252, 2560, v1
    s_mov_b32 s56, 1
    s_branch L_C_SETUP
    L_C_CW:
    s_cmp_ge_u32 s20, 8
    s_cselect_b32 s36, s12, s6
    s_cselect_b32 s37, s13, s7
    s_mov_b32 s38, 2457600
    s_lshr_b32 s57, s2, 3
    s_cmp_ge_u32 s57, 12
    s_cbranch_scc1 L_C_SETUP
    s_mul_i32 s58, s57, 81920
    s_cmp_ge_u32 s57, 6
    s_cselect_b32 s59, 0, 512
    s_add_u32 s57, s58, s59
    s_add_u32 s57, s57, 1474560
    s_and_b32 s58, s2, 1
    s_mul_i32 s58, s58, 640
    s_add_u32 s57, s57, s58
    v_mul_u32_u24 v252, 1280, v1
    s_mov_b32 s56, 1""")
a("s_branch L_C_SETUP")
a("L_C_GW:")
a(f"""s_mov_b32 s36, s16
s_mov_b32 s37, s17
s_mov_b32 s38, 1280
v_lshlrev_b32 v140, 4, v1
s_mov_b32 m0, {GW_LDS}
v_mov_b64 v[144:145], 0
buffer_load_dwordx4 v140, s[36:39], 0 offen lds
buffer_load_dwordx4 v140, s[36:39], 0 offen offset:1024 lds
v_mov_b64 v[146:147], 0
ds_write_b128 v140, v[144:147] offset:{XOFF}
v_add_u32 v140, {STAGE}, v140
ds_write_b128 v140, v[144:147] offset:{XOFF}
v_add_u32 v140, {STAGE}, v140
ds_write_b128 v140, v[144:147] offset:{XOFF}
s_branch L_C_SETUP""")
a("L_C_TOK:")
a("""s_cmp_lg_u32 s2, 0
s_cbranch_scc1 L_C_CPF
s_memrealtime s[44:45]
v_mov_b32 v147, 0
s_waitcnt lgkmcnt(0)
s_or_b32 s44, s44, 1
v_mov_b32 v146, s44
s_mov_b64 exec, 1
buffer_atomic_cmpswap v[146:147], v147, s[40:43], 0 offen sc1
s_mov_b64 exec, -1
L_C_CPF:
s_getpc_b64 s[70:71]
L_PC:
s_sub_u32 s70, s70, L_PC - L_SIDE_B
s_subb_u32 s71, s71, 0
v_lshlrev_b32 v140, 7, v1
global_load_dword v241, v140, s[70:71]
v_add_u32 v140, 8192, v140
v_cmp_gt_u32 vcc, CODE_END - L_SIDE_B - 4, v140
s_and_saveexec_b64 s[72:73], vcc
s_cbranch_execz L_NOPF
global_load_dword v241, v140, s[70:71]
L_NOPF:
s_mov_b64 exec, s[72:73]""")
a("L_C_SETUP:")
if COV == 2:
    a("s_cmp_eq_u32 s56, 0"); a("s_cbranch_scc1 L_C_S2")
    a("buffer_load_dword v241, v252, s[36:39], s57 offen")
    a("L_C_S2:")
stamp(a, 3)
VWA, VWB, VX0, VX1, VGX0, VGX1, VGW = 2, 3, 4, 5, 6, 7, 240
ACCQ, ACCK, ACCV, ACCH = 8, 48, 88, 128
RING, XB, GX = 140, 180, 204
MC, MP, MP0, AM, ONES = 220, 224, 228, 232, 236
def acc(seg, t, T): return (ACCQ, ACCK, ACCV)[seg] + t * 20 + T * 4
a("s_setprio 0")
a(f"""v_lshrrev_b32 v140, 4, v1
v_and_b32 v141, 15, v1
v_lshrrev_b32 v142, 5, v1
v_lshlrev_b32 v142, 4, v142
v_and_b32 v143, 1, v140
v_lshl_add_u32 v142, v143, 2, v142
v_lshrrev_b32 v143, 2, v141
v_add_u32 v142, v142, v143
v_mul_u32_u24 v145, 480, v142
v_and_b32 v143, 3, v141
v_lshl_add_u32 v{VWA}, v143, 3, v145
v_mul_u32_u24 v144, 40, v143
v_add3_u32 v{VWB}, v145, v144, 32
v_lshrrev_b32 v144, 1, v141
v_xor_b32 v144, v144, v140
v_lshlrev_b32 v144, 4, v144
v_lshl_add_u32 v{VX0}, v141, 7, v144
v_xor_b32 v{VX1}, 64, v{VX0}
s_and_b32 s44, s20, 7
s_lshl_b32 s44, s44, 11
v_add_u32 v{VGX0}, s44, v{VX0}
v_add_u32 v{VGX1}, s44, v{VX1}
v_lshlrev_b32 v{VGW}, 4, v140
s_lshl_b32 s44, s23, 7
s_add_u32 s44, s44, {GW_LDS}
v_add_u32 v{VGW}, s44, v{VGW}""")
a(f"s_mov_b32 s44, {NEG}")
a(f"v_mov_b32 v146, s44")
a("s_lshr_b32 s45, s21, 1"); a("s_or_b32 s45, s45, s22")
a("v_lshlrev_b32 v145, 2, v140"); a("v_sub_u32 v145, v141, v145")
for r in range(4): a(f"v_subrev_u32 v{150+r}, {r}, v145")
for r in range(4):
    a(f"v_cmp_gt_u32 vcc, 8, v{150+r}"); a(f"v_cmp_gt_i32 s[72:73], -8, v{150+r}")
    a(f"v_mov_b32 v{ONES+r}, 0x3f803f80")
    a(f"v_cndmask_b32 v{MC+r}, v146, 0, vcc"); a(f"v_cndmask_b32 v{MP+r}, v146, 0, s[72:73]")
a("s_cmp_eq_u32 s45, 0"); a("s_cselect_b64 vcc, -1, 0")
for r in range(4): a(f"v_cndmask_b32 v{MP0+r}, v{MP+r}, v146, vcc")
a("s_mov_b32 s44, 0xffff0000")
for h in range(2):
    a(f"v_ashrrev_i32 v154, 31, v{150+2*h}"); a(f"v_ashrrev_i32 v155, 31, v{151+2*h}")
    a(f"v_bfi_b32 v{AM+h}, s44, v155, v154"); a(f"v_not_b32 v{AM+2+h}, v{AM+h}")
a(f"""s_mov_b64 s[48:49], 0xffff
s_mov_b32 s50, 0xffff0000
s_mov_b32 s51, 0
s_mov_b32 s52, 0
s_mov_b32 s53, 0xffff
s_mov_b32 s54, 0
s_mov_b32 s55, 0xffff0000
s_mov_b32 s63, {STAGE}
s_mov_b32 s74, 128""")
for r in range(ACCQ, ACCH + 12, 2): a(f"v_mov_b64 v[{r}:{r+1}], 0")
a("s_waitcnt vmcnt(0) lgkmcnt(0)")
stamp(a, 4)
if COV in (1, 3):
    a("s_cmp_eq_u32 s56, 0"); a("s_cbranch_scc1 L_C_GO")
    if COV == 3: a("s_setprio 3")
    a("buffer_load_dword v241, v252, s[36:39], s57 offen")
a("s_setprio 0")
a("L_C_GO:")
a("""s_mov_b32 s44, 0
s_mov_b32 s45, 0""")
for w in range(1, 4):
    a(f"s_cmp_eq_u32 s22, {w}"); a(f"s_cbranch_scc1 L_W{w}")
HALO = [[(1,0),(1,1),(1,2)], [(1,3),(1,4),(2,0)], [(2,1),(2,2)], [(2,3),(2,4)]]
D = 5
def istep(f): return f - 5 if f <= 14 else (f - 6 if f <= 21 else f - 7)
for w in range(4):
    gate = (w == 3)
    q = []
    def rdW(f):
        ks, seg, T = f // 15, (f % 15) // 5, f % 5
        d = RING + (f % 10) * 4
        if "nods" in XP: return [("s_nop 0", ("W", f))] * 2
        return [(f"ds_read_b64_tr_b16 v[{d+2*j}:{d+2*j+1}], v{VWA if T < 4 else VWB} offset:{seg*160 + ks*15360 + j*3840 + (40*T if T < 4 else 0)}", ("W", f)) for j in range(2)]
    def rdX(ks):
        o = []
        for n, tile in enumerate((1 + 2 * w, 2 + 2 * w, 0)):
            d = XB + (ks * 3 + n) * 4
            o.append((f"ds_read_b128 v[{d}:{d+3}], v{(VX0, VX1)[ks]} offset:{XOFF + tile*2048}", ("X", ks)))
        if gate:
            d = GX + ks * 8
            o.append((f"ds_read_b128 v[{d}:{d+3}], v{(VGX0, VGX1)[ks]} offset:{XOFF + 2048}", ("X", ks)))
            o.append((f"ds_read_b128 v[{d+4}:{d+7}], v{VGW} offset:{ks*64}", ("X", ks)))
        return o
    def wait(b, tags):
        last = max(i for i, t in enumerate(q) if t in tags)
        b(f"s_waitcnt lgkmcnt({min(len(q) - 1 - last, 15)})")
    def mm(f):
        ks, seg, T = f // 15, (f % 15) // 5, f % 5
        wf = vr(RING + (f % 10) * 4); o = []
        def one(dst, xf):
            o.append(f"{MF} {vr(dst)}, {wf}, {xf}, {vr(dst)}" if seg < 2 else f"{MF} {vr(dst)}, {xf}, {wf}, {vr(dst)}")
        one(acc(seg, 0, T), vr(XB + (ks * 3) * 4)); one(acc(seg, 1, T), vr(XB + (ks * 3 + 1) * 4))
        if (seg, T) in HALO[w]: one(ACCH + 4 * HALO[w].index((seg, T)), vr(XB + (ks * 3 + 2) * 4))
        if gate and seg == 0 and T == 2:
            d = GX + ks * 8
            o.append(f"{MF} {vr(ACCH+8)}, {vr(d+4)}, {vr(d)}, {vr(ACCH+8)}")
        return o
    def weave(b, ms, fs, lastless=True):
        n = len(ms); k = len(fs)
        cnt = [0] * n
        for i in range(k):
            load = [cnt[j] + (1 if (lastless and j == n - 1) else 0) for j in range(n)]
            cnt[load.index(min(load))] += 1
        it = iter(fs)
        for m_, c_ in zip(ms, cnt):
            b(m_)
            for _ in range(c_):
                t = next(it)
                b(t[0])
                if t[1] is not None: q.append(t[1])
    FA = {s: [] for s in range(25, 30)}
    x0 = rdX(0)
    FA[25] = x0[:2] + rdW(0); FA[26] = x0[2:4] + rdW(1); FA[27] = x0[4:] + rdW(2); FA[28] = rdW(3); FA[29] = rdW(4)
    FB = {s: [] for s in range(25)}
    for f in range(D, 30): FB[istep(f)] += rdW(f)
    x1 = rdX(1)
    for i, t in enumerate(x1): FB[2 + i].append(t)
    sal = ["s_add_u32 s45, s45, 1", "s_cmp_eq_u32 s45, 3", f"s_cselect_b32 s46, {(-2*STAGE) & 0xffffffff}, s63", "s_cselect_b32 s45, 0, s45"]
    for i, t in enumerate(sal): FB[10 + i].append((t, None))
    if gate:
        sal = ["s_add_u32 s23, s23, 1", "s_cmp_eq_u32 s23, 10", "s_cselect_b32 s23, 0, s23", "s_cselect_b32 s47, -1152, s74"]
        for i, t in enumerate(sal): FB[16 + i].append((t, None))
        FB[20].append((f"v_add_u32 v{VGW}, s47, v{VGW}", None))
        FB[21].append((f"v_add_u32 v{VGX0}, s46, v{VGX0}", None)); FB[22].append((f"v_add_u32 v{VGX1}, s46, v{VGX1}", None))
    FB[20].append((f"v_add_u32 v{VX0}, s46, v{VX0}", None)) if not gate else FB[14].append((f"v_add_u32 v{VX0}, s46, v{VX0}", None))
    FB[23] += [(f"v_add_u32 v{VX1}, s46, v{VX1}", None), (f"v_add_u32 v{VWA}, s46, v{VWA}", None), (f"v_add_u32 v{VWB}, s46, v{VWB}", None)]
    FB[24] += [("s_add_u32 s44, s44, 1", None), ("s_cmp_eq_u32 s44, 10", None)]
    pre = Asm(); pa = Asm(); pb = Asm(); tail = Asm()
    stamp(pre, 5)
    pre("s_barrier")
    if STAMP: stamp2(pre, 6, 50)
    ev(pre, "b0")
    for s in range(25, 30):
        for t in FA[s]: pre(t[0])
    q.clear()
    pa("s_waitcnt lgkmcnt(0)"); pa("s_nop 0" if "nobar" in XP else "s_barrier")
    for s in range(25, 30): weave(pa, mm(s), FA[s], lastless=(s == 29))
    pa(f"s_branch L_LB{w}")
    for s in range(25):
        tags = [("W", s)] + ([("X", 0)] if s == 0 else []) + ([("X", 1)] if s == 15 else [])
        wait(pb, tags); weave(pb, mm(s), FB[s])
    pb(f"s_cbranch_scc1 L_T{w}")
    tail(f"v_mov_b32 v{TOK}, {TOK_LDS}")
    tail("s_waitcnt lgkmcnt(0)")
    tail(f"ds_read_b32 v{TOK}, v{TOK}")
    for s in range(25, 30):
        for m_ in mm(s): tail(m_)
    tail(f"v_lshlrev_b32 v{VWA}, 3, v1")
    tail(f"v_add_u32 v{VX1}, {XCH}, v{VWA}")
    if gate:
        z = ACCH + 8
        tail(f"""v_cvt_pk_bf16_f32 v248, v{z}, v{z}
        v_and_b32 v248, 0xffff0000, v248
        v_mul_f32 v248, {LOG2E ^ 0x80000000}, v248
        v_exp_f32 v248, v248
        s_lshl_b32 s46, s21, 3
        v_add_f32 v248, 1.0, v248
        v_rcp_f32 v248, v248
        s_add_u32 s46, s46, s20
        v_cvt_pk_bf16_f32 v248, v248, v248
        v_and_b32 v248, 0xffff0000, v248
        s_lshl_b32 s46, s46, 7
        s_add_u32 s46, s46, {WS_G}
        s_waitcnt lgkmcnt(0)
        v_sub_u32 v249, v{TOK}, v248""")
    for n, (seg, T) in enumerate(HALO[w]):
        tail(f"v_cvt_pk_bf16_f32 v{242+2*n}, v{ACCH+4*n}, v{ACCH+4*n+1}")
        tail(f"v_cvt_pk_bf16_f32 v{243+2*n}, v{ACCH+4*n+2}, v{ACCH+4*n+3}")
        tail(f"ds_write_b64 v{VX1}, v[{242+2*n}:{243+2*n}] offset:{((seg-1)*5+T)*512}")
    if gate:
        tail(f"""s_cmp_ge_u32 s20, 8
        s_cbranch_scc1 L_ATT
        s_mov_b64 exec, 0xffff
        buffer_store_dwordx2 v[248:249], v{VWA}, s[32:35], s46 offen sc1
        s_mov_b64 exec, -1""")
    else: tail("s_branch L_ATT")
    if w > 0: a(f"L_W{w}:")
    a.extend(pre); a(".p2align 3"); a(f"L_LB{w}:"); a.extend(pb); a.extend(pa); a(f"L_T{w}:"); a.extend(tail)
    traces.append(pre.L + pb.L + pa.L + pb.L + tail.L[:14])
a("L_ATT:")
if STAMP: stamp2(a, 30, 51)
ev(a, "gemm")
KOP = {1: 140, 0: 156, -1: 204}
VOP = 172; QOP = {1: 68, 0: 108}
def kop(t, h): return KOP[t] + 4 * h
def vop(T, t): return VOP + 6 * T + 2 * (t + 1)
def qop(t, h): return QOP[t] + 4 * h
g = Asm()
def cvt(d, s): g(f"v_cvt_pk_bf16_f32 v{d}, v{s}, v{s+1}"); g(f"v_cvt_pk_bf16_f32 v{d+1}, v{s+2}, v{s+3}")
def flush(name):
    global g
    o, t = schedule(g.L); print(f"; sched {name}: {len(o)} instrs, est {t} cycles", file=sys.stderr)
    for n, l in enumerate(o):
        if OPT.get("astamp") and n and n % 45 == 0: a(f"s_memtime s[{86 + 2*(n//45)}:{87 + 2*(n//45)}]") if n // 45 < 8 else None
        a(l)
    if OPT.get("astamp"):
        a("s_waitcnt lgkmcnt(0)")
        for k in range(1, 8): a(f"v_writelane_b32 v{SV}, s{86+2*k}, {9+k}")
    g = Asm()
a("s_setprio 2")
a(f"s_mul_i32 s46, s22, 5120"); a(f"v_add_u32 v{VWB}, s46, v{VX1}")
a("s_add_u32 s46, s46, 5120"); a("s_cmp_eq_u32 s22, 3"); a(f"s_cselect_b32 s46, {SCR_LDS - XCH}, s46"); a(f"v_add_u32 v{VX1}, s46, v{VX1}")
for h in range(4):
    cvt(kop(1, h), acc(1, 1, h)); g(f"ds_write_b64 v{VX1}, v[{kop(1,h)}:{kop(1,h)+1}] offset:{h*512}")
cvt(kop(1, 0) + 2, acc(1, 1, 4)); g(f"ds_write_b64 v{VX1}, v[{kop(1,0)+2}:{kop(1,0)+3}] offset:{4*512}")
for T in range(5):
    cvt(vop(T, 1), acc(2, 1, T)); g(f"ds_write_b64 v{VX1}, v[{vop(T,1)}:{vop(T,1)+1}] offset:{(5+T)*512}")
for h in range(1, 4): cvt(kop(1, h) + 2, acc(1, 1, 4))
cvt(250, acc(0, 1, 4))
for h in range(4): cvt(qop(1, h), acc(0, 1, h))
for h in range(4):
    for j in range(2): g(f"v_cndmask_b32 v{qop(1,h)+2+j}, 0, v{250+j}, s[{48+2*h}:{49+2*h}]")
for l in g.L: a(l)
g = Asm()
a(f"s_mov_b32 s46, {CEXP}"); a(f"s_mov_b32 s47, {CEXP}")
a("s_lshl_b32 s56, s21, 3"); a("s_lshl_b32 s57, s22, 1"); a("s_add_u32 s56, s56, s57")
a(f"s_mul_i32 s56, s56, {OTT}"); a(f"s_mul_i32 s57, s20, {OBLK}"); a("s_add_u32 s56, s56, s57")
a(f"s_add_u32 s57, s56, {OTT}")
stamp(a, 31)
a("s_waitcnt lgkmcnt(0)"); a("s_barrier")
stamp(a, 32)
for h in range(4):
    g(f"ds_read_b64 v[{kop(-1,h)}:{kop(-1,h)+1}], v{VWB} offset:{h*512}")
    g(f"ds_read_b64 v[{kop(-1,h)+2}:{kop(-1,h)+3}], v{VWB} offset:{4*512}")
for T in range(5): g(f"ds_read_b64 v[{vop(T,-1)}:{vop(T,-1)+1}], v{VWB} offset:{(5+T)*512}")
g("@wait")
g(f"v_lshlrev_b32 v{VX0}, 4, v1"); g(f"v_mul_u32_u24 v{VWA}, 12, v1")
for h in range(4): cvt(kop(0, h), acc(1, 0, h)); cvt(kop(0, h) + 2, acc(1, 0, 4))
for T in range(5): cvt(vop(T, 0), acc(2, 0, T))
cvt(246, acc(0, 0, 4))
for h in range(4): cvt(qop(0, h), acc(0, 0, h))
for h in range(4):
    for j in range(2): g(f"v_cndmask_b32 v{qop(0,h)+2+j}, 0, v{246+j}, s[{48+2*h}:{49+2*h}]")
SR = {1: [28, 32, 36, 40, 44, 48, 52, 56], 0: [8, 12, 16, 20, 24, 88, 92, 96]}
def dc(t, h): return SR[t][h]
def dp(t, h): return SR[t][4 + h]
MX = {1: 84, 0: 124}; TMP = {1: 128, 0: 132}
OREG = {1: [68, 72, 76, 80, 140, 144, 148, 152, 60, 64, 100, 104], 0: [108, 112, 116, 120, 156, 160, 164, 168, 204, 208, 212, 216]}
def oo(t, h, k): return OREG[t][k * 4 + h]
for t in (1, 0):
    for h in range(4):
        g(f"{MF} {vr(dc(t,h))}, {vr(kop(t,h))}, {vr(qop(t,h))}, {vr(MC)}")
        g(f"{MF} {vr(dp(t,h))}, {vr(kop(t-1,h))}, {vr(qop(t,h))}, {vr(MP if t else MP0)}")
for t in (1, 0):
    for h in range(4):
        for r in range(4): g(f"v_max_f32 v{dc(t,h)+r}, v{dc(t,h)+r}, v{dp(t,h)+r}")
        g(f"v_max3_f32 v{MX[t]+h}, v{dc(t,h)}, v{dc(t,h)+1}, v{dc(t,h)+2}")
        g(f"v_max_f32 v{MX[t]+h}, v{MX[t]+h}, v{dc(t,h)+3}")
    m = MX[t]
    g(f"""v_permlane32_swap_b32 v{m}, v{m+1}
    v_permlane32_swap_b32 v{m+2}, v{m+3}
    v_max_f32 v{m}, v{m}, v{m+1}
    v_max_f32 v{m+2}, v{m+2}, v{m+3}
    v_permlane16_swap_b32 v{m}, v{m+2}
    v_max_f32 v{m}, v{m}, v{m+2}
    v_mul_f32 v{m+2}, s46, v{m}
    v_mul_f32 v{m}, s46, v{m}
    v_permlane16_swap_b32 v{m}, v{m+2}
    v_mov_b32 v{m+1}, v{m}
    v_mov_b32 v{m+3}, v{m+2}
    v_permlane32_swap_b32 v{m}, v{m+1}
    v_permlane32_swap_b32 v{m+2}, v{m+3}""")
    for h in range(4):
        d = dc(t, h); p = dp(t, h)
        if PK:
            mp_ = m + (h & 2); e = h & 1
            for r in (0, 2): g(f"v_pk_fma_f32 v[{d+r}:{d+r+1}], v[{d+r}:{d+r+1}], s[46:47], v[{mp_}:{mp_+1}] op_sel:[0,0,{e}] op_sel_hi:[1,1,{e}] neg_lo:[0,0,1] neg_hi:[0,0,1]")
        else:
            for r in range(4): g(f"v_fma_f32 v{d+r}, v{d+r}, s46, -v{m+h}")
        for r in range(4): g(f"v_exp_f32 v{d+r}, v{d+r}")
        g(f"v_cvt_pk_bf16_f32 v{d}, v{d}, v{d+1}"); g(f"v_cvt_pk_bf16_f32 v{d+2}, v{d+2}, v{d+3}")
        g(f"v_and_b32 v{p}, v{AM}, v{d}"); g(f"v_and_b32 v{p+1}, v{AM+1}, v{d+2}")
        g(f"v_and_b32 v{p+2}, v{AM+2}, v{d}"); g(f"v_and_b32 v{p+3}, v{AM+3}, v{d+2}")
    for h in range(4):
        g(f"{MF} {vr(oo(t,h,2))}, {vr(ONES)}, {vr(dp(t,h))}, 0")
        g(f"{MF} {vr(oo(t,h,0))}, {vr(vop(h,t-1))}, {vr(dp(t,h))}, 0")
        g(f"{MF} {vr(oo(t,h,1))}, {vr(vop(4,t-1))}, {vr(dp(t,h))}, 0")
    for h in range(4):
        o0 = oo(t, h, 0); rc = oo(t, h, 2)
        g(f"v_rcp_f32 v{rc}, v{rc}")
        if PK:
            for r in (0, 2): g(f"v_pk_mul_f32 v[{o0+r}:{o0+r+1}], v[{o0+r}:{o0+r+1}], v[{rc}:{rc+1}] op_sel_hi:[1,0]")
        else:
            for r in range(4): g(f"v_mul_f32 v{o0+r}, v{o0+r}, v{rc}")
        for r in range(4): g(f"v_mul_f32_dpp v{TMP[t]+r}, v{oo(t,h,1)+r}, v{rc} quad_perm:[0,1,2,3] row_mask:{hex(1<<h)} bank_mask:0xf")
        cvt(dc(t, h >> 1) + 2 * (h & 1), o0)
    cvt(dc(t, 2), TMP[t])
    so = "s57" if t else "s56"
    c = dc(t, 2)
    for p in range(2):
        g(f"buffer_store_dwordx4 {vr(dc(t, p))}, v{VX0}, s[32:35], {so} offen offset:{1024*p} sc1")
    d = dc(t, 0); e = dc(t, 1)
    g(f"v_add3_u32 v{c+2}, v{d}, v{d+1}, v{d+2}"); g(f"v_add3_u32 v{c+3}, v{e}, v{e+1}, v{e+2}")
    g(f"v_add3_u32 v{c+2}, v{c+2}, v{d+3}, v{e+3}"); g(f"v_add3_u32 v{c+2}, v{c+2}, v{c+3}, v{TOK}")
    g(f"v_add3_u32 v{c+2}, v{c+2}, v{c}, v{c+1}")
    g(f"buffer_store_dwordx3 {vr(c,3)}, v{VWA}, s[32:35], {so} offen offset:2048 sc1")
flush("attention")
if STAMP: stamp2(a, 35, 52)
ev(a, "att")
WR = 48
OR_ = 128
AC = 224
CK = 244
BA = {"S1": 248, "S2": 249, "S0": 250, "TOP": 251, "R1": 248, "X": 252}
def lring(l):
    k = (l - 20) % 15
    return 8 + 4 * k
a("L_P2_PRE:")
a("v_lshlrev_b32 v2, 4, v1")
a("s_lshr_b32 s64, s22, 2")
a(f"s_mul_i32 s60, s64, {CL['S1'][3]}"); a(f"s_add_u32 s60, s60, {CL['S1'][2]}"); a(f"v_add_u32 v{BA['S1']}, s60, v2")
for l in range(20): a(f"ds_read_b128 {vr(WR+4*l)}, v{BA['S1']} offset:{l*1024}")
for nm in ("S2", "S0", "TOP", "X"):
    a(f"s_mul_i32 s60, s64, {CL[nm][3]}"); a(f"s_add_u32 s60, s60, {CL[nm][2]}"); a(f"v_add_u32 v{BA[nm]}, s60, v2")
consumer_ids()
rotbit("s86")
a(f"""s_and_b32 s65, s22, 3
s_lshl_b32 s67, s85, 2
s_add_u32 s67, s67, s65
s_mul_i32 s80, s67, {OTT}
s_mul_i32 s60, s64, {8*OBLK}
s_add_u32 s80, s80, s60
v_mul_u32_u24 v3, 12, v1
v_add_u32 v3, 2048, v3
v_and_b32 v4, 15, v1
v_lshlrev_b32 v5, 3, v4
s_lshl_b32 s62, s67, 7
s_add_u32 s62, s62, {WS_G}
v_sub_u32 v254, 0, v{TOK}
s_add_u32 s82, s80, {4*OBLK}
s_mul_i32 s86, s86, {4*OBLK}
s_add_u32 s80, s80, s86
s_sub_u32 s82, s82, s86
s_add_u32 s81, s80, {2*OBLK}
s_add_u32 s83, s82, {2*OBLK}
s_mov_b32 s28, s18
s_mov_b32 s29, s19
s_mov_b32 s30, 2621440
s_mov_b32 s31, 0x20000
s_mov_b32 s61, 0""")
stamp(a, 36)
a("s_waitcnt lgkmcnt(0)")
a("s_barrier")
stamp(a, 37)
a("s_cmp_lt_u32 s22, 4"); a("s_cbranch_scc1 L_P2_C")
dma_class("R1"); dma_class("X")
if OWAIT >= 2: a("s_waitcnt vmcnt(0)"); stamp(a, 38)
a("s_branch L_P2_GO")
a("L_P2_C:")
if OWAIT: a("s_waitcnt vmcnt(0)"); stamp(a, 38)
a("s_setprio 0")
a("L_P2_GO:")
if OWAIT >= 2: a("s_barrier")
if OWAIT >= 3: a(f"s_sleep {OWAIT}")
if STAMP: stamp2(a, 39, 53)
ev(a, "bp")
def og(m, e, k): return OR_ + m * 24 + e * 12 + k * 4
def ld_pair(m):
    o = []
    for e in range(2):
        for k in range(2): o.append(f"buffer_load_dwordx4 {vr(og(m, e, k))}, v2, s[32:35], s{80+m} offen offset:{e*OBLK + k*1024} sc1")
        o.append(f"buffer_load_dwordx3 {vr(og(m, e, 2), 3)}, v3, s[32:35], s{80+m} offen offset:{e*OBLK} sc1")
    return o
def chk_pair(m):
    o = []
    for e in range(2):
        d = og(m, e, 0); f = og(m, e, 1); c = og(m, e, 2); x = CK + 2 * e
        o.append([f"v_add3_u32 v{x}, v{d}, v{d+1}, v{d+2}", f"v_add3_u32 v{x+1}, v{f}, v{f+1}, v{f+2}", f"v_add3_u32 v{x}, v{x}, v{d+3}, v{f+3}",
                  f"v_add3_u32 v{x}, v{x}, v{x+1}, v{TOK}", f"v_add3_u32 v{x}, v{x}, v{c}, v{c+1}", f"v_xor_b32 v{x}, v{x}, v{c+2}"])
    o = [o[j][i] for i in range(6) for j in range(2)]
    o += [f"v_or_b32 v{CK}, v{CK}, v{CK+2}", f"v_cmp_ne_u32 vcc, 0, v{CK}"]
    return o
def ofrag(i):
    m, ss = i // 5, i % 5
    return og(m, ss >> 1, ss & 1) if ss < 4 else og(m, 0, 2)
def ld_w(i):
    if i < 4 or i >= 20: return []
    o = []
    for T in range(5):
        l = i * 5 + T
        nm = [k for k, v in CL.items() if v[0] <= l < v[0] + v[1]][0]
        o.append(f"ds_read_b128 {vr(lring(l))}, v{BA[nm]} offset:{(l - CL[nm][0]) * 1024}")
    return o
GLD = "buffer_load_dwordx2 v[6:7], v5, s[32:35], s62 offen sc1"
if PD == 2:
    for x in ld_pair(0) + ld_pair(1): a(x)
    a("s_waitcnt vmcnt(6)")
else:
    for x in ld_pair(0): a(x)
    a("s_waitcnt vmcnt(0)")
    for x in ld_pair(1): a(x)
stamp(a, 33)
for x in chk_pair(0): a(x)
PRE = ["s_lshr_b32 s46, s67, 4", "s_lshl_b32 s46, s46, 8", "s_bfe_u32 s47, s67, 0x10003", "s_add_u32 s46, s46, s47", "s_and_b32 s47, s67, 7",
       "s_lshl_b32 s47, s47, 5", "s_add_u32 s46, s46, s47", "s_mul_i32 s46, s46, 1280", "s_mul_i32 s47, s84, 160", "s_add_u32 s46, s46, s47",
       "s_mul_i32 s60, s65, 5120", f"v_add_u32 v{WR+76}, s60, v2", "v_mul_u32_u24 v4, 2560, v4", f"v_lshrrev_b32 v{WR+79}, 4, v1",
       f"v_lshl_add_u32 v{WR+77}, v{WR+79}, 4, v4", f"v_lshl_add_u32 v{WR+78}, v{WR+79}, 3, v4",
       "s_waitcnt vmcnt(0)", f"v_add3_u32 v{CK}, v6, v7, v254", f"v_cmp_ne_u32 vcc, 0, v{CK}"]
for m in range(4):
    a(f"s_cbranch_vccnz L_RETRY{m}")
    a(f"L_OK{m}:")
    if m == 0: stamp(a, 34)
    a(f"v_mov_b32 v{og(m,0,2)+2}, v{og(m,1,2)}"); a(f"v_mov_b32 v{og(m,0,2)+3}, v{og(m,1,2)+1}")
    lds_ = ld_pair(m + 2) if m < 2 else ([GLD] if m == 2 else [])
    chk = chk_pair(m + 1) if m < 3 else []
    for ss in range(5):
        i = m * 5 + ss
        nxt = ld_w(i + 2)
        w_ = []
        if i >= 4: w_.append(f"lgkmcnt({5 if i < 19 else 0})")
        if PD == 2 and ss == 3 and m < 3: w_.insert(0, f"vmcnt({len(lds_)})")
        if w_: a("s_waitcnt " + " ".join(w_))
        for T in range(5):
            wf = vr(lring(i * 5 + T)) if i >= 4 else vr(WR + (i * 5 + T) * 4)
            a(f"{MF} {vr(AC+4*T)}, {wf}, {vr(ofrag(i))}, {'0' if i == 0 else vr(AC+4*T)}")
            if nxt: a(nxt[T])
            if PD == 2:
                if ss < 3 and T in (1, 3):
                    k = ss * 2 + (T >> 1)
                    if k < len(lds_): a(lds_[k])
                if ss >= 3 and chk:
                    k = (ss - 3) * 5 + T
                    for x in chk[k * 14 // 10:(k + 1) * 14 // 10]: a(x)
            if PD == 3 and ss >= LPOS and T in (1, 3):
                k = (ss - LPOS) * 2 + (T >> 1)
                if k < len(lds_): a(lds_[k])
            if m == 3:
                k = ss * 5 + T
                if k < len(PRE): a(PRE[k])
    if EP and m in (1, 2):
        a(f"s_cmp_eq_u32 s64, {m - 1}"); a(f"s_cbranch_scc1 L_NE1{m}"); a("s_barrier"); a(f"L_NE1{m}:")
    if PD == 3 and m < 3:
        a(f"s_waitcnt vmcnt({len(lds_)})")
        for x in chk: a(x)
    if PD == 1 and m < 3:
        a("s_waitcnt vmcnt(0)")
        for x in lds_: a(x)
        for x in chk: a(x)
if STAMP: stamp2(a, 56, 54)
a("s_cbranch_vccnz L_RETRYG")
a("L_OKG:")
a("s_cmp_eq_u32 s64, 0")
a("s_cbranch_scc1 L_EPI_A")
def epi(send, keep, sc):
    RA, O4, O2 = WR + 76, WR + 77, WR + 78
    for T in send:
        for r in (0, 2): a(f"v_pk_mul_f32 v[{AC+4*T+r}:{AC+4*T+r+1}], v[{AC+4*T+r}:{AC+4*T+r+1}], v[{sc}:{sc+1}] op_sel_hi:[1,0]")
    a("s_barrier")
    for T in send: a(f"ds_write_b128 v{RA}, {vr(AC+4*T)} offset:{T*1024}")
    a("s_waitcnt lgkmcnt(0)"); a("s_barrier")
    for n, T in enumerate(keep): a(f"ds_read_b128 {vr(8+4*n)}, v{RA} offset:{T*1024}")
    for n, T in enumerate(keep):
        a(f"s_waitcnt lgkmcnt({len(keep)-1-n})")
        for r in (0, 2): a(f"v_pk_fma_f32 v[{8+4*n+r}:{8+4*n+r+1}], v[{AC+4*T+r}:{AC+4*T+r+1}], v[{sc}:{sc+1}], v[{8+4*n+r}:{8+4*n+r+1}] op_sel_hi:[1,0,1]")
        a(f"v_cvt_pk_bf16_f32 v{OR_+2*n}, v{8+4*n}, v{8+4*n+1}"); a(f"v_cvt_pk_bf16_f32 v{OR_+2*n+1}, v{8+4*n+2}, v{8+4*n+3}")
        if n == 1: a(f"buffer_store_dwordx4 {vr(OR_)}, v{O4}, s[28:31], s46 offen offset:{32*keep[0]} {SF}")
        if n == 2: a(f"buffer_store_dwordx2 {vr(OR_+4,2)}, v{O2}, s[28:31], s46 offen offset:128 {SF}")
if EP:
    RA, O4, O2 = WR + 76, WR + 77, WR + 78
    a("s_barrier")
    for T in range(5): a(f"ds_read_b128 {vr(72+4*T)}, v{RA} offset:{T*1024}")
    a("v_sub_f32 v6, 1.0, v6"); a("v_cvt_pk_bf16_f32 v6, v6, v6"); a("v_and_b32 v6, 0xffff0000, v6")
    for T in range(5):
        a(f"s_waitcnt lgkmcnt({4-T})")
        for r in (0, 2): a(f"v_pk_fma_f32 v[{72+4*T+r}:{72+4*T+r+1}], v[{AC+4*T+r}:{AC+4*T+r+1}], v[6:7], v[{72+4*T+r}:{72+4*T+r+1}] op_sel_hi:[1,0,1]")
        a(f"v_cvt_pk_bf16_f32 v{OR_+2*T}, v{72+4*T}, v{72+4*T+1}"); a(f"v_cvt_pk_bf16_f32 v{OR_+2*T+1}, v{72+4*T+2}, v{72+4*T+3}")
        if T == 1: a(f"buffer_store_dwordx4 {vr(OR_)}, v{O4}, s[28:31], s46 offen {SF}")
        if T == 3: a(f"buffer_store_dwordx4 {vr(OR_+4)}, v{O4}, s[28:31], s46 offen offset:64 {SF}")
    a(f"buffer_store_dwordx2 {vr(OR_+8,2)}, v{O2}, s[28:31], s46 offen offset:128 {SF}")
    a("s_branch L_FIN")
    a("L_EPI_A:")
    a("s_nop 1")
    for T in range(5):
        for r in (0, 2): a(f"v_pk_mul_f32 v[{AC+4*T+r}:{AC+4*T+r+1}], v[{AC+4*T+r}:{AC+4*T+r+1}], v[6:7] op_sel_hi:[1,0]")
        a(f"ds_write_b128 v{RA}, {vr(AC+4*T)} offset:{T*1024}")
    a("s_waitcnt lgkmcnt(0)"); a("s_barrier")
else:
    a("v_sub_f32 v6, 1.0, v6"); a("v_cvt_pk_bf16_f32 v6, v6, v6"); a("v_and_b32 v6, 0xffff0000, v6")
    epi([0, 1], [2, 3, 4], 6)
    a("s_branch L_FIN")
    a("L_EPI_A:")
    a("s_nop 4")
    epi([2, 3, 4], [0, 1], 6)
ev(a, "end")
if SPIN:
    a("""s_mov_b32 s60, 0
    L_SPIN:
    s_memrealtime s[98:99]
    s_waitcnt lgkmcnt(0)
    s_sub_u32 s98, s98, s96
    s_add_u32 s60, s60, 1
    s_cmp_ge_u32 s60, 20000
    s_cbranch_scc1 L_FIN
    s_cmp_lt_u32 s98, 4000
    s_cbranch_scc1 L_SPIN""")
a("L_FIN:")
if STAMP:
    stamp(a, 57)
    a("s_add_u32 s61, s61, 1"); a(f"v_writelane_b32 v{SV}, s61, 61")
    a("s_waitcnt vmcnt(0)")
    stamp(a, 62); stamp(a, 63, True)
    a(f"s_lshl_b32 s46, s2, 3"); a(f"s_add_u32 s46, s46, s22"); a("s_lshl_b32 s46, s46, 8"); a(f"s_add_u32 s46, s46, {WS_ST}")
    a(f"v_lshlrev_b32 v2, 2, v1")
    a(f"buffer_store_dword v{SV}, v2, s[32:35], s46 offen")
a("L_END:"); a("s_endpgm")
for m in range(4):
    a(f"L_RETRY{m}:")
    a("s_add_u32 s61, s61, 1"); a(f"s_cmp_ge_u32 s61, {SPIN_MAX}"); a(f"s_cbranch_scc1 L_OK{m}")
    a(f"s_sleep {RSLEEP}")
    for x in ld_pair(m): a(x)
    a("s_waitcnt vmcnt(0)")
    for x in chk_pair(m): a(x)
    a(f"s_cbranch_vccnz L_RETRY{m}"); a(f"s_branch L_OK{m}")
a("L_RETRYG:")
a("s_add_u32 s61, s61, 1"); a(f"s_cmp_ge_u32 s61, {SPIN_MAX}"); a("s_cbranch_scc1 L_OKG")
a(f"s_sleep {RSLEEP}")
a("buffer_load_dwordx2 v[6:7], v5, s[32:35], s62 offen sc1"); a("s_waitcnt vmcnt(0)")
a(f"v_add3_u32 v{CK}, v6, v7, v254"); a(f"v_cmp_ne_u32 vcc, 0, v{CK}")
a("s_cbranch_vccnz L_RETRYG"); a("s_branch L_OKG")

l1, _ = fix(a.L)
for tr in traces:
    _, iss_ = fix(tr, verify=True)
    for x in iss_: print("; TRACE HAZARD", x, file=sys.stderr)
print(f"""; gated mix of two dilated sliding-window attention blocks (generated by gen/gen11.py)
; @launch grid=(256,1,1) block=(512,1,1) lds={LDS_TOTAL}
.amdgcn_target "amdgcn-amd-amdhsa--gfx950"
.text
.globl {KN}
.p2align 8
.type {KN},@function""")
print("\n".join(l1))
print("CODE_END:")
print('.section .rodata,"a"')
print(kd(KN, 256, 102, 256))
```

```python
import sys, struct, math
sys.path.insert(0, "gen")
from asmlib import *
NAME = "gated_mix__sliding_local_dilated__sliding_local_dilated__prompt"
KN = NAME + "_kernel"
OPT = dict(a.split("=") for a in sys.argv[1:])
STAMP = int(OPT.get("stamp", 0)); CM = int(OPT.get("cm", 1)); PK = int(OPT.get("pk", 1))
NS1 = int(OPT.get("ns1", 12)); RSLEEP = int(OPT.get("rsleep", 2)); OWAIT = int(OPT.get("owait", 2)); SB = int(OPT.get("sb", 5)); SA = int(OPT.get("sa", 3)); XP = OPT.get("xp", ""); R2 = int(OPT.get("r2", 0)); WNT = "nt " if int(OPT.get("wnt", 0)) else ""; XNT = "nt " if int(OPT.get("xnt", 0)) else ""; SNT = "nt " if int(OPT.get("snt", 0)) else ""; PP = OPT.get("pp", ""); ROT = int(OPT.get("rot", 0 if PP else 1)); EP = int(OPT.get("ep", 0)); LPOS = int(OPT.get("lpos", 2)); COV = int(OPT.get("cov", 0)); SF = OPT.get("sf", "nt").replace("+", " "); PD = int(OPT.get("pd", 1))
def f2u(x): return struct.unpack("<I", struct.pack("<f", x))[0]
STAGE = 49152; XOFF = 30720
GW_LDS = 147456; TOK_LDS = GW_LDS + 1536; SCR_LDS = 149504; LDS_TOTAL = 163840
XCH = 126976
RED = 98304
OBLK = 2816; OTT = 16 * OBLK
WS_WOT = 0x700000; WS_G = 0x900000; WS_FW = 0x910000; WS_ST = 0x1000000
NEG = f2u(-1e30)
CEXP = f2u(20 ** -0.5 * math.log2(math.e))
LOG2E = f2u(math.log2(math.e))
MF = "v_mfma_f32_16x16x32_bf16"
SPIN_MAX = 1 << 17
SV = 255
def stamp(a, idx, real=False):
    if not STAMP: return
    a(f"{'s_memrealtime' if real else 's_memtime'} s[68:69]"); a("s_waitcnt lgkmcnt(0)"); a(f"v_writelane_b32 v{SV}, s68, {idx}")
SPIN = OPT.get("spin", "")
def ev(a, name):
    if SPIN == name: a("s_memrealtime s[96:97]"); a("s_waitcnt lgkmcnt(0)")
def stamp2(a, idx, ridx):
    stamp(a, idx); stamp(a, ridx, True)
def stamp0(a):
    if STAMP: a(f"v_mov_b32 v{SV}, 0"); a(f"v_writelane_b32 v{SV}, s66, 0"); a(f"v_writelane_b32 v{SV}, s68, 1")

a = Asm()
traces = []
def ids():
    a("""v_and_b32 v1, 63, v0
    s_and_b32 s20, s2, 3
    s_lshl_b32 s20, s20, 2
    s_bfe_u32 s46, s2, 0x20003
    s_add_u32 s20, s20, s46
    s_lshr_b32 s47, s2, 5
    s_and_b32 s21, s2, 4
    s_lshl_b32 s21, s21, 1
    s_add_u32 s21, s21, s47
    s_mul_i32 s23, s46, 5
    s_add_u32 s23, s23, 1
    s_lshr_b32 s23, s23, 1
    s_add_u32 s23, s23, s47
    s_sub_u32 s46, s23, 10""")
    a("s_cselect_b32 s23, s23, s46" if ROT else "s_mov_b32 s23, 0")
def srd_ws_dbg():
    a("""s_mov_b32 s32, s78
    s_mov_b32 s33, s79
    s_mov_b32 s34, 0x10000000
    s_mov_b32 s35, 0x20000
    s_mov_b32 s40, s76
    s_mov_b32 s41, s77
    s_mov_b32 s42, 256
    s_mov_b32 s43, 0x20000""")
def consumer_ids():
    if CM:
        a("s_bfe_u32 s84, s2, 0x30003"); a("s_and_b32 s85, s2, 7"); a("s_lshl_b32 s85, s85, 2"); a("s_lshr_b32 s86, s2, 6"); a("s_add_u32 s85, s85, s86")
    else:
        a("s_and_b32 s84, s20, 7"); a("s_lshl_b32 s85, s21, 1"); a("s_lshr_b32 s86, s20, 3"); a("s_add_u32 s85, s85, s86")
def pf_setup(isw_scc_cmp, vdst, vt, soff, sstep, lblx, lble):
    a(f"""s_lshr_b32 s44, s2, 3
    {isw_scc_cmp}
    s_cbranch_scc0 {lblx}
    v_mul_u32_u24 v{vt}, 13108, v1
    v_lshrrev_b32 v{vt}, 16, v{vt}
    v_mul_u32_u24 v{vt}, 640, v{vt}
    v_lshl_add_u32 v{vdst}, v1, 7, v{vt}
    s_mul_i32 {soff}, s44, 15360
    s_and_b32 s45, s2, 1
    s_mul_i32 s45, s45, 640
    s_add_u32 {soff}, {soff}, s45
    s_mov_b32 {sstep}, 491520
    s_cmp_ge_u32 s20, 8
    s_cselect_b32 s88, s12, s6
    s_cselect_b32 s89, s13, s7
    s_mov_b32 s90, 2457600
    s_branch {lble}
    {lblx}:
    v_lshrrev_b32 v{vt}, 1, v1
    v_mul_u32_u24 v{vt}, 1280, v{vt}
    v_and_b32 v{vdst}, 1, v1
    v_lshl_add_u32 v{vdst}, v{vdst}, 7, v{vt}
    s_and_b32 s45, s2, 4
    s_lshl_b32 s45, s45, 3
    s_add_u32 s44, s44, s45
    s_mul_i32 {soff}, s44, 40960
    s_mov_b32 {sstep}, 256
    s_mov_b32 s88, s4
    s_mov_b32 s89, s5
    s_mov_b32 s90, 2621440
    {lble}:
    s_mov_b32 s91, 0x20000""")
def rotbit(dst):
    a(f"s_xor_b32 {dst}, s84, s85"); a(f"s_and_b32 {dst}, {dst}, {R2}")
a(f"{KN}:")
if STAMP: a("s_memrealtime s[66:67]"); a("s_memtime s[68:69]")
a("""v_readfirstlane_b32 s22, v0
s_load_dwordx8 s[4:11], s[0:1], 0
s_load_dwordx8 s[12:19], s[0:1], 32
s_load_dwordx4 s[76:79], s[0:1], 64
s_lshr_b32 s3, s2, 8
s_cbranch_scc1 L_END
s_lshr_b32 s22, s22, 6
s_cmp_eq_u32 s22, 3
s_cbranch_scc1 L_HOP
s_cmp_lt_u32 s22, 4
s_cbranch_scc1 L_COMPUTE""")
ids()
a("""v_lshrrev_b32 v3, 3, v1
v_mul_u32_u24 v3, 2560, v3
v_lshrrev_b32 v4, 4, v0
v_xor_b32 v4, v4, v1
v_xor_b32 v4, 4, v4
v_and_b32 v4, 7, v4
v_lshl_add_u32 v11, v4, 4, v3
s_and_b32 s64, s22, 3
s_lshr_b32 s44, s21, 1
s_or_b32 s45, s44, s64
s_cselect_b32 s52, -20480, 0
s_lshl_b32 s44, s44, 8
s_and_b32 s45, s21, 1
s_add_u32 s44, s44, s45
s_lshl_b32 s45, s64, 4
s_add_u32 s44, s44, s45
s_mul_i32 s47, s44, 1280
s_lshl_b32 s45, s23, 7
s_add_u32 s47, s47, s45
s_lshl_b32 s53, s64, 10
s_mov_b32 s30, 2621440
s_mov_b32 s31, 0x20000
s_mov_b32 s27, s31
s_setprio 2
v_mul_u32_u24 v3, 6554, v1
v_lshrrev_b32 v3, 16, v3
s_branch L_LD0
L_HOP:
s_branch L_COMPUTE
L_LD0:
v_mul_u32_u24 v4, 1120, v3
v_lshl_add_u32 v10, v1, 4, v4
s_and_b32 s46, s20, 7
s_mul_i32 s46, s46, 160
s_lshl_b32 s44, s23, 2
s_add_u32 s44, s44, s64
s_mul_i32 s44, s44, 61440
s_add_u32 s46, s46, s44
s_mul_i32 s48, s64, 7680
s_mov_b32 s49, 0
s_mov_b32 s50, 0
s_mov_b32 s26, 2457600
s_cmp_ge_u32 s20, 8
s_waitcnt lgkmcnt(0)
s_cselect_b32 s24, s12, s6
s_cselect_b32 s25, s13, s7
s_mov_b32 s28, s4
s_mov_b32 s29, s5""")
stamp0(a); stamp(a, 2)
a("L_LD_ISSUE:")
a(f"s_add_u32 m0, s53, {XOFF + 1024}"); a("s_add_u32 s51, s47, s52"); a(f"buffer_load_dwordx4 v11, s[28:31], s51 offen {XNT}lds")
for qq in range(1, 4):
    a(f"s_add_u32 m0, s53, {XOFF + 1024 + 4096*qq}"); a(f"s_add_u32 s51, s47, {(64*qq-16)*1280}"); a(f"buffer_load_dwordx4 v11, s[28:31], s51 offen {XNT}lds")
a("s_cmp_lg_u32 s64, 0"); a("s_cbranch_scc1 L_LD_W")
a(f"s_add_u32 m0, s53, {XOFF + 1024 + 4096*4}"); a(f"s_add_u32 s51, s47, {(64*4-16)*1280}"); a(f"buffer_load_dwordx4 v11, s[28:31], s51 offen {XNT}lds")
a("L_LD_W:")
a("s_mov_b32 exec_hi, 0x0fffffff")
for qq in range(8):
    r = 2 * qq; k = (r & 0x33) | ((r & 4) << 1) | ((r & 8) >> 1)
    a(f"s_add_u32 m0, s48, {960*qq}"); a(f"s_add_u32 s51, s46, {k*3840}"); a(f"buffer_load_dwordx4 v10, s[24:27], s51 offen {WNT}lds")
a(f"""s_mov_b32 exec_hi, -1
s_mov_b32 s63, {STAGE}
s_add_u32 s23, s23, 1
s_cmp_eq_u32 s23, 10
s_cselect_b32 s23, 0, s23
s_cselect_b32 s51, -9, 1
s_mul_i32 s44, s51, 245760
s_add_u32 s46, s46, s44
s_lshl_b32 s44, s51, 7
s_add_u32 s47, s47, s44
s_add_u32 s49, s49, 1
s_cmp_eq_u32 s49, 3
s_cselect_b32 s51, {(-2*STAGE) & 0xffffffff}, s63
s_cselect_b32 s49, 0, s49
s_add_u32 s48, s48, s51
s_add_u32 s53, s53, s51
s_add_u32 s50, s50, 1""")
def lstamp(base):
    if STAMP == 1: a("s_memtime s[68:69]"); a("s_waitcnt lgkmcnt(0)"); a(f"s_add_u32 m0, s50, {base}"); a(f"v_writelane_b32 v{SV}, s68, m0")
lstamp(9)
a(f"""s_cmp_eq_u32 s50, {SA}
s_cbranch_scc1 L_SIDE_A
L_SA_RET:
s_cmp_lt_u32 s50, 2
s_cbranch_scc1 L_LD_PRE0
s_cmp_eq_u32 s50, {SB}
s_cbranch_scc1 L_TOK_A
s_cmp_eq_u32 s50, {SB+2}
s_cbranch_scc1 L_TOK_B
s_cmp_eq_u32 s50, 10
s_cbranch_scc1 L_WOF_A""")
a("L_LD_WAIT:")
a("s_waitcnt vmcnt(12)")
a("L_LD_BAR:")
lstamp(18)
if "nobar" in XP: a("s_cmp_lg_u32 s50, 2"); a("s_cbranch_scc1 L_LD_ISSUE")
a("s_barrier")
if STAMP == 1: a("s_memrealtime s[68:69]"); a("s_waitcnt lgkmcnt(0)"); a(f"s_add_u32 m0, s50, 38"); a(f"v_writelane_b32 v{SV}, s68, m0")
a("L_LD_PRE:")
if PP:
    a("s_cmp_ge_u32 s64, 2"); a("s_cbranch_scc1 L_LD_ISSUE")
    for n in (1, 2):
        mask = sum(1 << c for c in range(1, 10) if int(PP[c]) >= n)
        if mask:
            a(f"s_bitcmp1_b32 {mask}, s50"); a("s_cbranch_scc0 L_LD_ISSUE")
            a("buffer_load_dword v41, v40, s[88:91], s92 offen"); a("s_add_u32 s92, s92, s93")
a("s_branch L_LD_ISSUE")
a("L_LD_PRE0:")
if PP:
    pf_setup("s_cmp_eq_u32 s64, 1", 40, 41, "s92", "s93", "L_LPX", "L_LPE")
    a(f"s_mul_i32 s44, s93, {max(int(PP[0]), 1)}"); a("s_add_u32 s92, s92, s44")
a("s_branch L_LD_PRE")
a("L_SIDE_A:")
a("""s_mov_b32 s56, 0
s_sub_u32 s44, s64, 2
s_lshl_b32 s57, s44, 8
s_add_u32 s57, s57, s2
s_cmp_ge_u32 s57, 320
s_cbranch_scc1 L_SA_RET
s_mov_b32 s56, 1
s_mov_b32 s39, 0x20000
s_and_b32 s45, s57, 7
s_lshr_b32 s44, s57, 3
s_mul_i32 s58, s44, 52
s_lshr_b32 s58, s58, 8
s_mul_i32 s59, s58, 5
s_sub_u32 s59, s44, s59
s_cmp_ge_u32 s58, 4
s_cselect_b32 s36, s14, s8
s_cselect_b32 s37, s15, s9
s_mov_b32 s38, 819200
s_and_b32 s58, s58, 3
s_mul_i32 s58, s58, 160
s_mul_i32 s60, s59, 40
s_cmp_eq_u32 s59, 4
s_cselect_b32 s60, 16, s60
s_cselect_b32 s54, 80, 20
s_cselect_b32 s55, 20, 4
s_add_u32 s58, s58, s60
s_mul_i32 s58, s58, 1280
s_mul_i32 s60, s45, 160
s_add_u32 s58, s58, s60
s_mul_i32 s54, s54, 1280
s_mul_i32 s55, s55, 1280""")
a(f"s_mul_i32 s62, s64, 5120"); a(f"s_add_u32 s62, s62, {SCR_LDS - 10240}")
a("s_mov_b32 exec_hi, 0xff")
for g in range(4):
    for jh in range(2):
        a(f"s_add_u32 m0, s62, {(16*(g>>1) + 8*jh + 4*(g&1))*160}")
        if jh == 0: a("s_add_u32 s51, s58, s54"); a(f"buffer_load_dwordx4 v10, s[36:39], s58 offen {SNT}lds")
        else: a("s_add_u32 s58, s58, s55"); a(f"buffer_load_dwordx4 v10, s[36:39], s51 offen {SNT}lds")
a("s_mov_b32 exec_hi, -1")
a(f"""s_mul_i32 s61, s45, 204800
s_mul_i32 s58, s44, 5120
s_add_u32 s61, s61, s58
s_add_u32 s61, s61, {WS_WOT}
""")
if SA < 2: a("s_branch L_LD_PRE0")
else: a("s_waitcnt vmcnt(20)"); a("s_branch L_LD_BAR")
a("L_SIDE_B:")
if SB == SA + 1: a("s_waitcnt vmcnt(13)")
a("""v_lshrrev_b32 v16, 5, v1
v_lshlrev_b32 v16, 4, v16
v_bfe_u32 v17, v1, 4, 1
v_lshl_add_u32 v16, v17, 2, v16
v_bfe_u32 v17, v1, 2, 2
v_add_u32 v16, v16, v17
v_mul_u32_u24 v16, 160, v16
v_add_u32 v16, s62, v16
v_and_b32 v17, 3, v1
v_lshl_add_u32 v18, v17, 4, v16
v_lshl_add_u32 v19, v17, 3, v16""")
for T in range(5):
    for j in range(2):
        if T < 4: a(f"ds_read_b64_tr_b16 v[{20+4*T+2*j}:{21+4*T+2*j}], v18 offset:{j*1280 + 64*(T>>1) + 8*(T&1)}")
        else: a(f"ds_read_b64_tr_b16 v[{20+4*T+2*j}:{21+4*T+2*j}], v19 offset:{j*1280 + 128}")
a("s_waitcnt lgkmcnt(0)")
for T in range(4): a(f"buffer_store_dwordx4 v[{20+4*T}:{23+4*T}], v12, s[32:35], s61 offen offset:{1024*T} sc1")
a("s_add_u32 s61, s61, 4096")
a(f"buffer_store_dwordx4 v[36:39], v12, s[32:35], s61 offen sc1")
a("s_waitcnt vmcnt(18)"); a("s_branch L_LD_BAR")
a("L_TOK_A:")
srd_ws_dbg()
a("""v_lshlrev_b32 v12, 4, v1
v_mov_b32 v13, 0
s_mov_b64 exec, 1
buffer_load_dword v15, v13, s[40:43], 0 offen sc1
s_mov_b64 exec, -1
s_cmp_lg_u32 s56, 0
s_cbranch_scc1 L_SIDE_B
s_waitcnt vmcnt(13)
s_branch L_LD_BAR""")
a("L_TOK_B:")
srd_ws_dbg()
a(f"""s_mov_b32 s60, 0
v_mov_b32 v13, 0
L_TOK_CHK:
v_readlane_b32 s75, v15, 0
s_add_u32 s60, s60, 1
s_cmp_lg_u32 s75, 0
s_cbranch_scc1 L_TOK_OK
s_cmp_ge_u32 s60, {SPIN_MAX}
s_cbranch_scc1 L_TOK_OK
s_sleep 4
s_mov_b64 exec, 1
buffer_load_dword v15, v13, s[40:43], 0 offen sc1
s_mov_b64 exec, -1
s_waitcnt vmcnt(0)
s_branch L_TOK_CHK
L_TOK_OK:
v_mov_b32 v14, {TOK_LDS}
v_mov_b32 v15, s75
ds_write_b32 v14, v15
s_cmp_eq_u32 s56, 0
s_waitcnt lgkmcnt(0)
s_cbranch_scc1 L_LD_WAIT
s_and_b32 s45, s57, 7
s_lshl_b32 s45, s45, 13
s_lshr_b32 s44, s57, 3
s_lshl_b32 s44, s44, 7
s_add_u32 s45, s45, s44
s_add_u32 s45, s45, {WS_FW}
v_lshlrev_b32 v13, 2, v1
s_mov_b32 exec_hi, 0
buffer_store_dword v15, v13, s[32:35], s45 offen sc1
s_mov_b32 exec_hi, -1
s_waitcnt vmcnt(13)
s_branch L_LD_BAR""")
a("L_WOF_A:")
srd_ws_dbg()
consumer_ids()
a(f"""s_lshl_b32 s59, s84, 13
s_add_u32 s59, s59, {WS_FW}
v_lshlrev_b32 v13, 7, v1
v_lshlrev_b32 v12, 4, v1
s_mov_b32 exec_hi, 0xff
buffer_load_dword v14, v13, s[32:35], s59 offen sc1
s_mov_b32 s60, 0
s_waitcnt vmcnt(13)""")
lstamp(18)
if "nobar" not in XP: a("s_barrier")
a(f"""L_WO_POLL:
s_waitcnt vmcnt(0)
v_cmp_ne_u32 vcc, s75, v14
s_cbranch_vccz L_WO_OK
s_add_u32 s60, s60, 1
s_cmp_ge_u32 s60, {SPIN_MAX}
s_cbranch_scc1 L_WO_OK
s_sleep 4
buffer_load_dword v14, v13, s[32:35], s59 offen sc1
s_branch L_WO_POLL
L_WO_OK:
s_mov_b32 exec_hi, -1
s_setprio 0""")
stamp(a, 29)
CL = {"S1": (0, 24, 49152, 24576), "S2": (24, 14, 98304, 14336), "S0": (38, 24, 0, 24576), "TOP": (62, 8, 147456, 8192),
      "R1": (70, 20, 49152, 24576), "X": (90, 10, XCH, 10240)}
a(f"""s_mul_i32 s58, s84, 204800
s_add_u32 s58, s58, {WS_WOT}
s_lshr_b32 s44, s64, 1
s_and_b32 s45, s64, 1
s_lshl_b32 s45, s45, 10
s_mul_i32 s59, s44, 102400
s_add_u32 s59, s59, s58
s_add_u32 s59, s59, s45""")
rotbit("s54"); a("s_mul_i32 s54, s54, 51200"); a("s_sub_u32 s55, s59, s54"); a("s_add_u32 s59, s59, s54")
def dma_class(nm, lo=0, hi=None):
    l0, n, base, delta = CL[nm]
    a(f"s_mul_i32 s53, s44, {delta}"); a("s_add_u32 s53, s53, s45")
    for j in range(lo, n if hi is None else hi, 2):
        a(f"s_add_u32 m0, s53, {base + j*1024}"); a(f"s_add_u32 s51, {'s59' if l0 + j < 50 else 's55'}, {(l0 + j)*1024}")
        a(f"buffer_load_dwordx4 v12, s[32:35], s51 offen sc1 lds")
dma_class("S1", 0, NS1)
if "nobar" not in XP: a("s_barrier")
dma_class("S1", NS1); dma_class("S2")
a("s_waitcnt vmcnt(7)")
stamp(a, 30)
a("s_barrier")
dma_class("S0"); dma_class("TOP")
TOK = 253
a(f"v_mov_b32 v{TOK}, s75")
a("s_branch L_P2_PRE")
a("L_COMPUTE:")
ev(a, "start")
a(f"s_setprio {OPT.get('cprio', 3)}")
ids()
a("s_waitcnt lgkmcnt(0)")
stamp0(a); stamp(a, 2)
srd_ws_dbg()
a("""s_mov_b32 s39, 0x20000
s_mov_b32 s56, 0
s_cmp_eq_u32 s22, 3
s_cbranch_scc1 L_C_GW
s_cmp_eq_u32 s22, 2
s_cbranch_scc1 L_C_TOK""")
if PP and PP[0] != "0":
    pf_setup("s_cmp_eq_u32 s22, 0", 252, 251, "s57", "s58", "L_CPX", "L_CPE")
    for _ in range(int(PP[0])):
        a("buffer_load_dword v241, v252, s[88:91], s57 offen"); a("s_add_u32 s57, s57, s58")
if COV:
    a("""s_bfe_u32 s44, s2, 0x20003
    s_lshr_b32 s45, s2, 5
    s_cmp_eq_u32 s22, 1
    s_cbranch_scc1 L_C_CW
    s_mov_b32 s36, s4
    s_mov_b32 s37, s5
    s_mov_b32 s38, 2621440
    s_lshr_b32 s57, s44, 1
    s_mul_i32 s57, s57, 5
    s_add_u32 s57, s57, s45
    s_add_u32 s57, s57, 2
    s_sub_u32 s58, s57, 10
    s_cselect_b32 s57, s57, s58
    s_lshl_b32 s57, s57, 7
    s_lshr_b32 s58, s21, 1
    s_lshl_b32 s58, s58, 8
    s_and_b32 s59, s21, 1
    s_add_u32 s58, s58, s59
    s_and_b32 s59, s44, 1
    s_lshl_b32 s59, s59, 7
    s_add_u32 s59, s59, s58
    s_mul_i32 s59, s59, 1280
    s_add_u32 s57, s57, s59
    v_mul_u32_u24 v252, 2560, v1
    s_mov_b32 s56, 1
    s_branch L_C_SETUP
    L_C_CW:
    s_cmp_ge_u32 s20, 8
    s_cselect_b32 s36, s12, s6
    s_cselect_b32 s37, s13, s7
    s_mov_b32 s38, 2457600
    s_lshr_b32 s57, s2, 3
    s_cmp_ge_u32 s57, 12
    s_cbranch_scc1 L_C_SETUP
    s_mul_i32 s58, s57, 81920
    s_cmp_ge_u32 s57, 6
    s_cselect_b32 s59, 0, 512
    s_add_u32 s57, s58, s59
    s_add_u32 s57, s57, 1474560
    s_and_b32 s58, s2, 1
    s_mul_i32 s58, s58, 640
    s_add_u32 s57, s57, s58
    v_mul_u32_u24 v252, 1280, v1
    s_mov_b32 s56, 1""")
a("s_branch L_C_SETUP")
a("L_C_GW:")
a(f"""s_mov_b32 s36, s16
s_mov_b32 s37, s17
s_mov_b32 s38, 1280
v_lshlrev_b32 v140, 4, v1
s_mov_b32 m0, {GW_LDS}
v_mov_b64 v[144:145], 0
buffer_load_dwordx4 v140, s[36:39], 0 offen lds
buffer_load_dwordx4 v140, s[36:39], 0 offen offset:1024 lds
v_mov_b64 v[146:147], 0
ds_write_b128 v140, v[144:147] offset:{XOFF}
v_add_u32 v140, {STAGE}, v140
ds_write_b128 v140, v[144:147] offset:{XOFF}
v_add_u32 v140, {STAGE}, v140
ds_write_b128 v140, v[144:147] offset:{XOFF}
s_branch L_C_SETUP""")
a("L_C_TOK:")
a("""s_cmp_lg_u32 s2, 0
s_cbranch_scc1 L_C_CPF
s_memrealtime s[44:45]
v_mov_b32 v147, 0
s_waitcnt lgkmcnt(0)
s_or_b32 s44, s44, 1
v_mov_b32 v146, s44
s_mov_b64 exec, 1
buffer_atomic_cmpswap v[146:147], v147, s[40:43], 0 offen sc1
s_mov_b64 exec, -1
L_C_CPF:
s_getpc_b64 s[70:71]
L_PC:
s_sub_u32 s70, s70, L_PC - L_SIDE_B
s_subb_u32 s71, s71, 0
v_lshlrev_b32 v140, 7, v1
global_load_dword v241, v140, s[70:71]
v_add_u32 v140, 8192, v140
v_cmp_gt_u32 vcc, CODE_END - L_SIDE_B - 4, v140
s_and_saveexec_b64 s[72:73], vcc
s_cbranch_execz L_NOPF
global_load_dword v241, v140, s[70:71]
L_NOPF:
s_mov_b64 exec, s[72:73]""")
a("L_C_SETUP:")
if COV == 2:
    a("s_cmp_eq_u32 s56, 0"); a("s_cbranch_scc1 L_C_S2")
    a("buffer_load_dword v241, v252, s[36:39], s57 offen")
    a("L_C_S2:")
stamp(a, 3)
VWA, VWB, VX0, VX1, VGX0, VGX1, VGW = 2, 3, 4, 5, 6, 7, 240
ACCQ, ACCK, ACCV, ACCH = 8, 48, 88, 128
RING, XB, GX = 140, 180, 204
MC, MP, MP0, AM, ONES = 220, 224, 228, 232, 236
def acc(seg, t, T): return (ACCQ, ACCK, ACCV)[seg] + t * 20 + T * 4
a("s_setprio 0")
a(f"""v_lshrrev_b32 v140, 4, v1
v_and_b32 v141, 15, v1
v_lshrrev_b32 v142, 5, v1
v_lshlrev_b32 v142, 4, v142
v_and_b32 v143, 1, v140
v_lshl_add_u32 v142, v143, 2, v142
v_lshrrev_b32 v143, 2, v141
v_add_u32 v142, v142, v143
v_mul_u32_u24 v145, 480, v142
v_and_b32 v143, 3, v141
v_lshl_add_u32 v{VWA}, v143, 3, v145
v_mul_u32_u24 v144, 40, v143
v_add3_u32 v{VWB}, v145, v144, 32
v_lshrrev_b32 v144, 1, v141
v_xor_b32 v144, v144, v140
v_lshlrev_b32 v144, 4, v144
v_lshl_add_u32 v{VX0}, v141, 7, v144
v_xor_b32 v{VX1}, 64, v{VX0}
s_and_b32 s44, s20, 7
s_lshl_b32 s44, s44, 11
v_add_u32 v{VGX0}, s44, v{VX0}
v_add_u32 v{VGX1}, s44, v{VX1}
v_lshlrev_b32 v{VGW}, 4, v140
s_lshl_b32 s44, s23, 7
s_add_u32 s44, s44, {GW_LDS}
v_add_u32 v{VGW}, s44, v{VGW}""")
a(f"s_mov_b32 s44, {NEG}")
a(f"v_mov_b32 v146, s44")
a("s_lshr_b32 s45, s21, 1"); a("s_or_b32 s45, s45, s22")
a("v_lshlrev_b32 v145, 2, v140"); a("v_sub_u32 v145, v141, v145")
for r in range(4): a(f"v_subrev_u32 v{150+r}, {r}, v145")
for r in range(4):
    a(f"v_cmp_gt_u32 vcc, 8, v{150+r}"); a(f"v_cmp_gt_i32 s[72:73], -8, v{150+r}")
    a(f"v_mov_b32 v{ONES+r}, 0x3f803f80")
    a(f"v_cndmask_b32 v{MC+r}, v146, 0, vcc"); a(f"v_cndmask_b32 v{MP+r}, v146, 0, s[72:73]")
a("s_cmp_eq_u32 s45, 0"); a("s_cselect_b64 vcc, -1, 0")
for r in range(4): a(f"v_cndmask_b32 v{MP0+r}, v{MP+r}, v146, vcc")
a("s_mov_b32 s44, 0xffff0000")
for h in range(2):
    a(f"v_ashrrev_i32 v154, 31, v{150+2*h}"); a(f"v_ashrrev_i32 v155, 31, v{151+2*h}")
    a(f"v_bfi_b32 v{AM+h}, s44, v155, v154"); a(f"v_not_b32 v{AM+2+h}, v{AM+h}")
a(f"""s_mov_b64 s[48:49], 0xffff
s_mov_b32 s50, 0xffff0000
s_mov_b32 s51, 0
s_mov_b32 s52, 0
s_mov_b32 s53, 0xffff
s_mov_b32 s54, 0
s_mov_b32 s55, 0xffff0000
s_mov_b32 s63, {STAGE}
s_mov_b32 s74, 128""")
for r in range(ACCQ, ACCH + 12, 2): a(f"v_mov_b64 v[{r}:{r+1}], 0")
a("s_waitcnt vmcnt(0) lgkmcnt(0)")
stamp(a, 4)
if COV in (1, 3):
    a("s_cmp_eq_u32 s56, 0"); a("s_cbranch_scc1 L_C_GO")
    if COV == 3: a("s_setprio 3")
    a("buffer_load_dword v241, v252, s[36:39], s57 offen")
a("s_setprio 0")
a("L_C_GO:")
a("""s_mov_b32 s44, 0
s_mov_b32 s45, 0""")
for w in range(1, 4):
    a(f"s_cmp_eq_u32 s22, {w}"); a(f"s_cbranch_scc1 L_W{w}")
HALO = [[(1,0),(1,1),(1,2)], [(1,3),(1,4),(2,0)], [(2,1),(2,2)], [(2,3),(2,4)]]
D = 5
def istep(f): return f - 5 if f <= 14 else (f - 6 if f <= 21 else f - 7)
for w in range(4):
    gate = (w == 3)
    q = []
    def rdW(f):
        ks, seg, T = f // 15, (f % 15) // 5, f % 5
        d = RING + (f % 10) * 4
        if "nods" in XP: return [("s_nop 0", ("W", f))] * 2
        return [(f"ds_read_b64_tr_b16 v[{d+2*j}:{d+2*j+1}], v{VWA if T < 4 else VWB} offset:{seg*160 + ks*15360 + j*3840 + (40*T if T < 4 else 0)}", ("W", f)) for j in range(2)]
    def rdX(ks):
        o = []
        for n, tile in enumerate((1 + 2 * w, 2 + 2 * w, 0)):
            d = XB + (ks * 3 + n) * 4
            o.append((f"ds_read_b128 v[{d}:{d+3}], v{(VX0, VX1)[ks]} offset:{XOFF + tile*2048}", ("X", ks)))
        if gate:
            d = GX + ks * 8
            o.append((f"ds_read_b128 v[{d}:{d+3}], v{(VGX0, VGX1)[ks]} offset:{XOFF + 2048}", ("X", ks)))
            o.append((f"ds_read_b128 v[{d+4}:{d+7}], v{VGW} offset:{ks*64}", ("X", ks)))
        return o
    def wait(b, tags):
        last = max(i for i, t in enumerate(q) if t in tags)
        b(f"s_waitcnt lgkmcnt({min(len(q) - 1 - last, 15)})")
    def mm(f):
        ks, seg, T = f // 15, (f % 15) // 5, f % 5
        wf = vr(RING + (f % 10) * 4); o = []
        def one(dst, xf):
            o.append(f"{MF} {vr(dst)}, {wf}, {xf}, {vr(dst)}" if seg < 2 else f"{MF} {vr(dst)}, {xf}, {wf}, {vr(dst)}")
        one(acc(seg, 0, T), vr(XB + (ks * 3) * 4)); one(acc(seg, 1, T), vr(XB + (ks * 3 + 1) * 4))
        if (seg, T) in HALO[w]: one(ACCH + 4 * HALO[w].index((seg, T)), vr(XB + (ks * 3 + 2) * 4))
        if gate and seg == 0 and T == 2:
            d = GX + ks * 8
            o.append(f"{MF} {vr(ACCH+8)}, {vr(d+4)}, {vr(d)}, {vr(ACCH+8)}")
        return o
    def weave(b, ms, fs, lastless=True):
        n = len(ms); k = len(fs)
        cnt = [0] * n
        for i in range(k):
            load = [cnt[j] + (1 if (lastless and j == n - 1) else 0) for j in range(n)]
            cnt[load.index(min(load))] += 1
        it = iter(fs)
        for m_, c_ in zip(ms, cnt):
            b(m_)
            for _ in range(c_):
                t = next(it)
                b(t[0])
                if t[1] is not None: q.append(t[1])
    FA = {s: [] for s in range(25, 30)}
    x0 = rdX(0)
    FA[25] = x0[:2] + rdW(0); FA[26] = x0[2:4] + rdW(1); FA[27] = x0[4:] + rdW(2); FA[28] = rdW(3); FA[29] = rdW(4)
    FB = {s: [] for s in range(25)}
    for f in range(D, 30): FB[istep(f)] += rdW(f)
    x1 = rdX(1)
    for i, t in enumerate(x1): FB[2 + i].append(t)
    sal = ["s_add_u32 s45, s45, 1", "s_cmp_eq_u32 s45, 3", f"s_cselect_b32 s46, {(-2*STAGE) & 0xffffffff}, s63", "s_cselect_b32 s45, 0, s45"]
    for i, t in enumerate(sal): FB[10 + i].append((t, None))
    if gate:
        sal = ["s_add_u32 s23, s23, 1", "s_cmp_eq_u32 s23, 10", "s_cselect_b32 s23, 0, s23", "s_cselect_b32 s47, -1152, s74"]
        for i, t in enumerate(sal): FB[16 + i].append((t, None))
        FB[20].append((f"v_add_u32 v{VGW}, s47, v{VGW}", None))
        FB[21].append((f"v_add_u32 v{VGX0}, s46, v{VGX0}", None)); FB[22].append((f"v_add_u32 v{VGX1}, s46, v{VGX1}", None))
    FB[20].append((f"v_add_u32 v{VX0}, s46, v{VX0}", None)) if not gate else FB[14].append((f"v_add_u32 v{VX0}, s46, v{VX0}", None))
    FB[23] += [(f"v_add_u32 v{VX1}, s46, v{VX1}", None), (f"v_add_u32 v{VWA}, s46, v{VWA}", None), (f"v_add_u32 v{VWB}, s46, v{VWB}", None)]
    FB[24] += [("s_add_u32 s44, s44, 1", None), ("s_cmp_eq_u32 s44, 10", None)]
    pre = Asm(); pa = Asm(); pb = Asm(); tail = Asm()
    stamp(pre, 5)
    pre("s_barrier")
    if STAMP: stamp2(pre, 6, 50)
    ev(pre, "b0")
    for s in range(25, 30):
        for t in FA[s]: pre(t[0])
    q.clear()
    pa("s_waitcnt lgkmcnt(0)"); pa("s_nop 0" if "nobar" in XP else "s_barrier")
    for s in range(25, 30): weave(pa, mm(s), FA[s], lastless=(s == 29))
    pa(f"s_branch L_LB{w}")
    for s in range(25):
        tags = [("W", s)] + ([("X", 0)] if s == 0 else []) + ([("X", 1)] if s == 15 else [])
        wait(pb, tags); weave(pb, mm(s), FB[s])
    pb(f"s_cbranch_scc1 L_T{w}")
    tail(f"v_mov_b32 v{TOK}, {TOK_LDS}")
    tail("s_waitcnt lgkmcnt(0)")
    tail(f"ds_read_b32 v{TOK}, v{TOK}")
    for s in range(25, 30):
        for m_ in mm(s): tail(m_)
    tail(f"v_lshlrev_b32 v{VWA}, 3, v1")
    tail(f"v_add_u32 v{VX1}, {XCH}, v{VWA}")
    if gate:
        z = ACCH + 8
        tail(f"""v_cvt_pk_bf16_f32 v248, v{z}, v{z}
        v_and_b32 v248, 0xffff0000, v248
        v_mul_f32 v248, {LOG2E ^ 0x80000000}, v248
        v_exp_f32 v248, v248
        s_lshl_b32 s46, s21, 3
        v_add_f32 v248, 1.0, v248
        v_rcp_f32 v248, v248
        s_add_u32 s46, s46, s20
        v_cvt_pk_bf16_f32 v248, v248, v248
        v_and_b32 v248, 0xffff0000, v248
        s_lshl_b32 s46, s46, 7
        s_add_u32 s46, s46, {WS_G}
        s_waitcnt lgkmcnt(0)
        v_sub_u32 v249, v{TOK}, v248""")
    for n, (seg, T) in enumerate(HALO[w]):
        tail(f"v_cvt_pk_bf16_f32 v{242+2*n}, v{ACCH+4*n}, v{ACCH+4*n+1}")
        tail(f"v_cvt_pk_bf16_f32 v{243+2*n}, v{ACCH+4*n+2}, v{ACCH+4*n+3}")
        tail(f"ds_write_b64 v{VX1}, v[{242+2*n}:{243+2*n}] offset:{((seg-1)*5+T)*512}")
    if gate:
        tail(f"""s_cmp_ge_u32 s20, 8
        s_cbranch_scc1 L_ATT
        s_mov_b64 exec, 0xffff
        buffer_store_dwordx2 v[248:249], v{VWA}, s[32:35], s46 offen sc1
        s_mov_b64 exec, -1""")
    else: tail("s_branch L_ATT")
    if w > 0: a(f"L_W{w}:")
    a.extend(pre); a(".p2align 3"); a(f"L_LB{w}:"); a.extend(pb); a.extend(pa); a(f"L_T{w}:"); a.extend(tail)
    traces.append(pre.L + pb.L + pa.L + pb.L + tail.L[:14])
a("L_ATT:")
if STAMP: stamp2(a, 30, 51)
ev(a, "gemm")
KOP = {1: 140, 0: 156, -1: 204}
VOP = 172; QOP = {1: 68, 0: 108}
def kop(t, h): return KOP[t] + 4 * h
def vop(T, t): return VOP + 6 * T + 2 * (t + 1)
def qop(t, h): return QOP[t] + 4 * h
g = Asm()
def cvt(d, s): g(f"v_cvt_pk_bf16_f32 v{d}, v{s}, v{s+1}"); g(f"v_cvt_pk_bf16_f32 v{d+1}, v{s+2}, v{s+3}")
def flush(name):
    global g
    o, t = schedule(g.L); print(f"; sched {name}: {len(o)} instrs, est {t} cycles", file=sys.stderr)
    for n, l in enumerate(o):
        if OPT.get("astamp") and n and n % 45 == 0: a(f"s_memtime s[{86 + 2*(n//45)}:{87 + 2*(n//45)}]") if n // 45 < 8 else None
        a(l)
    if OPT.get("astamp"):
        a("s_waitcnt lgkmcnt(0)")
        for k in range(1, 8): a(f"v_writelane_b32 v{SV}, s{86+2*k}, {9+k}")
    g = Asm()
a("s_setprio 2")
a(f"s_mul_i32 s46, s22, 5120"); a(f"v_add_u32 v{VWB}, s46, v{VX1}")
a("s_add_u32 s46, s46, 5120"); a("s_cmp_eq_u32 s22, 3"); a(f"s_cselect_b32 s46, {SCR_LDS - XCH}, s46"); a(f"v_add_u32 v{VX1}, s46, v{VX1}")
for h in range(4):
    cvt(kop(1, h), acc(1, 1, h)); g(f"ds_write_b64 v{VX1}, v[{kop(1,h)}:{kop(1,h)+1}] offset:{h*512}")
cvt(kop(1, 0) + 2, acc(1, 1, 4)); g(f"ds_write_b64 v{VX1}, v[{kop(1,0)+2}:{kop(1,0)+3}] offset:{4*512}")
for T in range(5):
    cvt(vop(T, 1), acc(2, 1, T)); g(f"ds_write_b64 v{VX1}, v[{vop(T,1)}:{vop(T,1)+1}] offset:{(5+T)*512}")
for h in range(1, 4): cvt(kop(1, h) + 2, acc(1, 1, 4))
cvt(250, acc(0, 1, 4))
for h in range(4): cvt(qop(1, h), acc(0, 1, h))
for h in range(4):
    for j in range(2): g(f"v_cndmask_b32 v{qop(1,h)+2+j}, 0, v{250+j}, s[{48+2*h}:{49+2*h}]")
for l in g.L: a(l)
g = Asm()
a(f"s_mov_b32 s46, {CEXP}"); a(f"s_mov_b32 s47, {CEXP}")
a("s_lshl_b32 s56, s21, 3"); a("s_lshl_b32 s57, s22, 1"); a("s_add_u32 s56, s56, s57")
a(f"s_mul_i32 s56, s56, {OTT}"); a(f"s_mul_i32 s57, s20, {OBLK}"); a("s_add_u32 s56, s56, s57")
a(f"s_add_u32 s57, s56, {OTT}")
stamp(a, 31)
a("s_waitcnt lgkmcnt(0)"); a("s_barrier")
stamp(a, 32)
for h in range(4):
    g(f"ds_read_b64 v[{kop(-1,h)}:{kop(-1,h)+1}], v{VWB} offset:{h*512}")
    g(f"ds_read_b64 v[{kop(-1,h)+2}:{kop(-1,h)+3}], v{VWB} offset:{4*512}")
for T in range(5): g(f"ds_read_b64 v[{vop(T,-1)}:{vop(T,-1)+1}], v{VWB} offset:{(5+T)*512}")
g("@wait")
g(f"v_lshlrev_b32 v{VX0}, 4, v1"); g(f"v_mul_u32_u24 v{VWA}, 12, v1")
for h in range(4): cvt(kop(0, h), acc(1, 0, h)); cvt(kop(0, h) + 2, acc(1, 0, 4))
for T in range(5): cvt(vop(T, 0), acc(2, 0, T))
cvt(246, acc(0, 0, 4))
for h in range(4): cvt(qop(0, h), acc(0, 0, h))
for h in range(4):
    for j in range(2): g(f"v_cndmask_b32 v{qop(0,h)+2+j}, 0, v{246+j}, s[{48+2*h}:{49+2*h}]")
SR = {1: [28, 32, 36, 40, 44, 48, 52, 56], 0: [8, 12, 16, 20, 24, 88, 92, 96]}
def dc(t, h): return SR[t][h]
def dp(t, h): return SR[t][4 + h]
MX = {1: 84, 0: 124}; TMP = {1: 128, 0: 132}
OREG = {1: [68, 72, 76, 80, 140, 144, 148, 152, 60, 64, 100, 104], 0: [108, 112, 116, 120, 156, 160, 164, 168, 204, 208, 212, 216]}
def oo(t, h, k): return OREG[t][k * 4 + h]
for t in (1, 0):
    for h in range(4):
        g(f"{MF} {vr(dc(t,h))}, {vr(kop(t,h))}, {vr(qop(t,h))}, {vr(MC)}")
        g(f"{MF} {vr(dp(t,h))}, {vr(kop(t-1,h))}, {vr(qop(t,h))}, {vr(MP if t else MP0)}")
for t in (1, 0):
    for h in range(4):
        for r in range(4): g(f"v_max_f32 v{dc(t,h)+r}, v{dc(t,h)+r}, v{dp(t,h)+r}")
        g(f"v_max3_f32 v{MX[t]+h}, v{dc(t,h)}, v{dc(t,h)+1}, v{dc(t,h)+2}")
        g(f"v_max_f32 v{MX[t]+h}, v{MX[t]+h}, v{dc(t,h)+3}")
    m = MX[t]
    g(f"""v_permlane32_swap_b32 v{m}, v{m+1}
    v_permlane32_swap_b32 v{m+2}, v{m+3}
    v_max_f32 v{m}, v{m}, v{m+1}
    v_max_f32 v{m+2}, v{m+2}, v{m+3}
    v_permlane16_swap_b32 v{m}, v{m+2}
    v_max_f32 v{m}, v{m}, v{m+2}
    v_mul_f32 v{m+2}, s46, v{m}
    v_mul_f32 v{m}, s46, v{m}
    v_permlane16_swap_b32 v{m}, v{m+2}
    v_mov_b32 v{m+1}, v{m}
    v_mov_b32 v{m+3}, v{m+2}
    v_permlane32_swap_b32 v{m}, v{m+1}
    v_permlane32_swap_b32 v{m+2}, v{m+3}""")
    for h in range(4):
        d = dc(t, h); p = dp(t, h)
        if PK:
            mp_ = m + (h & 2); e = h & 1
            for r in (0, 2): g(f"v_pk_fma_f32 v[{d+r}:{d+r+1}], v[{d+r}:{d+r+1}], s[46:47], v[{mp_}:{mp_+1}] op_sel:[0,0,{e}] op_sel_hi:[1,1,{e}] neg_lo:[0,0,1] neg_hi:[0,0,1]")
        else:
            for r in range(4): g(f"v_fma_f32 v{d+r}, v{d+r}, s46, -v{m+h}")
        for r in range(4): g(f"v_exp_f32 v{d+r}, v{d+r}")
        g(f"v_cvt_pk_bf16_f32 v{d}, v{d}, v{d+1}"); g(f"v_cvt_pk_bf16_f32 v{d+2}, v{d+2}, v{d+3}")
        g(f"v_and_b32 v{p}, v{AM}, v{d}"); g(f"v_and_b32 v{p+1}, v{AM+1}, v{d+2}")
        g(f"v_and_b32 v{p+2}, v{AM+2}, v{d}"); g(f"v_and_b32 v{p+3}, v{AM+3}, v{d+2}")
    for h in range(4):
        g(f"{MF} {vr(oo(t,h,2))}, {vr(ONES)}, {vr(dp(t,h))}, 0")
        g(f"{MF} {vr(oo(t,h,0))}, {vr(vop(h,t-1))}, {vr(dp(t,h))}, 0")
        g(f"{MF} {vr(oo(t,h,1))}, {vr(vop(4,t-1))}, {vr(dp(t,h))}, 0")
    for h in range(4):
        o0 = oo(t, h, 0); rc = oo(t, h, 2)
        g(f"v_rcp_f32 v{rc}, v{rc}")
        if PK:
            for r in (0, 2): g(f"v_pk_mul_f32 v[{o0+r}:{o0+r+1}], v[{o0+r}:{o0+r+1}], v[{rc}:{rc+1}] op_sel_hi:[1,0]")
        else:
            for r in range(4): g(f"v_mul_f32 v{o0+r}, v{o0+r}, v{rc}")
        for r in range(4): g(f"v_mul_f32_dpp v{TMP[t]+r}, v{oo(t,h,1)+r}, v{rc} quad_perm:[0,1,2,3] row_mask:{hex(1<<h)} bank_mask:0xf")
        cvt(dc(t, h >> 1) + 2 * (h & 1), o0)
    cvt(dc(t, 2), TMP[t])
    so = "s57" if t else "s56"
    c = dc(t, 2)
    for p in range(2):
        g(f"buffer_store_dwordx4 {vr(dc(t, p))}, v{VX0}, s[32:35], {so} offen offset:{1024*p} sc1")
    d = dc(t, 0); e = dc(t, 1)
    g(f"v_add3_u32 v{c+2}, v{d}, v{d+1}, v{d+2}"); g(f"v_add3_u32 v{c+3}, v{e}, v{e+1}, v{e+2}")
    g(f"v_add3_u32 v{c+2}, v{c+2}, v{d+3}, v{e+3}"); g(f"v_add3_u32 v{c+2}, v{c+2}, v{c+3}, v{TOK}")
    g(f"v_add3_u32 v{c+2}, v{c+2}, v{c}, v{c+1}")
    g(f"buffer_store_dwordx3 {vr(c,3)}, v{VWA}, s[32:35], {so} offen offset:2048 sc1")
flush("attention")
if STAMP: stamp2(a, 35, 52)
ev(a, "att")
WR = 48
OR_ = 128
AC = 224
CK = 244
BA = {"S1": 248, "S2": 249, "S0": 250, "TOP": 251, "R1": 248, "X": 252}
def lring(l):
    k = (l - 20) % 15
    return 8 + 4 * k
a("L_P2_PRE:")
a("v_lshlrev_b32 v2, 4, v1")
a("s_lshr_b32 s64, s22, 2")
a(f"s_mul_i32 s60, s64, {CL['S1'][3]}"); a(f"s_add_u32 s60, s60, {CL['S1'][2]}"); a(f"v_add_u32 v{BA['S1']}, s60, v2")
for l in range(20): a(f"ds_read_b128 {vr(WR+4*l)}, v{BA['S1']} offset:{l*1024}")
for nm in ("S2", "S0", "TOP", "X"):
    a(f"s_mul_i32 s60, s64, {CL[nm][3]}"); a(f"s_add_u32 s60, s60, {CL[nm][2]}"); a(f"v_add_u32 v{BA[nm]}, s60, v2")
consumer_ids()
rotbit("s86")
a(f"""s_and_b32 s65, s22, 3
s_lshl_b32 s67, s85, 2
s_add_u32 s67, s67, s65
s_mul_i32 s80, s67, {OTT}
s_mul_i32 s60, s64, {8*OBLK}
s_add_u32 s80, s80, s60
v_mul_u32_u24 v3, 12, v1
v_add_u32 v3, 2048, v3
v_and_b32 v4, 15, v1
v_lshlrev_b32 v5, 3, v4
s_lshl_b32 s62, s67, 7
s_add_u32 s62, s62, {WS_G}
v_sub_u32 v254, 0, v{TOK}
s_add_u32 s82, s80, {4*OBLK}
s_mul_i32 s86, s86, {4*OBLK}
s_add_u32 s80, s80, s86
s_sub_u32 s82, s82, s86
s_add_u32 s81, s80, {2*OBLK}
s_add_u32 s83, s82, {2*OBLK}
s_mov_b32 s28, s18
s_mov_b32 s29, s19
s_mov_b32 s30, 2621440
s_mov_b32 s31, 0x20000
s_mov_b32 s61, 0""")
stamp(a, 36)
a("s_waitcnt lgkmcnt(0)")
a("s_barrier")
stamp(a, 37)
a("s_cmp_lt_u32 s22, 4"); a("s_cbranch_scc1 L_P2_C")
dma_class("R1"); dma_class("X")
if OWAIT >= 2: a("s_waitcnt vmcnt(0)"); stamp(a, 38)
a("s_branch L_P2_GO")
a("L_P2_C:")
if OWAIT: a("s_waitcnt vmcnt(0)"); stamp(a, 38)
a("s_setprio 0")
a("L_P2_GO:")
if OWAIT >= 2: a("s_barrier")
if OWAIT >= 3: a(f"s_sleep {OWAIT}")
if STAMP: stamp2(a, 39, 53)
ev(a, "bp")
def og(m, e, k): return OR_ + m * 24 + e * 12 + k * 4
def ld_pair(m):
    o = []
    for e in range(2):
        for k in range(2): o.append(f"buffer_load_dwordx4 {vr(og(m, e, k))}, v2, s[32:35], s{80+m} offen offset:{e*OBLK + k*1024} sc1")
        o.append(f"buffer_load_dwordx3 {vr(og(m, e, 2), 3)}, v3, s[32:35], s{80+m} offen offset:{e*OBLK} sc1")
    return o
def chk_pair(m):
    o = []
    for e in range(2):
        d = og(m, e, 0); f = og(m, e, 1); c = og(m, e, 2); x = CK + 2 * e
        o.append([f"v_add3_u32 v{x}, v{d}, v{d+1}, v{d+2}", f"v_add3_u32 v{x+1}, v{f}, v{f+1}, v{f+2}", f"v_add3_u32 v{x}, v{x}, v{d+3}, v{f+3}",
                  f"v_add3_u32 v{x}, v{x}, v{x+1}, v{TOK}", f"v_add3_u32 v{x}, v{x}, v{c}, v{c+1}", f"v_xor_b32 v{x}, v{x}, v{c+2}"])
    o = [o[j][i] for i in range(6) for j in range(2)]
    o += [f"v_or_b32 v{CK}, v{CK}, v{CK+2}", f"v_cmp_ne_u32 vcc, 0, v{CK}"]
    return o
def ofrag(i):
    m, ss = i // 5, i % 5
    return og(m, ss >> 1, ss & 1) if ss < 4 else og(m, 0, 2)
def ld_w(i):
    if i < 4 or i >= 20: return []
    o = []
    for T in range(5):
        l = i * 5 + T
        nm = [k for k, v in CL.items() if v[0] <= l < v[0] + v[1]][0]
        o.append(f"ds_read_b128 {vr(lring(l))}, v{BA[nm]} offset:{(l - CL[nm][0]) * 1024}")
    return o
GLD = "buffer_load_dwordx2 v[6:7], v5, s[32:35], s62 offen sc1"
if PD == 2:
    for x in ld_pair(0) + ld_pair(1): a(x)
    a("s_waitcnt vmcnt(6)")
else:
    for x in ld_pair(0): a(x)
    a("s_waitcnt vmcnt(0)")
    for x in ld_pair(1): a(x)
stamp(a, 33)
for x in chk_pair(0): a(x)
PRE = ["s_lshr_b32 s46, s67, 4", "s_lshl_b32 s46, s46, 8", "s_bfe_u32 s47, s67, 0x10003", "s_add_u32 s46, s46, s47", "s_and_b32 s47, s67, 7",
       "s_lshl_b32 s47, s47, 5", "s_add_u32 s46, s46, s47", "s_mul_i32 s46, s46, 1280", "s_mul_i32 s47, s84, 160", "s_add_u32 s46, s46, s47",
       "s_mul_i32 s60, s65, 5120", f"v_add_u32 v{WR+76}, s60, v2", "v_mul_u32_u24 v4, 2560, v4", f"v_lshrrev_b32 v{WR+79}, 4, v1",
       f"v_lshl_add_u32 v{WR+77}, v{WR+79}, 4, v4", f"v_lshl_add_u32 v{WR+78}, v{WR+79}, 3, v4",
       "s_waitcnt vmcnt(0)", f"v_add3_u32 v{CK}, v6, v7, v254", f"v_cmp_ne_u32 vcc, 0, v{CK}"]
for m in range(4):
    a(f"s_cbranch_vccnz L_RETRY{m}")
    a(f"L_OK{m}:")
    if m == 0: stamp(a, 34)
    a(f"v_mov_b32 v{og(m,0,2)+2}, v{og(m,1,2)}"); a(f"v_mov_b32 v{og(m,0,2)+3}, v{og(m,1,2)+1}")
    lds_ = ld_pair(m + 2) if m < 2 else ([GLD] if m == 2 else [])
    chk = chk_pair(m + 1) if m < 3 else []
    for ss in range(5):
        i = m * 5 + ss
        nxt = ld_w(i + 2)
        w_ = []
        if i >= 4: w_.append(f"lgkmcnt({5 if i < 19 else 0})")
        if PD == 2 and ss == 3 and m < 3: w_.insert(0, f"vmcnt({len(lds_)})")
        if w_: a("s_waitcnt " + " ".join(w_))
        for T in range(5):
            wf = vr(lring(i * 5 + T)) if i >= 4 else vr(WR + (i * 5 + T) * 4)
            a(f"{MF} {vr(AC+4*T)}, {wf}, {vr(ofrag(i))}, {'0' if i == 0 else vr(AC+4*T)}")
            if nxt: a(nxt[T])
            if PD == 2:
                if ss < 3 and T in (1, 3):
                    k = ss * 2 + (T >> 1)
                    if k < len(lds_): a(lds_[k])
                if ss >= 3 and chk:
                    k = (ss - 3) * 5 + T
                    for x in chk[k * 14 // 10:(k + 1) * 14 // 10]: a(x)
            if PD == 3 and ss >= LPOS and T in (1, 3):
                k = (ss - LPOS) * 2 + (T >> 1)
                if k < len(lds_): a(lds_[k])
            if m == 3:
                k = ss * 5 + T
                if k < len(PRE): a(PRE[k])
    if EP and m in (1, 2):
        a(f"s_cmp_eq_u32 s64, {m - 1}"); a(f"s_cbranch_scc1 L_NE1{m}"); a("s_barrier"); a(f"L_NE1{m}:")
    if PD == 3 and m < 3:
        a(f"s_waitcnt vmcnt({len(lds_)})")
        for x in chk: a(x)
    if PD == 1 and m < 3:
        a("s_waitcnt vmcnt(0)")
        for x in lds_: a(x)
        for x in chk: a(x)
if STAMP: stamp2(a, 56, 54)
a("s_cbranch_vccnz L_RETRYG")
a("L_OKG:")
a("s_cmp_eq_u32 s64, 0")
a("s_cbranch_scc1 L_EPI_A")
def epi(send, keep, sc):
    RA, O4, O2 = WR + 76, WR + 77, WR + 78
    for T in send:
        for r in (0, 2): a(f"v_pk_mul_f32 v[{AC+4*T+r}:{AC+4*T+r+1}], v[{AC+4*T+r}:{AC+4*T+r+1}], v[{sc}:{sc+1}] op_sel_hi:[1,0]")
    a("s_barrier")
    for T in send: a(f"ds_write_b128 v{RA}, {vr(AC+4*T)} offset:{T*1024}")
    a("s_waitcnt lgkmcnt(0)"); a("s_barrier")
    for n, T in enumerate(keep): a(f"ds_read_b128 {vr(8+4*n)}, v{RA} offset:{T*1024}")
    for n, T in enumerate(keep):
        a(f"s_waitcnt lgkmcnt({len(keep)-1-n})")
        for r in (0, 2): a(f"v_pk_fma_f32 v[{8+4*n+r}:{8+4*n+r+1}], v[{AC+4*T+r}:{AC+4*T+r+1}], v[{sc}:{sc+1}], v[{8+4*n+r}:{8+4*n+r+1}] op_sel_hi:[1,0,1]")
        a(f"v_cvt_pk_bf16_f32 v{OR_+2*n}, v{8+4*n}, v{8+4*n+1}"); a(f"v_cvt_pk_bf16_f32 v{OR_+2*n+1}, v{8+4*n+2}, v{8+4*n+3}")
        if n == 1: a(f"buffer_store_dwordx4 {vr(OR_)}, v{O4}, s[28:31], s46 offen offset:{32*keep[0]} {SF}")
        if n == 2: a(f"buffer_store_dwordx2 {vr(OR_+4,2)}, v{O2}, s[28:31], s46 offen offset:128 {SF}")
if EP:
    RA, O4, O2 = WR + 76, WR + 77, WR + 78
    a("s_barrier")
    for T in range(5): a(f"ds_read_b128 {vr(72+4*T)}, v{RA} offset:{T*1024}")
    a("v_sub_f32 v6, 1.0, v6"); a("v_cvt_pk_bf16_f32 v6, v6, v6"); a("v_and_b32 v6, 0xffff0000, v6")
    for T in range(5):
        a(f"s_waitcnt lgkmcnt({4-T})")
        for r in (0, 2): a(f"v_pk_fma_f32 v[{72+4*T+r}:{72+4*T+r+1}], v[{AC+4*T+r}:{AC+4*T+r+1}], v[6:7], v[{72+4*T+r}:{72+4*T+r+1}] op_sel_hi:[1,0,1]")
        a(f"v_cvt_pk_bf16_f32 v{OR_+2*T}, v{72+4*T}, v{72+4*T+1}"); a(f"v_cvt_pk_bf16_f32 v{OR_+2*T+1}, v{72+4*T+2}, v{72+4*T+3}")
        if T == 1: a(f"buffer_store_dwordx4 {vr(OR_)}, v{O4}, s[28:31], s46 offen {SF}")
        if T == 3: a(f"buffer_store_dwordx4 {vr(OR_+4)}, v{O4}, s[28:31], s46 offen offset:64 {SF}")
    a(f"buffer_store_dwordx2 {vr(OR_+8,2)}, v{O2}, s[28:31], s46 offen offset:128 {SF}")
    a("s_branch L_FIN")
    a("L_EPI_A:")
    a("s_nop 1")
    for T in range(5):
        for r in (0, 2): a(f"v_pk_mul_f32 v[{AC+4*T+r}:{AC+4*T+r+1}], v[{AC+4*T+r}:{AC+4*T+r+1}], v[6:7] op_sel_hi:[1,0]")
        a(f"ds_write_b128 v{RA}, {vr(AC+4*T)} offset:{T*1024}")
    a("s_waitcnt lgkmcnt(0)"); a("s_barrier")
else:
    a("v_sub_f32 v6, 1.0, v6"); a("v_cvt_pk_bf16_f32 v6, v6, v6"); a("v_and_b32 v6, 0xffff0000, v6")
    epi([0, 1], [2, 3, 4], 6)
    a("s_branch L_FIN")
    a("L_EPI_A:")
    a("s_nop 4")
    epi([2, 3, 4], [0, 1], 6)
ev(a, "end")
if SPIN:
    a("""s_mov_b32 s60, 0
    L_SPIN:
    s_memrealtime s[98:99]
    s_waitcnt lgkmcnt(0)
    s_sub_u32 s98, s98, s96
    s_add_u32 s60, s60, 1
    s_cmp_ge_u32 s60, 20000
    s_cbranch_scc1 L_FIN
    s_cmp_lt_u32 s98, 4000
    s_cbranch_scc1 L_SPIN""")
a("L_FIN:")
if STAMP:
    stamp(a, 57)
    a("s_add_u32 s61, s61, 1"); a(f"v_writelane_b32 v{SV}, s61, 61")
    a("s_waitcnt vmcnt(0)")
    stamp(a, 62); stamp(a, 63, True)
    a(f"s_lshl_b32 s46, s2, 3"); a(f"s_add_u32 s46, s46, s22"); a("s_lshl_b32 s46, s46, 8"); a(f"s_add_u32 s46, s46, {WS_ST}")
    a(f"v_lshlrev_b32 v2, 2, v1")
    a(f"buffer_store_dword v{SV}, v2, s[32:35], s46 offen")
a("L_END:"); a("s_endpgm")
for m in range(4):
    a(f"L_RETRY{m}:")
    a("s_add_u32 s61, s61, 1"); a(f"s_cmp_ge_u32 s61, {SPIN_MAX}"); a(f"s_cbranch_scc1 L_OK{m}")
    a(f"s_sleep {RSLEEP}")
    for x in ld_pair(m): a(x)
    a("s_waitcnt vmcnt(0)")
    for x in chk_pair(m): a(x)
    a(f"s_cbranch_vccnz L_RETRY{m}"); a(f"s_branch L_OK{m}")
a("L_RETRYG:")
a("s_add_u32 s61, s61, 1"); a(f"s_cmp_ge_u32 s61, {SPIN_MAX}"); a("s_cbranch_scc1 L_OKG")
a(f"s_sleep {RSLEEP}")
a("buffer_load_dwordx2 v[6:7], v5, s[32:35], s62 offen sc1"); a("s_waitcnt vmcnt(0)")
a(f"v_add3_u32 v{CK}, v6, v7, v254"); a(f"v_cmp_ne_u32 vcc, 0, v{CK}")
a("s_cbranch_vccnz L_RETRYG"); a("s_branch L_OKG")

l1, _ = fix(a.L)
for tr in traces:
    _, iss_ = fix(tr, verify=True)
    for x in iss_: print("; TRACE HAZARD", x, file=sys.stderr)
print(f"""; gated mix of two dilated sliding-window attention blocks (generated by gen/gen11.py)
; @launch grid=(256,1,1) block=(512,1,1) lds={LDS_TOTAL}
.amdgcn_target "amdgcn-amd-amdhsa--gfx950"
.text
.globl {KN}
.p2align 8
.type {KN},@function""")
print("\n".join(l1))
print("CODE_END:")
print('.section .rodata,"a"')
print(kd(KN, 256, 102, 256))
```

```python
import sys, struct, math
sys.path.insert(0, "gen")
from asmlib import *
NAME = "gated_mix__sliding_local_dilated__sliding_local_dilated__prompt"
KN = NAME + "_kernel"
OPT = dict(a.split("=") for a in sys.argv[1:])
STAMP = int(OPT.get("stamp", 0)); CM = int(OPT.get("cm", 1)); PK = int(OPT.get("pk", 1))
NS1 = int(OPT.get("ns1", 12)); RSLEEP = int(OPT.get("rsleep", 2)); OWAIT = int(OPT.get("owait", 2)); SB = int(OPT.get("sb", 5)); SA = int(OPT.get("sa", 3)); XP = OPT.get("xp", ""); R2 = int(OPT.get("r2", 0)); WNT = "nt " if int(OPT.get("wnt", 0)) else ""; XNT = "nt " if int(OPT.get("xnt", 0)) else ""; SNT = "nt " if int(OPT.get("snt", 0)) else ""; STG = int(OPT.get("stg", 1)); PP = OPT.get("pp", ""); ROT = int(OPT.get("rot", 0 if PP else 1)); EP = int(OPT.get("ep", 0)); LPOS = int(OPT.get("lpos", 2)); COV = int(OPT.get("cov", 0)); SF = OPT.get("sf", "nt").replace("+", " "); PD = int(OPT.get("pd", 1))
def f2u(x): return struct.unpack("<I", struct.pack("<f", x))[0]
STAGE = 49152; XOFF = 30720
GW_LDS = 147456; TOK_LDS = GW_LDS + 1536; SCR_LDS = 149504; LDS_TOTAL = 163840
XCH = 126976
RED = 98304
OBLK = 2816; OTT = 16 * OBLK
WS_WOT = 0x700000; WS_G = 0x900000; WS_FW = 0x910000; WS_ST = 0x1000000
NEG = f2u(-1e30)
CEXP = f2u(20 ** -0.5 * math.log2(math.e))
LOG2E = f2u(math.log2(math.e))
MF = "v_mfma_f32_16x16x32_bf16"
SPIN_MAX = 1 << 17
SV = 255
def stamp(a, idx, real=False):
    if not STAMP: return
    a(f"{'s_memrealtime' if real else 's_memtime'} s[68:69]"); a("s_waitcnt lgkmcnt(0)"); a(f"v_writelane_b32 v{SV}, s68, {idx}")
SPIN = OPT.get("spin", "")
def ev(a, name):
    if SPIN == name: a("s_memrealtime s[96:97]"); a("s_waitcnt lgkmcnt(0)")
def stamp2(a, idx, ridx):
    stamp(a, idx); stamp(a, ridx, True)
def stamp0(a):
    if STAMP: a(f"v_mov_b32 v{SV}, 0"); a(f"v_writelane_b32 v{SV}, s66, 0"); a(f"v_writelane_b32 v{SV}, s68, 1")

a = Asm()
traces = []
def ids():
    a("""v_and_b32 v1, 63, v0
    s_and_b32 s20, s2, 3
    s_lshl_b32 s20, s20, 2
    s_bfe_u32 s46, s2, 0x20003
    s_add_u32 s20, s20, s46
    s_lshr_b32 s47, s2, 5
    s_and_b32 s21, s2, 4
    s_lshl_b32 s21, s21, 1
    s_add_u32 s21, s21, s47
    s_mul_i32 s23, s46, 5
    s_add_u32 s23, s23, 1
    s_lshr_b32 s23, s23, 1
    s_add_u32 s23, s23, s47
    s_sub_u32 s46, s23, 10""")
    a("s_cselect_b32 s23, s23, s46" if ROT else "s_mov_b32 s23, 0")
def srd_ws_dbg():
    WSO = int(OPT.get("wso", 0)) << 20
    a(f"""s_add_u32 s32, s78, {WSO}
    s_addc_u32 s33, s79, 0
    s_mov_b32 s34, {0x10000000 - WSO}
    s_mov_b32 s35, 0x20000
    s_mov_b32 s40, s76
    s_mov_b32 s41, s77
    s_mov_b32 s42, 256
    s_mov_b32 s43, 0x20000""")
def consumer_ids():
    if CM:
        a("s_bfe_u32 s84, s2, 0x30003"); a("s_and_b32 s85, s2, 7"); a("s_lshl_b32 s85, s85, 2"); a("s_lshr_b32 s86, s2, 6"); a("s_add_u32 s85, s85, s86")
    else:
        a("s_and_b32 s84, s20, 7"); a("s_lshl_b32 s85, s21, 1"); a("s_lshr_b32 s86, s20, 3"); a("s_add_u32 s85, s85, s86")
def pf_setup(isw_scc_cmp, vdst, vt, soff, sstep, lblx, lble):
    a(f"""s_lshr_b32 s44, s2, 3
    {isw_scc_cmp}
    s_cbranch_scc0 {lblx}
    v_mul_u32_u24 v{vt}, 13108, v1
    v_lshrrev_b32 v{vt}, 16, v{vt}
    v_mul_u32_u24 v{vt}, 640, v{vt}
    v_lshl_add_u32 v{vdst}, v1, 7, v{vt}
    s_mul_i32 {soff}, s44, 15360
    s_and_b32 s45, s2, 1
    s_mul_i32 s45, s45, 640
    s_add_u32 {soff}, {soff}, s45
    s_mov_b32 {sstep}, 491520
    s_cmp_ge_u32 s20, 8
    s_cselect_b32 s88, s12, s6
    s_cselect_b32 s89, s13, s7
    s_mov_b32 s90, 2457600
    s_branch {lble}
    {lblx}:
    v_lshrrev_b32 v{vt}, 1, v1
    v_mul_u32_u24 v{vt}, 1280, v{vt}
    v_and_b32 v{vdst}, 1, v1
    v_lshl_add_u32 v{vdst}, v{vdst}, 7, v{vt}
    s_and_b32 s45, s2, 4
    s_lshl_b32 s45, s45, 3
    s_add_u32 s44, s44, s45
    s_mul_i32 {soff}, s44, 40960
    s_mov_b32 {sstep}, 256
    s_mov_b32 s88, s4
    s_mov_b32 s89, s5
    s_mov_b32 s90, 2621440
    {lble}:
    s_mov_b32 s91, 0x20000""")
def rotbit(dst):
    a(f"s_xor_b32 {dst}, s84, s85"); a(f"s_and_b32 {dst}, {dst}, {R2}")
a(f"{KN}:")
if STAMP: a("s_memrealtime s[66:67]"); a("s_memtime s[68:69]")
a("""v_readfirstlane_b32 s22, v0
s_load_dwordx8 s[4:11], s[0:1], 0
s_load_dwordx8 s[12:19], s[0:1], 32
s_load_dwordx4 s[76:79], s[0:1], 64
s_lshr_b32 s3, s2, 8
s_cbranch_scc1 L_END
s_lshr_b32 s22, s22, 6
s_cmp_eq_u32 s22, 3
s_cbranch_scc1 L_HOP
s_cmp_lt_u32 s22, 4
s_cbranch_scc1 L_COMPUTE""")
ids()
a("""v_lshrrev_b32 v3, 3, v1
v_mul_u32_u24 v3, 2560, v3
v_lshrrev_b32 v4, 4, v0
v_xor_b32 v4, v4, v1
v_xor_b32 v4, 4, v4
v_and_b32 v4, 7, v4
v_lshl_add_u32 v11, v4, 4, v3
s_and_b32 s64, s22, 3
s_lshr_b32 s44, s21, 1
s_or_b32 s45, s44, s64
s_cselect_b32 s52, -20480, 0
s_lshl_b32 s44, s44, 8
s_and_b32 s45, s21, 1
s_add_u32 s44, s44, s45
s_lshl_b32 s45, s64, 4
s_add_u32 s44, s44, s45
s_mul_i32 s47, s44, 1280
s_lshl_b32 s45, s23, 7
s_add_u32 s47, s47, s45
s_lshl_b32 s53, s64, 10
s_mov_b32 s30, 2621440
s_mov_b32 s31, 0x20000
s_mov_b32 s27, s31
s_setprio 2
v_mul_u32_u24 v3, 6554, v1
v_lshrrev_b32 v3, 16, v3
s_branch L_LD0
L_HOP:
s_branch L_COMPUTE
L_LD0:
v_mul_u32_u24 v4, 1120, v3
v_lshl_add_u32 v10, v1, 4, v4
s_and_b32 s46, s20, 7
s_mul_i32 s46, s46, 160
s_lshl_b32 s44, s23, 2
s_add_u32 s44, s44, s64
s_mul_i32 s44, s44, 61440
s_add_u32 s46, s46, s44
s_mul_i32 s48, s64, 7680
s_mov_b32 s49, 0
s_mov_b32 s50, 0
s_mov_b32 s26, 2457600
s_cmp_ge_u32 s20, 8
s_waitcnt lgkmcnt(0)
s_cselect_b32 s24, s12, s6
s_cselect_b32 s25, s13, s7
s_mov_b32 s28, s4
s_mov_b32 s29, s5""")
stamp0(a); stamp(a, 2)
a("L_LD_ISSUE:")
a(f"s_add_u32 m0, s53, {XOFF + 1024}"); a("s_add_u32 s51, s47, s52"); a(f"buffer_load_dwordx4 v11, s[28:31], s51 offen {XNT}lds")
for qq in range(1, 4):
    a(f"s_add_u32 m0, s53, {XOFF + 1024 + 4096*qq}"); a(f"s_add_u32 s51, s47, {(64*qq-16)*1280}"); a(f"buffer_load_dwordx4 v11, s[28:31], s51 offen {XNT}lds")
a("s_cmp_lg_u32 s64, 0"); a("s_cbranch_scc1 L_LD_W")
a(f"s_add_u32 m0, s53, {XOFF + 1024 + 4096*4}"); a(f"s_add_u32 s51, s47, {(64*4-16)*1280}"); a(f"buffer_load_dwordx4 v11, s[28:31], s51 offen {XNT}lds")
a("L_LD_W:")
a("s_mov_b32 exec_hi, 0x0fffffff")
for qq in range(8):
    r = 2 * qq; k = (r & 0x33) | ((r & 4) << 1) | ((r & 8) >> 1)
    a(f"s_add_u32 m0, s48, {960*qq}"); a(f"s_add_u32 s51, s46, {k*3840}"); a(f"buffer_load_dwordx4 v10, s[24:27], s51 offen {WNT}lds")
a(f"""s_mov_b32 exec_hi, -1
s_mov_b32 s63, {STAGE}
s_add_u32 s23, s23, 1
s_cmp_eq_u32 s23, 10
s_cselect_b32 s23, 0, s23
s_cselect_b32 s51, -9, 1
s_mul_i32 s44, s51, 245760
s_add_u32 s46, s46, s44
s_lshl_b32 s44, s51, 7
s_add_u32 s47, s47, s44
s_add_u32 s49, s49, 1
s_cmp_eq_u32 s49, 3
s_cselect_b32 s51, {(-2*STAGE) & 0xffffffff}, s63
s_cselect_b32 s49, 0, s49
s_add_u32 s48, s48, s51
s_add_u32 s53, s53, s51
s_add_u32 s50, s50, 1""")
def lstamp(base):
    if STAMP == 1: a("s_memtime s[68:69]"); a("s_waitcnt lgkmcnt(0)"); a(f"s_add_u32 m0, s50, {base}"); a(f"v_writelane_b32 v{SV}, s68, m0")
lstamp(9)
a(f"""s_cmp_eq_u32 s50, {SA}
s_cbranch_scc1 L_SIDE_A
L_SA_RET:
s_cmp_lt_u32 s50, 2
s_cbranch_scc1 L_LD_PRE0
s_cmp_eq_u32 s50, {SB}
s_cbranch_scc1 L_TOK_A
s_cmp_eq_u32 s50, {SB+2}
s_cbranch_scc1 L_TOK_B
s_cmp_eq_u32 s50, 10
s_cbranch_scc1 L_WOF_A""")
a("L_LD_WAIT:")
a("s_waitcnt vmcnt(12)")
a("L_LD_BAR:")
lstamp(18)
if "nobar" in XP: a("s_cmp_lg_u32 s50, 2"); a("s_cbranch_scc1 L_LD_ISSUE")
a("s_barrier")
if STAMP == 1: a("s_memrealtime s[68:69]"); a("s_waitcnt lgkmcnt(0)"); a(f"s_add_u32 m0, s50, 38"); a(f"v_writelane_b32 v{SV}, s68, m0")
a("L_LD_PRE:")
if PP:
    a("s_cmp_ge_u32 s64, 2"); a("s_cbranch_scc1 L_LD_ISSUE")
    if STG == 1:
        for n in (1, 2):
            mask = sum(1 << c for c in range(1, 10) if int(PP[c]) >= n)
            if mask:
                a(f"s_bitcmp1_b32 {mask}, s50"); a("s_cbranch_scc0 L_LD_ISSUE")
                a("buffer_load_dword v41, v40, s[88:91], s92 offen"); a("s_add_u32 s92, s92, s93")
    else:
        a("s_bitcmp1_b32 s94, s50"); a("s_cbranch_scc0 L_LD_ISSUE")
        a("s_mov_b32 s44, s92")
        for n in range(STG):
            a("buffer_load_dword v41, v40, s[88:91], s44 offen")
            if n < STG - 1: a("s_add_u32 s44, s44, s95")
        a(f"s_mul_i32 s44, s93, {STG}"); a("s_add_u32 s92, s92, s44")
a("s_branch L_LD_ISSUE")
a("L_LD_PRE0:")
if PP:
    pf_setup("s_cmp_eq_u32 s64, 1", 40, 41, "s92", "s93", "L_LPX", "L_LPE")
    a(f"s_mul_i32 s44, s93, {max(int(PP[0]), 1)}"); a("s_add_u32 s92, s92, s44")
    if STG > 1:
        pos = [c for c in range(1, 10) if PP[c] != "0"]
        a("s_cmp_eq_u32 s64, 1"); a("s_mov_b32 s95, 40960"); a("s_cselect_b32 s95, 15360, s95")
        a(f"s_bfe_u32 s45, s2, 0x{(STG.bit_length()-1):x}0003")
        a("s_mul_i32 s44, s45, s95"); a("s_sub_u32 s92, s92, s44"); a("s_mul_i32 s44, s45, s93"); a("s_add_u32 s92, s92, s44")
        a("s_mov_b32 s94, 0")
        for g_ in range(STG):
            mask = sum(1 << c for k, c in enumerate(pos) if k % STG == g_)
            a(f"s_cmp_eq_u32 s45, {g_}"); a(f"s_cselect_b32 s94, {mask}, s94")
a("s_branch L_LD_PRE")
a("L_SIDE_A:")
a("""s_mov_b32 s56, 0
s_sub_u32 s44, s64, 2
s_lshl_b32 s57, s44, 8
s_add_u32 s57, s57, s2
s_cmp_ge_u32 s57, 320
s_cbranch_scc1 L_SA_RET
s_mov_b32 s56, 1
s_mov_b32 s39, 0x20000
s_and_b32 s45, s57, 7
s_lshr_b32 s44, s57, 3
s_mul_i32 s58, s44, 52
s_lshr_b32 s58, s58, 8
s_mul_i32 s59, s58, 5
s_sub_u32 s59, s44, s59
s_cmp_ge_u32 s58, 4
s_cselect_b32 s36, s14, s8
s_cselect_b32 s37, s15, s9
s_mov_b32 s38, 819200
s_and_b32 s58, s58, 3
s_mul_i32 s58, s58, 160
s_mul_i32 s60, s59, 40
s_cmp_eq_u32 s59, 4
s_cselect_b32 s60, 16, s60
s_cselect_b32 s54, 80, 20
s_cselect_b32 s55, 20, 4
s_add_u32 s58, s58, s60
s_mul_i32 s58, s58, 1280
s_mul_i32 s60, s45, 160
s_add_u32 s58, s58, s60
s_mul_i32 s54, s54, 1280
s_mul_i32 s55, s55, 1280""")
a(f"s_mul_i32 s62, s64, 5120"); a(f"s_add_u32 s62, s62, {SCR_LDS - 10240}")
a("s_mov_b32 exec_hi, 0xff")
for g in range(4):
    for jh in range(2):
        a(f"s_add_u32 m0, s62, {(16*(g>>1) + 8*jh + 4*(g&1))*160}")
        if jh == 0: a("s_add_u32 s51, s58, s54"); a(f"buffer_load_dwordx4 v10, s[36:39], s58 offen {SNT}lds")
        else: a("s_add_u32 s58, s58, s55"); a(f"buffer_load_dwordx4 v10, s[36:39], s51 offen {SNT}lds")
a("s_mov_b32 exec_hi, -1")
a(f"""s_mul_i32 s61, s45, 204800
s_mul_i32 s58, s44, 5120
s_add_u32 s61, s61, s58
s_add_u32 s61, s61, {WS_WOT}
""")
if SA < 2: a("s_branch L_LD_PRE0")
else: a("s_waitcnt vmcnt(20)"); a("s_branch L_LD_BAR")
a("L_SIDE_B:")
if SB == SA + 1: a("s_waitcnt vmcnt(13)")
a("""v_lshrrev_b32 v16, 5, v1
v_lshlrev_b32 v16, 4, v16
v_bfe_u32 v17, v1, 4, 1
v_lshl_add_u32 v16, v17, 2, v16
v_bfe_u32 v17, v1, 2, 2
v_add_u32 v16, v16, v17
v_mul_u32_u24 v16, 160, v16
v_add_u32 v16, s62, v16
v_and_b32 v17, 3, v1
v_lshl_add_u32 v18, v17, 4, v16
v_lshl_add_u32 v19, v17, 3, v16""")
for T in range(5):
    for j in range(2):
        if T < 4: a(f"ds_read_b64_tr_b16 v[{20+4*T+2*j}:{21+4*T+2*j}], v18 offset:{j*1280 + 64*(T>>1) + 8*(T&1)}")
        else: a(f"ds_read_b64_tr_b16 v[{20+4*T+2*j}:{21+4*T+2*j}], v19 offset:{j*1280 + 128}")
a("s_waitcnt lgkmcnt(0)")
for T in range(4): a(f"buffer_store_dwordx4 v[{20+4*T}:{23+4*T}], v12, s[32:35], s61 offen offset:{1024*T} sc1")
a("s_add_u32 s61, s61, 4096")
a(f"buffer_store_dwordx4 v[36:39], v12, s[32:35], s61 offen sc1")
a("s_waitcnt vmcnt(18)"); a("s_branch L_LD_BAR")
a("L_TOK_A:")
srd_ws_dbg()
a("""v_lshlrev_b32 v12, 4, v1
v_mov_b32 v13, 0
s_mov_b64 exec, 1
buffer_load_dword v15, v13, s[40:43], 0 offen sc1
s_mov_b64 exec, -1
s_cmp_lg_u32 s56, 0
s_cbranch_scc1 L_SIDE_B
s_waitcnt vmcnt(13)
s_branch L_LD_BAR""")
a("L_TOK_B:")
srd_ws_dbg()
a(f"""s_mov_b32 s60, 0
v_mov_b32 v13, 0
L_TOK_CHK:
v_readlane_b32 s75, v15, 0
s_add_u32 s60, s60, 1
s_cmp_lg_u32 s75, 0
s_cbranch_scc1 L_TOK_OK
s_cmp_ge_u32 s60, {SPIN_MAX}
s_cbranch_scc1 L_TOK_OK
s_sleep 4
s_mov_b64 exec, 1
buffer_load_dword v15, v13, s[40:43], 0 offen sc1
s_mov_b64 exec, -1
s_waitcnt vmcnt(0)
s_branch L_TOK_CHK
L_TOK_OK:
v_mov_b32 v14, {TOK_LDS}
v_mov_b32 v15, s75
ds_write_b32 v14, v15
s_cmp_eq_u32 s56, 0
s_waitcnt lgkmcnt(0)
s_cbranch_scc1 L_LD_WAIT
s_and_b32 s45, s57, 7
s_lshl_b32 s45, s45, 13
s_lshr_b32 s44, s57, 3
s_lshl_b32 s44, s44, 7
s_add_u32 s45, s45, s44
s_add_u32 s45, s45, {WS_FW}
v_lshlrev_b32 v13, 2, v1
s_mov_b32 exec_hi, 0
buffer_store_dword v15, v13, s[32:35], s45 offen sc1
s_mov_b32 exec_hi, -1
s_waitcnt vmcnt(13)
s_branch L_LD_BAR""")
a("L_WOF_A:")
srd_ws_dbg()
consumer_ids()
a(f"""s_lshl_b32 s59, s84, 13
s_add_u32 s59, s59, {WS_FW}
v_lshlrev_b32 v13, 7, v1
v_lshlrev_b32 v12, 4, v1
s_mov_b32 exec_hi, 0xff
buffer_load_dword v14, v13, s[32:35], s59 offen sc1
s_mov_b32 s60, 0
s_waitcnt vmcnt(13)""")
lstamp(18)
if "nobar" not in XP: a("s_barrier")
a(f"""L_WO_POLL:
s_waitcnt vmcnt(0)
v_cmp_ne_u32 vcc, s75, v14
s_cbranch_vccz L_WO_OK
s_add_u32 s60, s60, 1
s_cmp_ge_u32 s60, {SPIN_MAX}
s_cbranch_scc1 L_WO_OK
s_sleep 4
buffer_load_dword v14, v13, s[32:35], s59 offen sc1
s_branch L_WO_POLL
L_WO_OK:
s_mov_b32 exec_hi, -1
s_setprio 0""")
stamp(a, 29)
CL = {"S1": (0, 24, 49152, 24576), "S2": (24, 14, 98304, 14336), "S0": (38, 24, 0, 24576), "TOP": (62, 8, 147456, 8192),
      "R1": (70, 20, 49152, 24576), "X": (90, 10, XCH, 10240)}
a(f"""s_mul_i32 s58, s84, 204800
s_add_u32 s58, s58, {WS_WOT}
s_lshr_b32 s44, s64, 1
s_and_b32 s45, s64, 1
s_lshl_b32 s45, s45, 10
s_mul_i32 s59, s44, 102400
s_add_u32 s59, s59, s58
s_add_u32 s59, s59, s45""")
rotbit("s54"); a("s_mul_i32 s54, s54, 51200"); a("s_sub_u32 s55, s59, s54"); a("s_add_u32 s59, s59, s54")
def dma_class(nm, lo=0, hi=None):
    l0, n, base, delta = CL[nm]
    a(f"s_mul_i32 s53, s44, {delta}"); a("s_add_u32 s53, s53, s45")
    for j in range(lo, n if hi is None else hi, 2):
        a(f"s_add_u32 m0, s53, {base + j*1024}"); a(f"s_add_u32 s51, {'s59' if l0 + j < 50 else 's55'}, {(l0 + j)*1024}")
        a(f"buffer_load_dwordx4 v12, s[32:35], s51 offen sc1 lds")
dma_class("S1", 0, NS1)
if "nobar" not in XP: a("s_barrier")
dma_class("S1", NS1); dma_class("S2")
a("s_waitcnt vmcnt(7)")
stamp(a, 30)
a("s_barrier")
dma_class("S0"); dma_class("TOP")
TOK = 253
a(f"v_mov_b32 v{TOK}, s75")
a("s_branch L_P2_PRE")
a("L_COMPUTE:")
ev(a, "start")
a(f"s_setprio {OPT.get('cprio', 3)}")
ids()
a("s_waitcnt lgkmcnt(0)")
stamp0(a); stamp(a, 2)
srd_ws_dbg()
a("""s_mov_b32 s39, 0x20000
s_mov_b32 s56, 0
s_cmp_eq_u32 s22, 3
s_cbranch_scc1 L_C_GW
s_cmp_eq_u32 s22, 2
s_cbranch_scc1 L_C_TOK""")
if PP and PP[0] != "0":
    pf_setup("s_cmp_eq_u32 s22, 0", 252, 251, "s57", "s58", "L_CPX", "L_CPE")
    for _ in range(int(PP[0])):
        a("buffer_load_dword v241, v252, s[88:91], s57 offen"); a("s_add_u32 s57, s57, s58")
if COV:
    a("""s_bfe_u32 s44, s2, 0x20003
    s_lshr_b32 s45, s2, 5
    s_cmp_eq_u32 s22, 1
    s_cbranch_scc1 L_C_CW
    s_mov_b32 s36, s4
    s_mov_b32 s37, s5
    s_mov_b32 s38, 2621440
    s_lshr_b32 s57, s44, 1
    s_mul_i32 s57, s57, 5
    s_add_u32 s57, s57, s45
    s_add_u32 s57, s57, 2
    s_sub_u32 s58, s57, 10
    s_cselect_b32 s57, s57, s58
    s_lshl_b32 s57, s57, 7
    s_lshr_b32 s58, s21, 1
    s_lshl_b32 s58, s58, 8
    s_and_b32 s59, s21, 1
    s_add_u32 s58, s58, s59
    s_and_b32 s59, s44, 1
    s_lshl_b32 s59, s59, 7
    s_add_u32 s59, s59, s58
    s_mul_i32 s59, s59, 1280
    s_add_u32 s57, s57, s59
    v_mul_u32_u24 v252, 2560, v1
    s_mov_b32 s56, 1
    s_branch L_C_SETUP
    L_C_CW:
    s_cmp_ge_u32 s20, 8
    s_cselect_b32 s36, s12, s6
    s_cselect_b32 s37, s13, s7
    s_mov_b32 s38, 2457600
    s_lshr_b32 s57, s2, 3
    s_cmp_ge_u32 s57, 12
    s_cbranch_scc1 L_C_SETUP
    s_mul_i32 s58, s57, 81920
    s_cmp_ge_u32 s57, 6
    s_cselect_b32 s59, 0, 512
    s_add_u32 s57, s58, s59
    s_add_u32 s57, s57, 1474560
    s_and_b32 s58, s2, 1
    s_mul_i32 s58, s58, 640
    s_add_u32 s57, s57, s58
    v_mul_u32_u24 v252, 1280, v1
    s_mov_b32 s56, 1""")
a("s_branch L_C_SETUP")
a("L_C_GW:")
a(f"""s_mov_b32 s36, s16
s_mov_b32 s37, s17
s_mov_b32 s38, 1280
v_lshlrev_b32 v140, 4, v1
s_mov_b32 m0, {GW_LDS}
v_mov_b64 v[144:145], 0
buffer_load_dwordx4 v140, s[36:39], 0 offen lds
buffer_load_dwordx4 v140, s[36:39], 0 offen offset:1024 lds
v_mov_b64 v[146:147], 0
ds_write_b128 v140, v[144:147] offset:{XOFF}
v_add_u32 v140, {STAGE}, v140
ds_write_b128 v140, v[144:147] offset:{XOFF}
v_add_u32 v140, {STAGE}, v140
ds_write_b128 v140, v[144:147] offset:{XOFF}
s_branch L_C_SETUP""")
a("L_C_TOK:")
a("""s_cmp_lg_u32 s2, 0
s_cbranch_scc1 L_C_CPF
s_memrealtime s[44:45]
v_mov_b32 v147, 0
s_waitcnt lgkmcnt(0)
s_or_b32 s44, s44, 1
v_mov_b32 v146, s44
s_mov_b64 exec, 1
buffer_atomic_cmpswap v[146:147], v147, s[40:43], 0 offen sc1
s_mov_b64 exec, -1
L_C_CPF:
s_getpc_b64 s[70:71]
L_PC:
s_sub_u32 s70, s70, L_PC - L_SIDE_B
s_subb_u32 s71, s71, 0
v_lshlrev_b32 v140, 7, v1
global_load_dword v241, v140, s[70:71]
v_add_u32 v140, 8192, v140
v_cmp_gt_u32 vcc, CODE_END - L_SIDE_B - 4, v140
s_and_saveexec_b64 s[72:73], vcc
s_cbranch_execz L_NOPF
global_load_dword v241, v140, s[70:71]
L_NOPF:
s_mov_b64 exec, s[72:73]""")
a("L_C_SETUP:")
if COV == 2:
    a("s_cmp_eq_u32 s56, 0"); a("s_cbranch_scc1 L_C_S2")
    a("buffer_load_dword v241, v252, s[36:39], s57 offen")
    a("L_C_S2:")
stamp(a, 3)
VWA, VWB, VX0, VX1, VGX0, VGX1, VGW = 2, 3, 4, 5, 6, 7, 240
ACCQ, ACCK, ACCV, ACCH = 8, 48, 88, 128
RING, XB, GX = 140, 180, 204
MC, MP, MP0, AM, ONES = 220, 224, 228, 232, 236
def acc(seg, t, T): return (ACCQ, ACCK, ACCV)[seg] + t * 20 + T * 4
a("s_setprio 0")
a(f"""v_lshrrev_b32 v140, 4, v1
v_and_b32 v141, 15, v1
v_lshrrev_b32 v142, 5, v1
v_lshlrev_b32 v142, 4, v142
v_and_b32 v143, 1, v140
v_lshl_add_u32 v142, v143, 2, v142
v_lshrrev_b32 v143, 2, v141
v_add_u32 v142, v142, v143
v_mul_u32_u24 v145, 480, v142
v_and_b32 v143, 3, v141
v_lshl_add_u32 v{VWA}, v143, 3, v145
v_mul_u32_u24 v144, 40, v143
v_add3_u32 v{VWB}, v145, v144, 32
v_lshrrev_b32 v144, 1, v141
v_xor_b32 v144, v144, v140
v_lshlrev_b32 v144, 4, v144
v_lshl_add_u32 v{VX0}, v141, 7, v144
v_xor_b32 v{VX1}, 64, v{VX0}
s_and_b32 s44, s20, 7
s_lshl_b32 s44, s44, 11
v_add_u32 v{VGX0}, s44, v{VX0}
v_add_u32 v{VGX1}, s44, v{VX1}
v_lshlrev_b32 v{VGW}, 4, v140
s_lshl_b32 s44, s23, 7
s_add_u32 s44, s44, {GW_LDS}
v_add_u32 v{VGW}, s44, v{VGW}""")
a(f"s_mov_b32 s44, {NEG}")
a(f"v_mov_b32 v146, s44")
a("s_lshr_b32 s45, s21, 1"); a("s_or_b32 s45, s45, s22")
a("v_lshlrev_b32 v145, 2, v140"); a("v_sub_u32 v145, v141, v145")
for r in range(4): a(f"v_subrev_u32 v{150+r}, {r}, v145")
for r in range(4):
    a(f"v_cmp_gt_u32 vcc, 8, v{150+r}"); a(f"v_cmp_gt_i32 s[72:73], -8, v{150+r}")
    a(f"v_mov_b32 v{ONES+r}, 0x3f803f80")
    a(f"v_cndmask_b32 v{MC+r}, v146, 0, vcc"); a(f"v_cndmask_b32 v{MP+r}, v146, 0, s[72:73]")
a("s_cmp_eq_u32 s45, 0"); a("s_cselect_b64 vcc, -1, 0")
for r in range(4): a(f"v_cndmask_b32 v{MP0+r}, v{MP+r}, v146, vcc")
a("s_mov_b32 s44, 0xffff0000")
for h in range(2):
    a(f"v_ashrrev_i32 v154, 31, v{150+2*h}"); a(f"v_ashrrev_i32 v155, 31, v{151+2*h}")
    a(f"v_bfi_b32 v{AM+h}, s44, v155, v154"); a(f"v_not_b32 v{AM+2+h}, v{AM+h}")
a(f"""s_mov_b64 s[48:49], 0xffff
s_mov_b32 s50, 0xffff0000
s_mov_b32 s51, 0
s_mov_b32 s52, 0
s_mov_b32 s53, 0xffff
s_mov_b32 s54, 0
s_mov_b32 s55, 0xffff0000
s_mov_b32 s63, {STAGE}
s_mov_b32 s74, 128""")
for r in range(ACCQ, ACCH + 12, 2): a(f"v_mov_b64 v[{r}:{r+1}], 0")
a("s_waitcnt vmcnt(0) lgkmcnt(0)")
stamp(a, 4)
if COV in (1, 3):
    a("s_cmp_eq_u32 s56, 0"); a("s_cbranch_scc1 L_C_GO")
    if COV == 3: a("s_setprio 3")
    a("buffer_load_dword v241, v252, s[36:39], s57 offen")
a("s_setprio 0")
a("L_C_GO:")
a("""s_mov_b32 s44, 0
s_mov_b32 s45, 0""")
for w in range(1, 4):
    a(f"s_cmp_eq_u32 s22, {w}"); a(f"s_cbranch_scc1 L_W{w}")
HALO = [[(1,0),(1,1),(1,2)], [(1,3),(1,4),(2,0)], [(2,1),(2,2)], [(2,3),(2,4)]]
D = 5
def istep(f): return f - 5 if f <= 14 else (f - 6 if f <= 21 else f - 7)
for w in range(4):
    gate = (w == 3)
    q = []
    def rdW(f):
        ks, seg, T = f // 15, (f % 15) // 5, f % 5
        d = RING + (f % 10) * 4
        if "nods" in XP: return [("s_nop 0", ("W", f))] * 2
        return [(f"ds_read_b64_tr_b16 v[{d+2*j}:{d+2*j+1}], v{VWA if T < 4 else VWB} offset:{seg*160 + ks*15360 + j*3840 + (40*T if T < 4 else 0)}", ("W", f)) for j in range(2)]
    def rdX(ks):
        o = []
        for n, tile in enumerate((1 + 2 * w, 2 + 2 * w, 0)):
            d = XB + (ks * 3 + n) * 4
            o.append((f"ds_read_b128 v[{d}:{d+3}], v{(VX0, VX1)[ks]} offset:{XOFF + tile*2048}", ("X", ks)))
        if gate:
            d = GX + ks * 8
            o.append((f"ds_read_b128 v[{d}:{d+3}], v{(VGX0, VGX1)[ks]} offset:{XOFF + 2048}", ("X", ks)))
            o.append((f"ds_read_b128 v[{d+4}:{d+7}], v{VGW} offset:{ks*64}", ("X", ks)))
        return o
    def wait(b, tags):
        last = max(i for i, t in enumerate(q) if t in tags)
        b(f"s_waitcnt lgkmcnt({min(len(q) - 1 - last, 15)})")
    def mm(f):
        ks, seg, T = f // 15, (f % 15) // 5, f % 5
        wf = vr(RING + (f % 10) * 4); o = []
        def one(dst, xf):
            o.append(f"{MF} {vr(dst)}, {wf}, {xf}, {vr(dst)}" if seg < 2 else f"{MF} {vr(dst)}, {xf}, {wf}, {vr(dst)}")
        one(acc(seg, 0, T), vr(XB + (ks * 3) * 4)); one(acc(seg, 1, T), vr(XB + (ks * 3 + 1) * 4))
        if (seg, T) in HALO[w]: one(ACCH + 4 * HALO[w].index((seg, T)), vr(XB + (ks * 3 + 2) * 4))
        if gate and seg == 0 and T == 2:
            d = GX + ks * 8
            o.append(f"{MF} {vr(ACCH+8)}, {vr(d+4)}, {vr(d)}, {vr(ACCH+8)}")
        return o
    def weave(b, ms, fs, lastless=True):
        n = len(ms); k = len(fs)
        cnt = [0] * n
        for i in range(k):
            load = [cnt[j] + (1 if (lastless and j == n - 1) else 0) for j in range(n)]
            cnt[load.index(min(load))] += 1
        it = iter(fs)
        for m_, c_ in zip(ms, cnt):
            b(m_)
            for _ in range(c_):
                t = next(it)
                b(t[0])
                if t[1] is not None: q.append(t[1])
    FA = {s: [] for s in range(25, 30)}
    x0 = rdX(0)
    FA[25] = x0[:2] + rdW(0); FA[26] = x0[2:4] + rdW(1); FA[27] = x0[4:] + rdW(2); FA[28] = rdW(3); FA[29] = rdW(4)
    FB = {s: [] for s in range(25)}
    for f in range(D, 30): FB[istep(f)] += rdW(f)
    x1 = rdX(1)
    for i, t in enumerate(x1): FB[2 + i].append(t)
    sal = ["s_add_u32 s45, s45, 1", "s_cmp_eq_u32 s45, 3", f"s_cselect_b32 s46, {(-2*STAGE) & 0xffffffff}, s63", "s_cselect_b32 s45, 0, s45"]
    for i, t in enumerate(sal): FB[10 + i].append((t, None))
    if gate:
        sal = ["s_add_u32 s23, s23, 1", "s_cmp_eq_u32 s23, 10", "s_cselect_b32 s23, 0, s23", "s_cselect_b32 s47, -1152, s74"]
        for i, t in enumerate(sal): FB[16 + i].append((t, None))
        FB[20].append((f"v_add_u32 v{VGW}, s47, v{VGW}", None))
        FB[21].append((f"v_add_u32 v{VGX0}, s46, v{VGX0}", None)); FB[22].append((f"v_add_u32 v{VGX1}, s46, v{VGX1}", None))
    FB[20].append((f"v_add_u32 v{VX0}, s46, v{VX0}", None)) if not gate else FB[14].append((f"v_add_u32 v{VX0}, s46, v{VX0}", None))
    FB[23] += [(f"v_add_u32 v{VX1}, s46, v{VX1}", None), (f"v_add_u32 v{VWA}, s46, v{VWA}", None), (f"v_add_u32 v{VWB}, s46, v{VWB}", None)]
    FB[24] += [("s_add_u32 s44, s44, 1", None), ("s_cmp_eq_u32 s44, 10", None)]
    pre = Asm(); pa = Asm(); pb = Asm(); tail = Asm()
    stamp(pre, 5)
    pre("s_barrier")
    if STAMP: stamp2(pre, 6, 50)
    ev(pre, "b0")
    for s in range(25, 30):
        for t in FA[s]: pre(t[0])
    q.clear()
    pa("s_waitcnt lgkmcnt(0)"); pa("s_nop 0" if "nobar" in XP else "s_barrier")
    for s in range(25, 30): weave(pa, mm(s), FA[s], lastless=(s == 29))
    pa(f"s_branch L_LB{w}")
    for s in range(25):
        tags = [("W", s)] + ([("X", 0)] if s == 0 else []) + ([("X", 1)] if s == 15 else [])
        wait(pb, tags); weave(pb, mm(s), FB[s])
    pb(f"s_cbranch_scc1 L_T{w}")
    tail(f"v_mov_b32 v{TOK}, {TOK_LDS}")
    tail("s_waitcnt lgkmcnt(0)")
    tail(f"ds_read_b32 v{TOK}, v{TOK}")
    for s in range(25, 30):
        for m_ in mm(s): tail(m_)
    tail(f"v_lshlrev_b32 v{VWA}, 3, v1")
    tail(f"v_add_u32 v{VX1}, {XCH}, v{VWA}")
    if gate:
        z = ACCH + 8
        tail(f"""v_cvt_pk_bf16_f32 v248, v{z}, v{z}
        v_and_b32 v248, 0xffff0000, v248
        v_mul_f32 v248, {LOG2E ^ 0x80000000}, v248
        v_exp_f32 v248, v248
        s_lshl_b32 s46, s21, 3
        v_add_f32 v248, 1.0, v248
        v_rcp_f32 v248, v248
        s_add_u32 s46, s46, s20
        v_cvt_pk_bf16_f32 v248, v248, v248
        v_and_b32 v248, 0xffff0000, v248
        s_lshl_b32 s46, s46, 7
        s_add_u32 s46, s46, {WS_G}
        s_waitcnt lgkmcnt(0)
        v_sub_u32 v249, v{TOK}, v248""")
    for n, (seg, T) in enumerate(HALO[w]):
        tail(f"v_cvt_pk_bf16_f32 v{242+2*n}, v{ACCH+4*n}, v{ACCH+4*n+1}")
        tail(f"v_cvt_pk_bf16_f32 v{243+2*n}, v{ACCH+4*n+2}, v{ACCH+4*n+3}")
        tail(f"ds_write_b64 v{VX1}, v[{242+2*n}:{243+2*n}] offset:{((seg-1)*5+T)*512}")
    if gate:
        tail(f"""s_cmp_ge_u32 s20, 8
        s_cbranch_scc1 L_ATT
        s_mov_b64 exec, 0xffff
        buffer_store_dwordx2 v[248:249], v{VWA}, s[32:35], s46 offen sc1
        s_mov_b64 exec, -1""")
    else: tail("s_branch L_ATT")
    if w > 0: a(f"L_W{w}:")
    a.extend(pre); a(".p2align 3"); a(f"L_LB{w}:"); a.extend(pb); a.extend(pa); a(f"L_T{w}:"); a.extend(tail)
    traces.append(pre.L + pb.L + pa.L + pb.L + tail.L[:14])
a("L_ATT:")
if STAMP: stamp2(a, 30, 51)
ev(a, "gemm")
KOP = {1: 140, 0: 156, -1: 204}
VOP = 172; QOP = {1: 68, 0: 108}
def kop(t, h): return KOP[t] + 4 * h
def vop(T, t): return VOP + 6 * T + 2 * (t + 1)
def qop(t, h): return QOP[t] + 4 * h
g = Asm()
def cvt(d, s): g(f"v_cvt_pk_bf16_f32 v{d}, v{s}, v{s+1}"); g(f"v_cvt_pk_bf16_f32 v{d+1}, v{s+2}, v{s+3}")
def flush(name):
    global g
    o, t = schedule(g.L); print(f"; sched {name}: {len(o)} instrs, est {t} cycles", file=sys.stderr)
    for n, l in enumerate(o):
        if OPT.get("astamp") and n and n % 45 == 0: a(f"s_memtime s[{86 + 2*(n//45)}:{87 + 2*(n//45)}]") if n // 45 < 8 else None
        a(l)
    if OPT.get("astamp"):
        a("s_waitcnt lgkmcnt(0)")
        for k in range(1, 8): a(f"v_writelane_b32 v{SV}, s{86+2*k}, {9+k}")
    g = Asm()
a("s_setprio 2")
a(f"s_mul_i32 s46, s22, 5120"); a(f"v_add_u32 v{VWB}, s46, v{VX1}")
a("s_add_u32 s46, s46, 5120"); a("s_cmp_eq_u32 s22, 3"); a(f"s_cselect_b32 s46, {SCR_LDS - XCH}, s46"); a(f"v_add_u32 v{VX1}, s46, v{VX1}")
for h in range(4):
    cvt(kop(1, h), acc(1, 1, h)); g(f"ds_write_b64 v{VX1}, v[{kop(1,h)}:{kop(1,h)+1}] offset:{h*512}")
cvt(kop(1, 0) + 2, acc(1, 1, 4)); g(f"ds_write_b64 v{VX1}, v[{kop(1,0)+2}:{kop(1,0)+3}] offset:{4*512}")
for T in range(5):
    cvt(vop(T, 1), acc(2, 1, T)); g(f"ds_write_b64 v{VX1}, v[{vop(T,1)}:{vop(T,1)+1}] offset:{(5+T)*512}")
for h in range(1, 4): cvt(kop(1, h) + 2, acc(1, 1, 4))
cvt(250, acc(0, 1, 4))
for h in range(4): cvt(qop(1, h), acc(0, 1, h))
for h in range(4):
    for j in range(2): g(f"v_cndmask_b32 v{qop(1,h)+2+j}, 0, v{250+j}, s[{48+2*h}:{49+2*h}]")
for l in g.L: a(l)
g = Asm()
a(f"s_mov_b32 s46, {CEXP}"); a(f"s_mov_b32 s47, {CEXP}")
a("s_lshl_b32 s56, s21, 3"); a("s_lshl_b32 s57, s22, 1"); a("s_add_u32 s56, s56, s57")
a(f"s_mul_i32 s56, s56, {OTT}"); a(f"s_mul_i32 s57, s20, {OBLK}"); a("s_add_u32 s56, s56, s57")
a(f"s_add_u32 s57, s56, {OTT}")
stamp(a, 31)
a("s_waitcnt lgkmcnt(0)"); a("s_barrier")
stamp(a, 32)
for h in range(4):
    g(f"ds_read_b64 v[{kop(-1,h)}:{kop(-1,h)+1}], v{VWB} offset:{h*512}")
    g(f"ds_read_b64 v[{kop(-1,h)+2}:{kop(-1,h)+3}], v{VWB} offset:{4*512}")
for T in range(5): g(f"ds_read_b64 v[{vop(T,-1)}:{vop(T,-1)+1}], v{VWB} offset:{(5+T)*512}")
g("@wait")
g(f"v_lshlrev_b32 v{VX0}, 4, v1"); g(f"v_mul_u32_u24 v{VWA}, 12, v1")
for h in range(4): cvt(kop(0, h), acc(1, 0, h)); cvt(kop(0, h) + 2, acc(1, 0, 4))
for T in range(5): cvt(vop(T, 0), acc(2, 0, T))
cvt(246, acc(0, 0, 4))
for h in range(4): cvt(qop(0, h), acc(0, 0, h))
for h in range(4):
    for j in range(2): g(f"v_cndmask_b32 v{qop(0,h)+2+j}, 0, v{246+j}, s[{48+2*h}:{49+2*h}]")
SR = {1: [28, 32, 36, 40, 44, 48, 52, 56], 0: [8, 12, 16, 20, 24, 88, 92, 96]}
def dc(t, h): return SR[t][h]
def dp(t, h): return SR[t][4 + h]
MX = {1: 84, 0: 124}; TMP = {1: 128, 0: 132}
OREG = {1: [68, 72, 76, 80, 140, 144, 148, 152, 60, 64, 100, 104], 0: [108, 112, 116, 120, 156, 160, 164, 168, 204, 208, 212, 216]}
def oo(t, h, k): return OREG[t][k * 4 + h]
for t in (1, 0):
    for h in range(4):
        g(f"{MF} {vr(dc(t,h))}, {vr(kop(t,h))}, {vr(qop(t,h))}, {vr(MC)}")
        g(f"{MF} {vr(dp(t,h))}, {vr(kop(t-1,h))}, {vr(qop(t,h))}, {vr(MP if t else MP0)}")
for t in (1, 0):
    for h in range(4):
        for r in range(4): g(f"v_max_f32 v{dc(t,h)+r}, v{dc(t,h)+r}, v{dp(t,h)+r}")
        g(f"v_max3_f32 v{MX[t]+h}, v{dc(t,h)}, v{dc(t,h)+1}, v{dc(t,h)+2}")
        g(f"v_max_f32 v{MX[t]+h}, v{MX[t]+h}, v{dc(t,h)+3}")
    m = MX[t]
    g(f"""v_permlane32_swap_b32 v{m}, v{m+1}
    v_permlane32_swap_b32 v{m+2}, v{m+3}
    v_max_f32 v{m}, v{m}, v{m+1}
    v_max_f32 v{m+2}, v{m+2}, v{m+3}
    v_permlane16_swap_b32 v{m}, v{m+2}
    v_max_f32 v{m}, v{m}, v{m+2}
    v_mul_f32 v{m+2}, s46, v{m}
    v_mul_f32 v{m}, s46, v{m}
    v_permlane16_swap_b32 v{m}, v{m+2}
    v_mov_b32 v{m+1}, v{m}
    v_mov_b32 v{m+3}, v{m+2}
    v_permlane32_swap_b32 v{m}, v{m+1}
    v_permlane32_swap_b32 v{m+2}, v{m+3}""")
    for h in range(4):
        d = dc(t, h); p = dp(t, h)
        if PK:
            mp_ = m + (h & 2); e = h & 1
            for r in (0, 2): g(f"v_pk_fma_f32 v[{d+r}:{d+r+1}], v[{d+r}:{d+r+1}], s[46:47], v[{mp_}:{mp_+1}] op_sel:[0,0,{e}] op_sel_hi:[1,1,{e}] neg_lo:[0,0,1] neg_hi:[0,0,1]")
        else:
            for r in range(4): g(f"v_fma_f32 v{d+r}, v{d+r}, s46, -v{m+h}")
        for r in range(4): g(f"v_exp_f32 v{d+r}, v{d+r}")
        g(f"v_cvt_pk_bf16_f32 v{d}, v{d}, v{d+1}"); g(f"v_cvt_pk_bf16_f32 v{d+2}, v{d+2}, v{d+3}")
        g(f"v_and_b32 v{p}, v{AM}, v{d}"); g(f"v_and_b32 v{p+1}, v{AM+1}, v{d+2}")
        g(f"v_and_b32 v{p+2}, v{AM+2}, v{d}"); g(f"v_and_b32 v{p+3}, v{AM+3}, v{d+2}")
    for h in range(4):
        g(f"{MF} {vr(oo(t,h,2))}, {vr(ONES)}, {vr(dp(t,h))}, 0")
        g(f"{MF} {vr(oo(t,h,0))}, {vr(vop(h,t-1))}, {vr(dp(t,h))}, 0")
        g(f"{MF} {vr(oo(t,h,1))}, {vr(vop(4,t-1))}, {vr(dp(t,h))}, 0")
    for h in range(4):
        o0 = oo(t, h, 0); rc = oo(t, h, 2)
        g(f"v_rcp_f32 v{rc}, v{rc}")
        if PK:
            for r in (0, 2): g(f"v_pk_mul_f32 v[{o0+r}:{o0+r+1}], v[{o0+r}:{o0+r+1}], v[{rc}:{rc+1}] op_sel_hi:[1,0]")
        else:
            for r in range(4): g(f"v_mul_f32 v{o0+r}, v{o0+r}, v{rc}")
        for r in range(4): g(f"v_mul_f32_dpp v{TMP[t]+r}, v{oo(t,h,1)+r}, v{rc} quad_perm:[0,1,2,3] row_mask:{hex(1<<h)} bank_mask:0xf")
        cvt(dc(t, h >> 1) + 2 * (h & 1), o0)
    cvt(dc(t, 2), TMP[t])
    so = "s57" if t else "s56"
    c = dc(t, 2)
    for p in range(2):
        g(f"buffer_store_dwordx4 {vr(dc(t, p))}, v{VX0}, s[32:35], {so} offen offset:{1024*p} sc1")
    d = dc(t, 0); e = dc(t, 1)
    g(f"v_add3_u32 v{c+2}, v{d}, v{d+1}, v{d+2}"); g(f"v_add3_u32 v{c+3}, v{e}, v{e+1}, v{e+2}")
    g(f"v_add3_u32 v{c+2}, v{c+2}, v{d+3}, v{e+3}"); g(f"v_add3_u32 v{c+2}, v{c+2}, v{c+3}, v{TOK}")
    g(f"v_add3_u32 v{c+2}, v{c+2}, v{c}, v{c+1}")
    g(f"buffer_store_dwordx3 {vr(c,3)}, v{VWA}, s[32:35], {so} offen offset:2048 sc1")
flush("attention")
if STAMP: stamp2(a, 35, 52)
ev(a, "att")
WR = 48
OR_ = 128
AC = 224
CK = 244
BA = {"S1": 248, "S2": 249, "S0": 250, "TOP": 251, "R1": 248, "X": 252}
def lring(l):
    k = (l - 20) % 15
    return 8 + 4 * k
a("L_P2_PRE:")
a("v_lshlrev_b32 v2, 4, v1")
a("s_lshr_b32 s64, s22, 2")
a(f"s_mul_i32 s60, s64, {CL['S1'][3]}"); a(f"s_add_u32 s60, s60, {CL['S1'][2]}"); a(f"v_add_u32 v{BA['S1']}, s60, v2")
for l in range(20): a(f"ds_read_b128 {vr(WR+4*l)}, v{BA['S1']} offset:{l*1024}")
for nm in ("S2", "S0", "TOP", "X"):
    a(f"s_mul_i32 s60, s64, {CL[nm][3]}"); a(f"s_add_u32 s60, s60, {CL[nm][2]}"); a(f"v_add_u32 v{BA[nm]}, s60, v2")
consumer_ids()
rotbit("s86")
a(f"""s_and_b32 s65, s22, 3
s_lshl_b32 s67, s85, 2
s_add_u32 s67, s67, s65
s_mul_i32 s80, s67, {OTT}
s_mul_i32 s60, s64, {8*OBLK}
s_add_u32 s80, s80, s60
v_mul_u32_u24 v3, 12, v1
v_add_u32 v3, 2048, v3
v_and_b32 v4, 15, v1
v_lshlrev_b32 v5, 3, v4
s_lshl_b32 s62, s67, 7
s_add_u32 s62, s62, {WS_G}
v_sub_u32 v254, 0, v{TOK}
s_add_u32 s82, s80, {4*OBLK}
s_mul_i32 s86, s86, {4*OBLK}
s_add_u32 s80, s80, s86
s_sub_u32 s82, s82, s86
s_add_u32 s81, s80, {2*OBLK}
s_add_u32 s83, s82, {2*OBLK}
s_mov_b32 s28, s18
s_mov_b32 s29, s19
s_mov_b32 s30, 2621440
s_mov_b32 s31, 0x20000
s_mov_b32 s61, 0""")
stamp(a, 36)
a("s_waitcnt lgkmcnt(0)")
a("s_barrier")
stamp(a, 37)
a("s_cmp_lt_u32 s22, 4"); a("s_cbranch_scc1 L_P2_C")
dma_class("R1"); dma_class("X")
if OWAIT >= 2: a("s_waitcnt vmcnt(0)"); stamp(a, 38)
a("s_branch L_P2_GO")
a("L_P2_C:")
if OWAIT: a("s_waitcnt vmcnt(0)"); stamp(a, 38)
a("s_setprio 0")
a("L_P2_GO:")
if OWAIT >= 2: a("s_barrier")
if OWAIT >= 3: a(f"s_sleep {OWAIT}")
if STAMP: stamp2(a, 39, 53)
ev(a, "bp")
def og(m, e, k): return OR_ + m * 24 + e * 12 + k * 4
def ld_pair(m):
    o = []
    for e in range(2):
        for k in range(2): o.append(f"buffer_load_dwordx4 {vr(og(m, e, k))}, v2, s[32:35], s{80+m} offen offset:{e*OBLK + k*1024} sc1")
        o.append(f"buffer_load_dwordx3 {vr(og(m, e, 2), 3)}, v3, s[32:35], s{80+m} offen offset:{e*OBLK} sc1")
    return o
def chk_pair(m):
    o = []
    for e in range(2):
        d = og(m, e, 0); f = og(m, e, 1); c = og(m, e, 2); x = CK + 2 * e
        o.append([f"v_add3_u32 v{x}, v{d}, v{d+1}, v{d+2}", f"v_add3_u32 v{x+1}, v{f}, v{f+1}, v{f+2}", f"v_add3_u32 v{x}, v{x}, v{d+3}, v{f+3}",
                  f"v_add3_u32 v{x}, v{x}, v{x+1}, v{TOK}", f"v_add3_u32 v{x}, v{x}, v{c}, v{c+1}", f"v_xor_b32 v{x}, v{x}, v{c+2}"])
    o = [o[j][i] for i in range(6) for j in range(2)]
    o += [f"v_or_b32 v{CK}, v{CK}, v{CK+2}", f"v_cmp_ne_u32 vcc, 0, v{CK}"]
    return o
def ofrag(i):
    m, ss = i // 5, i % 5
    return og(m, ss >> 1, ss & 1) if ss < 4 else og(m, 0, 2)
def ld_w(i):
    if i < 4 or i >= 20: return []
    o = []
    for T in range(5):
        l = i * 5 + T
        nm = [k for k, v in CL.items() if v[0] <= l < v[0] + v[1]][0]
        o.append(f"ds_read_b128 {vr(lring(l))}, v{BA[nm]} offset:{(l - CL[nm][0]) * 1024}")
    return o
GLD = "buffer_load_dwordx2 v[6:7], v5, s[32:35], s62 offen sc1"
if PD == 2:
    for x in ld_pair(0) + ld_pair(1): a(x)
    a("s_waitcnt vmcnt(6)")
else:
    for x in ld_pair(0): a(x)
    a("s_waitcnt vmcnt(0)")
    for x in ld_pair(1): a(x)
stamp(a, 33)
for x in chk_pair(0): a(x)
PRE = ["s_lshr_b32 s46, s67, 4", "s_lshl_b32 s46, s46, 8", "s_bfe_u32 s47, s67, 0x10003", "s_add_u32 s46, s46, s47", "s_and_b32 s47, s67, 7",
       "s_lshl_b32 s47, s47, 5", "s_add_u32 s46, s46, s47", "s_mul_i32 s46, s46, 1280", "s_mul_i32 s47, s84, 160", "s_add_u32 s46, s46, s47",
       "s_mul_i32 s60, s65, 5120", f"v_add_u32 v{WR+76}, s60, v2", "v_mul_u32_u24 v4, 2560, v4", f"v_lshrrev_b32 v{WR+79}, 4, v1",
       f"v_lshl_add_u32 v{WR+77}, v{WR+79}, 4, v4", f"v_lshl_add_u32 v{WR+78}, v{WR+79}, 3, v4",
       "s_waitcnt vmcnt(0)", f"v_add3_u32 v{CK}, v6, v7, v254", f"v_cmp_ne_u32 vcc, 0, v{CK}"]
for m in range(4):
    a(f"s_cbranch_vccnz L_RETRY{m}")
    a(f"L_OK{m}:")
    if m == 0: stamp(a, 34)
    a(f"v_mov_b32 v{og(m,0,2)+2}, v{og(m,1,2)}"); a(f"v_mov_b32 v{og(m,0,2)+3}, v{og(m,1,2)+1}")
    lds_ = ld_pair(m + 2) if m < 2 else ([GLD] if m == 2 else [])
    chk = chk_pair(m + 1) if m < 3 else []
    for ss in range(5):
        i = m * 5 + ss
        nxt = ld_w(i + 2)
        w_ = []
        if i >= 4: w_.append(f"lgkmcnt({5 if i < 19 else 0})")
        if PD == 2 and ss == 3 and m < 3: w_.insert(0, f"vmcnt({len(lds_)})")
        if w_: a("s_waitcnt " + " ".join(w_))
        for T in range(5):
            wf = vr(lring(i * 5 + T)) if i >= 4 else vr(WR + (i * 5 + T) * 4)
            a(f"{MF} {vr(AC+4*T)}, {wf}, {vr(ofrag(i))}, {'0' if i == 0 else vr(AC+4*T)}")
            if nxt: a(nxt[T])
            if PD == 2:
                if ss < 3 and T in (1, 3):
                    k = ss * 2 + (T >> 1)
                    if k < len(lds_): a(lds_[k])
                if ss >= 3 and chk:
                    k = (ss - 3) * 5 + T
                    for x in chk[k * 14 // 10:(k + 1) * 14 // 10]: a(x)
            if PD == 3 and ss >= LPOS and T in (1, 3):
                k = (ss - LPOS) * 2 + (T >> 1)
                if k < len(lds_): a(lds_[k])
            if m == 3:
                k = ss * 5 + T
                if k < len(PRE): a(PRE[k])
    if EP and m in (1, 2):
        a(f"s_cmp_eq_u32 s64, {m - 1}"); a(f"s_cbranch_scc1 L_NE1{m}"); a("s_barrier"); a(f"L_NE1{m}:")
    if PD == 3 and m < 3:
        a(f"s_waitcnt vmcnt({len(lds_)})")
        for x in chk: a(x)
    if PD == 1 and m < 3:
        a("s_waitcnt vmcnt(0)")
        for x in lds_: a(x)
        for x in chk: a(x)
if STAMP: stamp2(a, 56, 54)
a("s_cbranch_vccnz L_RETRYG")
a("L_OKG:")
a("s_cmp_eq_u32 s64, 0")
a("s_cbranch_scc1 L_EPI_A")
def epi(send, keep, sc):
    RA, O4, O2 = WR + 76, WR + 77, WR + 78
    for T in send:
        for r in (0, 2): a(f"v_pk_mul_f32 v[{AC+4*T+r}:{AC+4*T+r+1}], v[{AC+4*T+r}:{AC+4*T+r+1}], v[{sc}:{sc+1}] op_sel_hi:[1,0]")
    a("s_barrier")
    for T in send: a(f"ds_write_b128 v{RA}, {vr(AC+4*T)} offset:{T*1024}")
    a("s_waitcnt lgkmcnt(0)"); a("s_barrier")
    for n, T in enumerate(keep): a(f"ds_read_b128 {vr(8+4*n)}, v{RA} offset:{T*1024}")
    for n, T in enumerate(keep):
        a(f"s_waitcnt lgkmcnt({len(keep)-1-n})")
        for r in (0, 2): a(f"v_pk_fma_f32 v[{8+4*n+r}:{8+4*n+r+1}], v[{AC+4*T+r}:{AC+4*T+r+1}], v[{sc}:{sc+1}], v[{8+4*n+r}:{8+4*n+r+1}] op_sel_hi:[1,0,1]")
        a(f"v_cvt_pk_bf16_f32 v{OR_+2*n}, v{8+4*n}, v{8+4*n+1}"); a(f"v_cvt_pk_bf16_f32 v{OR_+2*n+1}, v{8+4*n+2}, v{8+4*n+3}")
        if n == 1: a(f"buffer_store_dwordx4 {vr(OR_)}, v{O4}, s[28:31], s46 offen offset:{32*keep[0]} {SF}")
        if n == 2: a(f"buffer_store_dwordx2 {vr(OR_+4,2)}, v{O2}, s[28:31], s46 offen offset:128 {SF}")
if EP:
    RA, O4, O2 = WR + 76, WR + 77, WR + 78
    a("s_barrier")
    for T in range(5): a(f"ds_read_b128 {vr(72+4*T)}, v{RA} offset:{T*1024}")
    a("v_sub_f32 v6, 1.0, v6"); a("v_cvt_pk_bf16_f32 v6, v6, v6"); a("v_and_b32 v6, 0xffff0000, v6")
    for T in range(5):
        a(f"s_waitcnt lgkmcnt({4-T})")
        for r in (0, 2): a(f"v_pk_fma_f32 v[{72+4*T+r}:{72+4*T+r+1}], v[{AC+4*T+r}:{AC+4*T+r+1}], v[6:7], v[{72+4*T+r}:{72+4*T+r+1}] op_sel_hi:[1,0,1]")
        a(f"v_cvt_pk_bf16_f32 v{OR_+2*T}, v{72+4*T}, v{72+4*T+1}"); a(f"v_cvt_pk_bf16_f32 v{OR_+2*T+1}, v{72+4*T+2}, v{72+4*T+3}")
        if T == 1: a(f"buffer_store_dwordx4 {vr(OR_)}, v{O4}, s[28:31], s46 offen {SF}")
        if T == 3: a(f"buffer_store_dwordx4 {vr(OR_+4)}, v{O4}, s[28:31], s46 offen offset:64 {SF}")
    a(f"buffer_store_dwordx2 {vr(OR_+8,2)}, v{O2}, s[28:31], s46 offen offset:128 {SF}")
    a("s_branch L_FIN")
    a("L_EPI_A:")
    a("s_nop 1")
    for T in range(5):
        for r in (0, 2): a(f"v_pk_mul_f32 v[{AC+4*T+r}:{AC+4*T+r+1}], v[{AC+4*T+r}:{AC+4*T+r+1}], v[6:7] op_sel_hi:[1,0]")
        a(f"ds_write_b128 v{RA}, {vr(AC+4*T)} offset:{T*1024}")
    a("s_waitcnt lgkmcnt(0)"); a("s_barrier")
else:
    a("v_sub_f32 v6, 1.0, v6"); a("v_cvt_pk_bf16_f32 v6, v6, v6"); a("v_and_b32 v6, 0xffff0000, v6")
    epi([0, 1], [2, 3, 4], 6)
    a("s_branch L_FIN")
    a("L_EPI_A:")
    a("s_nop 4")
    epi([2, 3, 4], [0, 1], 6)
ev(a, "end")
if SPIN:
    a("""s_mov_b32 s60, 0
    L_SPIN:
    s_memrealtime s[98:99]
    s_waitcnt lgkmcnt(0)
    s_sub_u32 s98, s98, s96
    s_add_u32 s60, s60, 1
    s_cmp_ge_u32 s60, 20000
    s_cbranch_scc1 L_FIN
    s_cmp_lt_u32 s98, 4000
    s_cbranch_scc1 L_SPIN""")
a("L_FIN:")
if STAMP:
    stamp(a, 57)
    a("s_add_u32 s61, s61, 1"); a(f"v_writelane_b32 v{SV}, s61, 61")
    a("s_waitcnt vmcnt(0)")
    stamp(a, 62); stamp(a, 63, True)
    a(f"s_lshl_b32 s46, s2, 3"); a(f"s_add_u32 s46, s46, s22"); a("s_lshl_b32 s46, s46, 8"); a(f"s_add_u32 s46, s46, {WS_ST}")
    a(f"v_lshlrev_b32 v2, 2, v1")
    a(f"buffer_store_dword v{SV}, v2, s[32:35], s46 offen")
a("L_END:"); a("s_endpgm")
for m in range(4):
    a(f"L_RETRY{m}:")
    a("s_add_u32 s61, s61, 1"); a(f"s_cmp_ge_u32 s61, {SPIN_MAX}"); a(f"s_cbranch_scc1 L_OK{m}")
    a(f"s_sleep {RSLEEP}")
    for x in ld_pair(m): a(x)
    a("s_waitcnt vmcnt(0)")
    for x in chk_pair(m): a(x)
    a(f"s_cbranch_vccnz L_RETRY{m}"); a(f"s_branch L_OK{m}")
a("L_RETRYG:")
a("s_add_u32 s61, s61, 1"); a(f"s_cmp_ge_u32 s61, {SPIN_MAX}"); a("s_cbranch_scc1 L_OKG")
a(f"s_sleep {RSLEEP}")
a("buffer_load_dwordx2 v[6:7], v5, s[32:35], s62 offen sc1"); a("s_waitcnt vmcnt(0)")
a(f"v_add3_u32 v{CK}, v6, v7, v254"); a(f"v_cmp_ne_u32 vcc, 0, v{CK}")
a("s_cbranch_vccnz L_RETRYG"); a("s_branch L_OKG")

l1, _ = fix(a.L)
for tr in traces:
    _, iss_ = fix(tr, verify=True)
    for x in iss_: print("; TRACE HAZARD", x, file=sys.stderr)
print(f"""; gated mix of two dilated sliding-window attention blocks (generated by gen/gen11.py)
; @launch grid=(256,1,1) block=(512,1,1) lds={LDS_TOTAL}
.amdgcn_target "amdgcn-amd-amdhsa--gfx950"
.text
.globl {KN}
.p2align 8
.type {KN},@function""")
print("\n".join(l1))
print("CODE_END:")
print('.section .rodata,"a"')
print(kd(KN, 256, 102, 256))
```

```python
import sys, struct, math
sys.path.insert(0, "gen")
from asmlib import *
NAME = "gated_mix__sliding_local_dilated__sliding_local_dilated__prompt"
KN = NAME + "_kernel"
OPT = dict(a.split("=") for a in sys.argv[1:])
STAMP = int(OPT.get("stamp", 0)); CM = int(OPT.get("cm", 1)); PK = int(OPT.get("pk", 1))
NS1 = int(OPT.get("ns1", 12)); RSLEEP = int(OPT.get("rsleep", 2)); OWAIT = int(OPT.get("owait", 2)); SB = int(OPT.get("sb", 5)); SA = int(OPT.get("sa", 3)); XP = OPT.get("xp", ""); R2 = int(OPT.get("r2", 0)); WNT = "nt " if int(OPT.get("wnt", 0)) else ""; XNT = "nt " if int(OPT.get("xnt", 0)) else ""; SNT = "nt " if int(OPT.get("snt", 0)) else ""; STG = int(OPT.get("stg", 1)); PP = OPT.get("pp", ""); ROT = int(OPT.get("rot", 0 if PP else 1)); EP = 1; STL = int(OPT.get("stl", 60)); TOV = 1; LPOS = int(OPT.get("lpos", 2)); COV = int(OPT.get("cov", 0)); SF = OPT.get("sf", "nt").replace("+", " "); PD = int(OPT.get("pd", 1))
def f2u(x): return struct.unpack("<I", struct.pack("<f", x))[0]
STAGE = 49152; XOFF = 30720
GW_LDS = 147456; TOK_LDS = GW_LDS + 1536; SCR_LDS = 149504; LDS_TOTAL = 163840
XCH = 126976
RED = 98304
OBLK = 2816; OTT = 16 * OBLK
WS_WOT = 0x700000; WS_G = 0x900000; WS_FW = 0x910000; WS_ST = 0x1000000
NEG = f2u(-1e30)
CEXP = f2u(20 ** -0.5 * math.log2(math.e))
LOG2E = f2u(math.log2(math.e))
MF = "v_mfma_f32_16x16x32_bf16"
SPIN_MAX = 1 << 17
SV = 255
def stamp(a, idx, real=False):
    if not STAMP: return
    a(f"{'s_memrealtime' if real else 's_memtime'} s[68:69]"); a("s_waitcnt lgkmcnt(0)"); a(f"v_writelane_b32 v{SV}, s68, {idx}")
SPIN = OPT.get("spin", "")
def ev(a, name):
    if SPIN == name: a("s_memrealtime s[96:97]"); a("s_waitcnt lgkmcnt(0)")
def stamp2(a, idx, ridx):
    stamp(a, idx); stamp(a, ridx, True)
def stamp0(a):
    if STAMP: a(f"v_mov_b32 v{SV}, 0"); a(f"v_writelane_b32 v{SV}, s66, 0"); a(f"v_writelane_b32 v{SV}, s68, 1")

a = Asm()
traces = []
def ids():
    a("""v_and_b32 v1, 63, v0
    s_and_b32 s20, s2, 3
    s_lshl_b32 s20, s20, 2
    s_bfe_u32 s46, s2, 0x20003
    s_add_u32 s20, s20, s46
    s_lshr_b32 s47, s2, 5
    s_and_b32 s21, s2, 4
    s_lshl_b32 s21, s21, 1
    s_add_u32 s21, s21, s47
    s_mul_i32 s23, s46, 5
    s_add_u32 s23, s23, 1
    s_lshr_b32 s23, s23, 1
    s_add_u32 s23, s23, s47
    s_sub_u32 s46, s23, 10""")
    a("s_cselect_b32 s23, s23, s46" if ROT else "s_mov_b32 s23, 0")
def srd_ws_dbg():
    WSO = int(OPT.get("wso", 0)) << 20
    a(f"""s_add_u32 s32, s78, {WSO}
    s_addc_u32 s33, s79, 0
    s_mov_b32 s34, {0x10000000 - WSO}
    s_mov_b32 s35, 0x20000
    s_mov_b32 s40, s76
    s_mov_b32 s41, s77
    s_mov_b32 s42, 256
    s_mov_b32 s43, 0x20000""")
def consumer_ids():
    if CM:
        a("s_bfe_u32 s84, s2, 0x30003"); a("s_and_b32 s85, s2, 7"); a("s_lshl_b32 s85, s85, 2"); a("s_lshr_b32 s86, s2, 6"); a("s_add_u32 s85, s85, s86")
    else:
        a("s_and_b32 s84, s20, 7"); a("s_lshl_b32 s85, s21, 1"); a("s_lshr_b32 s86, s20, 3"); a("s_add_u32 s85, s85, s86")
def pf_setup(isw_scc_cmp, vdst, vt, soff, sstep, lblx, lble):
    a(f"""s_lshr_b32 s44, s2, 3
    {isw_scc_cmp}
    s_cbranch_scc0 {lblx}
    v_mul_u32_u24 v{vt}, 13108, v1
    v_lshrrev_b32 v{vt}, 16, v{vt}
    v_mul_u32_u24 v{vt}, 640, v{vt}
    v_lshl_add_u32 v{vdst}, v1, 7, v{vt}
    s_mul_i32 {soff}, s44, 15360
    s_and_b32 s45, s2, 1
    s_mul_i32 s45, s45, 640
    s_add_u32 {soff}, {soff}, s45
    s_mov_b32 {sstep}, 491520
    s_cmp_ge_u32 s20, 8
    s_cselect_b32 s88, s12, s6
    s_cselect_b32 s89, s13, s7
    s_mov_b32 s90, 2457600
    s_branch {lble}
    {lblx}:
    v_lshrrev_b32 v{vt}, 1, v1
    v_mul_u32_u24 v{vt}, 1280, v{vt}
    v_and_b32 v{vdst}, 1, v1
    v_lshl_add_u32 v{vdst}, v{vdst}, 7, v{vt}
    s_and_b32 s45, s2, 4
    s_lshl_b32 s45, s45, 3
    s_add_u32 s44, s44, s45
    s_mul_i32 {soff}, s44, 40960
    s_mov_b32 {sstep}, 256
    s_mov_b32 s88, s4
    s_mov_b32 s89, s5
    s_mov_b32 s90, 2621440
    {lble}:
    s_mov_b32 s91, 0x20000""")
def rotbit(dst):
    a(f"s_xor_b32 {dst}, s84, s85"); a(f"s_and_b32 {dst}, {dst}, {R2}")
a(f"{KN}:")
if STAMP: a("s_memrealtime s[66:67]"); a("s_memtime s[68:69]")
a("""v_readfirstlane_b32 s22, v0
s_load_dwordx8 s[4:11], s[0:1], 0
s_load_dwordx8 s[12:19], s[0:1], 32
s_load_dwordx4 s[76:79], s[0:1], 64
s_lshr_b32 s3, s2, 8
s_cbranch_scc1 L_END
s_lshr_b32 s22, s22, 6
s_cmp_eq_u32 s22, 3
s_cbranch_scc1 L_HOP
s_cmp_lt_u32 s22, 4
s_cbranch_scc1 L_COMPUTE""")
ids()
a("""v_lshrrev_b32 v3, 3, v1
v_mul_u32_u24 v3, 2560, v3
v_lshrrev_b32 v4, 4, v0
v_xor_b32 v4, v4, v1
v_xor_b32 v4, 4, v4
v_and_b32 v4, 7, v4
v_lshl_add_u32 v11, v4, 4, v3
s_and_b32 s64, s22, 3
s_lshr_b32 s44, s21, 1
s_or_b32 s45, s44, s64
s_cselect_b32 s52, -20480, 0
s_lshl_b32 s44, s44, 8
s_and_b32 s45, s21, 1
s_add_u32 s44, s44, s45
s_lshl_b32 s45, s64, 4
s_add_u32 s44, s44, s45
s_mul_i32 s47, s44, 1280
s_lshl_b32 s45, s23, 7
s_add_u32 s47, s47, s45
s_lshl_b32 s53, s64, 10
s_mov_b32 s30, 2621440
s_mov_b32 s31, 0x20000
s_mov_b32 s27, s31
s_setprio 2
v_mul_u32_u24 v3, 6554, v1
v_lshrrev_b32 v3, 16, v3
s_branch L_LD0
L_HOP:
s_branch L_COMPUTE
L_LD0:
v_mul_u32_u24 v4, 1120, v3
v_lshl_add_u32 v10, v1, 4, v4
s_and_b32 s46, s20, 7
s_mul_i32 s46, s46, 160
s_lshl_b32 s44, s23, 2
s_add_u32 s44, s44, s64
s_mul_i32 s44, s44, 61440
s_add_u32 s46, s46, s44
s_mul_i32 s48, s64, 7680
s_mov_b32 s49, 0
s_mov_b32 s50, 0
s_mov_b32 s26, 2457600
s_cmp_ge_u32 s20, 8
s_waitcnt lgkmcnt(0)
s_cselect_b32 s24, s12, s6
s_cselect_b32 s25, s13, s7
s_mov_b32 s28, s4
s_mov_b32 s29, s5""")
stamp0(a); stamp(a, 2)
a("L_LD_ISSUE:")
a(f"s_add_u32 m0, s53, {XOFF + 1024}"); a("s_add_u32 s51, s47, s52"); a(f"buffer_load_dwordx4 v11, s[28:31], s51 offen {XNT}lds")
for qq in range(1, 4):
    a(f"s_add_u32 m0, s53, {XOFF + 1024 + 4096*qq}"); a(f"s_add_u32 s51, s47, {(64*qq-16)*1280}"); a(f"buffer_load_dwordx4 v11, s[28:31], s51 offen {XNT}lds")
a("s_cmp_lg_u32 s64, 0"); a("s_cbranch_scc1 L_LD_W")
a(f"s_add_u32 m0, s53, {XOFF + 1024 + 4096*4}"); a(f"s_add_u32 s51, s47, {(64*4-16)*1280}"); a(f"buffer_load_dwordx4 v11, s[28:31], s51 offen {XNT}lds")
a("L_LD_W:")
a("s_mov_b32 exec_hi, 0x0fffffff")
for qq in range(8):
    r = 2 * qq; k = (r & 0x33) | ((r & 4) << 1) | ((r & 8) >> 1)
    a(f"s_add_u32 m0, s48, {960*qq}"); a(f"s_add_u32 s51, s46, {k*3840}"); a(f"buffer_load_dwordx4 v10, s[24:27], s51 offen {WNT}lds")
a(f"""s_mov_b32 exec_hi, -1
s_mov_b32 s63, {STAGE}
s_add_u32 s23, s23, 1
s_cmp_eq_u32 s23, 10
s_cselect_b32 s23, 0, s23
s_cselect_b32 s51, -9, 1
s_mul_i32 s44, s51, 245760
s_add_u32 s46, s46, s44
s_lshl_b32 s44, s51, 7
s_add_u32 s47, s47, s44
s_add_u32 s49, s49, 1
s_cmp_eq_u32 s49, 3
s_cselect_b32 s51, {(-2*STAGE) & 0xffffffff}, s63
s_cselect_b32 s49, 0, s49
s_add_u32 s48, s48, s51
s_add_u32 s53, s53, s51
s_add_u32 s50, s50, 1""")
def lstamp(base):
    if STAMP == 1: a("s_memtime s[68:69]"); a("s_waitcnt lgkmcnt(0)"); a(f"s_add_u32 m0, s50, {base}"); a(f"v_writelane_b32 v{SV}, s68, m0")
lstamp(9)
a(f"""s_cmp_eq_u32 s50, {SA}
s_cbranch_scc1 L_SIDE_A
L_SA_RET:
s_cmp_lt_u32 s50, 2
s_cbranch_scc1 L_LD_PRE0
s_cmp_eq_u32 s50, {SB}
s_cbranch_scc1 L_TOK_A
s_cmp_eq_u32 s50, {SB+2}
s_cbranch_scc1 L_TOK_B
s_cmp_eq_u32 s50, 10
s_cbranch_scc1 L_WOF_A""")
a("L_LD_WAIT:")
a("s_waitcnt vmcnt(12)")
a("L_LD_BAR:")
lstamp(18)
if "nobar" in XP: a("s_cmp_lg_u32 s50, 2"); a("s_cbranch_scc1 L_LD_ISSUE")
a("s_barrier")
if STAMP == 1: a("s_memrealtime s[68:69]"); a("s_waitcnt lgkmcnt(0)"); a(f"s_add_u32 m0, s50, 38"); a(f"v_writelane_b32 v{SV}, s68, m0")
a("L_LD_PRE:")
if PP:
    a("s_cmp_ge_u32 s64, 2"); a("s_cbranch_scc1 L_LD_ISSUE")
    if STG == 1:
        for n in (1, 2):
            mask = sum(1 << c for c in range(1, 10) if int(PP[c]) >= n)
            if mask:
                a(f"s_bitcmp1_b32 {mask}, s50"); a("s_cbranch_scc0 L_LD_ISSUE")
                a("buffer_load_dword v41, v40, s[88:91], s92 offen"); a("s_add_u32 s92, s92, s93")
    else:
        a("s_bitcmp1_b32 s94, s50"); a("s_cbranch_scc0 L_LD_ISSUE")
        a("s_mov_b32 s44, s92")
        for n in range(STG):
            a("buffer_load_dword v41, v40, s[88:91], s44 offen")
            if n < STG - 1: a("s_add_u32 s44, s44, s95")
        a(f"s_mul_i32 s44, s93, {STG}"); a("s_add_u32 s92, s92, s44")
a("s_branch L_LD_ISSUE")
a("L_LD_PRE0:")
if PP:
    pf_setup("s_cmp_eq_u32 s64, 1", 40, 41, "s92", "s93", "L_LPX", "L_LPE")
    a(f"s_mul_i32 s44, s93, {max(int(PP[0]), 1)}"); a("s_add_u32 s92, s92, s44")
    if STG > 1:
        pos = [c for c in range(1, 10) if PP[c] != "0"]
        a("s_cmp_eq_u32 s64, 1"); a("s_mov_b32 s95, 40960"); a("s_cselect_b32 s95, 15360, s95")
        a(f"s_bfe_u32 s45, s2, 0x{(STG.bit_length()-1):x}0003")
        a("s_mul_i32 s44, s45, s95"); a("s_sub_u32 s92, s92, s44"); a("s_mul_i32 s44, s45, s93"); a("s_add_u32 s92, s92, s44")
        a("s_mov_b32 s94, 0")
        for g_ in range(STG):
            mask = sum(1 << c for k, c in enumerate(pos) if k % STG == g_)
            a(f"s_cmp_eq_u32 s45, {g_}"); a(f"s_cselect_b32 s94, {mask}, s94")
a("s_branch L_LD_PRE")
a("L_SIDE_A:")
a("""s_mov_b32 s56, 0
s_sub_u32 s44, s64, 2
s_lshl_b32 s57, s44, 8
s_add_u32 s57, s57, s2
s_cmp_ge_u32 s57, 320
s_cbranch_scc1 L_SA_RET
s_mov_b32 s56, 1
s_mov_b32 s39, 0x20000
s_and_b32 s45, s57, 7
s_lshr_b32 s44, s57, 3
s_mul_i32 s58, s44, 52
s_lshr_b32 s58, s58, 8
s_mul_i32 s59, s58, 5
s_sub_u32 s59, s44, s59
s_cmp_ge_u32 s58, 4
s_cselect_b32 s36, s14, s8
s_cselect_b32 s37, s15, s9
s_mov_b32 s38, 819200
s_and_b32 s58, s58, 3
s_mul_i32 s58, s58, 160
s_mul_i32 s60, s59, 40
s_cmp_eq_u32 s59, 4
s_cselect_b32 s60, 16, s60
s_cselect_b32 s54, 80, 20
s_cselect_b32 s55, 20, 4
s_add_u32 s58, s58, s60
s_mul_i32 s58, s58, 1280
s_mul_i32 s60, s45, 160
s_add_u32 s58, s58, s60
s_mul_i32 s54, s54, 1280
s_mul_i32 s55, s55, 1280""")
a(f"s_mul_i32 s62, s64, 5120"); a(f"s_add_u32 s62, s62, {SCR_LDS - 10240}")
a("s_mov_b32 exec_hi, 0xff")
for g in range(4):
    for jh in range(2):
        a(f"s_add_u32 m0, s62, {(16*(g>>1) + 8*jh + 4*(g&1))*160}")
        if jh == 0: a("s_add_u32 s51, s58, s54"); a(f"buffer_load_dwordx4 v10, s[36:39], s58 offen {SNT}lds")
        else: a("s_add_u32 s58, s58, s55"); a(f"buffer_load_dwordx4 v10, s[36:39], s51 offen {SNT}lds")
a("s_mov_b32 exec_hi, -1")
a(f"""s_mul_i32 s61, s45, 204800
s_mul_i32 s58, s44, 5120
s_add_u32 s61, s61, s58
s_add_u32 s61, s61, {WS_WOT}
""")
if SA < 2: a("s_branch L_LD_PRE0")
else: a("s_waitcnt vmcnt(20)"); a("s_branch L_LD_BAR")
a("L_SIDE_B:")
if SB == SA + 1: a("s_waitcnt vmcnt(13)")
a("""v_lshrrev_b32 v16, 5, v1
v_lshlrev_b32 v16, 4, v16
v_bfe_u32 v17, v1, 4, 1
v_lshl_add_u32 v16, v17, 2, v16
v_bfe_u32 v17, v1, 2, 2
v_add_u32 v16, v16, v17
v_mul_u32_u24 v16, 160, v16
v_add_u32 v16, s62, v16
v_and_b32 v17, 3, v1
v_lshl_add_u32 v18, v17, 4, v16
v_lshl_add_u32 v19, v17, 3, v16""")
for T in range(5):
    for j in range(2):
        if T < 4: a(f"ds_read_b64_tr_b16 v[{20+4*T+2*j}:{21+4*T+2*j}], v18 offset:{j*1280 + 64*(T>>1) + 8*(T&1)}")
        else: a(f"ds_read_b64_tr_b16 v[{20+4*T+2*j}:{21+4*T+2*j}], v19 offset:{j*1280 + 128}")
a("s_waitcnt lgkmcnt(0)")
for T in range(4): a(f"buffer_store_dwordx4 v[{20+4*T}:{23+4*T}], v12, s[32:35], s61 offen offset:{1024*T} sc1")
a("s_add_u32 s61, s61, 4096")
a(f"buffer_store_dwordx4 v[36:39], v12, s[32:35], s61 offen sc1")
a("s_waitcnt vmcnt(18)"); a("s_branch L_LD_BAR")
a("L_TOK_A:")
srd_ws_dbg()
a("""v_lshlrev_b32 v12, 4, v1
v_mov_b32 v13, 0
s_mov_b64 exec, 1
buffer_load_dword v15, v13, s[40:43], 0 offen sc1
s_mov_b64 exec, -1
s_cmp_lg_u32 s56, 0
s_cbranch_scc1 L_SIDE_B
s_waitcnt vmcnt(13)
s_branch L_LD_BAR""")
a("L_TOK_B:")
srd_ws_dbg()
a(f"""s_mov_b32 s60, 0
v_mov_b32 v13, 0
L_TOK_CHK:
v_readlane_b32 s75, v15, 0
s_add_u32 s60, s60, 1
s_cmp_lg_u32 s75, 0
s_cbranch_scc1 L_TOK_OK
s_cmp_ge_u32 s60, {SPIN_MAX}
s_cbranch_scc1 L_TOK_OK
s_sleep 4
s_mov_b64 exec, 1
buffer_load_dword v15, v13, s[40:43], 0 offen sc1
s_mov_b64 exec, -1
s_waitcnt vmcnt(0)
s_branch L_TOK_CHK
L_TOK_OK:
v_mov_b32 v14, {TOK_LDS}
v_mov_b32 v15, s75
ds_write_b32 v14, v15
s_cmp_eq_u32 s56, 0
s_waitcnt lgkmcnt(0)
s_cbranch_scc1 L_LD_WAIT
s_and_b32 s45, s57, 7
s_lshl_b32 s45, s45, 13
s_lshr_b32 s44, s57, 3
s_lshl_b32 s44, s44, 7
s_add_u32 s45, s45, s44
s_add_u32 s45, s45, {WS_FW}
v_lshlrev_b32 v13, 2, v1
s_mov_b32 exec_hi, 0
buffer_store_dword v15, v13, s[32:35], s45 offen sc1
s_mov_b32 exec_hi, -1
s_waitcnt vmcnt(13)
s_branch L_LD_BAR""")
a("L_WOF_A:")
srd_ws_dbg()
consumer_ids()
a(f"""s_lshl_b32 s59, s84, 13
s_add_u32 s59, s59, {WS_FW}
v_lshlrev_b32 v13, 7, v1
v_lshlrev_b32 v12, 4, v1
s_mov_b32 exec_hi, 0xff
buffer_load_dword v14, v13, s[32:35], s59 offen sc1
s_mov_b32 s60, 0
s_waitcnt vmcnt(13)""")
lstamp(18)
if "nobar" not in XP: a("s_barrier")
a(f"""L_WO_POLL:
s_waitcnt vmcnt(0)
v_cmp_ne_u32 vcc, s75, v14
s_cbranch_vccz L_WO_OK
s_add_u32 s60, s60, 1
s_cmp_ge_u32 s60, {SPIN_MAX}
s_cbranch_scc1 L_WO_OK
s_sleep 4
buffer_load_dword v14, v13, s[32:35], s59 offen sc1
s_branch L_WO_POLL
L_WO_OK:
s_mov_b32 exec_hi, -1
s_setprio 0""")
stamp(a, 29)
CL = {"S1": (0, 24, 49152, 24576), "S2": (24, 14, 98304, 14336), "S0": (38, 24, 0, 24576), "TOP": (62, 6, 151552, 6144), "TB": (68, 2, 147456, 2048),
      "R1": (70, 24, 49152, 24576), "R2": (94, 6, 98304, 14336)}
a(f"""s_mul_i32 s58, s84, 204800
s_add_u32 s58, s58, {WS_WOT}
s_lshr_b32 s44, s64, 1
s_and_b32 s45, s64, 1
s_lshl_b32 s45, s45, 10
s_mul_i32 s59, s44, 102400
s_add_u32 s59, s59, s58
s_add_u32 s59, s59, s45""")
rotbit("s54"); a("s_mul_i32 s54, s54, 51200"); a("s_sub_u32 s55, s59, s54"); a("s_add_u32 s59, s59, s54")
def dma_class(nm, lo=0, hi=None):
    l0, n, base, delta = CL[nm]
    a(f"s_mul_i32 s53, s44, {delta}"); a("s_add_u32 s53, s53, s45")
    for j in range(lo, n if hi is None else hi, 2):
        a(f"s_add_u32 m0, s53, {base + j*1024}"); a(f"s_add_u32 s51, {'s59' if l0 + j < 50 else 's55'}, {(l0 + j)*1024}")
        a(f"buffer_load_dwordx4 v12, s[32:35], s51 offen sc1 lds")
dma_class("S1", 0, NS1)
if "nobar" not in XP: a("s_barrier")
dma_class("S1", NS1); dma_class("S2"); dma_class("TOP")
a("s_waitcnt vmcnt(7)")
stamp(a, 30)
a("s_barrier")
dma_class("S0"); dma_class("TB")
TOK = 253
a(f"v_mov_b32 v{TOK}, s75")
a("s_branch L_P2_PRE")
a("L_COMPUTE:")
ev(a, "start")
a(f"s_setprio {OPT.get('cprio', 3)}")
ids()
a("s_waitcnt lgkmcnt(0)")
stamp0(a); stamp(a, 2)
srd_ws_dbg()
a("""s_mov_b32 s39, 0x20000
s_mov_b32 s56, 0
s_cmp_eq_u32 s22, 3
s_cbranch_scc1 L_C_GW
s_cmp_eq_u32 s22, 2
s_cbranch_scc1 L_C_TOK""")
if PP and PP[0] != "0":
    pf_setup("s_cmp_eq_u32 s22, 0", 252, 251, "s57", "s58", "L_CPX", "L_CPE")
    for _ in range(int(PP[0])):
        a("buffer_load_dword v241, v252, s[88:91], s57 offen"); a("s_add_u32 s57, s57, s58")
if COV:
    a("""s_bfe_u32 s44, s2, 0x20003
    s_lshr_b32 s45, s2, 5
    s_cmp_eq_u32 s22, 1
    s_cbranch_scc1 L_C_CW
    s_mov_b32 s36, s4
    s_mov_b32 s37, s5
    s_mov_b32 s38, 2621440
    s_lshr_b32 s57, s44, 1
    s_mul_i32 s57, s57, 5
    s_add_u32 s57, s57, s45
    s_add_u32 s57, s57, 2
    s_sub_u32 s58, s57, 10
    s_cselect_b32 s57, s57, s58
    s_lshl_b32 s57, s57, 7
    s_lshr_b32 s58, s21, 1
    s_lshl_b32 s58, s58, 8
    s_and_b32 s59, s21, 1
    s_add_u32 s58, s58, s59
    s_and_b32 s59, s44, 1
    s_lshl_b32 s59, s59, 7
    s_add_u32 s59, s59, s58
    s_mul_i32 s59, s59, 1280
    s_add_u32 s57, s57, s59
    v_mul_u32_u24 v252, 2560, v1
    s_mov_b32 s56, 1
    s_branch L_C_SETUP
    L_C_CW:
    s_cmp_ge_u32 s20, 8
    s_cselect_b32 s36, s12, s6
    s_cselect_b32 s37, s13, s7
    s_mov_b32 s38, 2457600
    s_lshr_b32 s57, s2, 3
    s_cmp_ge_u32 s57, 12
    s_cbranch_scc1 L_C_SETUP
    s_mul_i32 s58, s57, 81920
    s_cmp_ge_u32 s57, 6
    s_cselect_b32 s59, 0, 512
    s_add_u32 s57, s58, s59
    s_add_u32 s57, s57, 1474560
    s_and_b32 s58, s2, 1
    s_mul_i32 s58, s58, 640
    s_add_u32 s57, s57, s58
    v_mul_u32_u24 v252, 1280, v1
    s_mov_b32 s56, 1""")
a("s_branch L_C_SETUP")
a("L_C_GW:")
a(f"""s_mov_b32 s36, s16
s_mov_b32 s37, s17
s_mov_b32 s38, 1280
v_lshlrev_b32 v140, 4, v1
s_mov_b32 m0, {GW_LDS}
v_mov_b64 v[144:145], 0
buffer_load_dwordx4 v140, s[36:39], 0 offen lds
buffer_load_dwordx4 v140, s[36:39], 0 offen offset:1024 lds
v_mov_b64 v[146:147], 0
ds_write_b128 v140, v[144:147] offset:{XOFF}
v_add_u32 v140, {STAGE}, v140
ds_write_b128 v140, v[144:147] offset:{XOFF}
v_add_u32 v140, {STAGE}, v140
ds_write_b128 v140, v[144:147] offset:{XOFF}
s_branch L_C_SETUP""")
a("L_C_TOK:")
a("""s_cmp_lg_u32 s2, 0
s_cbranch_scc1 L_C_CPF
s_memrealtime s[44:45]
v_mov_b32 v147, 0
s_waitcnt lgkmcnt(0)
s_or_b32 s44, s44, 1
v_mov_b32 v146, s44
s_mov_b64 exec, 1
buffer_atomic_cmpswap v[146:147], v147, s[40:43], 0 offen sc1
s_mov_b64 exec, -1
L_C_CPF:
s_getpc_b64 s[70:71]
L_PC:
s_sub_u32 s70, s70, L_PC - L_SIDE_B
s_subb_u32 s71, s71, 0
v_lshlrev_b32 v140, 7, v1
global_load_dword v241, v140, s[70:71]
v_add_u32 v140, 8192, v140
v_cmp_gt_u32 vcc, CODE_END - L_SIDE_B - 4, v140
s_and_saveexec_b64 s[72:73], vcc
s_cbranch_execz L_NOPF
global_load_dword v241, v140, s[70:71]
L_NOPF:
s_mov_b64 exec, s[72:73]""")
a("L_C_SETUP:")
if COV == 2:
    a("s_cmp_eq_u32 s56, 0"); a("s_cbranch_scc1 L_C_S2")
    a("buffer_load_dword v241, v252, s[36:39], s57 offen")
    a("L_C_S2:")
stamp(a, 3)
VWA, VWB, VX0, VX1, VGX0, VGX1, VGW = 2, 3, 4, 5, 6, 7, 240
ACCQ, ACCK, ACCV, ACCH = 8, 48, 88, 128
RING, XB, GX = 140, 180, 204
MC, MP, MP0, AM, ONES = 220, 224, 228, 232, 236
def acc(seg, t, T): return (ACCQ, ACCK, ACCV)[seg] + t * 20 + T * 4
a("s_setprio 0")
a(f"""v_lshrrev_b32 v140, 4, v1
v_and_b32 v141, 15, v1
v_lshrrev_b32 v142, 5, v1
v_lshlrev_b32 v142, 4, v142
v_and_b32 v143, 1, v140
v_lshl_add_u32 v142, v143, 2, v142
v_lshrrev_b32 v143, 2, v141
v_add_u32 v142, v142, v143
v_mul_u32_u24 v145, 480, v142
v_and_b32 v143, 3, v141
v_lshl_add_u32 v{VWA}, v143, 3, v145
v_mul_u32_u24 v144, 40, v143
v_add3_u32 v{VWB}, v145, v144, 32
v_lshrrev_b32 v144, 1, v141
v_xor_b32 v144, v144, v140
v_lshlrev_b32 v144, 4, v144
v_lshl_add_u32 v{VX0}, v141, 7, v144
v_xor_b32 v{VX1}, 64, v{VX0}
s_and_b32 s44, s20, 7
s_lshl_b32 s44, s44, 11
v_add_u32 v{VGX0}, s44, v{VX0}
v_add_u32 v{VGX1}, s44, v{VX1}
v_lshlrev_b32 v{VGW}, 4, v140
s_lshl_b32 s44, s23, 7
s_add_u32 s44, s44, {GW_LDS}
v_add_u32 v{VGW}, s44, v{VGW}""")
a(f"s_mov_b32 s44, {NEG}")
a(f"v_mov_b32 v146, s44")
a("s_lshr_b32 s45, s21, 1"); a("s_or_b32 s45, s45, s22")
a("v_lshlrev_b32 v145, 2, v140"); a("v_sub_u32 v145, v141, v145")
for r in range(4): a(f"v_subrev_u32 v{150+r}, {r}, v145")
for r in range(4):
    a(f"v_cmp_gt_u32 vcc, 8, v{150+r}"); a(f"v_cmp_gt_i32 s[72:73], -8, v{150+r}")
    a(f"v_mov_b32 v{ONES+r}, 0x3f803f80")
    a(f"v_cndmask_b32 v{MC+r}, v146, 0, vcc"); a(f"v_cndmask_b32 v{MP+r}, v146, 0, s[72:73]")
a("s_cmp_eq_u32 s45, 0"); a("s_cselect_b64 vcc, -1, 0")
for r in range(4): a(f"v_cndmask_b32 v{MP0+r}, v{MP+r}, v146, vcc")
a("s_mov_b32 s44, 0xffff0000")
for h in range(2):
    a(f"v_ashrrev_i32 v154, 31, v{150+2*h}"); a(f"v_ashrrev_i32 v155, 31, v{151+2*h}")
    a(f"v_bfi_b32 v{AM+h}, s44, v155, v154"); a(f"v_not_b32 v{AM+2+h}, v{AM+h}")
a(f"""s_mov_b64 s[48:49], 0xffff
s_mov_b32 s50, 0xffff0000
s_mov_b32 s51, 0
s_mov_b32 s52, 0
s_mov_b32 s53, 0xffff
s_mov_b32 s54, 0
s_mov_b32 s55, 0xffff0000
s_mov_b32 s63, {STAGE}
s_mov_b32 s74, 128
s_mov_b32 s92, {CEXP}
s_mov_b32 s93, {CEXP}
s_lshl_b32 s94, s21, 3
s_lshl_b32 s95, s22, 1
s_add_u32 s94, s94, s95
s_mul_i32 s94, s94, {OTT}
s_mul_i32 s95, s20, {OBLK}
s_add_u32 s94, s94, s95
s_add_u32 s95, s94, {OTT}""")
for r in range(ACCQ, ACCH + 12, 2): a(f"v_mov_b64 v[{r}:{r+1}], 0")
a("s_waitcnt vmcnt(0) lgkmcnt(0)")
stamp(a, 4)
if COV in (1, 3):
    a("s_cmp_eq_u32 s56, 0"); a("s_cbranch_scc1 L_C_GO")
    if COV == 3: a("s_setprio 3")
    a("buffer_load_dword v241, v252, s[36:39], s57 offen")
a("s_setprio 0")
a("L_C_GO:")
a("""s_mov_b32 s44, 0
s_mov_b32 s45, 0""")
for w in range(1, 4):
    a(f"s_cmp_eq_u32 s22, {w}"); a(f"s_cbranch_scc1 L_W{w}")
KOP = {1: 140, 0: 156, -1: 204}
VOP = 172; QOP = {1: 68, 0: 108}
def kop(t, h): return KOP[t] + 4 * h
def vop(T, t): return VOP + 6 * T + 2 * (t + 1)
def qop(t, h): return QOP[t] + 4 * h
def cv2(d, s): return [f"v_cvt_pk_bf16_f32 v{d}, v{s}, v{s+1}", f"v_cvt_pk_bf16_f32 v{d+1}, v{s+2}, v{s+3}"]
HALO = [[(1,0),(1,1),(1,2)], [(1,3),(1,4),(2,0)], [(2,1),(2,2)], [(2,3),(2,4)]] if OPT.get('hal') == '0' else [[(1,0),(1,2),(2,0)], [(1,1),(1,3),(2,1)], [(1,4),(2,2),(2,3)], [(2,4)]]
D = 5
def istep(f): return f - 5 if f <= 14 else (f - 6 if f <= 21 else f - 7)
for w in range(4):
    gate = (w == 3)
    q = []
    def rdW(f):
        ks, seg, T = f // 15, (f % 15) // 5, f % 5
        d = RING + (f % 10) * 4
        if "nods" in XP: return [("s_nop 0", ("W", f))] * 2
        return [(f"ds_read_b64_tr_b16 v[{d+2*j}:{d+2*j+1}], v{VWA if T < 4 else VWB} offset:{seg*160 + ks*15360 + j*3840 + (40*T if T < 4 else 0)}", ("W", f)) for j in range(2)]
    def rdX(ks):
        o = []
        for n, tile in enumerate((1 + 2 * w, 2 + 2 * w, 0)):
            d = XB + (ks * 3 + n) * 4
            o.append((f"ds_read_b128 v[{d}:{d+3}], v{(VX0, VX1)[ks]} offset:{XOFF + tile*2048}", ("X", ks)))
        if gate:
            d = GX + ks * 8
            o.append((f"ds_read_b128 v[{d}:{d+3}], v{(VGX0, VGX1)[ks]} offset:{XOFF + 2048}", ("X", ks)))
            o.append((f"ds_read_b128 v[{d+4}:{d+7}], v{VGW} offset:{ks*64}", ("X", ks)))
        return o
    def wait(b, tags):
        last = max(i for i, t in enumerate(q) if t in tags)
        b(f"s_waitcnt lgkmcnt({min(len(q) - 1 - last, 15)})")
    def mm(f):
        ks, seg, T = f // 15, (f % 15) // 5, f % 5
        wf = vr(RING + (f % 10) * 4); o = []
        def one(dst, xf):
            o.append(f"{MF} {vr(dst)}, {wf}, {xf}, {vr(dst)}" if seg < 2 else f"{MF} {vr(dst)}, {xf}, {wf}, {vr(dst)}")
        one(acc(seg, 0, T), vr(XB + (ks * 3) * 4)); one(acc(seg, 1, T), vr(XB + (ks * 3 + 1) * 4))
        if (seg, T) in HALO[w]: one(ACCH + 4 * HALO[w].index((seg, T)), vr(XB + (ks * 3 + 2) * 4))
        if gate and seg == 0 and T == 2:
            d = GX + ks * 8
            o.append(f"{MF} {vr(ACCH+8)}, {vr(d+4)}, {vr(d)}, {vr(ACCH+8)}")
        return o
    def weave(b, ms, fs, lastless=True):
        n = len(ms); k = len(fs)
        cnt = [0] * n
        for i in range(k):
            load = [cnt[j] + (1 if (lastless and j == n - 1) else 0) for j in range(n)]
            cnt[load.index(min(load))] += 1
        it = iter(fs)
        for m_, c_ in zip(ms, cnt):
            b(m_)
            for _ in range(c_):
                t = next(it)
                b(t[0])
                if t[1] is not None: q.append(t[1])
    FA = {s: [] for s in range(25, 30)}
    x0 = rdX(0)
    FA[25] = x0[:2] + rdW(0); FA[26] = x0[2:4] + rdW(1); FA[27] = x0[4:] + rdW(2); FA[28] = rdW(3); FA[29] = rdW(4)
    FB = {s: [] for s in range(25)}
    for f in range(D, 30): FB[istep(f)] += rdW(f)
    x1 = rdX(1)
    for i, t in enumerate(x1): FB[2 + i].append(t)
    sal = ["s_add_u32 s45, s45, 1", "s_cmp_eq_u32 s45, 3", f"s_cselect_b32 s46, {(-2*STAGE) & 0xffffffff}, s63", "s_cselect_b32 s45, 0, s45"]
    for i, t in enumerate(sal): FB[10 + i].append((t, None))
    if gate:
        sal = ["s_add_u32 s23, s23, 1", "s_cmp_eq_u32 s23, 10", "s_cselect_b32 s23, 0, s23", "s_cselect_b32 s47, -1152, s74"]
        for i, t in enumerate(sal): FB[16 + i].append((t, None))
        FB[20].append((f"v_add_u32 v{VGW}, s47, v{VGW}", None))
        FB[21].append((f"v_add_u32 v{VGX0}, s46, v{VGX0}", None)); FB[22].append((f"v_add_u32 v{VGX1}, s46, v{VGX1}", None))
    FB[20].append((f"v_add_u32 v{VX0}, s46, v{VX0}", None)) if not gate else FB[14].append((f"v_add_u32 v{VX0}, s46, v{VX0}", None))
    FB[23] += [(f"v_add_u32 v{VX1}, s46, v{VX1}", None), (f"v_add_u32 v{VWA}, s46, v{VWA}", None), (f"v_add_u32 v{VWB}, s46, v{VWB}", None)]
    FB[24] += [("s_add_u32 s44, s44, 1", None), ("s_cmp_eq_u32 s44, 10", None)]
    pre = Asm(); pa = Asm(); pb = Asm(); tail = Asm()
    stamp(pre, 5)
    pre("s_barrier")
    if STAMP: stamp2(pre, 6, 50)
    ev(pre, "b0")
    for s in range(25, 30):
        for t in FA[s]: pre(t[0])
    q.clear()
    pa("s_waitcnt lgkmcnt(0)"); pa("s_nop 0" if "nobar" in XP else "s_barrier")
    for s in range(25, 30): weave(pa, mm(s), FA[s], lastless=(s == 29))
    pa(f"s_branch L_LB{w}")
    for s in range(25):
        tags = [("W", s)] + ([("X", 0)] if s == 0 else []) + ([("X", 1)] if s == 15 else [])
        wait(pb, tags); weave(pb, mm(s), FB[s])
    pb(f"s_cbranch_scc1 L_T{w}")
    tail(f"v_mov_b32 v{TOK}, {TOK_LDS}")
    tail("s_waitcnt lgkmcnt(0)")
    tail(f"ds_read_b32 v{TOK}, v{TOK}")
    tm = [m_ for s in range(25, 30) for m_ in mm(s)]
    fl = [f"v_lshlrev_b32 v{VWA}, 3, v1", f"v_add_u32 v{VX1}, {XCH}, v{VWA}"]
    if TOV:
        fl += [f"v_add_u32 v{VWB}, {XCH + 5120*w}, v{VWA}", f"v_add_u32 v{VX0}, {XCH + 5120*(w+1)}, v{VWA}"]
        for h in (0, 1, 2, 3, 4):
            d = 140 + 4 * h if h < 4 else 142; sr = acc(1, 1, h)
            fl += [f"v_cvt_pk_bf16_f32 v{d}, v{sr}, v{sr+1}", f"v_cvt_pk_bf16_f32 v{d+1}, v{sr+2}, v{sr+3}"]
            if w < 3: fl.append(f"ds_write_b64 v{VX0}, v[{d}:{d+1}] offset:{h*512}")
        for h in (1, 2, 3):
            d = 142 + 4 * h; sr = acc(1, 1, 4)
            fl += [f"v_cvt_pk_bf16_f32 v{d}, v{sr}, v{sr+1}", f"v_cvt_pk_bf16_f32 v{d+1}, v{sr+2}, v{sr+3}"]
    for n_, m_ in enumerate(tm):
        tail(m_)
        for x in fl[2*n_:2*n_+2]: tail(x)
    for x in fl[2*len(tm):]: tail(x)
    if gate:
        z = ACCH + 8
        tail(f"""v_cvt_pk_bf16_f32 v248, v{z}, v{z}
        v_and_b32 v248, 0xffff0000, v248
        v_mul_f32 v248, {LOG2E ^ 0x80000000}, v248
        v_exp_f32 v248, v248
        s_lshl_b32 s46, s21, 3
        v_add_f32 v248, 1.0, v248
        v_rcp_f32 v248, v248
        s_add_u32 s46, s46, s20
        v_cvt_pk_bf16_f32 v248, v248, v248
        v_and_b32 v248, 0xffff0000, v248
        s_lshl_b32 s46, s46, 7
        s_add_u32 s46, s46, {WS_G}
        s_waitcnt lgkmcnt(0)
        v_sub_u32 v249, v{TOK}, v248""")
    snd = []
    for n, (seg, T) in enumerate(HALO[w]):
        snd.append(cv2(242 + 2*n, ACCH + 4*n) + [f"ds_write_b64 v{VX1}, v[{242+2*n}:{243+2*n}] offset:{((seg-1)*5+T)*512}"])
    for T in range(5):
        snd.append(cv2(vop(T, 1), acc(2, 1, T)) + ([f"ds_write_b64 v{VX0}, v[{vop(T,1)}:{vop(T,1)+1}] offset:{(5+T)*512}"] if w < 3 else []))
    nh = len(HALO[w])
    if w >= 2: snd = snd[nh:] + snd[:nh]
    rest = ["s_setprio 2"] + cv2(250, acc(0, 1, 4))
    for h in range(4): rest += cv2(qop(1, h), acc(0, 1, h))
    for h in range(4):
        for j in range(2): rest.append(f"v_cndmask_b32 v{qop(1,h)+2+j}, 0, v{250+j}, s[{48+2*h}:{49+2*h}]")
    for k_, x in enumerate(snd):
        for l in x + rest[2*k_:2*k_+2]: tail(l)
    for l in rest[2*len(snd):]: tail(l)
    if gate:
        tail(f"""s_cmp_ge_u32 s20, 8
        s_cbranch_scc1 L_ATT
        s_mov_b64 exec, 0xffff
        buffer_store_dwordx2 v[248:249], v{VWA}, s[32:35], s46 offen sc1
        s_mov_b64 exec, -1""")
    else: tail("s_branch L_ATT")
    if w > 0: a(f"L_W{w}:")
    a.extend(pre); a(".p2align 3"); a(f"L_LB{w}:"); a.extend(pb); a.extend(pa); a(f"L_T{w}:"); a.extend(tail)
    traces.append(pre.L + pb.L + pa.L + pb.L + fix(tail.L)[0])
a("L_ATT:")
if STAMP: stamp2(a, 30, 51)
ev(a, "gemm")
KOP = {1: 140, 0: 156, -1: 204}
VOP = 172; QOP = {1: 68, 0: 108}
def kop(t, h): return KOP[t] + 4 * h
def vop(T, t): return VOP + 6 * T + 2 * (t + 1)
def qop(t, h): return QOP[t] + 4 * h
g = Asm()
def cvt(d, s): g(f"v_cvt_pk_bf16_f32 v{d}, v{s}, v{s+1}"); g(f"v_cvt_pk_bf16_f32 v{d+1}, v{s+2}, v{s+3}")
def flush(name):
    global g
    o, t = schedule(g.L, st_lat=STL); print(f"; sched {name}: {len(o)} instrs, est {t} cycles", file=sys.stderr)
    for n, l in enumerate(o):
        if OPT.get("astamp") and n and n % 45 == 0: a(f"s_memtime s[{86 + 2*(n//45)}:{87 + 2*(n//45)}]") if n // 45 < 8 else None
        a(l)
    if OPT.get("astamp"):
        a("s_waitcnt lgkmcnt(0)")
        for k in range(1, 8): a(f"v_writelane_b32 v{SV}, s{86+2*k}, {9+k}")
    g = Asm()
stamp(a, 31)
a("s_waitcnt lgkmcnt(0)"); a("s_barrier")
stamp(a, 32)
for h in range(4):
    g(f"ds_read_b64 v[{kop(-1,h)}:{kop(-1,h)+1}], v{VWB} offset:{h*512}")
    g(f"ds_read_b64 v[{kop(-1,h)+2}:{kop(-1,h)+3}], v{VWB} offset:{4*512}")
for T in range(5): g(f"ds_read_b64 v[{vop(T,-1)}:{vop(T,-1)+1}], v{VWB} offset:{(5+T)*512}")
g("@wait")
g(f"v_lshlrev_b32 v{VX0}, 4, v1"); g(f"v_mul_u32_u24 v{VWA}, 12, v1")
for h in range(4): cvt(kop(0, h), acc(1, 0, h)); cvt(kop(0, h) + 2, acc(1, 0, 4))
for T in range(5): cvt(vop(T, 0), acc(2, 0, T))
cvt(246, acc(0, 0, 4))
for h in range(4): cvt(qop(0, h), acc(0, 0, h))
for h in range(4):
    for j in range(2): g(f"v_cndmask_b32 v{qop(0,h)+2+j}, 0, v{246+j}, s[{48+2*h}:{49+2*h}]")
SR = {1: [28, 32, 36, 40, 44, 48, 52, 56], 0: [8, 12, 16, 20, 24, 88, 92, 96]}
def dc(t, h): return SR[t][h]
def dp(t, h): return SR[t][4 + h]
MX = {1: 84, 0: 124}; TMP = {1: 128, 0: 132}
OREG = {1: [68, 72, 76, 80, 140, 144, 148, 152, 60, 64, 100, 104], 0: [108, 112, 116, 120, 156, 160, 164, 168, 204, 208, 212, 216]}
def oo(t, h, k): return OREG[t][k * 4 + h]
for t in (1, 0):
    for h in range(4):
        g(f"{MF} {vr(dc(t,h))}, {vr(kop(t,h))}, {vr(qop(t,h))}, {vr(MC)}")
        g(f"{MF} {vr(dp(t,h))}, {vr(kop(t-1,h))}, {vr(qop(t,h))}, {vr(MP if t else MP0)}")
for t in (1, 0):
    for h in range(4):
        for r in range(4): g(f"v_max_f32 v{dc(t,h)+r}, v{dc(t,h)+r}, v{dp(t,h)+r}")
        g(f"v_max3_f32 v{MX[t]+h}, v{dc(t,h)}, v{dc(t,h)+1}, v{dc(t,h)+2}")
        g(f"v_max_f32 v{MX[t]+h}, v{MX[t]+h}, v{dc(t,h)+3}")
    m = MX[t]
    g(f"""v_permlane32_swap_b32 v{m}, v{m+1}
    v_permlane32_swap_b32 v{m+2}, v{m+3}
    v_max_f32 v{m}, v{m}, v{m+1}
    v_max_f32 v{m+2}, v{m+2}, v{m+3}
    v_permlane16_swap_b32 v{m}, v{m+2}
    v_max_f32 v{m}, v{m}, v{m+2}
    v_mul_f32 v{m+2}, s92, v{m}
    v_mul_f32 v{m}, s92, v{m}
    v_permlane16_swap_b32 v{m}, v{m+2}
    v_mov_b32 v{m+1}, v{m}
    v_mov_b32 v{m+3}, v{m+2}
    v_permlane32_swap_b32 v{m}, v{m+1}
    v_permlane32_swap_b32 v{m+2}, v{m+3}""")
    for h in range(4):
        d = dc(t, h); p = dp(t, h)
        if PK:
            mp_ = m + (h & 2); e = h & 1
            for r in (0, 2): g(f"v_pk_fma_f32 v[{d+r}:{d+r+1}], v[{d+r}:{d+r+1}], s[92:93], v[{mp_}:{mp_+1}] op_sel:[0,0,{e}] op_sel_hi:[1,1,{e}] neg_lo:[0,0,1] neg_hi:[0,0,1]")
        else:
            for r in range(4): g(f"v_fma_f32 v{d+r}, v{d+r}, s92, -v{m+h}")
        for r in range(4): g(f"v_exp_f32 v{d+r}, v{d+r}")
        g(f"v_cvt_pk_bf16_f32 v{d}, v{d}, v{d+1}"); g(f"v_cvt_pk_bf16_f32 v{d+2}, v{d+2}, v{d+3}")
        g(f"v_and_b32 v{p}, v{AM}, v{d}"); g(f"v_and_b32 v{p+1}, v{AM+1}, v{d+2}")
        g(f"v_and_b32 v{p+2}, v{AM+2}, v{d}"); g(f"v_and_b32 v{p+3}, v{AM+3}, v{d+2}")
    for h in range(4):
        g(f"{MF} {vr(oo(t,h,2))}, {vr(ONES)}, {vr(dp(t,h))}, 0")
        g(f"{MF} {vr(oo(t,h,0))}, {vr(vop(h,t-1))}, {vr(dp(t,h))}, 0")
        g(f"{MF} {vr(oo(t,h,1))}, {vr(vop(4,t-1))}, {vr(dp(t,h))}, 0")
    for h in range(4):
        o0 = oo(t, h, 0); rc = oo(t, h, 2)
        g(f"v_rcp_f32 v{rc}, v{rc}")
        if PK:
            for r in (0, 2): g(f"v_pk_mul_f32 v[{o0+r}:{o0+r+1}], v[{o0+r}:{o0+r+1}], v[{rc}:{rc+1}] op_sel_hi:[1,0]")
        else:
            for r in range(4): g(f"v_mul_f32 v{o0+r}, v{o0+r}, v{rc}")
        for r in range(4): g(f"v_mul_f32_dpp v{TMP[t]+r}, v{oo(t,h,1)+r}, v{rc} quad_perm:[0,1,2,3] row_mask:{hex(1<<h)} bank_mask:0xf")
        cvt(dc(t, h >> 1) + 2 * (h & 1), o0)
    cvt(dc(t, 2), TMP[t])
    so = "s95" if t else "s94"
    c = dc(t, 2)
    for p in range(2):
        g(f"buffer_store_dwordx4 {vr(dc(t, p))}, v{VX0}, s[32:35], {so} offen offset:{1024*p} sc1")
    d = dc(t, 0); e = dc(t, 1)
    g(f"v_add3_u32 v{c+2}, v{d}, v{d+1}, v{d+2}"); g(f"v_add3_u32 v{c+3}, v{e}, v{e+1}, v{e+2}")
    g(f"v_add3_u32 v{c+2}, v{c+2}, v{d+3}, v{e+3}"); g(f"v_add3_u32 v{c+2}, v{c+2}, v{c+3}, v{TOK}")
    g(f"v_add3_u32 v{c+2}, v{c+2}, v{c}, v{c+1}")
    g(f"buffer_store_dwordx3 {vr(c,3)}, v{VWA}, s[32:35], {so} offen offset:2048 sc1")
flush("attention")
if STAMP: stamp2(a, 35, 52)
ev(a, "att")
WR = 48
NRK = 6
OR_ = 168
AC = 224
CK = 244
BA = {"S1": 248, "S2": 249, "S0": 250, "TOP": 251, "R1": 248, "R2": 249, "TB": 252}
def lring(l):
    k = (l - 30) % 15
    return 8 + 4 * k
a("L_P2_PRE:")
a("v_lshlrev_b32 v2, 4, v1")
a("s_lshr_b32 s64, s22, 2")
a(f"s_mul_i32 s60, s64, {CL['S1'][3]}"); a(f"s_add_u32 s60, s60, {CL['S1'][2]}"); a(f"v_add_u32 v{BA['S1']}, s60, v2")
a(f"s_mul_i32 s60, s64, {CL['S2'][3]}"); a(f"s_add_u32 s60, s60, {CL['S2'][2]}"); a(f"v_add_u32 v{BA['S2']}, s60, v2")
for l in range(30): a(f"ds_read_b128 {vr(WR+4*l)}, v{BA['S1' if l < 24 else 'S2']} offset:{(l % 24)*1024}")
for nm in ("S0", "TOP", "TB"):
    a(f"s_mul_i32 s60, s64, {CL[nm][3]}"); a(f"s_add_u32 s60, s60, {CL[nm][2]}"); a(f"v_add_u32 v{BA[nm]}, s60, v2")
consumer_ids()
rotbit("s86")
a(f"""s_and_b32 s65, s22, 3
s_lshl_b32 s67, s85, 2
s_add_u32 s67, s67, s65
s_mul_i32 s80, s67, {OTT}
s_mul_i32 s60, s64, {8*OBLK}
s_add_u32 s80, s80, s60
v_mul_u32_u24 v3, 12, v1
v_add_u32 v3, 2048, v3
v_and_b32 v4, 15, v1
v_lshlrev_b32 v5, 3, v4
s_lshl_b32 s62, s67, 7
s_add_u32 s62, s62, {WS_G}
v_sub_u32 v254, 0, v{TOK}
s_add_u32 s82, s80, {4*OBLK}
s_mul_i32 s86, s86, {4*OBLK}
s_add_u32 s80, s80, s86
s_sub_u32 s82, s82, s86
s_add_u32 s81, s80, {2*OBLK}
s_add_u32 s83, s82, {2*OBLK}
s_mov_b32 s28, s18
s_mov_b32 s29, s19
s_mov_b32 s30, 2621440
s_mov_b32 s31, 0x20000
s_mov_b32 s61, 0""")
stamp(a, 36)
a("s_waitcnt lgkmcnt(0)")
a("s_barrier")
stamp(a, 37)
a("s_cmp_lt_u32 s22, 4"); a("s_cbranch_scc1 L_P2_C")
dma_class("R1"); dma_class("R2")
if OWAIT >= 2: a("s_waitcnt vmcnt(0)"); stamp(a, 38)
a("s_branch L_P2_GO")
a("L_P2_C:")
if OWAIT: a("s_waitcnt vmcnt(0)"); stamp(a, 38)
a("s_setprio 0")
a("L_P2_GO:")
if OWAIT >= 2: a("s_barrier")
if OWAIT >= 3: a(f"s_sleep {OWAIT}")
if STAMP: stamp2(a, 39, 53)
ev(a, "bp")
def og(m, e, k): return OR_ + (m & 1) * 24 + e * 12 + k * 4
def ld_pair(m):
    o = []
    for e in range(2):
        for k in range(2): o.append(f"buffer_load_dwordx4 {vr(og(m, e, k))}, v2, s[32:35], s{80+m} offen offset:{e*OBLK + k*1024} sc1")
        o.append(f"buffer_load_dwordx3 {vr(og(m, e, 2), 3)}, v3, s[32:35], s{80+m} offen offset:{e*OBLK} sc1")
    return o
def chk_pair(m):
    o = []
    for e in range(2):
        d = og(m, e, 0); f = og(m, e, 1); c = og(m, e, 2); x = CK + 2 * e
        o.append([f"v_add3_u32 v{x}, v{d}, v{d+1}, v{d+2}", f"v_add3_u32 v{x+1}, v{f}, v{f+1}, v{f+2}", f"v_add3_u32 v{x}, v{x}, v{d+3}, v{f+3}",
                  f"v_add3_u32 v{x}, v{x}, v{x+1}, v{TOK}", f"v_add3_u32 v{x}, v{x}, v{c}, v{c+1}", f"v_xor_b32 v{x}, v{x}, v{c+2}"])
    o = [o[j][i] for i in range(6) for j in range(2)]
    o += [f"v_or_b32 v{CK}, v{CK}, v{CK+2}", f"v_cmp_ne_u32 vcc, 0, v{CK}"]
    return o
def ofrag(i):
    m, ss = i // 5, i % 5
    return og(m, ss >> 1, ss & 1) if ss < 4 else og(m, 0, 2)
def ld_w(i):
    if i < NRK or i >= 20: return []
    o = []
    for T in range(5):
        l = i * 5 + T
        nm = [k for k, v in CL.items() if v[0] <= l < v[0] + v[1]][0]
        o.append(f"ds_read_b128 {vr(lring(l))}, v{BA[nm]} offset:{(l - CL[nm][0]) * 1024}")
    return o
GLD = "buffer_load_dwordx2 v[6:7], v5, s[32:35], s62 offen sc1"
if PD == 2:
    for x in ld_pair(0) + ld_pair(1): a(x)
    a("s_waitcnt vmcnt(6)")
else:
    for x in ld_pair(0): a(x)
    a("s_waitcnt vmcnt(0)")
    for x in ld_pair(1): a(x)
stamp(a, 33)
for x in chk_pair(0): a(x)
PRE = ["s_lshr_b32 s46, s67, 4", "s_lshl_b32 s46, s46, 8", "s_bfe_u32 s47, s67, 0x10003", "s_add_u32 s46, s46, s47", "s_and_b32 s47, s67, 7",
       "s_lshl_b32 s47, s47, 5", "s_add_u32 s46, s46, s47", "s_mul_i32 s46, s46, 1280", "s_mul_i32 s47, s84, 160", "s_add_u32 s46, s46, s47",
       "s_mul_i32 s60, s65, 5120", f"s_add_u32 s60, s60, {XCH}", f"v_add_u32 v{WR+76}, s60, v2", "v_mul_u32_u24 v4, 2560, v4", f"v_lshrrev_b32 v{WR+79}, 4, v1",
       f"v_lshl_add_u32 v{WR+77}, v{WR+79}, 4, v4", f"v_lshl_add_u32 v{WR+78}, v{WR+79}, 3, v4",
       "s_waitcnt vmcnt(0)", f"v_add3_u32 v{CK}, v6, v7, v254", f"v_cmp_ne_u32 vcc, 0, v{CK}"]
for m in range(4):
    a(f"s_cbranch_vccnz L_RETRY{m}")
    a(f"L_OK{m}:")
    if m == 0: stamp(a, 34)
    a(f"v_mov_b32 v{og(m,0,2)+2}, v{og(m,1,2)}"); a(f"v_mov_b32 v{og(m,0,2)+3}, v{og(m,1,2)+1}")
    lds_ = ld_pair(m + 2) if m < 2 else ([GLD] if m == 2 else [])
    chk = chk_pair(m + 1) if m < 3 else []
    for ss in range(5):
        i = m * 5 + ss
        nxt = ld_w(i + 2)
        w_ = []
        if i >= NRK: w_.append(f"lgkmcnt({5 if i < 19 else 0})")
        if PD == 2 and ss == 3 and m < 3: w_.insert(0, f"vmcnt({len(lds_)})")
        if w_: a("s_waitcnt " + " ".join(w_))
        for T in range(5):
            wf = vr(lring(i * 5 + T)) if i >= NRK else vr(WR + (i * 5 + T) * 4)
            a(f"{MF} {vr(AC+4*T)}, {wf}, {vr(ofrag(i))}, {'0' if i == 0 else vr(AC+4*T)}")
            if nxt: a(nxt[T])
            if PD == 2:
                if ss < 3 and T in (1, 3):
                    k = ss * 2 + (T >> 1)
                    if k < len(lds_): a(lds_[k])
                if ss >= 3 and chk:
                    k = (ss - 3) * 5 + T
                    for x in chk[k * 14 // 10:(k + 1) * 14 // 10]: a(x)
            if PD == 3 and ss >= LPOS and T in (1, 3):
                k = (ss - LPOS) * 2 + (T >> 1)
                if k < len(lds_): a(lds_[k])
            if m == 3:
                k = ss * 5 + T
                if k < len(PRE): a(PRE[k])
    if False:
        a(f"s_cmp_eq_u32 s64, {m - 1}"); a(f"s_cbranch_scc1 L_NE1{m}"); a("s_barrier"); a(f"L_NE1{m}:")
    if PD == 3 and m < 3:
        a(f"s_waitcnt vmcnt({len(lds_)})")
        for x in chk: a(x)
    if PD == 1 and m < 3:
        a("s_waitcnt vmcnt(0)")
        for x in lds_: a(x)
        for x in chk: a(x)
if STAMP: stamp2(a, 56, 54)
a("s_cbranch_vccnz L_RETRYG")
a("L_OKG:")
a("s_cmp_eq_u32 s64, 0")
a("s_cbranch_scc1 L_EPI_A")
def epi(send, keep, sc):
    RA, O4, O2 = WR + 76, WR + 77, WR + 78
    for T in send:
        for r in (0, 2): a(f"v_pk_mul_f32 v[{AC+4*T+r}:{AC+4*T+r+1}], v[{AC+4*T+r}:{AC+4*T+r+1}], v[{sc}:{sc+1}] op_sel_hi:[1,0]")
    a("s_barrier")
    for T in send: a(f"ds_write_b128 v{RA}, {vr(AC+4*T)} offset:{T*1024}")
    a("s_waitcnt lgkmcnt(0)"); a("s_barrier")
    for n, T in enumerate(keep): a(f"ds_read_b128 {vr(8+4*n)}, v{RA} offset:{T*1024}")
    for n, T in enumerate(keep):
        a(f"s_waitcnt lgkmcnt({len(keep)-1-n})")
        for r in (0, 2): a(f"v_pk_fma_f32 v[{8+4*n+r}:{8+4*n+r+1}], v[{AC+4*T+r}:{AC+4*T+r+1}], v[{sc}:{sc+1}], v[{8+4*n+r}:{8+4*n+r+1}] op_sel_hi:[1,0,1]")
        a(f"v_cvt_pk_bf16_f32 v{OR_+2*n}, v{8+4*n}, v{8+4*n+1}"); a(f"v_cvt_pk_bf16_f32 v{OR_+2*n+1}, v{8+4*n+2}, v{8+4*n+3}")
        if n == 1: a(f"buffer_store_dwordx4 {vr(OR_)}, v{O4}, s[28:31], s46 offen offset:{32*keep[0]} {SF}")
        if n == 2: a(f"buffer_store_dwordx2 {vr(OR_+4,2)}, v{O2}, s[28:31], s46 offen offset:128 {SF}")
if EP:
    RA, O4, O2 = WR + 76, WR + 77, WR + 78
    a("s_barrier")
    for T in range(5): a(f"ds_read_b128 {vr(72+4*T)}, v{RA} offset:{T*1024}")
    a("v_sub_f32 v6, 1.0, v6"); a("v_cvt_pk_bf16_f32 v6, v6, v6"); a("v_and_b32 v6, 0xffff0000, v6")
    for T in range(5):
        a(f"s_waitcnt lgkmcnt({4-T})")
        for r in (0, 2): a(f"v_pk_fma_f32 v[{72+4*T+r}:{72+4*T+r+1}], v[{AC+4*T+r}:{AC+4*T+r+1}], v[6:7], v[{72+4*T+r}:{72+4*T+r+1}] op_sel_hi:[1,0,1]")
        a(f"v_cvt_pk_bf16_f32 v{OR_+2*T}, v{72+4*T}, v{72+4*T+1}"); a(f"v_cvt_pk_bf16_f32 v{OR_+2*T+1}, v{72+4*T+2}, v{72+4*T+3}")
        if T == 1: a(f"buffer_store_dwordx4 {vr(OR_)}, v{O4}, s[28:31], s46 offen {SF}")
        if T == 3: a(f"buffer_store_dwordx4 {vr(OR_+4)}, v{O4}, s[28:31], s46 offen offset:64 {SF}")
    a(f"buffer_store_dwordx2 {vr(OR_+8,2)}, v{O2}, s[28:31], s46 offen offset:128 {SF}")
    a("s_branch L_FIN")
    a("L_EPI_A:")
    a("s_nop 1")
    for T in range(5):
        for r in (0, 2): a(f"v_pk_mul_f32 v[{AC+4*T+r}:{AC+4*T+r+1}], v[{AC+4*T+r}:{AC+4*T+r+1}], v[6:7] op_sel_hi:[1,0]")
        a(f"ds_write_b128 v{RA}, {vr(AC+4*T)} offset:{T*1024}")
    a("s_waitcnt lgkmcnt(0)"); a("s_barrier")
else:
    a("v_sub_f32 v6, 1.0, v6"); a("v_cvt_pk_bf16_f32 v6, v6, v6"); a("v_and_b32 v6, 0xffff0000, v6")
    epi([0, 1], [2, 3, 4], 6)
    a("s_branch L_FIN")
    a("L_EPI_A:")
    a("s_nop 4")
    epi([2, 3, 4], [0, 1], 6)
ev(a, "end")
if SPIN:
    a("""s_mov_b32 s60, 0
    L_SPIN:
    s_memrealtime s[98:99]
    s_waitcnt lgkmcnt(0)
    s_sub_u32 s98, s98, s96
    s_add_u32 s60, s60, 1
    s_cmp_ge_u32 s60, 20000
    s_cbranch_scc1 L_FIN
    s_cmp_lt_u32 s98, 4000
    s_cbranch_scc1 L_SPIN""")
a("L_FIN:")
if STAMP:
    stamp(a, 57)
    a("s_add_u32 s61, s61, 1"); a(f"v_writelane_b32 v{SV}, s61, 61")
    a("s_waitcnt vmcnt(0)")
    stamp(a, 62); stamp(a, 63, True)
    a(f"s_lshl_b32 s46, s2, 3"); a(f"s_add_u32 s46, s46, s22"); a("s_lshl_b32 s46, s46, 8"); a(f"s_add_u32 s46, s46, {WS_ST}")
    a(f"v_lshlrev_b32 v2, 2, v1")
    a(f"buffer_store_dword v{SV}, v2, s[32:35], s46 offen")
a("L_END:"); a("s_endpgm")
for m in range(4):
    a(f"L_RETRY{m}:")
    a("s_add_u32 s61, s61, 1"); a(f"s_cmp_ge_u32 s61, {SPIN_MAX}"); a(f"s_cbranch_scc1 L_OK{m}")
    a(f"s_sleep {RSLEEP}")
    for x in ld_pair(m): a(x)
    a("s_waitcnt vmcnt(0)")
    for x in chk_pair(m): a(x)
    a(f"s_cbranch_vccnz L_RETRY{m}"); a(f"s_branch L_OK{m}")
a("L_RETRYG:")
a("s_add_u32 s61, s61, 1"); a(f"s_cmp_ge_u32 s61, {SPIN_MAX}"); a("s_cbranch_scc1 L_OKG")
a(f"s_sleep {RSLEEP}")
a("buffer_load_dwordx2 v[6:7], v5, s[32:35], s62 offen sc1"); a("s_waitcnt vmcnt(0)")
a(f"v_add3_u32 v{CK}, v6, v7, v254"); a(f"v_cmp_ne_u32 vcc, 0, v{CK}")
a("s_cbranch_vccnz L_RETRYG"); a("s_branch L_OKG")

l1, _ = fix(a.L)
for tr in traces:
    _, iss_ = fix(tr, verify=True)
    for x in iss_: print("; TRACE HAZARD", x, file=sys.stderr)
print(f"""; gated mix of two dilated sliding-window attention blocks (generated by gen/gen12.py)
; @launch grid=(256,1,1) block=(512,1,1) lds={LDS_TOTAL}
.amdgcn_target "amdgcn-amd-amdhsa--gfx950"
.text
.globl {KN}
.p2align 8
.type {KN},@function""")
print("\n".join(l1))
print("CODE_END:")
print('.section .rodata,"a"')
print(kd(KN, 256, 102, 256))
```

```python
import sys, struct, math
sys.path.insert(0, "gen")
from asmlib import *
NAME = "gated_mix__sliding_local_dilated__sliding_local_dilated__prompt"
KN = NAME + "_kernel"
OPT = dict(a.split("=") for a in sys.argv[1:])
STAMP = int(OPT.get("stamp", 0)); CM = int(OPT.get("cm", 1)); PK = int(OPT.get("pk", 1))
NS1 = int(OPT.get("ns1", 12)); RSLEEP = int(OPT.get("rsleep", 2)); OWAIT = int(OPT.get("owait", 2)); SB = int(OPT.get("sb", 5)); SA = int(OPT.get("sa", 3)); XP = OPT.get("xp", ""); R2 = int(OPT.get("r2", 0)); WNT = "nt " if int(OPT.get("wnt", 0)) else ""; XNT = "nt " if int(OPT.get("xnt", 0)) else ""; SNT = "nt " if int(OPT.get("snt", 0)) else ""; STG = int(OPT.get("stg", 1)); PP = OPT.get("pp", ""); ROT = int(OPT.get("rot", 0 if PP else 1)); EP = 1; KP = int(OPT.get("kp", 3)); STL = int(OPT.get("stl", 60)); TOV = 1; LPOS = int(OPT.get("lpos", 2)); COV = int(OPT.get("cov", 0)); SF = OPT.get("sf", "nt").replace("+", " "); PD = int(OPT.get("pd", 1))
def f2u(x): return struct.unpack("<I", struct.pack("<f", x))[0]
STAGE = 49152; XOFF = 30720
GW_LDS = 147456; TOK_LDS = GW_LDS + 1536; SCR_LDS = 149504; LDS_TOTAL = 163840
XCH = 126976
RED = 98304
OBLK = 2816; OTT = 16 * OBLK
WS_WOT = 0x700000; WS_G = 0x900000; WS_FW = 0x910000; WS_ST = 0x1000000
NEG = f2u(-1e30)
CEXP = f2u(20 ** -0.5 * math.log2(math.e))
LOG2E = f2u(math.log2(math.e))
MF = "v_mfma_f32_16x16x32_bf16"
SPIN_MAX = 1 << 17
SV = 255
def stamp(a, idx, real=False):
    if not STAMP: return
    a(f"{'s_memrealtime' if real else 's_memtime'} s[68:69]"); a("s_waitcnt lgkmcnt(0)"); a(f"v_writelane_b32 v{SV}, s68, {idx}")
SPIN = OPT.get("spin", "")
def ev(a, name):
    if SPIN == name: a("s_memrealtime s[96:97]"); a("s_waitcnt lgkmcnt(0)")
def stamp2(a, idx, ridx):
    stamp(a, idx); stamp(a, ridx, True)
def stamp0(a):
    if STAMP: a(f"v_mov_b32 v{SV}, 0"); a(f"v_writelane_b32 v{SV}, s66, 0"); a(f"v_writelane_b32 v{SV}, s68, 1")

a = Asm()
traces = []
def ids():
    a("""v_and_b32 v1, 63, v0
    s_and_b32 s20, s2, 3
    s_lshl_b32 s20, s20, 2
    s_bfe_u32 s46, s2, 0x20003
    s_add_u32 s20, s20, s46
    s_lshr_b32 s47, s2, 5
    s_and_b32 s21, s2, 4
    s_lshl_b32 s21, s21, 1
    s_add_u32 s21, s21, s47
    s_mul_i32 s23, s46, 5
    s_add_u32 s23, s23, 1
    s_lshr_b32 s23, s23, 1
    s_add_u32 s23, s23, s47
    s_sub_u32 s46, s23, 10""")
    a("s_cselect_b32 s23, s23, s46" if ROT else "s_mov_b32 s23, 0")
def srd_ws_dbg():
    WSO = int(OPT.get("wso", 0)) << 20
    a(f"""s_add_u32 s32, s78, {WSO}
    s_addc_u32 s33, s79, 0
    s_mov_b32 s34, {0x10000000 - WSO}
    s_mov_b32 s35, 0x20000
    s_mov_b32 s40, s76
    s_mov_b32 s41, s77
    s_mov_b32 s42, 256
    s_mov_b32 s43, 0x20000""")
def consumer_ids():
    if CM:
        a("s_bfe_u32 s84, s2, 0x30003"); a("s_and_b32 s85, s2, 7"); a("s_lshl_b32 s85, s85, 2"); a("s_lshr_b32 s86, s2, 6"); a("s_add_u32 s85, s85, s86")
    else:
        a("s_and_b32 s84, s20, 7"); a("s_lshl_b32 s85, s21, 1"); a("s_lshr_b32 s86, s20, 3"); a("s_add_u32 s85, s85, s86")
def pf_setup(isw_scc_cmp, vdst, vt, soff, sstep, lblx, lble):
    a(f"""s_lshr_b32 s44, s2, 3
    {isw_scc_cmp}
    s_cbranch_scc0 {lblx}
    v_mul_u32_u24 v{vt}, 13108, v1
    v_lshrrev_b32 v{vt}, 16, v{vt}
    v_mul_u32_u24 v{vt}, 640, v{vt}
    v_lshl_add_u32 v{vdst}, v1, 7, v{vt}
    s_mul_i32 {soff}, s44, 15360
    s_and_b32 s45, s2, 1
    s_mul_i32 s45, s45, 640
    s_add_u32 {soff}, {soff}, s45
    s_mov_b32 {sstep}, 491520
    s_cmp_ge_u32 s20, 8
    s_cselect_b32 s88, s12, s6
    s_cselect_b32 s89, s13, s7
    s_mov_b32 s90, 2457600
    s_branch {lble}
    {lblx}:
    v_lshrrev_b32 v{vt}, 1, v1
    v_mul_u32_u24 v{vt}, 1280, v{vt}
    v_and_b32 v{vdst}, 1, v1
    v_lshl_add_u32 v{vdst}, v{vdst}, 7, v{vt}
    s_and_b32 s45, s2, 4
    s_lshl_b32 s45, s45, 3
    s_add_u32 s44, s44, s45
    s_mul_i32 {soff}, s44, 40960
    s_mov_b32 {sstep}, 256
    s_mov_b32 s88, s4
    s_mov_b32 s89, s5
    s_mov_b32 s90, 2621440
    {lble}:
    s_mov_b32 s91, 0x20000""")
def rotbit(dst):
    a(f"s_xor_b32 {dst}, s84, s85"); a(f"s_and_b32 {dst}, {dst}, {R2}")
a(f"{KN}:")
if STAMP: a("s_memrealtime s[66:67]"); a("s_memtime s[68:69]")
a("""v_readfirstlane_b32 s22, v0
s_load_dwordx8 s[4:11], s[0:1], 0
s_load_dwordx8 s[12:19], s[0:1], 32
s_load_dwordx4 s[76:79], s[0:1], 64
s_lshr_b32 s3, s2, 8
s_cbranch_scc1 L_END
s_lshr_b32 s22, s22, 6
s_cmp_eq_u32 s22, 3
s_cbranch_scc1 L_HOP
s_cmp_lt_u32 s22, 4
s_cbranch_scc1 L_COMPUTE""")
ids()
a("""v_lshrrev_b32 v3, 3, v1
v_mul_u32_u24 v3, 2560, v3
v_lshrrev_b32 v4, 4, v0
v_xor_b32 v4, v4, v1
v_xor_b32 v4, 4, v4
v_and_b32 v4, 7, v4
v_lshl_add_u32 v11, v4, 4, v3
s_and_b32 s64, s22, 3
s_lshr_b32 s44, s21, 1
s_or_b32 s45, s44, s64
s_cselect_b32 s52, -20480, 0
s_lshl_b32 s44, s44, 8
s_and_b32 s45, s21, 1
s_add_u32 s44, s44, s45
s_lshl_b32 s45, s64, 4
s_add_u32 s44, s44, s45
s_mul_i32 s47, s44, 1280
s_lshl_b32 s45, s23, 7
s_add_u32 s47, s47, s45
s_lshl_b32 s53, s64, 10
s_mov_b32 s30, 2621440
s_mov_b32 s31, 0x20000
s_mov_b32 s27, s31
s_setprio 2
v_mul_u32_u24 v3, 6554, v1
v_lshrrev_b32 v3, 16, v3
s_branch L_LD0
L_HOP:
s_branch L_COMPUTE
L_LD0:
v_mul_u32_u24 v4, 1120, v3
v_lshl_add_u32 v10, v1, 4, v4
s_and_b32 s46, s20, 7
s_mul_i32 s46, s46, 160
s_lshl_b32 s44, s23, 2
s_add_u32 s44, s44, s64
s_mul_i32 s44, s44, 61440
s_add_u32 s46, s46, s44
s_mul_i32 s48, s64, 7680
s_mov_b32 s49, 0
s_mov_b32 s50, 0
s_mov_b32 s26, 2457600
s_cmp_ge_u32 s20, 8
s_waitcnt lgkmcnt(0)
s_cselect_b32 s24, s12, s6
s_cselect_b32 s25, s13, s7
s_mov_b32 s28, s4
s_mov_b32 s29, s5""")
stamp0(a); stamp(a, 2)
a("L_LD_ISSUE:")
a(f"s_add_u32 m0, s53, {XOFF + 1024}"); a("s_add_u32 s51, s47, s52"); a(f"buffer_load_dwordx4 v11, s[28:31], s51 offen {XNT}lds")
for qq in range(1, 4):
    a(f"s_add_u32 m0, s53, {XOFF + 1024 + 4096*qq}"); a(f"s_add_u32 s51, s47, {(64*qq-16)*1280}"); a(f"buffer_load_dwordx4 v11, s[28:31], s51 offen {XNT}lds")
a("s_cmp_lg_u32 s64, 0"); a("s_cbranch_scc1 L_LD_W")
a(f"s_add_u32 m0, s53, {XOFF + 1024 + 4096*4}"); a(f"s_add_u32 s51, s47, {(64*4-16)*1280}"); a(f"buffer_load_dwordx4 v11, s[28:31], s51 offen {XNT}lds")
a("L_LD_W:")
a("s_mov_b32 exec_hi, 0x0fffffff")
for qq in range(8):
    if qq == KP:
        a("s_cmp_lg_u32 s50, 1"); a("s_cbranch_scc1 L_NB0"); a(f"s_waitcnt vmcnt({4 + KP})"); a("s_barrier"); a("L_NB0:")
    r = 2 * qq; k = (r & 0x33) | ((r & 4) << 1) | ((r & 8) >> 1)
    a(f"s_add_u32 m0, s48, {960*qq}"); a(f"s_add_u32 s51, s46, {k*3840}"); a(f"buffer_load_dwordx4 v10, s[24:27], s51 offen {WNT}lds")
a(f"""s_mov_b32 exec_hi, -1
s_mov_b32 s63, {STAGE}
s_add_u32 s23, s23, 1
s_cmp_eq_u32 s23, 10
s_cselect_b32 s23, 0, s23
s_cselect_b32 s51, -9, 1
s_mul_i32 s44, s51, 245760
s_add_u32 s46, s46, s44
s_lshl_b32 s44, s51, 7
s_add_u32 s47, s47, s44
s_add_u32 s49, s49, 1
s_cmp_eq_u32 s49, 3
s_cselect_b32 s51, {(-2*STAGE) & 0xffffffff}, s63
s_cselect_b32 s49, 0, s49
s_add_u32 s48, s48, s51
s_add_u32 s53, s53, s51
s_add_u32 s50, s50, 1""")
def lstamp(base):
    if STAMP == 1: a("s_memtime s[68:69]"); a("s_waitcnt lgkmcnt(0)"); a(f"s_add_u32 m0, s50, {base}"); a(f"v_writelane_b32 v{SV}, s68, m0")
lstamp(9)
a(f"""s_cmp_eq_u32 s50, {SA}
s_cbranch_scc1 L_SIDE_A
L_SA_RET:
s_cmp_lt_u32 s50, 2
s_cbranch_scc1 L_LD_PRE0""")
if KP < 8: a("s_cmp_eq_u32 s50, 2"); a("s_cbranch_scc1 L_LD_PRE")
assert SA >= 3
a(f"""s_cmp_eq_u32 s50, {SB}
s_cbranch_scc1 L_TOK_A
s_cmp_eq_u32 s50, {SB+2}
s_cbranch_scc1 L_TOK_B
s_cmp_eq_u32 s50, 10
s_cbranch_scc1 L_WOF_A""")
a("L_LD_WAIT:")
a("s_waitcnt vmcnt(12)")
a("L_LD_BAR:")
lstamp(18)
if "nobar" in XP: a("s_cmp_lg_u32 s50, 2"); a("s_cbranch_scc1 L_LD_ISSUE")
a("s_barrier")
if STAMP == 1: a("s_memrealtime s[68:69]"); a("s_waitcnt lgkmcnt(0)"); a(f"s_add_u32 m0, s50, 38"); a(f"v_writelane_b32 v{SV}, s68, m0")
a("L_LD_PRE:")
if PP:
    a("s_cmp_ge_u32 s64, 2"); a("s_cbranch_scc1 L_LD_ISSUE")
    if STG == 1:
        for n in (1, 2):
            mask = sum(1 << c for c in range(1, 10) if int(PP[c]) >= n)
            if mask:
                a(f"s_bitcmp1_b32 {mask}, s50"); a("s_cbranch_scc0 L_LD_ISSUE")
                a("buffer_load_dword v41, v40, s[88:91], s92 offen"); a("s_add_u32 s92, s92, s93")
    else:
        a("s_bitcmp1_b32 s94, s50"); a("s_cbranch_scc0 L_LD_ISSUE")
        a("s_mov_b32 s44, s92")
        for n in range(STG):
            a("buffer_load_dword v41, v40, s[88:91], s44 offen")
            if n < STG - 1: a("s_add_u32 s44, s44, s95")
        a(f"s_mul_i32 s44, s93, {STG}"); a("s_add_u32 s92, s92, s44")
a("s_branch L_LD_ISSUE")
a("L_LD_PRE0:")
if PP:
    pf_setup("s_cmp_eq_u32 s64, 1", 40, 41, "s92", "s93", "L_LPX", "L_LPE")
    a(f"s_mul_i32 s44, s93, {max(int(PP[0]), 1)}"); a("s_add_u32 s92, s92, s44")
    if STG > 1:
        pos = [c for c in range(1, 10) if PP[c] != "0"]
        a("s_cmp_eq_u32 s64, 1"); a("s_mov_b32 s95, 40960"); a("s_cselect_b32 s95, 15360, s95")
        a(f"s_bfe_u32 s45, s2, 0x{(STG.bit_length()-1):x}0003")
        a("s_mul_i32 s44, s45, s95"); a("s_sub_u32 s92, s92, s44"); a("s_mul_i32 s44, s45, s93"); a("s_add_u32 s92, s92, s44")
        a("s_mov_b32 s94, 0")
        for g_ in range(STG):
            mask = sum(1 << c for k, c in enumerate(pos) if k % STG == g_)
            a(f"s_cmp_eq_u32 s45, {g_}"); a(f"s_cselect_b32 s94, {mask}, s94")
a("s_branch L_LD_PRE")
a("L_SIDE_A:")
if int(OPT.get("u2", 1)):
    a("""s_mov_b32 s56, 0
    s_cmp_lt_u32 s64, 2
    s_cbranch_scc1 L_SA_RET
    s_mov_b32 s57, s2
    s_cmp_eq_u32 s64, 2
    s_cbranch_scc1 L_SA_GO
    s_bitcmp0_b32 s2, 3
    s_cbranch_scc1 L_SA_RET
    s_lshr_b32 s44, s2, 4
    s_sub_u32 s44, s44, 4
    s_cmp_ge_u32 s44, 8
    s_cbranch_scc1 L_SA_RET
    s_lshl_b32 s44, s44, 3
    s_and_b32 s57, s2, 7
    s_add_u32 s57, s57, s44
    s_add_u32 s57, s57, 256
    L_SA_GO:""")
else:
    a("""s_mov_b32 s56, 0
    s_sub_u32 s44, s64, 2
    s_lshl_b32 s57, s44, 8
    s_add_u32 s57, s57, s2
    s_cmp_ge_u32 s57, 320
    s_cbranch_scc1 L_SA_RET""")
a("""s_mov_b32 s56, 1
s_mov_b32 s39, 0x20000
s_and_b32 s45, s57, 7
s_lshr_b32 s44, s57, 3
s_mul_i32 s58, s44, 52
s_lshr_b32 s58, s58, 8
s_mul_i32 s59, s58, 5
s_sub_u32 s59, s44, s59
s_cmp_ge_u32 s58, 4
s_cselect_b32 s36, s14, s8
s_cselect_b32 s37, s15, s9
s_mov_b32 s38, 819200
s_and_b32 s58, s58, 3
s_mul_i32 s58, s58, 160
s_mul_i32 s60, s59, 40
s_cmp_eq_u32 s59, 4
s_cselect_b32 s60, 16, s60
s_cselect_b32 s54, 80, 20
s_cselect_b32 s55, 20, 4
s_add_u32 s58, s58, s60
s_mul_i32 s58, s58, 1280
s_mul_i32 s60, s45, 160
s_add_u32 s58, s58, s60
s_mul_i32 s54, s54, 1280
s_mul_i32 s55, s55, 1280""")
a(f"s_mul_i32 s62, s64, 5120"); a(f"s_add_u32 s62, s62, {SCR_LDS - 10240}")
a("s_mov_b32 exec_hi, 0xff")
for g in range(4):
    for jh in range(2):
        a(f"s_add_u32 m0, s62, {(16*(g>>1) + 8*jh + 4*(g&1))*160}")
        if jh == 0: a("s_add_u32 s51, s58, s54"); a(f"buffer_load_dwordx4 v10, s[36:39], s58 offen {SNT}lds")
        else: a("s_add_u32 s58, s58, s55"); a(f"buffer_load_dwordx4 v10, s[36:39], s51 offen {SNT}lds")
a("s_mov_b32 exec_hi, -1")
a(f"""s_mul_i32 s61, s45, 204800
s_mul_i32 s58, s44, 5120
s_add_u32 s61, s61, s58
s_add_u32 s61, s61, {WS_WOT}
""")
if SA < 2: a("s_branch L_LD_PRE0")
else: a("s_waitcnt vmcnt(20)"); a("s_branch L_LD_BAR")
a("L_SIDE_B:")
if SB == SA + 1: a("s_waitcnt vmcnt(13)")
a("""v_lshrrev_b32 v16, 5, v1
v_lshlrev_b32 v16, 4, v16
v_bfe_u32 v17, v1, 4, 1
v_lshl_add_u32 v16, v17, 2, v16
v_bfe_u32 v17, v1, 2, 2
v_add_u32 v16, v16, v17
v_mul_u32_u24 v16, 160, v16
v_add_u32 v16, s62, v16
v_and_b32 v17, 3, v1
v_lshl_add_u32 v18, v17, 4, v16
v_lshl_add_u32 v19, v17, 3, v16""")
for T in range(5):
    for j in range(2):
        if T < 4: a(f"ds_read_b64_tr_b16 v[{20+4*T+2*j}:{21+4*T+2*j}], v18 offset:{j*1280 + 64*(T>>1) + 8*(T&1)}")
        else: a(f"ds_read_b64_tr_b16 v[{20+4*T+2*j}:{21+4*T+2*j}], v19 offset:{j*1280 + 128}")
a("s_waitcnt lgkmcnt(0)")
for T in range(4): a(f"buffer_store_dwordx4 v[{20+4*T}:{23+4*T}], v12, s[32:35], s61 offen offset:{1024*T} sc1")
a("s_add_u32 s61, s61, 4096")
a(f"buffer_store_dwordx4 v[36:39], v12, s[32:35], s61 offen sc1")
a("s_waitcnt vmcnt(18)"); a("s_branch L_LD_BAR")
a("L_TOK_A:")
srd_ws_dbg()
a("""v_lshlrev_b32 v12, 4, v1
v_mov_b32 v13, 0
s_mov_b64 exec, 1
buffer_load_dword v15, v13, s[40:43], 0 offen sc1
s_mov_b64 exec, -1
s_cmp_lg_u32 s56, 0
s_cbranch_scc1 L_SIDE_B
s_waitcnt vmcnt(13)
s_branch L_LD_BAR""")
a("L_TOK_B:")
srd_ws_dbg()
a(f"""s_mov_b32 s60, 0
v_mov_b32 v13, 0
L_TOK_CHK:
v_readlane_b32 s75, v15, 0
s_add_u32 s60, s60, 1
s_cmp_lg_u32 s75, 0
s_cbranch_scc1 L_TOK_OK
s_cmp_ge_u32 s60, {SPIN_MAX}
s_cbranch_scc1 L_TOK_OK
s_sleep 4
s_mov_b64 exec, 1
buffer_load_dword v15, v13, s[40:43], 0 offen sc1
s_mov_b64 exec, -1
s_waitcnt vmcnt(0)
s_branch L_TOK_CHK
L_TOK_OK:
v_mov_b32 v14, {TOK_LDS}
v_mov_b32 v15, s75
ds_write_b32 v14, v15
s_cmp_eq_u32 s56, 0
s_waitcnt lgkmcnt(0)
s_cbranch_scc1 L_LD_WAIT
s_and_b32 s45, s57, 7
s_lshl_b32 s45, s45, 13
s_lshr_b32 s44, s57, 3
s_lshl_b32 s44, s44, 7
s_add_u32 s45, s45, s44
s_add_u32 s45, s45, {WS_FW}
v_lshlrev_b32 v13, 2, v1
s_mov_b32 exec_hi, 0
buffer_store_dword v15, v13, s[32:35], s45 offen sc1
s_mov_b32 exec_hi, -1
s_waitcnt vmcnt(13)
s_branch L_LD_BAR""")
a("L_WOF_A:")
srd_ws_dbg()
consumer_ids()
a(f"""s_lshl_b32 s59, s84, 13
s_add_u32 s59, s59, {WS_FW}
v_lshlrev_b32 v13, 7, v1
v_lshlrev_b32 v12, 4, v1
s_mov_b32 exec_hi, 0xff
buffer_load_dword v14, v13, s[32:35], s59 offen sc1
s_mov_b32 s60, 0
s_waitcnt vmcnt(13)""")
lstamp(18)
if "nobar" not in XP: a("s_barrier")
a(f"""L_WO_POLL:
s_waitcnt vmcnt(0)
v_cmp_ne_u32 vcc, s75, v14
s_cbranch_vccz L_WO_OK
s_add_u32 s60, s60, 1
s_cmp_ge_u32 s60, {SPIN_MAX}
s_cbranch_scc1 L_WO_OK
s_sleep 4
buffer_load_dword v14, v13, s[32:35], s59 offen sc1
s_branch L_WO_POLL
L_WO_OK:
s_mov_b32 exec_hi, -1
s_setprio 0""")
stamp(a, 29)
CL = {"S1": (0, 24, 49152, 24576), "S2": (24, 14, 98304, 14336), "S0": (38, 24, 0, 24576), "TOP": (62, 6, 151552, 6144), "TB": (68, 2, 147456, 2048),
      "R1": (70, 24, 49152, 24576), "R2": (94, 6, 98304, 14336)}
a(f"""s_mul_i32 s58, s84, 204800
s_add_u32 s58, s58, {WS_WOT}
s_lshr_b32 s44, s64, 1
s_and_b32 s45, s64, 1
s_lshl_b32 s45, s45, 10
s_mul_i32 s59, s44, 102400
s_add_u32 s59, s59, s58
s_add_u32 s59, s59, s45""")
rotbit("s54"); a("s_mul_i32 s54, s54, 51200"); a("s_sub_u32 s55, s59, s54"); a("s_add_u32 s59, s59, s54")
def dma_class(nm, lo=0, hi=None):
    l0, n, base, delta = CL[nm]
    a(f"s_mul_i32 s53, s44, {delta}"); a("s_add_u32 s53, s53, s45")
    for j in range(lo, n if hi is None else hi, 2):
        a(f"s_add_u32 m0, s53, {base + j*1024}"); a(f"s_add_u32 s51, {'s59' if l0 + j < 50 else 's55'}, {(l0 + j)*1024}")
        a(f"buffer_load_dwordx4 v12, s[32:35], s51 offen sc1 lds")
dma_class("S1", 0, NS1)
if "nobar" not in XP: a("s_barrier")
dma_class("S1", NS1); dma_class("S2"); dma_class("TOP")
a("s_waitcnt vmcnt(7)")
stamp(a, 30)
a("s_barrier")
dma_class("S0"); dma_class("TB")
TOK = 253
a(f"v_mov_b32 v{TOK}, s75")
a("s_branch L_P2_PRE")
a("L_COMPUTE:")
ev(a, "start")
a(f"s_setprio {OPT.get('cprio', 3)}")
ids()
a("s_waitcnt lgkmcnt(0)")
stamp0(a); stamp(a, 2)
srd_ws_dbg()
a("""s_mov_b32 s39, 0x20000
s_mov_b32 s56, 0
s_cmp_eq_u32 s22, 3
s_cbranch_scc1 L_C_GW
s_cmp_eq_u32 s22, 2
s_cbranch_scc1 L_C_TOK""")
if PP and PP[0] != "0":
    pf_setup("s_cmp_eq_u32 s22, 0", 252, 251, "s57", "s58", "L_CPX", "L_CPE")
    for _ in range(int(PP[0])):
        a("buffer_load_dword v241, v252, s[88:91], s57 offen"); a("s_add_u32 s57, s57, s58")
if COV:
    a("""s_bfe_u32 s44, s2, 0x20003
    s_lshr_b32 s45, s2, 5
    s_cmp_eq_u32 s22, 1
    s_cbranch_scc1 L_C_CW
    s_mov_b32 s36, s4
    s_mov_b32 s37, s5
    s_mov_b32 s38, 2621440
    s_lshr_b32 s57, s44, 1
    s_mul_i32 s57, s57, 5
    s_add_u32 s57, s57, s45
    s_add_u32 s57, s57, 2
    s_sub_u32 s58, s57, 10
    s_cselect_b32 s57, s57, s58
    s_lshl_b32 s57, s57, 7
    s_lshr_b32 s58, s21, 1
    s_lshl_b32 s58, s58, 8
    s_and_b32 s59, s21, 1
    s_add_u32 s58, s58, s59
    s_and_b32 s59, s44, 1
    s_lshl_b32 s59, s59, 7
    s_add_u32 s59, s59, s58
    s_mul_i32 s59, s59, 1280
    s_add_u32 s57, s57, s59
    v_mul_u32_u24 v252, 2560, v1
    s_mov_b32 s56, 1
    s_branch L_C_SETUP
    L_C_CW:
    s_cmp_ge_u32 s20, 8
    s_cselect_b32 s36, s12, s6
    s_cselect_b32 s37, s13, s7
    s_mov_b32 s38, 2457600
    s_lshr_b32 s57, s2, 3
    s_cmp_ge_u32 s57, 12
    s_cbranch_scc1 L_C_SETUP
    s_mul_i32 s58, s57, 81920
    s_cmp_ge_u32 s57, 6
    s_cselect_b32 s59, 0, 512
    s_add_u32 s57, s58, s59
    s_add_u32 s57, s57, 1474560
    s_and_b32 s58, s2, 1
    s_mul_i32 s58, s58, 640
    s_add_u32 s57, s57, s58
    v_mul_u32_u24 v252, 1280, v1
    s_mov_b32 s56, 1""")
a("s_branch L_C_SETUP")
a("L_C_GW:")
a(f"""s_mov_b32 s36, s16
s_mov_b32 s37, s17
s_mov_b32 s38, 1280
v_lshlrev_b32 v140, 4, v1
s_mov_b32 m0, {GW_LDS}
v_mov_b64 v[144:145], 0
buffer_load_dwordx4 v140, s[36:39], 0 offen lds
buffer_load_dwordx4 v140, s[36:39], 0 offen offset:1024 lds
v_mov_b64 v[146:147], 0
ds_write_b128 v140, v[144:147] offset:{XOFF}
v_add_u32 v140, {STAGE}, v140
ds_write_b128 v140, v[144:147] offset:{XOFF}
v_add_u32 v140, {STAGE}, v140
ds_write_b128 v140, v[144:147] offset:{XOFF}
s_branch L_C_SETUP""")
a("L_C_TOK:")
a("""s_cmp_lg_u32 s2, 0
s_cbranch_scc1 L_C_CPF
s_memrealtime s[44:45]
v_mov_b32 v147, 0
s_waitcnt lgkmcnt(0)
s_or_b32 s44, s44, 1
v_mov_b32 v146, s44
s_mov_b64 exec, 1
buffer_atomic_cmpswap v[146:147], v147, s[40:43], 0 offen sc1
s_mov_b64 exec, -1
L_C_CPF:
s_getpc_b64 s[70:71]
L_PC:
s_sub_u32 s70, s70, L_PC - L_SIDE_B
s_subb_u32 s71, s71, 0
v_lshlrev_b32 v140, 7, v1
v_add_u32 v141, 8192, v140
v_add_u32 v142, 16384, v140
v_min_u32 v140, CODE_END - L_SIDE_B - 4, v140
v_min_u32 v141, CODE_END - L_SIDE_B - 4, v141
v_min_u32 v142, CODE_END - L_SIDE_B - 4, v142
global_load_dword v241, v140, s[70:71]
global_load_dword v241, v141, s[70:71]
global_load_dword v241, v142, s[70:71]""")
a("L_C_SETUP:")
if COV == 2:
    a("s_cmp_eq_u32 s56, 0"); a("s_cbranch_scc1 L_C_S2")
    a("buffer_load_dword v241, v252, s[36:39], s57 offen")
    a("L_C_S2:")
stamp(a, 3)
VWA, VWB, VX0, VX1, VGX0, VGX1, VGW = 2, 3, 4, 5, 6, 7, 240
ACCQ, ACCK, ACCV, ACCH = 8, 48, 88, 128
RING, XB, GX = 140, 180, 204
MC, MP, MP0, AM, ONES = 220, 224, 228, 232, 236
def acc(seg, t, T): return (ACCQ, ACCK, ACCV)[seg] + t * 20 + T * 4
a("s_setprio 0")
a(f"""v_lshrrev_b32 v140, 4, v1
v_and_b32 v141, 15, v1
v_lshrrev_b32 v142, 5, v1
v_lshlrev_b32 v142, 4, v142
v_and_b32 v143, 1, v140
v_lshl_add_u32 v142, v143, 2, v142
v_lshrrev_b32 v143, 2, v141
v_add_u32 v142, v142, v143
v_mul_u32_u24 v145, 480, v142
v_and_b32 v143, 3, v141
v_lshl_add_u32 v{VWA}, v143, 3, v145
v_mul_u32_u24 v144, 40, v143
v_add3_u32 v{VWB}, v145, v144, 32
v_lshrrev_b32 v144, 1, v141
v_xor_b32 v144, v144, v140
v_lshlrev_b32 v144, 4, v144
v_lshl_add_u32 v{VX0}, v141, 7, v144
v_xor_b32 v{VX1}, 64, v{VX0}
s_and_b32 s44, s20, 7
s_lshl_b32 s44, s44, 11
v_add_u32 v{VGX0}, s44, v{VX0}
v_add_u32 v{VGX1}, s44, v{VX1}
v_lshlrev_b32 v{VGW}, 4, v140
s_lshl_b32 s44, s23, 7
s_add_u32 s44, s44, {GW_LDS}
v_add_u32 v{VGW}, s44, v{VGW}""")
a(f"s_mov_b32 s44, {NEG}")
a(f"v_mov_b32 v146, s44")
a("s_lshr_b32 s45, s21, 1"); a("s_or_b32 s45, s45, s22")
a("v_lshlrev_b32 v145, 2, v140"); a("v_sub_u32 v145, v141, v145")
for r in range(4): a(f"v_subrev_u32 v{150+r}, {r}, v145")
for r in range(4):
    a(f"v_cmp_gt_u32 vcc, 8, v{150+r}"); a(f"v_cmp_gt_i32 s[72:73], -8, v{150+r}")
    a(f"v_mov_b32 v{ONES+r}, 0x3f803f80")
    a(f"v_cndmask_b32 v{MC+r}, v146, 0, vcc"); a(f"v_cndmask_b32 v{MP+r}, v146, 0, s[72:73]")
a("s_cmp_eq_u32 s45, 0"); a("s_cselect_b64 vcc, -1, 0")
for r in range(4): a(f"v_cndmask_b32 v{MP0+r}, v{MP+r}, v146, vcc")
a("s_mov_b32 s44, 0xffff0000")
for h in range(2):
    a(f"v_ashrrev_i32 v154, 31, v{150+2*h}"); a(f"v_ashrrev_i32 v155, 31, v{151+2*h}")
    a(f"v_bfi_b32 v{AM+h}, s44, v155, v154"); a(f"v_not_b32 v{AM+2+h}, v{AM+h}")
a(f"""s_mov_b64 s[48:49], 0xffff
s_mov_b32 s50, 0xffff0000
s_mov_b32 s51, 0
s_mov_b32 s52, 0
s_mov_b32 s53, 0xffff
s_mov_b32 s54, 0
s_mov_b32 s55, 0xffff0000
s_mov_b32 s63, {STAGE}
s_mov_b32 s74, 128
s_mov_b32 s92, {CEXP}
s_mov_b32 s93, {CEXP}
s_lshl_b32 s94, s21, 3
s_lshl_b32 s95, s22, 1
s_add_u32 s94, s94, s95
s_mul_i32 s94, s94, {OTT}
s_mul_i32 s95, s20, {OBLK}
s_add_u32 s94, s94, s95
s_add_u32 s95, s94, {OTT}""")
for r in range(ACCQ, ACCH + 12, 2): a(f"v_mov_b64 v[{r}:{r+1}], 0")
a("s_waitcnt vmcnt(0) lgkmcnt(0)")
stamp(a, 4)
if COV in (1, 3):
    a("s_cmp_eq_u32 s56, 0"); a("s_cbranch_scc1 L_C_GO")
    if COV == 3: a("s_setprio 3")
    a("buffer_load_dword v241, v252, s[36:39], s57 offen")
a("s_setprio 0")
a("L_C_GO:")
a("""s_mov_b32 s44, 0
s_mov_b32 s45, 0""")
for w in range(1, 4):
    a(f"s_cmp_eq_u32 s22, {w}"); a(f"s_cbranch_scc1 L_W{w}")
KOP = {1: 140, 0: 156, -1: 204}
VOP = 172; QOP = {1: 68, 0: 108}
def kop(t, h): return KOP[t] + 4 * h
def vop(T, t): return VOP + 6 * T + 2 * (t + 1)
def qop(t, h): return QOP[t] + 4 * h
def cv2(d, s): return [f"v_cvt_pk_bf16_f32 v{d}, v{s}, v{s+1}", f"v_cvt_pk_bf16_f32 v{d+1}, v{s+2}, v{s+3}"]
HALO = [[(1,0),(1,1),(1,2)], [(1,3),(1,4),(2,0)], [(2,1),(2,2)], [(2,3),(2,4)]] if OPT.get('hal') == '0' else [[(1,0),(1,2),(2,0)], [(1,1),(1,3),(2,1)], [(1,4),(2,2),(2,3)], [(2,4)]]
D = 5
def istep(f): return f - 5 if f <= 14 else (f - 6 if f <= 21 else f - 7)
for w in range(4):
    gate = (w == 3)
    q = []
    def rdW(f):
        ks, seg, T = f // 15, (f % 15) // 5, f % 5
        d = RING + (f % 10) * 4
        if "nods" in XP: return [("s_nop 0", ("W", f))] * 2
        return [(f"ds_read_b64_tr_b16 v[{d+2*j}:{d+2*j+1}], v{VWA if T < 4 else VWB} offset:{seg*160 + ks*15360 + j*3840 + (40*T if T < 4 else 0)}", ("W", f)) for j in range(2)]
    def rdX(ks):
        o = []
        for n, tile in enumerate((1 + 2 * w, 2 + 2 * w, 0)):
            d = XB + (ks * 3 + n) * 4
            o.append((f"ds_read_b128 v[{d}:{d+3}], v{(VX0, VX1)[ks]} offset:{XOFF + tile*2048}", ("X", ks)))
        if gate:
            d = GX + ks * 8
            o.append((f"ds_read_b128 v[{d}:{d+3}], v{(VGX0, VGX1)[ks]} offset:{XOFF + 2048}", ("X", ks)))
            o.append((f"ds_read_b128 v[{d+4}:{d+7}], v{VGW} offset:{ks*64}", ("X", ks)))
        return o
    def wait(b, tags):
        last = max(i for i, t in enumerate(q) if t in tags)
        b(f"s_waitcnt lgkmcnt({min(len(q) - 1 - last, 15)})")
    def mm(f):
        ks, seg, T = f // 15, (f % 15) // 5, f % 5
        wf = vr(RING + (f % 10) * 4); o = []
        def one(dst, xf):
            o.append(f"{MF} {vr(dst)}, {wf}, {xf}, {vr(dst)}" if seg < 2 else f"{MF} {vr(dst)}, {xf}, {wf}, {vr(dst)}")
        one(acc(seg, 0, T), vr(XB + (ks * 3) * 4)); one(acc(seg, 1, T), vr(XB + (ks * 3 + 1) * 4))
        if (seg, T) in HALO[w]: one(ACCH + 4 * HALO[w].index((seg, T)), vr(XB + (ks * 3 + 2) * 4))
        if gate and seg == 0 and T == 2:
            d = GX + ks * 8
            o.append(f"{MF} {vr(ACCH+8)}, {vr(d+4)}, {vr(d)}, {vr(ACCH+8)}")
        return o
    def weave(b, ms, fs, lastless=True):
        n = len(ms)
        if OPT.get("wv", "1") == "1":
            ds = [t for t in fs if t[1] is not None]; ot = [t for t in fs if t[1] is None]
            per = [[] for _ in range(n)]
            cnt = [0] * n
            for i in range(len(ds)): cnt[i % n] += 1
            it = iter(ds)
            for j in range(n):
                for _ in range(cnt[j]): per[j].append(next(it))
            lo = 0
            for t in ot:
                load = [len(per[j]) + (1 if (lastless and j == n - 1) else 0) for j in range(n)]
                j = min(range(lo, n), key=lambda k: load[k]); lo = j
                per[j].append(t)
            for m_, p_ in zip(ms, per):
                b(m_)
                for t in p_:
                    b(t[0])
                    if t[1] is not None: q.append(t[1])
            return
        k = len(fs)
        cnt = [0] * n
        for i in range(k):
            load = [cnt[j] + (1 if (lastless and j == n - 1) else 0) for j in range(n)]
            cnt[load.index(min(load))] += 1
        it = iter(fs)
        for m_, c_ in zip(ms, cnt):
            b(m_)
            for _ in range(c_):
                t = next(it)
                b(t[0])
                if t[1] is not None: q.append(t[1])
    FA = {s: [] for s in range(25, 30)}
    x0 = rdX(0)
    FA[25] = x0[:2] + rdW(0); FA[26] = x0[2:4] + rdW(1); FA[27] = x0[4:] + rdW(2); FA[28] = rdW(3); FA[29] = rdW(4)
    FB = {s: [] for s in range(25)}
    for f in range(D, 30): FB[istep(f)] += rdW(f)
    x1 = rdX(1)
    for i, t in enumerate(x1): FB[2 + i].append(t)
    sal = ["s_add_u32 s45, s45, 1", "s_cmp_eq_u32 s45, 3", f"s_cselect_b32 s46, {(-2*STAGE) & 0xffffffff}, s63", "s_cselect_b32 s45, 0, s45"]
    for i, t in enumerate(sal): FB[10 + i].append((t, None))
    if gate:
        sal = ["s_add_u32 s23, s23, 1", "s_cmp_eq_u32 s23, 10", "s_cselect_b32 s23, 0, s23", "s_cselect_b32 s47, -1152, s74"]
        for i, t in enumerate(sal): FB[16 + i].append((t, None))
        FB[20].append((f"v_add_u32 v{VGW}, s47, v{VGW}", None))
        FB[21].append((f"v_add_u32 v{VGX0}, s46, v{VGX0}", None)); FB[22].append((f"v_add_u32 v{VGX1}, s46, v{VGX1}", None))
    FB[20].append((f"v_add_u32 v{VX0}, s46, v{VX0}", None)) if not gate else FB[14].append((f"v_add_u32 v{VX0}, s46, v{VX0}", None))
    FB[23] += [(f"v_add_u32 v{VX1}, s46, v{VX1}", None), (f"v_add_u32 v{VWA}, s46, v{VWA}", None), (f"v_add_u32 v{VWB}, s46, v{VWB}", None)]
    FB[24] += [("s_add_u32 s44, s44, 1", None), ("s_cmp_eq_u32 s44, 10", None)]
    pre = Asm(); pa = Asm(); pb = Asm(); tail = Asm()
    stamp(pre, 5)
    pre("s_barrier")
    if STAMP: stamp2(pre, 6, 50)
    ev(pre, "b0")
    for s in range(25, 30):
        for t in FA[s]: pre(t[0])
    q.clear()
    pa("s_waitcnt lgkmcnt(0)"); pa("s_nop 0" if "nobar" in XP else "s_barrier")
    for s in range(25, 30): weave(pa, mm(s), FA[s], lastless=(s == 29))
    pa(f"s_branch L_LB{w}")
    for s in range(25):
        tags = [("W", s)] + ([("X", 0)] if s == 0 else []) + ([("X", 1)] if s == 15 else [])
        wait(pb, tags); weave(pb, mm(s), FB[s])
    pb(f"s_cbranch_scc1 L_T{w}")
    tail(f"v_mov_b32 v{TOK}, {TOK_LDS}")
    tail("s_waitcnt lgkmcnt(0)")
    tail(f"ds_read_b32 v{TOK}, v{TOK}")
    tm = [m_ for s in range(25, 30) for m_ in mm(s)]
    fl = [f"v_lshlrev_b32 v{VWA}, 3, v1", f"v_add_u32 v{VX1}, {XCH}, v{VWA}"]
    if TOV:
        fl += [f"v_add_u32 v{VWB}, {XCH + 5120*w}, v{VWA}", f"v_add_u32 v{VX0}, {XCH + 5120*(w+1)}, v{VWA}"]
        for h in (0, 1, 2, 3, 4):
            d = 140 + 4 * h if h < 4 else 142; sr = acc(1, 1, h)
            fl += [f"v_cvt_pk_bf16_f32 v{d}, v{sr}, v{sr+1}", f"v_cvt_pk_bf16_f32 v{d+1}, v{sr+2}, v{sr+3}"]
            if w < 3: fl.append(f"ds_write_b64 v{VX0}, v[{d}:{d+1}] offset:{h*512}")
        for h in (1, 2, 3):
            d = 142 + 4 * h; sr = acc(1, 1, 4)
            fl += [f"v_cvt_pk_bf16_f32 v{d}, v{sr}, v{sr+1}", f"v_cvt_pk_bf16_f32 v{d+1}, v{sr+2}, v{sr+3}"]
    for n_, m_ in enumerate(tm):
        tail(m_)
        for x in fl[2*n_:2*n_+2]: tail(x)
    for x in fl[2*len(tm):]: tail(x)
    if gate:
        z = ACCH + 8
        tail(f"""v_cvt_pk_bf16_f32 v248, v{z}, v{z}
        v_and_b32 v248, 0xffff0000, v248
        v_mul_f32 v248, {LOG2E ^ 0x80000000}, v248
        v_exp_f32 v248, v248
        s_lshl_b32 s46, s21, 3
        v_add_f32 v248, 1.0, v248
        v_rcp_f32 v248, v248
        s_add_u32 s46, s46, s20
        v_cvt_pk_bf16_f32 v248, v248, v248
        v_and_b32 v248, 0xffff0000, v248
        s_lshl_b32 s46, s46, 7
        s_add_u32 s46, s46, {WS_G}
        s_waitcnt lgkmcnt(0)
        v_sub_u32 v249, v{TOK}, v248""")
    snd = []
    for n, (seg, T) in enumerate(HALO[w]):
        snd.append(cv2(242 + 2*n, ACCH + 4*n) + [f"ds_write_b64 v{VX1}, v[{242+2*n}:{243+2*n}] offset:{((seg-1)*5+T)*512}"])
    for T in range(5):
        snd.append(cv2(vop(T, 1), acc(2, 1, T)) + ([f"ds_write_b64 v{VX0}, v[{vop(T,1)}:{vop(T,1)+1}] offset:{(5+T)*512}"] if w < 3 else []))
    nh = len(HALO[w])
    if w >= 2: snd = snd[nh:] + snd[:nh]
    rest = ["s_setprio 2"] + cv2(250, acc(0, 1, 4))
    for h in range(4): rest += cv2(qop(1, h), acc(0, 1, h))
    for h in range(4):
        for j in range(2): rest.append(f"v_cndmask_b32 v{qop(1,h)+2+j}, 0, v{250+j}, s[{48+2*h}:{49+2*h}]")
    for k_, x in enumerate(snd):
        for l in x + rest[2*k_:2*k_+2]: tail(l)
    for l in rest[2*len(snd):]: tail(l)
    if gate:
        tail(f"""s_cmp_ge_u32 s20, 8
        s_cbranch_scc1 L_ATT
        s_mov_b64 exec, 0xffff
        buffer_store_dwordx2 v[248:249], v{VWA}, s[32:35], s46 offen sc1
        s_mov_b64 exec, -1""")
    else: tail("s_branch L_ATT")
    if w > 0: a(f"L_W{w}:")
    a.extend(pre); a(".p2align 3"); a(f"L_LB{w}:"); a.extend(pb); a.extend(pa); a(f"L_T{w}:"); a.extend(tail)
    traces.append(pre.L + pb.L + pa.L + pb.L + fix(tail.L)[0])
a("L_ATT:")
if STAMP: stamp2(a, 30, 51)
ev(a, "gemm")
KOP = {1: 140, 0: 156, -1: 204}
VOP = 172; QOP = {1: 68, 0: 108}
def kop(t, h): return KOP[t] + 4 * h
def vop(T, t): return VOP + 6 * T + 2 * (t + 1)
def qop(t, h): return QOP[t] + 4 * h
g = Asm()
def cvt(d, s): g(f"v_cvt_pk_bf16_f32 v{d}, v{s}, v{s+1}"); g(f"v_cvt_pk_bf16_f32 v{d+1}, v{s+2}, v{s+3}")
def flush(name):
    global g
    o, t = schedule(g.L, st_lat=STL); print(f"; sched {name}: {len(o)} instrs, est {t} cycles", file=sys.stderr)
    for n, l in enumerate(o):
        if OPT.get("astamp") and n and n % 45 == 0: a(f"s_memtime s[{86 + 2*(n//45)}:{87 + 2*(n//45)}]") if n // 45 < 8 else None
        a(l)
    if OPT.get("astamp"):
        a("s_waitcnt lgkmcnt(0)")
        for k in range(1, 8): a(f"v_writelane_b32 v{SV}, s{86+2*k}, {9+k}")
    g = Asm()
stamp(a, 31)
a("s_waitcnt lgkmcnt(0)"); a("s_barrier")
stamp(a, 32)
for h in range(4):
    g(f"ds_read_b64 v[{kop(-1,h)}:{kop(-1,h)+1}], v{VWB} offset:{h*512}")
    g(f"ds_read_b64 v[{kop(-1,h)+2}:{kop(-1,h)+3}], v{VWB} offset:{4*512}")
for T in range(5): g(f"ds_read_b64 v[{vop(T,-1)}:{vop(T,-1)+1}], v{VWB} offset:{(5+T)*512}")
g("@wait")
g(f"v_lshlrev_b32 v{VX0}, 4, v1"); g(f"v_mul_u32_u24 v{VWA}, 12, v1")
for h in range(4): cvt(kop(0, h), acc(1, 0, h)); cvt(kop(0, h) + 2, acc(1, 0, 4))
for T in range(5): cvt(vop(T, 0), acc(2, 0, T))
cvt(246, acc(0, 0, 4))
for h in range(4): cvt(qop(0, h), acc(0, 0, h))
for h in range(4):
    for j in range(2): g(f"v_cndmask_b32 v{qop(0,h)+2+j}, 0, v{246+j}, s[{48+2*h}:{49+2*h}]")
SR = {1: [28, 32, 36, 40, 44, 48, 52, 56], 0: [8, 12, 16, 20, 24, 88, 92, 96]}
def dc(t, h): return SR[t][h]
def dp(t, h): return SR[t][4 + h]
MX = {1: 84, 0: 124}; TMP = {1: 128, 0: 132}
OREG = {1: [68, 72, 76, 80, 140, 144, 148, 152, 60, 64, 100, 104], 0: [108, 112, 116, 120, 156, 160, 164, 168, 204, 208, 212, 216]}
def oo(t, h, k): return OREG[t][k * 4 + h]
for t in (1, 0):
    for h in range(4):
        g(f"{MF} {vr(dc(t,h))}, {vr(kop(t,h))}, {vr(qop(t,h))}, {vr(MC)}")
        g(f"{MF} {vr(dp(t,h))}, {vr(kop(t-1,h))}, {vr(qop(t,h))}, {vr(MP if t else MP0)}")
for t in (1, 0):
    for h in range(4):
        for r in range(4): g(f"v_max_f32 v{dc(t,h)+r}, v{dc(t,h)+r}, v{dp(t,h)+r}")
        g(f"v_max3_f32 v{MX[t]+h}, v{dc(t,h)}, v{dc(t,h)+1}, v{dc(t,h)+2}")
        g(f"v_max_f32 v{MX[t]+h}, v{MX[t]+h}, v{dc(t,h)+3}")
    m = MX[t]
    g(f"""v_permlane32_swap_b32 v{m}, v{m+1}
    v_permlane32_swap_b32 v{m+2}, v{m+3}
    v_max_f32 v{m}, v{m}, v{m+1}
    v_max_f32 v{m+2}, v{m+2}, v{m+3}
    v_permlane16_swap_b32 v{m}, v{m+2}
    v_max_f32 v{m}, v{m}, v{m+2}
    v_mul_f32 v{m+2}, s92, v{m}
    v_mul_f32 v{m}, s92, v{m}
    v_permlane16_swap_b32 v{m}, v{m+2}
    v_mov_b32 v{m+1}, v{m}
    v_mov_b32 v{m+3}, v{m+2}
    v_permlane32_swap_b32 v{m}, v{m+1}
    v_permlane32_swap_b32 v{m+2}, v{m+3}""")
    for h in range(4):
        d = dc(t, h); p = dp(t, h)
        if PK:
            mp_ = m + (h & 2); e = h & 1
            for r in (0, 2): g(f"v_pk_fma_f32 v[{d+r}:{d+r+1}], v[{d+r}:{d+r+1}], s[92:93], v[{mp_}:{mp_+1}] op_sel:[0,0,{e}] op_sel_hi:[1,1,{e}] neg_lo:[0,0,1] neg_hi:[0,0,1]")
        else:
            for r in range(4): g(f"v_fma_f32 v{d+r}, v{d+r}, s92, -v{m+h}")
        for r in range(4): g(f"v_exp_f32 v{d+r}, v{d+r}")
        g(f"v_cvt_pk_bf16_f32 v{d}, v{d}, v{d+1}"); g(f"v_cvt_pk_bf16_f32 v{d+2}, v{d+2}, v{d+3}")
        g(f"v_and_b32 v{p}, v{AM}, v{d}"); g(f"v_and_b32 v{p+1}, v{AM+1}, v{d+2}")
        g(f"v_and_b32 v{p+2}, v{AM+2}, v{d}"); g(f"v_and_b32 v{p+3}, v{AM+3}, v{d+2}")
    for h in range(4):
        g(f"{MF} {vr(oo(t,h,2))}, {vr(ONES)}, {vr(dp(t,h))}, 0")
        g(f"{MF} {vr(oo(t,h,0))}, {vr(vop(h,t-1))}, {vr(dp(t,h))}, 0")
        g(f"{MF} {vr(oo(t,h,1))}, {vr(vop(4,t-1))}, {vr(dp(t,h))}, 0")
    for h in range(4):
        o0 = oo(t, h, 0); rc = oo(t, h, 2)
        g(f"v_rcp_f32 v{rc}, v{rc}")
        if PK:
            for r in (0, 2): g(f"v_pk_mul_f32 v[{o0+r}:{o0+r+1}], v[{o0+r}:{o0+r+1}], v[{rc}:{rc+1}] op_sel_hi:[1,0]")
        else:
            for r in range(4): g(f"v_mul_f32 v{o0+r}, v{o0+r}, v{rc}")
        for r in range(4): g(f"v_mul_f32_dpp v{TMP[t]+r}, v{oo(t,h,1)+r}, v{rc} quad_perm:[0,1,2,3] row_mask:{hex(1<<h)} bank_mask:0xf")
        cvt(dc(t, h >> 1) + 2 * (h & 1), o0)
    cvt(dc(t, 2), TMP[t])
    so = "s95" if t else "s94"
    c = dc(t, 2)
    for p in range(2):
        g(f"buffer_store_dwordx4 {vr(dc(t, p))}, v{VX0}, s[32:35], {so} offen offset:{1024*p} sc1")
    d = dc(t, 0); e = dc(t, 1)
    g(f"v_add3_u32 v{c+2}, v{d}, v{d+1}, v{d+2}"); g(f"v_add3_u32 v{c+3}, v{e}, v{e+1}, v{e+2}")
    g(f"v_add3_u32 v{c+2}, v{c+2}, v{d+3}, v{e+3}"); g(f"v_add3_u32 v{c+2}, v{c+2}, v{c+3}, v{TOK}")
    g(f"v_add3_u32 v{c+2}, v{c+2}, v{c}, v{c+1}")
    g(f"buffer_store_dwordx3 {vr(c,3)}, v{VWA}, s[32:35], {so} offen offset:2048 sc1")
flush("attention")
if STAMP: stamp2(a, 35, 52)
ev(a, "att")
WR = 48
NRK = 6
OR_ = 168
AC = 224
CK = 244
BA = {"S1": 248, "S2": 249, "S0": 250, "TOP": 251, "R1": 248, "R2": 249, "TB": 252}
def lring(l):
    k = (l - 30) % 15
    return 8 + 4 * k
a("L_P2_PRE:")
a("v_lshlrev_b32 v2, 4, v1")
a("s_lshr_b32 s64, s22, 2")
a(f"s_mul_i32 s60, s64, {CL['S1'][3]}"); a(f"s_add_u32 s60, s60, {CL['S1'][2]}"); a(f"v_add_u32 v{BA['S1']}, s60, v2")
a(f"s_mul_i32 s60, s64, {CL['S2'][3]}"); a(f"s_add_u32 s60, s60, {CL['S2'][2]}"); a(f"v_add_u32 v{BA['S2']}, s60, v2")
for l in range(30): a(f"ds_read_b128 {vr(WR+4*l)}, v{BA['S1' if l < 24 else 'S2']} offset:{(l % 24)*1024}")
for nm in ("S0", "TOP", "TB"):
    a(f"s_mul_i32 s60, s64, {CL[nm][3]}"); a(f"s_add_u32 s60, s60, {CL[nm][2]}"); a(f"v_add_u32 v{BA[nm]}, s60, v2")
consumer_ids()
rotbit("s86")
a(f"""s_and_b32 s65, s22, 3
s_lshl_b32 s67, s85, 2
s_add_u32 s67, s67, s65
s_mul_i32 s80, s67, {OTT}
s_mul_i32 s60, s64, {8*OBLK}
s_add_u32 s80, s80, s60
v_mul_u32_u24 v3, 12, v1
v_add_u32 v3, 2048, v3
v_and_b32 v4, 15, v1
v_lshlrev_b32 v5, 3, v4
s_lshl_b32 s62, s67, 7
s_add_u32 s62, s62, {WS_G}
v_sub_u32 v254, 0, v{TOK}
s_add_u32 s82, s80, {4*OBLK}
s_mul_i32 s86, s86, {4*OBLK}
s_add_u32 s80, s80, s86
s_sub_u32 s82, s82, s86
s_add_u32 s81, s80, {2*OBLK}
s_add_u32 s83, s82, {2*OBLK}
s_mov_b32 s28, s18
s_mov_b32 s29, s19
s_mov_b32 s30, 2621440
s_mov_b32 s31, 0x20000
s_mov_b32 s61, 0""")
stamp(a, 36)
a("s_waitcnt lgkmcnt(0)")
a("s_barrier")
stamp(a, 37)
a("s_cmp_lt_u32 s22, 4"); a("s_cbranch_scc1 L_P2_C")
dma_class("R1"); dma_class("R2")
if OWAIT >= 2: a("s_waitcnt vmcnt(0)"); stamp(a, 38)
a("s_branch L_P2_GO")
a("L_P2_C:")
if OWAIT: a("s_waitcnt vmcnt(0)"); stamp(a, 38)
a("s_setprio 0")
a("L_P2_GO:")
if OWAIT >= 2: a("s_barrier")
if OWAIT >= 3: a(f"s_sleep {OWAIT}")
if STAMP: stamp2(a, 39, 53)
ev(a, "bp")
def og(m, e, k): return OR_ + (m & 1) * 24 + e * 12 + k * 4
def ld_pair(m):
    o = []
    for e in range(2):
        for k in range(2): o.append(f"buffer_load_dwordx4 {vr(og(m, e, k))}, v2, s[32:35], s{80+m} offen offset:{e*OBLK + k*1024} sc1")
        o.append(f"buffer_load_dwordx3 {vr(og(m, e, 2), 3)}, v3, s[32:35], s{80+m} offen offset:{e*OBLK} sc1")
    return o
def chk_pair(m):
    o = []
    for e in range(2):
        d = og(m, e, 0); f = og(m, e, 1); c = og(m, e, 2); x = CK + 2 * e
        o.append([f"v_add3_u32 v{x}, v{d}, v{d+1}, v{d+2}", f"v_add3_u32 v{x+1}, v{f}, v{f+1}, v{f+2}", f"v_add3_u32 v{x}, v{x}, v{d+3}, v{f+3}",
                  f"v_add3_u32 v{x}, v{x}, v{x+1}, v{TOK}", f"v_add3_u32 v{x}, v{x}, v{c}, v{c+1}", f"v_xor_b32 v{x}, v{x}, v{c+2}"])
    o = [o[j][i] for i in range(6) for j in range(2)]
    o += [f"v_or_b32 v{CK}, v{CK}, v{CK+2}", f"v_cmp_ne_u32 vcc, 0, v{CK}"]
    return o
def ofrag(i):
    m, ss = i // 5, i % 5
    return og(m, ss >> 1, ss & 1) if ss < 4 else og(m, 0, 2)
def ld_w(i):
    if i < NRK or i >= 20: return []
    o = []
    for T in range(5):
        l = i * 5 + T
        nm = [k for k, v in CL.items() if v[0] <= l < v[0] + v[1]][0]
        o.append(f"ds_read_b128 {vr(lring(l))}, v{BA[nm]} offset:{(l - CL[nm][0]) * 1024}")
    return o
GLD = "buffer_load_dwordx2 v[6:7], v5, s[32:35], s62 offen sc1"
if PD == 2:
    for x in ld_pair(0) + ld_pair(1): a(x)
    a("s_waitcnt vmcnt(6)")
else:
    for x in ld_pair(0): a(x)
    a("s_waitcnt vmcnt(0)")
    for x in ld_pair(1): a(x)
stamp(a, 33)
for x in chk_pair(0): a(x)
PRE = ["s_lshr_b32 s46, s67, 4", "s_lshl_b32 s46, s46, 8", "s_bfe_u32 s47, s67, 0x10003", "s_add_u32 s46, s46, s47", "s_and_b32 s47, s67, 7",
       "s_lshl_b32 s47, s47, 5", "s_add_u32 s46, s46, s47", "s_mul_i32 s46, s46, 1280", "s_mul_i32 s47, s84, 160", "s_add_u32 s46, s46, s47",
       "s_mul_i32 s60, s65, 5120", f"s_add_u32 s60, s60, {XCH}", f"v_add_u32 v{WR+76}, s60, v2", "v_mul_u32_u24 v4, 2560, v4", f"v_lshrrev_b32 v{WR+79}, 4, v1",
       f"v_lshl_add_u32 v{WR+77}, v{WR+79}, 4, v4", f"v_lshl_add_u32 v{WR+78}, v{WR+79}, 3, v4",
       "s_waitcnt vmcnt(0)", f"v_add3_u32 v{CK}, v6, v7, v254", f"v_cmp_ne_u32 vcc, 0, v{CK}"]
for m in range(4):
    a(f"s_cbranch_vccnz L_RETRY{m}")
    a(f"L_OK{m}:")
    if m == 0: stamp(a, 34)
    a(f"v_mov_b32 v{og(m,0,2)+2}, v{og(m,1,2)}"); a(f"v_mov_b32 v{og(m,0,2)+3}, v{og(m,1,2)+1}")
    lds_ = ld_pair(m + 2) if m < 2 else ([GLD] if m == 2 else [])
    chk = chk_pair(m + 1) if m < 3 else []
    for ss in range(5):
        i = m * 5 + ss
        nxt = ld_w(i + 2)
        w_ = []
        if i >= NRK: w_.append(f"lgkmcnt({5 if i < 19 else 0})")
        if PD == 2 and ss == 3 and m < 3: w_.insert(0, f"vmcnt({len(lds_)})")
        if w_: a("s_waitcnt " + " ".join(w_))
        for T in range(5):
            wf = vr(lring(i * 5 + T)) if i >= NRK else vr(WR + (i * 5 + T) * 4)
            a(f"{MF} {vr(AC+4*T)}, {wf}, {vr(ofrag(i))}, {'0' if i == 0 else vr(AC+4*T)}")
            if nxt: a(nxt[T])
            if PD == 2:
                if ss < 3 and T in (1, 3):
                    k = ss * 2 + (T >> 1)
                    if k < len(lds_): a(lds_[k])
                if ss >= 3 and chk:
                    k = (ss - 3) * 5 + T
                    for x in chk[k * 14 // 10:(k + 1) * 14 // 10]: a(x)
            if PD == 3 and ss >= LPOS and T in (1, 3):
                k = (ss - LPOS) * 2 + (T >> 1)
                if k < len(lds_): a(lds_[k])
            if m == 3:
                k = ss * 5 + T
                if k < len(PRE): a(PRE[k])
    if False:
        a(f"s_cmp_eq_u32 s64, {m - 1}"); a(f"s_cbranch_scc1 L_NE1{m}"); a("s_barrier"); a(f"L_NE1{m}:")
    if PD == 3 and m < 3:
        a(f"s_waitcnt vmcnt({len(lds_)})")
        for x in chk: a(x)
    if PD == 1 and m < 3:
        a("s_waitcnt vmcnt(0)")
        for x in lds_: a(x)
        for x in chk: a(x)
if STAMP: stamp2(a, 56, 54)
a("s_cbranch_vccnz L_RETRYG")
a("L_OKG:")
a("s_cmp_eq_u32 s64, 0")
a("s_cbranch_scc1 L_EPI_A")
def epi(send, keep, sc):
    RA, O4, O2 = WR + 76, WR + 77, WR + 78
    for T in send:
        for r in (0, 2): a(f"v_pk_mul_f32 v[{AC+4*T+r}:{AC+4*T+r+1}], v[{AC+4*T+r}:{AC+4*T+r+1}], v[{sc}:{sc+1}] op_sel_hi:[1,0]")
    a("s_barrier")
    for T in send: a(f"ds_write_b128 v{RA}, {vr(AC+4*T)} offset:{T*1024}")
    a("s_waitcnt lgkmcnt(0)"); a("s_barrier")
    for n, T in enumerate(keep): a(f"ds_read_b128 {vr(8+4*n)}, v{RA} offset:{T*1024}")
    for n, T in enumerate(keep):
        a(f"s_waitcnt lgkmcnt({len(keep)-1-n})")
        for r in (0, 2): a(f"v_pk_fma_f32 v[{8+4*n+r}:{8+4*n+r+1}], v[{AC+4*T+r}:{AC+4*T+r+1}], v[{sc}:{sc+1}], v[{8+4*n+r}:{8+4*n+r+1}] op_sel_hi:[1,0,1]")
        a(f"v_cvt_pk_bf16_f32 v{OR_+2*n}, v{8+4*n}, v{8+4*n+1}"); a(f"v_cvt_pk_bf16_f32 v{OR_+2*n+1}, v{8+4*n+2}, v{8+4*n+3}")
        if n == 1: a(f"buffer_store_dwordx4 {vr(OR_)}, v{O4}, s[28:31], s46 offen offset:{32*keep[0]} {SF}")
        if n == 2: a(f"buffer_store_dwordx2 {vr(OR_+4,2)}, v{O2}, s[28:31], s46 offen offset:128 {SF}")
if EP:
    RA, O4, O2 = WR + 76, WR + 77, WR + 78
    a("s_barrier")
    for T in range(5): a(f"ds_read_b128 {vr(72+4*T)}, v{RA} offset:{T*1024}")
    a("v_sub_f32 v6, 1.0, v6"); a("v_cvt_pk_bf16_f32 v6, v6, v6"); a("v_and_b32 v6, 0xffff0000, v6")
    for T in range(5):
        a(f"s_waitcnt lgkmcnt({4-T})")
        for r in (0, 2): a(f"v_pk_fma_f32 v[{72+4*T+r}:{72+4*T+r+1}], v[{AC+4*T+r}:{AC+4*T+r+1}], v[6:7], v[{72+4*T+r}:{72+4*T+r+1}] op_sel_hi:[1,0,1]")
        a(f"v_cvt_pk_bf16_f32 v{OR_+2*T}, v{72+4*T}, v{72+4*T+1}"); a(f"v_cvt_pk_bf16_f32 v{OR_+2*T+1}, v{72+4*T+2}, v{72+4*T+3}")
        if T == 1: a(f"buffer_store_dwordx4 {vr(OR_)}, v{O4}, s[28:31], s46 offen {SF}")
        if T == 3: a(f"buffer_store_dwordx4 {vr(OR_+4)}, v{O4}, s[28:31], s46 offen offset:64 {SF}")
    a(f"buffer_store_dwordx2 {vr(OR_+8,2)}, v{O2}, s[28:31], s46 offen offset:128 {SF}")
    a("s_branch L_FIN")
    a("L_EPI_A:")
    a("s_nop 1")
    for T in range(5):
        for r in (0, 2): a(f"v_pk_mul_f32 v[{AC+4*T+r}:{AC+4*T+r+1}], v[{AC+4*T+r}:{AC+4*T+r+1}], v[6:7] op_sel_hi:[1,0]")
        a(f"ds_write_b128 v{RA}, {vr(AC+4*T)} offset:{T*1024}")
    a("s_waitcnt lgkmcnt(0)"); a("s_barrier")
else:
    a("v_sub_f32 v6, 1.0, v6"); a("v_cvt_pk_bf16_f32 v6, v6, v6"); a("v_and_b32 v6, 0xffff0000, v6")
    epi([0, 1], [2, 3, 4], 6)
    a("s_branch L_FIN")
    a("L_EPI_A:")
    a("s_nop 4")
    epi([2, 3, 4], [0, 1], 6)
ev(a, "end")
if SPIN:
    a("""s_mov_b32 s60, 0
    L_SPIN:
    s_memrealtime s[98:99]
    s_waitcnt lgkmcnt(0)
    s_sub_u32 s98, s98, s96
    s_add_u32 s60, s60, 1
    s_cmp_ge_u32 s60, 20000
    s_cbranch_scc1 L_FIN
    s_cmp_lt_u32 s98, 4000
    s_cbranch_scc1 L_SPIN""")
a("L_FIN:")
if STAMP:
    stamp(a, 57)
    a("s_add_u32 s61, s61, 1"); a(f"v_writelane_b32 v{SV}, s61, 61")
    a("s_waitcnt vmcnt(0)")
    stamp(a, 62); stamp(a, 63, True)
    a(f"s_lshl_b32 s46, s2, 3"); a(f"s_add_u32 s46, s46, s22"); a("s_lshl_b32 s46, s46, 8"); a(f"s_add_u32 s46, s46, {WS_ST}")
    a(f"v_lshlrev_b32 v2, 2, v1")
    a(f"buffer_store_dword v{SV}, v2, s[32:35], s46 offen")
a("L_END:"); a("s_endpgm")
for m in range(4):
    a(f"L_RETRY{m}:")
    a("s_add_u32 s61, s61, 1"); a(f"s_cmp_ge_u32 s61, {SPIN_MAX}"); a(f"s_cbranch_scc1 L_OK{m}")
    a(f"s_sleep {RSLEEP}")
    for x in ld_pair(m): a(x)
    a("s_waitcnt vmcnt(0)")
    for x in chk_pair(m): a(x)
    a(f"s_cbranch_vccnz L_RETRY{m}"); a(f"s_branch L_OK{m}")
a("L_RETRYG:")
a("s_add_u32 s61, s61, 1"); a(f"s_cmp_ge_u32 s61, {SPIN_MAX}"); a("s_cbranch_scc1 L_OKG")
a(f"s_sleep {RSLEEP}")
a("buffer_load_dwordx2 v[6:7], v5, s[32:35], s62 offen sc1"); a("s_waitcnt vmcnt(0)")
a(f"v_add3_u32 v{CK}, v6, v7, v254"); a(f"v_cmp_ne_u32 vcc, 0, v{CK}")
a("s_cbranch_vccnz L_RETRYG"); a("s_branch L_OKG")

l1, _ = fix(a.L)
for tr in traces:
    _, iss_ = fix(tr, verify=True)
    for x in iss_: print("; TRACE HAZARD", x, file=sys.stderr)
print(f"""; gated mix of two dilated sliding-window attention blocks (generated by gen/gen12.py)
; @launch grid=(256,1,1) block=(512,1,1) lds={LDS_TOTAL}
.amdgcn_target "amdgcn-amd-amdhsa--gfx950"
.text
.globl {KN}
.p2align 8
.type {KN},@function""")
print("\n".join(l1))
print("CODE_END:")
print('.section .rodata,"a"')
print(kd(KN, 256, 102, 256))
```

```python
import sys, struct, math
sys.path.insert(0, "gen")
from asmlib import *
NAME = "gated_mix__sliding_local_dilated__sliding_local_dilated__prompt"
KN = NAME + "_kernel"
OPT = dict(a.split("=") for a in sys.argv[1:])
STAMP = int(OPT.get("stamp", 0)); CM = int(OPT.get("cm", 1)); PK = int(OPT.get("pk", 1))
NS1 = int(OPT.get("ns1", 12)); RSLEEP = int(OPT.get("rsleep", 2)); OWAIT = int(OPT.get("owait", 2)); SB = int(OPT.get("sb", 5)); SA = int(OPT.get("sa", 3)); XP = OPT.get("xp", ""); R2 = int(OPT.get("r2", 0)); WNT = "nt " if int(OPT.get("wnt", 0)) else ""; XNT = "nt " if int(OPT.get("xnt", 0)) else ""; SNT = "nt " if int(OPT.get("snt", 0)) else ""; STG = int(OPT.get("stg", 2)); PP = OPT.get("pp", "1110101000").replace("-", ""); ROT = int(OPT.get("rot", 0 if PP else 1)); EP = 1; MRG = int(OPT.get("mrg", 0)); KP = int(OPT.get("kp", 3)); STL = int(OPT.get("stl", 60)); TOV = 1; LPOS = int(OPT.get("lpos", 2)); COV = int(OPT.get("cov", 0)); SF = OPT.get("sf", "nt").replace("+", " "); PD = int(OPT.get("pd", 1))
def f2u(x): return struct.unpack("<I", struct.pack("<f", x))[0]
STAGE = 49152; XOFF = 30720
GW_LDS = 147456; TOK_LDS = GW_LDS + 1536; SCR_LDS = 149504; LDS_TOTAL = 163840
XCH = 126976
RED = 98304
OBLK = 2816; OTT = 16 * OBLK
WS_WOT = 0x700000; WS_G = 0x900000; WS_FW = 0x910000; WS_ST = 0x1000000
NEG = f2u(-1e30)
CEXP = f2u(20 ** -0.5 * math.log2(math.e))
LOG2E = f2u(math.log2(math.e))
MF = "v_mfma_f32_16x16x32_bf16"
SPIN_MAX = 1 << 17
SV = 255
def stamp(a, idx, real=False):
    if not STAMP: return
    a(f"{'s_memrealtime' if real else 's_memtime'} s[68:69]"); a("s_waitcnt lgkmcnt(0)"); a(f"v_writelane_b32 v{SV}, s68, {idx}")
SPIN = OPT.get("spin", "")
def ev(a, name):
    if SPIN == name: a("s_memrealtime s[96:97]"); a("s_waitcnt lgkmcnt(0)")
def stamp2(a, idx, ridx):
    stamp(a, idx); stamp(a, ridx, True)
def stamp0(a):
    if STAMP: a(f"v_mov_b32 v{SV}, 0"); a(f"v_writelane_b32 v{SV}, s66, 0"); a(f"v_writelane_b32 v{SV}, s68, 1")

a = Asm()
traces = []
def ids():
    a("""v_and_b32 v1, 63, v0
    s_and_b32 s20, s2, 3
    s_lshl_b32 s20, s20, 2
    s_bfe_u32 s46, s2, 0x20003
    s_add_u32 s20, s20, s46
    s_lshr_b32 s47, s2, 5
    s_and_b32 s21, s2, 4
    s_lshl_b32 s21, s21, 1
    s_add_u32 s21, s21, s47
    s_mul_i32 s23, s46, 5
    s_add_u32 s23, s23, 1
    s_lshr_b32 s23, s23, 1
    s_add_u32 s23, s23, s47
    s_sub_u32 s46, s23, 10""")
    a("s_cselect_b32 s23, s23, s46" if ROT else "s_mov_b32 s23, 0")
def srd_ws_dbg():
    WSO = int(OPT.get("wso", 0)) << 20
    a(f"""s_add_u32 s32, s78, {WSO}
    s_addc_u32 s33, s79, 0
    s_mov_b32 s34, {0x10000000 - WSO}
    s_mov_b32 s35, 0x20000
    s_mov_b32 s40, s76
    s_mov_b32 s41, s77
    s_mov_b32 s42, 256
    s_mov_b32 s43, 0x20000""")
def consumer_ids():
    if CM:
        a("s_bfe_u32 s84, s2, 0x30003"); a("s_and_b32 s85, s2, 7"); a("s_lshl_b32 s85, s85, 2"); a("s_lshr_b32 s86, s2, 6"); a("s_add_u32 s85, s85, s86")
    else:
        a("s_and_b32 s84, s20, 7"); a("s_lshl_b32 s85, s21, 1"); a("s_lshr_b32 s86, s20, 3"); a("s_add_u32 s85, s85, s86")
def pf_setup(isw_scc_cmp, vdst, vt, soff, sstep, lblx, lble):
    a(f"""s_lshr_b32 s44, s2, 3
    {isw_scc_cmp}
    s_cbranch_scc0 {lblx}
    v_mul_u32_u24 v{vt}, 13108, v1
    v_lshrrev_b32 v{vt}, 16, v{vt}
    v_mul_u32_u24 v{vt}, 640, v{vt}
    v_lshl_add_u32 v{vdst}, v1, 7, v{vt}
    s_mul_i32 {soff}, s44, 15360
    s_and_b32 s45, s2, 1
    s_mul_i32 s45, s45, 640
    s_add_u32 {soff}, {soff}, s45
    s_mov_b32 {sstep}, 491520
    s_cmp_ge_u32 s20, 8
    s_cselect_b32 s88, s12, s6
    s_cselect_b32 s89, s13, s7
    s_mov_b32 s90, 2457600
    s_branch {lble}
    {lblx}:
    v_lshrrev_b32 v{vt}, 1, v1
    v_mul_u32_u24 v{vt}, 1280, v{vt}
    v_and_b32 v{vdst}, 1, v1
    v_lshl_add_u32 v{vdst}, v{vdst}, 7, v{vt}
    s_and_b32 s45, s2, 4
    s_lshl_b32 s45, s45, 3
    s_add_u32 s44, s44, s45
    s_mul_i32 {soff}, s44, 40960
    s_mov_b32 {sstep}, 256
    s_mov_b32 s88, s4
    s_mov_b32 s89, s5
    s_mov_b32 s90, 2621440
    {lble}:
    s_mov_b32 s91, 0x20000""")
def rotbit(dst):
    a(f"s_xor_b32 {dst}, s84, s85"); a(f"s_and_b32 {dst}, {dst}, {R2}")
a(f"{KN}:")
if STAMP: a("s_memrealtime s[66:67]"); a("s_memtime s[68:69]")
a("""v_readfirstlane_b32 s22, v0
s_load_dwordx8 s[4:11], s[0:1], 0
s_load_dwordx8 s[12:19], s[0:1], 32
s_load_dwordx4 s[76:79], s[0:1], 64
s_lshr_b32 s3, s2, 8
s_cbranch_scc1 L_END
s_lshr_b32 s22, s22, 6
s_cmp_eq_u32 s22, 3
s_cbranch_scc1 L_HOP
s_cmp_lt_u32 s22, 4
s_cbranch_scc1 L_COMPUTE""")
ids()
a("""v_lshrrev_b32 v3, 3, v1
v_mul_u32_u24 v3, 2560, v3
v_lshrrev_b32 v4, 4, v0
v_xor_b32 v4, v4, v1
v_xor_b32 v4, 4, v4
v_and_b32 v4, 7, v4
v_lshl_add_u32 v11, v4, 4, v3
s_and_b32 s64, s22, 3
s_lshr_b32 s44, s21, 1
s_or_b32 s45, s44, s64
s_cselect_b32 s52, -20480, 0
s_lshl_b32 s44, s44, 8
s_and_b32 s45, s21, 1
s_add_u32 s44, s44, s45
s_lshl_b32 s45, s64, 4
s_add_u32 s44, s44, s45
s_mul_i32 s47, s44, 1280
s_lshl_b32 s45, s23, 7
s_add_u32 s47, s47, s45
s_lshl_b32 s53, s64, 10
s_mov_b32 s30, 2621440
s_mov_b32 s31, 0x20000
s_mov_b32 s27, s31
s_setprio 2
v_mul_u32_u24 v3, 6554, v1
v_lshrrev_b32 v3, 16, v3
s_branch L_LD0
L_HOP:
s_branch L_COMPUTE
L_LD0:
v_mul_u32_u24 v4, 1120, v3
v_lshl_add_u32 v10, v1, 4, v4
s_and_b32 s46, s20, 7
s_mul_i32 s46, s46, 160
s_lshl_b32 s44, s23, 2
s_add_u32 s44, s44, s64
s_mul_i32 s44, s44, 61440
s_add_u32 s46, s46, s44
s_mul_i32 s48, s64, 7680
s_mov_b32 s49, 0
s_mov_b32 s50, 0
s_mov_b32 s87, 99
s_mov_b32 s26, 2457600
s_cmp_ge_u32 s20, 8
s_waitcnt lgkmcnt(0)
s_cselect_b32 s24, s12, s6
s_cselect_b32 s25, s13, s7
s_mov_b32 s28, s4
s_mov_b32 s29, s5""")
stamp0(a); stamp(a, 2)
a("L_LD_ISSUE:")
a(f"s_add_u32 m0, s53, {XOFF + 1024}"); a("s_add_u32 s51, s47, s52"); a(f"buffer_load_dwordx4 v11, s[28:31], s51 offen {XNT}lds")
for qq in range(1, 4):
    a(f"s_add_u32 m0, s53, {XOFF + 1024 + 4096*qq}"); a(f"s_add_u32 s51, s47, {(64*qq-16)*1280}"); a(f"buffer_load_dwordx4 v11, s[28:31], s51 offen {XNT}lds")
a("s_mov_b32 exec_hi, 0x0fffffff")
for qq in range(8):
    if qq == KP:
        a("s_cmp_lg_u32 s87, 0"); a("s_cbranch_scc1 L_HK"); a(f"s_waitcnt vmcnt({4 + KP})"); a("L_HKB:")
        if STAMP == 1: a("s_memtime s[68:69]"); a("s_waitcnt lgkmcnt(0)"); a(f"s_add_u32 m0, s50, 19"); a(f"v_writelane_b32 v{SV}, s68, m0")
        a("s_barrier")
        if STAMP == 1: a("s_memrealtime s[68:69]"); a("s_waitcnt lgkmcnt(0)"); a(f"s_add_u32 m0, s50, 39"); a(f"v_writelane_b32 v{SV}, s68, m0")
        a("L_NB0:"); a("s_mov_b32 s87, 0")
    r = 2 * qq; k = (r & 0x33) | ((r & 4) << 1) | ((r & 8) >> 1)
    a(f"s_add_u32 m0, s48, {960*qq}"); a(f"s_add_u32 s51, s46, {k*3840}"); a(f"buffer_load_dwordx4 v10, s[24:27], s51 offen {WNT}lds")
a("s_mov_b32 exec_hi, -1")
a("s_cmp_lg_u32 s64, 0"); a("s_cbranch_scc1 L_LD_W")
a(f"s_add_u32 m0, s53, {XOFF + 1024 + 4096*4}"); a(f"s_add_u32 s51, s47, {(64*4-16)*1280}"); a(f"buffer_load_dwordx4 v11, s[28:31], s51 offen {XNT}lds")
a("L_LD_W:")
a(f"""s_mov_b32 s63, {STAGE}
s_add_u32 s23, s23, 1
s_cmp_eq_u32 s23, 10
s_cselect_b32 s23, 0, s23
s_cselect_b32 s51, -9, 1
s_mul_i32 s44, s51, 245760
s_add_u32 s46, s46, s44
s_lshl_b32 s44, s51, 7
s_add_u32 s47, s47, s44
s_add_u32 s49, s49, 1
s_cmp_eq_u32 s49, 3
s_cselect_b32 s51, {(-2*STAGE) & 0xffffffff}, s63
s_cselect_b32 s49, 0, s49
s_add_u32 s48, s48, s51
s_add_u32 s53, s53, s51
s_add_u32 s50, s50, 1""")
def lstamp(base):
    if STAMP == 1: a("s_memtime s[68:69]"); a("s_waitcnt lgkmcnt(0)"); a(f"s_add_u32 m0, s50, {base}"); a(f"v_writelane_b32 v{SV}, s68, m0")
lstamp(9)
a(f"""s_cmp_lt_u32 s50, 2
s_cbranch_scc1 L_LD_PRE0
L_DISP:
s_cmp_eq_u32 s50, s96
s_cbranch_scc1 L_SIDE_A
L_SA_RET:
s_cmp_eq_u32 s50, s97
s_cbranch_scc1 L_TOK_A
s_cmp_eq_u32 s50, s98
s_cbranch_scc1 L_TOK_B
s_cmp_eq_u32 s50, 9
s_cbranch_scc1 L_WOF_A
s_cmp_eq_u32 s50, 10
s_cbranch_scc1 L_WOF_B""")
a("L_LD_WAIT:")
a("L_LD_BAR:")
a("L_LD_PRE:")
if PP:
    a("s_cmp_ge_u32 s64, 2"); a("s_cbranch_scc1 L_LD_ISSUE")
    if STG == 1:
        for n in (1, 2):
            mask = sum(1 << c for c in range(1, 10) if int(PP[c]) >= n)
            if mask:
                a(f"s_bitcmp1_b32 {mask}, s50"); a("s_cbranch_scc0 L_LD_ISSUE")
                a("buffer_load_dword v41, v40, s[88:91], s92 offen"); a("s_add_u32 s92, s92, s93"); a("s_add_u32 s87, s87, 1")
    else:
        a("s_bitcmp1_b32 s94, s50"); a("s_cbranch_scc0 L_LD_ISSUE")
        a("s_mov_b32 s44, s92")
        for n in range(STG):
            a("buffer_load_dword v41, v40, s[88:91], s44 offen")
            if n < STG - 1: a("s_add_u32 s44, s44, s95")
        a(f"s_mul_i32 s44, s93, {STG}"); a("s_add_u32 s92, s92, s44"); a(f"s_add_u32 s87, s87, {STG}")
a("s_branch L_LD_ISSUE")
a("L_HK:")
for e_ in (1, 2, 3, 4, 5, 6, 8):
    a(f"s_cmp_lg_u32 s87, {e_}"); a(f"s_cbranch_scc1 L_HK{e_}"); a(f"s_waitcnt vmcnt({4 + KP + e_})"); a("s_branch L_HKB"); a(f"L_HK{e_}:")
a("s_branch L_NB0")
a("L_LD_PRE0:")
srd_ws_dbg()
a("v_lshlrev_b32 v12, 4, v1"); a("v_mov_b32 v13, 0")
if PP:
    pf_setup("s_cmp_eq_u32 s64, 1", 40, 41, "s92", "s93", "L_LPX", "L_LPE")
    a(f"s_mul_i32 s44, s93, {max(int(PP[0]), 1)}"); a("s_add_u32 s92, s92, s44")
    if STG > 1:
        pos = [c for c in range(1, 10) if PP[c] != "0"]
        a("s_cmp_eq_u32 s64, 1"); a("s_mov_b32 s95, 40960"); a("s_cselect_b32 s95, 15360, s95")
        a(f"s_bfe_u32 s45, s2, 0x{(STG.bit_length()-1):x}0003")
        a("s_mul_i32 s44, s45, s95"); a("s_sub_u32 s92, s92, s44"); a("s_mul_i32 s44, s45, s93"); a("s_add_u32 s92, s92, s44")
        a("s_mov_b32 s94, 0")
        for g_ in range(STG):
            mask = sum(1 << c for k, c in enumerate(pos) if k % STG == g_)
            a(f"s_cmp_eq_u32 s45, {g_}"); a(f"s_cselect_b32 s94, {mask}, s94")
if MRG:
    pos = [c for c in range(1, 10) if PP[c] != "0"]
    assert STG == 2 and len(pos) == 4
    a("s_bitcmp1_b32 s2, 3"); a(f"s_cselect_b32 s96, {pos[1]}, {pos[0]}"); a(f"s_cselect_b32 s97, {pos[3]}, {pos[2]}")
else:
    a(f"s_mov_b32 s96, {SA}"); a(f"s_mov_b32 s97, {SB}")
a("s_add_u32 s98, s97, 2")
a("s_branch L_DISP")
a("L_SIDE_A:")
if int(OPT.get("u2", 1)):
    a("""s_mov_b32 s56, 0
    s_cmp_lt_u32 s64, 2
    s_cbranch_scc1 L_SA_RET
    s_mov_b32 s57, s2
    s_cmp_eq_u32 s64, 2
    s_cbranch_scc1 L_SA_GO
    s_bitcmp0_b32 s2, 3
    s_cbranch_scc1 L_SA_RET
    s_lshr_b32 s44, s2, 4
    s_sub_u32 s44, s44, 4
    s_cmp_ge_u32 s44, 8
    s_cbranch_scc1 L_SA_RET
    s_lshl_b32 s44, s44, 3
    s_and_b32 s57, s2, 7
    s_add_u32 s57, s57, s44
    s_add_u32 s57, s57, 256
    L_SA_GO:""")
else:
    a("""s_mov_b32 s56, 0
    s_sub_u32 s44, s64, 2
    s_lshl_b32 s57, s44, 8
    s_add_u32 s57, s57, s2
    s_cmp_ge_u32 s57, 320
    s_cbranch_scc1 L_SA_RET""")
a("""s_mov_b32 s56, 1
s_mov_b32 s39, 0x20000
s_and_b32 s45, s57, 7
s_lshr_b32 s44, s57, 3
s_mul_i32 s58, s44, 52
s_lshr_b32 s58, s58, 8
s_mul_i32 s59, s58, 5
s_sub_u32 s59, s44, s59
s_cmp_ge_u32 s58, 4
s_cselect_b32 s36, s14, s8
s_cselect_b32 s37, s15, s9
s_mov_b32 s38, 819200
s_and_b32 s58, s58, 3
s_mul_i32 s58, s58, 160
s_mul_i32 s60, s59, 40
s_cmp_eq_u32 s59, 4
s_cselect_b32 s60, 16, s60
s_cselect_b32 s54, 80, 20
s_cselect_b32 s55, 20, 4
s_add_u32 s58, s58, s60
s_mul_i32 s58, s58, 1280
s_mul_i32 s60, s45, 160
s_add_u32 s58, s58, s60
s_mul_i32 s54, s54, 1280
s_mul_i32 s55, s55, 1280""")
a(f"s_mul_i32 s62, s64, 5120"); a(f"s_add_u32 s62, s62, {SCR_LDS - 10240}")
a("s_mov_b32 exec_hi, 0xff")
for g in range(4):
    for jh in range(2):
        a(f"s_add_u32 m0, s62, {(16*(g>>1) + 8*jh + 4*(g&1))*160}")
        if jh == 0: a("s_add_u32 s51, s58, s54"); a(f"buffer_load_dwordx4 v10, s[36:39], s58 offen {SNT}lds")
        else: a("s_add_u32 s58, s58, s55"); a(f"buffer_load_dwordx4 v10, s[36:39], s51 offen {SNT}lds")
a("s_mov_b32 exec_hi, -1")
a(f"""s_mul_i32 s61, s45, 204800
s_mul_i32 s58, s44, 5120
s_add_u32 s61, s61, s58
s_add_u32 s61, s61, {WS_WOT}
""")
if True: a("s_mov_b32 s87, 8"); a("s_branch L_LD_BAR")
a("L_SIDE_B:")
assert SB >= SA + 2
a("""v_lshrrev_b32 v16, 5, v1
v_lshlrev_b32 v16, 4, v16
v_bfe_u32 v17, v1, 4, 1
v_lshl_add_u32 v16, v17, 2, v16
v_bfe_u32 v17, v1, 2, 2
v_add_u32 v16, v16, v17
v_mul_u32_u24 v16, 160, v16
v_add_u32 v16, s62, v16
v_and_b32 v17, 3, v1
v_lshl_add_u32 v18, v17, 4, v16
v_lshl_add_u32 v19, v17, 3, v16""")
for T in range(5):
    for j in range(2):
        if T < 4: a(f"ds_read_b64_tr_b16 v[{20+4*T+2*j}:{21+4*T+2*j}], v18 offset:{j*1280 + 64*(T>>1) + 8*(T&1)}")
        else: a(f"ds_read_b64_tr_b16 v[{20+4*T+2*j}:{21+4*T+2*j}], v19 offset:{j*1280 + 128}")
a("s_waitcnt lgkmcnt(0)")
for T in range(4): a(f"buffer_store_dwordx4 v[{20+4*T}:{23+4*T}], v12, s[32:35], s61 offen offset:{1024*T} sc1")
a("s_add_u32 s61, s61, 4096")
a(f"buffer_store_dwordx4 v[36:39], v12, s[32:35], s61 offen sc1")
a("s_mov_b32 s87, 6"); a("s_branch L_LD_BAR")
a("L_TOK_A:")
srd_ws_dbg()
a("""v_lshlrev_b32 v12, 4, v1
v_mov_b32 v13, 0
s_mov_b64 exec, 1
buffer_load_dword v15, v13, s[40:43], 0 offen sc1
s_mov_b64 exec, -1
s_cmp_lg_u32 s56, 0
s_cbranch_scc1 L_SIDE_B
s_mov_b32 s87, 1
s_branch L_LD_BAR""")
a("L_TOK_B:")
srd_ws_dbg()
a(f"""s_mov_b32 s60, 0
v_mov_b32 v13, 0
L_TOK_CHK:
v_readlane_b32 s75, v15, 0
s_add_u32 s60, s60, 1
s_cmp_lg_u32 s75, 0
s_cbranch_scc1 L_TOK_OK
s_cmp_ge_u32 s60, {SPIN_MAX}
s_cbranch_scc1 L_TOK_OK
s_sleep 4
s_mov_b64 exec, 1
buffer_load_dword v15, v13, s[40:43], 0 offen sc1
s_mov_b64 exec, -1
s_waitcnt vmcnt(0)
s_branch L_TOK_CHK
L_TOK_OK:
v_mov_b32 v14, {TOK_LDS}
v_mov_b32 v15, s75
ds_write_b32 v14, v15
s_cmp_eq_u32 s56, 0
s_waitcnt lgkmcnt(0)
s_cbranch_scc1 L_LD_WAIT
s_and_b32 s45, s57, 7
s_lshl_b32 s45, s45, 13
s_lshr_b32 s44, s57, 3
s_lshl_b32 s44, s44, 7
s_add_u32 s45, s45, s44
s_add_u32 s45, s45, {WS_FW}
v_lshlrev_b32 v13, 2, v1
s_mov_b32 exec_hi, 0
buffer_store_dword v15, v13, s[32:35], s45 offen sc1
s_mov_b32 exec_hi, -1
s_mov_b32 s87, 1
s_branch L_LD_BAR""")
a("L_WOF_A:")
srd_ws_dbg()
consumer_ids()
a(f"""s_lshl_b32 s59, s84, 13
s_add_u32 s59, s59, {WS_FW}
v_lshlrev_b32 v13, 7, v1
v_lshlrev_b32 v12, 4, v1
s_mov_b32 exec_hi, 0xff
buffer_load_dword v14, v13, s[32:35], s59 offen sc1
s_mov_b32 exec_hi, -1
s_mov_b32 s87, 1
s_branch L_LD_BAR
L_WOF_B:""")
srd_ws_dbg()
a("""v_lshlrev_b32 v12, 4, v1
v_lshlrev_b32 v13, 7, v1
s_mov_b32 exec_hi, 0xff
s_mov_b32 s60, 0
s_waitcnt vmcnt(12)""")
a(f"""L_WO_POLL:
v_cmp_ne_u32 vcc, s75, v14
s_cbranch_vccz L_WO_OK
s_add_u32 s60, s60, 1
s_cmp_ge_u32 s60, {SPIN_MAX}
s_cbranch_scc1 L_WO_OK
s_sleep 4
buffer_load_dword v14, v13, s[32:35], s59 offen sc1
s_waitcnt vmcnt(0)
s_branch L_WO_POLL
L_WO_OK:
s_mov_b32 exec_hi, -1
s_setprio 0""")
stamp(a, 29)
CL = {"S1": (0, 24, 49152, 24576), "S2": (24, 14, 98304, 14336), "S0": (38, 24, 0, 24576), "TOP": (62, 6, 151552, 6144), "TB": (68, 2, 147456, 2048),
      "R1": (70, 24, 49152, 24576), "R2": (94, 6, 98304, 14336)}
a(f"""s_mul_i32 s58, s84, 204800
s_add_u32 s58, s58, {WS_WOT}
s_lshr_b32 s44, s64, 1
s_and_b32 s45, s64, 1
s_lshl_b32 s45, s45, 10
s_mul_i32 s59, s44, 102400
s_add_u32 s59, s59, s58
s_add_u32 s59, s59, s45""")
rotbit("s54"); a("s_mul_i32 s54, s54, 51200"); a("s_sub_u32 s55, s59, s54"); a("s_add_u32 s59, s59, s54")
def dma_class(nm, lo=0, hi=None):
    l0, n, base, delta = CL[nm]
    a(f"s_mul_i32 s53, s44, {delta}"); a("s_add_u32 s53, s53, s45")
    for j in range(lo, n if hi is None else hi, 2):
        a(f"s_add_u32 m0, s53, {base + j*1024}"); a(f"s_add_u32 s51, {'s59' if l0 + j < 50 else 's55'}, {(l0 + j)*1024}")
        a(f"buffer_load_dwordx4 v12, s[32:35], s51 offen sc1 lds")
dma_class("S1", 0, NS1)
a(f"s_waitcnt vmcnt({NS1//2})")
if "nobar" not in XP: a("s_barrier")
dma_class("S1", NS1); dma_class("S2"); dma_class("TOP")
a("s_waitcnt vmcnt(7)")
stamp(a, 30)
a("s_barrier")
dma_class("S0"); dma_class("TB")
TOK = 253
a(f"v_mov_b32 v{TOK}, s75")
a("s_branch L_P2_PRE")
a("L_COMPUTE:")
ev(a, "start")
a(f"s_setprio {OPT.get('cprio', 3)}")
ids()
a("s_waitcnt lgkmcnt(0)")
stamp0(a); stamp(a, 2)
srd_ws_dbg()
a("""s_mov_b32 s39, 0x20000
s_mov_b32 s56, 0
s_cmp_eq_u32 s22, 3
s_cbranch_scc1 L_C_GW
s_cmp_eq_u32 s22, 2
s_cbranch_scc1 L_C_TOK""")
if PP and PP[0] != "0":
    pf_setup("s_cmp_eq_u32 s22, 0", 252, 251, "s57", "s58", "L_CPX", "L_CPE")
    for _ in range(int(PP[0])):
        a("buffer_load_dword v241, v252, s[88:91], s57 offen"); a("s_add_u32 s57, s57, s58")
if COV:
    a("""s_bfe_u32 s44, s2, 0x20003
    s_lshr_b32 s45, s2, 5
    s_cmp_eq_u32 s22, 1
    s_cbranch_scc1 L_C_CW
    s_mov_b32 s36, s4
    s_mov_b32 s37, s5
    s_mov_b32 s38, 2621440
    s_lshr_b32 s57, s44, 1
    s_mul_i32 s57, s57, 5
    s_add_u32 s57, s57, s45
    s_add_u32 s57, s57, 2
    s_sub_u32 s58, s57, 10
    s_cselect_b32 s57, s57, s58
    s_lshl_b32 s57, s57, 7
    s_lshr_b32 s58, s21, 1
    s_lshl_b32 s58, s58, 8
    s_and_b32 s59, s21, 1
    s_add_u32 s58, s58, s59
    s_and_b32 s59, s44, 1
    s_lshl_b32 s59, s59, 7
    s_add_u32 s59, s59, s58
    s_mul_i32 s59, s59, 1280
    s_add_u32 s57, s57, s59
    v_mul_u32_u24 v252, 2560, v1
    s_mov_b32 s56, 1
    s_branch L_C_SETUP
    L_C_CW:
    s_cmp_ge_u32 s20, 8
    s_cselect_b32 s36, s12, s6
    s_cselect_b32 s37, s13, s7
    s_mov_b32 s38, 2457600
    s_lshr_b32 s57, s2, 3
    s_cmp_ge_u32 s57, 12
    s_cbranch_scc1 L_C_SETUP
    s_mul_i32 s58, s57, 81920
    s_cmp_ge_u32 s57, 6
    s_cselect_b32 s59, 0, 512
    s_add_u32 s57, s58, s59
    s_add_u32 s57, s57, 1474560
    s_and_b32 s58, s2, 1
    s_mul_i32 s58, s58, 640
    s_add_u32 s57, s57, s58
    v_mul_u32_u24 v252, 1280, v1
    s_mov_b32 s56, 1""")
a("s_branch L_C_SETUP")
a("L_C_GW:")
a(f"""s_mov_b32 s36, s16
s_mov_b32 s37, s17
s_mov_b32 s38, 1280
v_lshlrev_b32 v140, 4, v1
s_mov_b32 m0, {GW_LDS}
v_mov_b64 v[144:145], 0
buffer_load_dwordx4 v140, s[36:39], 0 offen lds
buffer_load_dwordx4 v140, s[36:39], 0 offen offset:1024 lds
v_mov_b64 v[146:147], 0
ds_write_b128 v140, v[144:147] offset:{XOFF}
v_add_u32 v140, {STAGE}, v140
ds_write_b128 v140, v[144:147] offset:{XOFF}
v_add_u32 v140, {STAGE}, v140
ds_write_b128 v140, v[144:147] offset:{XOFF}
s_branch L_C_SETUP""")
a("L_C_TOK:")
a("""s_cmp_lg_u32 s2, 0
s_cbranch_scc1 L_C_CPF
s_memrealtime s[44:45]
v_mov_b32 v147, 0
s_waitcnt lgkmcnt(0)
s_or_b32 s44, s44, 1
v_mov_b32 v146, s44
s_mov_b64 exec, 1
buffer_atomic_cmpswap v[146:147], v147, s[40:43], 0 offen sc1
s_mov_b64 exec, -1
L_C_CPF:
s_getpc_b64 s[70:71]
L_PC:
s_sub_u32 s70, s70, L_PC - L_SIDE_B
s_subb_u32 s71, s71, 0
""")
if int(OPT.get("ccp", 1)):
    a(f"""s_lshr_b32 s44, s2, 3
    s_mul_i32 s44, s44, 6
    v_min_u32 v140, 5, v1
    v_add_lshl_u32 v140, v140, s44, 7
    v_min_u32 v140, CODE_END - L_SIDE_B - 4, v140
    global_load_dword v241, v140, s[70:71]""")
else:
    a("""v_lshlrev_b32 v140, 7, v1
v_add_u32 v141, 8192, v140
v_add_u32 v142, 16384, v140
v_min_u32 v140, CODE_END - L_SIDE_B - 4, v140
v_min_u32 v141, CODE_END - L_SIDE_B - 4, v141
v_min_u32 v142, CODE_END - L_SIDE_B - 4, v142
global_load_dword v241, v140, s[70:71]
global_load_dword v241, v141, s[70:71]
global_load_dword v241, v142, s[70:71]""")
a("L_C_SETUP:")
if COV == 2:
    a("s_cmp_eq_u32 s56, 0"); a("s_cbranch_scc1 L_C_S2")
    a("buffer_load_dword v241, v252, s[36:39], s57 offen")
    a("L_C_S2:")
stamp(a, 3)
VWA, VWB, VX0, VX1, VGX0, VGX1, VGW = 2, 3, 4, 5, 6, 7, 240
ACCQ, ACCK, ACCV, ACCH = 8, 48, 88, 128
RING, XB, GX = 140, 180, 204
MC, MP, MP0, AM, ONES = 220, 224, 228, 232, 236
def acc(seg, t, T): return (ACCQ, ACCK, ACCV)[seg] + t * 20 + T * 4
a("s_setprio 0")
a(f"""v_lshrrev_b32 v140, 4, v1
v_and_b32 v141, 15, v1
v_lshrrev_b32 v142, 5, v1
v_lshlrev_b32 v142, 4, v142
v_and_b32 v143, 1, v140
v_lshl_add_u32 v142, v143, 2, v142
v_lshrrev_b32 v143, 2, v141
v_add_u32 v142, v142, v143
v_mul_u32_u24 v145, 480, v142
v_and_b32 v143, 3, v141
v_lshl_add_u32 v{VWA}, v143, 3, v145
v_mul_u32_u24 v144, 40, v143
v_add3_u32 v{VWB}, v145, v144, 32
v_lshrrev_b32 v144, 1, v141
v_xor_b32 v144, v144, v140
v_lshlrev_b32 v144, 4, v144
v_lshl_add_u32 v{VX0}, v141, 7, v144
v_xor_b32 v{VX1}, 64, v{VX0}
s_and_b32 s44, s20, 7
s_lshl_b32 s44, s44, 11
v_add_u32 v{VGX0}, s44, v{VX0}
v_add_u32 v{VGX1}, s44, v{VX1}
v_lshlrev_b32 v{VGW}, 4, v140
s_lshl_b32 s44, s23, 7
s_add_u32 s44, s44, {GW_LDS}
v_add_u32 v{VGW}, s44, v{VGW}""")
a(f"s_mov_b32 s44, {NEG}")
a(f"v_mov_b32 v146, s44")
a("s_lshr_b32 s45, s21, 1"); a("s_or_b32 s45, s45, s22")
a("v_lshlrev_b32 v145, 2, v140"); a("v_sub_u32 v145, v141, v145")
for r in range(4): a(f"v_subrev_u32 v{150+r}, {r}, v145")
for r in range(4):
    a(f"v_cmp_gt_u32 vcc, 8, v{150+r}"); a(f"v_cmp_gt_i32 s[72:73], -8, v{150+r}")
    a(f"v_mov_b32 v{ONES+r}, 0x3f803f80")
    a(f"v_cndmask_b32 v{MC+r}, v146, 0, vcc"); a(f"v_cndmask_b32 v{MP+r}, v146, 0, s[72:73]")
a("s_cmp_eq_u32 s45, 0"); a("s_cselect_b64 vcc, -1, 0")
for r in range(4): a(f"v_cndmask_b32 v{MP0+r}, v{MP+r}, v146, vcc")
a("s_mov_b32 s44, 0xffff0000")
for h in range(2):
    a(f"v_ashrrev_i32 v154, 31, v{150+2*h}"); a(f"v_ashrrev_i32 v155, 31, v{151+2*h}")
    a(f"v_bfi_b32 v{AM+h}, s44, v155, v154"); a(f"v_not_b32 v{AM+2+h}, v{AM+h}")
a(f"""s_mov_b64 s[48:49], 0xffff
s_mov_b32 s50, 0xffff0000
s_mov_b32 s51, 0
s_mov_b32 s52, 0
s_mov_b32 s53, 0xffff
s_mov_b32 s54, 0
s_mov_b32 s55, 0xffff0000
s_mov_b32 s63, {STAGE}
s_mov_b32 s74, 128
s_mov_b32 s92, {CEXP}
s_mov_b32 s93, {CEXP}
s_lshl_b32 s94, s21, 3
s_lshl_b32 s95, s22, 1
s_add_u32 s94, s94, s95
s_mul_i32 s94, s94, {OTT}
s_mul_i32 s95, s20, {OBLK}
s_add_u32 s94, s94, s95
s_add_u32 s95, s94, {OTT}""")
for r in range(ACCQ, ACCH + 12, 2): a(f"v_mov_b64 v[{r}:{r+1}], 0")
a("s_waitcnt vmcnt(0) lgkmcnt(0)")
stamp(a, 4)
if COV in (1, 3):
    a("s_cmp_eq_u32 s56, 0"); a("s_cbranch_scc1 L_C_GO")
    if COV == 3: a("s_setprio 3")
    a("buffer_load_dword v241, v252, s[36:39], s57 offen")
a("s_setprio 0")
a("L_C_GO:")
a("""s_mov_b32 s44, 0
s_mov_b32 s45, 0""")
for w in range(1, 4):
    a(f"s_cmp_eq_u32 s22, {w}"); a(f"s_cbranch_scc1 L_W{w}")
KOP = {1: 140, 0: 156, -1: 204}
VOP = 172; QOP = {1: 68, 0: 108}
def kop(t, h): return KOP[t] + 4 * h
def vop(T, t): return VOP + 6 * T + 2 * (t + 1)
def qop(t, h): return QOP[t] + 4 * h
def cv2(d, s): return [f"v_cvt_pk_bf16_f32 v{d}, v{s}, v{s+1}", f"v_cvt_pk_bf16_f32 v{d+1}, v{s+2}, v{s+3}"]
HALO = [[(1,0),(1,1),(1,2)], [(1,3),(1,4),(2,0)], [(2,1),(2,2)], [(2,3),(2,4)]] if OPT.get('hal') == '0' else [[(1,0),(1,2),(2,0)], [(1,1),(1,3),(2,1)], [(1,4),(2,2),(2,3)], [(2,4)]]
D = 5
def istep(f): return f - 5 if f <= 14 else (f - 6 if f <= 21 else f - 7)
for w in range(4):
    gate = (w == 3)
    q = []
    def rdW(f):
        ks, seg, T = f // 15, (f % 15) // 5, f % 5
        d = RING + (f % 10) * 4
        if "nods" in XP: return [("s_nop 0", ("W", f))] * 2
        return [(f"ds_read_b64_tr_b16 v[{d+2*j}:{d+2*j+1}], v{VWA if T < 4 else VWB} offset:{seg*160 + ks*15360 + j*3840 + (40*T if T < 4 else 0)}", ("W", f)) for j in range(2)]
    def rdX(ks):
        o = []
        for n, tile in enumerate((1 + 2 * w, 2 + 2 * w, 0)):
            d = XB + (ks * 3 + n) * 4
            o.append((f"ds_read_b128 v[{d}:{d+3}], v{(VX0, VX1)[ks]} offset:{XOFF + tile*2048}", ("X", ks)))
        if gate:
            d = GX + ks * 8
            o.append((f"ds_read_b128 v[{d}:{d+3}], v{(VGX0, VGX1)[ks]} offset:{XOFF + 2048}", ("X", ks)))
            o.append((f"ds_read_b128 v[{d+4}:{d+7}], v{VGW} offset:{ks*64}", ("X", ks)))
        return o
    def wait(b, tags):
        last = max(i for i, t in enumerate(q) if t in tags)
        b(f"s_waitcnt lgkmcnt({min(len(q) - 1 - last, 15)})")
    def mm(f):
        ks, seg, T = f // 15, (f % 15) // 5, f % 5
        wf = vr(RING + (f % 10) * 4); o = []
        def one(dst, xf):
            o.append(f"{MF} {vr(dst)}, {wf}, {xf}, {vr(dst)}" if seg < 2 else f"{MF} {vr(dst)}, {xf}, {wf}, {vr(dst)}")
        one(acc(seg, 0, T), vr(XB + (ks * 3) * 4)); one(acc(seg, 1, T), vr(XB + (ks * 3 + 1) * 4))
        if (seg, T) in HALO[w]: one(ACCH + 4 * HALO[w].index((seg, T)), vr(XB + (ks * 3 + 2) * 4))
        if gate and seg == 0 and T == 2:
            d = GX + ks * 8
            o.append(f"{MF} {vr(ACCH+8)}, {vr(d+4)}, {vr(d)}, {vr(ACCH+8)}")
        return o
    def weave(b, ms, fs, lastless=True):
        n = len(ms)
        if OPT.get("wv", "1") == "1":
            ds = [t for t in fs if t[1] is not None]; ot = [t for t in fs if t[1] is None]
            per = [[] for _ in range(n)]
            cnt = [0] * n
            for i in range(len(ds)): cnt[i % n] += 1
            it = iter(ds)
            for j in range(n):
                for _ in range(cnt[j]): per[j].append(next(it))
            lo = 0
            for t in ot:
                load = [len(per[j]) + (1 if (lastless and j == n - 1) else 0) for j in range(n)]
                j = min(range(lo, n), key=lambda k: load[k]); lo = j
                per[j].append(t)
            for m_, p_ in zip(ms, per):
                b(m_)
                for t in p_:
                    b(t[0])
                    if t[1] is not None: q.append(t[1])
            return
        k = len(fs)
        cnt = [0] * n
        for i in range(k):
            load = [cnt[j] + (1 if (lastless and j == n - 1) else 0) for j in range(n)]
            cnt[load.index(min(load))] += 1
        it = iter(fs)
        for m_, c_ in zip(ms, cnt):
            b(m_)
            for _ in range(c_):
                t = next(it)
                b(t[0])
                if t[1] is not None: q.append(t[1])
    FA = {s: [] for s in range(25, 30)}
    x0 = rdX(0)
    FA[25] = x0[:2] + rdW(0); FA[26] = x0[2:4] + rdW(1); FA[27] = x0[4:] + rdW(2); FA[28] = rdW(3); FA[29] = rdW(4)
    FB = {s: [] for s in range(25)}
    for f in range(D, 30): FB[istep(f)] += rdW(f)
    x1 = rdX(1)
    for i, t in enumerate(x1): FB[2 + i].append(t)
    sal = ["s_add_u32 s45, s45, 1", "s_cmp_eq_u32 s45, 3", f"s_cselect_b32 s46, {(-2*STAGE) & 0xffffffff}, s63", "s_cselect_b32 s45, 0, s45"]
    for i, t in enumerate(sal): FB[10 + i].append((t, None))
    if gate:
        sal = ["s_add_u32 s23, s23, 1", "s_cmp_eq_u32 s23, 10", "s_cselect_b32 s23, 0, s23", "s_cselect_b32 s47, -1152, s74"]
        for i, t in enumerate(sal): FB[16 + i].append((t, None))
        FB[20].append((f"v_add_u32 v{VGW}, s47, v{VGW}", None))
        FB[21].append((f"v_add_u32 v{VGX0}, s46, v{VGX0}", None)); FB[22].append((f"v_add_u32 v{VGX1}, s46, v{VGX1}", None))
    FB[20].append((f"v_add_u32 v{VX0}, s46, v{VX0}", None)) if not gate else FB[14].append((f"v_add_u32 v{VX0}, s46, v{VX0}", None))
    FB[23] += [(f"v_add_u32 v{VX1}, s46, v{VX1}", None), (f"v_add_u32 v{VWA}, s46, v{VWA}", None), (f"v_add_u32 v{VWB}, s46, v{VWB}", None)]
    FB[24] += [("s_add_u32 s44, s44, 1", None), ("s_cmp_eq_u32 s44, 10", None)]
    pre = Asm(); pa = Asm(); pb = Asm(); tail = Asm()
    stamp(pre, 5)
    pre("s_barrier")
    if STAMP: stamp2(pre, 6, 50)
    ev(pre, "b0")
    for s in range(25, 30):
        for t in FA[s]: pre(t[0])
    q.clear()
    pa("s_waitcnt lgkmcnt(0)"); pa("s_nop 0" if "nobar" in XP else "s_barrier")
    for s in range(25, 30): weave(pa, mm(s), FA[s], lastless=(s == 29))
    pa(f"s_branch L_LB{w}")
    for s in range(25):
        tags = [("W", s)] + ([("X", 0)] if s == 0 else []) + ([("X", 1)] if s == 15 else [])
        wait(pb, tags); weave(pb, mm(s), FB[s])
    pb(f"s_cbranch_scc1 L_T{w}")
    tail(f"v_mov_b32 v{TOK}, {TOK_LDS}")
    tail("s_waitcnt lgkmcnt(0)")
    tail(f"ds_read_b32 v{TOK}, v{TOK}")
    tm = [m_ for s in range(25, 30) for m_ in mm(s)]
    fl = [f"v_lshlrev_b32 v{VWA}, 3, v1", f"v_add_u32 v{VX1}, {XCH}, v{VWA}"]
    if TOV:
        fl += [f"v_add_u32 v{VWB}, {XCH + 5120*w}, v{VWA}", f"v_add_u32 v{VX0}, {XCH + 5120*(w+1)}, v{VWA}"]
        for h in (0, 1, 2, 3, 4):
            d = 140 + 4 * h if h < 4 else 142; sr = acc(1, 1, h)
            fl += [f"v_cvt_pk_bf16_f32 v{d}, v{sr}, v{sr+1}", f"v_cvt_pk_bf16_f32 v{d+1}, v{sr+2}, v{sr+3}"]
            if w < 3: fl.append(f"ds_write_b64 v{VX0}, v[{d}:{d+1}] offset:{h*512}")
        for h in (1, 2, 3):
            d = 142 + 4 * h; sr = acc(1, 1, 4)
            fl += [f"v_cvt_pk_bf16_f32 v{d}, v{sr}, v{sr+1}", f"v_cvt_pk_bf16_f32 v{d+1}, v{sr+2}, v{sr+3}"]
    for n_, m_ in enumerate(tm):
        tail(m_)
        for x in fl[2*n_:2*n_+2]: tail(x)
    for x in fl[2*len(tm):]: tail(x)
    if gate:
        z = ACCH + 8
        tail(f"""v_cvt_pk_bf16_f32 v248, v{z}, v{z}
        v_and_b32 v248, 0xffff0000, v248
        v_mul_f32 v248, {LOG2E ^ 0x80000000}, v248
        v_exp_f32 v248, v248
        s_lshl_b32 s46, s21, 3
        v_add_f32 v248, 1.0, v248
        v_rcp_f32 v248, v248
        s_add_u32 s46, s46, s20
        v_cvt_pk_bf16_f32 v248, v248, v248
        v_and_b32 v248, 0xffff0000, v248
        s_lshl_b32 s46, s46, 7
        s_add_u32 s46, s46, {WS_G}
        s_waitcnt lgkmcnt(0)
        v_sub_u32 v249, v{TOK}, v248""")
    snd = []
    for n, (seg, T) in enumerate(HALO[w]):
        snd.append(cv2(242 + 2*n, ACCH + 4*n) + [f"ds_write_b64 v{VX1}, v[{242+2*n}:{243+2*n}] offset:{((seg-1)*5+T)*512}"])
    for T in range(5):
        snd.append(cv2(vop(T, 1), acc(2, 1, T)) + ([f"ds_write_b64 v{VX0}, v[{vop(T,1)}:{vop(T,1)+1}] offset:{(5+T)*512}"] if w < 3 else []))
    nh = len(HALO[w])
    if w >= 2: snd = snd[nh:] + snd[:nh]
    rest = ["s_setprio 2"] + cv2(250, acc(0, 1, 4))
    for h in range(4): rest += cv2(qop(1, h), acc(0, 1, h))
    for h in range(4):
        for j in range(2): rest.append(f"v_cndmask_b32 v{qop(1,h)+2+j}, 0, v{250+j}, s[{48+2*h}:{49+2*h}]")
    for k_, x in enumerate(snd):
        for l in x + rest[2*k_:2*k_+2]: tail(l)
    for l in rest[2*len(snd):]: tail(l)
    if gate:
        tail(f"""s_cmp_ge_u32 s20, 8
        s_cbranch_scc1 L_ATT
        s_mov_b64 exec, 0xffff
        buffer_store_dwordx2 v[248:249], v{VWA}, s[32:35], s46 offen sc1
        s_mov_b64 exec, -1""")
    else: tail("s_branch L_ATT")
    if w > 0: a(f"L_W{w}:")
    a.extend(pre); a(".p2align 3"); a(f"L_LB{w}:"); a.extend(pb); a.extend(pa); a(f"L_T{w}:"); a.extend(tail)
    traces.append(pre.L + pb.L + pa.L + pb.L + fix(tail.L)[0])
a("L_ATT:")
if STAMP: stamp2(a, 30, 51)
ev(a, "gemm")
KOP = {1: 140, 0: 156, -1: 204}
VOP = 172; QOP = {1: 68, 0: 108}
def kop(t, h): return KOP[t] + 4 * h
def vop(T, t): return VOP + 6 * T + 2 * (t + 1)
def qop(t, h): return QOP[t] + 4 * h
g = Asm()
def cvt(d, s): g(f"v_cvt_pk_bf16_f32 v{d}, v{s}, v{s+1}"); g(f"v_cvt_pk_bf16_f32 v{d+1}, v{s+2}, v{s+3}")
def flush(name):
    global g
    o, t = schedule(g.L, st_lat=STL); print(f"; sched {name}: {len(o)} instrs, est {t} cycles", file=sys.stderr)
    for n, l in enumerate(o):
        if OPT.get("astamp") and n and n % 45 == 0: a(f"s_memtime s[{86 + 2*(n//45)}:{87 + 2*(n//45)}]") if n // 45 < 8 else None
        a(l)
    if OPT.get("astamp"):
        a("s_waitcnt lgkmcnt(0)")
        for k in range(1, 8): a(f"v_writelane_b32 v{SV}, s{86+2*k}, {9+k}")
    g = Asm()
stamp(a, 31)
a("s_waitcnt lgkmcnt(0)"); a("s_barrier")
stamp(a, 32)
for h in range(4):
    g(f"ds_read_b64 v[{kop(-1,h)}:{kop(-1,h)+1}], v{VWB} offset:{h*512}")
    g(f"ds_read_b64 v[{kop(-1,h)+2}:{kop(-1,h)+3}], v{VWB} offset:{4*512}")
for T in range(5): g(f"ds_read_b64 v[{vop(T,-1)}:{vop(T,-1)+1}], v{VWB} offset:{(5+T)*512}")
g("@wait")
g(f"v_lshlrev_b32 v{VX0}, 4, v1"); g(f"v_mul_u32_u24 v{VWA}, 12, v1")
for h in range(4): cvt(kop(0, h), acc(1, 0, h)); cvt(kop(0, h) + 2, acc(1, 0, 4))
for T in range(5): cvt(vop(T, 0), acc(2, 0, T))
cvt(246, acc(0, 0, 4))
for h in range(4): cvt(qop(0, h), acc(0, 0, h))
for h in range(4):
    for j in range(2): g(f"v_cndmask_b32 v{qop(0,h)+2+j}, 0, v{246+j}, s[{48+2*h}:{49+2*h}]")
SR = {1: [28, 32, 36, 40, 44, 48, 52, 56], 0: [8, 12, 16, 20, 24, 88, 92, 96]}
def dc(t, h): return SR[t][h]
def dp(t, h): return SR[t][4 + h]
MX = {1: 84, 0: 124}; TMP = {1: 128, 0: 132}
OREG = {1: [68, 72, 76, 80, 140, 144, 148, 152, 60, 64, 100, 104], 0: [108, 112, 116, 120, 156, 160, 164, 168, 204, 208, 212, 216]}
def oo(t, h, k): return OREG[t][k * 4 + h]
for t in (1, 0):
    for h in range(4):
        g(f"{MF} {vr(dc(t,h))}, {vr(kop(t,h))}, {vr(qop(t,h))}, {vr(MC)}")
        g(f"{MF} {vr(dp(t,h))}, {vr(kop(t-1,h))}, {vr(qop(t,h))}, {vr(MP if t else MP0)}")
for t in (1, 0):
    for h in range(4):
        for r in range(4): g(f"v_max_f32 v{dc(t,h)+r}, v{dc(t,h)+r}, v{dp(t,h)+r}")
        g(f"v_max3_f32 v{MX[t]+h}, v{dc(t,h)}, v{dc(t,h)+1}, v{dc(t,h)+2}")
        g(f"v_max_f32 v{MX[t]+h}, v{MX[t]+h}, v{dc(t,h)+3}")
    m = MX[t]
    g(f"""v_permlane32_swap_b32 v{m}, v{m+1}
    v_permlane32_swap_b32 v{m+2}, v{m+3}
    v_max_f32 v{m}, v{m}, v{m+1}
    v_max_f32 v{m+2}, v{m+2}, v{m+3}
    v_permlane16_swap_b32 v{m}, v{m+2}
    v_max_f32 v{m}, v{m}, v{m+2}
    v_mul_f32 v{m+2}, s92, v{m}
    v_mul_f32 v{m}, s92, v{m}
    v_permlane16_swap_b32 v{m}, v{m+2}
    v_mov_b32 v{m+1}, v{m}
    v_mov_b32 v{m+3}, v{m+2}
    v_permlane32_swap_b32 v{m}, v{m+1}
    v_permlane32_swap_b32 v{m+2}, v{m+3}""")
    for h in range(4):
        d = dc(t, h); p = dp(t, h)
        if PK:
            mp_ = m + (h & 2); e = h & 1
            for r in (0, 2): g(f"v_pk_fma_f32 v[{d+r}:{d+r+1}], v[{d+r}:{d+r+1}], s[92:93], v[{mp_}:{mp_+1}] op_sel:[0,0,{e}] op_sel_hi:[1,1,{e}] neg_lo:[0,0,1] neg_hi:[0,0,1]")
        else:
            for r in range(4): g(f"v_fma_f32 v{d+r}, v{d+r}, s92, -v{m+h}")
        for r in range(4): g(f"v_exp_f32 v{d+r}, v{d+r}")
        g(f"v_cvt_pk_bf16_f32 v{d}, v{d}, v{d+1}"); g(f"v_cvt_pk_bf16_f32 v{d+2}, v{d+2}, v{d+3}")
        g(f"v_and_b32 v{p}, v{AM}, v{d}"); g(f"v_and_b32 v{p+1}, v{AM+1}, v{d+2}")
        g(f"v_and_b32 v{p+2}, v{AM+2}, v{d}"); g(f"v_and_b32 v{p+3}, v{AM+3}, v{d+2}")
    for h in range(4):
        g(f"{MF} {vr(oo(t,h,2))}, {vr(ONES)}, {vr(dp(t,h))}, 0")
        g(f"{MF} {vr(oo(t,h,0))}, {vr(vop(h,t-1))}, {vr(dp(t,h))}, 0")
        g(f"{MF} {vr(oo(t,h,1))}, {vr(vop(4,t-1))}, {vr(dp(t,h))}, 0")
    for h in range(4):
        o0 = oo(t, h, 0); rc = oo(t, h, 2)
        g(f"v_rcp_f32 v{rc}, v{rc}")
        if PK:
            for r in (0, 2): g(f"v_pk_mul_f32 v[{o0+r}:{o0+r+1}], v[{o0+r}:{o0+r+1}], v[{rc}:{rc+1}] op_sel_hi:[1,0]")
        else:
            for r in range(4): g(f"v_mul_f32 v{o0+r}, v{o0+r}, v{rc}")
        for r in range(4): g(f"v_mul_f32_dpp v{TMP[t]+r}, v{oo(t,h,1)+r}, v{rc} quad_perm:[0,1,2,3] row_mask:{hex(1<<h)} bank_mask:0xf")
        cvt(dc(t, h >> 1) + 2 * (h & 1), o0)
    cvt(dc(t, 2), TMP[t])
    so = "s95" if t else "s94"
    c = dc(t, 2)
    for p in range(2):
        g(f"buffer_store_dwordx4 {vr(dc(t, p))}, v{VX0}, s[32:35], {so} offen offset:{1024*p} sc1")
    d = dc(t, 0); e = dc(t, 1)
    g(f"v_add3_u32 v{c+2}, v{d}, v{d+1}, v{d+2}"); g(f"v_add3_u32 v{c+3}, v{e}, v{e+1}, v{e+2}")
    g(f"v_add3_u32 v{c+2}, v{c+2}, v{d+3}, v{e+3}"); g(f"v_add3_u32 v{c+2}, v{c+2}, v{c+3}, v{TOK}")
    g(f"v_add3_u32 v{c+2}, v{c+2}, v{c}, v{c+1}")
    g(f"buffer_store_dwordx3 {vr(c,3)}, v{VWA}, s[32:35], {so} offen offset:2048 sc1")
flush("attention")
if STAMP: stamp2(a, 35, 52)
ev(a, "att")
WR = 48
NRK = 6
OR_ = 168
AC = 224
CK = 244
BA = {"S1": 248, "S2": 249, "S0": 250, "TOP": 251, "R1": 248, "R2": 249, "TB": 252}
def lring(l):
    k = (l - 30) % 15
    return 8 + 4 * k
a("L_P2_PRE:")
a("v_lshlrev_b32 v2, 4, v1")
a("s_lshr_b32 s64, s22, 2")
a(f"s_mul_i32 s60, s64, {CL['S1'][3]}"); a(f"s_add_u32 s60, s60, {CL['S1'][2]}"); a(f"v_add_u32 v{BA['S1']}, s60, v2")
a(f"s_mul_i32 s60, s64, {CL['S2'][3]}"); a(f"s_add_u32 s60, s60, {CL['S2'][2]}"); a(f"v_add_u32 v{BA['S2']}, s60, v2")
for l in range(30): a(f"ds_read_b128 {vr(WR+4*l)}, v{BA['S1' if l < 24 else 'S2']} offset:{(l % 24)*1024}")
for nm in ("S0", "TOP", "TB"):
    a(f"s_mul_i32 s60, s64, {CL[nm][3]}"); a(f"s_add_u32 s60, s60, {CL[nm][2]}"); a(f"v_add_u32 v{BA[nm]}, s60, v2")
consumer_ids()
rotbit("s86")
a(f"""s_and_b32 s65, s22, 3
s_lshl_b32 s67, s85, 2
s_add_u32 s67, s67, s65
s_mul_i32 s80, s67, {OTT}
s_mul_i32 s60, s64, {8*OBLK}
s_add_u32 s80, s80, s60
v_mul_u32_u24 v3, 12, v1
v_add_u32 v3, 2048, v3
v_and_b32 v4, 15, v1
v_lshlrev_b32 v5, 3, v4
s_lshl_b32 s62, s67, 7
s_add_u32 s62, s62, {WS_G}
v_sub_u32 v254, 0, v{TOK}
s_add_u32 s82, s80, {4*OBLK}
s_mul_i32 s86, s86, {4*OBLK}
s_add_u32 s80, s80, s86
s_sub_u32 s82, s82, s86
s_add_u32 s81, s80, {2*OBLK}
s_add_u32 s83, s82, {2*OBLK}
s_mov_b32 s28, s18
s_mov_b32 s29, s19
s_mov_b32 s30, 2621440
s_mov_b32 s31, 0x20000
s_mov_b32 s61, 0""")
stamp(a, 36)
a("s_waitcnt lgkmcnt(0)")
a("s_barrier")
stamp(a, 37)
a("s_cmp_lt_u32 s22, 4"); a("s_cbranch_scc1 L_P2_C")
dma_class("R1"); dma_class("R2")
if OWAIT >= 2: a("s_waitcnt vmcnt(0)"); stamp(a, 38)
a("s_branch L_P2_GO")
a("L_P2_C:")
if OWAIT: a("s_waitcnt vmcnt(0)"); stamp(a, 38)
a("s_setprio 0")
a("L_P2_GO:")
if OWAIT >= 2: a("s_barrier")
if OWAIT >= 3: a(f"s_sleep {OWAIT}")
if STAMP: stamp2(a, 39, 53)
ev(a, "bp")
def og(m, e, k): return OR_ + (m & 1) * 24 + e * 12 + k * 4
def ld_pair(m):
    o = []
    for e in range(2):
        for k in range(2): o.append(f"buffer_load_dwordx4 {vr(og(m, e, k))}, v2, s[32:35], s{80+m} offen offset:{e*OBLK + k*1024} sc1")
        o.append(f"buffer_load_dwordx3 {vr(og(m, e, 2), 3)}, v3, s[32:35], s{80+m} offen offset:{e*OBLK} sc1")
    return o
def chk_pair(m):
    o = []
    for e in range(2):
        d = og(m, e, 0); f = og(m, e, 1); c = og(m, e, 2); x = CK + 2 * e
        o.append([f"v_add3_u32 v{x}, v{d}, v{d+1}, v{d+2}", f"v_add3_u32 v{x+1}, v{f}, v{f+1}, v{f+2}", f"v_add3_u32 v{x}, v{x}, v{d+3}, v{f+3}",
                  f"v_add3_u32 v{x}, v{x}, v{x+1}, v{TOK}", f"v_add3_u32 v{x}, v{x}, v{c}, v{c+1}", f"v_xor_b32 v{x}, v{x}, v{c+2}"])
    o = [o[j][i] for i in range(6) for j in range(2)]
    o += [f"v_or_b32 v{CK}, v{CK}, v{CK+2}", f"v_cmp_ne_u32 vcc, 0, v{CK}"]
    return o
def ofrag(i):
    m, ss = i // 5, i % 5
    return og(m, ss >> 1, ss & 1) if ss < 4 else og(m, 0, 2)
def ld_w(i):
    if i < NRK or i >= 20: return []
    o = []
    for T in range(5):
        l = i * 5 + T
        nm = [k for k, v in CL.items() if v[0] <= l < v[0] + v[1]][0]
        o.append(f"ds_read_b128 {vr(lring(l))}, v{BA[nm]} offset:{(l - CL[nm][0]) * 1024}")
    return o
GLD = "buffer_load_dwordx2 v[6:7], v5, s[32:35], s62 offen sc1"
if PD == 2:
    for x in ld_pair(0) + ld_pair(1): a(x)
    a("s_waitcnt vmcnt(6)")
else:
    for x in ld_pair(0): a(x)
    a("s_waitcnt vmcnt(0)")
    for x in ld_pair(1): a(x)
stamp(a, 33)
for x in chk_pair(0): a(x)
PRE = ["s_lshr_b32 s46, s67, 4", "s_lshl_b32 s46, s46, 8", "s_bfe_u32 s47, s67, 0x10003", "s_add_u32 s46, s46, s47", "s_and_b32 s47, s67, 7",
       "s_lshl_b32 s47, s47, 5", "s_add_u32 s46, s46, s47", "s_mul_i32 s46, s46, 1280", "s_mul_i32 s47, s84, 160", "s_add_u32 s46, s46, s47",
       "s_mul_i32 s60, s65, 5120", f"s_add_u32 s60, s60, {XCH}", f"v_add_u32 v{WR+76}, s60, v2", "v_mul_u32_u24 v4, 2560, v4", f"v_lshrrev_b32 v{WR+79}, 4, v1",
       f"v_lshl_add_u32 v{WR+77}, v{WR+79}, 4, v4", f"v_lshl_add_u32 v{WR+78}, v{WR+79}, 3, v4",
       "s_waitcnt vmcnt(0)", f"v_add3_u32 v{CK}, v6, v7, v254", f"v_cmp_ne_u32 vcc, 0, v{CK}"]
for m in range(4):
    a(f"s_cbranch_vccnz L_RETRY{m}")
    a(f"L_OK{m}:")
    if m == 0: stamp(a, 34)
    a(f"v_mov_b32 v{og(m,0,2)+2}, v{og(m,1,2)}"); a(f"v_mov_b32 v{og(m,0,2)+3}, v{og(m,1,2)+1}")
    lds_ = ld_pair(m + 2) if m < 2 else ([GLD] if m == 2 else [])
    chk = chk_pair(m + 1) if m < 3 else []
    for ss in range(5):
        i = m * 5 + ss
        nxt = ld_w(i + 2)
        w_ = []
        if i >= NRK: w_.append(f"lgkmcnt({5 if i < 19 else 0})")
        if PD == 2 and ss == 3 and m < 3: w_.insert(0, f"vmcnt({len(lds_)})")
        if w_: a("s_waitcnt " + " ".join(w_))
        for T in range(5):
            wf = vr(lring(i * 5 + T)) if i >= NRK else vr(WR + (i * 5 + T) * 4)
            a(f"{MF} {vr(AC+4*T)}, {wf}, {vr(ofrag(i))}, {'0' if i == 0 else vr(AC+4*T)}")
            if nxt: a(nxt[T])
            if PD == 2:
                if ss < 3 and T in (1, 3):
                    k = ss * 2 + (T >> 1)
                    if k < len(lds_): a(lds_[k])
                if ss >= 3 and chk:
                    k = (ss - 3) * 5 + T
                    for x in chk[k * 14 // 10:(k + 1) * 14 // 10]: a(x)
            if PD == 3 and ss >= LPOS and T in (1, 3):
                k = (ss - LPOS) * 2 + (T >> 1)
                if k < len(lds_): a(lds_[k])
            if m == 3:
                k = ss * 5 + T
                if k < len(PRE): a(PRE[k])
    if False:
        a(f"s_cmp_eq_u32 s64, {m - 1}"); a(f"s_cbranch_scc1 L_NE1{m}"); a("s_barrier"); a(f"L_NE1{m}:")
    if PD == 3 and m < 3:
        a(f"s_waitcnt vmcnt({len(lds_)})")
        for x in chk: a(x)
    if PD == 1 and m < 3:
        a("s_waitcnt vmcnt(0)")
        for x in lds_: a(x)
        for x in chk: a(x)
if STAMP: stamp2(a, 56, 54)
a("s_cbranch_vccnz L_RETRYG")
a("L_OKG:")
a("s_cmp_eq_u32 s64, 0")
a("s_cbranch_scc1 L_EPI_A")
def epi(send, keep, sc):
    RA, O4, O2 = WR + 76, WR + 77, WR + 78
    for T in send:
        for r in (0, 2): a(f"v_pk_mul_f32 v[{AC+4*T+r}:{AC+4*T+r+1}], v[{AC+4*T+r}:{AC+4*T+r+1}], v[{sc}:{sc+1}] op_sel_hi:[1,0]")
    a("s_barrier")
    for T in send: a(f"ds_write_b128 v{RA}, {vr(AC+4*T)} offset:{T*1024}")
    a("s_waitcnt lgkmcnt(0)"); a("s_barrier")
    for n, T in enumerate(keep): a(f"ds_read_b128 {vr(8+4*n)}, v{RA} offset:{T*1024}")
    for n, T in enumerate(keep):
        a(f"s_waitcnt lgkmcnt({len(keep)-1-n})")
        for r in (0, 2): a(f"v_pk_fma_f32 v[{8+4*n+r}:{8+4*n+r+1}], v[{AC+4*T+r}:{AC+4*T+r+1}], v[{sc}:{sc+1}], v[{8+4*n+r}:{8+4*n+r+1}] op_sel_hi:[1,0,1]")
        a(f"v_cvt_pk_bf16_f32 v{OR_+2*n}, v{8+4*n}, v{8+4*n+1}"); a(f"v_cvt_pk_bf16_f32 v{OR_+2*n+1}, v{8+4*n+2}, v{8+4*n+3}")
        if n == 1: a(f"buffer_store_dwordx4 {vr(OR_)}, v{O4}, s[28:31], s46 offen offset:{32*keep[0]} {SF}")
        if n == 2: a(f"buffer_store_dwordx2 {vr(OR_+4,2)}, v{O2}, s[28:31], s46 offen offset:128 {SF}")
if EP:
    RA, O4, O2 = WR + 76, WR + 77, WR + 78
    a("s_barrier")
    for T in range(5): a(f"ds_read_b128 {vr(72+4*T)}, v{RA} offset:{T*1024}")
    a("v_sub_f32 v6, 1.0, v6"); a("v_cvt_pk_bf16_f32 v6, v6, v6"); a("v_and_b32 v6, 0xffff0000, v6")
    for T in range(5):
        a(f"s_waitcnt lgkmcnt({4-T})")
        for r in (0, 2): a(f"v_pk_fma_f32 v[{72+4*T+r}:{72+4*T+r+1}], v[{AC+4*T+r}:{AC+4*T+r+1}], v[6:7], v[{72+4*T+r}:{72+4*T+r+1}] op_sel_hi:[1,0,1]")
        a(f"v_cvt_pk_bf16_f32 v{OR_+2*T}, v{72+4*T}, v{72+4*T+1}"); a(f"v_cvt_pk_bf16_f32 v{OR_+2*T+1}, v{72+4*T+2}, v{72+4*T+3}")
        if T == 1: a(f"buffer_store_dwordx4 {vr(OR_)}, v{O4}, s[28:31], s46 offen {SF}")
        if T == 3: a(f"buffer_store_dwordx4 {vr(OR_+4)}, v{O4}, s[28:31], s46 offen offset:64 {SF}")
    a(f"buffer_store_dwordx2 {vr(OR_+8,2)}, v{O2}, s[28:31], s46 offen offset:128 {SF}")
    a("s_branch L_FIN")
    a("L_EPI_A:")
    a("s_nop 1")
    for T in range(5):
        for r in (0, 2): a(f"v_pk_mul_f32 v[{AC+4*T+r}:{AC+4*T+r+1}], v[{AC+4*T+r}:{AC+4*T+r+1}], v[6:7] op_sel_hi:[1,0]")
        a(f"ds_write_b128 v{RA}, {vr(AC+4*T)} offset:{T*1024}")
    a("s_waitcnt lgkmcnt(0)"); a("s_barrier")
else:
    a("v_sub_f32 v6, 1.0, v6"); a("v_cvt_pk_bf16_f32 v6, v6, v6"); a("v_and_b32 v6, 0xffff0000, v6")
    epi([0, 1], [2, 3, 4], 6)
    a("s_branch L_FIN")
    a("L_EPI_A:")
    a("s_nop 4")
    epi([2, 3, 4], [0, 1], 6)
ev(a, "end")
if SPIN:
    a("""s_mov_b32 s60, 0
    L_SPIN:
    s_memrealtime s[98:99]
    s_waitcnt lgkmcnt(0)
    s_sub_u32 s98, s98, s96
    s_add_u32 s60, s60, 1
    s_cmp_ge_u32 s60, 20000
    s_cbranch_scc1 L_FIN
    s_cmp_lt_u32 s98, 4000
    s_cbranch_scc1 L_SPIN""")
a("L_FIN:")
if STAMP:
    stamp(a, 57)
    a("s_add_u32 s61, s61, 1"); a(f"v_writelane_b32 v{SV}, s61, 61")
    a("s_waitcnt vmcnt(0)")
    stamp(a, 62); stamp(a, 63, True)
    a(f"s_lshl_b32 s46, s2, 3"); a(f"s_add_u32 s46, s46, s22"); a("s_lshl_b32 s46, s46, 8"); a(f"s_add_u32 s46, s46, {WS_ST}")
    a(f"v_lshlrev_b32 v2, 2, v1")
    a(f"buffer_store_dword v{SV}, v2, s[32:35], s46 offen")
a("L_END:"); a("s_endpgm")
for m in range(4):
    a(f"L_RETRY{m}:")
    a("s_add_u32 s61, s61, 1"); a(f"s_cmp_ge_u32 s61, {SPIN_MAX}"); a(f"s_cbranch_scc1 L_OK{m}")
    a(f"s_sleep {RSLEEP}")
    for x in ld_pair(m): a(x)
    a("s_waitcnt vmcnt(0)")
    for x in chk_pair(m): a(x)
    a(f"s_cbranch_vccnz L_RETRY{m}"); a(f"s_branch L_OK{m}")
a("L_RETRYG:")
a("s_add_u32 s61, s61, 1"); a(f"s_cmp_ge_u32 s61, {SPIN_MAX}"); a("s_cbranch_scc1 L_OKG")
a(f"s_sleep {RSLEEP}")
a("buffer_load_dwordx2 v[6:7], v5, s[32:35], s62 offen sc1"); a("s_waitcnt vmcnt(0)")
a(f"v_add3_u32 v{CK}, v6, v7, v254"); a(f"v_cmp_ne_u32 vcc, 0, v{CK}")
a("s_cbranch_vccnz L_RETRYG"); a("s_branch L_OKG")

l1, _ = fix(a.L)
for tr in traces:
    _, iss_ = fix(tr, verify=True)
    for x in iss_: print("; TRACE HAZARD", x, file=sys.stderr)
print(f"""; gated mix of two dilated sliding-window attention blocks (generated by gen/gen15.py)
; @launch grid=(256,1,1) block=(512,1,1) lds={LDS_TOTAL}
.amdgcn_target "amdgcn-amd-amdhsa--gfx950"
.text
.globl {KN}
.p2align 8
.type {KN},@function""")
print("\n".join(l1))
print("CODE_END:")
print('.section .rodata,"a"')
print(kd(KN, 256, 102, 256))
```

```python
import sys, struct, math
sys.path.insert(0, "gen")
from asmlib import *
NAME = "gated_mix__sliding_local_dilated__sliding_local_dilated__prompt"
KN = NAME + "_kernel"
OPT = dict(a.split("=") for a in sys.argv[1:])
STAMP = int(OPT.get("stamp", 0)); CM = int(OPT.get("cm", 1)); PK = int(OPT.get("pk", 1))
NS1 = int(OPT.get("ns1", 12)); RSLEEP = int(OPT.get("rsleep", 2)); OWAIT = int(OPT.get("owait", 2)); SB = int(OPT.get("sb", 5)); SA = int(OPT.get("sa", 3)); XP = OPT.get("xp", ""); R2 = int(OPT.get("r2", 0)); WNT = "nt " if int(OPT.get("wnt", 0)) else ""; XNT = "nt " if int(OPT.get("xnt", 0)) else ""; SNT = "nt " if int(OPT.get("snt", 0)) else ""; STG = int(OPT.get("stg", 2)); PP = OPT.get("pp", "1110101000").replace("-", ""); ROT = int(OPT.get("rot", 0 if PP else 1)); EP = 1; MRG = int(OPT.get("mrg", 0)); KP = int(OPT.get("kp", 3)); STL = int(OPT.get("stl", 60)); TOV = 1; LPOS = int(OPT.get("lpos", 2)); COV = int(OPT.get("cov", 0)); SF = OPT.get("sf", "nt").replace("+", " "); PD = int(OPT.get("pd", 1))
def f2u(x): return struct.unpack("<I", struct.pack("<f", x))[0]
STAGE = 49152; XOFF = 30720
GW_LDS = 147456; TOK_LDS = GW_LDS + 1536; SCR_LDS = 149504; LDS_TOTAL = 163840
XCH = 126976
RED = 98304
OBLK = 2816; OTT = 16 * OBLK
WS_WOT = 0x700000; WS_G = 0x900000; WS_FW = 0x910000; WS_ST = 0x1000000
NEG = f2u(-1e30)
CEXP = f2u(20 ** -0.5 * math.log2(math.e))
LOG2E = f2u(math.log2(math.e))
MF = "v_mfma_f32_16x16x32_bf16"
SPIN_MAX = 1 << 17
SV = 255
def stamp(a, idx, real=False):
    if not STAMP: return
    a(f"{'s_memrealtime' if real else 's_memtime'} s[68:69]"); a("s_waitcnt lgkmcnt(0)"); a(f"v_writelane_b32 v{SV}, s68, {idx}")
SPIN = OPT.get("spin", "")
def ev(a, name):
    if SPIN == name: a("s_memrealtime s[96:97]"); a("s_waitcnt lgkmcnt(0)")
def stamp2(a, idx, ridx):
    stamp(a, idx); stamp(a, ridx, True)
def stamp0(a):
    if STAMP: a(f"v_mov_b32 v{SV}, 0"); a(f"v_writelane_b32 v{SV}, s66, 0"); a(f"v_writelane_b32 v{SV}, s68, 1")

a = Asm()
traces = []
def ids():
    a("""v_and_b32 v1, 63, v0
    s_and_b32 s20, s2, 3
    s_lshl_b32 s20, s20, 2
    s_bfe_u32 s46, s2, 0x20003
    s_add_u32 s20, s20, s46
    s_lshr_b32 s47, s2, 5
    s_and_b32 s21, s2, 4
    s_lshl_b32 s21, s21, 1
    s_add_u32 s21, s21, s47""")
def srd_ws_dbg():
    WSO = int(OPT.get("wso", 0)) << 20
    a(f"""s_add_u32 s32, s78, {WSO}
    s_addc_u32 s33, s79, 0
    s_mov_b32 s34, {0x10000000 - WSO}
    s_mov_b32 s35, 0x20000
    s_mov_b32 s40, s76
    s_mov_b32 s41, s77
    s_mov_b32 s42, 256
    s_mov_b32 s43, 0x20000""")
def consumer_ids():
    if CM:
        a("s_bfe_u32 s84, s2, 0x30003"); a("s_and_b32 s85, s2, 7"); a("s_lshl_b32 s85, s85, 2"); a("s_lshr_b32 s86, s2, 6"); a("s_add_u32 s85, s85, s86")
    else:
        a("s_and_b32 s84, s20, 7"); a("s_lshl_b32 s85, s21, 1"); a("s_lshr_b32 s86, s20, 3"); a("s_add_u32 s85, s85, s86")
def pf_setup(isw_scc_cmp, vdst, vt, soff, sstep, lblx, lble):
    a(f"""s_lshr_b32 s44, s2, 3
    {isw_scc_cmp}
    s_cbranch_scc0 {lblx}
    v_mul_u32_u24 v{vt}, 13108, v1
    v_lshrrev_b32 v{vt}, 16, v{vt}
    v_mul_u32_u24 v{vt}, 640, v{vt}
    v_lshl_add_u32 v{vdst}, v1, 7, v{vt}
    s_mul_i32 {soff}, s44, 15360
    s_and_b32 s45, s2, 1
    s_mul_i32 s45, s45, 640
    s_add_u32 {soff}, {soff}, s45
    s_mov_b32 {sstep}, 491520
    s_cmp_ge_u32 s20, 8
    s_cselect_b32 s88, s12, s6
    s_cselect_b32 s89, s13, s7
    s_mov_b32 s90, 2457600
    s_branch {lble}
    {lblx}:
    v_lshrrev_b32 v{vt}, 1, v1
    v_mul_u32_u24 v{vt}, 1280, v{vt}
    v_and_b32 v{vdst}, 1, v1
    v_lshl_add_u32 v{vdst}, v{vdst}, 7, v{vt}
    s_and_b32 s45, s2, 4
    s_lshl_b32 s45, s45, 3
    s_add_u32 s44, s44, s45
    s_mul_i32 {soff}, s44, 40960
    s_mov_b32 {sstep}, 256
    s_mov_b32 s88, s4
    s_mov_b32 s89, s5
    s_mov_b32 s90, 2621440
    {lble}:
    s_mov_b32 s91, 0x20000""")
def rotbit(dst):
    a(f"s_xor_b32 {dst}, s84, s85"); a(f"s_and_b32 {dst}, {dst}, {R2}")
a(f"{KN}:")
if STAMP: a("s_memrealtime s[66:67]"); a("s_memtime s[68:69]")
a("""v_readfirstlane_b32 s22, v0
s_load_dwordx8 s[4:11], s[0:1], 0
s_load_dwordx8 s[12:19], s[0:1], 32
s_lshr_b32 s3, s2, 8
s_cbranch_scc1 L_END
s_lshr_b32 s22, s22, 6
s_cmp_eq_u32 s22, 3
s_cbranch_scc1 L_HOP
s_cmp_lt_u32 s22, 4
s_cbranch_scc1 L_COMPUTE""")
a("""v_and_b32 v1, 63, v0
v_mul_u32_u24 v3, 13108, v1
v_lshrrev_b32 v3, 16, v3
v_mul_u32_u24 v3, 640, v3
v_lshlrev_b32 v4, 7, v1
v_add_u32 v40, v4, v3
v_lshrrev_b32 v3, 1, v1
v_lshl_add_u32 v42, v3, 10, v4
s_lshr_b32 s44, s2, 3
s_mul_i32 s92, s44, 24
s_and_b32 s45, s2, 1
s_add_u32 s92, s92, s45
s_mulk_i32 s92, 640
s_and_b32 s45, s2, 4
s_lshl_b32 s45, s45, 3
s_add_u32 s44, s44, s45
s_mul_i32 s93, s44, 40960
s_mov_b32 s26, 2457600
s_mov_b32 s30, 2621440
s_mov_b32 s31, 0x20000
s_mov_b32 s27, s31
s_bitcmp1_b32 s2, 1
s_waitcnt lgkmcnt(0)
s_cselect_b64 s[24:25], s[12:13], s[6:7]
s_mov_b64 s[28:29], s[4:5]
""")
if PP[0] == "1":
    a("""s_cmp_lg_u32 s22, 4
s_cbranch_scc1 L_E1
buffer_load_dword v41, v42, s[28:31], s93 offen
L_E1:
s_cmp_lg_u32 s22, 5
s_cbranch_scc1 L_LD0
buffer_load_dword v41, v40, s[24:27], s92 offen
s_branch L_LD0
""")
else:
    a("""s_bfe_u32 s45, s22, 0x10001
    s_bitcmp1_b32 s22, 0
    s_cbranch_scc1 L_E1
    s_lshl_b32 s45, s45, 8
    s_add_u32 s45, s45, s93
    buffer_load_dword v41, v42, s[28:31], s45 offen
    s_branch L_LD0
    L_E1:
    s_mul_i32 s45, s45, 491520
    s_add_u32 s45, s45, s92
    buffer_load_dword v41, v40, s[24:27], s45 offen
    s_branch L_LD0""")
a(""".p2align 8
L_HOP:
s_branch L_COMPUTE
L_LD0:
s_load_dwordx4 s[76:79], s[0:1], 64
s_setprio 2""")
stamp0(a); stamp(a, 3)
ids()
a("""v_lshrrev_b32 v3, 3, v1
v_mul_u32_u24 v3, 2560, v3
v_lshrrev_b32 v4, 4, v0
v_xor_b32 v4, v4, v1
v_xor_b32 v4, 4, v4
v_and_b32 v4, 7, v4
v_lshl_add_u32 v11, v4, 4, v3
s_and_b32 s64, s22, 3
s_lshr_b32 s44, s21, 1
s_or_b32 s45, s44, s64
s_cselect_b32 s52, -20480, 0
s_lshl_b32 s44, s44, 8
s_and_b32 s45, s21, 1
s_add_u32 s44, s44, s45
s_lshl_b32 s45, s64, 4
s_add_u32 s44, s44, s45
s_mul_i32 s47, s44, 1280
s_lshl_b32 s53, s64, 10
v_mul_u32_u24 v3, 6554, v1
v_lshrrev_b32 v3, 16, v3
v_mul_u32_u24 v4, 1120, v3
v_lshl_add_u32 v10, v1, 4, v4
s_and_b32 s46, s20, 7
s_mul_i32 s46, s46, 160
s_mul_i32 s44, s64, 61440
s_add_u32 s46, s46, s44
s_mul_i32 s48, s64, 7680
s_mov_b32 s49, 0
s_mov_b32 s50, 0
s_mov_b32 s87, 99""")
stamp(a, 2)
a("L_LD_ISSUE:")
a(f"s_add_u32 m0, s53, {XOFF + 1024}"); a("s_add_u32 s51, s47, s52"); a(f"buffer_load_dwordx4 v11, s[28:31], s51 offen {XNT}lds")
for qq in range(1, 4):
    a(f"s_add_u32 m0, s53, {XOFF + 1024 + 4096*qq}"); a(f"s_add_u32 s51, s47, {(64*qq-16)*1280}"); a(f"buffer_load_dwordx4 v11, s[28:31], s51 offen {XNT}lds")
a("s_mov_b32 exec_hi, 0x0fffffff")
for qq in range(8):
    if qq == KP:
        a("s_cmp_lg_u32 s87, 0"); a("s_cbranch_scc1 L_HK"); a(f"s_waitcnt vmcnt({4 + KP})"); a("L_HKB:")
        if STAMP == 1: a("s_memtime s[68:69]"); a("s_waitcnt lgkmcnt(0)"); a(f"s_add_u32 m0, s50, 19"); a(f"v_writelane_b32 v{SV}, s68, m0")
        a("s_barrier")
        if STAMP == 1: a("s_memrealtime s[68:69]"); a("s_waitcnt lgkmcnt(0)"); a(f"s_add_u32 m0, s50, 39"); a(f"v_writelane_b32 v{SV}, s68, m0")
        a("L_NB0:"); a("s_mov_b32 s87, 0")
    r = 2 * qq; k = (r & 0x33) | ((r & 4) << 1) | ((r & 8) >> 1)
    a(f"s_add_u32 m0, s48, {960*qq}"); a(f"s_add_u32 s51, s46, {k*3840}"); a(f"buffer_load_dwordx4 v10, s[24:27], s51 offen {WNT}lds")
a("s_mov_b32 exec_hi, -1")
a("s_cmp_lg_u32 s64, 0"); a("s_cbranch_scc1 L_LD_W")
a(f"s_add_u32 m0, s53, {XOFF + 1024 + 4096*4}"); a(f"s_add_u32 s51, s47, {(64*4-16)*1280}"); a(f"buffer_load_dwordx4 v11, s[28:31], s51 offen {XNT}lds")
a("L_LD_W:")
a(f"""s_mov_b32 s63, {STAGE}
s_add_u32 s46, s46, 245760
s_add_u32 s47, s47, 128
s_add_u32 s49, s49, 1
s_cmp_eq_u32 s49, 3
s_cselect_b32 s51, {(-2*STAGE) & 0xffffffff}, s63
s_cselect_b32 s49, 0, s49
s_add_u32 s48, s48, s51
s_add_u32 s53, s53, s51
s_add_u32 s50, s50, 1""")
def lstamp(base):
    if STAMP == 1: a("s_memtime s[68:69]"); a("s_waitcnt lgkmcnt(0)"); a(f"s_add_u32 m0, s50, {base}"); a(f"v_writelane_b32 v{SV}, s68, m0")
lstamp(9)
a(f"""s_cmp_lt_u32 s50, 2
s_cbranch_scc1 L_LD_PRE0
L_DISP:
s_cmp_eq_u32 s50, s96
s_cbranch_scc1 L_SIDE_A
L_SA_RET:
s_cmp_eq_u32 s50, s97
s_cbranch_scc1 L_TOK_A
s_cmp_eq_u32 s50, s98
s_cbranch_scc1 L_TOK_B
s_cmp_eq_u32 s50, 9
s_cbranch_scc1 L_WOF_A
s_cmp_eq_u32 s50, 10
s_cbranch_scc1 L_WOF_B""")
a("L_LD_WAIT:")
a("L_LD_BAR:")
a("L_LD_PRE:")
a("s_bitcmp1_b32 s94, s50"); a("s_cbranch_scc0 L_LD_ISSUE")
a(f"s_add_u32 s87, s87, {STG}")
a("s_cmp_eq_u32 s64, 0"); a("s_cbranch_scc1 L_PFX")
for n in range(STG):
    a("buffer_load_dword v41, v40, s[24:27], s92 offen"); a(f"s_add_u32 s92, s92, {15360 if n < STG-1 else STG*491520 - (STG-1)*15360}")
a("s_branch L_LD_ISSUE")
a("L_PFX:")
for n in range(STG):
    a("buffer_load_dword v41, v42, s[28:31], s93 offen"); a(f"s_add_u32 s93, s93, {40960 if n < STG-1 else (STG*256 - (STG-1)*40960) & 0xffffffff}")
a("s_branch L_LD_ISSUE")
a("L_HK:")
for e_ in (1, 2, 3, 4, 5, 6, 8):
    a(f"s_cmp_lg_u32 s87, {e_}"); a(f"s_cbranch_scc1 L_HK{e_}"); a(f"s_waitcnt vmcnt({4 + KP + e_})"); a("s_branch L_HKB"); a(f"L_HK{e_}:")
a("s_branch L_NB0")
a("L_LD_PRE0:")
a("v_lshlrev_b32 v12, 4, v1"); a("v_mov_b32 v13, 0")
pos = [c for c in range(1, 10) if PP[c] != "0"]
if STG > 1: a(f"s_bfe_u32 s45, s2, 0x{(STG.bit_length()-1):x}0003")
else: a("s_mov_b32 s45, 0")
a(f"s_mul_i32 s44, s45, {491520 - 15360}"); a("s_add_u32 s92, s92, s44"); a(f"s_add_u32 s92, s92, {491520*int(PP[0])}")
a(f"s_mul_i32 s44, s45, {40960 - 256}"); a("s_sub_u32 s93, s93, s44"); a(f"s_add_u32 s93, s93, {256*int(PP[0])}")
a("s_mov_b32 s94, 0")
for g_ in range(STG):
    mask = sum(1 << c for k, c in enumerate(pos) if k % STG == g_)
    a(f"s_cmp_eq_u32 s45, {g_}"); a(f"s_cselect_b32 s94, {mask}, s94")
a("s_cmp_ge_u32 s64, 2"); a("s_cselect_b32 s94, 0, s94")
a("s_waitcnt lgkmcnt(0)")
if MRG:
    pos = [c for c in range(1, 10) if PP[c] != "0"]
    assert STG == 2 and len(pos) == 4
    a("s_bitcmp1_b32 s2, 3"); a(f"s_cselect_b32 s96, {pos[1]}, {pos[0]}"); a(f"s_cselect_b32 s97, {pos[3]}, {pos[2]}")
else:
    a(f"s_mov_b32 s96, {SA}"); a(f"s_mov_b32 s97, {SB}")
a("s_add_u32 s98, s97, 2")
a("s_branch L_DISP")
a("L_SIDE_A:")
if int(OPT.get("u2", 1)):
    a("""s_mov_b32 s56, 0
    s_cmp_lt_u32 s64, 2
    s_cbranch_scc1 L_SA_RET
    s_mov_b32 s57, s2
    s_cmp_eq_u32 s64, 2
    s_cbranch_scc1 L_SA_GO
    s_bitcmp0_b32 s2, 3
    s_cbranch_scc1 L_SA_RET
    s_lshr_b32 s44, s2, 4
    s_sub_u32 s44, s44, 4
    s_cmp_ge_u32 s44, 8
    s_cbranch_scc1 L_SA_RET
    s_lshl_b32 s44, s44, 3
    s_and_b32 s57, s2, 7
    s_add_u32 s57, s57, s44
    s_add_u32 s57, s57, 256
    L_SA_GO:""")
else:
    a("""s_mov_b32 s56, 0
    s_sub_u32 s44, s64, 2
    s_lshl_b32 s57, s44, 8
    s_add_u32 s57, s57, s2
    s_cmp_ge_u32 s57, 320
    s_cbranch_scc1 L_SA_RET""")
a("""s_mov_b32 s56, 1
s_mov_b32 s39, 0x20000
s_and_b32 s45, s57, 7
s_lshr_b32 s44, s57, 3
s_mul_i32 s58, s44, 52
s_lshr_b32 s58, s58, 8
s_mul_i32 s59, s58, 5
s_sub_u32 s59, s44, s59
s_cmp_ge_u32 s58, 4
s_cselect_b32 s36, s14, s8
s_cselect_b32 s37, s15, s9
s_mov_b32 s38, 819200
s_and_b32 s58, s58, 3
s_mul_i32 s58, s58, 160
s_mul_i32 s60, s59, 40
s_cmp_eq_u32 s59, 4
s_cselect_b32 s60, 16, s60
s_cselect_b32 s54, 80, 20
s_cselect_b32 s55, 20, 4
s_add_u32 s58, s58, s60
s_mul_i32 s58, s58, 1280
s_mul_i32 s60, s45, 160
s_add_u32 s58, s58, s60
s_mul_i32 s54, s54, 1280
s_mul_i32 s55, s55, 1280""")
a(f"s_mul_i32 s62, s64, 5120"); a(f"s_add_u32 s62, s62, {SCR_LDS - 10240}")
a("s_mov_b32 exec_hi, 0xff")
for g in range(4):
    for jh in range(2):
        a(f"s_add_u32 m0, s62, {(16*(g>>1) + 8*jh + 4*(g&1))*160}")
        if jh == 0: a("s_add_u32 s51, s58, s54"); a(f"buffer_load_dwordx4 v10, s[36:39], s58 offen {SNT}lds")
        else: a("s_add_u32 s58, s58, s55"); a(f"buffer_load_dwordx4 v10, s[36:39], s51 offen {SNT}lds")
a("s_mov_b32 exec_hi, -1")
a(f"""s_mul_i32 s61, s45, 204800
s_mul_i32 s58, s44, 5120
s_add_u32 s61, s61, s58
s_add_u32 s61, s61, {WS_WOT}
""")
if True: a("s_mov_b32 s87, 8"); a("s_branch L_LD_BAR")
a("L_SIDE_B:")
assert SB >= SA + 2
a("""v_lshrrev_b32 v16, 5, v1
v_lshlrev_b32 v16, 4, v16
v_bfe_u32 v17, v1, 4, 1
v_lshl_add_u32 v16, v17, 2, v16
v_bfe_u32 v17, v1, 2, 2
v_add_u32 v16, v16, v17
v_mul_u32_u24 v16, 160, v16
v_add_u32 v16, s62, v16
v_and_b32 v17, 3, v1
v_lshl_add_u32 v18, v17, 4, v16
v_lshl_add_u32 v19, v17, 3, v16""")
for T in range(5):
    for j in range(2):
        if T < 4: a(f"ds_read_b64_tr_b16 v[{20+4*T+2*j}:{21+4*T+2*j}], v18 offset:{j*1280 + 64*(T>>1) + 8*(T&1)}")
        else: a(f"ds_read_b64_tr_b16 v[{20+4*T+2*j}:{21+4*T+2*j}], v19 offset:{j*1280 + 128}")
a("s_waitcnt lgkmcnt(0)")
for T in range(4): a(f"buffer_store_dwordx4 v[{20+4*T}:{23+4*T}], v12, s[32:35], s61 offen offset:{1024*T} sc1")
a("s_add_u32 s61, s61, 4096")
a(f"buffer_store_dwordx4 v[36:39], v12, s[32:35], s61 offen sc1")
a("s_mov_b32 s87, 6"); a("s_branch L_LD_BAR")
a("L_TOK_A:")
srd_ws_dbg()
a("""v_lshlrev_b32 v12, 4, v1
v_mov_b32 v13, 0
s_mov_b64 exec, 1
buffer_load_dword v15, v13, s[40:43], 0 offen sc1
s_mov_b64 exec, -1
s_cmp_lg_u32 s56, 0
s_cbranch_scc1 L_SIDE_B
s_mov_b32 s87, 1
s_branch L_LD_BAR""")
a("L_TOK_B:")
srd_ws_dbg()
a(f"""s_mov_b32 s60, 0
v_mov_b32 v13, 0
L_TOK_CHK:
v_readlane_b32 s75, v15, 0
s_add_u32 s60, s60, 1
s_cmp_lg_u32 s75, 0
s_cbranch_scc1 L_TOK_OK
s_cmp_ge_u32 s60, {SPIN_MAX}
s_cbranch_scc1 L_TOK_OK
s_sleep 4
s_mov_b64 exec, 1
buffer_load_dword v15, v13, s[40:43], 0 offen sc1
s_mov_b64 exec, -1
s_waitcnt vmcnt(0)
s_branch L_TOK_CHK
L_TOK_OK:
v_mov_b32 v14, {TOK_LDS}
v_mov_b32 v15, s75
ds_write_b32 v14, v15
s_cmp_eq_u32 s56, 0
s_waitcnt lgkmcnt(0)
s_cbranch_scc1 L_LD_WAIT
s_and_b32 s45, s57, 7
s_lshl_b32 s45, s45, 13
s_lshr_b32 s44, s57, 3
s_lshl_b32 s44, s44, 7
s_add_u32 s45, s45, s44
s_add_u32 s45, s45, {WS_FW}
v_lshlrev_b32 v13, 2, v1
s_mov_b32 exec_hi, 0
buffer_store_dword v15, v13, s[32:35], s45 offen sc1
s_mov_b32 exec_hi, -1
s_mov_b32 s87, 1
s_branch L_LD_BAR""")
a("L_WOF_A:")
srd_ws_dbg()
consumer_ids()
a(f"""s_lshl_b32 s59, s84, 13
s_add_u32 s59, s59, {WS_FW}
v_lshlrev_b32 v13, 7, v1
v_lshlrev_b32 v12, 4, v1
s_mov_b32 exec_hi, 0xff
buffer_load_dword v14, v13, s[32:35], s59 offen sc1
s_mov_b32 exec_hi, -1
s_mov_b32 s87, 1
s_branch L_LD_BAR
L_WOF_B:""")
srd_ws_dbg()
a("""v_lshlrev_b32 v12, 4, v1
v_lshlrev_b32 v13, 7, v1
s_mov_b32 exec_hi, 0xff
s_mov_b32 s60, 0
s_waitcnt vmcnt(12)""")
a(f"""L_WO_POLL:
v_cmp_ne_u32 vcc, s75, v14
s_cbranch_vccz L_WO_OK
s_add_u32 s60, s60, 1
s_cmp_ge_u32 s60, {SPIN_MAX}
s_cbranch_scc1 L_WO_OK
s_sleep 4
buffer_load_dword v14, v13, s[32:35], s59 offen sc1
s_waitcnt vmcnt(0)
s_branch L_WO_POLL
L_WO_OK:
s_mov_b32 exec_hi, -1
s_setprio 0""")
stamp(a, 29)
CL = {"S1": (0, 24, 49152, 24576), "S2": (24, 14, 98304, 14336), "S0": (38, 24, 0, 24576), "TOP": (62, 6, 151552, 6144), "TB": (68, 2, 147456, 2048),
      "R1": (70, 24, 49152, 24576), "R2": (94, 6, 98304, 14336)}
a(f"""s_mul_i32 s58, s84, 204800
s_add_u32 s58, s58, {WS_WOT}
s_lshr_b32 s44, s64, 1
s_and_b32 s45, s64, 1
s_lshl_b32 s45, s45, 10
s_mul_i32 s59, s44, 102400
s_add_u32 s59, s59, s58
s_add_u32 s59, s59, s45""")
rotbit("s54"); a("s_mul_i32 s54, s54, 51200"); a("s_sub_u32 s55, s59, s54"); a("s_add_u32 s59, s59, s54")
def dma_class(nm, lo=0, hi=None):
    l0, n, base, delta = CL[nm]
    a(f"s_mul_i32 s53, s44, {delta}"); a("s_add_u32 s53, s53, s45")
    for j in range(lo, n if hi is None else hi, 2):
        a(f"s_add_u32 m0, s53, {base + j*1024}"); a(f"s_add_u32 s51, {'s59' if l0 + j < 50 else 's55'}, {(l0 + j)*1024}")
        a(f"buffer_load_dwordx4 v12, s[32:35], s51 offen sc1 lds")
dma_class("S1", 0, NS1)
a(f"s_waitcnt vmcnt({NS1//2})")
if "nobar" not in XP: a("s_barrier")
dma_class("S1", NS1); dma_class("S2"); dma_class("TOP")
a("s_waitcnt vmcnt(7)")
stamp(a, 30)
a("s_barrier")
dma_class("S0"); dma_class("TB")
TOK = 253
a(f"v_mov_b32 v{TOK}, s75")
a("s_branch L_P2_PRE")
a("L_COMPUTE:")
a("s_load_dwordx4 s[76:79], s[0:1], 64")
ev(a, "start")
a(f"s_setprio {OPT.get('cprio', 3)}")
ids()
a("s_waitcnt lgkmcnt(0)")
stamp0(a); stamp(a, 2)
srd_ws_dbg()
a("""s_mov_b32 s39, 0x20000
s_mov_b32 s56, 0
s_cmp_eq_u32 s22, 3
s_cbranch_scc1 L_C_GW
s_cmp_eq_u32 s22, 2
s_cbranch_scc1 L_C_TOK""")
a("s_branch L_C_SETUP")
a("L_C_GW:")
a(f"""s_mov_b32 s36, s16
s_mov_b32 s37, s17
s_mov_b32 s38, 1280
v_lshlrev_b32 v140, 4, v1
s_mov_b32 m0, {GW_LDS}
v_mov_b64 v[144:145], 0
buffer_load_dwordx4 v140, s[36:39], 0 offen lds
buffer_load_dwordx4 v140, s[36:39], 0 offen offset:1024 lds
v_mov_b64 v[146:147], 0
ds_write_b128 v140, v[144:147] offset:{XOFF}
v_add_u32 v140, {STAGE}, v140
ds_write_b128 v140, v[144:147] offset:{XOFF}
v_add_u32 v140, {STAGE}, v140
ds_write_b128 v140, v[144:147] offset:{XOFF}
s_branch L_C_SETUP""")
a("L_C_TOK:")
a("""s_cmp_lg_u32 s2, 0
s_cbranch_scc1 L_C_CPF
s_memrealtime s[44:45]
v_mov_b32 v147, 0
s_waitcnt lgkmcnt(0)
s_or_b32 s44, s44, 1
v_mov_b32 v146, s44
s_mov_b64 exec, 1
buffer_atomic_cmpswap v[146:147], v147, s[40:43], 0 offen sc1
s_mov_b64 exec, -1
L_C_CPF:
s_getpc_b64 s[70:71]
L_PC:
s_sub_u32 s70, s70, L_PC - L_SIDE_B
s_subb_u32 s71, s71, 0
""")
if int(OPT.get("ccp", 1)):
    a(f"""s_lshr_b32 s44, s2, 3
    s_mul_i32 s44, s44, 6
    v_min_u32 v140, 5, v1
    v_add_lshl_u32 v140, v140, s44, 7
    v_min_u32 v140, CODE_END - L_SIDE_B - 4, v140
    global_load_dword v241, v140, s[70:71]""")
else:
    a("""v_lshlrev_b32 v140, 7, v1
v_add_u32 v141, 8192, v140
v_add_u32 v142, 16384, v140
v_min_u32 v140, CODE_END - L_SIDE_B - 4, v140
v_min_u32 v141, CODE_END - L_SIDE_B - 4, v141
v_min_u32 v142, CODE_END - L_SIDE_B - 4, v142
global_load_dword v241, v140, s[70:71]
global_load_dword v241, v141, s[70:71]
global_load_dword v241, v142, s[70:71]""")
a("L_C_SETUP:")
if COV == 2:
    a("s_cmp_eq_u32 s56, 0"); a("s_cbranch_scc1 L_C_S2")
    a("buffer_load_dword v241, v252, s[36:39], s57 offen")
    a("L_C_S2:")
stamp(a, 3)
VWA, VWB, VX0, VX1, VGX0, VGX1, VGW = 2, 3, 4, 5, 6, 7, 240
ACCQ, ACCK, ACCV, ACCH = 8, 48, 88, 128
RING, XB, GX = 140, 180, 204
MC, MP, MP0, AM, ONES = 220, 224, 228, 232, 236
def acc(seg, t, T): return (ACCQ, ACCK, ACCV)[seg] + t * 20 + T * 4
a("s_setprio 0")
a(f"""v_lshrrev_b32 v140, 4, v1
v_and_b32 v141, 15, v1
v_lshrrev_b32 v142, 5, v1
v_lshlrev_b32 v142, 4, v142
v_and_b32 v143, 1, v140
v_lshl_add_u32 v142, v143, 2, v142
v_lshrrev_b32 v143, 2, v141
v_add_u32 v142, v142, v143
v_mul_u32_u24 v145, 480, v142
v_and_b32 v143, 3, v141
v_lshl_add_u32 v{VWA}, v143, 3, v145
v_mul_u32_u24 v144, 40, v143
v_add3_u32 v{VWB}, v145, v144, 32
v_lshrrev_b32 v144, 1, v141
v_xor_b32 v144, v144, v140
v_lshlrev_b32 v144, 4, v144
v_lshl_add_u32 v{VX0}, v141, 7, v144
v_xor_b32 v{VX1}, 64, v{VX0}
s_and_b32 s44, s20, 7
s_lshl_b32 s44, s44, 11
v_add_u32 v{VGX0}, s44, v{VX0}
v_add_u32 v{VGX1}, s44, v{VX1}
v_lshlrev_b32 v{VGW}, 4, v140
v_add_u32 v{VGW}, {GW_LDS}, v{VGW}""")
a(f"s_mov_b32 s44, {NEG}")
a(f"v_mov_b32 v146, s44")
a("s_lshr_b32 s45, s21, 1"); a("s_or_b32 s45, s45, s22")
a("v_lshlrev_b32 v145, 2, v140"); a("v_sub_u32 v145, v141, v145")
for r in range(4): a(f"v_subrev_u32 v{150+r}, {r}, v145")
for r in range(4):
    a(f"v_cmp_gt_u32 vcc, 8, v{150+r}"); a(f"v_cmp_gt_i32 s[72:73], -8, v{150+r}")
    a(f"v_mov_b32 v{ONES+r}, 0x3f803f80")
    a(f"v_cndmask_b32 v{MC+r}, v146, 0, vcc"); a(f"v_cndmask_b32 v{MP+r}, v146, 0, s[72:73]")
a("s_cmp_eq_u32 s45, 0"); a("s_cselect_b64 vcc, -1, 0")
for r in range(4): a(f"v_cndmask_b32 v{MP0+r}, v{MP+r}, v146, vcc")
a("s_mov_b32 s44, 0xffff0000")
for h in range(2):
    a(f"v_ashrrev_i32 v154, 31, v{150+2*h}"); a(f"v_ashrrev_i32 v155, 31, v{151+2*h}")
    a(f"v_bfi_b32 v{AM+h}, s44, v155, v154"); a(f"v_not_b32 v{AM+2+h}, v{AM+h}")
a(f"""s_mov_b64 s[48:49], 0xffff
s_mov_b32 s50, 0xffff0000
s_mov_b32 s51, 0
s_mov_b32 s52, 0
s_mov_b32 s53, 0xffff
s_mov_b32 s54, 0
s_mov_b32 s55, 0xffff0000
s_mov_b32 s63, {STAGE}
s_mov_b32 s74, 128
s_mov_b32 s92, {CEXP}
s_mov_b32 s93, {CEXP}
s_lshl_b32 s94, s21, 3
s_lshl_b32 s95, s22, 1
s_add_u32 s94, s94, s95
s_mul_i32 s94, s94, {OTT}
s_mul_i32 s95, s20, {OBLK}
s_add_u32 s94, s94, s95
s_add_u32 s95, s94, {OTT}""")
for r in range(ACCQ, ACCH + 12, 2): a(f"v_mov_b64 v[{r}:{r+1}], 0")
a("s_waitcnt vmcnt(0) lgkmcnt(0)")
stamp(a, 4)
if COV in (1, 3):
    a("s_cmp_eq_u32 s56, 0"); a("s_cbranch_scc1 L_C_GO")
    if COV == 3: a("s_setprio 3")
    a("buffer_load_dword v241, v252, s[36:39], s57 offen")
a("s_setprio 0")
a("L_C_GO:")
a("""s_mov_b32 s44, 0
s_mov_b32 s45, 0""")
for w in range(1, 4):
    a(f"s_cmp_eq_u32 s22, {w}"); a(f"s_cbranch_scc1 L_W{w}")
KOP = {1: 140, 0: 156, -1: 204}
VOP = 172; QOP = {1: 68, 0: 108}
def kop(t, h): return KOP[t] + 4 * h
def vop(T, t): return VOP + 6 * T + 2 * (t + 1)
def qop(t, h): return QOP[t] + 4 * h
def cv2(d, s): return [f"v_cvt_pk_bf16_f32 v{d}, v{s}, v{s+1}", f"v_cvt_pk_bf16_f32 v{d+1}, v{s+2}, v{s+3}"]
HALO = [[(1,0),(1,1),(1,2)], [(1,3),(1,4),(2,0)], [(2,1),(2,2)], [(2,3),(2,4)]] if OPT.get('hal') == '0' else [[(1,0),(1,2),(2,0)], [(1,1),(1,3),(2,1)], [(1,4),(2,2),(2,3)], [(2,4)]]
D = 5
def istep(f): return f - 5 if f <= 14 else (f - 6 if f <= 21 else f - 7)
for w in range(4):
    gate = (w == 3)
    q = []
    def rdW(f):
        ks, seg, T = f // 15, (f % 15) // 5, f % 5
        d = RING + (f % 10) * 4
        if "nods" in XP: return [("s_nop 0", ("W", f))] * 2
        return [(f"ds_read_b64_tr_b16 v[{d+2*j}:{d+2*j+1}], v{VWA if T < 4 else VWB} offset:{seg*160 + ks*15360 + j*3840 + (40*T if T < 4 else 0)}", ("W", f)) for j in range(2)]
    def rdX(ks):
        o = []
        for n, tile in enumerate((1 + 2 * w, 2 + 2 * w, 0)):
            d = XB + (ks * 3 + n) * 4
            o.append((f"ds_read_b128 v[{d}:{d+3}], v{(VX0, VX1)[ks]} offset:{XOFF + tile*2048}", ("X", ks)))
        if gate:
            d = GX + ks * 8
            o.append((f"ds_read_b128 v[{d}:{d+3}], v{(VGX0, VGX1)[ks]} offset:{XOFF + 2048}", ("X", ks)))
            o.append((f"ds_read_b128 v[{d+4}:{d+7}], v{VGW} offset:{ks*64}", ("X", ks)))
        return o
    def wait(b, tags):
        last = max(i for i, t in enumerate(q) if t in tags)
        b(f"s_waitcnt lgkmcnt({min(len(q) - 1 - last, 15)})")
    def mm(f):
        ks, seg, T = f // 15, (f % 15) // 5, f % 5
        wf = vr(RING + (f % 10) * 4); o = []
        def one(dst, xf):
            o.append(f"{MF} {vr(dst)}, {wf}, {xf}, {vr(dst)}" if seg < 2 else f"{MF} {vr(dst)}, {xf}, {wf}, {vr(dst)}")
        one(acc(seg, 0, T), vr(XB + (ks * 3) * 4)); one(acc(seg, 1, T), vr(XB + (ks * 3 + 1) * 4))
        if (seg, T) in HALO[w]: one(ACCH + 4 * HALO[w].index((seg, T)), vr(XB + (ks * 3 + 2) * 4))
        if gate and seg == 0 and T == 2:
            d = GX + ks * 8
            o.append(f"{MF} {vr(ACCH+8)}, {vr(d+4)}, {vr(d)}, {vr(ACCH+8)}")
        return o
    def weave(b, ms, fs, lastless=True):
        n = len(ms)
        if OPT.get("wv", "1") == "1":
            ds = [t for t in fs if t[1] is not None]; ot = [t for t in fs if t[1] is None]
            per = [[] for _ in range(n)]
            cnt = [0] * n
            for i in range(len(ds)): cnt[i % n] += 1
            it = iter(ds)
            for j in range(n):
                for _ in range(cnt[j]): per[j].append(next(it))
            lo = 0
            for t in ot:
                load = [len(per[j]) + (1 if (lastless and j == n - 1) else 0) for j in range(n)]
                j = min(range(lo, n), key=lambda k: load[k]); lo = j
                per[j].append(t)
            for m_, p_ in zip(ms, per):
                b(m_)
                for t in p_:
                    b(t[0])
                    if t[1] is not None: q.append(t[1])
            return
        k = len(fs)
        cnt = [0] * n
        for i in range(k):
            load = [cnt[j] + (1 if (lastless and j == n - 1) else 0) for j in range(n)]
            cnt[load.index(min(load))] += 1
        it = iter(fs)
        for m_, c_ in zip(ms, cnt):
            b(m_)
            for _ in range(c_):
                t = next(it)
                b(t[0])
                if t[1] is not None: q.append(t[1])
    FA = {s: [] for s in range(25, 30)}
    x0 = rdX(0)
    FA[25] = x0[:2] + rdW(0); FA[26] = x0[2:4] + rdW(1); FA[27] = x0[4:] + rdW(2); FA[28] = rdW(3); FA[29] = rdW(4)
    FB = {s: [] for s in range(25)}
    for f in range(D, 30): FB[istep(f)] += rdW(f)
    x1 = rdX(1)
    for i, t in enumerate(x1): FB[2 + i].append(t)
    sal = ["s_add_u32 s45, s45, 1", "s_cmp_eq_u32 s45, 3", f"s_cselect_b32 s46, {(-2*STAGE) & 0xffffffff}, s63", "s_cselect_b32 s45, 0, s45"]
    for i, t in enumerate(sal): FB[10 + i].append((t, None))
    if gate:
        FB[20].append((f"v_add_u32 v{VGW}, s74, v{VGW}", None))
        FB[21].append((f"v_add_u32 v{VGX0}, s46, v{VGX0}", None)); FB[22].append((f"v_add_u32 v{VGX1}, s46, v{VGX1}", None))
    FB[20].append((f"v_add_u32 v{VX0}, s46, v{VX0}", None)) if not gate else FB[14].append((f"v_add_u32 v{VX0}, s46, v{VX0}", None))
    FB[23] += [(f"v_add_u32 v{VX1}, s46, v{VX1}", None), (f"v_add_u32 v{VWA}, s46, v{VWA}", None), (f"v_add_u32 v{VWB}, s46, v{VWB}", None)]
    FB[24] += [("s_add_u32 s44, s44, 1", None), ("s_cmp_eq_u32 s44, 10", None)]
    pre = Asm(); pa = Asm(); pb = Asm(); tail = Asm()
    stamp(pre, 5)
    pre("s_barrier")
    if STAMP: stamp2(pre, 6, 50)
    ev(pre, "b0")
    for s in range(25, 30):
        for t in FA[s]: pre(t[0])
    q.clear()
    pa("s_waitcnt lgkmcnt(0)"); pa("s_nop 0" if "nobar" in XP else "s_barrier")
    for s in range(25, 30): weave(pa, mm(s), FA[s], lastless=(s == 29))
    pa(f"s_branch L_LB{w}")
    for s in range(25):
        tags = [("W", s)] + ([("X", 0)] if s == 0 else []) + ([("X", 1)] if s == 15 else [])
        wait(pb, tags); weave(pb, mm(s), FB[s])
    pb(f"s_cbranch_scc1 L_T{w}")
    tail(f"v_mov_b32 v{TOK}, {TOK_LDS}")
    tail("s_waitcnt lgkmcnt(0)")
    tail(f"ds_read_b32 v{TOK}, v{TOK}")
    tm = [m_ for s in range(25, 30) for m_ in mm(s)]
    fl = [f"v_lshlrev_b32 v{VWA}, 3, v1", f"v_add_u32 v{VX1}, {XCH}, v{VWA}"]
    if TOV:
        fl += [f"v_add_u32 v{VWB}, {XCH + 5120*w}, v{VWA}", f"v_add_u32 v{VX0}, {XCH + 5120*(w+1)}, v{VWA}"]
        for h in (0, 1, 2, 3, 4):
            d = 140 + 4 * h if h < 4 else 142; sr = acc(1, 1, h)
            fl += [f"v_cvt_pk_bf16_f32 v{d}, v{sr}, v{sr+1}", f"v_cvt_pk_bf16_f32 v{d+1}, v{sr+2}, v{sr+3}"]
            if w < 3: fl.append(f"ds_write_b64 v{VX0}, v[{d}:{d+1}] offset:{h*512}")
        for h in (1, 2, 3):
            d = 142 + 4 * h; sr = acc(1, 1, 4)
            fl += [f"v_cvt_pk_bf16_f32 v{d}, v{sr}, v{sr+1}", f"v_cvt_pk_bf16_f32 v{d+1}, v{sr+2}, v{sr+3}"]
    for n_, m_ in enumerate(tm):
        tail(m_)
        for x in fl[2*n_:2*n_+2]: tail(x)
    for x in fl[2*len(tm):]: tail(x)
    if gate:
        z = ACCH + 8
        tail(f"""v_cvt_pk_bf16_f32 v248, v{z}, v{z}
        v_and_b32 v248, 0xffff0000, v248
        v_mul_f32 v248, {LOG2E ^ 0x80000000}, v248
        v_exp_f32 v248, v248
        s_lshl_b32 s46, s21, 3
        v_add_f32 v248, 1.0, v248
        v_rcp_f32 v248, v248
        s_add_u32 s46, s46, s20
        v_cvt_pk_bf16_f32 v248, v248, v248
        v_and_b32 v248, 0xffff0000, v248
        s_lshl_b32 s46, s46, 7
        s_add_u32 s46, s46, {WS_G}
        s_waitcnt lgkmcnt(0)
        v_sub_u32 v249, v{TOK}, v248""")
    snd = []
    for n, (seg, T) in enumerate(HALO[w]):
        snd.append(cv2(242 + 2*n, ACCH + 4*n) + [f"ds_write_b64 v{VX1}, v[{242+2*n}:{243+2*n}] offset:{((seg-1)*5+T)*512}"])
    for T in range(5):
        snd.append(cv2(vop(T, 1), acc(2, 1, T)) + ([f"ds_write_b64 v{VX0}, v[{vop(T,1)}:{vop(T,1)+1}] offset:{(5+T)*512}"] if w < 3 else []))
    nh = len(HALO[w])
    if w >= 2: snd = snd[nh:] + snd[:nh]
    rest = ["s_setprio 2"] + cv2(250, acc(0, 1, 4))
    for h in range(4): rest += cv2(qop(1, h), acc(0, 1, h))
    for h in range(4):
        for j in range(2): rest.append(f"v_cndmask_b32 v{qop(1,h)+2+j}, 0, v{250+j}, s[{48+2*h}:{49+2*h}]")
    for k_, x in enumerate(snd):
        for l in x + rest[2*k_:2*k_+2]: tail(l)
    for l in rest[2*len(snd):]: tail(l)
    if gate:
        tail(f"""s_cmp_ge_u32 s20, 8
        s_cbranch_scc1 L_ATT
        s_mov_b64 exec, 0xffff
        buffer_store_dwordx2 v[248:249], v{VWA}, s[32:35], s46 offen sc1
        s_mov_b64 exec, -1""")
    else: tail("s_branch L_ATT")
    if w > 0: a(f"L_W{w}:")
    a.extend(pre); a(".p2align 3"); a(f"L_LB{w}:"); a.extend(pb); a.extend(pa); a(f"L_T{w}:"); a.extend(tail)
    traces.append(pre.L + pb.L + pa.L + pb.L + fix(tail.L)[0])
a("L_ATT:")
if STAMP: stamp2(a, 30, 51)
ev(a, "gemm")
KOP = {1: 140, 0: 156, -1: 204}
VOP = 172; QOP = {1: 68, 0: 108}
def kop(t, h): return KOP[t] + 4 * h
def vop(T, t): return VOP + 6 * T + 2 * (t + 1)
def qop(t, h): return QOP[t] + 4 * h
g = Asm()
def cvt(d, s): g(f"v_cvt_pk_bf16_f32 v{d}, v{s}, v{s+1}"); g(f"v_cvt_pk_bf16_f32 v{d+1}, v{s+2}, v{s+3}")
def flush(name):
    global g
    o, t = schedule(g.L, st_lat=STL); print(f"; sched {name}: {len(o)} instrs, est {t} cycles", file=sys.stderr)
    for n, l in enumerate(o):
        if OPT.get("astamp") and n and n % 45 == 0: a(f"s_memtime s[{86 + 2*(n//45)}:{87 + 2*(n//45)}]") if n // 45 < 8 else None
        a(l)
    if OPT.get("astamp"):
        a("s_waitcnt lgkmcnt(0)")
        for k in range(1, 8): a(f"v_writelane_b32 v{SV}, s{86+2*k}, {9+k}")
    g = Asm()
stamp(a, 31)
a("s_waitcnt lgkmcnt(0)"); a("s_barrier")
stamp(a, 32)
for h in range(4):
    g(f"ds_read_b64 v[{kop(-1,h)}:{kop(-1,h)+1}], v{VWB} offset:{h*512}")
    g(f"ds_read_b64 v[{kop(-1,h)+2}:{kop(-1,h)+3}], v{VWB} offset:{4*512}")
for T in range(5): g(f"ds_read_b64 v[{vop(T,-1)}:{vop(T,-1)+1}], v{VWB} offset:{(5+T)*512}")
g("@wait")
g(f"v_lshlrev_b32 v{VX0}, 4, v1"); g(f"v_mul_u32_u24 v{VWA}, 12, v1")
for h in range(4): cvt(kop(0, h), acc(1, 0, h)); cvt(kop(0, h) + 2, acc(1, 0, 4))
for T in range(5): cvt(vop(T, 0), acc(2, 0, T))
cvt(246, acc(0, 0, 4))
for h in range(4): cvt(qop(0, h), acc(0, 0, h))
for h in range(4):
    for j in range(2): g(f"v_cndmask_b32 v{qop(0,h)+2+j}, 0, v{246+j}, s[{48+2*h}:{49+2*h}]")
SR = {1: [28, 32, 36, 40, 44, 48, 52, 56], 0: [8, 12, 16, 20, 24, 88, 92, 96]}
def dc(t, h): return SR[t][h]
def dp(t, h): return SR[t][4 + h]
MX = {1: 84, 0: 124}; TMP = {1: 128, 0: 132}
OREG = {1: [68, 72, 76, 80, 140, 144, 148, 152, 60, 64, 100, 104], 0: [108, 112, 116, 120, 156, 160, 164, 168, 204, 208, 212, 216]}
def oo(t, h, k): return OREG[t][k * 4 + h]
for t in (1, 0):
    for h in range(4):
        g(f"{MF} {vr(dc(t,h))}, {vr(kop(t,h))}, {vr(qop(t,h))}, {vr(MC)}")
        g(f"{MF} {vr(dp(t,h))}, {vr(kop(t-1,h))}, {vr(qop(t,h))}, {vr(MP if t else MP0)}")
for t in (1, 0):
    for h in range(4):
        for r in range(4): g(f"v_max_f32 v{dc(t,h)+r}, v{dc(t,h)+r}, v{dp(t,h)+r}")
        g(f"v_max3_f32 v{MX[t]+h}, v{dc(t,h)}, v{dc(t,h)+1}, v{dc(t,h)+2}")
        g(f"v_max_f32 v{MX[t]+h}, v{MX[t]+h}, v{dc(t,h)+3}")
    m = MX[t]
    g(f"""v_permlane32_swap_b32 v{m}, v{m+1}
    v_permlane32_swap_b32 v{m+2}, v{m+3}
    v_max_f32 v{m}, v{m}, v{m+1}
    v_max_f32 v{m+2}, v{m+2}, v{m+3}
    v_permlane16_swap_b32 v{m}, v{m+2}
    v_max_f32 v{m}, v{m}, v{m+2}
    v_mul_f32 v{m+2}, s92, v{m}
    v_mul_f32 v{m}, s92, v{m}
    v_permlane16_swap_b32 v{m}, v{m+2}
    v_mov_b32 v{m+1}, v{m}
    v_mov_b32 v{m+3}, v{m+2}
    v_permlane32_swap_b32 v{m}, v{m+1}
    v_permlane32_swap_b32 v{m+2}, v{m+3}""")
    for h in range(4):
        d = dc(t, h); p = dp(t, h)
        if PK:
            mp_ = m + (h & 2); e = h & 1
            for r in (0, 2): g(f"v_pk_fma_f32 v[{d+r}:{d+r+1}], v[{d+r}:{d+r+1}], s[92:93], v[{mp_}:{mp_+1}] op_sel:[0,0,{e}] op_sel_hi:[1,1,{e}] neg_lo:[0,0,1] neg_hi:[0,0,1]")
        else:
            for r in range(4): g(f"v_fma_f32 v{d+r}, v{d+r}, s92, -v{m+h}")
        for r in range(4): g(f"v_exp_f32 v{d+r}, v{d+r}")
        g(f"v_cvt_pk_bf16_f32 v{d}, v{d}, v{d+1}"); g(f"v_cvt_pk_bf16_f32 v{d+2}, v{d+2}, v{d+3}")
        g(f"v_and_b32 v{p}, v{AM}, v{d}"); g(f"v_and_b32 v{p+1}, v{AM+1}, v{d+2}")
        g(f"v_and_b32 v{p+2}, v{AM+2}, v{d}"); g(f"v_and_b32 v{p+3}, v{AM+3}, v{d+2}")
    for h in range(4):
        g(f"{MF} {vr(oo(t,h,2))}, {vr(ONES)}, {vr(dp(t,h))}, 0")
        g(f"{MF} {vr(oo(t,h,0))}, {vr(vop(h,t-1))}, {vr(dp(t,h))}, 0")
        g(f"{MF} {vr(oo(t,h,1))}, {vr(vop(4,t-1))}, {vr(dp(t,h))}, 0")
    for h in range(4):
        o0 = oo(t, h, 0); rc = oo(t, h, 2)
        g(f"v_rcp_f32 v{rc}, v{rc}")
        if PK:
            for r in (0, 2): g(f"v_pk_mul_f32 v[{o0+r}:{o0+r+1}], v[{o0+r}:{o0+r+1}], v[{rc}:{rc+1}] op_sel_hi:[1,0]")
        else:
            for r in range(4): g(f"v_mul_f32 v{o0+r}, v{o0+r}, v{rc}")
        for r in range(4): g(f"v_mul_f32_dpp v{TMP[t]+r}, v{oo(t,h,1)+r}, v{rc} quad_perm:[0,1,2,3] row_mask:{hex(1<<h)} bank_mask:0xf")
        cvt(dc(t, h >> 1) + 2 * (h & 1), o0)
    cvt(dc(t, 2), TMP[t])
    so = "s95" if t else "s94"
    c = dc(t, 2)
    for p in range(2):
        g(f"buffer_store_dwordx4 {vr(dc(t, p))}, v{VX0}, s[32:35], {so} offen offset:{1024*p} sc1")
    d = dc(t, 0); e = dc(t, 1)
    g(f"v_add3_u32 v{c+2}, v{d}, v{d+1}, v{d+2}"); g(f"v_add3_u32 v{c+3}, v{e}, v{e+1}, v{e+2}")
    g(f"v_add3_u32 v{c+2}, v{c+2}, v{d+3}, v{e+3}"); g(f"v_add3_u32 v{c+2}, v{c+2}, v{c+3}, v{TOK}")
    g(f"v_add3_u32 v{c+2}, v{c+2}, v{c}, v{c+1}")
    g(f"buffer_store_dwordx3 {vr(c,3)}, v{VWA}, s[32:35], {so} offen offset:2048 sc1")
flush("attention")
if STAMP: stamp2(a, 35, 52)
ev(a, "att")
WR = 48
NRK = 6
OR_ = 168
AC = 224
CK = 244
BA = {"S1": 248, "S2": 249, "S0": 250, "TOP": 251, "R1": 248, "R2": 249, "TB": 252}
def lring(l):
    k = (l - 30) % 15
    return 8 + 4 * k
a("L_P2_PRE:")
a("v_lshlrev_b32 v2, 4, v1")
a("s_lshr_b32 s64, s22, 2")
a(f"s_mul_i32 s60, s64, {CL['S1'][3]}"); a(f"s_add_u32 s60, s60, {CL['S1'][2]}"); a(f"v_add_u32 v{BA['S1']}, s60, v2")
a(f"s_mul_i32 s60, s64, {CL['S2'][3]}"); a(f"s_add_u32 s60, s60, {CL['S2'][2]}"); a(f"v_add_u32 v{BA['S2']}, s60, v2")
for l in range(30): a(f"ds_read_b128 {vr(WR+4*l)}, v{BA['S1' if l < 24 else 'S2']} offset:{(l % 24)*1024}")
for nm in ("S0", "TOP", "TB"):
    a(f"s_mul_i32 s60, s64, {CL[nm][3]}"); a(f"s_add_u32 s60, s60, {CL[nm][2]}"); a(f"v_add_u32 v{BA[nm]}, s60, v2")
consumer_ids()
rotbit("s86")
a(f"""s_and_b32 s65, s22, 3
s_lshl_b32 s67, s85, 2
s_add_u32 s67, s67, s65
s_mul_i32 s80, s67, {OTT}
s_mul_i32 s60, s64, {8*OBLK}
s_add_u32 s80, s80, s60
v_mul_u32_u24 v3, 12, v1
v_add_u32 v3, 2048, v3
v_and_b32 v4, 15, v1
v_lshlrev_b32 v5, 3, v4
s_lshl_b32 s62, s67, 7
s_add_u32 s62, s62, {WS_G}
v_sub_u32 v254, 0, v{TOK}
s_add_u32 s82, s80, {4*OBLK}
s_mul_i32 s86, s86, {4*OBLK}
s_add_u32 s80, s80, s86
s_sub_u32 s82, s82, s86
s_add_u32 s81, s80, {2*OBLK}
s_add_u32 s83, s82, {2*OBLK}
s_mov_b32 s28, s18
s_mov_b32 s29, s19
s_mov_b32 s30, 2621440
s_mov_b32 s31, 0x20000
s_mov_b32 s61, 0""")
stamp(a, 36)
a("s_waitcnt lgkmcnt(0)")
a("s_barrier")
stamp(a, 37)
a("s_cmp_lt_u32 s22, 4"); a("s_cbranch_scc1 L_P2_C")
dma_class("R1"); dma_class("R2")
if OWAIT >= 2: a("s_waitcnt vmcnt(0)"); stamp(a, 38)
a("s_branch L_P2_GO")
a("L_P2_C:")
if OWAIT: a("s_waitcnt vmcnt(0)"); stamp(a, 38)
a("s_setprio 0")
a("L_P2_GO:")
if OWAIT >= 2: a("s_barrier")
if OWAIT >= 3: a(f"s_sleep {OWAIT}")
if STAMP: stamp2(a, 39, 53)
ev(a, "bp")
def og(m, e, k): return OR_ + (m & 1) * 24 + e * 12 + k * 4
def ld_pair(m):
    o = []
    for e in range(2):
        for k in range(2): o.append(f"buffer_load_dwordx4 {vr(og(m, e, k))}, v2, s[32:35], s{80+m} offen offset:{e*OBLK + k*1024} sc1")
        o.append(f"buffer_load_dwordx3 {vr(og(m, e, 2), 3)}, v3, s[32:35], s{80+m} offen offset:{e*OBLK} sc1")
    return o
def chk_pair(m):
    o = []
    for e in range(2):
        d = og(m, e, 0); f = og(m, e, 1); c = og(m, e, 2); x = CK + 2 * e
        o.append([f"v_add3_u32 v{x}, v{d}, v{d+1}, v{d+2}", f"v_add3_u32 v{x+1}, v{f}, v{f+1}, v{f+2}", f"v_add3_u32 v{x}, v{x}, v{d+3}, v{f+3}",
                  f"v_add3_u32 v{x}, v{x}, v{x+1}, v{TOK}", f"v_add3_u32 v{x}, v{x}, v{c}, v{c+1}", f"v_xor_b32 v{x}, v{x}, v{c+2}"])
    o = [o[j][i] for i in range(6) for j in range(2)]
    o += [f"v_or_b32 v{CK}, v{CK}, v{CK+2}", f"v_cmp_ne_u32 vcc, 0, v{CK}"]
    return o
def ofrag(i):
    m, ss = i // 5, i % 5
    return og(m, ss >> 1, ss & 1) if ss < 4 else og(m, 0, 2)
def ld_w(i):
    if i < NRK or i >= 20: return []
    o = []
    for T in range(5):
        l = i * 5 + T
        nm = [k for k, v in CL.items() if v[0] <= l < v[0] + v[1]][0]
        o.append(f"ds_read_b128 {vr(lring(l))}, v{BA[nm]} offset:{(l - CL[nm][0]) * 1024}")
    return o
GLD = "buffer_load_dwordx2 v[6:7], v5, s[32:35], s62 offen sc1"
if PD == 2:
    for x in ld_pair(0) + ld_pair(1): a(x)
    a("s_waitcnt vmcnt(6)")
else:
    for x in ld_pair(0): a(x)
    a("s_waitcnt vmcnt(0)")
    for x in ld_pair(1): a(x)
stamp(a, 33)
for x in chk_pair(0): a(x)
PRE = ["s_lshr_b32 s46, s67, 4", "s_lshl_b32 s46, s46, 8", "s_bfe_u32 s47, s67, 0x10003", "s_add_u32 s46, s46, s47", "s_and_b32 s47, s67, 7",
       "s_lshl_b32 s47, s47, 5", "s_add_u32 s46, s46, s47", "s_mul_i32 s46, s46, 1280", "s_mul_i32 s47, s84, 160", "s_add_u32 s46, s46, s47",
       "s_mul_i32 s60, s65, 5120", f"s_add_u32 s60, s60, {XCH}", f"v_add_u32 v{WR+76}, s60, v2", "v_mul_u32_u24 v4, 2560, v4", f"v_lshrrev_b32 v{WR+79}, 4, v1",
       f"v_lshl_add_u32 v{WR+77}, v{WR+79}, 4, v4", f"v_lshl_add_u32 v{WR+78}, v{WR+79}, 3, v4",
       "s_waitcnt vmcnt(0)", f"v_add3_u32 v{CK}, v6, v7, v254", f"v_cmp_ne_u32 vcc, 0, v{CK}"]
for m in range(4):
    a(f"s_cbranch_vccnz L_RETRY{m}")
    a(f"L_OK{m}:")
    if m == 0: stamp(a, 34)
    a(f"v_mov_b32 v{og(m,0,2)+2}, v{og(m,1,2)}"); a(f"v_mov_b32 v{og(m,0,2)+3}, v{og(m,1,2)+1}")
    lds_ = ld_pair(m + 2) if m < 2 else ([GLD] if m == 2 else [])
    chk = chk_pair(m + 1) if m < 3 else []
    for ss in range(5):
        i = m * 5 + ss
        nxt = ld_w(i + 2)
        w_ = []
        if i >= NRK: w_.append(f"lgkmcnt({5 if i < 19 else 0})")
        if PD == 2 and ss == 3 and m < 3: w_.insert(0, f"vmcnt({len(lds_)})")
        if w_: a("s_waitcnt " + " ".join(w_))
        for T in range(5):
            wf = vr(lring(i * 5 + T)) if i >= NRK else vr(WR + (i * 5 + T) * 4)
            a(f"{MF} {vr(AC+4*T)}, {wf}, {vr(ofrag(i))}, {'0' if i == 0 else vr(AC+4*T)}")
            if nxt: a(nxt[T])
            if PD == 2:
                if ss < 3 and T in (1, 3):
                    k = ss * 2 + (T >> 1)
                    if k < len(lds_): a(lds_[k])
                if ss >= 3 and chk:
                    k = (ss - 3) * 5 + T
                    for x in chk[k * 14 // 10:(k + 1) * 14 // 10]: a(x)
            if PD == 3 and ss >= LPOS and T in (1, 3):
                k = (ss - LPOS) * 2 + (T >> 1)
                if k < len(lds_): a(lds_[k])
            if m == 3:
                k = ss * 5 + T
                if k < len(PRE): a(PRE[k])
    if False:
        a(f"s_cmp_eq_u32 s64, {m - 1}"); a(f"s_cbranch_scc1 L_NE1{m}"); a("s_barrier"); a(f"L_NE1{m}:")
    if PD == 3 and m < 3:
        a(f"s_waitcnt vmcnt({len(lds_)})")
        for x in chk: a(x)
    if PD == 1 and m < 3:
        a("s_waitcnt vmcnt(0)")
        for x in lds_: a(x)
        for x in chk: a(x)
if STAMP: stamp2(a, 56, 54)
a("s_cbranch_vccnz L_RETRYG")
a("L_OKG:")
a("s_cmp_eq_u32 s64, 0")
a("s_cbranch_scc1 L_EPI_A")
def epi(send, keep, sc):
    RA, O4, O2 = WR + 76, WR + 77, WR + 78
    for T in send:
        for r in (0, 2): a(f"v_pk_mul_f32 v[{AC+4*T+r}:{AC+4*T+r+1}], v[{AC+4*T+r}:{AC+4*T+r+1}], v[{sc}:{sc+1}] op_sel_hi:[1,0]")
    a("s_barrier")
    for T in send: a(f"ds_write_b128 v{RA}, {vr(AC+4*T)} offset:{T*1024}")
    a("s_waitcnt lgkmcnt(0)"); a("s_barrier")
    for n, T in enumerate(keep): a(f"ds_read_b128 {vr(8+4*n)}, v{RA} offset:{T*1024}")
    for n, T in enumerate(keep):
        a(f"s_waitcnt lgkmcnt({len(keep)-1-n})")
        for r in (0, 2): a(f"v_pk_fma_f32 v[{8+4*n+r}:{8+4*n+r+1}], v[{AC+4*T+r}:{AC+4*T+r+1}], v[{sc}:{sc+1}], v[{8+4*n+r}:{8+4*n+r+1}] op_sel_hi:[1,0,1]")
        a(f"v_cvt_pk_bf16_f32 v{OR_+2*n}, v{8+4*n}, v{8+4*n+1}"); a(f"v_cvt_pk_bf16_f32 v{OR_+2*n+1}, v{8+4*n+2}, v{8+4*n+3}")
        if n == 1: a(f"buffer_store_dwordx4 {vr(OR_)}, v{O4}, s[28:31], s46 offen offset:{32*keep[0]} {SF}")
        if n == 2: a(f"buffer_store_dwordx2 {vr(OR_+4,2)}, v{O2}, s[28:31], s46 offen offset:128 {SF}")
if EP:
    RA, O4, O2 = WR + 76, WR + 77, WR + 78
    a("s_barrier")
    for T in range(5): a(f"ds_read_b128 {vr(72+4*T)}, v{RA} offset:{T*1024}")
    a("v_sub_f32 v6, 1.0, v6"); a("v_cvt_pk_bf16_f32 v6, v6, v6"); a("v_and_b32 v6, 0xffff0000, v6")
    for T in range(5):
        a(f"s_waitcnt lgkmcnt({4-T})")
        for r in (0, 2): a(f"v_pk_fma_f32 v[{72+4*T+r}:{72+4*T+r+1}], v[{AC+4*T+r}:{AC+4*T+r+1}], v[6:7], v[{72+4*T+r}:{72+4*T+r+1}] op_sel_hi:[1,0,1]")
        a(f"v_cvt_pk_bf16_f32 v{OR_+2*T}, v{72+4*T}, v{72+4*T+1}"); a(f"v_cvt_pk_bf16_f32 v{OR_+2*T+1}, v{72+4*T+2}, v{72+4*T+3}")
        if T == 1: a(f"buffer_store_dwordx4 {vr(OR_)}, v{O4}, s[28:31], s46 offen {SF}")
        if T == 3: a(f"buffer_store_dwordx4 {vr(OR_+4)}, v{O4}, s[28:31], s46 offen offset:64 {SF}")
    a(f"buffer_store_dwordx2 {vr(OR_+8,2)}, v{O2}, s[28:31], s46 offen offset:128 {SF}")
    a("s_branch L_FIN")
    a("L_EPI_A:")
    a("s_nop 1")
    for T in range(5):
        for r in (0, 2): a(f"v_pk_mul_f32 v[{AC+4*T+r}:{AC+4*T+r+1}], v[{AC+4*T+r}:{AC+4*T+r+1}], v[6:7] op_sel_hi:[1,0]")
        a(f"ds_write_b128 v{RA}, {vr(AC+4*T)} offset:{T*1024}")
    a("s_waitcnt lgkmcnt(0)"); a("s_barrier")
else:
    a("v_sub_f32 v6, 1.0, v6"); a("v_cvt_pk_bf16_f32 v6, v6, v6"); a("v_and_b32 v6, 0xffff0000, v6")
    epi([0, 1], [2, 3, 4], 6)
    a("s_branch L_FIN")
    a("L_EPI_A:")
    a("s_nop 4")
    epi([2, 3, 4], [0, 1], 6)
ev(a, "end")
if SPIN:
    a("""s_mov_b32 s60, 0
    L_SPIN:
    s_memrealtime s[98:99]
    s_waitcnt lgkmcnt(0)
    s_sub_u32 s98, s98, s96
    s_add_u32 s60, s60, 1
    s_cmp_ge_u32 s60, 20000
    s_cbranch_scc1 L_FIN
    s_cmp_lt_u32 s98, 4000
    s_cbranch_scc1 L_SPIN""")
a("L_FIN:")
if STAMP:
    stamp(a, 57)
    a("s_add_u32 s61, s61, 1"); a(f"v_writelane_b32 v{SV}, s61, 61")
    a("s_waitcnt vmcnt(0)")
    stamp(a, 62); stamp(a, 63, True)
    a(f"s_lshl_b32 s46, s2, 3"); a(f"s_add_u32 s46, s46, s22"); a("s_lshl_b32 s46, s46, 8"); a(f"s_add_u32 s46, s46, {WS_ST}")
    a(f"v_lshlrev_b32 v2, 2, v1")
    a(f"buffer_store_dword v{SV}, v2, s[32:35], s46 offen")
a("L_END:"); a("s_endpgm")
for m in range(4):
    a(f"L_RETRY{m}:")
    a("s_add_u32 s61, s61, 1"); a(f"s_cmp_ge_u32 s61, {SPIN_MAX}"); a(f"s_cbranch_scc1 L_OK{m}")
    a(f"s_sleep {RSLEEP}")
    for x in ld_pair(m): a(x)
    a("s_waitcnt vmcnt(0)")
    for x in chk_pair(m): a(x)
    a(f"s_cbranch_vccnz L_RETRY{m}"); a(f"s_branch L_OK{m}")
a("L_RETRYG:")
a("s_add_u32 s61, s61, 1"); a(f"s_cmp_ge_u32 s61, {SPIN_MAX}"); a("s_cbranch_scc1 L_OKG")
a(f"s_sleep {RSLEEP}")
a("buffer_load_dwordx2 v[6:7], v5, s[32:35], s62 offen sc1"); a("s_waitcnt vmcnt(0)")
a(f"v_add3_u32 v{CK}, v6, v7, v254"); a(f"v_cmp_ne_u32 vcc, 0, v{CK}")
a("s_cbranch_vccnz L_RETRYG"); a("s_branch L_OKG")

l1, _ = fix(a.L)
for tr in traces:
    _, iss_ = fix(tr, verify=True)
    for x in iss_: print("; TRACE HAZARD", x, file=sys.stderr)
print(f"""; gated mix of two dilated sliding-window attention blocks (generated by gen/gen16.py)
; @launch grid=(256,1,1) block=(512,1,1) lds={LDS_TOTAL}
.amdgcn_target "amdgcn-amd-amdhsa--gfx950"
.text
.globl {KN}
.p2align 8
.type {KN},@function""")
print("\n".join(l1))
print("CODE_END:")
print('.section .rodata,"a"')
print(kd(KN, 256, 102, 256))
```

```python
import sys, struct, math
sys.path.insert(0, "gen")
from asmlib import *
NAME = "gated_mix__sliding_local_dilated__sliding_local_dilated__prompt"
KN = NAME + "_kernel"
OPT = dict(a.split("=") for a in sys.argv[1:])
STAMP = int(OPT.get("stamp", 0)); CM = int(OPT.get("cm", 1)); PK = int(OPT.get("pk", 1))
NS1 = int(OPT.get("ns1", 12)); RSLEEP = int(OPT.get("rsleep", 2)); OWAIT = int(OPT.get("owait", 2)); SB = int(OPT.get("sb", 5)); SA = int(OPT.get("sa", 3)); XP = OPT.get("xp", ""); R2 = int(OPT.get("r2", 1)); WNT = "nt " if int(OPT.get("wnt", 0)) else ""; XNT = "nt " if int(OPT.get("xnt", 0)) else ""; SNT = "nt " if int(OPT.get("snt", 0)) else ""; STG = int(OPT.get("stg", 2)); PP = OPT.get("pp", "1101010100").replace("-", ""); ROT = int(OPT.get("rot", 0 if PP else 1)); EP = 1; HA = int(OPT.get("ha", 1)); LS = int(OPT.get("ls", 1)); AL = int(OPT.get("al", 6)); HR = int(OPT.get("hr", 0)); LP = int(OPT.get("lp", 0)); KP = int(OPT.get("kp", 1)); STL = int(OPT.get("stl", 60)); TOV = 1; LPOS = int(OPT.get("lpos", 2)); COV = int(OPT.get("cov", 0)); SF = OPT.get("sf", "nt").replace("+", " "); PD = int(OPT.get("pd", 1))
def f2u(x): return struct.unpack("<I", struct.pack("<f", x))[0]
STAGE = 49152; XOFF = 30720
GW_LDS = 147456; TOK_LDS = GW_LDS + 1536; SCR_LDS = 149504; LDS_TOTAL = 163840
XCH = 126976
RED = 98304
OBLK = 2816; OTT = 16 * OBLK
WS_WOT = 0x700000; WS_G = 0x900000; WS_FW = 0x910000; WS_ST = 0x1000000
NEG = f2u(-1e30)
CEXP = f2u(20 ** -0.5 * math.log2(math.e))
LOG2E = f2u(math.log2(math.e))
MF = "v_mfma_f32_16x16x32_bf16"
SPIN_MAX = 1 << 17
SV = 255
def stamp(a, idx, real=False):
    if not STAMP: return
    a(f"{'s_memrealtime' if real else 's_memtime'} s[68:69]"); a("s_waitcnt lgkmcnt(0)"); a(f"v_writelane_b32 v{SV}, s68, {idx}")
SPIN = OPT.get("spin", "")
def ev(a, name):
    if SPIN == name: a("s_memrealtime s[96:97]"); a("s_waitcnt lgkmcnt(0)")
def stamp2(a, idx, ridx):
    stamp(a, idx); stamp(a, ridx, True)
def stamp0(a):
    if STAMP: a(f"v_mov_b32 v{SV}, 0"); a(f"v_writelane_b32 v{SV}, s66, 0"); a(f"v_writelane_b32 v{SV}, s68, 1")

a = Asm()
traces = []
def ids():
    a("""v_and_b32 v1, 63, v0
    s_and_b32 s20, s2, 3
    s_lshl_b32 s20, s20, 2
    s_bfe_u32 s46, s2, 0x20003
    s_add_u32 s20, s20, s46
    s_lshr_b32 s47, s2, 5
    s_and_b32 s21, s2, 4
    s_lshl_b32 s21, s21, 1
    s_add_u32 s21, s21, s47""")
def srd_ws_dbg():
    WSO = int(OPT.get("wso", 0)) << 20
    a(f"""s_add_u32 s32, s78, {WSO}
    s_addc_u32 s33, s79, 0
    s_mov_b32 s34, {0x10000000 - WSO}
    s_mov_b32 s35, 0x20000
    s_mov_b32 s40, s76
    s_mov_b32 s41, s77
    s_mov_b32 s42, 256
    s_mov_b32 s43, 0x20000""")
def consumer_ids():
    if CM:
        a("s_bfe_u32 s84, s2, 0x30003"); a("s_and_b32 s85, s2, 7"); a("s_lshl_b32 s85, s85, 2"); a("s_lshr_b32 s86, s2, 6"); a("s_add_u32 s85, s85, s86")
    else:
        a("s_and_b32 s84, s20, 7"); a("s_lshl_b32 s85, s21, 1"); a("s_lshr_b32 s86, s20, 3"); a("s_add_u32 s85, s85, s86")
def pf_setup(isw_scc_cmp, vdst, vt, soff, sstep, lblx, lble):
    a(f"""s_lshr_b32 s44, s2, 3
    {isw_scc_cmp}
    s_cbranch_scc0 {lblx}
    v_mul_u32_u24 v{vt}, 13108, v1
    v_lshrrev_b32 v{vt}, 16, v{vt}
    v_mul_u32_u24 v{vt}, 640, v{vt}
    v_lshl_add_u32 v{vdst}, v1, 7, v{vt}
    s_mul_i32 {soff}, s44, 15360
    s_and_b32 s45, s2, 1
    s_mul_i32 s45, s45, 640
    s_add_u32 {soff}, {soff}, s45
    s_mov_b32 {sstep}, 491520
    s_cmp_ge_u32 s20, 8
    s_cselect_b32 s88, s12, s6
    s_cselect_b32 s89, s13, s7
    s_mov_b32 s90, 2457600
    s_branch {lble}
    {lblx}:
    v_lshrrev_b32 v{vt}, 1, v1
    v_mul_u32_u24 v{vt}, 1280, v{vt}
    v_and_b32 v{vdst}, 1, v1
    v_lshl_add_u32 v{vdst}, v{vdst}, 7, v{vt}
    s_and_b32 s45, s2, 4
    s_lshl_b32 s45, s45, 3
    s_add_u32 s44, s44, s45
    s_mul_i32 {soff}, s44, 40960
    s_mov_b32 {sstep}, 256
    s_mov_b32 s88, s4
    s_mov_b32 s89, s5
    s_mov_b32 s90, 2621440
    {lble}:
    s_mov_b32 s91, 0x20000""")
def rotbit(dst):
    a(f"s_xor_b32 {dst}, s84, s85"); a(f"s_and_b32 {dst}, {dst}, {R2}")
a(f"{KN}:")
if STAMP: a("s_memrealtime s[66:67]"); a("s_memtime s[68:69]")
a("""v_readfirstlane_b32 s22, v0
s_load_dwordx8 s[4:11], s[0:1], 0
s_load_dwordx8 s[12:19], s[0:1], 32
s_lshr_b32 s3, s2, 8
s_cbranch_scc1 L_END
s_lshr_b32 s22, s22, 6
s_cmp_eq_u32 s22, 3
s_cbranch_scc1 L_HOP
s_cmp_lt_u32 s22, 4
s_cbranch_scc1 L_COMPUTE""")
a("""v_and_b32 v1, 63, v0
v_mul_u32_u24 v3, 13108, v1
v_lshrrev_b32 v3, 16, v3
v_mul_u32_u24 v3, 640, v3
v_lshlrev_b32 v4, 7, v1
v_add_u32 v40, v4, v3
v_lshrrev_b32 v3, 1, v1
v_lshl_add_u32 v42, v3, 10, v4
s_lshr_b32 s44, s2, 3
s_mul_i32 s92, s44, 24
s_and_b32 s45, s2, 1
s_add_u32 s92, s92, s45
s_mulk_i32 s92, 640
s_and_b32 s45, s2, 4
s_lshl_b32 s45, s45, 3
s_add_u32 s44, s44, s45
s_mul_i32 s93, s44, 40960
s_mov_b32 s26, 2457600
s_mov_b32 s30, 2621440
s_mov_b32 s31, 0x20000
s_mov_b32 s27, s31
s_bitcmp1_b32 s2, 1
s_waitcnt lgkmcnt(0)
s_cselect_b64 s[24:25], s[12:13], s[6:7]
s_mov_b64 s[28:29], s[4:5]
""")
if PP[0] == "1":
    a("""s_cmp_lg_u32 s22, 4
s_cbranch_scc1 L_E1
buffer_load_dword v41, v42, s[28:31], s93 offen
L_E1:
s_cmp_lg_u32 s22, 5
s_cbranch_scc1 L_LD0
buffer_load_dword v41, v40, s[24:27], s92 offen
s_branch L_LD0
""")
else:
    a("""s_bfe_u32 s45, s22, 0x10001
    s_bitcmp1_b32 s22, 0
    s_cbranch_scc1 L_E1
    s_lshl_b32 s45, s45, 8
    s_add_u32 s45, s45, s93
    buffer_load_dword v41, v42, s[28:31], s45 offen
    s_branch L_LD0
    L_E1:
    s_mul_i32 s45, s45, 491520
    s_add_u32 s45, s45, s92
    buffer_load_dword v41, v40, s[24:27], s45 offen
    s_branch L_LD0""")
a(""".p2align 8
L_HOP:
s_branch L_COMPUTE
L_LD0:
s_load_dwordx4 s[76:79], s[0:1], 64
s_setprio 2""")
stamp0(a); stamp(a, 3)
ids()
a("""v_lshrrev_b32 v3, 3, v1
v_mul_u32_u24 v3, 2560, v3
v_lshrrev_b32 v4, 4, v0
v_xor_b32 v4, v4, v1
v_xor_b32 v4, 4, v4
v_and_b32 v4, 7, v4
v_lshl_add_u32 v11, v4, 4, v3
s_and_b32 s64, s22, 3
s_lshr_b32 s44, s21, 1
s_or_b32 s45, s44, s64
s_cselect_b32 s52, -20480, 0
s_lshl_b32 s44, s44, 8
s_and_b32 s45, s21, 1
s_add_u32 s44, s44, s45
s_lshl_b32 s45, s64, 4
s_add_u32 s44, s44, s45
s_mul_i32 s47, s44, 1280
s_lshl_b32 s53, s64, 10
v_mul_u32_u24 v3, 6554, v1
v_lshrrev_b32 v3, 16, v3
v_mul_u32_u24 v4, 1120, v3
v_lshl_add_u32 v10, v1, 4, v4
s_and_b32 s46, s20, 7
s_mul_i32 s46, s46, 160
s_mul_i32 s44, s64, 61440
s_add_u32 s46, s46, s44
s_mul_i32 s48, s64, 7680
s_mov_b32 s49, 0
s_mov_b32 s50, 0
s_mov_b32 s87, 99""")
stamp(a, 2)
a("L_LD_ISSUE:")
a(f"s_add_u32 m0, s53, {XOFF + 1024}"); a("s_add_u32 s51, s47, s52"); a(f"buffer_load_dwordx4 v11, s[28:31], s51 offen {XNT}lds")
for qq in range(1, 4):
    a(f"s_add_u32 m0, s53, {XOFF + 1024 + 4096*qq}"); a(f"s_add_u32 s51, s47, {(64*qq-16)*1280}"); a(f"buffer_load_dwordx4 v11, s[28:31], s51 offen {XNT}lds")
a("s_mov_b32 exec_hi, 0x0fffffff")
for qq in range(8):
    if qq == KP:
        a("s_cmp_lg_u32 s87, 0"); a("s_cbranch_scc1 L_HK"); a(f"s_waitcnt vmcnt({4 + KP})"); a("L_HKB:")
        if STAMP == 1: a("s_memtime s[68:69]"); a("s_waitcnt lgkmcnt(0)"); a(f"s_add_u32 m0, s50, 19"); a(f"v_writelane_b32 v{SV}, s68, m0")
        a("s_barrier")
        if STAMP == 1: a("s_memrealtime s[68:69]"); a("s_waitcnt lgkmcnt(0)"); a(f"s_add_u32 m0, s50, 39"); a(f"v_writelane_b32 v{SV}, s68, m0")
        a("L_NB0:"); a("s_mov_b32 s87, 0")
    r = 2 * qq; k = (r & 0x33) | ((r & 4) << 1) | ((r & 8) >> 1)
    a(f"s_add_u32 m0, s48, {960*qq}"); a(f"s_add_u32 s51, s46, {k*3840}"); a(f"buffer_load_dwordx4 v10, s[24:27], s51 offen {WNT}lds")
a("s_mov_b32 exec_hi, -1")
a("s_cmp_lg_u32 s64, 0"); a("s_cbranch_scc1 L_LD_W")
a(f"s_add_u32 m0, s53, {XOFF + 1024 + 4096*4}"); a(f"s_add_u32 s51, s47, {(64*4-16)*1280}"); a(f"buffer_load_dwordx4 v11, s[28:31], s51 offen {XNT}lds")
a("L_LD_W:")
a(f"""s_mov_b32 s63, {STAGE}
s_add_u32 s46, s46, 245760
s_add_u32 s47, s47, 128
s_add_u32 s49, s49, 1
s_cmp_eq_u32 s49, 3
s_cselect_b32 s51, {(-2*STAGE) & 0xffffffff}, s63
s_cselect_b32 s49, 0, s49
s_add_u32 s48, s48, s51
s_add_u32 s53, s53, s51
s_add_u32 s50, s50, 1""")
def lstamp(base):
    if STAMP == 1: a("s_memtime s[68:69]"); a("s_waitcnt lgkmcnt(0)"); a(f"s_add_u32 m0, s50, {base}"); a(f"v_writelane_b32 v{SV}, s68, m0")
lstamp(9)
a(f"""s_cmp_lt_u32 s50, 2
s_cbranch_scc1 L_LD_PRE0
L_DISP:
s_cmp_eq_u32 s50, s96
s_cbranch_scc1 L_SIDE_A
L_SA_RET:
s_cmp_eq_u32 s50, s97
s_cbranch_scc1 L_TOK_A
s_cmp_eq_u32 s50, s98
s_cbranch_scc1 L_TOK_B
s_cmp_eq_u32 s50, {10 if LP else 9}
s_cbranch_scc1 L_WOF_A
s_cmp_eq_u32 s50, 10
s_cbranch_scc1 L_WOF_B""")
a("L_LD_WAIT:")
a("L_LD_BAR:")
a("L_LD_PRE:")
a("s_bitcmp1_b32 s94, s50"); a("s_cbranch_scc0 L_LD_TOP")
a(f"s_add_u32 s87, s87, {STG}")
a("s_cmp_eq_u32 s64, 0"); a("s_cbranch_scc1 L_PFX")
for n in range(STG):
    a("buffer_load_dword v41, v40, s[24:27], s92 offen"); a(f"s_add_u32 s92, s92, {15360 if n < STG-1 else STG*491520 - (STG-1)*15360}")
a("s_branch L_LD_TOP")
a("L_PFX:")
for n in range(STG):
    a("buffer_load_dword v41, v42, s[28:31], s93 offen"); a(f"s_add_u32 s93, s93, {40960 if n < STG-1 else (STG*256 - (STG-1)*40960) & 0xffffffff}")
a("s_branch L_LD_TOP")
a("L_LD_TOP:")
if HA:
    a("s_bitcmp1_b32 s99, s50"); a("s_cbranch_scc0 L_LD_ISSUE")
    for e_ in (1, 2, 3, 6, 8):
        a(f"s_cmp_eq_u32 s87, {e_}"); a(f"s_cbranch_scc1 L_HA{e_}")
    a("s_waitcnt vmcnt(0)")
    a("L_HAB:")
    if STAMP == 1: a("s_memtime s[68:69]"); a("s_waitcnt lgkmcnt(0)"); a(f"s_add_u32 m0, s50, 19"); a(f"v_writelane_b32 v{SV}, s68, m0")
    a("s_barrier")
    if STAMP == 1: a("s_memrealtime s[68:69]"); a("s_waitcnt lgkmcnt(0)"); a(f"s_add_u32 m0, s50, 39"); a(f"v_writelane_b32 v{SV}, s68, m0")
    a("s_mov_b32 s87, 99")
a("s_branch L_LD_ISSUE")
a("L_HK:")
a("s_cmp_eq_u32 s87, 99"); a("s_cbranch_scc1 L_NB0")
for e_ in (2, 3, 4, 5, 6, 8): a(f"s_cmp_eq_u32 s87, {e_}"); a(f"s_cbranch_scc1 L_HK{e_}")
for e_ in (1, 2, 3, 4, 5, 6, 8): a(f"L_HK{e_}:"); a(f"s_waitcnt vmcnt({4 + KP + e_})"); a("s_branch L_HKB")
if HA:
    for e_ in (1, 2, 3, 6, 8): a(f"L_HA{e_}:"); a(f"s_waitcnt vmcnt({e_})"); a("s_branch L_HAB")
a("L_LD_PRE0:")
a("v_lshlrev_b32 v12, 4, v1"); a("v_mov_b32 v13, 0")
pos = [c for c in range(1, 10) if PP[c] != "0"]
if STG > 1: a(f"s_bfe_u32 s45, s2, 0x{(STG.bit_length()-1):x}0003")
else: a("s_mov_b32 s45, 0")
a(f"s_mul_i32 s44, s45, {491520 - 15360}"); a("s_add_u32 s92, s92, s44"); a(f"s_add_u32 s92, s92, {491520*int(PP[0])}")
a(f"s_mul_i32 s44, s45, {40960 - 256}"); a("s_sub_u32 s93, s93, s44"); a(f"s_add_u32 s93, s93, {256*int(PP[0])}")
a("s_mov_b32 s94, 0")
for g_ in range(STG):
    mask = sum(1 << c for k, c in enumerate(pos) if k % STG == g_)
    a(f"s_cmp_eq_u32 s45, {g_}"); a(f"s_cselect_b32 s94, {mask}, s94")
a("s_mov_b32 s99, s94")
a("s_cmp_ge_u32 s64, 2"); a("s_cselect_b32 s94, 0, s94")
a("s_waitcnt lgkmcnt(0)")
SA0 = int(OPT.get("sa0", SA)); SB0 = int(OPT.get("sb0", SB))
a("s_bitcmp1_b32 s2, 3"); a(f"s_cselect_b32 s96, {SA}, {SA0}"); a(f"s_cselect_b32 s97, {SB}, {SB0}")
a("s_add_u32 s98, s97, 2")
if HA == 2: a("s_bitset1_b32 s99, s96"); a("s_bitset1_b32 s99, s97")
a("s_branch L_DISP")
a("L_SIDE_A:")
if int(OPT.get("u2", 1)):
    a("""s_mov_b32 s56, 0
    s_cmp_lt_u32 s64, 2
    s_cbranch_scc1 L_SA_RET
    s_mov_b32 s57, s2
    s_cmp_eq_u32 s64, 2
    s_cbranch_scc1 L_SA_GO
    s_bitcmp0_b32 s2, 3
    s_cbranch_scc1 L_SA_RET
    s_lshr_b32 s44, s2, 4
    s_sub_u32 s44, s44, 4
    s_cmp_ge_u32 s44, 8
    s_cbranch_scc1 L_SA_RET
    s_lshl_b32 s44, s44, 3
    s_and_b32 s57, s2, 7
    s_add_u32 s57, s57, s44
    s_add_u32 s57, s57, 256
    L_SA_GO:""")
else:
    a("""s_mov_b32 s56, 0
    s_sub_u32 s44, s64, 2
    s_lshl_b32 s57, s44, 8
    s_add_u32 s57, s57, s2
    s_cmp_ge_u32 s57, 320
    s_cbranch_scc1 L_SA_RET""")
a("""s_mov_b32 s56, 1
s_mov_b32 s39, 0x20000
s_and_b32 s45, s57, 7
s_lshr_b32 s44, s57, 3
s_mul_i32 s58, s44, 52
s_lshr_b32 s58, s58, 8
s_mul_i32 s59, s58, 5
s_sub_u32 s59, s44, s59
s_cmp_ge_u32 s58, 4
s_cselect_b32 s36, s14, s8
s_cselect_b32 s37, s15, s9
s_mov_b32 s38, 819200
s_and_b32 s58, s58, 3
s_mul_i32 s58, s58, 160
s_mul_i32 s60, s59, 40
s_cmp_eq_u32 s59, 4
s_cselect_b32 s60, 16, s60
s_cselect_b32 s54, 80, 20
s_cselect_b32 s55, 20, 4
s_add_u32 s58, s58, s60
s_mul_i32 s58, s58, 1280
s_mul_i32 s60, s45, 160
s_add_u32 s58, s58, s60
s_mul_i32 s54, s54, 1280
s_mul_i32 s55, s55, 1280""")
a(f"s_mul_i32 s62, s64, 5120"); a(f"s_add_u32 s62, s62, {SCR_LDS - 10240}")
a("s_mov_b32 exec_hi, 0xff")
for g in range(4):
    for jh in range(2):
        a(f"s_add_u32 m0, s62, {(16*(g>>1) + 8*jh + 4*(g&1))*160}")
        if jh == 0: a("s_add_u32 s51, s58, s54"); a(f"buffer_load_dwordx4 v10, s[36:39], s58 offen {SNT}lds")
        else: a("s_add_u32 s58, s58, s55"); a(f"buffer_load_dwordx4 v10, s[36:39], s51 offen {SNT}lds")
a("s_mov_b32 exec_hi, -1")
a(f"""s_mul_i32 s61, s45, 204800
s_mul_i32 s58, s44, 5120
s_add_u32 s61, s61, s58
s_add_u32 s61, s61, {WS_WOT}
""")
if True: a("s_mov_b32 s87, 8"); a("s_branch L_LD_BAR")
a("L_SIDE_B:")
assert SB >= SA + 2
a("""v_lshrrev_b32 v16, 5, v1
v_lshlrev_b32 v16, 4, v16
v_bfe_u32 v17, v1, 4, 1
v_lshl_add_u32 v16, v17, 2, v16
v_bfe_u32 v17, v1, 2, 2
v_add_u32 v16, v16, v17
v_mul_u32_u24 v16, 160, v16
v_add_u32 v16, s62, v16
v_and_b32 v17, 3, v1
v_lshl_add_u32 v18, v17, 4, v16
v_lshl_add_u32 v19, v17, 3, v16""")
for T in range(5):
    for j in range(2):
        if T < 4: a(f"ds_read_b64_tr_b16 v[{20+4*T+2*j}:{21+4*T+2*j}], v18 offset:{j*1280 + 64*(T>>1) + 8*(T&1)}")
        else: a(f"ds_read_b64_tr_b16 v[{20+4*T+2*j}:{21+4*T+2*j}], v19 offset:{j*1280 + 128}")
a("s_waitcnt lgkmcnt(0)")
for T in range(4): a(f"buffer_store_dwordx4 v[{20+4*T}:{23+4*T}], v12, s[32:35], s61 offen offset:{1024*T} sc1")
a("s_add_u32 s61, s61, 4096")
a(f"buffer_store_dwordx4 v[36:39], v12, s[32:35], s61 offen sc1")
a("s_mov_b32 s87, 6"); a("s_branch L_LD_BAR")
a("L_TOK_A:")
srd_ws_dbg()
a("""v_lshlrev_b32 v12, 4, v1
v_mov_b32 v13, 0
s_mov_b64 exec, 1
buffer_load_dword v15, v13, s[40:43], 0 offen sc1
s_mov_b64 exec, -1
s_cmp_lg_u32 s56, 0
s_cbranch_scc1 L_SIDE_B
s_mov_b32 s87, 1
s_branch L_LD_BAR""")
a("L_TOK_B:")
srd_ws_dbg()
a(f"""s_mov_b32 s60, 0
v_mov_b32 v13, 0
L_TOK_CHK:
v_readlane_b32 s75, v15, 0
s_add_u32 s60, s60, 1
s_cmp_lg_u32 s75, 0
s_cbranch_scc1 L_TOK_OK
s_cmp_ge_u32 s60, {SPIN_MAX}
s_cbranch_scc1 L_TOK_OK
s_sleep 4
s_mov_b64 exec, 1
buffer_load_dword v15, v13, s[40:43], 0 offen sc1
s_mov_b64 exec, -1
s_waitcnt vmcnt(0)
s_branch L_TOK_CHK
L_TOK_OK:
v_mov_b32 v14, {TOK_LDS}
v_mov_b32 v15, s75
ds_write_b32 v14, v15
s_cmp_eq_u32 s56, 0
s_waitcnt lgkmcnt(0)
s_cbranch_scc1 L_LD_WAIT
s_and_b32 s45, s57, 7
s_lshl_b32 s45, s45, 13
s_lshr_b32 s44, s57, 3
s_lshl_b32 s44, s44, 7
s_add_u32 s45, s45, s44
s_add_u32 s45, s45, {WS_FW}
v_lshlrev_b32 v13, 2, v1
s_mov_b32 exec_hi, 0
buffer_store_dword v15, v13, s[32:35], s45 offen sc1
s_mov_b32 exec_hi, -1
s_mov_b32 s87, 1
s_branch L_LD_BAR""")
a("L_WOF_A:")
srd_ws_dbg()
consumer_ids()
a(f"""s_lshl_b32 s59, s84, 13
s_add_u32 s59, s59, {WS_FW}
s_lshr_b32 s44, s64, 1
s_mul_i32 s44, s44, 2560
s_add_u32 s59, s59, s44
v_lshlrev_b32 v13, 7, v1
v_lshlrev_b32 v12, 4, v1
s_mov_b64 exec, 0xfffff
buffer_load_dword v14, v13, s[32:35], s59 offen sc1
s_mov_b64 exec, -1""")
if LP: a("s_waitcnt vmcnt(1)"); a("s_barrier")
else: a("s_mov_b32 s87, 1"); a("s_branch L_LD_BAR")
a("L_WOF_B:")
srd_ws_dbg()
a("""v_lshlrev_b32 v12, 4, v1
v_lshlrev_b32 v13, 7, v1
s_mov_b64 exec, 0xfffff
s_mov_b32 s60, 0""")
a(f"s_waitcnt vmcnt({0 if LP else 12})")
a(f"""L_WO_POLL:
v_cmp_ne_u32 vcc, s75, v14
s_cbranch_vccz L_WO_OK
s_add_u32 s60, s60, 1
s_cmp_ge_u32 s60, {SPIN_MAX}
s_cbranch_scc1 L_WO_OK
s_sleep 4
buffer_load_dword v14, v13, s[32:35], s59 offen sc1
s_waitcnt vmcnt(0)
s_branch L_WO_POLL
L_WO_OK:
s_mov_b64 exec, -1
s_setprio 0""")
stamp(a, 29)
CL = {"S1": (0, 24, 49152, 24576), "S2": (24, 14, 98304, 14336), "S0": (38, 24, 0, 24576), "TOP": (62, 6, 151552, 6144), "TB": (68, 2, 147456, 2048),
      "R1": (70, 24, 49152, 24576), "R2": (94, 6, 98304, 14336)}
a(f"""s_mul_i32 s58, s84, 204800
s_add_u32 s58, s58, {WS_WOT}
s_lshr_b32 s44, s64, 1
s_and_b32 s45, s64, 1
s_lshl_b32 s45, s45, 10
s_mul_i32 s59, s44, 102400
s_add_u32 s59, s59, s58
s_add_u32 s59, s59, s45""")
rotbit("s54"); a("s_mul_i32 s54, s54, 51200"); a("s_sub_u32 s55, s59, s54"); a("s_add_u32 s59, s59, s54")
def dma_class(nm, lo=0, hi=None):
    l0, n, base, delta = CL[nm]
    a(f"s_mul_i32 s53, s44, {delta}"); a("s_add_u32 s53, s53, s45")
    for j in range(lo, n if hi is None else hi, 2):
        a(f"s_add_u32 m0, s53, {base + j*1024}"); a(f"s_add_u32 s51, {'s59' if l0 + j < 50 else 's55'}, {(l0 + j)*1024}")
        a(f"buffer_load_dwordx4 v12, s[32:35], s51 offen sc1 lds")
dma_class("S1", 0, NS1)
if not LP: a(f"s_waitcnt vmcnt({NS1//2})"); a("s_barrier")
dma_class("S1", NS1); dma_class("S2"); dma_class("TOP")
a("s_waitcnt vmcnt(7)")
stamp(a, 30)
a("s_barrier")
dma_class("S0"); dma_class("TB")
TOK = 253
a(f"v_mov_b32 v{TOK}, s75")
a("s_branch L_P2_PRE")
a("L_COMPUTE:")
a("s_load_dwordx4 s[76:79], s[0:1], 64")
ev(a, "start")
a(f"s_setprio {OPT.get('cprio', 3)}")
ids()
a("s_waitcnt lgkmcnt(0)")
stamp0(a); stamp(a, 2)
srd_ws_dbg()
a("""s_mov_b32 s39, 0x20000
s_mov_b32 s56, 0
s_cmp_eq_u32 s22, 3
s_cbranch_scc1 L_C_GW
s_cmp_eq_u32 s22, 2
s_cbranch_scc1 L_C_TOK""")
a("s_branch L_C_SETUP")
a("L_C_GW:")
a(f"""s_mov_b32 s36, s16
s_mov_b32 s37, s17
s_mov_b32 s38, 1280
v_lshlrev_b32 v140, 4, v1
s_mov_b32 m0, {GW_LDS}
v_mov_b64 v[144:145], 0
buffer_load_dwordx4 v140, s[36:39], 0 offen lds
buffer_load_dwordx4 v140, s[36:39], 0 offen offset:1024 lds
v_mov_b64 v[146:147], 0
ds_write_b128 v140, v[144:147] offset:{XOFF}
v_add_u32 v140, {STAGE}, v140
ds_write_b128 v140, v[144:147] offset:{XOFF}
v_add_u32 v140, {STAGE}, v140
ds_write_b128 v140, v[144:147] offset:{XOFF}
s_branch L_C_SETUP""")
a("L_C_TOK:")
a("""s_cmp_lg_u32 s2, 0
s_cbranch_scc1 L_C_CPF
s_memrealtime s[44:45]
v_mov_b32 v147, 0
s_waitcnt lgkmcnt(0)
s_or_b32 s44, s44, 1
v_mov_b32 v146, s44
s_mov_b64 exec, 1
buffer_atomic_cmpswap v[146:147], v147, s[40:43], 0 offen sc1
s_mov_b64 exec, -1
L_C_CPF:
s_getpc_b64 s[70:71]
L_PC:
s_sub_u32 s70, s70, L_PC - L_SIDE_B
s_subb_u32 s71, s71, 0
""")
if int(OPT.get("ccp", 1)):
    a(f"""s_lshr_b32 s44, s2, 3
    s_mul_i32 s44, s44, 6
    v_min_u32 v140, 5, v1
    v_add_lshl_u32 v140, v140, s44, 7
    v_min_u32 v140, CODE_END - L_SIDE_B - 4, v140
    global_load_dword v241, v140, s[70:71]""")
else:
    a("""v_lshlrev_b32 v140, 7, v1
v_add_u32 v141, 8192, v140
v_add_u32 v142, 16384, v140
v_min_u32 v140, CODE_END - L_SIDE_B - 4, v140
v_min_u32 v141, CODE_END - L_SIDE_B - 4, v141
v_min_u32 v142, CODE_END - L_SIDE_B - 4, v142
global_load_dword v241, v140, s[70:71]
global_load_dword v241, v141, s[70:71]
global_load_dword v241, v142, s[70:71]""")
a("L_C_SETUP:")
if COV == 2:
    a("s_cmp_eq_u32 s56, 0"); a("s_cbranch_scc1 L_C_S2")
    a("buffer_load_dword v241, v252, s[36:39], s57 offen")
    a("L_C_S2:")
stamp(a, 3)
VWA, VWB, VX0, VX1, VGX0, VGX1, VGW = 2, 3, 4, 5, 6, 7, 240
ACCQ, ACCK, ACCV, ACCH = 8, 48, 88, 128
RING, XB, GX = 140, 180, 204
MC, MP, MP0, AM, ONES = 220, 224, 228, 232, 236
def acc(seg, t, T): return (ACCQ, ACCK, ACCV)[seg] + t * 20 + T * 4
a("s_setprio 0")
a(f"""v_lshrrev_b32 v140, 4, v1
v_and_b32 v141, 15, v1
v_lshrrev_b32 v142, 5, v1
v_lshlrev_b32 v142, 4, v142
v_and_b32 v143, 1, v140
v_lshl_add_u32 v142, v143, 2, v142
v_lshrrev_b32 v143, 2, v141
v_add_u32 v142, v142, v143
v_mul_u32_u24 v145, 480, v142
v_and_b32 v143, 3, v141
v_lshl_add_u32 v{VWA}, v143, 3, v145
v_mul_u32_u24 v144, 40, v143
v_add3_u32 v{VWB}, v145, v144, 32
v_lshrrev_b32 v144, 1, v141
v_xor_b32 v144, v144, v140
v_lshlrev_b32 v144, 4, v144
v_lshl_add_u32 v{VX0}, v141, 7, v144
v_xor_b32 v{VX1}, 64, v{VX0}
s_and_b32 s44, s20, 7
s_lshl_b32 s44, s44, 11
v_add_u32 v{VGX0}, s44, v{VX0}
v_add_u32 v{VGX1}, s44, v{VX1}
v_lshlrev_b32 v{VGW}, 4, v140
v_add_u32 v{VGW}, {GW_LDS}, v{VGW}""")
a(f"s_mov_b32 s44, {NEG}")
a(f"v_mov_b32 v146, s44")
a("s_lshr_b32 s45, s21, 1"); a("s_or_b32 s45, s45, s22")
a("v_lshlrev_b32 v145, 2, v140"); a("v_sub_u32 v145, v141, v145")
for r in range(4): a(f"v_subrev_u32 v{150+r}, {r}, v145")
for r in range(4):
    a(f"v_cmp_gt_u32 vcc, 8, v{150+r}"); a(f"v_cmp_gt_i32 s[72:73], -8, v{150+r}")
    a(f"v_mov_b32 v{ONES+r}, 0x3f803f80")
    a(f"v_cndmask_b32 v{MC+r}, v146, 0, vcc"); a(f"v_cndmask_b32 v{MP+r}, v146, 0, s[72:73]")
a("s_cmp_eq_u32 s45, 0"); a("s_cselect_b64 vcc, -1, 0")
for r in range(4): a(f"v_cndmask_b32 v{MP0+r}, v{MP+r}, v146, vcc")
a("s_mov_b32 s44, 0xffff0000")
for h in range(2):
    a(f"v_ashrrev_i32 v154, 31, v{150+2*h}"); a(f"v_ashrrev_i32 v155, 31, v{151+2*h}")
    a(f"v_bfi_b32 v{AM+h}, s44, v155, v154"); a(f"v_not_b32 v{AM+2+h}, v{AM+h}")
a(f"""s_mov_b64 s[48:49], 0xffff
s_mov_b32 s50, 0xffff0000
s_mov_b32 s51, 0
s_mov_b32 s52, 0
s_mov_b32 s53, 0xffff
s_mov_b32 s54, 0
s_mov_b32 s55, 0xffff0000
s_mov_b32 s63, {STAGE}
s_mov_b32 s74, 128
s_mov_b32 s92, {CEXP}
s_mov_b32 s93, {CEXP}
s_lshl_b32 s94, s21, 3
s_lshl_b32 s95, s22, 1
s_add_u32 s94, s94, s95
s_mul_i32 s94, s94, {OTT}
s_mul_i32 s95, s20, {OBLK}
s_add_u32 s94, s94, s95
s_add_u32 s95, s94, {OTT}""")
for r in range(ACCQ, ACCH + 12, 2): a(f"v_mov_b64 v[{r}:{r+1}], 0")
a("s_waitcnt vmcnt(0) lgkmcnt(0)")
stamp(a, 4)
if COV in (1, 3):
    a("s_cmp_eq_u32 s56, 0"); a("s_cbranch_scc1 L_C_GO")
    if COV == 3: a("s_setprio 3")
    a("buffer_load_dword v241, v252, s[36:39], s57 offen")
a("s_setprio 0")
a("L_C_GO:")
a("""s_mov_b32 s44, 0
s_mov_b32 s45, 0""")
for w in range(1, 4):
    a(f"s_cmp_eq_u32 s22, {w}"); a(f"s_cbranch_scc1 L_W{w}")
KOP = {1: 140, 0: 156, -1: 204}
VOP = 172; QOP = {1: 68, 0: 108}
def kop(t, h): return KOP[t] + 4 * h
def vop(T, t): return VOP + 6 * T + 2 * (t + 1)
def qop(t, h): return QOP[t] + 4 * h
def cv2(d, s): return [f"v_cvt_pk_bf16_f32 v{d}, v{s}, v{s+1}", f"v_cvt_pk_bf16_f32 v{d+1}, v{s+2}, v{s+3}"]
HALO = [[(1,0),(1,1),(1,2)], [(1,3),(1,4),(2,0)], [(2,1),(2,2)], [(2,3),(2,4)]] if OPT.get('hal') == '0' else [[(1,0),(1,2),(2,0)], [(1,1),(1,3),(2,1)], [(1,4),(2,2),(2,3)], [(2,4)]]
D = 5
def istep(f): return f - 5 if f <= 14 else (f - 6 if f <= 21 else f - 7)
for w in range(4):
    gate = (w == 3)
    q = []
    def rdW(f):
        ks, seg, T = f // 15, (f % 15) // 5, f % 5
        d = RING + (f % 10) * 4
        if "nods" in XP: return [("s_nop 0", ("W", f))] * 2
        return [(f"ds_read_b64_tr_b16 v[{d+2*j}:{d+2*j+1}], v{VWA if T < 4 else VWB} offset:{seg*160 + ks*15360 + j*3840 + (40*T if T < 4 else 0)}", ("W", f)) for j in range(2)]
    def rdX(ks):
        o = []
        for n, tile in enumerate((1 + 2 * w, 2 + 2 * w, 0)):
            d = XB + (ks * 3 + n) * 4
            o.append((f"ds_read_b128 v[{d}:{d+3}], v{(VX0, VX1)[ks]} offset:{XOFF + tile*2048}", ("X", ks)))
        if gate:
            d = GX + ks * 8
            o.append((f"ds_read_b128 v[{d}:{d+3}], v{(VGX0, VGX1)[ks]} offset:{XOFF + 2048}", ("X", ks)))
            o.append((f"ds_read_b128 v[{d+4}:{d+7}], v{VGW} offset:{ks*64}", ("X", ks)))
        return o
    def wait(b, tags):
        last = max(i for i, t in enumerate(q) if t in tags)
        b(f"s_waitcnt lgkmcnt({min(len(q) - 1 - last, 15)})")
    def mm(f):
        ks, seg, T = f // 15, (f % 15) // 5, f % 5
        wf = vr(RING + (f % 10) * 4); o = []
        def one(dst, xf):
            o.append(f"{MF} {vr(dst)}, {wf}, {xf}, {vr(dst)}" if seg < 2 else f"{MF} {vr(dst)}, {xf}, {wf}, {vr(dst)}")
        one(acc(seg, 0, T), vr(XB + (ks * 3) * 4)); one(acc(seg, 1, T), vr(XB + (ks * 3 + 1) * 4))
        if (seg, T) in HALO[w]: one(ACCH + 4 * HALO[w].index((seg, T)), vr(XB + (ks * 3 + 2) * 4))
        if gate and seg == 0 and T == 2:
            d = GX + ks * 8
            o.append(f"{MF} {vr(ACCH+8)}, {vr(d+4)}, {vr(d)}, {vr(ACCH+8)}")
        return o
    def weave(b, ms, fs, lastless=True):
        n = len(ms)
        if OPT.get("wv", "1") == "1":
            ds = [t for t in fs if t[1] is not None]; ot = [t for t in fs if t[1] is None]
            per = [[] for _ in range(n)]
            cnt = [0] * n
            for i in range(len(ds)): cnt[i % n] += 1
            it = iter(ds)
            for j in range(n):
                for _ in range(cnt[j]): per[j].append(next(it))
            lo = 0
            for t in ot:
                load = [len(per[j]) + (1 if (lastless and j == n - 1) else 0) for j in range(n)]
                j = min(range(lo, n), key=lambda k: load[k]); lo = j
                per[j].append(t)
            for m_, p_ in zip(ms, per):
                b(m_)
                for t in p_:
                    b(t[0])
                    if t[1] is not None: q.append(t[1])
            return
        k = len(fs)
        cnt = [0] * n
        for i in range(k):
            load = [cnt[j] + (1 if (lastless and j == n - 1) else 0) for j in range(n)]
            cnt[load.index(min(load))] += 1
        it = iter(fs)
        for m_, c_ in zip(ms, cnt):
            b(m_)
            for _ in range(c_):
                t = next(it)
                b(t[0])
                if t[1] is not None: q.append(t[1])
    FA = {s: [] for s in range(25, 30)}
    x0 = rdX(0)
    FA[25] = x0[:2] + rdW(0); FA[26] = x0[2:4] + rdW(1); FA[27] = x0[4:] + rdW(2); FA[28] = rdW(3); FA[29] = rdW(4)
    FB = {s: [] for s in range(25)}
    for f in range(D, 30): FB[istep(f)] += rdW(f)
    x1 = rdX(1)
    for i, t in enumerate(x1): FB[2 + i].append(t)
    sal = ["s_add_u32 s45, s45, 1", "s_cmp_eq_u32 s45, 3", f"s_cselect_b32 s46, {(-2*STAGE) & 0xffffffff}, s63", "s_cselect_b32 s45, 0, s45"]
    for i, t in enumerate(sal): FB[10 + i].append((t, None))
    if gate:
        FB[20].append((f"v_add_u32 v{VGW}, s74, v{VGW}", None))
        FB[21].append((f"v_add_u32 v{VGX0}, s46, v{VGX0}", None)); FB[22].append((f"v_add_u32 v{VGX1}, s46, v{VGX1}", None))
    FB[20].append((f"v_add_u32 v{VX0}, s46, v{VX0}", None)) if not gate else FB[14].append((f"v_add_u32 v{VX0}, s46, v{VX0}", None))
    FB[23] += [(f"v_add_u32 v{VX1}, s46, v{VX1}", None), (f"v_add_u32 v{VWA}, s46, v{VWA}", None), (f"v_add_u32 v{VWB}, s46, v{VWB}", None)]
    FB[24] += [("s_add_u32 s44, s44, 1", None), ("s_cmp_eq_u32 s44, 10", None)]
    pre = Asm(); pa = Asm(); pb = Asm(); tail = Asm()
    stamp(pre, 5)
    pre("s_barrier")
    if STAMP: stamp2(pre, 6, 50)
    ev(pre, "b0")
    for s in range(25, 30):
        for t in FA[s]: pre(t[0])
    q.clear()
    if not LS: pa("s_waitcnt lgkmcnt(0)")
    pa("s_barrier")
    for s in range(25, 30): weave(pa, mm(s), FA[s], lastless=(s == 29))
    if LS: pre(f"s_branch L_LB{w}")
    else: pa(f"s_branch L_LB{w}")
    for s in range(25):
        tags = [("W", s)] + ([("X", 0)] if s == 0 else []) + ([("X", 1)] if s == 15 else [])
        wait(pb, tags); weave(pb, mm(s), FB[s])
    if LS: pb("s_waitcnt lgkmcnt(0)"); pb(f"s_cbranch_scc0 L_LA{w}")
    else: pb(f"s_cbranch_scc1 L_T{w}")
    tail(f"v_mov_b32 v{TOK}, {TOK_LDS}")
    tail("s_waitcnt lgkmcnt(0)")
    tail(f"ds_read_b32 v{TOK}, v{TOK}")
    tm = [m_ for s in range(25, 30) for m_ in mm(s)]
    fl = [f"v_lshlrev_b32 v{VWA}, 3, v1", f"v_add_u32 v{VX1}, {XCH}, v{VWA}"]
    if TOV:
        fl += [f"v_add_u32 v{VWB}, {XCH + 5120*w}, v{VWA}", f"v_add_u32 v{VX0}, {XCH + 5120*(w+1)}, v{VWA}"]
        for h in (0, 1, 2, 3, 4):
            d = 140 + 4 * h if h < 4 else 142; sr = acc(1, 1, h)
            fl += [f"v_cvt_pk_bf16_f32 v{d}, v{sr}, v{sr+1}", f"v_cvt_pk_bf16_f32 v{d+1}, v{sr+2}, v{sr+3}"]
            if w < 3: fl.append(f"ds_write_b64 v{VX0}, v[{d}:{d+1}] offset:{h*512}")
        for h in (1, 2, 3):
            d = 142 + 4 * h; sr = acc(1, 1, 4)
            fl += [f"v_cvt_pk_bf16_f32 v{d}, v{sr}, v{sr+1}", f"v_cvt_pk_bf16_f32 v{d+1}, v{sr+2}, v{sr+3}"]
    for n_, m_ in enumerate(tm):
        tail(m_)
        for x in fl[2*n_:2*n_+2]: tail(x)
    for x in fl[2*len(tm):]: tail(x)
    if gate:
        z = ACCH + 8
        tail(f"""v_cvt_pk_bf16_f32 v248, v{z}, v{z}
        v_and_b32 v248, 0xffff0000, v248
        v_mul_f32 v248, {LOG2E ^ 0x80000000}, v248
        v_exp_f32 v248, v248
        s_lshl_b32 s46, s21, 3
        v_add_f32 v248, 1.0, v248
        v_rcp_f32 v248, v248
        s_add_u32 s46, s46, s20
        v_cvt_pk_bf16_f32 v248, v248, v248
        v_and_b32 v248, 0xffff0000, v248
        s_lshl_b32 s46, s46, 7
        s_add_u32 s46, s46, {WS_G}
        s_waitcnt lgkmcnt(0)
        v_sub_u32 v249, v{TOK}, v248""")
    snd = []
    for n, (seg, T) in enumerate(HALO[w]):
        snd.append(cv2(242 + 2*n, ACCH + 4*n) + [f"ds_write_b64 v{VX1}, v[{242+2*n}:{243+2*n}] offset:{((seg-1)*5+T)*512}"])
    for T in range(5):
        snd.append(cv2(vop(T, 1), acc(2, 1, T)) + ([f"ds_write_b64 v{VX0}, v[{vop(T,1)}:{vop(T,1)+1}] offset:{(5+T)*512}"] if w < 3 else []))
    nh = len(HALO[w])
    if w >= 2: snd = snd[nh:] + snd[:nh]
    rest = ["s_setprio 2"] + cv2(250, acc(0, 1, 4))
    for h in range(4): rest += cv2(qop(1, h), acc(0, 1, h))
    for h in range(4):
        for j in range(2): rest.append(f"v_cndmask_b32 v{qop(1,h)+2+j}, 0, v{250+j}, s[{48+2*h}:{49+2*h}]")
    for k_, x in enumerate(snd):
        for l in x + rest[2*k_:2*k_+2]: tail(l)
    for l in rest[2*len(snd):]: tail(l)
    if gate:
        tail(f"""s_cmp_ge_u32 s20, 8
        s_cbranch_scc1 L_ATT
        s_mov_b64 exec, 0xffff
        buffer_store_dwordx2 v[248:249], v{VWA}, s[32:35], s46 offen sc1
        s_mov_b64 exec, -1""")
    else: tail("s_branch L_ATT")
    if w > 0: a(f"L_W{w}:")
    if LS:
        a.extend(pre); a(f".p2align {AL}"); a(f"L_LA{w}:"); a.extend(pa); a(f"L_LB{w}:"); a.extend(pb); a(f"L_T{w}:"); a.extend(tail)
    else:
        a.extend(pre); a(f".p2align {AL}"); a(f"L_LB{w}:"); a.extend(pb); a.extend(pa); a(f"L_T{w}:"); a.extend(tail)
    traces.append(pre.L + pb.L + pa.L + pb.L + fix(tail.L)[0])
a("L_ATT:")
if STAMP: stamp2(a, 30, 51)
ev(a, "gemm")
KOP = {1: 140, 0: 156, -1: 204}
VOP = 172; QOP = {1: 68, 0: 108}
def kop(t, h): return KOP[t] + 4 * h
def vop(T, t): return VOP + 6 * T + 2 * (t + 1)
def qop(t, h): return QOP[t] + 4 * h
g = Asm()
def cvt(d, s): g(f"v_cvt_pk_bf16_f32 v{d}, v{s}, v{s+1}"); g(f"v_cvt_pk_bf16_f32 v{d+1}, v{s+2}, v{s+3}")
def flush(name):
    global g
    o, t = schedule(g.L, st_lat=STL); print(f"; sched {name}: {len(o)} instrs, est {t} cycles", file=sys.stderr)
    for n, l in enumerate(o):
        if OPT.get("astamp") and n and n % 45 == 0: a(f"s_memtime s[{86 + 2*(n//45)}:{87 + 2*(n//45)}]") if n // 45 < 8 else None
        a(l)
    if OPT.get("astamp"):
        a("s_waitcnt lgkmcnt(0)")
        for k in range(1, 8): a(f"v_writelane_b32 v{SV}, s{86+2*k}, {9+k}")
    g = Asm()
stamp(a, 31)
a("s_waitcnt lgkmcnt(0)"); a("s_barrier")
stamp(a, 32)
for h in range(4):
    g(f"ds_read_b64 v[{kop(-1,h)}:{kop(-1,h)+1}], v{VWB} offset:{h*512}")
    g(f"ds_read_b64 v[{kop(-1,h)+2}:{kop(-1,h)+3}], v{VWB} offset:{4*512}")
for T in range(5): g(f"ds_read_b64 v[{vop(T,-1)}:{vop(T,-1)+1}], v{VWB} offset:{(5+T)*512}")
g("@wait")
g(f"v_lshlrev_b32 v{VX0}, 4, v1"); g(f"v_mul_u32_u24 v{VWA}, 12, v1")
for h in range(4): cvt(kop(0, h), acc(1, 0, h)); cvt(kop(0, h) + 2, acc(1, 0, 4))
for T in range(5): cvt(vop(T, 0), acc(2, 0, T))
cvt(246, acc(0, 0, 4))
for h in range(4): cvt(qop(0, h), acc(0, 0, h))
for h in range(4):
    for j in range(2): g(f"v_cndmask_b32 v{qop(0,h)+2+j}, 0, v{246+j}, s[{48+2*h}:{49+2*h}]")
SR = {1: [28, 32, 36, 40, 44, 48, 52, 56], 0: [8, 12, 16, 20, 24, 88, 92, 96]}
def dc(t, h): return SR[t][h]
def dp(t, h): return SR[t][4 + h]
MX = {1: 84, 0: 124}; TMP = {1: 128, 0: 132}
OREG = {1: [68, 72, 76, 80, 140, 144, 148, 152, 60, 64, 100, 104], 0: [108, 112, 116, 120, 156, 160, 164, 168, 204, 208, 212, 216]}
def oo(t, h, k): return OREG[t][k * 4 + h]
for t in (1, 0):
    for h in range(4):
        g(f"{MF} {vr(dc(t,h))}, {vr(kop(t,h))}, {vr(qop(t,h))}, {vr(MC)}")
        g(f"{MF} {vr(dp(t,h))}, {vr(kop(t-1,h))}, {vr(qop(t,h))}, {vr(MP if t else MP0)}")
for t in (1, 0):
    for h in range(4):
        for r in range(4): g(f"v_max_f32 v{dc(t,h)+r}, v{dc(t,h)+r}, v{dp(t,h)+r}")
        g(f"v_max3_f32 v{MX[t]+h}, v{dc(t,h)}, v{dc(t,h)+1}, v{dc(t,h)+2}")
        g(f"v_max_f32 v{MX[t]+h}, v{MX[t]+h}, v{dc(t,h)+3}")
    m = MX[t]
    g(f"""v_permlane32_swap_b32 v{m}, v{m+1}
    v_permlane32_swap_b32 v{m+2}, v{m+3}
    v_max_f32 v{m}, v{m}, v{m+1}
    v_max_f32 v{m+2}, v{m+2}, v{m+3}
    v_permlane16_swap_b32 v{m}, v{m+2}
    v_max_f32 v{m}, v{m}, v{m+2}
    v_mul_f32 v{m+2}, s92, v{m}
    v_mul_f32 v{m}, s92, v{m}
    v_permlane16_swap_b32 v{m}, v{m+2}
    v_mov_b32 v{m+1}, v{m}
    v_mov_b32 v{m+3}, v{m+2}
    v_permlane32_swap_b32 v{m}, v{m+1}
    v_permlane32_swap_b32 v{m+2}, v{m+3}""")
    for h in range(4):
        d = dc(t, h); p = dp(t, h)
        if PK:
            mp_ = m + (h & 2); e = h & 1
            for r in (0, 2): g(f"v_pk_fma_f32 v[{d+r}:{d+r+1}], v[{d+r}:{d+r+1}], s[92:93], v[{mp_}:{mp_+1}] op_sel:[0,0,{e}] op_sel_hi:[1,1,{e}] neg_lo:[0,0,1] neg_hi:[0,0,1]")
        else:
            for r in range(4): g(f"v_fma_f32 v{d+r}, v{d+r}, s92, -v{m+h}")
        for r in range(4): g(f"v_exp_f32 v{d+r}, v{d+r}")
        g(f"v_cvt_pk_bf16_f32 v{d}, v{d}, v{d+1}"); g(f"v_cvt_pk_bf16_f32 v{d+2}, v{d+2}, v{d+3}")
        g(f"v_and_b32 v{p}, v{AM}, v{d}"); g(f"v_and_b32 v{p+1}, v{AM+1}, v{d+2}")
        g(f"v_and_b32 v{p+2}, v{AM+2}, v{d}"); g(f"v_and_b32 v{p+3}, v{AM+3}, v{d+2}")
    for h in range(4):
        g(f"{MF} {vr(oo(t,h,2))}, {vr(ONES)}, {vr(dp(t,h))}, 0")
        g(f"{MF} {vr(oo(t,h,0))}, {vr(vop(h,t-1))}, {vr(dp(t,h))}, 0")
        g(f"{MF} {vr(oo(t,h,1))}, {vr(vop(4,t-1))}, {vr(dp(t,h))}, 0")
    for h in range(4):
        o0 = oo(t, h, 0); rc = oo(t, h, 2)
        g(f"v_rcp_f32 v{rc}, v{rc}")
        if PK:
            for r in (0, 2): g(f"v_pk_mul_f32 v[{o0+r}:{o0+r+1}], v[{o0+r}:{o0+r+1}], v[{rc}:{rc+1}] op_sel_hi:[1,0]")
        else:
            for r in range(4): g(f"v_mul_f32 v{o0+r}, v{o0+r}, v{rc}")
        for r in range(4): g(f"v_mul_f32_dpp v{TMP[t]+r}, v{oo(t,h,1)+r}, v{rc} quad_perm:[0,1,2,3] row_mask:{hex(1<<h)} bank_mask:0xf")
        cvt(dc(t, h >> 1) + 2 * (h & 1), o0)
    cvt(dc(t, 2), TMP[t])
    so = "s95" if t else "s94"
    c = dc(t, 2)
    for p in range(2):
        g(f"buffer_store_dwordx4 {vr(dc(t, p))}, v{VX0}, s[32:35], {so} offen offset:{1024*p} sc1")
    d = dc(t, 0); e = dc(t, 1)
    g(f"v_add3_u32 v{c+2}, v{d}, v{d+1}, v{d+2}"); g(f"v_add3_u32 v{c+3}, v{e}, v{e+1}, v{e+2}")
    g(f"v_add3_u32 v{c+2}, v{c+2}, v{d+3}, v{e+3}"); g(f"v_add3_u32 v{c+2}, v{c+2}, v{c+3}, v{TOK}")
    g(f"v_add3_u32 v{c+2}, v{c+2}, v{c}, v{c+1}")
    g(f"buffer_store_dwordx3 {vr(c,3)}, v{VWA}, s[32:35], {so} offen offset:2048 sc1")
WR = 48
def rd_reg(l): return f"ds_read_b128 {vr(WR+4*l)}, v{248 if l < 24 else 249} offset:{(l % 24)*1024}"
if HR:
    g(f"v_add_u32 v248, {CL['S1'][2]}, v{VX0}"); g(f"v_add_u32 v249, {CL['S2'][2]}, v{VX0}")
    early = [22, 9, 0, 1, 2, 5, 6, 7, 8, 3, 4, 13, 14, 23, 24, 25, 26, 20]
    for l in early + [l for l in (19, 10, 11, 12, 15, 16, 17, 18, 27, 28, 29, 21)]: g(rd_reg(l))
flush("attention")
if STAMP: stamp2(a, 35, 52)
ev(a, "att")
WR = 48
NRK = 6
OR_ = 168
AC = 224
CK = 244
BA = {"S1": 248, "S2": 249, "S0": 250, "TOP": 251, "R1": 248, "R2": 249, "TB": 252}
def lring(l):
    k = (l - 30) % 15
    return 8 + 4 * k
if HR: a("s_branch L_P2_PRE2")
a("L_P2_PRE:")
a("v_lshlrev_b32 v2, 4, v1")
a("s_lshr_b32 s64, s22, 2")
a(f"s_mul_i32 s60, s64, {CL['S1'][3]}"); a(f"s_add_u32 s60, s60, {CL['S1'][2]}"); a(f"v_add_u32 v{BA['S1']}, s60, v2")
a(f"s_mul_i32 s60, s64, {CL['S2'][3]}"); a(f"s_add_u32 s60, s60, {CL['S2'][2]}"); a(f"v_add_u32 v{BA['S2']}, s60, v2")
for l in range(30): a(rd_reg(l))
a("L_P2_PRE2:")
if HR:
    a("s_waitcnt lgkmcnt(0)"); stamp(a, 36); a("s_barrier"); stamp(a, 37)
    a("s_cmp_lt_u32 s22, 4"); a("s_cbranch_scc1 L_P2_C")
    dma_class("R1"); dma_class("R2")
    a("L_P2_C:")
    a("v_lshlrev_b32 v2, 4, v1"); a("s_lshr_b32 s64, s22, 2")
for nm in ("S0", "TOP", "TB"):
    a(f"s_mul_i32 s60, s64, {CL[nm][3]}"); a(f"s_add_u32 s60, s60, {CL[nm][2]}"); a(f"v_add_u32 v{BA[nm]}, s60, v2")
consumer_ids()
rotbit("s86")
a(f"""s_and_b32 s65, s22, 3
s_lshl_b32 s67, s85, 2
s_add_u32 s67, s67, s65
s_mul_i32 s80, s67, {OTT}
s_mul_i32 s60, s64, {8*OBLK}
s_add_u32 s80, s80, s60
v_mul_u32_u24 v3, 12, v1
v_add_u32 v3, 2048, v3
v_and_b32 v4, 15, v1
v_lshlrev_b32 v5, 3, v4
s_lshl_b32 s62, s67, 7
s_add_u32 s62, s62, {WS_G}
v_sub_u32 v254, 0, v{TOK}
s_add_u32 s82, s80, {4*OBLK}
s_mul_i32 s86, s86, {4*OBLK}
s_add_u32 s80, s80, s86
s_sub_u32 s82, s82, s86
s_add_u32 s81, s80, {2*OBLK}
s_add_u32 s83, s82, {2*OBLK}
s_mov_b32 s28, s18
s_mov_b32 s29, s19
s_mov_b32 s30, 2621440
s_mov_b32 s31, 0x20000
s_mov_b32 s61, 0""")
if HR:
    a("s_setprio 0"); a("s_waitcnt vmcnt(0)"); stamp(a, 38)
else:
    stamp(a, 36)
    a("s_waitcnt lgkmcnt(0)")
    a("s_barrier")
    stamp(a, 37)
    a("s_cmp_lt_u32 s22, 4"); a("s_cbranch_scc1 L_P2_C")
    dma_class("R1"); dma_class("R2")
    if OWAIT >= 2: a("s_waitcnt vmcnt(0)"); stamp(a, 38)
    a("s_branch L_P2_GO")
    a("L_P2_C:")
    if OWAIT: a("s_waitcnt vmcnt(0)"); stamp(a, 38)
    a("s_setprio 0")
a("L_P2_GO:")
if OWAIT >= 2: a("s_barrier")
if OWAIT >= 3: a(f"s_sleep {OWAIT}")
if STAMP: stamp2(a, 39, 53)
ev(a, "bp")
def og(m, e, k): return OR_ + (m & 1) * 24 + e * 12 + k * 4
def ld_pair(m):
    o = []
    for e in range(2):
        for k in range(2): o.append(f"buffer_load_dwordx4 {vr(og(m, e, k))}, v2, s[32:35], s{80+m} offen offset:{e*OBLK + k*1024} sc1")
        o.append(f"buffer_load_dwordx3 {vr(og(m, e, 2), 3)}, v3, s[32:35], s{80+m} offen offset:{e*OBLK} sc1")
    return o
def chk_pair(m):
    o = []
    for e in range(2):
        d = og(m, e, 0); f = og(m, e, 1); c = og(m, e, 2); x = CK + 2 * e
        o.append([f"v_add3_u32 v{x}, v{d}, v{d+1}, v{d+2}", f"v_add3_u32 v{x+1}, v{f}, v{f+1}, v{f+2}", f"v_add3_u32 v{x}, v{x}, v{d+3}, v{f+3}",
                  f"v_add3_u32 v{x}, v{x}, v{x+1}, v{TOK}", f"v_add3_u32 v{x}, v{x}, v{c}, v{c+1}", f"v_xor_b32 v{x}, v{x}, v{c+2}"])
    o = [o[j][i] for i in range(6) for j in range(2)]
    o += [f"v_or_b32 v{CK}, v{CK}, v{CK+2}", f"v_cmp_ne_u32 vcc, 0, v{CK}"]
    return o
def ofrag(i):
    m, ss = i // 5, i % 5
    return og(m, ss >> 1, ss & 1) if ss < 4 else og(m, 0, 2)
def ld_w(i):
    if i < NRK or i >= 20: return []
    o = []
    for T in range(5):
        l = i * 5 + T
        nm = [k for k, v in CL.items() if v[0] <= l < v[0] + v[1]][0]
        o.append(f"ds_read_b128 {vr(lring(l))}, v{BA[nm]} offset:{(l - CL[nm][0]) * 1024}")
    return o
GLD = "buffer_load_dwordx2 v[6:7], v5, s[32:35], s62 offen sc1"
if PD == 2:
    for x in ld_pair(0) + ld_pair(1): a(x)
    a("s_waitcnt vmcnt(6)")
else:
    for x in ld_pair(0): a(x)
    a("s_waitcnt vmcnt(0)")
    for x in ld_pair(1): a(x)
stamp(a, 33)
for x in chk_pair(0): a(x)
PRE = ["s_lshr_b32 s46, s67, 4", "s_lshl_b32 s46, s46, 8", "s_bfe_u32 s47, s67, 0x10003", "s_add_u32 s46, s46, s47", "s_and_b32 s47, s67, 7",
       "s_lshl_b32 s47, s47, 5", "s_add_u32 s46, s46, s47", "s_mul_i32 s46, s46, 1280", "s_mul_i32 s47, s84, 160", "s_add_u32 s46, s46, s47",
       "s_mul_i32 s60, s65, 5120", f"s_add_u32 s60, s60, {XCH}", f"v_add_u32 v{WR+76}, s60, v2", "v_mul_u32_u24 v4, 2560, v4", f"v_lshrrev_b32 v{WR+79}, 4, v1",
       f"v_lshl_add_u32 v{WR+77}, v{WR+79}, 4, v4", f"v_lshl_add_u32 v{WR+78}, v{WR+79}, 3, v4",
       "s_waitcnt vmcnt(0)", f"v_add3_u32 v{CK}, v6, v7, v254", f"v_cmp_ne_u32 vcc, 0, v{CK}"]
for m in range(4):
    a(f"s_cbranch_vccnz L_RETRY{m}")
    a(f"L_OK{m}:")
    if m == 0: stamp(a, 34)
    a(f"v_mov_b32 v{og(m,0,2)+2}, v{og(m,1,2)}"); a(f"v_mov_b32 v{og(m,0,2)+3}, v{og(m,1,2)+1}")
    lds_ = ld_pair(m + 2) if m < 2 else ([GLD] if m == 2 else [])
    chk = chk_pair(m + 1) if m < 3 else []
    for ss in range(5):
        i = m * 5 + ss
        nxt = ld_w(i + 2)
        w_ = []
        if i >= NRK: w_.append(f"lgkmcnt({5 if i < 19 else 0})")
        if PD == 2 and ss == 3 and m < 3: w_.insert(0, f"vmcnt({len(lds_)})")
        if w_: a("s_waitcnt " + " ".join(w_))
        for T in range(5):
            wf = vr(lring(i * 5 + T)) if i >= NRK else vr(WR + (i * 5 + T) * 4)
            a(f"{MF} {vr(AC+4*T)}, {wf}, {vr(ofrag(i))}, {'0' if i == 0 else vr(AC+4*T)}")
            if nxt: a(nxt[T])
            if PD == 2:
                if ss < 3 and T in (1, 3):
                    k = ss * 2 + (T >> 1)
                    if k < len(lds_): a(lds_[k])
                if ss >= 3 and chk:
                    k = (ss - 3) * 5 + T
                    for x in chk[k * 14 // 10:(k + 1) * 14 // 10]: a(x)
            if PD == 3 and ss >= LPOS and T in (1, 3):
                k = (ss - LPOS) * 2 + (T >> 1)
                if k < len(lds_): a(lds_[k])
            if m == 3:
                k = ss * 5 + T
                if k < len(PRE): a(PRE[k])
    if False:
        a(f"s_cmp_eq_u32 s64, {m - 1}"); a(f"s_cbranch_scc1 L_NE1{m}"); a("s_barrier"); a(f"L_NE1{m}:")
    if PD == 3 and m < 3:
        a(f"s_waitcnt vmcnt({len(lds_)})")
        for x in chk: a(x)
    if PD == 1 and m < 3:
        a("s_waitcnt vmcnt(0)")
        for x in lds_: a(x)
        for x in chk: a(x)
if STAMP: stamp2(a, 56, 54)
a("s_cbranch_vccnz L_RETRYG")
a("L_OKG:")
a("s_cmp_eq_u32 s64, 0")
a("s_cbranch_scc1 L_EPI_A")
def epi(send, keep, sc):
    RA, O4, O2 = WR + 76, WR + 77, WR + 78
    for T in send:
        for r in (0, 2): a(f"v_pk_mul_f32 v[{AC+4*T+r}:{AC+4*T+r+1}], v[{AC+4*T+r}:{AC+4*T+r+1}], v[{sc}:{sc+1}] op_sel_hi:[1,0]")
    a("s_barrier")
    for T in send: a(f"ds_write_b128 v{RA}, {vr(AC+4*T)} offset:{T*1024}")
    a("s_waitcnt lgkmcnt(0)"); a("s_barrier")
    for n, T in enumerate(keep): a(f"ds_read_b128 {vr(8+4*n)}, v{RA} offset:{T*1024}")
    for n, T in enumerate(keep):
        a(f"s_waitcnt lgkmcnt({len(keep)-1-n})")
        for r in (0, 2): a(f"v_pk_fma_f32 v[{8+4*n+r}:{8+4*n+r+1}], v[{AC+4*T+r}:{AC+4*T+r+1}], v[{sc}:{sc+1}], v[{8+4*n+r}:{8+4*n+r+1}] op_sel_hi:[1,0,1]")
        a(f"v_cvt_pk_bf16_f32 v{OR_+2*n}, v{8+4*n}, v{8+4*n+1}"); a(f"v_cvt_pk_bf16_f32 v{OR_+2*n+1}, v{8+4*n+2}, v{8+4*n+3}")
        if n == 1: a(f"buffer_store_dwordx4 {vr(OR_)}, v{O4}, s[28:31], s46 offen offset:{32*keep[0]} {SF}")
        if n == 2: a(f"buffer_store_dwordx2 {vr(OR_+4,2)}, v{O2}, s[28:31], s46 offen offset:128 {SF}")
if EP:
    RA, O4, O2 = WR + 76, WR + 77, WR + 78
    a("s_barrier")
    for T in range(5): a(f"ds_read_b128 {vr(72+4*T)}, v{RA} offset:{T*1024}")
    a("v_sub_f32 v6, 1.0, v6"); a("v_cvt_pk_bf16_f32 v6, v6, v6"); a("v_and_b32 v6, 0xffff0000, v6")
    for T in range(5):
        a(f"s_waitcnt lgkmcnt({4-T})")
        for r in (0, 2): a(f"v_pk_fma_f32 v[{72+4*T+r}:{72+4*T+r+1}], v[{AC+4*T+r}:{AC+4*T+r+1}], v[6:7], v[{72+4*T+r}:{72+4*T+r+1}] op_sel_hi:[1,0,1]")
        a(f"v_cvt_pk_bf16_f32 v{OR_+2*T}, v{72+4*T}, v{72+4*T+1}"); a(f"v_cvt_pk_bf16_f32 v{OR_+2*T+1}, v{72+4*T+2}, v{72+4*T+3}")
        if T == 1: a(f"buffer_store_dwordx4 {vr(OR_)}, v{O4}, s[28:31], s46 offen {SF}")
        if T == 3: a(f"buffer_store_dwordx4 {vr(OR_+4)}, v{O4}, s[28:31], s46 offen offset:64 {SF}")
    a(f"buffer_store_dwordx2 {vr(OR_+8,2)}, v{O2}, s[28:31], s46 offen offset:128 {SF}")
    a("s_branch L_FIN")
    a("L_EPI_A:")
    a("s_nop 1")
    for T in range(5):
        for r in (0, 2): a(f"v_pk_mul_f32 v[{AC+4*T+r}:{AC+4*T+r+1}], v[{AC+4*T+r}:{AC+4*T+r+1}], v[6:7] op_sel_hi:[1,0]")
        a(f"ds_write_b128 v{RA}, {vr(AC+4*T)} offset:{T*1024}")
    a("s_waitcnt lgkmcnt(0)"); a("s_barrier")
else:
    a("v_sub_f32 v6, 1.0, v6"); a("v_cvt_pk_bf16_f32 v6, v6, v6"); a("v_and_b32 v6, 0xffff0000, v6")
    epi([0, 1], [2, 3, 4], 6)
    a("s_branch L_FIN")
    a("L_EPI_A:")
    a("s_nop 4")
    epi([2, 3, 4], [0, 1], 6)
ev(a, "end")
if SPIN:
    a("""s_mov_b32 s60, 0
    L_SPIN:
    s_memrealtime s[98:99]
    s_waitcnt lgkmcnt(0)
    s_sub_u32 s98, s98, s96
    s_add_u32 s60, s60, 1
    s_cmp_ge_u32 s60, 20000
    s_cbranch_scc1 L_FIN
    s_cmp_lt_u32 s98, 4000
    s_cbranch_scc1 L_SPIN""")
a("L_FIN:")
if STAMP:
    stamp(a, 57)
    a("s_add_u32 s61, s61, 1"); a(f"v_writelane_b32 v{SV}, s61, 61")
    a("s_waitcnt vmcnt(0)")
    stamp(a, 62); stamp(a, 63, True)
    a(f"s_lshl_b32 s46, s2, 3"); a(f"s_add_u32 s46, s46, s22"); a("s_lshl_b32 s46, s46, 8"); a(f"s_add_u32 s46, s46, {WS_ST}")
    a(f"v_lshlrev_b32 v2, 2, v1")
    a(f"buffer_store_dword v{SV}, v2, s[32:35], s46 offen")
a("L_END:"); a("s_endpgm")
for m in range(4):
    a(f"L_RETRY{m}:")
    a("s_add_u32 s61, s61, 1"); a(f"s_cmp_ge_u32 s61, {SPIN_MAX}"); a(f"s_cbranch_scc1 L_OK{m}")
    a(f"s_sleep {RSLEEP}")
    for x in ld_pair(m): a(x)
    a("s_waitcnt vmcnt(0)")
    for x in chk_pair(m): a(x)
    a(f"s_cbranch_vccnz L_RETRY{m}"); a(f"s_branch L_OK{m}")
a("L_RETRYG:")
a("s_add_u32 s61, s61, 1"); a(f"s_cmp_ge_u32 s61, {SPIN_MAX}"); a("s_cbranch_scc1 L_OKG")
a(f"s_sleep {RSLEEP}")
a("buffer_load_dwordx2 v[6:7], v5, s[32:35], s62 offen sc1"); a("s_waitcnt vmcnt(0)")
a(f"v_add3_u32 v{CK}, v6, v7, v254"); a(f"v_cmp_ne_u32 vcc, 0, v{CK}")
a("s_cbranch_vccnz L_RETRYG"); a("s_branch L_OKG")

l1, _ = fix(a.L)
for tr in traces:
    _, iss_ = fix(tr, verify=True)
    for x in iss_: print("; TRACE HAZARD", x, file=sys.stderr)
print(f"""; gated mix of two dilated sliding-window attention blocks (generated by gen/gen16.py)
; @launch grid=(256,1,1) block=(512,1,1) lds={LDS_TOTAL}
.amdgcn_target "amdgcn-amd-amdhsa--gfx950"
.text
.globl {KN}
.p2align 8
.type {KN},@function""")
print("\n".join(l1))
print("CODE_END:")
print('.section .rodata,"a"')
print(kd(KN, 256, 102, 256))
```

```python
import sys, struct, math
sys.path.insert(0, "gen")
from asmlib import *
NAME = "gated_mix__sliding_local_dilated__sliding_local_dilated__prompt"
KN = NAME + "_kernel"
OPT = dict(a.split("=") for a in sys.argv[1:])
STAMP = int(OPT.get("stamp", 0)); CM = int(OPT.get("cm", 1)); PK = int(OPT.get("pk", 1))
NS1 = int(OPT.get("ns1", 12)); RSLEEP = int(OPT.get("rsleep", 2)); OWAIT = int(OPT.get("owait", 2)); SB = int(OPT.get("sb", 5)); SA = int(OPT.get("sa", 3)); XP = OPT.get("xp", ""); R2 = int(OPT.get("r2", 1)); WNT = "nt " if int(OPT.get("wnt", 0)) else ""; XNT = "nt " if int(OPT.get("xnt", 0)) else ""; SNT = "nt " if int(OPT.get("snt", 0)) else ""; STG = int(OPT.get("stg", 2)); PP = OPT.get("pp", "1101010100").replace("-", ""); ROT = int(OPT.get("rot", 0 if PP else 1)); EP = 1; OF = OPT.get("of", "sc1").replace("-", ""); ET = int(OPT.get("et", 18)); UD = int(OPT.get("ud", 2)); U0 = int(OPT.get("u0", 2)); HA = int(OPT.get("ha", 1)); LS = int(OPT.get("ls", 1)); AL = int(OPT.get("al", 6)); HR = int(OPT.get("hr", 0)); LP = int(OPT.get("lp", 0)); KP = int(OPT.get("kp", 5)); STL = int(OPT.get("stl", 60)); TOV = 1; LPOS = int(OPT.get("lpos", 2)); COV = int(OPT.get("cov", 0)); SF = OPT.get("sf", "nt").replace("+", " "); PD = int(OPT.get("pd", 1))
def f2u(x): return struct.unpack("<I", struct.pack("<f", x))[0]
STAGE = 49152; XOFF = 30720
GW_LDS = 147456; TOK_LDS = GW_LDS + 1536; SCR_LDS = 149504; LDS_TOTAL = 163840
XCH = 126976
RED = 98304
OBLK = 2816; OTT = 16 * OBLK
WS_WOT = 0x700000; WS_G = 0x900000; WS_FW = 0x910000; WS_ST = 0x1000000
NEG = f2u(-1e30)
CEXP = f2u(20 ** -0.5 * math.log2(math.e))
LOG2E = f2u(math.log2(math.e))
MF = "v_mfma_f32_16x16x32_bf16"
SPIN_MAX = 1 << 17
SV = 255
def stamp(a, idx, real=False):
    if not STAMP: return
    a(f"{'s_memrealtime' if real else 's_memtime'} s[68:69]"); a("s_waitcnt lgkmcnt(0)"); a(f"v_writelane_b32 v{SV}, s68, {idx}")
SPIN = OPT.get("spin", "")
def ev(a, name):
    if SPIN == name: a("s_memrealtime s[96:97]"); a("s_waitcnt lgkmcnt(0)")
def stamp2(a, idx, ridx):
    stamp(a, idx); stamp(a, ridx, True)
def stamp0(a):
    if STAMP: a(f"v_mov_b32 v{SV}, 0"); a(f"v_writelane_b32 v{SV}, s66, 0"); a(f"v_writelane_b32 v{SV}, s68, 1")

a = Asm()
traces = []
def ids():
    a("""v_and_b32 v1, 63, v0
    s_and_b32 s20, s2, 3
    s_lshl_b32 s20, s20, 2
    s_bfe_u32 s46, s2, 0x20003
    s_add_u32 s20, s20, s46
    s_lshr_b32 s47, s2, 5
    s_and_b32 s21, s2, 4
    s_lshl_b32 s21, s21, 1
    s_add_u32 s21, s21, s47""")
def srd_ws_dbg():
    WSO = int(OPT.get("wso", 0)) << 20
    a(f"""s_add_u32 s32, s78, {WSO}
    s_addc_u32 s33, s79, 0
    s_mov_b32 s34, {0x10000000 - WSO}
    s_mov_b32 s35, 0x20000
    s_mov_b32 s40, s76
    s_mov_b32 s41, s77
    s_mov_b32 s42, 256
    s_mov_b32 s43, 0x20000""")
def consumer_ids():
    if CM:
        a("s_bfe_u32 s84, s2, 0x30003"); a("s_and_b32 s85, s2, 7"); a("s_lshl_b32 s85, s85, 2"); a("s_lshr_b32 s86, s2, 6"); a("s_add_u32 s85, s85, s86")
    else:
        a("s_and_b32 s84, s20, 7"); a("s_lshl_b32 s85, s21, 1"); a("s_lshr_b32 s86, s20, 3"); a("s_add_u32 s85, s85, s86")
def pf_setup(isw_scc_cmp, vdst, vt, soff, sstep, lblx, lble):
    a(f"""s_lshr_b32 s44, s2, 3
    {isw_scc_cmp}
    s_cbranch_scc0 {lblx}
    v_mul_u32_u24 v{vt}, 13108, v1
    v_lshrrev_b32 v{vt}, 16, v{vt}
    v_mul_u32_u24 v{vt}, 640, v{vt}
    v_lshl_add_u32 v{vdst}, v1, 7, v{vt}
    s_mul_i32 {soff}, s44, 15360
    s_and_b32 s45, s2, 1
    s_mul_i32 s45, s45, 640
    s_add_u32 {soff}, {soff}, s45
    s_mov_b32 {sstep}, 491520
    s_cmp_ge_u32 s20, 8
    s_cselect_b32 s88, s12, s6
    s_cselect_b32 s89, s13, s7
    s_mov_b32 s90, 2457600
    s_branch {lble}
    {lblx}:
    v_lshrrev_b32 v{vt}, 1, v1
    v_mul_u32_u24 v{vt}, 1280, v{vt}
    v_and_b32 v{vdst}, 1, v1
    v_lshl_add_u32 v{vdst}, v{vdst}, 7, v{vt}
    s_and_b32 s45, s2, 4
    s_lshl_b32 s45, s45, 3
    s_add_u32 s44, s44, s45
    s_mul_i32 {soff}, s44, 40960
    s_mov_b32 {sstep}, 256
    s_mov_b32 s88, s4
    s_mov_b32 s89, s5
    s_mov_b32 s90, 2621440
    {lble}:
    s_mov_b32 s91, 0x20000""")
def rotbit(dst):
    a(f"s_xor_b32 {dst}, s84, s85"); a(f"s_and_b32 {dst}, {dst}, {R2}")
a(f"{KN}:")
if STAMP: a("s_memrealtime s[66:67]"); a("s_memtime s[68:69]")
a("""v_readfirstlane_b32 s22, v0
s_load_dwordx8 s[4:11], s[0:1], 0
s_load_dwordx8 s[12:19], s[0:1], 32
s_lshr_b32 s3, s2, 8
s_cbranch_scc1 L_END
s_lshr_b32 s22, s22, 6
s_cmp_eq_u32 s22, 3
s_cbranch_scc1 L_HOP
s_cmp_lt_u32 s22, 4
s_cbranch_scc1 L_COMPUTE""")
a("""v_and_b32 v1, 63, v0
v_mul_u32_u24 v3, 13108, v1
v_lshrrev_b32 v3, 16, v3
v_mul_u32_u24 v3, 640, v3
v_lshlrev_b32 v4, 7, v1
v_add_u32 v40, v4, v3
v_lshrrev_b32 v3, 1, v1
v_lshl_add_u32 v42, v3, 10, v4
s_lshr_b32 s44, s2, 3
s_mul_i32 s92, s44, 24
s_and_b32 s45, s2, 1
s_add_u32 s92, s92, s45
s_mulk_i32 s92, 640
s_and_b32 s45, s2, 4
s_lshl_b32 s45, s45, 3
s_add_u32 s44, s44, s45
s_mul_i32 s93, s44, 40960
s_mov_b32 s26, 2457600
s_mov_b32 s30, 2621440
s_mov_b32 s31, 0x20000
s_mov_b32 s27, s31
s_bitcmp1_b32 s2, 1
s_waitcnt lgkmcnt(0)
s_cselect_b64 s[24:25], s[12:13], s[6:7]
s_mov_b64 s[28:29], s[4:5]
""")
if PP[0] == "1":
    a("""s_cmp_lg_u32 s22, 4
s_cbranch_scc1 L_E1
buffer_load_dword v41, v42, s[28:31], s93 offen
L_E1:
s_cmp_lg_u32 s22, 5
s_cbranch_scc1 L_LD0
buffer_load_dword v41, v40, s[24:27], s92 offen
s_branch L_LD0
""")
else:
    a("""s_bfe_u32 s45, s22, 0x10001
    s_bitcmp1_b32 s22, 0
    s_cbranch_scc1 L_E1
    s_lshl_b32 s45, s45, 8
    s_add_u32 s45, s45, s93
    buffer_load_dword v41, v42, s[28:31], s45 offen
    s_branch L_LD0
    L_E1:
    s_mul_i32 s45, s45, 491520
    s_add_u32 s45, s45, s92
    buffer_load_dword v41, v40, s[24:27], s45 offen
    s_branch L_LD0""")
a(""".p2align 8
L_HOP:
s_branch L_COMPUTE
L_LD0:
s_load_dwordx4 s[76:79], s[0:1], 64
s_setprio 2""")
stamp0(a); stamp(a, 3)
ids()
a("""v_lshrrev_b32 v3, 3, v1
v_mul_u32_u24 v3, 2560, v3
v_lshrrev_b32 v4, 4, v0
v_xor_b32 v4, v4, v1
v_xor_b32 v4, 4, v4
v_and_b32 v4, 7, v4
v_lshl_add_u32 v11, v4, 4, v3
s_and_b32 s64, s22, 3
s_lshr_b32 s44, s21, 1
s_or_b32 s45, s44, s64
s_cselect_b32 s52, -20480, 0
s_lshl_b32 s44, s44, 8
s_and_b32 s45, s21, 1
s_add_u32 s44, s44, s45
s_lshl_b32 s45, s64, 4
s_add_u32 s44, s44, s45
s_mul_i32 s47, s44, 1280
s_lshl_b32 s53, s64, 10
v_mul_u32_u24 v3, 6554, v1
v_lshrrev_b32 v3, 16, v3
v_mul_u32_u24 v4, 1120, v3
v_lshl_add_u32 v10, v1, 4, v4
s_and_b32 s46, s20, 7
s_mul_i32 s46, s46, 160
s_mul_i32 s44, s64, 61440
s_add_u32 s46, s46, s44
s_mul_i32 s48, s64, 7680
s_mov_b32 s49, 0
s_mov_b32 s50, 0
s_mov_b32 s87, 99""")
stamp(a, 2)
a("L_LD_ISSUE:")
a(f"s_add_u32 m0, s53, {XOFF + 1024}"); a("s_add_u32 s51, s47, s52"); a(f"buffer_load_dwordx4 v11, s[28:31], s51 offen {XNT}lds")
for qq in range(1, 4):
    a(f"s_add_u32 m0, s53, {XOFF + 1024 + 4096*qq}"); a(f"s_add_u32 s51, s47, {(64*qq-16)*1280}"); a(f"buffer_load_dwordx4 v11, s[28:31], s51 offen {XNT}lds")
a("s_mov_b32 exec_hi, 0x0fffffff")
for qq in range(8):
    if qq == KP:
        a("s_cmp_lg_u32 s87, 0"); a("s_cbranch_scc1 L_HK"); a(f"s_waitcnt vmcnt({4 + KP})"); a("L_HKB:")
        if STAMP == 1: a("s_memtime s[68:69]"); a("s_waitcnt lgkmcnt(0)"); a(f"s_add_u32 m0, s50, 19"); a(f"v_writelane_b32 v{SV}, s68, m0")
        a("s_barrier")
        if STAMP == 1: a("s_memrealtime s[68:69]"); a("s_waitcnt lgkmcnt(0)"); a(f"s_add_u32 m0, s50, 39"); a(f"v_writelane_b32 v{SV}, s68, m0")
        a("L_NB0:"); a("s_mov_b32 s87, 0")
    r = 2 * qq; k = (r & 0x33) | ((r & 4) << 1) | ((r & 8) >> 1)
    a(f"s_add_u32 m0, s48, {960*qq}"); a(f"s_add_u32 s51, s46, {k*3840}"); a(f"buffer_load_dwordx4 v10, s[24:27], s51 offen {WNT}lds")
a("s_mov_b32 exec_hi, -1")
a("s_cmp_lg_u32 s64, 0"); a("s_cbranch_scc1 L_LD_W")
a(f"s_add_u32 m0, s53, {XOFF + 1024 + 4096*4}"); a(f"s_add_u32 s51, s47, {(64*4-16)*1280}"); a(f"buffer_load_dwordx4 v11, s[28:31], s51 offen {XNT}lds")
a("L_LD_W:")
a(f"""s_mov_b32 s63, {STAGE}
s_add_u32 s46, s46, 245760
s_add_u32 s47, s47, 128
s_add_u32 s49, s49, 1
s_cmp_eq_u32 s49, 3
s_cselect_b32 s51, {(-2*STAGE) & 0xffffffff}, s63
s_cselect_b32 s49, 0, s49
s_add_u32 s48, s48, s51
s_add_u32 s53, s53, s51
s_add_u32 s50, s50, 1""")
def lstamp(base):
    if STAMP == 1: a("s_memtime s[68:69]"); a("s_waitcnt lgkmcnt(0)"); a(f"s_add_u32 m0, s50, {base}"); a(f"v_writelane_b32 v{SV}, s68, m0")
lstamp(9)
a(f"""s_cmp_lt_u32 s50, 2
s_cbranch_scc1 L_LD_PRE0
L_DISP:
s_cmp_eq_u32 s50, s96
s_cbranch_scc1 L_SIDE_A
L_SA_RET:
s_cmp_eq_u32 s50, s97
s_cbranch_scc1 L_TOK_A
s_cmp_eq_u32 s50, s98
s_cbranch_scc1 L_TOK_B
s_cmp_eq_u32 s50, {10 if LP else 9}
s_cbranch_scc1 L_WOF_A
s_cmp_eq_u32 s50, 10
s_cbranch_scc1 L_WOF_B""")
a("L_LD_WAIT:")
a("L_LD_BAR:")
a("L_LD_PRE:")
a("s_bitcmp1_b32 s94, s50"); a("s_cbranch_scc0 L_LD_TOP")
a(f"s_add_u32 s87, s87, {STG}")
a("s_cmp_eq_u32 s64, 0"); a("s_cbranch_scc1 L_PFX")
for n in range(STG):
    a("buffer_load_dword v41, v40, s[24:27], s92 offen"); a(f"s_add_u32 s92, s92, {15360 if n < STG-1 else STG*491520 - (STG-1)*15360}")
a("s_branch L_LD_TOP")
a("L_PFX:")
for n in range(STG):
    a("buffer_load_dword v41, v42, s[28:31], s93 offen"); a(f"s_add_u32 s93, s93, {40960 if n < STG-1 else (STG*256 - (STG-1)*40960) & 0xffffffff}")
a("s_branch L_LD_TOP")
a("L_LD_TOP:")
if HA:
    a("s_bitcmp1_b32 s99, s50"); a("s_cbranch_scc0 L_LD_ISSUE")
    for e_ in (1, 2, 3, 6, 8):
        a(f"s_cmp_eq_u32 s87, {e_}"); a(f"s_cbranch_scc1 L_HA{e_}")
    a("s_waitcnt vmcnt(0)")
    a("L_HAB:")
    if STAMP == 1: a("s_memtime s[68:69]"); a("s_waitcnt lgkmcnt(0)"); a(f"s_add_u32 m0, s50, 19"); a(f"v_writelane_b32 v{SV}, s68, m0")
    a("s_barrier")
    if STAMP == 1: a("s_memrealtime s[68:69]"); a("s_waitcnt lgkmcnt(0)"); a(f"s_add_u32 m0, s50, 39"); a(f"v_writelane_b32 v{SV}, s68, m0")
    a("s_mov_b32 s87, 99")
a("s_branch L_LD_ISSUE")
a("L_HK:")
a("s_cmp_eq_u32 s87, 99"); a("s_cbranch_scc1 L_NB0")
for e_ in (2, 3, 4, 5, 6, 8): a(f"s_cmp_eq_u32 s87, {e_}"); a(f"s_cbranch_scc1 L_HK{e_}")
for e_ in (1, 2, 3, 4, 5, 6, 8): a(f"L_HK{e_}:"); a(f"s_waitcnt vmcnt({4 + KP + e_})"); a("s_branch L_HKB")
if HA:
    for e_ in (1, 2, 3, 6, 8): a(f"L_HA{e_}:"); a(f"s_waitcnt vmcnt({e_})"); a("s_branch L_HAB")
a("L_LD_PRE0:")
a("v_lshlrev_b32 v12, 4, v1"); a("v_mov_b32 v13, 0")
pos = [c for c in range(1, 10) if PP[c] != "0"]
if STG > 1: a(f"s_bfe_u32 s45, s2, 0x{(STG.bit_length()-1):x}0003")
else: a("s_mov_b32 s45, 0")
a(f"s_mul_i32 s44, s45, {491520 - 15360}"); a("s_add_u32 s92, s92, s44"); a(f"s_add_u32 s92, s92, {491520*int(PP[0])}")
a(f"s_mul_i32 s44, s45, {40960 - 256}"); a("s_sub_u32 s93, s93, s44"); a(f"s_add_u32 s93, s93, {256*int(PP[0])}")
a("s_mov_b32 s94, 0")
for g_ in range(STG):
    mask = sum(1 << c for k, c in enumerate(pos) if k % STG == g_)
    a(f"s_cmp_eq_u32 s45, {g_}"); a(f"s_cselect_b32 s94, {mask}, s94")
a("s_mov_b32 s99, s94")
a("s_cmp_ge_u32 s64, 2"); a("s_cselect_b32 s94, 0, s94")
a("s_waitcnt lgkmcnt(0)")
SA0 = int(OPT.get("sa0", SA)); SB0 = int(OPT.get("sb0", SB))
a("s_bitcmp1_b32 s2, 3"); a(f"s_cselect_b32 s96, {SA}, {SA0}"); a(f"s_cselect_b32 s97, {SB}, {SB0}")
a("s_add_u32 s98, s97, 2")
if HA == 2: a("s_bitset1_b32 s99, s96"); a("s_bitset1_b32 s99, s97")
a("s_branch L_DISP")
a("L_SIDE_A:")
if int(OPT.get("u2", 1)):
    a("""s_mov_b32 s56, 0
    s_cmp_lt_u32 s64, 2
    s_cbranch_scc1 L_SA_RET
    s_mov_b32 s57, s2
    s_cmp_eq_u32 s64, 2
    s_cbranch_scc1 L_SA_GO
    s_bitcmp0_b32 s2, 3
    s_cbranch_scc1 L_SA_RET
    s_lshr_b32 s44, s2, 4
    s_sub_u32 s44, s44, 4
    s_cmp_ge_u32 s44, 8
    s_cbranch_scc1 L_SA_RET
    s_lshl_b32 s44, s44, 3
    s_and_b32 s57, s2, 7
    s_add_u32 s57, s57, s44
    s_add_u32 s57, s57, 256
    L_SA_GO:""")
else:
    a("""s_mov_b32 s56, 0
    s_sub_u32 s44, s64, 2
    s_lshl_b32 s57, s44, 8
    s_add_u32 s57, s57, s2
    s_cmp_ge_u32 s57, 320
    s_cbranch_scc1 L_SA_RET""")
a("""s_mov_b32 s56, 1
s_mov_b32 s39, 0x20000
s_and_b32 s45, s57, 7
s_lshr_b32 s44, s57, 3
s_mul_i32 s58, s44, 52
s_lshr_b32 s58, s58, 8
s_mul_i32 s59, s58, 5
s_sub_u32 s59, s44, s59
s_cmp_ge_u32 s58, 4
s_cselect_b32 s36, s14, s8
s_cselect_b32 s37, s15, s9
s_mov_b32 s38, 819200
s_and_b32 s58, s58, 3
s_mul_i32 s58, s58, 160
s_mul_i32 s60, s59, 40
s_cmp_eq_u32 s59, 4
s_cselect_b32 s60, 16, s60
s_cselect_b32 s54, 80, 20
s_cselect_b32 s55, 20, 4
s_add_u32 s58, s58, s60
s_mul_i32 s58, s58, 1280
s_mul_i32 s60, s45, 160
s_add_u32 s58, s58, s60
s_mul_i32 s54, s54, 1280
s_mul_i32 s55, s55, 1280""")
a(f"s_mul_i32 s62, s64, 5120"); a(f"s_add_u32 s62, s62, {SCR_LDS - 10240}")
a("s_mov_b32 exec_hi, 0xff")
for g in range(4):
    for jh in range(2):
        a(f"s_add_u32 m0, s62, {(16*(g>>1) + 8*jh + 4*(g&1))*160}")
        if jh == 0: a("s_add_u32 s51, s58, s54"); a(f"buffer_load_dwordx4 v10, s[36:39], s58 offen {SNT}lds")
        else: a("s_add_u32 s58, s58, s55"); a(f"buffer_load_dwordx4 v10, s[36:39], s51 offen {SNT}lds")
a("s_mov_b32 exec_hi, -1")
a(f"""s_mul_i32 s61, s45, 204800
s_mul_i32 s58, s44, 5120
s_add_u32 s61, s61, s58
s_add_u32 s61, s61, {WS_WOT}
""")
if True: a("s_mov_b32 s87, 8"); a("s_branch L_LD_BAR")
a("L_SIDE_B:")
assert SB >= SA + 2
a("""v_lshrrev_b32 v16, 5, v1
v_lshlrev_b32 v16, 4, v16
v_bfe_u32 v17, v1, 4, 1
v_lshl_add_u32 v16, v17, 2, v16
v_bfe_u32 v17, v1, 2, 2
v_add_u32 v16, v16, v17
v_mul_u32_u24 v16, 160, v16
v_add_u32 v16, s62, v16
v_and_b32 v17, 3, v1
v_lshl_add_u32 v18, v17, 4, v16
v_lshl_add_u32 v19, v17, 3, v16""")
for T in range(5):
    for j in range(2):
        if T < 4: a(f"ds_read_b64_tr_b16 v[{20+4*T+2*j}:{21+4*T+2*j}], v18 offset:{j*1280 + 64*(T>>1) + 8*(T&1)}")
        else: a(f"ds_read_b64_tr_b16 v[{20+4*T+2*j}:{21+4*T+2*j}], v19 offset:{j*1280 + 128}")
a("s_waitcnt lgkmcnt(0)")
for T in range(4): a(f"buffer_store_dwordx4 v[{20+4*T}:{23+4*T}], v12, s[32:35], s61 offen offset:{1024*T} sc1")
a("s_add_u32 s61, s61, 4096")
a(f"buffer_store_dwordx4 v[36:39], v12, s[32:35], s61 offen sc1")
a("s_mov_b32 s87, 6"); a("s_branch L_LD_BAR")
a("L_TOK_A:")
srd_ws_dbg()
a("""v_lshlrev_b32 v12, 4, v1
v_mov_b32 v13, 0
s_mov_b64 exec, 1
buffer_load_dword v15, v13, s[40:43], 0 offen sc1
s_mov_b64 exec, -1
s_cmp_lg_u32 s56, 0
s_cbranch_scc1 L_SIDE_B
s_mov_b32 s87, 1
s_branch L_LD_BAR""")
a("L_TOK_B:")
srd_ws_dbg()
a(f"""s_mov_b32 s60, 0
v_mov_b32 v13, 0
L_TOK_CHK:
v_readlane_b32 s75, v15, 0
s_add_u32 s60, s60, 1
s_cmp_lg_u32 s75, 0
s_cbranch_scc1 L_TOK_OK
s_cmp_ge_u32 s60, {SPIN_MAX}
s_cbranch_scc1 L_TOK_OK
s_sleep 4
s_mov_b64 exec, 1
buffer_load_dword v15, v13, s[40:43], 0 offen sc1
s_mov_b64 exec, -1
s_waitcnt vmcnt(0)
s_branch L_TOK_CHK
L_TOK_OK:
v_mov_b32 v14, {TOK_LDS}
v_mov_b32 v15, s75
ds_write_b32 v14, v15
s_cmp_eq_u32 s56, 0
s_waitcnt lgkmcnt(0)
s_cbranch_scc1 L_LD_WAIT
s_and_b32 s45, s57, 7
s_lshl_b32 s45, s45, 13
s_lshr_b32 s44, s57, 3
s_lshl_b32 s44, s44, 7
s_add_u32 s45, s45, s44
s_add_u32 s45, s45, {WS_FW}
v_lshlrev_b32 v13, 2, v1
s_mov_b32 exec_hi, 0
buffer_store_dword v15, v13, s[32:35], s45 offen sc1
s_mov_b32 exec_hi, -1
s_mov_b32 s87, 1
s_branch L_LD_BAR""")
a("L_WOF_A:")
srd_ws_dbg()
consumer_ids()
a(f"""s_lshl_b32 s59, s84, 13
s_add_u32 s59, s59, {WS_FW}
s_lshr_b32 s44, s64, 1
s_mul_i32 s44, s44, 2560
s_add_u32 s59, s59, s44
v_lshlrev_b32 v13, 7, v1
v_lshlrev_b32 v12, 4, v1
s_mov_b64 exec, 0xfffff
buffer_load_dword v14, v13, s[32:35], s59 offen sc1
s_mov_b64 exec, -1""")
if LP: a("s_waitcnt vmcnt(1)"); a("s_barrier")
else: a("s_mov_b32 s87, 1"); a("s_branch L_LD_BAR")
a("L_WOF_B:")
srd_ws_dbg()
a("""v_lshlrev_b32 v12, 4, v1
v_lshlrev_b32 v13, 7, v1
s_mov_b64 exec, 0xfffff
s_mov_b32 s60, 0""")
a(f"s_waitcnt vmcnt({0 if LP else 12})")
a(f"""L_WO_POLL:
v_cmp_ne_u32 vcc, s75, v14
s_cbranch_vccz L_WO_OK
s_add_u32 s60, s60, 1
s_cmp_ge_u32 s60, {SPIN_MAX}
s_cbranch_scc1 L_WO_OK
s_sleep 4
buffer_load_dword v14, v13, s[32:35], s59 offen sc1
s_waitcnt vmcnt(0)
s_branch L_WO_POLL
L_WO_OK:
s_mov_b64 exec, -1
s_setprio 0""")
stamp(a, 29)
CL = {"S1": (0, 24, 49152, 24576), "S2": (24, 14, 98304, 14336), "S0": (38, 24, 0, 24576), "TOP": (62, 6, 151552, 6144), "TB": (68, 2, 147456, 2048),
      "R1": (70, 24, 49152, 24576), "R2": (94, 6, 98304, 14336)}
a(f"""s_mul_i32 s58, s84, 204800
s_add_u32 s58, s58, {WS_WOT}
s_lshr_b32 s44, s64, 1
s_and_b32 s45, s64, 1
s_lshl_b32 s45, s45, 10
s_mul_i32 s59, s44, 102400
s_add_u32 s59, s59, s58
s_add_u32 s59, s59, s45""")
rotbit("s54"); a("s_mul_i32 s54, s54, 51200"); a("s_sub_u32 s55, s59, s54"); a("s_add_u32 s59, s59, s54")
def dma_class(nm, lo=0, hi=None):
    l0, n, base, delta = CL[nm]
    a(f"s_mul_i32 s53, s44, {delta}"); a("s_add_u32 s53, s53, s45")
    for j in range(lo, n if hi is None else hi, 2):
        a(f"s_add_u32 m0, s53, {base + j*1024}"); a(f"s_add_u32 s51, {'s59' if l0 + j < 50 else 's55'}, {(l0 + j)*1024}")
        a(f"buffer_load_dwordx4 v12, s[32:35], s51 offen sc1 lds")
dma_class("S1", 0, NS1)
if not LP: a(f"s_waitcnt vmcnt({NS1//2})"); a("s_barrier")
dma_class("S1", NS1); dma_class("S2"); dma_class("TOP")
a("s_waitcnt vmcnt(7)")
stamp(a, 30)
a("s_barrier")
dma_class("S0"); dma_class("TB")
TOK = 253
a(f"v_mov_b32 v{TOK}, s75")
a("s_branch L_P2_PRE")
a("L_COMPUTE:")
a("s_load_dwordx4 s[76:79], s[0:1], 64")
ev(a, "start")
a(f"s_setprio {OPT.get('cprio', 3)}")
ids()
a("s_waitcnt lgkmcnt(0)")
stamp0(a); stamp(a, 2)
srd_ws_dbg()
a("""s_mov_b32 s39, 0x20000
s_mov_b32 s56, 0
s_cmp_eq_u32 s22, 3
s_cbranch_scc1 L_C_GW
s_cmp_eq_u32 s22, 2
s_cbranch_scc1 L_C_TOK""")
if int(OPT.get("wpe", 1)):
    a("""s_cmp_eq_u32 s22, 1
    s_cselect_b32 s36, s14, s8
    s_cselect_b32 s37, s15, s9
    s_mov_b32 s38, 819200
    v_lshlrev_b32 v140, 7, v1
    v_lshrrev_b32 v141, 1, v1
    v_lshl_add_u32 v140, v141, 10, v140
    s_lshr_b32 s44, s2, 3
    s_mul_i32 s44, s44, 25600
    s_and_b32 s45, s2, 7
    s_mul_i32 s45, s45, 160
    s_add_u32 s44, s44, s45
    s_mov_b32 exec_hi, 0xff
    buffer_load_dword v241, v140, s[36:39], s44 offen
    s_mov_b32 exec_hi, -1""")
a("s_branch L_C_SETUP")
a("L_C_GW:")
a(f"""s_mov_b32 s36, s16
s_mov_b32 s37, s17
s_mov_b32 s38, 1280
v_lshlrev_b32 v140, 4, v1
s_mov_b32 m0, {GW_LDS}
v_mov_b64 v[144:145], 0
buffer_load_dwordx4 v140, s[36:39], 0 offen lds
buffer_load_dwordx4 v140, s[36:39], 0 offen offset:1024 lds
v_mov_b64 v[146:147], 0
ds_write_b128 v140, v[144:147] offset:{XOFF}
v_add_u32 v140, {STAGE}, v140
ds_write_b128 v140, v[144:147] offset:{XOFF}
v_add_u32 v140, {STAGE}, v140
ds_write_b128 v140, v[144:147] offset:{XOFF}
s_branch L_C_SETUP""")
a("L_C_TOK:")
a("""s_cmp_lg_u32 s2, 0
s_cbranch_scc1 L_C_CPF
s_memrealtime s[44:45]
v_mov_b32 v147, 0
s_waitcnt lgkmcnt(0)
s_or_b32 s44, s44, 1
v_mov_b32 v146, s44
s_mov_b64 exec, 1
buffer_atomic_cmpswap v[146:147], v147, s[40:43], 0 offen sc1
s_mov_b64 exec, -1
L_C_CPF:
s_getpc_b64 s[70:71]
L_PC:
s_sub_u32 s70, s70, L_PC - L_SIDE_B
s_subb_u32 s71, s71, 0
""")
if int(OPT.get("ccp", 1)):
    a(f"""s_lshr_b32 s44, s2, 3
    s_mul_i32 s44, s44, 6
    v_min_u32 v140, 5, v1
    v_add_lshl_u32 v140, v140, s44, 7
    v_min_u32 v140, CODE_END - L_SIDE_B - 4, v140
    global_load_dword v241, v140, s[70:71]""")
else:
    a("""v_lshlrev_b32 v140, 7, v1
v_add_u32 v141, 8192, v140
v_add_u32 v142, 16384, v140
v_min_u32 v140, CODE_END - L_SIDE_B - 4, v140
v_min_u32 v141, CODE_END - L_SIDE_B - 4, v141
v_min_u32 v142, CODE_END - L_SIDE_B - 4, v142
global_load_dword v241, v140, s[70:71]
global_load_dword v241, v141, s[70:71]
global_load_dword v241, v142, s[70:71]""")
a("L_C_SETUP:")
if COV == 2:
    a("s_cmp_eq_u32 s56, 0"); a("s_cbranch_scc1 L_C_S2")
    a("buffer_load_dword v241, v252, s[36:39], s57 offen")
    a("L_C_S2:")
stamp(a, 3)
VWA, VWB, VX0, VX1, VGX0, VGX1, VGW = 2, 3, 4, 5, 6, 7, 240
ACCQ, ACCK, ACCV, ACCH = 8, 48, 88, 128
RING, XB, GX = 140, 180, 204
MC, MP, MP0, AM, ONES = 220, 224, 228, 232, 236
def acc(seg, t, T): return (ACCQ, ACCK, ACCV)[seg] + t * 20 + T * 4
a("s_setprio 0")
a(f"""v_lshrrev_b32 v140, 4, v1
v_and_b32 v141, 15, v1
v_lshrrev_b32 v142, 5, v1
v_lshlrev_b32 v142, 4, v142
v_and_b32 v143, 1, v140
v_lshl_add_u32 v142, v143, 2, v142
v_lshrrev_b32 v143, 2, v141
v_add_u32 v142, v142, v143
v_mul_u32_u24 v145, 480, v142
v_and_b32 v143, 3, v141
v_lshl_add_u32 v{VWA}, v143, 3, v145
v_mul_u32_u24 v144, 40, v143
v_add3_u32 v{VWB}, v145, v144, 32
v_lshrrev_b32 v144, 1, v141
v_xor_b32 v144, v144, v140
v_lshlrev_b32 v144, 4, v144
v_lshl_add_u32 v{VX0}, v141, 7, v144
v_xor_b32 v{VX1}, 64, v{VX0}
s_and_b32 s44, s20, 7
s_lshl_b32 s44, s44, 11
v_add_u32 v{VGX0}, s44, v{VX0}
v_add_u32 v{VGX1}, s44, v{VX1}
v_lshlrev_b32 v{VGW}, 4, v140
v_add_u32 v{VGW}, {GW_LDS}, v{VGW}""")
a(f"s_mov_b32 s44, {NEG}")
a(f"v_mov_b32 v146, s44")
a("s_lshr_b32 s45, s21, 1"); a("s_or_b32 s45, s45, s22")
a("v_lshlrev_b32 v145, 2, v140"); a("v_sub_u32 v145, v141, v145")
for r in range(4): a(f"v_subrev_u32 v{150+r}, {r}, v145")
for r in range(4):
    a(f"v_cmp_gt_u32 vcc, 8, v{150+r}"); a(f"v_cmp_gt_i32 s[72:73], -8, v{150+r}")
    a(f"v_mov_b32 v{ONES+r}, 0x3f803f80")
    a(f"v_cndmask_b32 v{MC+r}, v146, 0, vcc"); a(f"v_cndmask_b32 v{MP+r}, v146, 0, s[72:73]")
a("s_cmp_eq_u32 s45, 0"); a("s_cselect_b64 vcc, -1, 0")
for r in range(4): a(f"v_cndmask_b32 v{MP0+r}, v{MP+r}, v146, vcc")
a("s_mov_b32 s44, 0xffff0000")
for h in range(2):
    a(f"v_ashrrev_i32 v154, 31, v{150+2*h}"); a(f"v_ashrrev_i32 v155, 31, v{151+2*h}")
    a(f"v_bfi_b32 v{AM+h}, s44, v155, v154"); a(f"v_not_b32 v{AM+2+h}, v{AM+h}")
a(f"""s_mov_b64 s[48:49], 0xffff
s_mov_b32 s50, 0xffff0000
s_mov_b32 s51, 0
s_mov_b32 s52, 0
s_mov_b32 s53, 0xffff
s_mov_b32 s54, 0
s_mov_b32 s55, 0xffff0000
s_mov_b32 s63, {STAGE}
s_mov_b32 s74, 128
s_mov_b32 s92, {CEXP}
s_mov_b32 s93, {CEXP}
s_lshl_b32 s94, s21, 3
s_lshl_b32 s95, s22, 1
s_add_u32 s94, s94, s95
s_mul_i32 s94, s94, {OTT}
s_mul_i32 s95, s20, {OBLK}
s_add_u32 s94, s94, s95
s_add_u32 s95, s94, {OTT}""")
for r in range(ACCQ, ACCH + 12, 2): a(f"v_mov_b64 v[{r}:{r+1}], 0")
a("s_waitcnt vmcnt(0) lgkmcnt(0)")
stamp(a, 4)
if COV in (1, 3):
    a("s_cmp_eq_u32 s56, 0"); a("s_cbranch_scc1 L_C_GO")
    if COV == 3: a("s_setprio 3")
    a("buffer_load_dword v241, v252, s[36:39], s57 offen")
a("s_setprio 0")
a("L_C_GO:")
a("""s_mov_b32 s44, 0
s_mov_b32 s45, 0""")
for w in range(1, 4):
    a(f"s_cmp_eq_u32 s22, {w}"); a(f"s_cbranch_scc1 L_W{w}")
KOP = {1: 140, 0: 156, -1: 204}
VOP = 172; QOP = {1: 68, 0: 108}
def kop(t, h): return KOP[t] + 4 * h
def vop(T, t): return VOP + 6 * T + 2 * (t + 1)
def qop(t, h): return QOP[t] + 4 * h
def cv2(d, s): return [f"v_cvt_pk_bf16_f32 v{d}, v{s}, v{s+1}", f"v_cvt_pk_bf16_f32 v{d+1}, v{s+2}, v{s+3}"]
HALO = [[(1,0),(1,1),(1,2)], [(1,3),(1,4),(2,0)], [(2,1),(2,2)], [(2,3),(2,4)]] if OPT.get('hal') == '0' else [[(1,0),(1,2),(2,0)], [(1,1),(1,3),(2,1)], [(1,4),(2,2),(2,3)], [(2,4)]]
D = 5
def istep(f): return f - 5 if f <= 14 else (f - 6 if f <= 21 else f - 7)
for w in range(4):
    gate = (w == 3)
    q = []
    def rdW(f):
        ks, seg, T = f // 15, (f % 15) // 5, f % 5
        d = RING + (f % 10) * 4
        if "nods" in XP: return [("s_nop 0", ("W", f))] * 2
        return [(f"ds_read_b64_tr_b16 v[{d+2*j}:{d+2*j+1}], v{VWA if T < 4 else VWB} offset:{seg*160 + ks*15360 + j*3840 + (40*T if T < 4 else 0)}", ("W", f)) for j in range(2)]
    def rdX(ks):
        o = []
        for n, tile in enumerate((1 + 2 * w, 2 + 2 * w, 0)):
            d = XB + (ks * 3 + n) * 4
            o.append((f"ds_read_b128 v[{d}:{d+3}], v{(VX0, VX1)[ks]} offset:{XOFF + tile*2048}", ("X", ks)))
        if gate:
            d = GX + ks * 8
            o.append((f"ds_read_b128 v[{d}:{d+3}], v{(VGX0, VGX1)[ks]} offset:{XOFF + 2048}", ("X", ks)))
            o.append((f"ds_read_b128 v[{d+4}:{d+7}], v{VGW} offset:{ks*64}", ("X", ks)))
        return o
    def wait(b, tags):
        last = max(i for i, t in enumerate(q) if t in tags)
        b(f"s_waitcnt lgkmcnt({min(len(q) - 1 - last, 15)})")
    def mm(f):
        ks, seg, T = f // 15, (f % 15) // 5, f % 5
        wf = vr(RING + (f % 10) * 4); o = []
        def one(dst, xf):
            o.append(f"{MF} {vr(dst)}, {wf}, {xf}, {vr(dst)}" if seg < 2 else f"{MF} {vr(dst)}, {xf}, {wf}, {vr(dst)}")
        one(acc(seg, 0, T), vr(XB + (ks * 3) * 4)); one(acc(seg, 1, T), vr(XB + (ks * 3 + 1) * 4))
        if (seg, T) in HALO[w]: one(ACCH + 4 * HALO[w].index((seg, T)), vr(XB + (ks * 3 + 2) * 4))
        if gate and seg == 0 and T == 2:
            d = GX + ks * 8
            o.append(f"{MF} {vr(ACCH+8)}, {vr(d+4)}, {vr(d)}, {vr(ACCH+8)}")
        return o
    def weave(b, ms, fs, lastless=True):
        n = len(ms)
        if OPT.get("wv", "1") == "1":
            ds = [t for t in fs if t[1] is not None]; ot = [t for t in fs if t[1] is None]
            per = [[] for _ in range(n)]
            cnt = [0] * n
            for i in range(len(ds)): cnt[i % n] += 1
            it = iter(ds)
            for j in range(n):
                for _ in range(cnt[j]): per[j].append(next(it))
            lo = 0
            for t in ot:
                load = [len(per[j]) + (1 if (lastless and j == n - 1) else 0) for j in range(n)]
                j = min(range(lo, n), key=lambda k: load[k]); lo = j
                per[j].append(t)
            for m_, p_ in zip(ms, per):
                b(m_)
                for t in p_:
                    b(t[0])
                    if t[1] is not None: q.append(t[1])
            return
        k = len(fs)
        cnt = [0] * n
        for i in range(k):
            load = [cnt[j] + (1 if (lastless and j == n - 1) else 0) for j in range(n)]
            cnt[load.index(min(load))] += 1
        it = iter(fs)
        for m_, c_ in zip(ms, cnt):
            b(m_)
            for _ in range(c_):
                t = next(it)
                b(t[0])
                if t[1] is not None: q.append(t[1])
    FA = {s: [] for s in range(25, 30)}
    x0 = rdX(0)
    FA[25] = x0[:2] + rdW(0); FA[26] = x0[2:4] + rdW(1); FA[27] = x0[4:] + rdW(2); FA[28] = rdW(3); FA[29] = rdW(4)
    FB = {s: [] for s in range(25)}
    for f in range(D, 30): FB[istep(f)] += rdW(f)
    x1 = rdX(1)
    for i, t in enumerate(x1): FB[2 + i].append(t)
    sal = ["s_add_u32 s45, s45, 1", "s_cmp_eq_u32 s45, 3", f"s_cselect_b32 s46, {(-2*STAGE) & 0xffffffff}, s63", "s_cselect_b32 s45, 0, s45"]
    for i, t in enumerate(sal): FB[10 + i].append((t, None))
    if gate:
        FB[20].append((f"v_add_u32 v{VGW}, s74, v{VGW}", None))
        FB[21].append((f"v_add_u32 v{VGX0}, s46, v{VGX0}", None)); FB[22].append((f"v_add_u32 v{VGX1}, s46, v{VGX1}", None))
    FB[20].append((f"v_add_u32 v{VX0}, s46, v{VX0}", None)) if not gate else FB[14].append((f"v_add_u32 v{VX0}, s46, v{VX0}", None))
    FB[23] += [(f"v_add_u32 v{VX1}, s46, v{VX1}", None), (f"v_add_u32 v{VWA}, s46, v{VWA}", None), (f"v_add_u32 v{VWB}, s46, v{VWB}", None)]
    FB[24] += [("s_add_u32 s44, s44, 1", None), ("s_cmp_eq_u32 s44, 10", None)]
    pre = Asm(); pa = Asm(); pb = Asm(); tail = Asm()
    stamp(pre, 5)
    pre("s_barrier")
    if STAMP: stamp2(pre, 6, 50)
    ev(pre, "b0")
    for s in range(25, 30):
        for t in FA[s]: pre(t[0])
    q.clear()
    if not LS: pa("s_waitcnt lgkmcnt(0)")
    pa("s_barrier")
    for s in range(25, 30): weave(pa, mm(s), FA[s], lastless=(s == 29))
    if LS: pre(f"s_branch L_LB{w}")
    else: pa(f"s_branch L_LB{w}")
    for s in range(25):
        tags = [("W", s)] + ([("X", 0)] if s == 0 else []) + ([("X", 1)] if s == 15 else [])
        wait(pb, tags); weave(pb, mm(s), FB[s])
    if LS: pb("s_waitcnt lgkmcnt(0)"); pb(f"s_cbranch_scc0 L_LA{w}")
    else: pb(f"s_cbranch_scc1 L_T{w}")
    tail(f"v_mov_b32 v{TOK}, {TOK_LDS}")
    tail("s_waitcnt lgkmcnt(0)")
    tail(f"ds_read_b32 v{TOK}, v{TOK}")
    tm = [m_ for s in range(25, 30) for m_ in mm(s)]
    fl = [f"v_lshlrev_b32 v{VWA}, 3, v1", f"v_add_u32 v{VX1}, {XCH}, v{VWA}"]
    if TOV:
        fl += [f"v_add_u32 v{VWB}, {XCH + 5120*w}, v{VWA}", f"v_add_u32 v{VX0}, {XCH + 5120*(w+1)}, v{VWA}"]
        for h in (0, 1, 2, 3, 4):
            d = 140 + 4 * h if h < 4 else 142; sr = acc(1, 1, h)
            fl += [f"v_cvt_pk_bf16_f32 v{d}, v{sr}, v{sr+1}", f"v_cvt_pk_bf16_f32 v{d+1}, v{sr+2}, v{sr+3}"]
            if w < 3: fl.append(f"ds_write_b64 v{VX0}, v[{d}:{d+1}] offset:{h*512}")
        for h in (1, 2, 3):
            d = 142 + 4 * h; sr = acc(1, 1, 4)
            fl += [f"v_cvt_pk_bf16_f32 v{d}, v{sr}, v{sr+1}", f"v_cvt_pk_bf16_f32 v{d+1}, v{sr+2}, v{sr+3}"]
    for n_, m_ in enumerate(tm):
        tail(m_)
        for x in fl[2*n_:2*n_+2]: tail(x)
    for x in fl[2*len(tm):]: tail(x)
    if gate:
        z = ACCH + 8
        tail(f"""v_cvt_pk_bf16_f32 v248, v{z}, v{z}
        v_and_b32 v248, 0xffff0000, v248
        v_mul_f32 v248, {LOG2E ^ 0x80000000}, v248
        v_exp_f32 v248, v248
        s_lshl_b32 s46, s21, 3
        v_add_f32 v248, 1.0, v248
        v_rcp_f32 v248, v248
        s_add_u32 s46, s46, s20
        v_cvt_pk_bf16_f32 v248, v248, v248
        v_and_b32 v248, 0xffff0000, v248
        s_lshl_b32 s46, s46, 7
        s_add_u32 s46, s46, {WS_G}
        s_waitcnt lgkmcnt(0)
        v_sub_u32 v249, v{TOK}, v248""")
    snd = []
    for n, (seg, T) in enumerate(HALO[w]):
        snd.append(cv2(242 + 2*n, ACCH + 4*n) + [f"ds_write_b64 v{VX1}, v[{242+2*n}:{243+2*n}] offset:{((seg-1)*5+T)*512}"])
    for T in range(5):
        snd.append(cv2(vop(T, 1), acc(2, 1, T)) + ([f"ds_write_b64 v{VX0}, v[{vop(T,1)}:{vop(T,1)+1}] offset:{(5+T)*512}"] if w < 3 else []))
    nh = len(HALO[w])
    if w >= 2: snd = snd[nh:] + snd[:nh]
    rest = ["s_setprio 2"] + cv2(250, acc(0, 1, 4))
    for h in range(4): rest += cv2(qop(1, h), acc(0, 1, h))
    for h in range(4):
        for j in range(2): rest.append(f"v_cndmask_b32 v{qop(1,h)+2+j}, 0, v{250+j}, s[{48+2*h}:{49+2*h}]")
    for k_, x in enumerate(snd):
        for l in x + rest[2*k_:2*k_+2]: tail(l)
    for l in rest[2*len(snd):]: tail(l)
    if gate:
        tail(f"""s_cmp_ge_u32 s20, 8
        s_cbranch_scc1 L_ATT
        s_mov_b64 exec, 0xffff
        buffer_store_dwordx2 v[248:249], v{VWA}, s[32:35], s46 offen sc1
        s_mov_b64 exec, -1""")
    else: tail("s_branch L_ATT")
    if w > 0: a(f"L_W{w}:")
    if LS:
        a.extend(pre); a(f".p2align {AL}"); a(f"L_LA{w}:"); a.extend(pa); a(f"L_LB{w}:"); a.extend(pb); a(f"L_T{w}:"); a.extend(tail)
    else:
        a.extend(pre); a(f".p2align {AL}"); a(f"L_LB{w}:"); a.extend(pb); a.extend(pa); a(f"L_T{w}:"); a.extend(tail)
    traces.append(pre.L + pb.L + pa.L + pb.L + fix(tail.L)[0])
a("L_ATT:")
if STAMP: stamp2(a, 30, 51)
ev(a, "gemm")
KOP = {1: 140, 0: 156, -1: 204}
VOP = 172; QOP = {1: 68, 0: 108}
def kop(t, h): return KOP[t] + 4 * h
def vop(T, t): return VOP + 6 * T + 2 * (t + 1)
def qop(t, h): return QOP[t] + 4 * h
g = Asm()
def cvt(d, s): g(f"v_cvt_pk_bf16_f32 v{d}, v{s}, v{s+1}"); g(f"v_cvt_pk_bf16_f32 v{d+1}, v{s+2}, v{s+3}")
def flush(name):
    global g
    o, t = schedule(g.L, st_lat=STL); print(f"; sched {name}: {len(o)} instrs, est {t} cycles", file=sys.stderr)
    for n, l in enumerate(o):
        if OPT.get("astamp") and n and n % 45 == 0: a(f"s_memtime s[{86 + 2*(n//45)}:{87 + 2*(n//45)}]") if n // 45 < 8 else None
        a(l)
    if OPT.get("astamp"):
        a("s_waitcnt lgkmcnt(0)")
        for k in range(1, 8): a(f"v_writelane_b32 v{SV}, s{86+2*k}, {9+k}")
    g = Asm()
stamp(a, 31)
a("s_waitcnt lgkmcnt(0)"); a("s_barrier")
stamp(a, 32)
for h in range(4):
    g(f"ds_read_b64 v[{kop(-1,h)}:{kop(-1,h)+1}], v{VWB} offset:{h*512}")
    g(f"ds_read_b64 v[{kop(-1,h)+2}:{kop(-1,h)+3}], v{VWB} offset:{4*512}")
for T in range(5): g(f"ds_read_b64 v[{vop(T,-1)}:{vop(T,-1)+1}], v{VWB} offset:{(5+T)*512}")
g("@wait")
g(f"v_lshlrev_b32 v{VX0}, 4, v1"); g(f"v_mul_u32_u24 v{VWA}, 12, v1")
for h in range(4): cvt(kop(0, h), acc(1, 0, h)); cvt(kop(0, h) + 2, acc(1, 0, 4))
for T in range(5): cvt(vop(T, 0), acc(2, 0, T))
cvt(246, acc(0, 0, 4))
for h in range(4): cvt(qop(0, h), acc(0, 0, h))
for h in range(4):
    for j in range(2): g(f"v_cndmask_b32 v{qop(0,h)+2+j}, 0, v{246+j}, s[{48+2*h}:{49+2*h}]")
SR = {1: [28, 32, 36, 40, 44, 48, 52, 56], 0: [8, 12, 16, 20, 24, 88, 92, 96]}
def dc(t, h): return SR[t][h]
def dp(t, h): return SR[t][4 + h]
MX = {1: 84, 0: 124}; TMP = {1: 128, 0: 132}
OREG = {1: [68, 72, 76, 80, 140, 144, 148, 152, 60, 64, 100, 104], 0: [108, 112, 116, 120, 156, 160, 164, 168, 204, 208, 212, 216]}
def oo(t, h, k): return OREG[t][k * 4 + h]
for t in (1, 0):
    for h in range(4):
        g(f"{MF} {vr(dc(t,h))}, {vr(kop(t,h))}, {vr(qop(t,h))}, {vr(MC)}")
        g(f"{MF} {vr(dp(t,h))}, {vr(kop(t-1,h))}, {vr(qop(t,h))}, {vr(MP if t else MP0)}")
for t in (1, 0):
    for h in range(4):
        for r in range(4): g(f"v_max_f32 v{dc(t,h)+r}, v{dc(t,h)+r}, v{dp(t,h)+r}")
        g(f"v_max3_f32 v{MX[t]+h}, v{dc(t,h)}, v{dc(t,h)+1}, v{dc(t,h)+2}")
        g(f"v_max_f32 v{MX[t]+h}, v{MX[t]+h}, v{dc(t,h)+3}")
    m = MX[t]
    g(f"""v_permlane32_swap_b32 v{m}, v{m+1}
    v_permlane32_swap_b32 v{m+2}, v{m+3}
    v_max_f32 v{m}, v{m}, v{m+1}
    v_max_f32 v{m+2}, v{m+2}, v{m+3}
    v_permlane16_swap_b32 v{m}, v{m+2}
    v_max_f32 v{m}, v{m}, v{m+2}
    v_mul_f32 v{m+2}, s92, v{m}
    v_mul_f32 v{m}, s92, v{m}
    v_permlane16_swap_b32 v{m}, v{m+2}
    v_mov_b32 v{m+1}, v{m}
    v_mov_b32 v{m+3}, v{m+2}
    v_permlane32_swap_b32 v{m}, v{m+1}
    v_permlane32_swap_b32 v{m+2}, v{m+3}""")
    for h in range(4):
        d = dc(t, h); p = dp(t, h)
        if PK:
            mp_ = m + (h & 2); e = h & 1
            for r in (0, 2): g(f"v_pk_fma_f32 v[{d+r}:{d+r+1}], v[{d+r}:{d+r+1}], s[92:93], v[{mp_}:{mp_+1}] op_sel:[0,0,{e}] op_sel_hi:[1,1,{e}] neg_lo:[0,0,1] neg_hi:[0,0,1]")
        else:
            for r in range(4): g(f"v_fma_f32 v{d+r}, v{d+r}, s92, -v{m+h}")
        for r in range(4): g(f"v_exp_f32 v{d+r}, v{d+r}")
        g(f"v_cvt_pk_bf16_f32 v{d}, v{d}, v{d+1}"); g(f"v_cvt_pk_bf16_f32 v{d+2}, v{d+2}, v{d+3}")
        g(f"v_and_b32 v{p}, v{AM}, v{d}"); g(f"v_and_b32 v{p+1}, v{AM+1}, v{d+2}")
        g(f"v_and_b32 v{p+2}, v{AM+2}, v{d}"); g(f"v_and_b32 v{p+3}, v{AM+3}, v{d+2}")
    for h in range(4):
        g(f"{MF} {vr(oo(t,h,2))}, {vr(ONES)}, {vr(dp(t,h))}, 0")
        g(f"{MF} {vr(oo(t,h,0))}, {vr(vop(h,t-1))}, {vr(dp(t,h))}, 0")
        g(f"{MF} {vr(oo(t,h,1))}, {vr(vop(4,t-1))}, {vr(dp(t,h))}, 0")
    for h in range(4):
        o0 = oo(t, h, 0); rc = oo(t, h, 2)
        g(f"v_rcp_f32 v{rc}, v{rc}")
        if PK:
            for r in (0, 2): g(f"v_pk_mul_f32 v[{o0+r}:{o0+r+1}], v[{o0+r}:{o0+r+1}], v[{rc}:{rc+1}] op_sel_hi:[1,0]")
        else:
            for r in range(4): g(f"v_mul_f32 v{o0+r}, v{o0+r}, v{rc}")
        for r in range(4): g(f"v_mul_f32_dpp v{TMP[t]+r}, v{oo(t,h,1)+r}, v{rc} quad_perm:[0,1,2,3] row_mask:{hex(1<<h)} bank_mask:0xf")
        cvt(dc(t, h >> 1) + 2 * (h & 1), o0)
    cvt(dc(t, 2), TMP[t])
    so = "s95" if t else "s94"
    c = dc(t, 2)
    for p in range(2):
        g(f"buffer_store_dwordx4 {vr(dc(t, p))}, v{VX0}, s[32:35], {so} offen offset:{1024*p} sc1")
    d = dc(t, 0); e = dc(t, 1)
    g(f"v_add3_u32 v{c+2}, v{d}, v{d+1}, v{d+2}"); g(f"v_add3_u32 v{c+3}, v{e}, v{e+1}, v{e+2}")
    g(f"v_add3_u32 v{c+2}, v{c+2}, v{d+3}, v{e+3}"); g(f"v_add3_u32 v{c+2}, v{c+2}, v{c+3}, v{TOK}")
    g(f"v_add3_u32 v{c+2}, v{c+2}, v{c}, v{c+1}")
    g(f"buffer_store_dwordx3 {vr(c,3)}, v{VWA}, s[32:35], {so} offen offset:2048 sc1")
WR = 48
def rd_reg(l): return f"ds_read_b128 {vr(WR+4*l)}, v{248 if l < 24 else 249} offset:{(l % 24)*1024}"
if HR:
    g(f"v_add_u32 v248, {CL['S1'][2]}, v{VX0}"); g(f"v_add_u32 v249, {CL['S2'][2]}, v{VX0}")
    early = [22, 9, 0, 1, 2, 5, 6, 7, 8, 3, 4, 13, 14, 23, 24, 25, 26, 20]
    for l in early + [l for l in (19, 10, 11, 12, 15, 16, 17, 18, 27, 28, 29, 21)]: g(rd_reg(l))
flush("attention")
if STAMP: stamp2(a, 35, 52)
ev(a, "att")
WR = 48
NRK = 6
OR_ = 168
AC = 224
CK = 244
BA = {"S1": 248, "S2": 249, "S0": 250, "TOP": 251, "R1": 248, "R2": 249, "TB": 252}
def lring(l):
    k = (l - 30) % 15
    return 8 + 4 * k
if HR: a("s_branch L_P2_PRE2")
a("L_P2_PRE:")
a("v_lshlrev_b32 v2, 4, v1")
a("s_lshr_b32 s64, s22, 2")
a(f"s_mul_i32 s60, s64, {CL['S1'][3]}"); a(f"s_add_u32 s60, s60, {CL['S1'][2]}"); a(f"v_add_u32 v{BA['S1']}, s60, v2")
a(f"s_mul_i32 s60, s64, {CL['S2'][3]}"); a(f"s_add_u32 s60, s60, {CL['S2'][2]}"); a(f"v_add_u32 v{BA['S2']}, s60, v2")
for l in range(30): a(rd_reg(l))
a("L_P2_PRE2:")
if HR:
    a("s_waitcnt lgkmcnt(0)"); stamp(a, 36); a("s_barrier"); stamp(a, 37)
    a("s_cmp_lt_u32 s22, 4"); a("s_cbranch_scc1 L_P2_C")
    dma_class("R1"); dma_class("R2")
    a("L_P2_C:")
    a("v_lshlrev_b32 v2, 4, v1"); a("s_lshr_b32 s64, s22, 2")
for nm in ("S0", "TOP", "TB"):
    a(f"s_mul_i32 s60, s64, {CL[nm][3]}"); a(f"s_add_u32 s60, s60, {CL[nm][2]}"); a(f"v_add_u32 v{BA[nm]}, s60, v2")
consumer_ids()
rotbit("s86")
a(f"""s_and_b32 s65, s22, 3
s_lshl_b32 s67, s85, 2
s_add_u32 s67, s67, s65
s_mul_i32 s80, s67, {OTT}
s_mul_i32 s60, s64, {8*OBLK}
s_add_u32 s80, s80, s60
v_mul_u32_u24 v3, 12, v1
v_add_u32 v3, 2048, v3
v_and_b32 v4, 15, v1
v_lshlrev_b32 v5, 3, v4
s_lshl_b32 s62, s67, 7
s_add_u32 s62, s62, {WS_G}
v_sub_u32 v254, 0, v{TOK}
s_add_u32 s82, s80, {4*OBLK}
s_mul_i32 s86, s86, {4*OBLK}
s_add_u32 s80, s80, s86
s_sub_u32 s82, s82, s86
s_add_u32 s81, s80, {2*OBLK}
s_add_u32 s83, s82, {2*OBLK}
s_mov_b32 s28, s18
s_mov_b32 s29, s19
s_mov_b32 s30, 2621440
s_mov_b32 s31, 0x20000
s_mov_b32 s61, 0""")
if HR:
    a("s_setprio 0"); a("s_waitcnt vmcnt(0)"); stamp(a, 38)
else:
    stamp(a, 36)
    a("s_waitcnt lgkmcnt(0)")
    a("s_barrier")
    stamp(a, 37)
    a("s_cmp_lt_u32 s22, 4"); a("s_cbranch_scc1 L_P2_C")
    dma_class("R1"); dma_class("R2")
    if OWAIT >= 2: a("s_waitcnt vmcnt(0)"); stamp(a, 38)
    a("s_branch L_P2_GO")
    a("L_P2_C:")
    if OWAIT: a("s_waitcnt vmcnt(0)"); stamp(a, 38)
    a("s_setprio 0")
a("L_P2_GO:")
if OWAIT >= 2: a("s_barrier")
if OWAIT >= 3: a(f"s_sleep {OWAIT}")
if STAMP: stamp2(a, 39, 53)
ev(a, "bp")
TB = 216
def og(u, k): return OR_ + (u & 3) * 12 + k * 4
def ld_unit(u):
    m, e = u >> 1, u & 1
    return [f"buffer_load_dwordx4 {vr(og(u, k))}, v2, s[32:35], s{80+m} offen offset:{e*OBLK + k*1024} {OF}" for k in range(2)] + \
           [f"buffer_load_dwordx3 {vr(og(u, 2), 3)}, v3, s[32:35], s{80+m} offen offset:{e*OBLK} {OF}"]
def chk_unit(u):
    d = og(u, 0); f = og(u, 1); c = og(u, 2); x = CK
    return [f"v_add3_u32 v{x}, v{d}, v{d+1}, v{d+2}", f"v_add3_u32 v{x+1}, v{f}, v{f+1}, v{f+2}", f"v_add3_u32 v{x+2}, v{c}, v{c+1}, v{TOK}",
            f"v_add3_u32 v{x}, v{x}, v{d+3}, v{f+3}", f"v_add3_u32 v{x}, v{x}, v{x+1}, v{x+2}", f"v_cmp_ne_u32 vcc, v{x}, v{c+2}"]
def ld_w(i):
    if i < NRK or i >= 20: return []
    o = []
    for T in range(5):
        l = i * 5 + T
        nm = [k for k, v in CL.items() if v[0] <= l < v[0] + v[1]][0]
        o.append(f"ds_read_b128 {vr(lring(l))}, v{BA[nm]} offset:{(l - CL[nm][0]) * 1024}")
    return o
GLD = "buffer_load_dwordx2 v[6:7], v5, s[32:35], s62 offen sc1"
PRE = ["s_lshr_b32 s46, s67, 4", "s_lshl_b32 s46, s46, 8", "s_bfe_u32 s47, s67, 0x10003", "s_add_u32 s46, s46, s47", "s_and_b32 s47, s67, 7",
       "s_lshl_b32 s47, s47, 5", "s_add_u32 s46, s46, s47", "s_mul_i32 s46, s46, 1280", "s_mul_i32 s47, s84, 160", "s_add_u32 s46, s46, s47",
       "s_mul_i32 s60, s65, 5120", f"s_add_u32 s60, s60, {XCH}", f"v_add_u32 v{WR+76}, s60, v2", "v_mul_u32_u24 v4, 2560, v4", f"v_lshrrev_b32 v{WR+79}, 4, v1",
       f"v_lshl_add_u32 v{WR+77}, v{WR+79}, 4, v4", f"v_lshl_add_u32 v{WR+78}, v{WR+79}, 3, v4",
       "s_waitcnt vmcnt(0)", f"v_add3_u32 v{CK}, v6, v7, v254", f"v_cmp_ne_u32 vcc, 0, v{CK}"]
vq = []
def issue(u):
    if u < 8:
        for x in (ld_unit(u)[:2] if "no3" in XP else ld_unit(u)): a(x); vq.append(u)
    if u == 4: a(GLD); vq.append(8)
nxt_u = 0
for _ in range(U0): issue(nxt_u); nxt_u += 1
npre = 0
for u in range(8):
    m, e = u >> 1, u & 1
    last = max(k for k, t in enumerate(vq) if t == u)
    a(f"s_waitcnt vmcnt({len(vq) - 1 - last})")
    while nxt_u <= u + UD: issue(nxt_u); nxt_u += 1
    if u == 0: stamp(a, 33)
    for x in chk_unit(u): a(x)
    if "no3" not in XP: a(f"s_cbranch_vccnz L_RETRY{u}")
    a(f"L_OK{u}:")
    if u == 0: stamp(a, 34)
    tb = TB + 4 * (m & 1)
    a(f"v_mov_b64 v[{tb+2*e}:{tb+2*e+1}], v[{og(u,2)}:{og(u,2)+1}]")
    for ss in ([0, 1] if e == 0 else [2, 3, 4]):
        i = m * 5 + ss
        if i >= ET: continue
        nxt = ld_w(i + 2)
        if i >= NRK: a(f"s_waitcnt lgkmcnt({5 if i < 19 else 0})")
        of = og(u, ss & 1) if ss < 4 else tb
        for T in range(5):
            wf = vr(lring(i * 5 + T)) if i >= NRK else vr(WR + (i * 5 + T) * 4)
            if "nomf" not in XP or i == 0: a(f"{MF} {vr(AC+4*T)}, {wf}, {vr(of)}, {'0' if i == 0 else vr(AC+4*T)}")
            if nxt and "nold" not in XP: a(nxt[T])
            if 10 <= i < 15 and npre < len(PRE) - 3: a(PRE[npre]); npre += 1
            if i == min(18, ET - 1) and T >= 2: a(PRE[len(PRE) - 5 + T])
assert npre == len(PRE) - 3
if STAMP and ET > 19: stamp2(a, 56, 54)
a("s_cbranch_vccnz L_RETRYG")
a("L_OKG:")
a("s_cmp_eq_u32 s64, 0")
a("s_cbranch_scc1 L_EPI_A")
def epi(send, keep, sc):
    RA, O4, O2 = WR + 76, WR + 77, WR + 78
    for T in send:
        for r in (0, 2): a(f"v_pk_mul_f32 v[{AC+4*T+r}:{AC+4*T+r+1}], v[{AC+4*T+r}:{AC+4*T+r+1}], v[{sc}:{sc+1}] op_sel_hi:[1,0]")
    a("s_barrier")
    for T in send: a(f"ds_write_b128 v{RA}, {vr(AC+4*T)} offset:{T*1024}")
    a("s_waitcnt lgkmcnt(0)"); a("s_barrier")
    for n, T in enumerate(keep): a(f"ds_read_b128 {vr(8+4*n)}, v{RA} offset:{T*1024}")
    for n, T in enumerate(keep):
        a(f"s_waitcnt lgkmcnt({len(keep)-1-n})")
        for r in (0, 2): a(f"v_pk_fma_f32 v[{8+4*n+r}:{8+4*n+r+1}], v[{AC+4*T+r}:{AC+4*T+r+1}], v[{sc}:{sc+1}], v[{8+4*n+r}:{8+4*n+r+1}] op_sel_hi:[1,0,1]")
        a(f"v_cvt_pk_bf16_f32 v{OR_+2*n}, v{8+4*n}, v{8+4*n+1}"); a(f"v_cvt_pk_bf16_f32 v{OR_+2*n+1}, v{8+4*n+2}, v{8+4*n+3}")
        if n == 1: a(f"buffer_store_dwordx4 {vr(OR_)}, v{O4}, s[28:31], s46 offen offset:{32*keep[0]} {SF}")
        if n == 2: a(f"buffer_store_dwordx2 {vr(OR_+4,2)}, v{O2}, s[28:31], s46 offen offset:128 {SF}")
if EP:
    RA, O4, O2 = WR + 76, WR + 77, WR + 78
    def last_steps(fill, lg19):
        for i in range(ET, 20):
            a(f"s_waitcnt lgkmcnt({5 if i < 19 else lg19})")
            if i == ET and fill: a("s_barrier")
            of = og(7, 1) if i == 18 else TB + 4
            for T in range(5):
                a(f"{MF} {vr(AC+4*T)}, {vr(lring(i * 5 + T))}, {vr(of)}, {vr(AC+4*T)}")
                k = (i - ET) * 5 + T
                if k < len(fill): a(fill[k])
        if STAMP: stamp2(a, 56, 54)
    rds = [f"ds_read_b128 {vr(72+4*T)}, v{RA} offset:{T*1024}" for T in range(5)]
    scl = ["v_sub_f32 v6, 1.0, v6", "v_cvt_pk_bf16_f32 v6, v6, v6", "v_and_b32 v6, 0xffff0000, v6"]
    if ET == 18: last_steps(rds + scl, 5)
    else:
        a("s_barrier")
        for x in rds + scl: a(x)
    for T in range(5):
        a(f"s_waitcnt lgkmcnt({4-T})")
        for r in (0, 2): a(f"v_pk_fma_f32 v[{72+4*T+r}:{72+4*T+r+1}], v[{AC+4*T+r}:{AC+4*T+r+1}], v[6:7], v[{72+4*T+r}:{72+4*T+r+1}] op_sel_hi:[1,0,1]")
        a(f"v_cvt_pk_bf16_f32 v{OR_+2*T}, v{72+4*T}, v{72+4*T+1}"); a(f"v_cvt_pk_bf16_f32 v{OR_+2*T+1}, v{72+4*T+2}, v{72+4*T+3}")
        if T == 1: a(f"buffer_store_dwordx4 {vr(OR_)}, v{O4}, s[28:31], s46 offen {SF}")
        if T == 3: a(f"buffer_store_dwordx4 {vr(OR_+4)}, v{O4}, s[28:31], s46 offen offset:64 {SF}")
    a(f"buffer_store_dwordx2 {vr(OR_+8,2)}, v{O2}, s[28:31], s46 offen offset:128 {SF}")
    a("s_branch L_FIN")
    a("L_EPI_A:")
    if ET == 18: last_steps([], 0)
    else: a("s_nop 1")
    for T in range(5):
        for r in (0, 2): a(f"v_pk_mul_f32 v[{AC+4*T+r}:{AC+4*T+r+1}], v[{AC+4*T+r}:{AC+4*T+r+1}], v[6:7] op_sel_hi:[1,0]")
        a(f"ds_write_b128 v{RA}, {vr(AC+4*T)} offset:{T*1024}")
    a("s_waitcnt lgkmcnt(0)"); a("s_barrier")
else:
    a("v_sub_f32 v6, 1.0, v6"); a("v_cvt_pk_bf16_f32 v6, v6, v6"); a("v_and_b32 v6, 0xffff0000, v6")
    epi([0, 1], [2, 3, 4], 6)
    a("s_branch L_FIN")
    a("L_EPI_A:")
    a("s_nop 4")
    epi([2, 3, 4], [0, 1], 6)
ev(a, "end")
if SPIN:
    a("""s_mov_b32 s60, 0
    L_SPIN:
    s_memrealtime s[98:99]
    s_waitcnt lgkmcnt(0)
    s_sub_u32 s98, s98, s96
    s_add_u32 s60, s60, 1
    s_cmp_ge_u32 s60, 20000
    s_cbranch_scc1 L_FIN
    s_cmp_lt_u32 s98, 4000
    s_cbranch_scc1 L_SPIN""")
a("L_FIN:")
if STAMP:
    stamp(a, 57)
    a("s_add_u32 s61, s61, 1"); a(f"v_writelane_b32 v{SV}, s61, 61")
    a("s_waitcnt vmcnt(0)")
    stamp(a, 62); stamp(a, 63, True)
    a(f"s_lshl_b32 s46, s2, 3"); a(f"s_add_u32 s46, s46, s22"); a("s_lshl_b32 s46, s46, 8"); a(f"s_add_u32 s46, s46, {WS_ST}")
    a(f"v_lshlrev_b32 v2, 2, v1")
    a(f"buffer_store_dword v{SV}, v2, s[32:35], s46 offen")
a("L_END:"); a("s_endpgm")
for u in range(8):
    a(f"L_RETRY{u}:")
    a("s_add_u32 s61, s61, 1"); a(f"s_cmp_ge_u32 s61, {SPIN_MAX}"); a(f"s_cbranch_scc1 L_OK{u}")
    a(f"s_sleep {RSLEEP}")
    for x in ld_unit(u): a(x)
    a("s_waitcnt vmcnt(0)")
    for x in chk_unit(u): a(x)
    a(f"s_cbranch_vccnz L_RETRY{u}"); a(f"s_branch L_OK{u}")
a("L_RETRYG:")
a("s_add_u32 s61, s61, 1"); a(f"s_cmp_ge_u32 s61, {SPIN_MAX}"); a("s_cbranch_scc1 L_OKG")
a(f"s_sleep {RSLEEP}")
a("buffer_load_dwordx2 v[6:7], v5, s[32:35], s62 offen sc1"); a("s_waitcnt vmcnt(0)")
a(f"v_add3_u32 v{CK}, v6, v7, v254"); a(f"v_cmp_ne_u32 vcc, 0, v{CK}")
a("s_cbranch_vccnz L_RETRYG"); a("s_branch L_OKG")

l1, _ = fix(a.L)
for tr in traces:
    _, iss_ = fix(tr, verify=True)
    for x in iss_: print("; TRACE HAZARD", x, file=sys.stderr)
print(f"""; gated mix of two dilated sliding-window attention blocks (generated by gen/gen17.py)
; @launch grid=(256,1,1) block=(512,1,1) lds={LDS_TOTAL}
.amdgcn_target "amdgcn-amd-amdhsa--gfx950"
.text
.globl {KN}
.p2align 8
.type {KN},@function""")
print("\n".join(l1))
print("CODE_END:")
print('.section .rodata,"a"')
print(kd(KN, 256, 102, 256))
```

```python
import sys, struct, math
sys.path.insert(0, "gen")
from asmlib import *
NAME = "gated_mix__sliding_local_dilated__sliding_local_dilated__prompt"
KN = NAME + "_kernel"
OPT = dict(a.split("=") for a in sys.argv[1:])
STAMP = int(OPT.get("stamp", 0)); CM = int(OPT.get("cm", 1)); PK = int(OPT.get("pk", 1))
NS1 = int(OPT.get("ns1", 12)); RSLEEP = int(OPT.get("rsleep", 2)); OWAIT = int(OPT.get("owait", 2)); SB = int(OPT.get("sb", 4)); SA = int(OPT.get("sa", 2)); XP = OPT.get("xp", ""); R2 = int(OPT.get("r2", 1)); WNT = "nt " if int(OPT.get("wnt", 0)) else ""; XNT = "nt " if int(OPT.get("xnt", 0)) else ""; SNT = "nt " if int(OPT.get("snt", 0)) else ""; STG = int(OPT.get("stg", 2)); PP = OPT.get("pp", "1101010100").replace("-", ""); ROT = int(OPT.get("rot", 0 if PP else 1)); EP = 1; OF = OPT.get("of", "sc1").replace("-", ""); KS0 = OPT.get("ks0", "-A135A1355"); KS1 = OPT.get("ks1", "-35A135A13"); ET = int(OPT.get("et", 18)); UD = int(OPT.get("ud", 2)); U0 = int(OPT.get("u0", 2)); HA = int(OPT.get("ha", 1)); LS = int(OPT.get("ls", 1)); AL = int(OPT.get("al", 6)); HR = int(OPT.get("hr", 0)); LP = int(OPT.get("lp", 0)); KP = int(OPT.get("kp", 5)); STL = int(OPT.get("stl", 60)); TOV = 1; LPOS = int(OPT.get("lpos", 2)); COV = int(OPT.get("cov", 0)); SF = OPT.get("sf", "nt").replace("+", " "); PD = int(OPT.get("pd", 1))
def f2u(x): return struct.unpack("<I", struct.pack("<f", x))[0]
STAGE = 49152; XOFF = 30720
GW_LDS = 147456; TOK_LDS = GW_LDS + 1536; SCR_LDS = 149504; LDS_TOTAL = 163840
XCH = 126976
RED = 98304
OBLK = 2816; OTT = 16 * OBLK
WS_WOT = 0x700000; WS_G = 0x900000; WS_FW = 0x910000; WS_ST = 0x1000000
NEG = f2u(-1e30)
CEXP = f2u(20 ** -0.5 * math.log2(math.e))
LOG2E = f2u(math.log2(math.e))
MF = "v_mfma_f32_16x16x32_bf16"
SPIN_MAX = 1 << 17
SV = 255
def stamp(a, idx, real=False):
    if not STAMP: return
    a(f"{'s_memrealtime' if real else 's_memtime'} s[68:69]"); a("s_waitcnt lgkmcnt(0)"); a(f"v_writelane_b32 v{SV}, s68, {idx}")
SPIN = OPT.get("spin", "")
def ev(a, name):
    if SPIN == name: a("s_memrealtime s[96:97]"); a("s_waitcnt lgkmcnt(0)")
def stamp2(a, idx, ridx):
    stamp(a, idx); stamp(a, ridx, True)
def stamp0(a):
    if STAMP: a(f"v_mov_b32 v{SV}, 0"); a(f"v_writelane_b32 v{SV}, s66, 0"); a(f"v_writelane_b32 v{SV}, s68, 1")

a = Asm()
traces = []
def ids():
    a("""v_and_b32 v1, 63, v0
    s_and_b32 s20, s2, 3
    s_lshl_b32 s20, s20, 2
    s_bfe_u32 s46, s2, 0x20003
    s_add_u32 s20, s20, s46
    s_lshr_b32 s47, s2, 5
    s_and_b32 s21, s2, 4
    s_lshl_b32 s21, s21, 1
    s_add_u32 s21, s21, s47""")
def srd_ws_dbg():
    WSO = int(OPT.get("wso", 0)) << 20
    a(f"""s_add_u32 s32, s78, {WSO}
    s_addc_u32 s33, s79, 0
    s_mov_b32 s34, {0x10000000 - WSO}
    s_mov_b32 s35, 0x20000
    s_mov_b32 s40, s76
    s_mov_b32 s41, s77
    s_mov_b32 s42, 256
    s_mov_b32 s43, 0x20000""")
def consumer_ids():
    if CM:
        a("s_bfe_u32 s84, s2, 0x30003"); a("s_and_b32 s85, s2, 7"); a("s_lshl_b32 s85, s85, 2"); a("s_lshr_b32 s86, s2, 6"); a("s_add_u32 s85, s85, s86")
    else:
        a("s_and_b32 s84, s20, 7"); a("s_lshl_b32 s85, s21, 1"); a("s_lshr_b32 s86, s20, 3"); a("s_add_u32 s85, s85, s86")
def pf_setup(isw_scc_cmp, vdst, vt, soff, sstep, lblx, lble):
    a(f"""s_lshr_b32 s44, s2, 3
    {isw_scc_cmp}
    s_cbranch_scc0 {lblx}
    v_mul_u32_u24 v{vt}, 13108, v1
    v_lshrrev_b32 v{vt}, 16, v{vt}
    v_mul_u32_u24 v{vt}, 640, v{vt}
    v_lshl_add_u32 v{vdst}, v1, 7, v{vt}
    s_mul_i32 {soff}, s44, 15360
    s_and_b32 s45, s2, 1
    s_mul_i32 s45, s45, 640
    s_add_u32 {soff}, {soff}, s45
    s_mov_b32 {sstep}, 491520
    s_cmp_ge_u32 s20, 8
    s_cselect_b32 s88, s12, s6
    s_cselect_b32 s89, s13, s7
    s_mov_b32 s90, 2457600
    s_branch {lble}
    {lblx}:
    v_lshrrev_b32 v{vt}, 1, v1
    v_mul_u32_u24 v{vt}, 1280, v{vt}
    v_and_b32 v{vdst}, 1, v1
    v_lshl_add_u32 v{vdst}, v{vdst}, 7, v{vt}
    s_and_b32 s45, s2, 4
    s_lshl_b32 s45, s45, 3
    s_add_u32 s44, s44, s45
    s_mul_i32 {soff}, s44, 40960
    s_mov_b32 {sstep}, 256
    s_mov_b32 s88, s4
    s_mov_b32 s89, s5
    s_mov_b32 s90, 2621440
    {lble}:
    s_mov_b32 s91, 0x20000""")
def rotbit(dst):
    a(f"s_xor_b32 {dst}, s84, s85"); a(f"s_and_b32 {dst}, {dst}, {R2}")
a(f"{KN}:")
if STAMP: a("s_memrealtime s[66:67]"); a("s_memtime s[68:69]")
a("""v_readfirstlane_b32 s22, v0
s_load_dwordx8 s[4:11], s[0:1], 0
s_load_dwordx8 s[12:19], s[0:1], 32""")
if not STAMP: a("s_lshr_b32 s3, s2, 8"); a("s_cbranch_scc1 L_END")
a("""s_lshr_b32 s22, s22, 6
s_cmp_eq_u32 s22, 3
s_cbranch_scc1 L_HOP
s_cmp_lt_u32 s22, 4
s_cbranch_scc1 L_COMPUTE""")
ECP = int(OPT.get("ecp", 1))
a("v_and_b32 v1, 63, v0"); a("s_lshr_b32 s44, s2, 3")
if ECP:
    a(f"""s_cmp_lg_u32 s22, 6
    s_cbranch_scc1 L_E0
    s_getpc_b64 s[70:71]
    L_PC0:
    s_mul_i32 s45, s44, 6
    v_min_u32 v3, 5, v1
    v_add_lshl_u32 v3, v3, s45, 7""")
    if not STAMP: a("v_min_u32 v3, CODE_END - L_PC0 - 4, v3")
    a("global_load_dword v41, v3, s[70:71]"); a("L_E0:")
a("""v_mul_u32_u24 v3, 13108, v1
v_lshrrev_b32 v3, 16, v3
v_mul_u32_u24 v3, 640, v3
v_lshlrev_b32 v4, 7, v1
v_add_u32 v40, v4, v3
v_lshrrev_b32 v3, 1, v1
v_lshl_add_u32 v42, v3, 10, v4
s_mul_i32 s92, s44, 24
s_and_b32 s45, s2, 1
s_add_u32 s92, s92, s45
s_mulk_i32 s92, 640
s_and_b32 s45, s2, 4
s_lshl_b32 s45, s45, 3
s_add_u32 s44, s44, s45
s_mul_i32 s93, s44, 40960
s_mov_b32 s26, 2457600
s_mov_b32 s30, 2621440
s_mov_b32 s31, 0x20000
s_mov_b32 s27, s31
s_bitcmp1_b32 s2, 1
s_waitcnt lgkmcnt(0)
s_cselect_b64 s[24:25], s[12:13], s[6:7]
s_mov_b64 s[28:29], s[4:5]
""")
if PP[0] == "1":
    a("""s_cmp_lg_u32 s22, 4
s_cbranch_scc1 L_E1
buffer_load_dword v41, v42, s[28:31], s93 offen
L_E1:
s_cmp_lg_u32 s22, 5
s_cbranch_scc1 L_LD0
buffer_load_dword v41, v40, s[24:27], s92 offen
s_branch L_LD0
""")
else:
    a("""s_bfe_u32 s45, s22, 0x10001
    s_bitcmp1_b32 s22, 0
    s_cbranch_scc1 L_E1
    s_lshl_b32 s45, s45, 8
    s_add_u32 s45, s45, s93
    buffer_load_dword v41, v42, s[28:31], s45 offen
    s_branch L_LD0
    L_E1:
    s_mul_i32 s45, s45, 491520
    s_add_u32 s45, s45, s92
    buffer_load_dword v41, v40, s[24:27], s45 offen
    s_branch L_LD0""")
a(""".p2align 8
L_HOP:
s_branch L_COMPUTE
L_LD0:
s_setprio 2""")
stamp0(a); stamp(a, 3)
ids()
a("""v_lshrrev_b32 v3, 3, v1
v_mul_u32_u24 v3, 2560, v3
v_lshrrev_b32 v4, 4, v0
v_xor_b32 v4, v4, v1
v_xor_b32 v4, 4, v4
v_and_b32 v4, 7, v4
v_lshl_add_u32 v11, v4, 4, v3
s_and_b32 s64, s22, 3
s_lshr_b32 s44, s21, 1
s_or_b32 s45, s44, s64
s_cselect_b32 s52, -20480, 0
s_lshl_b32 s44, s44, 8
s_and_b32 s45, s21, 1
s_add_u32 s44, s44, s45
s_lshl_b32 s45, s64, 4
s_add_u32 s44, s44, s45
s_mul_i32 s47, s44, 1280
s_lshl_b32 s53, s64, 10
v_mul_u32_u24 v3, 6554, v1
v_lshrrev_b32 v3, 16, v3
v_mul_u32_u24 v4, 1120, v3
v_lshl_add_u32 v10, v1, 4, v4
s_and_b32 s46, s20, 7
s_mul_i32 s46, s46, 160
s_mul_i32 s44, s64, 61440
s_add_u32 s46, s46, s44
s_mul_i32 s48, s64, 7680
s_mov_b32 s49, 0
s_mov_b32 s50, 0
s_mov_b32 s87, 0
s_mov_b32 s86, 15""")
stamp(a, 2)
a("s_load_dwordx4 s[76:79], s[0:1], 64")
a("L_LD_ISSUE:")
a(f"s_add_u32 m0, s53, {XOFF + 1024}"); a("s_add_u32 s51, s47, s52"); a(f"buffer_load_dwordx4 v11, s[28:31], s51 offen {XNT}lds")
for qq in range(1, 4):
    a(f"s_add_u32 m0, s53, {XOFF + 1024 + 4096*qq}"); a(f"s_add_u32 s51, s47, {(64*qq-16)*1280}"); a(f"buffer_load_dwordx4 v11, s[28:31], s51 offen {XNT}lds")
a("s_mov_b32 exec_hi, 0x0fffffff")
for qq in range(8):
    if str(qq) in KS0 + KS1:
        a(f"s_cmp_eq_u32 s86, {qq}"); a(f"s_cbranch_scc1 L_HK{qq}"); a(f"L_HR{qq}:")
    r = 2 * qq; k = (r & 0x33) | ((r & 4) << 1) | ((r & 8) >> 1)
    a(f"s_add_u32 m0, s48, {960*qq}"); a(f"s_add_u32 s51, s46, {k*3840}"); a(f"buffer_load_dwordx4 v10, s[24:27], s51 offen {WNT}lds")
a("s_mov_b32 exec_hi, -1")
a("s_cmp_lg_u32 s64, 0"); a("s_cbranch_scc1 L_LD_W")
a(f"s_add_u32 m0, s53, {XOFF + 1024 + 4096*4}"); a(f"s_add_u32 s51, s47, {(64*4-16)*1280}"); a(f"buffer_load_dwordx4 v11, s[28:31], s51 offen {XNT}lds")
a("L_LD_W:")
a(f"""s_mov_b32 s63, {STAGE}
s_add_u32 s46, s46, 245760
s_add_u32 s47, s47, 128
s_add_u32 s49, s49, 1
s_cmp_eq_u32 s49, 3
s_cselect_b32 s51, {(-2*STAGE) & 0xffffffff}, s63
s_cselect_b32 s49, 0, s49
s_add_u32 s48, s48, s51
s_add_u32 s53, s53, s51
s_add_u32 s50, s50, 1""")
def lstamp(base):
    if STAMP == 1: a("s_memtime s[68:69]"); a("s_waitcnt lgkmcnt(0)"); a(f"s_add_u32 m0, s50, {base}"); a(f"v_writelane_b32 v{SV}, s68, m0")
lstamp(9)
a(f"""s_cmp_lt_u32 s50, 2
s_cbranch_scc1 L_LD_PRE0
L_DISP:
s_cmp_eq_u32 s50, s96
s_cbranch_scc1 L_SIDE_A
L_SA_RET:
s_cmp_eq_u32 s50, s97
s_cbranch_scc1 L_TOK_A
s_cmp_eq_u32 s50, s98
s_cbranch_scc1 L_TOK_B
s_cmp_eq_u32 s50, {10 if LP else 9}
s_cbranch_scc1 L_WOF_A
s_cmp_eq_u32 s50, 10
s_cbranch_scc1 L_WOF_B""")
a("L_LD_WAIT:")
a("L_LD_BAR:")
a("L_LD_PRE:")
a("s_bitcmp1_b32 s94, s50"); a("s_cbranch_scc0 L_LD_TOP")
a(f"s_add_u32 s87, s87, {STG}")
PW = int(OPT.get("pw", 6))
if PW < 60: a(f"s_waitcnt vmcnt({PW})")
a("s_cmp_eq_u32 s64, 0"); a("s_cbranch_scc1 L_PFX")
for n in range(STG):
    a("buffer_load_dword v41, v40, s[24:27], s92 offen"); a(f"s_add_u32 s92, s92, {15360 if n < STG-1 else STG*491520 - (STG-1)*15360}")
a("s_branch L_LD_TOP")
a("L_PFX:")
for n in range(STG):
    a("buffer_load_dword v41, v42, s[28:31], s93 offen"); a(f"s_add_u32 s93, s93, {40960 if n < STG-1 else (STG*256 - (STG-1)*40960) & 0xffffffff}")
a("s_branch L_LD_TOP")
a("L_LD_TOP:")
a("s_and_b32 s86, s100, 15"); a("s_lshr_b64 s[100:101], s[100:101], 4")
a("s_cmp_lg_u32 s86, 10"); a("s_cbranch_scc1 L_LD_ISSUE")
ES = (1, 2, 3, 6, 8)
def hook(nm, base, ret):
    for e_ in ES: a(f"s_cmp_eq_u32 s87, {e_}"); a(f"s_cbranch_scc1 L_H{nm}_{e_}")
    a(f"s_waitcnt vmcnt({base})")
    a(f"L_H{nm}_B:")
    if STAMP == 1: a("s_memtime s[68:69]"); a("s_waitcnt lgkmcnt(0)"); a(f"s_add_u32 m0, s50, 19"); a(f"v_writelane_b32 v{SV}, s68, m0")
    a("s_barrier")
    if STAMP == 1: a("s_memrealtime s[68:69]"); a("s_waitcnt lgkmcnt(0)"); a(f"s_add_u32 m0, s50, 39"); a(f"v_writelane_b32 v{SV}, s68, m0")
    a("s_mov_b32 s87, 0"); a(f"s_branch {ret}")
    for e_ in ES: a(f"L_H{nm}_{e_}:"); a(f"s_waitcnt vmcnt({base + e_})"); a(f"s_branch L_H{nm}_B")
hook("A", 0, "L_LD_ISSUE")
for qq in range(8):
    if str(qq) in KS0 + KS1: a(f"L_HK{qq}:"); hook(str(qq), 4 + qq, f"L_HR{qq}")
a("L_LD_PRE0:")
a("v_lshlrev_b32 v12, 4, v1"); a("v_mov_b32 v13, 0")
pos = [c for c in range(1, 10) if PP[c] != "0"]
if STG > 1: a(f"s_bfe_u32 s45, s2, 0x{(STG.bit_length()-1):x}0003")
else: a("s_mov_b32 s45, 0")
a(f"s_mul_i32 s44, s45, {491520 - 15360}"); a("s_add_u32 s92, s92, s44"); a(f"s_add_u32 s92, s92, {491520*int(PP[0])}")
a(f"s_mul_i32 s44, s45, {40960 - 256}"); a("s_sub_u32 s93, s93, s44"); a(f"s_add_u32 s93, s93, {256*int(PP[0])}")
a("s_mov_b32 s94, 0")
for g_ in range(STG):
    mask = sum(1 << c for k, c in enumerate(pos) if k % STG == g_)
    a(f"s_cmp_eq_u32 s45, {g_}"); a(f"s_cselect_b32 s94, {mask}, s94")
a("s_cmp_ge_u32 s64, 2"); a("s_cselect_b32 s94, 0, s94")
a("s_waitcnt lgkmcnt(0)")
SA0 = int(OPT.get("sa0", SA)); SB0 = int(OPT.get("sb0", SB))
a("s_bitcmp1_b32 s2, 3"); a(f"s_cselect_b32 s96, {SA}, {SA0}"); a(f"s_cselect_b32 s97, {SB}, {SB0}")
a("s_add_u32 s98, s97, 2")
def pk(ks): return sum(int(c, 16) << (4 * i) for i, c in enumerate(ks[1:]))
assert STG == 2 and len(KS0) == 10 and len(KS1) == 10
a(f"s_mov_b32 s100, {pk(KS0) & 0xffffffff}"); a(f"s_mov_b32 s101, {pk(KS0) >> 32}")
a("s_bitcmp1_b32 s2, 3"); a(f"s_cselect_b32 s100, {pk(KS1) & 0xffffffff}, s100"); a(f"s_cselect_b32 s101, {pk(KS1) >> 32}, s101")
a("s_branch L_DISP")
a("L_SIDE_A:")
if int(OPT.get("u2", 1)):
    a("""s_mov_b32 s56, 0
    s_cmp_lt_u32 s64, 2
    s_cbranch_scc1 L_SA_RET
    s_mov_b32 s57, s2
    s_cmp_eq_u32 s64, 2
    s_cbranch_scc1 L_SA_GO
    s_bitcmp""" + ("1" if OPT.get("u2", "2") == "2" else "0") + """_b32 s2, 3
    s_cbranch_scc1 L_SA_RET
    s_lshr_b32 s44, s2, 4
    s_sub_u32 s44, s44, 4
    s_cmp_ge_u32 s44, 8
    s_cbranch_scc1 L_SA_RET
    s_lshl_b32 s44, s44, 3
    s_and_b32 s57, s2, 7
    s_add_u32 s57, s57, s44
    s_add_u32 s57, s57, 256
    L_SA_GO:""")
else:
    a("""s_mov_b32 s56, 0
    s_sub_u32 s44, s64, 2
    s_lshl_b32 s57, s44, 8
    s_add_u32 s57, s57, s2
    s_cmp_ge_u32 s57, 320
    s_cbranch_scc1 L_SA_RET""")
a("""s_mov_b32 s56, 1
s_mov_b32 s39, 0x20000
s_and_b32 s45, s57, 7
s_lshr_b32 s44, s57, 3
s_mul_i32 s58, s44, 52
s_lshr_b32 s58, s58, 8
s_mul_i32 s59, s58, 5
s_sub_u32 s59, s44, s59
s_cmp_ge_u32 s58, 4
s_cselect_b32 s36, s14, s8
s_cselect_b32 s37, s15, s9
s_mov_b32 s38, 819200
s_and_b32 s58, s58, 3
s_mul_i32 s58, s58, 160
s_mul_i32 s60, s59, 40
s_cmp_eq_u32 s59, 4
s_cselect_b32 s60, 16, s60
s_cselect_b32 s54, 80, 20
s_cselect_b32 s55, 20, 4
s_add_u32 s58, s58, s60
s_mul_i32 s58, s58, 1280
s_mul_i32 s60, s45, 160
s_add_u32 s58, s58, s60
s_mul_i32 s54, s54, 1280
s_mul_i32 s55, s55, 1280""")
a(f"s_mul_i32 s62, s64, 5120"); a(f"s_add_u32 s62, s62, {SCR_LDS - 10240}")
a("s_mov_b32 exec_hi, 0xff")
for g in range(4):
    for jh in range(2):
        a(f"s_add_u32 m0, s62, {(16*(g>>1) + 8*jh + 4*(g&1))*160}")
        if jh == 0: a("s_add_u32 s51, s58, s54"); a(f"buffer_load_dwordx4 v10, s[36:39], s58 offen {SNT}lds")
        else: a("s_add_u32 s58, s58, s55"); a(f"buffer_load_dwordx4 v10, s[36:39], s51 offen {SNT}lds")
a("s_mov_b32 exec_hi, -1")
a(f"""s_mul_i32 s61, s45, 204800
s_mul_i32 s58, s44, 5120
s_add_u32 s61, s61, s58
s_add_u32 s61, s61, {WS_WOT}
""")
if True: a("s_mov_b32 s87, 8"); a("s_branch L_LD_BAR")
a("L_SIDE_B:")
assert SB >= SA + 2
a("""v_lshrrev_b32 v16, 5, v1
v_lshlrev_b32 v16, 4, v16
v_bfe_u32 v17, v1, 4, 1
v_lshl_add_u32 v16, v17, 2, v16
v_bfe_u32 v17, v1, 2, 2
v_add_u32 v16, v16, v17
v_mul_u32_u24 v16, 160, v16
v_add_u32 v16, s62, v16
v_and_b32 v17, 3, v1
v_lshl_add_u32 v18, v17, 4, v16
v_lshl_add_u32 v19, v17, 3, v16""")
for T in range(5):
    for j in range(2):
        if T < 4: a(f"ds_read_b64_tr_b16 v[{20+4*T+2*j}:{21+4*T+2*j}], v18 offset:{j*1280 + 64*(T>>1) + 8*(T&1)}")
        else: a(f"ds_read_b64_tr_b16 v[{20+4*T+2*j}:{21+4*T+2*j}], v19 offset:{j*1280 + 128}")
a("s_waitcnt lgkmcnt(0)")
for T in range(4): a(f"buffer_store_dwordx4 v[{20+4*T}:{23+4*T}], v12, s[32:35], s61 offen offset:{1024*T} sc1")
a("s_add_u32 s61, s61, 4096")
a(f"buffer_store_dwordx4 v[36:39], v12, s[32:35], s61 offen sc1")
a("s_mov_b32 s87, 6"); a("s_branch L_LD_BAR")
a("L_TOK_A:")
srd_ws_dbg()
a("""v_lshlrev_b32 v12, 4, v1
v_mov_b32 v13, 0
s_mov_b64 exec, 1
buffer_load_dword v15, v13, s[40:43], 0 offen sc1
s_mov_b64 exec, -1
s_cmp_lg_u32 s56, 0
s_cbranch_scc1 L_SIDE_B
s_mov_b32 s87, 1
s_branch L_LD_BAR""")
a("L_TOK_B:")
srd_ws_dbg()
a(f"""s_mov_b32 s60, 0
v_mov_b32 v13, 0
L_TOK_CHK:
v_readlane_b32 s75, v15, 0
s_add_u32 s60, s60, 1
s_cmp_lg_u32 s75, 0
s_cbranch_scc1 L_TOK_OK
s_cmp_ge_u32 s60, {SPIN_MAX}
s_cbranch_scc1 L_TOK_OK
s_sleep 4
s_mov_b64 exec, 1
buffer_load_dword v15, v13, s[40:43], 0 offen sc1
s_mov_b64 exec, -1
s_waitcnt vmcnt(0)
s_branch L_TOK_CHK
L_TOK_OK:
v_mov_b32 v14, {TOK_LDS}
v_mov_b32 v15, s75
ds_write_b32 v14, v15
s_cmp_eq_u32 s56, 0
s_waitcnt lgkmcnt(0)
s_cbranch_scc1 L_LD_WAIT
s_and_b32 s45, s57, 7
s_lshl_b32 s45, s45, 13
s_lshr_b32 s44, s57, 3
s_lshl_b32 s44, s44, 7
s_add_u32 s45, s45, s44
s_add_u32 s45, s45, {WS_FW}
v_lshlrev_b32 v13, 2, v1
s_mov_b32 exec_hi, 0
buffer_store_dword v15, v13, s[32:35], s45 offen sc1
s_mov_b32 exec_hi, -1
s_mov_b32 s87, 1
s_branch L_LD_BAR""")
a("L_WOF_A:")
srd_ws_dbg()
consumer_ids()
a(f"""s_lshl_b32 s59, s84, 13
s_add_u32 s59, s59, {WS_FW}
s_lshr_b32 s44, s64, 1
s_mul_i32 s44, s44, 2560
s_add_u32 s59, s59, s44
v_lshlrev_b32 v13, 7, v1
v_lshlrev_b32 v12, 4, v1
s_mov_b64 exec, 0xfffff
buffer_load_dword v14, v13, s[32:35], s59 offen sc1
s_mov_b64 exec, -1""")
if LP: a("s_waitcnt vmcnt(1)"); a("s_barrier")
else: a("s_mov_b32 s87, 1"); a("s_branch L_LD_BAR")
a("L_WOF_B:")
srd_ws_dbg()
a("""v_lshlrev_b32 v12, 4, v1
v_lshlrev_b32 v13, 7, v1
s_mov_b64 exec, 0xfffff
s_mov_b32 s60, 0""")
a(f"s_waitcnt vmcnt({0 if LP else 12})")
a(f"""L_WO_POLL:
v_cmp_ne_u32 vcc, s75, v14
s_cbranch_vccz L_WO_OK
s_add_u32 s60, s60, 1
s_cmp_ge_u32 s60, {SPIN_MAX}
s_cbranch_scc1 L_WO_OK
s_sleep 4
buffer_load_dword v14, v13, s[32:35], s59 offen sc1
s_waitcnt vmcnt(0)
s_branch L_WO_POLL
L_WO_OK:
s_mov_b64 exec, -1
s_setprio 0""")
stamp(a, 29)
CL = {"S1": (0, 24, 49152, 24576), "S2": (24, 14, 98304, 14336), "S0": (38, 24, 0, 24576), "TOP": (62, 6, 151552, 6144), "TB": (68, 2, 147456, 2048),
      "R1": (70, 24, 49152, 24576), "R2": (94, 6, 98304, 14336)}
a(f"""s_mul_i32 s58, s84, 204800
s_add_u32 s58, s58, {WS_WOT}
s_lshr_b32 s44, s64, 1
s_and_b32 s45, s64, 1
s_lshl_b32 s45, s45, 10
s_mul_i32 s59, s44, 102400
s_add_u32 s59, s59, s58
s_add_u32 s59, s59, s45""")
rotbit("s54"); a("s_mul_i32 s54, s54, 51200"); a("s_sub_u32 s55, s59, s54"); a("s_add_u32 s59, s59, s54")
def dma_class(nm, lo=0, hi=None):
    l0, n, base, delta = CL[nm]
    a(f"s_mul_i32 s53, s44, {delta}"); a("s_add_u32 s53, s53, s45")
    for j in range(lo, n if hi is None else hi, 2):
        a(f"s_add_u32 m0, s53, {base + j*1024}"); a(f"s_add_u32 s51, {'s59' if l0 + j < 50 else 's55'}, {(l0 + j)*1024}")
        a(f"buffer_load_dwordx4 v12, s[32:35], s51 offen sc1 lds")
dma_class("S1", 0, NS1)
if not LP: a(f"s_waitcnt vmcnt({NS1//2})"); a("s_barrier")
dma_class("S1", NS1); dma_class("S2"); dma_class("TOP")
a("s_waitcnt vmcnt(7)")
stamp(a, 30)
a("s_barrier")
dma_class("S0"); dma_class("TB")
TOK = 253
a(f"v_mov_b32 v{TOK}, s75")
a("s_branch L_P2_PRE")
a("L_COMPUTE:")
a("s_load_dwordx4 s[76:79], s[0:1], 64")
ev(a, "start")
a(f"s_setprio {OPT.get('cprio', 3)}")
ids()
a("""s_mov_b32 s39, 0x20000
s_mov_b32 s56, 0
s_cmp_eq_u32 s22, 3
s_cbranch_scc1 L_C_GW
s_cmp_eq_u32 s22, 2
s_cbranch_scc1 L_C_TOK""")
if int(OPT.get("wpe", 0)):
    a("""s_cmp_eq_u32 s22, 1
    s_cselect_b32 s36, s14, s8
    s_cselect_b32 s37, s15, s9
    s_mov_b32 s38, 819200
    v_lshlrev_b32 v140, 7, v1
    v_lshrrev_b32 v141, 1, v1
    v_lshl_add_u32 v140, v141, 10, v140
    s_lshr_b32 s44, s2, 3
    s_mul_i32 s44, s44, 25600
    s_and_b32 s45, s2, 7
    s_mul_i32 s45, s45, 160
    s_add_u32 s44, s44, s45
    s_mov_b32 exec_hi, 0xff
    buffer_load_dword v241, v140, s[36:39], s44 offen
    s_mov_b32 exec_hi, -1""")
a("s_branch L_C_SETUP")
a("L_C_GW:")
a(f"""s_waitcnt lgkmcnt(0)
s_mov_b32 s36, s16
s_mov_b32 s37, s17
s_mov_b32 s38, 1280
v_lshlrev_b32 v140, 4, v1
s_mov_b32 m0, {GW_LDS}
v_mov_b64 v[144:145], 0
buffer_load_dwordx4 v140, s[36:39], 0 offen lds
buffer_load_dwordx4 v140, s[36:39], 0 offen offset:1024 lds
v_mov_b64 v[146:147], 0
ds_write_b128 v140, v[144:147] offset:{XOFF}
v_add_u32 v140, {STAGE}, v140
ds_write_b128 v140, v[144:147] offset:{XOFF}
v_add_u32 v140, {STAGE}, v140
ds_write_b128 v140, v[144:147] offset:{XOFF}
s_branch L_C_SETUP""")
a("L_C_TOK:")
a("""s_cmp_lg_u32 s2, 0
s_cbranch_scc1 L_C_CPF
s_memrealtime s[44:45]
v_mov_b32 v147, 0
s_waitcnt lgkmcnt(0)""")
srd_ws_dbg()
a("""s_or_b32 s44, s44, 1
v_mov_b32 v146, s44
s_mov_b64 exec, 1
buffer_atomic_cmpswap v[146:147], v147, s[40:43], 0 offen sc1
s_mov_b64 exec, -1
L_C_CPF:
s_getpc_b64 s[70:71]
L_PC:
s_sub_u32 s70, s70, L_PC - L_SIDE_B
s_subb_u32 s71, s71, 0
""")
if ECP: pass
elif int(OPT.get("ccp", 1)):
    a(f"""s_lshr_b32 s44, s2, 3
    s_mul_i32 s44, s44, 6
    v_min_u32 v140, 5, v1
    v_add_lshl_u32 v140, v140, s44, 7
    v_min_u32 v140, CODE_END - L_SIDE_B - 4, v140
    global_load_dword v241, v140, s[70:71]""")
else:
    a("""v_lshlrev_b32 v140, 7, v1
v_add_u32 v141, 8192, v140
v_add_u32 v142, 16384, v140
v_min_u32 v140, CODE_END - L_SIDE_B - 4, v140
v_min_u32 v141, CODE_END - L_SIDE_B - 4, v141
v_min_u32 v142, CODE_END - L_SIDE_B - 4, v142
global_load_dword v241, v140, s[70:71]
global_load_dword v241, v141, s[70:71]
global_load_dword v241, v142, s[70:71]""")
a("L_C_SETUP:")
if COV == 2:
    a("s_cmp_eq_u32 s56, 0"); a("s_cbranch_scc1 L_C_S2")
    a("buffer_load_dword v241, v252, s[36:39], s57 offen")
    a("L_C_S2:")
VWA, VWB, VX0, VX1, VGX0, VGX1, VGW = 2, 3, 4, 5, 6, 7, 240
ACCQ, ACCK, ACCV, ACCH = 8, 48, 88, 128
RING, XB, GX = 140, 180, 204
MC, MP, MP0, AM, ONES = 220, 224, 228, 232, 236
def acc(seg, t, T): return (ACCQ, ACCK, ACCV)[seg] + t * 20 + T * 4
a("s_setprio 0")
a(f"""v_lshrrev_b32 v140, 4, v1
v_and_b32 v141, 15, v1
v_lshrrev_b32 v142, 5, v1
v_lshlrev_b32 v142, 4, v142
v_and_b32 v143, 1, v140
v_lshl_add_u32 v142, v143, 2, v142
v_lshrrev_b32 v143, 2, v141
v_add_u32 v142, v142, v143
v_mul_u32_u24 v145, 480, v142
v_and_b32 v143, 3, v141
v_lshl_add_u32 v{VWA}, v143, 3, v145
v_mul_u32_u24 v144, 40, v143
v_add3_u32 v{VWB}, v145, v144, 32
v_lshrrev_b32 v144, 1, v141
v_xor_b32 v144, v144, v140
v_lshlrev_b32 v144, 4, v144
v_lshl_add_u32 v{VX0}, v141, 7, v144
v_xor_b32 v{VX1}, 64, v{VX0}
s_and_b32 s44, s20, 7
s_lshl_b32 s44, s44, 11
v_add_u32 v{VGX0}, s44, v{VX0}
v_add_u32 v{VGX1}, s44, v{VX1}
v_lshlrev_b32 v{VGW}, 4, v140
v_add_u32 v{VGW}, {GW_LDS}, v{VGW}""")
a(f"s_mov_b32 s44, {NEG}")
a(f"v_mov_b32 v146, s44")
a("s_lshr_b32 s45, s21, 1"); a("s_or_b32 s45, s45, s22")
a("v_lshlrev_b32 v145, 2, v140"); a("v_sub_u32 v145, v141, v145")
for r in range(4): a(f"v_subrev_u32 v{150+r}, {r}, v145")
for r in range(4):
    a(f"v_cmp_gt_u32 vcc, 8, v{150+r}"); a(f"v_cmp_gt_i32 s[72:73], -8, v{150+r}")
    a(f"v_mov_b32 v{ONES+r}, 0x3f803f80")
    a(f"v_cndmask_b32 v{MC+r}, v146, 0, vcc"); a(f"v_cndmask_b32 v{MP+r}, v146, 0, s[72:73]")
a("s_cmp_eq_u32 s45, 0"); a("s_cselect_b64 vcc, -1, 0")
for r in range(4): a(f"v_cndmask_b32 v{MP0+r}, v{MP+r}, v146, vcc")
a("s_mov_b32 s44, 0xffff0000")
for h in range(2):
    a(f"v_ashrrev_i32 v154, 31, v{150+2*h}"); a(f"v_ashrrev_i32 v155, 31, v{151+2*h}")
    a(f"v_bfi_b32 v{AM+h}, s44, v155, v154"); a(f"v_not_b32 v{AM+2+h}, v{AM+h}")
a(f"""s_mov_b64 s[48:49], 0xffff
s_mov_b32 s50, 0xffff0000
s_mov_b32 s51, 0
s_mov_b32 s52, 0
s_mov_b32 s53, 0xffff
s_mov_b32 s54, 0
s_mov_b32 s55, 0xffff0000
s_mov_b32 s63, {STAGE}
s_mov_b32 s74, 128
s_mov_b32 s92, {CEXP}
s_mov_b32 s93, {CEXP}
s_lshl_b32 s94, s21, 3
s_lshl_b32 s95, s22, 1
s_add_u32 s94, s94, s95
s_mul_i32 s94, s94, {OTT}
s_mul_i32 s95, s20, {OBLK}
s_add_u32 s94, s94, s95
s_add_u32 s95, s94, {OTT}""")
for r in range(ACCQ, ACCH + 12, 2): a(f"v_mov_b64 v[{r}:{r+1}], 0")
a("s_waitcnt vmcnt(0) lgkmcnt(0)")
stamp0(a)
srd_ws_dbg()
stamp(a, 4)
if COV in (1, 3):
    a("s_cmp_eq_u32 s56, 0"); a("s_cbranch_scc1 L_C_GO")
    if COV == 3: a("s_setprio 3")
    a("buffer_load_dword v241, v252, s[36:39], s57 offen")
a("s_setprio 0")
a("L_C_GO:")
a("""s_mov_b32 s44, 0
s_mov_b32 s45, 0""")
for w in range(1, 4):
    a(f"s_cmp_eq_u32 s22, {w}"); a(f"s_cbranch_scc1 L_W{w}")
KOP = {1: 140, 0: 156, -1: 204}
VOP = 172; QOP = {1: 68, 0: 108}
def kop(t, h): return KOP[t] + 4 * h
def vop(T, t): return VOP + 6 * T + 2 * (t + 1)
def qop(t, h): return QOP[t] + 4 * h
def cv2(d, s): return [f"v_cvt_pk_bf16_f32 v{d}, v{s}, v{s+1}", f"v_cvt_pk_bf16_f32 v{d+1}, v{s+2}, v{s+3}"]
HALO = [[(1,0),(1,1),(1,2)], [(1,3),(1,4),(2,0)], [(2,1),(2,2)], [(2,3),(2,4)]] if OPT.get('hal') == '0' else [[(1,0),(1,2),(2,0)], [(1,1),(1,3),(2,1)], [(1,4),(2,2),(2,3)], [(2,4)]]
D = 5
def istep(f): return f - 5 if f <= 14 else (f - 6 if f <= 21 else f - 7)
for w in range(4):
    gate = (w == 3)
    q = []
    def rdW(f):
        ks, seg, T = f // 15, (f % 15) // 5, f % 5
        d = RING + (f % 10) * 4
        if "nods" in XP: return [("s_nop 0", ("W", f))] * 2
        if "ds9" in XP and T in (1, 3):
            if seg < 2 and T == 1: return [(f"ds_read_b128 v[{d}:{d+3}], v{(VX0, VX1)[ks]} offset:{XOFF + 4096}", ("W", f))]
            return []
        return [(f"ds_read_b64_tr_b16 v[{d+2*j}:{d+2*j+1}], v{VWA if T < 4 else VWB} offset:{seg*160 + ks*15360 + j*3840 + (40*T if T < 4 else 0)}", ("W", f)) for j in range(2)]
    def rdX(ks):
        o = []
        for n, tile in enumerate((1 + 2 * w, 2 + 2 * w, 0)):
            d = XB + (ks * 3 + n) * 4
            o.append((f"ds_read_b128 v[{d}:{d+3}], v{(VX0, VX1)[ks]} offset:{XOFF + tile*2048}", ("X", ks)))
        if gate:
            d = GX + ks * 8
            o.append((f"ds_read_b128 v[{d}:{d+3}], v{(VGX0, VGX1)[ks]} offset:{XOFF + 2048}", ("X", ks)))
            o.append((f"ds_read_b128 v[{d+4}:{d+7}], v{VGW} offset:{ks*64}", ("X", ks)))
        return o
    def wait(b, tags):
        if not any(t in tags for t in q): return
        last = max(i for i, t in enumerate(q) if t in tags)
        b(f"s_waitcnt lgkmcnt({min(len(q) - 1 - last, 15)})")
    def mm(f):
        ks, seg, T = f // 15, (f % 15) // 5, f % 5
        wf = vr(RING + (f % 10) * 4); o = []
        def one(dst, xf):
            o.append(f"{MF} {vr(dst)}, {wf}, {xf}, {vr(dst)}" if seg < 2 else f"{MF} {vr(dst)}, {xf}, {wf}, {vr(dst)}")
        one(acc(seg, 0, T), vr(XB + (ks * 3) * 4)); one(acc(seg, 1, T), vr(XB + (ks * 3 + 1) * 4))
        if (seg, T) in HALO[w]: one(ACCH + 4 * HALO[w].index((seg, T)), vr(XB + (ks * 3 + 2) * 4))
        if gate and seg == 0 and T == 2:
            d = GX + ks * 8
            o.append(f"{MF} {vr(ACCH+8)}, {vr(d+4)}, {vr(d)}, {vr(ACCH+8)}")
        return o
    def weave(b, ms, fs, lastless=True):
        n = len(ms)
        if OPT.get("wv", "1") == "1":
            ds = [t for t in fs if t[1] is not None]; ot = [t for t in fs if t[1] is None]
            per = [[] for _ in range(n)]
            cnt = [0] * n
            for i in range(len(ds)): cnt[i % n] += 1
            it = iter(ds)
            for j in range(n):
                for _ in range(cnt[j]): per[j].append(next(it))
            lo = 0
            for t in ot:
                load = [len(per[j]) + (1 if (lastless and j == n - 1) else 0) for j in range(n)]
                j = min(range(lo, n), key=lambda k: load[k]); lo = j
                per[j].append(t)
            for m_, p_ in zip(ms, per):
                b(m_)
                for t in p_:
                    b(t[0])
                    if t[1] is not None: q.append(t[1])
            return
        k = len(fs)
        cnt = [0] * n
        for i in range(k):
            load = [cnt[j] + (1 if (lastless and j == n - 1) else 0) for j in range(n)]
            cnt[load.index(min(load))] += 1
        it = iter(fs)
        for m_, c_ in zip(ms, cnt):
            b(m_)
            for _ in range(c_):
                t = next(it)
                b(t[0])
                if t[1] is not None: q.append(t[1])
    FA = {s: [] for s in range(25, 30)}
    x0 = rdX(0)
    FA[25] = x0[:2] + rdW(0); FA[26] = x0[2:4] + rdW(1); FA[27] = x0[4:] + rdW(2); FA[28] = rdW(3); FA[29] = rdW(4)
    FB = {s: [] for s in range(25)}
    for f in range(D, 30): FB[istep(f)] += rdW(f)
    x1 = rdX(1)
    for i, t in enumerate(x1): FB[2 + i].append(t)
    sal = ["s_add_u32 s45, s45, 1", "s_cmp_eq_u32 s45, 3", f"s_cselect_b32 s46, {(-2*STAGE) & 0xffffffff}, s63", "s_cselect_b32 s45, 0, s45"]
    for i, t in enumerate(sal): FB[10 + i].append((t, None))
    if gate:
        FB[20].append((f"v_add_u32 v{VGW}, s74, v{VGW}", None))
        FB[21].append((f"v_add_u32 v{VGX0}, s46, v{VGX0}", None)); FB[22].append((f"v_add_u32 v{VGX1}, s46, v{VGX1}", None))
    FB[20].append((f"v_add_u32 v{VX0}, s46, v{VX0}", None)) if not gate else FB[14].append((f"v_add_u32 v{VX0}, s46, v{VX0}", None))
    FB[23] += [(f"v_add_u32 v{VX1}, s46, v{VX1}", None), (f"v_add_u32 v{VWA}, s46, v{VWA}", None), (f"v_add_u32 v{VWB}, s46, v{VWB}", None)]
    FB[24] += [("s_add_u32 s44, s44, 1", None), ("s_cmp_eq_u32 s44, 10", None)]
    pre = Asm(); pa = Asm(); pb = Asm(); tail = Asm()
    stamp(pre, 5)
    pre("s_barrier")
    if STAMP: stamp2(pre, 6, 50)
    ev(pre, "b0")
    for s in range(25, 30):
        for t in FA[s]: pre(t[0])
    q.clear()
    if not LS: pa("s_waitcnt lgkmcnt(0)")
    pa("s_barrier")
    for s in range(25, 30): weave(pa, mm(s), FA[s], lastless=(s == 29))
    if LS: pre(f"s_branch L_LB{w}")
    else: pa(f"s_branch L_LB{w}")
    for s in range(25):
        tags = [("W", s)] + ([("X", 0)] if s == 0 else []) + ([("X", 1)] if s == 15 else [])
        wait(pb, tags); weave(pb, mm(s), FB[s])
    if LS: pb("s_waitcnt lgkmcnt(0)"); pb(f"s_cbranch_scc0 L_LA{w}")
    else: pb(f"s_cbranch_scc1 L_T{w}")
    tail(f"v_mov_b32 v{TOK}, {TOK_LDS}")
    tail("s_waitcnt lgkmcnt(0)")
    tail(f"ds_read_b32 v{TOK}, v{TOK}")
    tm = [m_ for s in range(25, 30) for m_ in mm(s)]
    fl = [f"v_lshlrev_b32 v{VWA}, 3, v1", f"v_add_u32 v{VX1}, {XCH}, v{VWA}"]
    if TOV:
        fl += [f"v_add_u32 v{VWB}, {XCH + 5120*w}, v{VWA}", f"v_add_u32 v{VX0}, {XCH + 5120*(w+1)}, v{VWA}"]
        for h in (0, 1, 2, 3, 4):
            d = 140 + 4 * h if h < 4 else 142; sr = acc(1, 1, h)
            fl += [f"v_cvt_pk_bf16_f32 v{d}, v{sr}, v{sr+1}", f"v_cvt_pk_bf16_f32 v{d+1}, v{sr+2}, v{sr+3}"]
            if w < 3: fl.append(f"ds_write_b64 v{VX0}, v[{d}:{d+1}] offset:{h*512}")
        for h in (1, 2, 3):
            d = 142 + 4 * h; sr = acc(1, 1, 4)
            fl += [f"v_cvt_pk_bf16_f32 v{d}, v{sr}, v{sr+1}", f"v_cvt_pk_bf16_f32 v{d+1}, v{sr+2}, v{sr+3}"]
    for n_, m_ in enumerate(tm):
        tail(m_)
        for x in fl[2*n_:2*n_+2]: tail(x)
    for x in fl[2*len(tm):]: tail(x)
    if gate:
        z = ACCH + 8
        tail(f"""v_cvt_pk_bf16_f32 v248, v{z}, v{z}
        v_and_b32 v248, 0xffff0000, v248
        v_mul_f32 v248, {LOG2E ^ 0x80000000}, v248
        v_exp_f32 v248, v248
        s_lshl_b32 s46, s21, 3
        v_add_f32 v248, 1.0, v248
        v_rcp_f32 v248, v248
        s_add_u32 s46, s46, s20
        v_cvt_pk_bf16_f32 v248, v248, v248
        v_and_b32 v248, 0xffff0000, v248
        s_lshl_b32 s46, s46, 7
        s_add_u32 s46, s46, {WS_G}
        s_waitcnt lgkmcnt(0)
        v_sub_u32 v249, v{TOK}, v248""")
    snd = []
    for n, (seg, T) in enumerate(HALO[w]):
        snd.append(cv2(242 + 2*n, ACCH + 4*n) + [f"ds_write_b64 v{VX1}, v[{242+2*n}:{243+2*n}] offset:{((seg-1)*5+T)*512}"])
    for T in range(5):
        snd.append(cv2(vop(T, 1), acc(2, 1, T)) + ([f"ds_write_b64 v{VX0}, v[{vop(T,1)}:{vop(T,1)+1}] offset:{(5+T)*512}"] if w < 3 else []))
    nh = len(HALO[w])
    if w >= 2: snd = snd[nh:] + snd[:nh]
    rest = ["s_setprio 2"] + cv2(250, acc(0, 1, 4))
    for h in range(4): rest += cv2(qop(1, h), acc(0, 1, h))
    for h in range(4):
        for j in range(2): rest.append(f"v_cndmask_b32 v{qop(1,h)+2+j}, 0, v{250+j}, s[{48+2*h}:{49+2*h}]")
    for k_, x in enumerate(snd):
        for l in x + rest[2*k_:2*k_+2]: tail(l)
    for l in rest[2*len(snd):]: tail(l)
    if gate:
        tail(f"""s_cmp_ge_u32 s20, 8
        s_cbranch_scc1 L_ATT
        s_mov_b64 exec, 0xffff
        buffer_store_dwordx2 v[248:249], v{VWA}, s[32:35], s46 offen sc1
        s_mov_b64 exec, -1""")
    else: tail("s_branch L_ATT")
    if w > 0: a(f"L_W{w}:")
    if LS:
        a.extend(pre); a(f".p2align {AL}"); a(f"L_LA{w}:"); a.extend(pa); a(f"L_LB{w}:"); a.extend(pb); a(f"L_T{w}:"); a.extend(tail)
    else:
        a.extend(pre); a(f".p2align {AL}"); a(f"L_LB{w}:"); a.extend(pb); a.extend(pa); a(f"L_T{w}:"); a.extend(tail)
    traces.append(pre.L + pb.L + pa.L + pb.L + fix(tail.L)[0])
a("L_ATT:")
if STAMP: stamp2(a, 30, 51)
ev(a, "gemm")
KOP = {1: 140, 0: 156, -1: 204}
VOP = 172; QOP = {1: 68, 0: 108}
def kop(t, h): return KOP[t] + 4 * h
def vop(T, t): return VOP + 6 * T + 2 * (t + 1)
def qop(t, h): return QOP[t] + 4 * h
g = Asm()
def cvt(d, s): g(f"v_cvt_pk_bf16_f32 v{d}, v{s}, v{s+1}"); g(f"v_cvt_pk_bf16_f32 v{d+1}, v{s+2}, v{s+3}")
def flush(name):
    global g
    o, t = schedule(g.L, st_lat=STL); print(f"; sched {name}: {len(o)} instrs, est {t} cycles", file=sys.stderr)
    for n, l in enumerate(o):
        if OPT.get("astamp") and n and n % 45 == 0: a(f"s_memtime s[{86 + 2*(n//45)}:{87 + 2*(n//45)}]") if n // 45 < 8 else None
        a(l)
    if OPT.get("astamp"):
        a("s_waitcnt lgkmcnt(0)")
        for k in range(1, 8): a(f"v_writelane_b32 v{SV}, s{86+2*k}, {9+k}")
    g = Asm()
stamp(a, 31)
a("s_waitcnt lgkmcnt(0)"); a("s_barrier")
stamp(a, 32)
for h in range(4):
    g(f"ds_read_b64 v[{kop(-1,h)}:{kop(-1,h)+1}], v{VWB} offset:{h*512}")
    g(f"ds_read_b64 v[{kop(-1,h)+2}:{kop(-1,h)+3}], v{VWB} offset:{4*512}")
for T in range(5): g(f"ds_read_b64 v[{vop(T,-1)}:{vop(T,-1)+1}], v{VWB} offset:{(5+T)*512}")
g("@wait")
g(f"v_lshlrev_b32 v{VX0}, 4, v1"); g(f"v_mul_u32_u24 v{VWA}, 12, v1")
for h in range(4): cvt(kop(0, h), acc(1, 0, h)); cvt(kop(0, h) + 2, acc(1, 0, 4))
for T in range(5): cvt(vop(T, 0), acc(2, 0, T))
cvt(246, acc(0, 0, 4))
for h in range(4): cvt(qop(0, h), acc(0, 0, h))
for h in range(4):
    for j in range(2): g(f"v_cndmask_b32 v{qop(0,h)+2+j}, 0, v{246+j}, s[{48+2*h}:{49+2*h}]")
SR = {1: [28, 32, 36, 40, 44, 48, 52, 56], 0: [8, 12, 16, 20, 24, 88, 92, 96]}
def dc(t, h): return SR[t][h]
def dp(t, h): return SR[t][4 + h]
MX = {1: 84, 0: 124}; TMP = {1: 128, 0: 132}
OREG = {1: [68, 72, 76, 80, 140, 144, 148, 152, 60, 64, 100, 104], 0: [108, 112, 116, 120, 156, 160, 164, 168, 204, 208, 212, 216]}
def oo(t, h, k): return OREG[t][k * 4 + h]
for t in (1, 0):
    for h in range(4):
        g(f"{MF} {vr(dc(t,h))}, {vr(kop(t,h))}, {vr(qop(t,h))}, {vr(MC)}")
        g(f"{MF} {vr(dp(t,h))}, {vr(kop(t-1,h))}, {vr(qop(t,h))}, {vr(MP if t else MP0)}")
for t in (1, 0):
    for h in range(4):
        for r in range(4): g(f"v_max_f32 v{dc(t,h)+r}, v{dc(t,h)+r}, v{dp(t,h)+r}")
        g(f"v_max3_f32 v{MX[t]+h}, v{dc(t,h)}, v{dc(t,h)+1}, v{dc(t,h)+2}")
        g(f"v_max_f32 v{MX[t]+h}, v{MX[t]+h}, v{dc(t,h)+3}")
    m = MX[t]
    g(f"""v_permlane32_swap_b32 v{m}, v{m+1}
    v_permlane32_swap_b32 v{m+2}, v{m+3}
    v_max_f32 v{m}, v{m}, v{m+1}
    v_max_f32 v{m+2}, v{m+2}, v{m+3}
    v_permlane16_swap_b32 v{m}, v{m+2}
    v_max_f32 v{m}, v{m}, v{m+2}
    v_mul_f32 v{m+2}, s92, v{m}
    v_mul_f32 v{m}, s92, v{m}
    v_permlane16_swap_b32 v{m}, v{m+2}
    v_mov_b32 v{m+1}, v{m}
    v_mov_b32 v{m+3}, v{m+2}
    v_permlane32_swap_b32 v{m}, v{m+1}
    v_permlane32_swap_b32 v{m+2}, v{m+3}""")
    for h in range(4):
        d = dc(t, h); p = dp(t, h)
        if PK:
            mp_ = m + (h & 2); e = h & 1
            for r in (0, 2): g(f"v_pk_fma_f32 v[{d+r}:{d+r+1}], v[{d+r}:{d+r+1}], s[92:93], v[{mp_}:{mp_+1}] op_sel:[0,0,{e}] op_sel_hi:[1,1,{e}] neg_lo:[0,0,1] neg_hi:[0,0,1]")
        else:
            for r in range(4): g(f"v_fma_f32 v{d+r}, v{d+r}, s92, -v{m+h}")
        for r in range(4): g(f"v_exp_f32 v{d+r}, v{d+r}")
        g(f"v_cvt_pk_bf16_f32 v{d}, v{d}, v{d+1}"); g(f"v_cvt_pk_bf16_f32 v{d+2}, v{d+2}, v{d+3}")
        g(f"v_and_b32 v{p}, v{AM}, v{d}"); g(f"v_and_b32 v{p+1}, v{AM+1}, v{d+2}")
        g(f"v_and_b32 v{p+2}, v{AM+2}, v{d}"); g(f"v_and_b32 v{p+3}, v{AM+3}, v{d+2}")
    for h in range(4):
        g(f"{MF} {vr(oo(t,h,2))}, {vr(ONES)}, {vr(dp(t,h))}, 0")
        g(f"{MF} {vr(oo(t,h,0))}, {vr(vop(h,t-1))}, {vr(dp(t,h))}, 0")
        g(f"{MF} {vr(oo(t,h,1))}, {vr(vop(4,t-1))}, {vr(dp(t,h))}, 0")
    for h in range(4):
        o0 = oo(t, h, 0); rc = oo(t, h, 2)
        g(f"v_rcp_f32 v{rc}, v{rc}")
        if PK:
            for r in (0, 2): g(f"v_pk_mul_f32 v[{o0+r}:{o0+r+1}], v[{o0+r}:{o0+r+1}], v[{rc}:{rc+1}] op_sel_hi:[1,0]")
        else:
            for r in range(4): g(f"v_mul_f32 v{o0+r}, v{o0+r}, v{rc}")
        for r in range(4): g(f"v_mul_f32_dpp v{TMP[t]+r}, v{oo(t,h,1)+r}, v{rc} quad_perm:[0,1,2,3] row_mask:{hex(1<<h)} bank_mask:0xf")
        cvt(dc(t, h >> 1) + 2 * (h & 1), o0)
    cvt(dc(t, 2), TMP[t])
    so = "s95" if t else "s94"
    c = dc(t, 2)
    for p in range(2):
        g(f"buffer_store_dwordx4 {vr(dc(t, p))}, v{VX0}, s[32:35], {so} offen offset:{1024*p} sc1")
    d = dc(t, 0); e = dc(t, 1)
    g(f"v_add3_u32 v{c+2}, v{d}, v{d+1}, v{d+2}"); g(f"v_add3_u32 v{c+3}, v{e}, v{e+1}, v{e+2}")
    g(f"v_add3_u32 v{c+2}, v{c+2}, v{d+3}, v{e+3}"); g(f"v_add3_u32 v{c+2}, v{c+2}, v{c+3}, v{TOK}")
    g(f"v_add3_u32 v{c+2}, v{c+2}, v{c}, v{c+1}")
    g(f"buffer_store_dwordx3 {vr(c,3)}, v{VWA}, s[32:35], {so} offen offset:2048 sc1")
WR = 48
def rd_reg(l): return f"ds_read_b128 {vr(WR+4*l)}, v{248 if l < 24 else 249} offset:{(l % 24)*1024}"
if HR:
    g(f"v_add_u32 v248, {CL['S1'][2]}, v{VX0}"); g(f"v_add_u32 v249, {CL['S2'][2]}, v{VX0}")
    early = [22, 9, 0, 1, 2, 5, 6, 7, 8, 3, 4, 13, 14, 23, 24, 25, 26, 20]
    for l in early + [l for l in (19, 10, 11, 12, 15, 16, 17, 18, 27, 28, 29, 21)]: g(rd_reg(l))
flush("attention")
if STAMP: stamp2(a, 35, 52)
ev(a, "att")
WR = 48
NRK = 6
OR_ = 168
AC = 224
CK = 244
BA = {"S1": 248, "S2": 249, "S0": 250, "TOP": 251, "R1": 248, "R2": 249, "TB": 252}
def lring(l):
    k = (l - 30) % 15
    return 8 + 4 * k
if HR: a("s_branch L_P2_PRE2")
a("L_P2_PRE:")
a("v_lshlrev_b32 v2, 4, v1")
a("s_lshr_b32 s64, s22, 2")
a(f"s_mul_i32 s60, s64, {CL['S1'][3]}"); a(f"s_add_u32 s60, s60, {CL['S1'][2]}"); a(f"v_add_u32 v{BA['S1']}, s60, v2")
a(f"s_mul_i32 s60, s64, {CL['S2'][3]}"); a(f"s_add_u32 s60, s60, {CL['S2'][2]}"); a(f"v_add_u32 v{BA['S2']}, s60, v2")
for l in range(30): a(rd_reg(l))
a("L_P2_PRE2:")
if HR:
    a("s_waitcnt lgkmcnt(0)"); stamp(a, 36); a("s_barrier"); stamp(a, 37)
    a("s_cmp_lt_u32 s22, 4"); a("s_cbranch_scc1 L_P2_C")
    dma_class("R1"); dma_class("R2")
    a("L_P2_C:")
    a("v_lshlrev_b32 v2, 4, v1"); a("s_lshr_b32 s64, s22, 2")
for nm in ("S0", "TOP", "TB"):
    a(f"s_mul_i32 s60, s64, {CL[nm][3]}"); a(f"s_add_u32 s60, s60, {CL[nm][2]}"); a(f"v_add_u32 v{BA[nm]}, s60, v2")
consumer_ids()
rotbit("s86")
a(f"""s_and_b32 s65, s22, 3
s_lshl_b32 s67, s85, 2
s_add_u32 s67, s67, s65
s_mul_i32 s80, s67, {OTT}
s_mul_i32 s60, s64, {8*OBLK}
s_add_u32 s80, s80, s60
v_mul_u32_u24 v3, 12, v1
v_add_u32 v3, 2048, v3
v_and_b32 v4, 15, v1
v_lshlrev_b32 v5, 3, v4
s_lshl_b32 s62, s67, 7
s_add_u32 s62, s62, {WS_G}
v_sub_u32 v254, 0, v{TOK}
s_add_u32 s82, s80, {4*OBLK}
s_mul_i32 s86, s86, {4*OBLK}
s_add_u32 s80, s80, s86
s_sub_u32 s82, s82, s86
s_add_u32 s81, s80, {2*OBLK}
s_add_u32 s83, s82, {2*OBLK}
s_mov_b32 s28, s18
s_mov_b32 s29, s19
s_mov_b32 s30, 2621440
s_mov_b32 s31, 0x20000
s_mov_b32 s61, 0""")
if HR:
    a("s_setprio 0"); a("s_waitcnt vmcnt(0)"); stamp(a, 38)
else:
    stamp(a, 36)
    a("s_waitcnt lgkmcnt(0)")
    a("s_barrier")
    stamp(a, 37)
    a("s_cmp_lt_u32 s22, 4"); a("s_cbranch_scc1 L_P2_C")
    dma_class("R1"); dma_class("R2")
    if OWAIT >= 2: a("s_waitcnt vmcnt(0)"); stamp(a, 38)
    a("s_branch L_P2_GO")
    a("L_P2_C:")
    if OWAIT: a("s_waitcnt vmcnt(0)"); stamp(a, 38)
    a("s_setprio 0")
a("L_P2_GO:")
if OWAIT >= 2: a("s_barrier")
if OWAIT >= 3: a(f"s_sleep {OWAIT}")
if STAMP: stamp2(a, 39, 53)
ev(a, "bp")
TB = 216
def og(u, k): return OR_ + (u & 3) * 12 + k * 4
def ld_unit(u):
    m, e = u >> 1, u & 1
    return [f"buffer_load_dwordx4 {vr(og(u, k))}, v2, s[32:35], s{80+m} offen offset:{e*OBLK + k*1024} {OF}" for k in range(2)] + \
           [f"buffer_load_dwordx3 {vr(og(u, 2), 3)}, v3, s[32:35], s{80+m} offen offset:{e*OBLK} {OF}"]
def chk_unit(u):
    d = og(u, 0); f = og(u, 1); c = og(u, 2); x = CK
    return [f"v_add3_u32 v{x}, v{d}, v{d+1}, v{d+2}", f"v_add3_u32 v{x+1}, v{f}, v{f+1}, v{f+2}", f"v_add3_u32 v{x+2}, v{c}, v{c+1}, v{TOK}",
            f"v_add3_u32 v{x}, v{x}, v{d+3}, v{f+3}", f"v_add3_u32 v{x}, v{x}, v{x+1}, v{x+2}", f"v_cmp_ne_u32 vcc, v{x}, v{c+2}"]
def ld_w(i):
    if i < NRK or i >= 20: return []
    o = []
    for T in range(5):
        l = i * 5 + T
        nm = [k for k, v in CL.items() if v[0] <= l < v[0] + v[1]][0]
        o.append(f"ds_read_b128 {vr(lring(l))}, v{BA[nm]} offset:{(l - CL[nm][0]) * 1024}")
    return o
GLD = "buffer_load_dwordx2 v[6:7], v5, s[32:35], s62 offen sc1"
PRE = ["s_lshr_b32 s46, s67, 4", "s_lshl_b32 s46, s46, 8", "s_bfe_u32 s47, s67, 0x10003", "s_add_u32 s46, s46, s47", "s_and_b32 s47, s67, 7",
       "s_lshl_b32 s47, s47, 5", "s_add_u32 s46, s46, s47", "s_mul_i32 s46, s46, 1280", "s_mul_i32 s47, s84, 160", "s_add_u32 s46, s46, s47",
       "s_mul_i32 s60, s65, 5120", f"s_add_u32 s60, s60, {XCH}", f"v_add_u32 v{WR+76}, s60, v2", "v_mul_u32_u24 v4, 2560, v4", f"v_lshrrev_b32 v{WR+79}, 4, v1",
       f"v_lshl_add_u32 v{WR+77}, v{WR+79}, 4, v4", f"v_lshl_add_u32 v{WR+78}, v{WR+79}, 3, v4",
       "s_waitcnt vmcnt(0)", f"v_add3_u32 v{CK}, v6, v7, v254", f"v_cmp_ne_u32 vcc, 0, v{CK}"]
vq = []
def issue(u):
    if u < 8:
        for x in (ld_unit(u)[:2] if "no3" in XP else ld_unit(u)): a(x); vq.append(u)
    if u == 4: a(GLD); vq.append(8)
nxt_u = 0
for _ in range(U0): issue(nxt_u); nxt_u += 1
npre = 0
for u in range(8):
    m, e = u >> 1, u & 1
    last = max(k for k, t in enumerate(vq) if t == u)
    a(f"s_waitcnt vmcnt({len(vq) - 1 - last})")
    while nxt_u <= u + UD: issue(nxt_u); nxt_u += 1
    if u == 0: stamp(a, 33)
    for x in chk_unit(u): a(x)
    if "no3" not in XP: a(f"s_cbranch_vccnz L_RETRY{u}")
    a(f"L_OK{u}:")
    if u == 0: stamp(a, 34)
    tb = TB + 4 * (m & 1)
    a(f"v_mov_b64 v[{tb+2*e}:{tb+2*e+1}], v[{og(u,2)}:{og(u,2)+1}]")
    for ss in ([0, 1] if e == 0 else [2, 3, 4]):
        i = m * 5 + ss
        if i >= ET: continue
        nxt = ld_w(i + 2)
        if i >= NRK: a(f"s_waitcnt lgkmcnt({5 if i < 19 else 0})")
        of = og(u, ss & 1) if ss < 4 else tb
        for T in range(5):
            wf = vr(lring(i * 5 + T)) if i >= NRK else vr(WR + (i * 5 + T) * 4)
            if "nomf" not in XP or i == 0: a(f"{MF} {vr(AC+4*T)}, {wf}, {vr(of)}, {'0' if i == 0 else vr(AC+4*T)}")
            if nxt and "nold" not in XP: a(nxt[T])
            if 10 <= i < 15 and npre < len(PRE) - 3: a(PRE[npre]); npre += 1
            if i == min(18, ET - 1) and T >= 2: a(PRE[len(PRE) - 5 + T])
assert npre == len(PRE) - 3
if STAMP and ET > 19: stamp2(a, 56, 54)
a("s_cbranch_vccnz L_RETRYG")
a("L_OKG:")
a("s_cmp_eq_u32 s64, 0")
a("s_cbranch_scc1 L_EPI_A")
def epi(send, keep, sc):
    RA, O4, O2 = WR + 76, WR + 77, WR + 78
    for T in send:
        for r in (0, 2): a(f"v_pk_mul_f32 v[{AC+4*T+r}:{AC+4*T+r+1}], v[{AC+4*T+r}:{AC+4*T+r+1}], v[{sc}:{sc+1}] op_sel_hi:[1,0]")
    a("s_barrier")
    for T in send: a(f"ds_write_b128 v{RA}, {vr(AC+4*T)} offset:{T*1024}")
    a("s_waitcnt lgkmcnt(0)"); a("s_barrier")
    for n, T in enumerate(keep): a(f"ds_read_b128 {vr(8+4*n)}, v{RA} offset:{T*1024}")
    for n, T in enumerate(keep):
        a(f"s_waitcnt lgkmcnt({len(keep)-1-n})")
        for r in (0, 2): a(f"v_pk_fma_f32 v[{8+4*n+r}:{8+4*n+r+1}], v[{AC+4*T+r}:{AC+4*T+r+1}], v[{sc}:{sc+1}], v[{8+4*n+r}:{8+4*n+r+1}] op_sel_hi:[1,0,1]")
        a(f"v_cvt_pk_bf16_f32 v{OR_+2*n}, v{8+4*n}, v{8+4*n+1}"); a(f"v_cvt_pk_bf16_f32 v{OR_+2*n+1}, v{8+4*n+2}, v{8+4*n+3}")
        if n == 1: a(f"buffer_store_dwordx4 {vr(OR_)}, v{O4}, s[28:31], s46 offen offset:{32*keep[0]} {SF}")
        if n == 2: a(f"buffer_store_dwordx2 {vr(OR_+4,2)}, v{O2}, s[28:31], s46 offen offset:128 {SF}")
if EP:
    RA, O4, O2 = WR + 76, WR + 77, WR + 78
    def last_steps(fill, lg19):
        for i in range(ET, 20):
            a(f"s_waitcnt lgkmcnt({5 if i < 19 else lg19})")
            if i == ET and fill: a("s_barrier")
            of = og(7, 1) if i == 18 else TB + 4
            for T in range(5):
                a(f"{MF} {vr(AC+4*T)}, {vr(lring(i * 5 + T))}, {vr(of)}, {vr(AC+4*T)}")
                k = (i - ET) * 5 + T
                if k < len(fill): a(fill[k])
        if STAMP: stamp2(a, 56, 54)
    rds = [f"ds_read_b128 {vr(72+4*T)}, v{RA} offset:{T*1024}" for T in range(5)]
    scl = ["v_sub_f32 v6, 1.0, v6", "v_cvt_pk_bf16_f32 v6, v6, v6", "v_and_b32 v6, 0xffff0000, v6"]
    if ET == 18: last_steps(rds + scl, 5)
    else:
        a("s_barrier")
        for x in rds + scl: a(x)
    for T in range(5):
        a(f"s_waitcnt lgkmcnt({4-T})")
        for r in (0, 2): a(f"v_pk_fma_f32 v[{72+4*T+r}:{72+4*T+r+1}], v[{AC+4*T+r}:{AC+4*T+r+1}], v[6:7], v[{72+4*T+r}:{72+4*T+r+1}] op_sel_hi:[1,0,1]")
        a(f"v_cvt_pk_bf16_f32 v{OR_+2*T}, v{72+4*T}, v{72+4*T+1}"); a(f"v_cvt_pk_bf16_f32 v{OR_+2*T+1}, v{72+4*T+2}, v{72+4*T+3}")
        if T == 1: a(f"buffer_store_dwordx4 {vr(OR_)}, v{O4}, s[28:31], s46 offen {SF}")
        if T == 3: a(f"buffer_store_dwordx4 {vr(OR_+4)}, v{O4}, s[28:31], s46 offen offset:64 {SF}")
    a(f"buffer_store_dwordx2 {vr(OR_+8,2)}, v{O2}, s[28:31], s46 offen offset:128 {SF}")
    a("s_branch L_FIN")
    a("L_EPI_A:")
    if ET == 18: last_steps([], 0)
    else: a("s_nop 1")
    for T in range(5):
        for r in (0, 2): a(f"v_pk_mul_f32 v[{AC+4*T+r}:{AC+4*T+r+1}], v[{AC+4*T+r}:{AC+4*T+r+1}], v[6:7] op_sel_hi:[1,0]")
        a(f"ds_write_b128 v{RA}, {vr(AC+4*T)} offset:{T*1024}")
    a("s_waitcnt lgkmcnt(0)"); a("s_barrier")
else:
    a("v_sub_f32 v6, 1.0, v6"); a("v_cvt_pk_bf16_f32 v6, v6, v6"); a("v_and_b32 v6, 0xffff0000, v6")
    epi([0, 1], [2, 3, 4], 6)
    a("s_branch L_FIN")
    a("L_EPI_A:")
    a("s_nop 4")
    epi([2, 3, 4], [0, 1], 6)
ev(a, "end")
if SPIN:
    a("""s_mov_b32 s60, 0
    L_SPIN:
    s_memrealtime s[98:99]
    s_waitcnt lgkmcnt(0)
    s_sub_u32 s98, s98, s96
    s_add_u32 s60, s60, 1
    s_cmp_ge_u32 s60, 20000
    s_cbranch_scc1 L_FIN
    s_cmp_lt_u32 s98, 4000
    s_cbranch_scc1 L_SPIN""")
a("L_FIN:")
if STAMP:
    stamp(a, 57)
    a("s_add_u32 s61, s61, 1"); a(f"v_writelane_b32 v{SV}, s61, 61")
    a("s_waitcnt vmcnt(0)")
    stamp(a, 62); stamp(a, 63, True)
    a(f"s_lshl_b32 s46, s2, 3"); a(f"s_add_u32 s46, s46, s22"); a("s_lshl_b32 s46, s46, 8"); a(f"s_add_u32 s46, s46, {WS_ST}")
    a(f"v_lshlrev_b32 v2, 2, v1")
    a(f"buffer_store_dword v{SV}, v2, s[32:35], s46 offen")
a("L_END:"); a("s_endpgm")
for u in range(8):
    a(f"L_RETRY{u}:")
    a("s_add_u32 s61, s61, 1"); a(f"s_cmp_ge_u32 s61, {SPIN_MAX}"); a(f"s_cbranch_scc1 L_OK{u}")
    a(f"s_sleep {RSLEEP}")
    for x in ld_unit(u): a(x)
    a("s_waitcnt vmcnt(0)")
    for x in chk_unit(u): a(x)
    a(f"s_cbranch_vccnz L_RETRY{u}"); a(f"s_branch L_OK{u}")
a("L_RETRYG:")
a("s_add_u32 s61, s61, 1"); a(f"s_cmp_ge_u32 s61, {SPIN_MAX}"); a("s_cbranch_scc1 L_OKG")
a(f"s_sleep {RSLEEP}")
a("buffer_load_dwordx2 v[6:7], v5, s[32:35], s62 offen sc1"); a("s_waitcnt vmcnt(0)")
a(f"v_add3_u32 v{CK}, v6, v7, v254"); a(f"v_cmp_ne_u32 vcc, 0, v{CK}")
a("s_cbranch_vccnz L_RETRYG"); a("s_branch L_OKG")

l1, _ = fix(a.L)
for tr in traces:
    _, iss_ = fix(tr, verify=True)
    for x in iss_: print("; TRACE HAZARD", x, file=sys.stderr)
print(f"""; gated mix of two dilated sliding-window attention blocks (generated by gen/gen18.py)
; @launch grid=(256,1,1) block=(512,1,1) lds={LDS_TOTAL}
.amdgcn_target "amdgcn-amd-amdhsa--gfx950"
.text
.globl {KN}
.p2align 8
.type {KN},@function""")
print("\n".join(l1))
print("CODE_END:")
if STAMP: print(".fill 2048, 4, 0xBF800000")
print('.section .rodata,"a"')
print(kd(KN, 256, 102, 256))
```

```python
import sys, struct, math
sys.path.insert(0, "gen")
from asmlib import *
NAME = "gated_mix__sliding_local_dilated__sliding_local_dilated__prompt"
KN = NAME + "_kernel"
OPT = dict(a.split("=") for a in sys.argv[1:])
STAMP = int(OPT.get("stamp", 0)); CM = int(OPT.get("cm", 1)); PK = int(OPT.get("pk", 1))
NS1 = int(OPT.get("ns1", 12)); RSLEEP = int(OPT.get("rsleep", 2)); OWAIT = int(OPT.get("owait", 2)); SB = int(OPT.get("sb", 4)); SA = int(OPT.get("sa", 2)); XP = OPT.get("xp", ""); R2 = int(OPT.get("r2", 1)); WNT = "nt " if int(OPT.get("wnt", 0)) else ""; XNT = "nt " if int(OPT.get("xnt", 0)) else ""; SNT = "nt " if int(OPT.get("snt", 0)) else ""; STG = int(OPT.get("stg", 2)); PP = OPT.get("pp", "1101010100").replace("-", ""); ROT = int(OPT.get("rot", 0 if PP else 1)); EP = 1; OSF = OPT.get("osf", "sc1").replace("+", " "); OF = OPT.get("of", "sc1").replace("+", " ").replace("-", ""); KS0 = OPT.get("ks0", "-A135A1355"); KS1 = OPT.get("ks1", "-35A135A13"); ET = int(OPT.get("et", 18)); UD = int(OPT.get("ud", 2)); U0 = int(OPT.get("u0", 2)); HA = int(OPT.get("ha", 1)); LS = int(OPT.get("ls", 1)); AL = int(OPT.get("al", 6)); HR = int(OPT.get("hr", 0)); LP = int(OPT.get("lp", 0)); KP = int(OPT.get("kp", 5)); STL = int(OPT.get("stl", 60)); TOV = 1; LPOS = int(OPT.get("lpos", 2)); COV = int(OPT.get("cov", 0)); SF = OPT.get("sf", "nt").replace("+", " "); PD = int(OPT.get("pd", 1))
def f2u(x): return struct.unpack("<I", struct.pack("<f", x))[0]
STAGE = 49152; XOFF = 30720
GW_LDS = 147456; TOK_LDS = GW_LDS + 1536; SCR_LDS = 149504; LDS_TOTAL = 163840
XCH = 126976
RED = 98304
OBLK = 2816; OTT = 16 * OBLK
WS_WOT = 0x700000; WS_G = 0x900000; WS_FW = 0x910000; WS_ST = 0x1000000
NEG = f2u(-1e30)
CEXP = f2u(20 ** -0.5 * math.log2(math.e))
LOG2E = f2u(math.log2(math.e))
MF = "v_mfma_f32_16x16x32_bf16"
SPIN_MAX = 1 << 17
SV = 255
def stamp(a, idx, real=False):
    if not STAMP: return
    a(f"{'s_memrealtime' if real else 's_memtime'} s[68:69]"); a("s_waitcnt lgkmcnt(0)"); a(f"v_writelane_b32 v{SV}, s68, {idx}")
SPIN = OPT.get("spin", "")
def ev(a, name):
    if SPIN == name: a("s_memrealtime s[96:97]"); a("s_waitcnt lgkmcnt(0)")
def stamp2(a, idx, ridx):
    stamp(a, idx); stamp(a, ridx, True)
def stamp0(a):
    if STAMP: a(f"v_mov_b32 v{SV}, 0"); a(f"v_writelane_b32 v{SV}, s66, 0"); a(f"v_writelane_b32 v{SV}, s68, 1")

a = Asm()
traces = []
def ids():
    a("""v_and_b32 v1, 63, v0
    s_and_b32 s20, s2, 3
    s_lshl_b32 s20, s20, 2
    s_bfe_u32 s46, s2, 0x20003
    s_add_u32 s20, s20, s46
    s_lshr_b32 s47, s2, 5
    s_and_b32 s21, s2, 4
    s_lshl_b32 s21, s21, 1
    s_add_u32 s21, s21, s47""")
def srd_ws_dbg():
    WSO = int(OPT.get("wso", 0)) << 20
    a(f"""s_add_u32 s32, s78, {WSO}
    s_addc_u32 s33, s79, 0
    s_mov_b32 s34, {0x10000000 - WSO}
    s_mov_b32 s35, 0x20000
    s_mov_b32 s40, s76
    s_mov_b32 s41, s77
    s_mov_b32 s42, 256
    s_mov_b32 s43, 0x20000""")
def consumer_ids():
    if CM:
        a("s_bfe_u32 s84, s2, 0x30003"); a("s_and_b32 s85, s2, 7"); a("s_lshl_b32 s85, s85, 2"); a("s_lshr_b32 s86, s2, 6"); a("s_add_u32 s85, s85, s86")
    else:
        a("s_and_b32 s84, s20, 7"); a("s_lshl_b32 s85, s21, 1"); a("s_lshr_b32 s86, s20, 3"); a("s_add_u32 s85, s85, s86")
def pf_setup(isw_scc_cmp, vdst, vt, soff, sstep, lblx, lble):
    a(f"""s_lshr_b32 s44, s2, 3
    {isw_scc_cmp}
    s_cbranch_scc0 {lblx}
    v_mul_u32_u24 v{vt}, 13108, v1
    v_lshrrev_b32 v{vt}, 16, v{vt}
    v_mul_u32_u24 v{vt}, 640, v{vt}
    v_lshl_add_u32 v{vdst}, v1, 7, v{vt}
    s_mul_i32 {soff}, s44, 15360
    s_and_b32 s45, s2, 1
    s_mul_i32 s45, s45, 640
    s_add_u32 {soff}, {soff}, s45
    s_mov_b32 {sstep}, 491520
    s_cmp_ge_u32 s20, 8
    s_cselect_b32 s88, s12, s6
    s_cselect_b32 s89, s13, s7
    s_mov_b32 s90, 2457600
    s_branch {lble}
    {lblx}:
    v_lshrrev_b32 v{vt}, 1, v1
    v_mul_u32_u24 v{vt}, 1280, v{vt}
    v_and_b32 v{vdst}, 1, v1
    v_lshl_add_u32 v{vdst}, v{vdst}, 7, v{vt}
    s_and_b32 s45, s2, 4
    s_lshl_b32 s45, s45, 3
    s_add_u32 s44, s44, s45
    s_mul_i32 {soff}, s44, 40960
    s_mov_b32 {sstep}, 256
    s_mov_b32 s88, s4
    s_mov_b32 s89, s5
    s_mov_b32 s90, 2621440
    {lble}:
    s_mov_b32 s91, 0x20000""")
def rotbit(dst):
    a(f"s_xor_b32 {dst}, s84, s85"); a(f"s_and_b32 {dst}, {dst}, {R2}")
a(f"{KN}:")
if STAMP: a("s_memrealtime s[66:67]"); a("s_memtime s[68:69]")
a("""v_readfirstlane_b32 s22, v0
s_load_dwordx8 s[4:11], s[0:1], 0
s_load_dwordx8 s[12:19], s[0:1], 32""")
if not STAMP: a("s_lshr_b32 s3, s2, 8"); a("s_cbranch_scc1 L_END")
a("""s_lshr_b32 s22, s22, 6
s_cmp_eq_u32 s22, 3
s_cbranch_scc1 L_HOP
s_cmp_lt_u32 s22, 4
s_cbranch_scc1 L_COMPUTE""")
ECP = int(OPT.get("ecp", 1))
a("v_and_b32 v1, 63, v0"); a("s_lshr_b32 s44, s2, 3")
if ECP:
    a(f"""s_cmp_lg_u32 s22, 6
    s_cbranch_scc1 L_E0
    s_getpc_b64 s[70:71]
    L_PC0:
    s_mul_i32 s45, s44, 6
    v_min_u32 v3, 5, v1
    v_add_lshl_u32 v3, v3, s45, 7""")
    if not STAMP: a("v_min_u32 v3, CODE_END - L_PC0 - 4, v3")
    a("global_load_dword v41, v3, s[70:71]"); a("L_E0:")
a("""v_mul_u32_u24 v3, 13108, v1
v_lshrrev_b32 v3, 16, v3
v_mul_u32_u24 v3, 640, v3
v_lshlrev_b32 v4, 7, v1
v_add_u32 v40, v4, v3
v_lshrrev_b32 v3, 1, v1
v_lshl_add_u32 v42, v3, 10, v4
s_mul_i32 s92, s44, 24
s_and_b32 s45, s2, 1
s_add_u32 s92, s92, s45
s_mulk_i32 s92, 640
s_and_b32 s45, s2, 4
s_lshl_b32 s45, s45, 3
s_add_u32 s44, s44, s45
s_mul_i32 s93, s44, 40960
s_mov_b32 s26, 2457600
s_mov_b32 s30, 2621440
s_mov_b32 s31, 0x20000
s_mov_b32 s27, s31
s_bitcmp1_b32 s2, 1
s_waitcnt lgkmcnt(0)
s_cselect_b64 s[24:25], s[12:13], s[6:7]
s_mov_b64 s[28:29], s[4:5]
""")
if PP[0] == "1":
    a("""s_cmp_lg_u32 s22, 4
s_cbranch_scc1 L_E1
buffer_load_dword v41, v42, s[28:31], s93 offen
L_E1:
s_cmp_lg_u32 s22, 5
s_cbranch_scc1 L_LD0
buffer_load_dword v41, v40, s[24:27], s92 offen
s_branch L_LD0
""")
else:
    a("""s_bfe_u32 s45, s22, 0x10001
    s_bitcmp1_b32 s22, 0
    s_cbranch_scc1 L_E1
    s_lshl_b32 s45, s45, 8
    s_add_u32 s45, s45, s93
    buffer_load_dword v41, v42, s[28:31], s45 offen
    s_branch L_LD0
    L_E1:
    s_mul_i32 s45, s45, 491520
    s_add_u32 s45, s45, s92
    buffer_load_dword v41, v40, s[24:27], s45 offen
    s_branch L_LD0""")
a(""".p2align 8
L_HOP:
s_branch L_COMPUTE
L_LD0:
s_setprio 2""")
stamp0(a); stamp(a, 3)
ids()
a("""v_lshrrev_b32 v3, 3, v1
v_mul_u32_u24 v3, 2560, v3
v_lshrrev_b32 v4, 4, v0
v_xor_b32 v4, v4, v1
v_xor_b32 v4, 4, v4
v_and_b32 v4, 7, v4
v_lshl_add_u32 v11, v4, 4, v3
s_and_b32 s64, s22, 3
s_lshr_b32 s44, s21, 1
s_or_b32 s45, s44, s64
s_cselect_b32 s52, -20480, 0
s_lshl_b32 s44, s44, 8
s_and_b32 s45, s21, 1
s_add_u32 s44, s44, s45
s_lshl_b32 s45, s64, 4
s_add_u32 s44, s44, s45
s_mul_i32 s47, s44, 1280
s_lshl_b32 s53, s64, 10
v_mul_u32_u24 v3, 6554, v1
v_lshrrev_b32 v3, 16, v3
v_mul_u32_u24 v4, 1120, v3
v_lshl_add_u32 v10, v1, 4, v4
s_and_b32 s46, s20, 7
s_mul_i32 s46, s46, 160
s_mul_i32 s44, s64, 61440
s_add_u32 s46, s46, s44
s_mul_i32 s48, s64, 7680
s_mov_b32 s49, 0
s_mov_b32 s50, 0
s_mov_b32 s87, 0
s_mov_b32 s86, 15""")
stamp(a, 2)
a("s_load_dwordx4 s[76:79], s[0:1], 64")
a("L_LD_ISSUE:")
a(f"s_add_u32 m0, s53, {XOFF + 1024}"); a("s_add_u32 s51, s47, s52"); a(f"buffer_load_dwordx4 v11, s[28:31], s51 offen {XNT}lds")
for qq in range(1, 4):
    a(f"s_add_u32 m0, s53, {XOFF + 1024 + 4096*qq}"); a(f"s_add_u32 s51, s47, {(64*qq-16)*1280}"); a(f"buffer_load_dwordx4 v11, s[28:31], s51 offen {XNT}lds")
a("s_mov_b32 exec_hi, 0x0fffffff")
for qq in range(8):
    if str(qq) in KS0 + KS1:
        a(f"s_cmp_eq_u32 s86, {qq}"); a(f"s_cbranch_scc1 L_HK{qq}"); a(f"L_HR{qq}:")
    r = 2 * qq; k = (r & 0x33) | ((r & 4) << 1) | ((r & 8) >> 1)
    a(f"s_add_u32 m0, s48, {960*qq}"); a(f"s_add_u32 s51, s46, {k*3840}"); a(f"buffer_load_dwordx4 v10, s[24:27], s51 offen {WNT}lds")
a("s_mov_b32 exec_hi, -1")
a("s_cmp_lg_u32 s64, 0"); a("s_cbranch_scc1 L_LD_W")
a(f"s_add_u32 m0, s53, {XOFF + 1024 + 4096*4}"); a(f"s_add_u32 s51, s47, {(64*4-16)*1280}"); a(f"buffer_load_dwordx4 v11, s[28:31], s51 offen {XNT}lds")
a("L_LD_W:")
a(f"""s_mov_b32 s63, {STAGE}
s_add_u32 s46, s46, 245760
s_add_u32 s47, s47, 128
s_add_u32 s49, s49, 1
s_cmp_eq_u32 s49, 3
s_cselect_b32 s51, {(-2*STAGE) & 0xffffffff}, s63
s_cselect_b32 s49, 0, s49
s_add_u32 s48, s48, s51
s_add_u32 s53, s53, s51
s_add_u32 s50, s50, 1""")
def lstamp(base):
    if STAMP == 1: a("s_memtime s[68:69]"); a("s_waitcnt lgkmcnt(0)"); a(f"s_add_u32 m0, s50, {base}"); a(f"v_writelane_b32 v{SV}, s68, m0")
lstamp(9)
a(f"""s_cmp_lt_u32 s50, 2
s_cbranch_scc1 L_LD_PRE0
L_DISP:
s_cmp_eq_u32 s50, s96
s_cbranch_scc1 L_SIDE_A
L_SA_RET:
s_cmp_eq_u32 s50, s97
s_cbranch_scc1 L_TOK_A
s_cmp_eq_u32 s50, s98
s_cbranch_scc1 L_TOK_B
s_cmp_eq_u32 s50, {10 if LP else 9}
s_cbranch_scc1 L_WOF_A
s_cmp_eq_u32 s50, 10
s_cbranch_scc1 L_WOF_B""")
a("L_LD_WAIT:")
a("L_LD_BAR:")
a("L_LD_PRE:")
a("s_bitcmp1_b32 s94, s50"); a("s_cbranch_scc0 L_LD_TOP")
a(f"s_add_u32 s87, s87, {STG}")
PW = int(OPT.get("pw", 6))
if PW < 60: a(f"s_waitcnt vmcnt({PW})")
a("s_cmp_eq_u32 s64, 0"); a("s_cbranch_scc1 L_PFX")
for n in range(STG):
    a("buffer_load_dword v41, v40, s[24:27], s92 offen"); a(f"s_add_u32 s92, s92, {15360 if n < STG-1 else STG*491520 - (STG-1)*15360}")
a("s_branch L_LD_TOP")
a("L_PFX:")
for n in range(STG):
    a("buffer_load_dword v41, v42, s[28:31], s93 offen"); a(f"s_add_u32 s93, s93, {40960 if n < STG-1 else (STG*256 - (STG-1)*40960) & 0xffffffff}")
a("s_branch L_LD_TOP")
a("L_LD_TOP:")
a("s_and_b32 s86, s100, 15"); a("s_lshr_b64 s[100:101], s[100:101], 4")
a("s_cmp_lg_u32 s86, 10"); a("s_cbranch_scc1 L_LD_ISSUE")
ES = (1, 2, 3, 6, 9 if int(OPT.get('pt', 0)) else 8)
def hook(nm, base, ret):
    for e_ in ES: a(f"s_cmp_eq_u32 s87, {e_}"); a(f"s_cbranch_scc1 L_H{nm}_{e_}")
    a(f"s_waitcnt vmcnt({base})")
    a(f"L_H{nm}_B:")
    if STAMP == 1: a("s_memtime s[68:69]"); a("s_waitcnt lgkmcnt(0)"); a(f"s_add_u32 m0, s50, 19"); a(f"v_writelane_b32 v{SV}, s68, m0")
    a("s_barrier")
    if STAMP == 1: a("s_memrealtime s[68:69]"); a("s_waitcnt lgkmcnt(0)"); a(f"s_add_u32 m0, s50, 39"); a(f"v_writelane_b32 v{SV}, s68, m0")
    a("s_mov_b32 s87, 0"); a(f"s_branch {ret}")
    for e_ in ES: a(f"L_H{nm}_{e_}:"); a(f"s_waitcnt vmcnt({base + e_})"); a(f"s_branch L_H{nm}_B")
hook("A", 0, "L_LD_ISSUE")
for qq in range(8):
    if str(qq) in KS0 + KS1: a(f"L_HK{qq}:"); hook(str(qq), 4 + qq, f"L_HR{qq}")
a("L_LD_PRE0:")
a("v_lshlrev_b32 v12, 4, v1"); a("v_mov_b32 v13, 0")
pos = [c for c in range(1, 10) if PP[c] != "0"]
if STG > 1: a(f"s_bfe_u32 s45, s2, 0x{(STG.bit_length()-1):x}0003")
else: a("s_mov_b32 s45, 0")
a(f"s_mul_i32 s44, s45, {491520 - 15360}"); a("s_add_u32 s92, s92, s44"); a(f"s_add_u32 s92, s92, {491520*int(PP[0])}")
a(f"s_mul_i32 s44, s45, {40960 - 256}"); a("s_sub_u32 s93, s93, s44"); a(f"s_add_u32 s93, s93, {256*int(PP[0])}")
a("s_mov_b32 s94, 0")
for g_ in range(STG):
    mask = sum(1 << c for k, c in enumerate(pos) if k % STG == g_)
    a(f"s_cmp_eq_u32 s45, {g_}"); a(f"s_cselect_b32 s94, {mask}, s94")
a("s_cmp_ge_u32 s64, 2"); a("s_cselect_b32 s94, 0, s94")
a("s_waitcnt lgkmcnt(0)")
SA0 = int(OPT.get("sa0", SA)); SB0 = int(OPT.get("sb0", SB))
a("s_bitcmp1_b32 s2, 3"); a(f"s_cselect_b32 s96, {SA}, {SA0}"); a(f"s_cselect_b32 s97, {SB}, {SB0}")
a("s_add_u32 s98, s97, 2")
def pk(ks): return sum(int(c, 16) << (4 * i) for i, c in enumerate(ks[1:]))
assert STG == 2 and len(KS0) == 10 and len(KS1) == 10
a(f"s_mov_b32 s100, {pk(KS0) & 0xffffffff}"); a(f"s_mov_b32 s101, {pk(KS0) >> 32}")
a("s_bitcmp1_b32 s2, 3"); a(f"s_cselect_b32 s100, {pk(KS1) & 0xffffffff}, s100"); a(f"s_cselect_b32 s101, {pk(KS1) >> 32}, s101")
a("s_branch L_DISP")
a("L_SIDE_A:")
if int(OPT.get("u2", 1)):
    a("""s_mov_b32 s56, 0
    s_cmp_lt_u32 s64, 2
    s_cbranch_scc1 L_SA_RET
    s_mov_b32 s57, s2
    s_cmp_eq_u32 s64, 2
    s_cbranch_scc1 L_SA_GO
    s_bitcmp""" + ("1" if OPT.get("u2", "2") == "2" else "0") + """_b32 s2, 3
    s_cbranch_scc1 L_SA_RET
    s_lshr_b32 s44, s2, 4
    s_sub_u32 s44, s44, 4
    s_cmp_ge_u32 s44, 8
    s_cbranch_scc1 L_SA_RET
    s_lshl_b32 s44, s44, 3
    s_and_b32 s57, s2, 7
    s_add_u32 s57, s57, s44
    s_add_u32 s57, s57, 256
    L_SA_GO:""")
else:
    a("""s_mov_b32 s56, 0
    s_sub_u32 s44, s64, 2
    s_lshl_b32 s57, s44, 8
    s_add_u32 s57, s57, s2
    s_cmp_ge_u32 s57, 320
    s_cbranch_scc1 L_SA_RET""")
a("""s_mov_b32 s56, 1
s_mov_b32 s39, 0x20000
s_and_b32 s45, s57, 7
s_lshr_b32 s44, s57, 3
s_mul_i32 s58, s44, 52
s_lshr_b32 s58, s58, 8
s_mul_i32 s59, s58, 5
s_sub_u32 s59, s44, s59
s_cmp_ge_u32 s58, 4
s_cselect_b32 s36, s14, s8
s_cselect_b32 s37, s15, s9
s_mov_b32 s38, 819200
s_and_b32 s58, s58, 3
s_mul_i32 s58, s58, 160
s_mul_i32 s60, s59, 40
s_cmp_eq_u32 s59, 4
s_cselect_b32 s60, 16, s60
s_cselect_b32 s54, 80, 20
s_cselect_b32 s55, 20, 4
s_add_u32 s58, s58, s60
s_mul_i32 s58, s58, 1280
s_mul_i32 s60, s45, 160
s_add_u32 s58, s58, s60
s_mul_i32 s54, s54, 1280
s_mul_i32 s55, s55, 1280""")
a(f"s_mul_i32 s62, s64, 5120"); a(f"s_add_u32 s62, s62, {SCR_LDS - 10240}")
a("s_mov_b32 exec_hi, 0xff")
for g in range(4):
    for jh in range(2):
        a(f"s_add_u32 m0, s62, {(16*(g>>1) + 8*jh + 4*(g&1))*160}")
        if jh == 0: a("s_add_u32 s51, s58, s54"); a(f"buffer_load_dwordx4 v10, s[36:39], s58 offen {SNT}lds")
        else: a("s_add_u32 s58, s58, s55"); a(f"buffer_load_dwordx4 v10, s[36:39], s51 offen {SNT}lds")
a("s_mov_b32 exec_hi, -1")
a(f"""s_mul_i32 s61, s45, 204800
s_mul_i32 s58, s44, 5120
s_add_u32 s61, s61, s58
s_add_u32 s61, s61, {WS_WOT}
""")
if int(OPT.get("pt", 0)):
    srd_ws_dbg()
    a("v_lshlrev_b32 v16, 7, v1"); a("s_mov_b32 exec_hi, 0xff")
    a("buffer_load_dword v17, v16, s[32:35], s61 offen"); a("s_mov_b32 exec_hi, -1")
    a("s_mov_b32 s87, 9"); a("s_branch L_LD_BAR")
else: a("s_mov_b32 s87, 8"); a("s_branch L_LD_BAR")
a("L_SIDE_B:")
assert SB >= SA + 2
a("""v_lshrrev_b32 v16, 5, v1
v_lshlrev_b32 v16, 4, v16
v_bfe_u32 v17, v1, 4, 1
v_lshl_add_u32 v16, v17, 2, v16
v_bfe_u32 v17, v1, 2, 2
v_add_u32 v16, v16, v17
v_mul_u32_u24 v16, 160, v16
v_add_u32 v16, s62, v16
v_and_b32 v17, 3, v1
v_lshl_add_u32 v18, v17, 4, v16
v_lshl_add_u32 v19, v17, 3, v16""")
for T in range(5):
    for j in range(2):
        if T < 4: a(f"ds_read_b64_tr_b16 v[{20+4*T+2*j}:{21+4*T+2*j}], v18 offset:{j*1280 + 64*(T>>1) + 8*(T&1)}")
        else: a(f"ds_read_b64_tr_b16 v[{20+4*T+2*j}:{21+4*T+2*j}], v19 offset:{j*1280 + 128}")
a("s_waitcnt lgkmcnt(0)")
for T in range(4): a(f"buffer_store_dwordx4 v[{20+4*T}:{23+4*T}], v12, s[32:35], s61 offen offset:{1024*T} sc1")
a("s_add_u32 s61, s61, 4096")
a(f"buffer_store_dwordx4 v[36:39], v12, s[32:35], s61 offen sc1")
a("s_mov_b32 s87, 6"); a("s_branch L_LD_BAR")
a("L_TOK_A:")
srd_ws_dbg()
a("""v_lshlrev_b32 v12, 4, v1
v_mov_b32 v13, 0
s_mov_b64 exec, 1
buffer_load_dword v15, v13, s[40:43], 0 offen sc1
s_mov_b64 exec, -1
s_cmp_lg_u32 s56, 0
s_cbranch_scc1 L_SIDE_B
s_mov_b32 s87, 1
s_branch L_LD_BAR""")
a("L_TOK_B:")
srd_ws_dbg()
a(f"""s_mov_b32 s60, 0
v_mov_b32 v13, 0
L_TOK_CHK:
v_readlane_b32 s75, v15, 0
s_add_u32 s60, s60, 1
s_cmp_lg_u32 s75, 0
s_cbranch_scc1 L_TOK_OK
s_cmp_ge_u32 s60, {SPIN_MAX}
s_cbranch_scc1 L_TOK_OK
s_sleep 4
s_mov_b64 exec, 1
buffer_load_dword v15, v13, s[40:43], 0 offen sc1
s_mov_b64 exec, -1
s_waitcnt vmcnt(0)
s_branch L_TOK_CHK
L_TOK_OK:
v_mov_b32 v14, {TOK_LDS}
v_mov_b32 v15, s75
ds_write_b32 v14, v15
s_cmp_eq_u32 s56, 0
s_waitcnt lgkmcnt(0)
s_cbranch_scc1 L_LD_WAIT
s_and_b32 s45, s57, 7
s_lshl_b32 s45, s45, 13
s_lshr_b32 s44, s57, 3
s_lshl_b32 s44, s44, 7
s_add_u32 s45, s45, s44
s_add_u32 s45, s45, {WS_FW}
v_lshlrev_b32 v13, 2, v1
s_mov_b32 exec_hi, 0
buffer_store_dword v15, v13, s[32:35], s45 offen sc1
s_mov_b32 exec_hi, -1
s_mov_b32 s87, 1
s_branch L_LD_BAR""")
a("L_WOF_A:")
srd_ws_dbg()
consumer_ids()
a(f"""s_lshl_b32 s59, s84, 13
s_add_u32 s59, s59, {WS_FW}
s_lshr_b32 s44, s64, 1
s_mul_i32 s44, s44, 2560
s_add_u32 s59, s59, s44
v_lshlrev_b32 v13, 7, v1
v_lshlrev_b32 v12, 4, v1
s_mov_b64 exec, 0xfffff
buffer_load_dword v14, v13, s[32:35], s59 offen sc1
s_mov_b64 exec, -1""")
if LP: a("s_waitcnt vmcnt(1)"); a("s_barrier")
else: a("s_mov_b32 s87, 1"); a("s_branch L_LD_BAR")
a("L_WOF_B:")
srd_ws_dbg()
a("""v_lshlrev_b32 v12, 4, v1
v_lshlrev_b32 v13, 7, v1
s_mov_b64 exec, 0xfffff
s_mov_b32 s60, 0""")
a(f"s_waitcnt vmcnt({0 if LP else 12})")
a(f"""L_WO_POLL:
v_cmp_ne_u32 vcc, s75, v14
s_cbranch_vccz L_WO_OK
s_add_u32 s60, s60, 1
s_cmp_ge_u32 s60, {SPIN_MAX}
s_cbranch_scc1 L_WO_OK
s_sleep 4
buffer_load_dword v14, v13, s[32:35], s59 offen sc1
s_waitcnt vmcnt(0)
s_branch L_WO_POLL
L_WO_OK:
s_mov_b64 exec, -1
s_setprio 0""")
stamp(a, 29)
CL = {"S1": (0, 24, 49152, 24576), "S2": (24, 14, 98304, 14336), "S0": (38, 24, 0, 24576), "TOP": (62, 6, 151552, 6144), "TB": (68, 2, 147456, 2048),
      "R1": (70, 24, 49152, 24576), "R2": (94, 6, 98304, 14336)}
a(f"""s_mul_i32 s58, s84, 204800
s_add_u32 s58, s58, {WS_WOT}
s_lshr_b32 s44, s64, 1
s_and_b32 s45, s64, 1
s_lshl_b32 s45, s45, 10
s_mul_i32 s59, s44, 102400
s_add_u32 s59, s59, s58
s_add_u32 s59, s59, s45""")
rotbit("s54"); a("s_mul_i32 s54, s54, 51200"); a("s_sub_u32 s55, s59, s54"); a("s_add_u32 s59, s59, s54")
def dma_class(nm, lo=0, hi=None):
    l0, n, base, delta = CL[nm]
    a(f"s_mul_i32 s53, s44, {delta}"); a("s_add_u32 s53, s53, s45")
    for j in range(lo, n if hi is None else hi, 2):
        a(f"s_add_u32 m0, s53, {base + j*1024}"); a(f"s_add_u32 s51, {'s59' if l0 + j < 50 else 's55'}, {(l0 + j)*1024}")
        a(f"buffer_load_dwordx4 v12, s[32:35], s51 offen sc1 lds")
dma_class("S1", 0, NS1)
if not LP: a(f"s_waitcnt vmcnt({NS1//2})"); a("s_barrier")
dma_class("S1", NS1); dma_class("S2"); dma_class("TOP")
a("s_waitcnt vmcnt(7)")
stamp(a, 30)
a("s_barrier")
dma_class("S0"); dma_class("TB")
TOK = 253
a(f"v_mov_b32 v{TOK}, s75")
a("s_branch L_P2_PRE")
a("L_COMPUTE:")
a("s_load_dwordx4 s[76:79], s[0:1], 64")
ev(a, "start")
a(f"s_setprio {OPT.get('cprio', 3)}")
ids()
a("""s_mov_b32 s39, 0x20000
s_mov_b32 s56, 0
s_cmp_eq_u32 s22, 3
s_cbranch_scc1 L_C_GW
s_cmp_eq_u32 s22, 2
s_cbranch_scc1 L_C_TOK""")
if int(OPT.get("wpe", 0)):
    a("""s_cmp_eq_u32 s22, 1
    s_cselect_b32 s36, s14, s8
    s_cselect_b32 s37, s15, s9
    s_mov_b32 s38, 819200
    v_lshlrev_b32 v140, 7, v1
    v_lshrrev_b32 v141, 1, v1
    v_lshl_add_u32 v140, v141, 10, v140
    s_lshr_b32 s44, s2, 3
    s_mul_i32 s44, s44, 25600
    s_and_b32 s45, s2, 7
    s_mul_i32 s45, s45, 160
    s_add_u32 s44, s44, s45
    s_mov_b32 exec_hi, 0xff
    buffer_load_dword v241, v140, s[36:39], s44 offen
    s_mov_b32 exec_hi, -1""")
a("s_branch L_C_SETUP")
a("L_C_GW:")
a(f"""s_waitcnt lgkmcnt(0)
s_mov_b32 s36, s16
s_mov_b32 s37, s17
s_mov_b32 s38, 1280
v_lshlrev_b32 v140, 4, v1
s_mov_b32 m0, {GW_LDS}
v_mov_b64 v[144:145], 0
buffer_load_dwordx4 v140, s[36:39], 0 offen lds
buffer_load_dwordx4 v140, s[36:39], 0 offen offset:1024 lds
v_mov_b64 v[146:147], 0
ds_write_b128 v140, v[144:147] offset:{XOFF}
v_add_u32 v140, {STAGE}, v140
ds_write_b128 v140, v[144:147] offset:{XOFF}
v_add_u32 v140, {STAGE}, v140
ds_write_b128 v140, v[144:147] offset:{XOFF}
s_branch L_C_SETUP""")
a("L_C_TOK:")
a("""s_cmp_lg_u32 s2, 0
s_cbranch_scc1 L_C_CPF
s_memrealtime s[44:45]
v_mov_b32 v147, 0
s_waitcnt lgkmcnt(0)""")
srd_ws_dbg()
a("""s_or_b32 s44, s44, 1
v_mov_b32 v146, s44
s_mov_b64 exec, 1
buffer_atomic_cmpswap v[146:147], v147, s[40:43], 0 offen sc1
s_mov_b64 exec, -1
L_C_CPF:
s_getpc_b64 s[70:71]
L_PC:
s_sub_u32 s70, s70, L_PC - L_SIDE_B
s_subb_u32 s71, s71, 0
""")
if ECP: pass
elif int(OPT.get("ccp", 1)):
    a(f"""s_lshr_b32 s44, s2, 3
    s_mul_i32 s44, s44, 6
    v_min_u32 v140, 5, v1
    v_add_lshl_u32 v140, v140, s44, 7
    v_min_u32 v140, CODE_END - L_SIDE_B - 4, v140
    global_load_dword v241, v140, s[70:71]""")
else:
    a("""v_lshlrev_b32 v140, 7, v1
v_add_u32 v141, 8192, v140
v_add_u32 v142, 16384, v140
v_min_u32 v140, CODE_END - L_SIDE_B - 4, v140
v_min_u32 v141, CODE_END - L_SIDE_B - 4, v141
v_min_u32 v142, CODE_END - L_SIDE_B - 4, v142
global_load_dword v241, v140, s[70:71]
global_load_dword v241, v141, s[70:71]
global_load_dword v241, v142, s[70:71]""")
a("L_C_SETUP:")
if COV == 2:
    a("s_cmp_eq_u32 s56, 0"); a("s_cbranch_scc1 L_C_S2")
    a("buffer_load_dword v241, v252, s[36:39], s57 offen")
    a("L_C_S2:")
VWA, VWB, VX0, VX1, VGX0, VGX1, VGW = 2, 3, 4, 5, 6, 7, 240
ACCQ, ACCK, ACCV, ACCH = 8, 48, 88, 128
RING, XB, GX = 140, 180, 204
MC, MP, MP0, AM, ONES = 220, 224, 228, 232, 236
def acc(seg, t, T): return (ACCQ, ACCK, ACCV)[seg] + t * 20 + T * 4
a("s_setprio 0")
a(f"""v_lshrrev_b32 v140, 4, v1
v_and_b32 v141, 15, v1
v_lshrrev_b32 v142, 5, v1
v_lshlrev_b32 v142, 4, v142
v_and_b32 v143, 1, v140
v_lshl_add_u32 v142, v143, 2, v142
v_lshrrev_b32 v143, 2, v141
v_add_u32 v142, v142, v143
v_mul_u32_u24 v145, 480, v142
v_and_b32 v143, 3, v141
v_lshl_add_u32 v{VWA}, v143, 3, v145
v_mul_u32_u24 v144, 40, v143
v_add3_u32 v{VWB}, v145, v144, 32
v_lshrrev_b32 v144, 1, v141
v_xor_b32 v144, v144, v140
v_lshlrev_b32 v144, 4, v144
v_lshl_add_u32 v{VX0}, v141, 7, v144
v_xor_b32 v{VX1}, 64, v{VX0}
s_and_b32 s44, s20, 7
s_lshl_b32 s44, s44, 11
v_add_u32 v{VGX0}, s44, v{VX0}
v_add_u32 v{VGX1}, s44, v{VX1}
v_lshlrev_b32 v{VGW}, 4, v140
v_add_u32 v{VGW}, {GW_LDS}, v{VGW}""")
a(f"s_mov_b32 s44, {NEG}")
a(f"v_mov_b32 v146, s44")
a("s_lshr_b32 s45, s21, 1"); a("s_or_b32 s45, s45, s22")
a("v_lshlrev_b32 v145, 2, v140"); a("v_sub_u32 v145, v141, v145")
for r in range(4): a(f"v_subrev_u32 v{150+r}, {r}, v145")
for r in range(4):
    a(f"v_cmp_gt_u32 vcc, 8, v{150+r}"); a(f"v_cmp_gt_i32 s[72:73], -8, v{150+r}")
    a(f"v_mov_b32 v{ONES+r}, 0x3f803f80")
    a(f"v_cndmask_b32 v{MC+r}, v146, 0, vcc"); a(f"v_cndmask_b32 v{MP+r}, v146, 0, s[72:73]")
a("s_cmp_eq_u32 s45, 0"); a("s_cselect_b64 vcc, -1, 0")
for r in range(4): a(f"v_cndmask_b32 v{MP0+r}, v{MP+r}, v146, vcc")
a("s_mov_b32 s44, 0xffff0000")
for h in range(2):
    a(f"v_ashrrev_i32 v154, 31, v{150+2*h}"); a(f"v_ashrrev_i32 v155, 31, v{151+2*h}")
    a(f"v_bfi_b32 v{AM+h}, s44, v155, v154"); a(f"v_not_b32 v{AM+2+h}, v{AM+h}")
a(f"""s_mov_b64 s[48:49], 0xffff
s_mov_b32 s50, 0xffff0000
s_mov_b32 s51, 0
s_mov_b32 s52, 0
s_mov_b32 s53, 0xffff
s_mov_b32 s54, 0
s_mov_b32 s55, 0xffff0000
s_mov_b32 s63, {STAGE}
s_mov_b32 s74, 128
s_mov_b32 s92, {CEXP}
s_mov_b32 s93, {CEXP}
s_lshl_b32 s94, s21, 3
s_lshl_b32 s95, s22, 1
s_add_u32 s94, s94, s95
s_mul_i32 s94, s94, {OTT}
s_mul_i32 s95, s20, {OBLK}
s_add_u32 s94, s94, s95
s_add_u32 s95, s94, {OTT}""")
for r in range(ACCQ, ACCH + 12, 2): a(f"v_mov_b64 v[{r}:{r+1}], 0")
a("s_waitcnt vmcnt(0) lgkmcnt(0)")
stamp0(a)
srd_ws_dbg()
stamp(a, 4)
if COV in (1, 3):
    a("s_cmp_eq_u32 s56, 0"); a("s_cbranch_scc1 L_C_GO")
    if COV == 3: a("s_setprio 3")
    a("buffer_load_dword v241, v252, s[36:39], s57 offen")
a("s_setprio 0")
a("L_C_GO:")
a("""s_mov_b32 s44, 0
s_mov_b32 s45, 0""")
for w in range(1, 4):
    a(f"s_cmp_eq_u32 s22, {w}"); a(f"s_cbranch_scc1 L_W{w}")
KOP = {1: 140, 0: 156, -1: 204}
VOP = 172; QOP = {1: 68, 0: 108}
def kop(t, h): return KOP[t] + 4 * h
def vop(T, t): return VOP + 6 * T + 2 * (t + 1)
def qop(t, h): return QOP[t] + 4 * h
def cv2(d, s): return [f"v_cvt_pk_bf16_f32 v{d}, v{s}, v{s+1}", f"v_cvt_pk_bf16_f32 v{d+1}, v{s+2}, v{s+3}"]
HALO = [[(1,0),(1,1),(1,2)], [(1,3),(1,4),(2,0)], [(2,1),(2,2)], [(2,3),(2,4)]] if OPT.get('hal') == '0' else [[(1,0),(1,2),(2,0)], [(1,1),(1,3),(2,1)], [(1,4),(2,2),(2,3)], [(2,4)]]
D = 5
def istep(f): return f - 5 if f <= 14 else (f - 6 if f <= 21 else f - 7)
for w in range(4):
    gate = (w == 3)
    q = []
    def rdW(f):
        ks, seg, T = f // 15, (f % 15) // 5, f % 5
        d = RING + (f % 10) * 4
        if "nods" in XP: return [("s_nop 0", ("W", f))] * 2
        if "ds9" in XP and T in (1, 3):
            if seg < 2 and T == 1: return [(f"ds_read_b128 v[{d}:{d+3}], v{(VX0, VX1)[ks]} offset:{XOFF + 4096}", ("W", f))]
            return []
        return [(f"ds_read_b64_tr_b16 v[{d+2*j}:{d+2*j+1}], v{VWA if T < 4 else VWB} offset:{seg*160 + ks*15360 + j*3840 + (40*T if T < 4 else 0)}", ("W", f)) for j in range(2)]
    def rdX(ks):
        o = []
        for n, tile in enumerate((1 + 2 * w, 2 + 2 * w, 0)):
            d = XB + (ks * 3 + n) * 4
            o.append((f"ds_read_b128 v[{d}:{d+3}], v{(VX0, VX1)[ks]} offset:{XOFF + tile*2048}", ("X", ks)))
        if gate:
            d = GX + ks * 8
            o.append((f"ds_read_b128 v[{d}:{d+3}], v{(VGX0, VGX1)[ks]} offset:{XOFF + 2048}", ("X", ks)))
            o.append((f"ds_read_b128 v[{d+4}:{d+7}], v{VGW} offset:{ks*64}", ("X", ks)))
        return o
    def wait(b, tags):
        if not any(t in tags for t in q): return
        last = max(i for i, t in enumerate(q) if t in tags)
        b(f"s_waitcnt lgkmcnt({min(len(q) - 1 - last, 15)})")
    def mm(f):
        ks, seg, T = f // 15, (f % 15) // 5, f % 5
        wf = vr(RING + (f % 10) * 4); o = []
        def one(dst, xf):
            o.append(f"{MF} {vr(dst)}, {wf}, {xf}, {vr(dst)}" if seg < 2 else f"{MF} {vr(dst)}, {xf}, {wf}, {vr(dst)}")
        one(acc(seg, 0, T), vr(XB + (ks * 3) * 4)); one(acc(seg, 1, T), vr(XB + (ks * 3 + 1) * 4))
        if (seg, T) in HALO[w]: one(ACCH + 4 * HALO[w].index((seg, T)), vr(XB + (ks * 3 + 2) * 4))
        if gate and seg == 0 and T == 2:
            d = GX + ks * 8
            o.append(f"{MF} {vr(ACCH+8)}, {vr(d+4)}, {vr(d)}, {vr(ACCH+8)}")
        return o
    def weave(b, ms, fs, lastless=True):
        n = len(ms)
        if OPT.get("wv", "1") == "1":
            ds = [t for t in fs if t[1] is not None]; ot = [t for t in fs if t[1] is None]
            per = [[] for _ in range(n)]
            cnt = [0] * n
            for i in range(len(ds)): cnt[i % n] += 1
            it = iter(ds)
            for j in range(n):
                for _ in range(cnt[j]): per[j].append(next(it))
            lo = 0
            for t in ot:
                load = [len(per[j]) + (1 if (lastless and j == n - 1) else 0) for j in range(n)]
                j = min(range(lo, n), key=lambda k: load[k]); lo = j
                per[j].append(t)
            for m_, p_ in zip(ms, per):
                b(m_)
                for t in p_:
                    b(t[0])
                    if t[1] is not None: q.append(t[1])
            return
        k = len(fs)
        cnt = [0] * n
        for i in range(k):
            load = [cnt[j] + (1 if (lastless and j == n - 1) else 0) for j in range(n)]
            cnt[load.index(min(load))] += 1
        it = iter(fs)
        for m_, c_ in zip(ms, cnt):
            b(m_)
            for _ in range(c_):
                t = next(it)
                b(t[0])
                if t[1] is not None: q.append(t[1])
    FA = {s: [] for s in range(25, 30)}
    x0 = rdX(0)
    FA[25] = x0[:2] + rdW(0); FA[26] = x0[2:4] + rdW(1); FA[27] = x0[4:] + rdW(2); FA[28] = rdW(3); FA[29] = rdW(4)
    FB = {s: [] for s in range(25)}
    for f in range(D, 30): FB[istep(f)] += rdW(f)
    x1 = rdX(1)
    for i, t in enumerate(x1): FB[2 + i].append(t)
    sal = ["s_add_u32 s45, s45, 1", "s_cmp_eq_u32 s45, 3", f"s_cselect_b32 s46, {(-2*STAGE) & 0xffffffff}, s63", "s_cselect_b32 s45, 0, s45"]
    for i, t in enumerate(sal): FB[10 + i].append((t, None))
    if gate:
        FB[20].append((f"v_add_u32 v{VGW}, s74, v{VGW}", None))
        FB[21].append((f"v_add_u32 v{VGX0}, s46, v{VGX0}", None)); FB[22].append((f"v_add_u32 v{VGX1}, s46, v{VGX1}", None))
    FB[20].append((f"v_add_u32 v{VX0}, s46, v{VX0}", None)) if not gate else FB[14].append((f"v_add_u32 v{VX0}, s46, v{VX0}", None))
    FB[23] += [(f"v_add_u32 v{VX1}, s46, v{VX1}", None), (f"v_add_u32 v{VWA}, s46, v{VWA}", None), (f"v_add_u32 v{VWB}, s46, v{VWB}", None)]
    FB[24] += [("s_add_u32 s44, s44, 1", None), ("s_cmp_eq_u32 s44, 10", None)]
    pre = Asm(); pa = Asm(); pb = Asm(); tail = Asm()
    stamp(pre, 5)
    pre("s_barrier")
    if STAMP: stamp2(pre, 6, 50)
    ev(pre, "b0")
    for s in range(25, 30):
        for t in FA[s]: pre(t[0])
    q.clear()
    if not LS: pa("s_waitcnt lgkmcnt(0)")
    pa("s_barrier")
    for s in range(25, 30): weave(pa, mm(s), FA[s], lastless=(s == 29))
    if LS: pre(f"s_branch L_LB{w}")
    else: pa(f"s_branch L_LB{w}")
    for s in range(25):
        tags = [("W", s)] + ([("X", 0)] if s == 0 else []) + ([("X", 1)] if s == 15 else [])
        wait(pb, tags); weave(pb, mm(s), FB[s])
    if LS: pb("s_waitcnt lgkmcnt(0)"); pb(f"s_cbranch_scc0 L_LA{w}")
    else: pb(f"s_cbranch_scc1 L_T{w}")
    tail(f"v_mov_b32 v{TOK}, {TOK_LDS}")
    tail("s_waitcnt lgkmcnt(0)")
    tail(f"ds_read_b32 v{TOK}, v{TOK}")
    tm = [m_ for s in range(25, 30) for m_ in mm(s)]
    fl = [f"v_lshlrev_b32 v{VWA}, 3, v1", f"v_add_u32 v{VX1}, {XCH}, v{VWA}"]
    if TOV:
        fl += [f"v_add_u32 v{VWB}, {XCH + 5120*w}, v{VWA}", f"v_add_u32 v{VX0}, {XCH + 5120*(w+1)}, v{VWA}"]
        for h in (0, 1, 2, 3, 4):
            d = 140 + 4 * h if h < 4 else 142; sr = acc(1, 1, h)
            fl += [f"v_cvt_pk_bf16_f32 v{d}, v{sr}, v{sr+1}", f"v_cvt_pk_bf16_f32 v{d+1}, v{sr+2}, v{sr+3}"]
            if w < 3: fl.append(f"ds_write_b64 v{VX0}, v[{d}:{d+1}] offset:{h*512}")
        for h in (1, 2, 3):
            d = 142 + 4 * h; sr = acc(1, 1, 4)
            fl += [f"v_cvt_pk_bf16_f32 v{d}, v{sr}, v{sr+1}", f"v_cvt_pk_bf16_f32 v{d+1}, v{sr+2}, v{sr+3}"]
    for n_, m_ in enumerate(tm):
        tail(m_)
        for x in fl[2*n_:2*n_+2]: tail(x)
    for x in fl[2*len(tm):]: tail(x)
    if gate:
        z = ACCH + 8
        tail(f"""v_cvt_pk_bf16_f32 v248, v{z}, v{z}
        v_and_b32 v248, 0xffff0000, v248
        v_mul_f32 v248, {LOG2E ^ 0x80000000}, v248
        v_exp_f32 v248, v248
        s_lshl_b32 s46, s21, 3
        v_add_f32 v248, 1.0, v248
        v_rcp_f32 v248, v248
        s_add_u32 s46, s46, s20
        v_cvt_pk_bf16_f32 v248, v248, v248
        v_and_b32 v248, 0xffff0000, v248
        s_lshl_b32 s46, s46, 7
        s_add_u32 s46, s46, {WS_G}
        s_waitcnt lgkmcnt(0)
        v_sub_u32 v249, v{TOK}, v248""")
    snd = []
    for n, (seg, T) in enumerate(HALO[w]):
        snd.append(cv2(242 + 2*n, ACCH + 4*n) + [f"ds_write_b64 v{VX1}, v[{242+2*n}:{243+2*n}] offset:{((seg-1)*5+T)*512}"])
    for T in range(5):
        snd.append(cv2(vop(T, 1), acc(2, 1, T)) + ([f"ds_write_b64 v{VX0}, v[{vop(T,1)}:{vop(T,1)+1}] offset:{(5+T)*512}"] if w < 3 else []))
    nh = len(HALO[w])
    if w >= 2: snd = snd[nh:] + snd[:nh]
    rest = ["s_setprio 2"] + cv2(250, acc(0, 1, 4))
    for h in range(4): rest += cv2(qop(1, h), acc(0, 1, h))
    for h in range(4):
        for j in range(2): rest.append(f"v_cndmask_b32 v{qop(1,h)+2+j}, 0, v{250+j}, s[{48+2*h}:{49+2*h}]")
    for k_, x in enumerate(snd):
        for l in x + rest[2*k_:2*k_+2]: tail(l)
    for l in rest[2*len(snd):]: tail(l)
    if gate:
        tail(f"""s_cmp_ge_u32 s20, 8
        s_cbranch_scc1 L_ATT
        s_mov_b64 exec, 0xffff
        buffer_store_dwordx2 v[248:249], v{VWA}, s[32:35], s46 offen sc1
        s_mov_b64 exec, -1""")
    else: tail("s_branch L_ATT")
    if w > 0: a(f"L_W{w}:")
    if LS:
        a.extend(pre); a(f".p2align {AL}"); a(f"L_LA{w}:"); a.extend(pa); a(f"L_LB{w}:"); a.extend(pb); a(f"L_T{w}:"); a.extend(tail)
    else:
        a.extend(pre); a(f".p2align {AL}"); a(f"L_LB{w}:"); a.extend(pb); a.extend(pa); a(f"L_T{w}:"); a.extend(tail)
    traces.append(pre.L + pb.L + pa.L + pb.L + fix(tail.L)[0])
a("L_ATT:")
if STAMP: stamp2(a, 30, 51)
ev(a, "gemm")
KOP = {1: 140, 0: 156, -1: 204}
VOP = 172; QOP = {1: 68, 0: 108}
def kop(t, h): return KOP[t] + 4 * h
def vop(T, t): return VOP + 6 * T + 2 * (t + 1)
def qop(t, h): return QOP[t] + 4 * h
g = Asm()
def cvt(d, s): g(f"v_cvt_pk_bf16_f32 v{d}, v{s}, v{s+1}"); g(f"v_cvt_pk_bf16_f32 v{d+1}, v{s+2}, v{s+3}")
def flush(name):
    global g
    o, t = schedule(g.L, st_lat=STL); print(f"; sched {name}: {len(o)} instrs, est {t} cycles", file=sys.stderr)
    for n, l in enumerate(o):
        if OPT.get("astamp") and n and n % 45 == 0: a(f"s_memtime s[{86 + 2*(n//45)}:{87 + 2*(n//45)}]") if n // 45 < 8 else None
        a(l)
    if OPT.get("astamp"):
        a("s_waitcnt lgkmcnt(0)")
        for k in range(1, 8): a(f"v_writelane_b32 v{SV}, s{86+2*k}, {9+k}")
    g = Asm()
stamp(a, 31)
a("s_waitcnt lgkmcnt(0)"); a("s_barrier")
stamp(a, 32)
for h in range(4):
    g(f"ds_read_b64 v[{kop(-1,h)}:{kop(-1,h)+1}], v{VWB} offset:{h*512}")
    g(f"ds_read_b64 v[{kop(-1,h)+2}:{kop(-1,h)+3}], v{VWB} offset:{4*512}")
for T in range(5): g(f"ds_read_b64 v[{vop(T,-1)}:{vop(T,-1)+1}], v{VWB} offset:{(5+T)*512}")
g("@wait")
g(f"v_lshlrev_b32 v{VX0}, 4, v1"); g(f"v_mul_u32_u24 v{VWA}, 12, v1")
for h in range(4): cvt(kop(0, h), acc(1, 0, h)); cvt(kop(0, h) + 2, acc(1, 0, 4))
for T in range(5): cvt(vop(T, 0), acc(2, 0, T))
cvt(246, acc(0, 0, 4))
for h in range(4): cvt(qop(0, h), acc(0, 0, h))
for h in range(4):
    for j in range(2): g(f"v_cndmask_b32 v{qop(0,h)+2+j}, 0, v{246+j}, s[{48+2*h}:{49+2*h}]")
SR = {1: [28, 32, 36, 40, 44, 48, 52, 56], 0: [8, 12, 16, 20, 24, 88, 92, 96]}
def dc(t, h): return SR[t][h]
def dp(t, h): return SR[t][4 + h]
MX = {1: 84, 0: 124}; TMP = {1: 128, 0: 132}
OREG = {1: [68, 72, 76, 80, 140, 144, 148, 152, 60, 64, 100, 104], 0: [108, 112, 116, 120, 156, 160, 164, 168, 204, 208, 212, 216]}
def oo(t, h, k): return OREG[t][k * 4 + h]
for t in (1, 0):
    for h in range(4):
        g(f"{MF} {vr(dc(t,h))}, {vr(kop(t,h))}, {vr(qop(t,h))}, {vr(MC)}")
        g(f"{MF} {vr(dp(t,h))}, {vr(kop(t-1,h))}, {vr(qop(t,h))}, {vr(MP if t else MP0)}")
for t in (1, 0):
    for h in range(4):
        for r in range(4): g(f"v_max_f32 v{dc(t,h)+r}, v{dc(t,h)+r}, v{dp(t,h)+r}")
        g(f"v_max3_f32 v{MX[t]+h}, v{dc(t,h)}, v{dc(t,h)+1}, v{dc(t,h)+2}")
        g(f"v_max_f32 v{MX[t]+h}, v{MX[t]+h}, v{dc(t,h)+3}")
    m = MX[t]
    g(f"""v_permlane32_swap_b32 v{m}, v{m+1}
    v_permlane32_swap_b32 v{m+2}, v{m+3}
    v_max_f32 v{m}, v{m}, v{m+1}
    v_max_f32 v{m+2}, v{m+2}, v{m+3}
    v_permlane16_swap_b32 v{m}, v{m+2}
    v_max_f32 v{m}, v{m}, v{m+2}
    v_mul_f32 v{m+2}, s92, v{m}
    v_mul_f32 v{m}, s92, v{m}
    v_permlane16_swap_b32 v{m}, v{m+2}
    v_mov_b32 v{m+1}, v{m}
    v_mov_b32 v{m+3}, v{m+2}
    v_permlane32_swap_b32 v{m}, v{m+1}
    v_permlane32_swap_b32 v{m+2}, v{m+3}""")
    for h in range(4):
        d = dc(t, h); p = dp(t, h)
        if PK:
            mp_ = m + (h & 2); e = h & 1
            for r in (0, 2): g(f"v_pk_fma_f32 v[{d+r}:{d+r+1}], v[{d+r}:{d+r+1}], s[92:93], v[{mp_}:{mp_+1}] op_sel:[0,0,{e}] op_sel_hi:[1,1,{e}] neg_lo:[0,0,1] neg_hi:[0,0,1]")
        else:
            for r in range(4): g(f"v_fma_f32 v{d+r}, v{d+r}, s92, -v{m+h}")
        for r in range(4): g(f"v_exp_f32 v{d+r}, v{d+r}")
        g(f"v_cvt_pk_bf16_f32 v{d}, v{d}, v{d+1}"); g(f"v_cvt_pk_bf16_f32 v{d+2}, v{d+2}, v{d+3}")
        g(f"v_and_b32 v{p}, v{AM}, v{d}"); g(f"v_and_b32 v{p+1}, v{AM+1}, v{d+2}")
        g(f"v_and_b32 v{p+2}, v{AM+2}, v{d}"); g(f"v_and_b32 v{p+3}, v{AM+3}, v{d+2}")
    for h in range(4):
        g(f"{MF} {vr(oo(t,h,2))}, {vr(ONES)}, {vr(dp(t,h))}, 0")
        g(f"{MF} {vr(oo(t,h,0))}, {vr(vop(h,t-1))}, {vr(dp(t,h))}, 0")
        g(f"{MF} {vr(oo(t,h,1))}, {vr(vop(4,t-1))}, {vr(dp(t,h))}, 0")
    for h in range(4):
        o0 = oo(t, h, 0); rc = oo(t, h, 2)
        g(f"v_rcp_f32 v{rc}, v{rc}")
        if PK:
            for r in (0, 2): g(f"v_pk_mul_f32 v[{o0+r}:{o0+r+1}], v[{o0+r}:{o0+r+1}], v[{rc}:{rc+1}] op_sel_hi:[1,0]")
        else:
            for r in range(4): g(f"v_mul_f32 v{o0+r}, v{o0+r}, v{rc}")
        for r in range(4): g(f"v_mul_f32_dpp v{TMP[t]+r}, v{oo(t,h,1)+r}, v{rc} quad_perm:[0,1,2,3] row_mask:{hex(1<<h)} bank_mask:0xf")
        cvt(dc(t, h >> 1) + 2 * (h & 1), o0)
    cvt(dc(t, 2), TMP[t])
    so = "s95" if t else "s94"
    c = dc(t, 2)
    for p in range(2):
        g(f"buffer_store_dwordx4 {vr(dc(t, p))}, v{VX0}, s[32:35], {so} offen offset:{1024*p} {OSF}")
    d = dc(t, 0); e = dc(t, 1)
    g(f"v_add3_u32 v{c+2}, v{d}, v{d+1}, v{d+2}"); g(f"v_add3_u32 v{c+3}, v{e}, v{e+1}, v{e+2}")
    g(f"v_add3_u32 v{c+2}, v{c+2}, v{d+3}, v{e+3}"); g(f"v_add3_u32 v{c+2}, v{c+2}, v{c+3}, v{TOK}")
    g(f"v_add3_u32 v{c+2}, v{c+2}, v{c}, v{c+1}")
    g(f"buffer_store_dwordx3 {vr(c,3)}, v{VWA}, s[32:35], {so} offen offset:2048 {OSF}")
WR = 48
def rd_reg(l): return f"ds_read_b128 {vr(WR+4*l)}, v{248 if l < 24 else 249} offset:{(l % 24)*1024}"
if HR:
    g(f"v_add_u32 v248, {CL['S1'][2]}, v{VX0}"); g(f"v_add_u32 v249, {CL['S2'][2]}, v{VX0}")
    early = [22, 9, 0, 1, 2, 5, 6, 7, 8, 3, 4, 13, 14, 23, 24, 25, 26, 20]
    for l in early + [l for l in (19, 10, 11, 12, 15, 16, 17, 18, 27, 28, 29, 21)]: g(rd_reg(l))
flush("attention")
if STAMP: stamp2(a, 35, 52)
ev(a, "att")
WR = 48
NRK = 6
OR_ = 168
AC = 224
CK = 244
BA = {"S1": 248, "S2": 249, "S0": 250, "TOP": 251, "R1": 248, "R2": 249, "TB": 252}
def lring(l):
    k = (l - 30) % 15
    return 8 + 4 * k
if HR: a("s_branch L_P2_PRE2")
a("L_P2_PRE:")
a("v_lshlrev_b32 v2, 4, v1")
a("s_lshr_b32 s64, s22, 2")
a(f"s_mul_i32 s60, s64, {CL['S1'][3]}"); a(f"s_add_u32 s60, s60, {CL['S1'][2]}"); a(f"v_add_u32 v{BA['S1']}, s60, v2")
a(f"s_mul_i32 s60, s64, {CL['S2'][3]}"); a(f"s_add_u32 s60, s60, {CL['S2'][2]}"); a(f"v_add_u32 v{BA['S2']}, s60, v2")
for l in range(30): a(rd_reg(l))
a("L_P2_PRE2:")
if HR:
    a("s_waitcnt lgkmcnt(0)"); stamp(a, 36); a("s_barrier"); stamp(a, 37)
    a("s_cmp_lt_u32 s22, 4"); a("s_cbranch_scc1 L_P2_C")
    dma_class("R1"); dma_class("R2")
    a("L_P2_C:")
    a("v_lshlrev_b32 v2, 4, v1"); a("s_lshr_b32 s64, s22, 2")
for nm in ("S0", "TOP", "TB"):
    a(f"s_mul_i32 s60, s64, {CL[nm][3]}"); a(f"s_add_u32 s60, s60, {CL[nm][2]}"); a(f"v_add_u32 v{BA[nm]}, s60, v2")
consumer_ids()
rotbit("s86")
a(f"""s_and_b32 s65, s22, 3
s_lshl_b32 s67, s85, 2
s_add_u32 s67, s67, s65
s_mul_i32 s80, s67, {OTT}
s_mul_i32 s60, s64, {8*OBLK}
s_add_u32 s80, s80, s60
v_mul_u32_u24 v3, 12, v1
v_add_u32 v3, 2048, v3
v_and_b32 v4, 15, v1
v_lshlrev_b32 v5, 3, v4
s_lshl_b32 s62, s67, 7
s_add_u32 s62, s62, {WS_G}
v_sub_u32 v254, 0, v{TOK}
s_add_u32 s82, s80, {4*OBLK}
s_mul_i32 s86, s86, {4*OBLK}
s_add_u32 s80, s80, s86
s_sub_u32 s82, s82, s86
s_add_u32 s81, s80, {2*OBLK}
s_add_u32 s83, s82, {2*OBLK}
s_mov_b32 s28, s18
s_mov_b32 s29, s19
s_mov_b32 s30, 2621440
s_mov_b32 s31, 0x20000
s_mov_b32 s61, 0""")
if HR:
    a("s_setprio 0"); a("s_waitcnt vmcnt(0)"); stamp(a, 38)
else:
    stamp(a, 36)
    a("s_waitcnt lgkmcnt(0)")
    a("s_barrier")
    stamp(a, 37)
    a("s_cmp_lt_u32 s22, 4"); a("s_cbranch_scc1 L_P2_C")
    dma_class("R1"); dma_class("R2")
    if OWAIT >= 2: a("s_waitcnt vmcnt(0)"); stamp(a, 38)
    a("s_branch L_P2_GO")
    a("L_P2_C:")
    if OWAIT: a("s_waitcnt vmcnt(0)"); stamp(a, 38)
    a("s_setprio 0")
a("L_P2_GO:")
if OWAIT >= 2: a("s_barrier")
if OWAIT >= 3: a(f"s_sleep {OWAIT}")
if STAMP: stamp2(a, 39, 53)
ev(a, "bp")
TB = 216
def og(u, k): return OR_ + (u & 3) * 12 + k * 4
def ld_unit(u):
    m, e = u >> 1, u & 1
    return [f"buffer_load_dwordx4 {vr(og(u, k))}, v2, s[32:35], s{80+m} offen offset:{e*OBLK + k*1024} {OF}" for k in range(2)] + \
           [f"buffer_load_dwordx3 {vr(og(u, 2), 3)}, v3, s[32:35], s{80+m} offen offset:{e*OBLK} {OF}"]
def chk_unit(u):
    d = og(u, 0); f = og(u, 1); c = og(u, 2); x = CK
    return [f"v_add3_u32 v{x}, v{d}, v{d+1}, v{d+2}", f"v_add3_u32 v{x+1}, v{f}, v{f+1}, v{f+2}", f"v_add3_u32 v{x+2}, v{c}, v{c+1}, v{TOK}",
            f"v_add3_u32 v{x}, v{x}, v{d+3}, v{f+3}", f"v_add3_u32 v{x}, v{x}, v{x+1}, v{x+2}", f"v_cmp_ne_u32 vcc, v{x}, v{c+2}"]
def ld_w(i):
    if i < NRK or i >= 20: return []
    o = []
    for T in range(5):
        l = i * 5 + T
        nm = [k for k, v in CL.items() if v[0] <= l < v[0] + v[1]][0]
        o.append(f"ds_read_b128 {vr(lring(l))}, v{BA[nm]} offset:{(l - CL[nm][0]) * 1024}")
    return o
GLD = "buffer_load_dwordx2 v[6:7], v5, s[32:35], s62 offen sc1"
PRE = ["s_lshr_b32 s46, s67, 4", "s_lshl_b32 s46, s46, 8", "s_bfe_u32 s47, s67, 0x10003", "s_add_u32 s46, s46, s47", "s_and_b32 s47, s67, 7",
       "s_lshl_b32 s47, s47, 5", "s_add_u32 s46, s46, s47", "s_mul_i32 s46, s46, 1280", "s_mul_i32 s47, s84, 160", "s_add_u32 s46, s46, s47",
       "s_mul_i32 s60, s65, 5120", f"s_add_u32 s60, s60, {XCH}", f"v_add_u32 v{WR+76}, s60, v2", "v_mul_u32_u24 v4, 2560, v4", f"v_lshrrev_b32 v{WR+79}, 4, v1",
       f"v_lshl_add_u32 v{WR+77}, v{WR+79}, 4, v4", f"v_lshl_add_u32 v{WR+78}, v{WR+79}, 3, v4",
       "s_waitcnt vmcnt(0)", f"v_add3_u32 v{CK}, v6, v7, v254", f"v_cmp_ne_u32 vcc, 0, v{CK}"]
vq = []
def issue(u):
    if u < 8:
        for x in (ld_unit(u)[:2] if "no3" in XP else ld_unit(u)): a(x); vq.append(u)
    if u == 4: a(GLD); vq.append(8)
nxt_u = 0
for _ in range(U0): issue(nxt_u); nxt_u += 1
npre = 0
for u in range(8):
    m, e = u >> 1, u & 1
    last = max(k for k, t in enumerate(vq) if t == u)
    a(f"s_waitcnt vmcnt({len(vq) - 1 - last})")
    while nxt_u <= u + UD: issue(nxt_u); nxt_u += 1
    if u == 0: stamp(a, 33)
    for x in chk_unit(u): a(x)
    if "no3" not in XP: a(f"s_cbranch_vccnz L_RETRY{u}")
    a(f"L_OK{u}:")
    if u == 0: stamp(a, 34)
    tb = TB + 4 * (m & 1)
    a(f"v_mov_b64 v[{tb+2*e}:{tb+2*e+1}], v[{og(u,2)}:{og(u,2)+1}]")
    for ss in ([0, 1] if e == 0 else [2, 3, 4]):
        i = m * 5 + ss
        if i >= ET: continue
        nxt = ld_w(i + 2)
        if i >= NRK: a(f"s_waitcnt lgkmcnt({5 if i < 19 else 0})")
        of = og(u, ss & 1) if ss < 4 else tb
        for T in range(5):
            wf = vr(lring(i * 5 + T)) if i >= NRK else vr(WR + (i * 5 + T) * 4)
            if "nomf" not in XP or i == 0: a(f"{MF} {vr(AC+4*T)}, {wf}, {vr(of)}, {'0' if i == 0 else vr(AC+4*T)}")
            if nxt and "nold" not in XP: a(nxt[T])
            if 10 <= i < 15 and npre < len(PRE) - 3: a(PRE[npre]); npre += 1
            if i == min(18, ET - 1) and T >= 2: a(PRE[len(PRE) - 5 + T])
assert npre == len(PRE) - 3
if STAMP and ET > 19: stamp2(a, 56, 54)
a("s_cbranch_vccnz L_RETRYG")
a("L_OKG:")
a("s_cmp_eq_u32 s64, 0")
a("s_cbranch_scc1 L_EPI_A")
def epi(send, keep, sc):
    RA, O4, O2 = WR + 76, WR + 77, WR + 78
    for T in send:
        for r in (0, 2): a(f"v_pk_mul_f32 v[{AC+4*T+r}:{AC+4*T+r+1}], v[{AC+4*T+r}:{AC+4*T+r+1}], v[{sc}:{sc+1}] op_sel_hi:[1,0]")
    a("s_barrier")
    for T in send: a(f"ds_write_b128 v{RA}, {vr(AC+4*T)} offset:{T*1024}")
    a("s_waitcnt lgkmcnt(0)"); a("s_barrier")
    for n, T in enumerate(keep): a(f"ds_read_b128 {vr(8+4*n)}, v{RA} offset:{T*1024}")
    for n, T in enumerate(keep):
        a(f"s_waitcnt lgkmcnt({len(keep)-1-n})")
        for r in (0, 2): a(f"v_pk_fma_f32 v[{8+4*n+r}:{8+4*n+r+1}], v[{AC+4*T+r}:{AC+4*T+r+1}], v[{sc}:{sc+1}], v[{8+4*n+r}:{8+4*n+r+1}] op_sel_hi:[1,0,1]")
        a(f"v_cvt_pk_bf16_f32 v{OR_+2*n}, v{8+4*n}, v{8+4*n+1}"); a(f"v_cvt_pk_bf16_f32 v{OR_+2*n+1}, v{8+4*n+2}, v{8+4*n+3}")
        if n == 1: a(f"buffer_store_dwordx4 {vr(OR_)}, v{O4}, s[28:31], s46 offen offset:{32*keep[0]} {SF}")
        if n == 2: a(f"buffer_store_dwordx2 {vr(OR_+4,2)}, v{O2}, s[28:31], s46 offen offset:128 {SF}")
if EP:
    RA, O4, O2 = WR + 76, WR + 77, WR + 78
    def last_steps(fill, lg19):
        for i in range(ET, 20):
            a(f"s_waitcnt lgkmcnt({5 if i < 19 else lg19})")
            if i == ET and fill: a("s_barrier")
            of = og(7, 1) if i == 18 else TB + 4
            for T in range(5):
                a(f"{MF} {vr(AC+4*T)}, {vr(lring(i * 5 + T))}, {vr(of)}, {vr(AC+4*T)}")
                k = (i - ET) * 5 + T
                if k < len(fill): a(fill[k])
        if STAMP: stamp2(a, 56, 54)
    rds = [f"ds_read_b128 {vr(72+4*T)}, v{RA} offset:{T*1024}" for T in range(5)]
    scl = ["v_sub_f32 v6, 1.0, v6", "v_cvt_pk_bf16_f32 v6, v6, v6", "v_and_b32 v6, 0xffff0000, v6"]
    if ET == 18: last_steps(rds + scl, 5)
    else:
        a("s_barrier")
        for x in rds + scl: a(x)
    for T in range(5):
        a(f"s_waitcnt lgkmcnt({4-T})")
        for r in (0, 2): a(f"v_pk_fma_f32 v[{72+4*T+r}:{72+4*T+r+1}], v[{AC+4*T+r}:{AC+4*T+r+1}], v[6:7], v[{72+4*T+r}:{72+4*T+r+1}] op_sel_hi:[1,0,1]")
        a(f"v_cvt_pk_bf16_f32 v{OR_+2*T}, v{72+4*T}, v{72+4*T+1}"); a(f"v_cvt_pk_bf16_f32 v{OR_+2*T+1}, v{72+4*T+2}, v{72+4*T+3}")
        if T == 1: a(f"buffer_store_dwordx4 {vr(OR_)}, v{O4}, s[28:31], s46 offen {SF}")
        if T == 3: a(f"buffer_store_dwordx4 {vr(OR_+4)}, v{O4}, s[28:31], s46 offen offset:64 {SF}")
    a(f"buffer_store_dwordx2 {vr(OR_+8,2)}, v{O2}, s[28:31], s46 offen offset:128 {SF}")
    a("s_branch L_FIN")
    a("L_EPI_A:")
    if ET == 18: last_steps([], 0)
    else: a("s_nop 1")
    for T in range(5):
        for r in (0, 2): a(f"v_pk_mul_f32 v[{AC+4*T+r}:{AC+4*T+r+1}], v[{AC+4*T+r}:{AC+4*T+r+1}], v[6:7] op_sel_hi:[1,0]")
        a(f"ds_write_b128 v{RA}, {vr(AC+4*T)} offset:{T*1024}")
    a("s_waitcnt lgkmcnt(0)"); a("s_barrier")
else:
    a("v_sub_f32 v6, 1.0, v6"); a("v_cvt_pk_bf16_f32 v6, v6, v6"); a("v_and_b32 v6, 0xffff0000, v6")
    epi([0, 1], [2, 3, 4], 6)
    a("s_branch L_FIN")
    a("L_EPI_A:")
    a("s_nop 4")
    epi([2, 3, 4], [0, 1], 6)
ev(a, "end")
if SPIN:
    a("""s_mov_b32 s60, 0
    L_SPIN:
    s_memrealtime s[98:99]
    s_waitcnt lgkmcnt(0)
    s_sub_u32 s98, s98, s96
    s_add_u32 s60, s60, 1
    s_cmp_ge_u32 s60, 20000
    s_cbranch_scc1 L_FIN
    s_cmp_lt_u32 s98, 4000
    s_cbranch_scc1 L_SPIN""")
a("L_FIN:")
if STAMP:
    stamp(a, 57)
    a("s_add_u32 s61, s61, 1"); a(f"v_writelane_b32 v{SV}, s61, 61")
    a("s_waitcnt vmcnt(0)")
    stamp(a, 62); stamp(a, 63, True)
    a(f"s_lshl_b32 s46, s2, 3"); a(f"s_add_u32 s46, s46, s22"); a("s_lshl_b32 s46, s46, 8"); a(f"s_add_u32 s46, s46, {WS_ST}")
    a(f"v_lshlrev_b32 v2, 2, v1")
    a(f"buffer_store_dword v{SV}, v2, s[32:35], s46 offen")
a("L_END:"); a("s_endpgm")
for u in range(8):
    a(f"L_RETRY{u}:")
    a("s_add_u32 s61, s61, 1"); a(f"s_cmp_ge_u32 s61, {SPIN_MAX}"); a(f"s_cbranch_scc1 L_OK{u}")
    a(f"s_sleep {RSLEEP}")
    for x in ld_unit(u): a(x)
    a("s_waitcnt vmcnt(0)")
    for x in chk_unit(u): a(x)
    a(f"s_cbranch_vccnz L_RETRY{u}"); a(f"s_branch L_OK{u}")
a("L_RETRYG:")
a("s_add_u32 s61, s61, 1"); a(f"s_cmp_ge_u32 s61, {SPIN_MAX}"); a("s_cbranch_scc1 L_OKG")
a(f"s_sleep {RSLEEP}")
a("buffer_load_dwordx2 v[6:7], v5, s[32:35], s62 offen sc1"); a("s_waitcnt vmcnt(0)")
a(f"v_add3_u32 v{CK}, v6, v7, v254"); a(f"v_cmp_ne_u32 vcc, 0, v{CK}")
a("s_cbranch_vccnz L_RETRYG"); a("s_branch L_OKG")

l1, _ = fix(a.L)
for tr in traces:
    _, iss_ = fix(tr, verify=True)
    for x in iss_: print("; TRACE HAZARD", x, file=sys.stderr)
print(f"""; gated mix of two dilated sliding-window attention blocks (generated by gen/gen18.py)
; @launch grid=(256,1,1) block=(512,1,1) lds={LDS_TOTAL}
.amdgcn_target "amdgcn-amd-amdhsa--gfx950"
.text
.globl {KN}
.p2align 8
.type {KN},@function""")
print("\n".join(l1))
print("CODE_END:")
if STAMP: print(".fill 2048, 4, 0xBF800000")
print('.section .rodata,"a"')
print(kd(KN, 256, 102, 256))
```

```python
import sys, struct, math
sys.path.insert(0, "gen")
from asmlib import *
NAME = "gated_mix__sliding_local_dilated__sliding_local_dilated__prompt"
KN = NAME + "_kernel"
OPT = dict(a.split("=") for a in sys.argv[1:])
STAMP = int(OPT.get("stamp", 0)); CM = int(OPT.get("cm", 1)); PK = int(OPT.get("pk", 1))
NS1 = int(OPT.get("ns1", 12)); RSLEEP = int(OPT.get("rsleep", 2)); OWAIT = int(OPT.get("owait", 2)); SB = int(OPT.get("sb", 4)); SA = int(OPT.get("sa", 2)); XP = OPT.get("xp", ""); R2 = int(OPT.get("r2", 1)); WNT = "nt " if int(OPT.get("wnt", 0)) else ""; XNT = "nt " if int(OPT.get("xnt", 0)) else ""; SNT = "nt " if int(OPT.get("snt", 0)) else ""; STG = int(OPT.get("stg", 2)); PP = OPT.get("pp", "1101010100").replace("-", ""); ROT = int(OPT.get("rot", 0 if PP else 1)); EP = 1; OSF = OPT.get("osf", "sc1").replace("+", " "); OF = OPT.get("of", "sc1").replace("+", " ").replace("-", ""); KS0 = OPT.get("ks0", "-A555A5555"); KS1 = OPT.get("ks1", "-55A555A55"); ET = int(OPT.get("et", 18)); UD = int(OPT.get("ud", 2)); U0 = int(OPT.get("u0", 2)); HA = int(OPT.get("ha", 1)); LS = int(OPT.get("ls", 1)); AL = int(OPT.get("al", 6)); HR = int(OPT.get("hr", 0)); LP = int(OPT.get("lp", 0)); KP = int(OPT.get("kp", 5)); STL = int(OPT.get("stl", 60)); TOV = 1; LPOS = int(OPT.get("lpos", 2)); COV = int(OPT.get("cov", 0)); SF = OPT.get("sf", "nt").replace("+", " "); PD = int(OPT.get("pd", 1))
def f2u(x): return struct.unpack("<I", struct.pack("<f", x))[0]
STAGE = 49152; XOFF = 30720
GW_LDS = 147456; TOK_LDS = GW_LDS + 1536; SCR_LDS = 149504; LDS_TOTAL = 163840
XCH = 126976
RED = 98304
OBLK = 2816; OTT = 16 * OBLK
WS_WOT = 0x580000; WS_G = 0x710000; WS_FW = 0x720000; WS_ST = 0x1000000
NEG = f2u(-1e30)
CEXP = f2u(20 ** -0.5 * math.log2(math.e))
LOG2E = f2u(math.log2(math.e))
MF = "v_mfma_f32_16x16x32_bf16"
SPIN_MAX = 1 << 17
SV = 255
def stamp(a, idx, real=False):
    if not STAMP: return
    a(f"{'s_memrealtime' if real else 's_memtime'} s[68:69]"); a("s_waitcnt lgkmcnt(0)"); a(f"v_writelane_b32 v{SV}, s68, {idx}")
SPIN = OPT.get("spin", "")
def ev(a, name):
    if SPIN == name: a("s_memrealtime s[96:97]"); a("s_waitcnt lgkmcnt(0)")
def stamp2(a, idx, ridx):
    stamp(a, idx); stamp(a, ridx, True)
def stamp0(a):
    if STAMP: a(f"v_mov_b32 v{SV}, 0"); a(f"v_writelane_b32 v{SV}, s66, 0"); a(f"v_writelane_b32 v{SV}, s68, 1")

a = Asm()
traces = []
def ids():
    a("""v_and_b32 v1, 63, v0
    s_and_b32 s20, s2, 3
    s_lshl_b32 s20, s20, 2
    s_bfe_u32 s46, s2, 0x20003
    s_add_u32 s20, s20, s46
    s_lshr_b32 s47, s2, 5
    s_and_b32 s21, s2, 4
    s_lshl_b32 s21, s21, 1
    s_add_u32 s21, s21, s47""")
def srd_ws_dbg():
    WSO = int(OPT.get("wso", 0)) << 20
    a(f"""s_add_u32 s32, s78, {WSO}
    s_addc_u32 s33, s79, 0
    s_mov_b32 s34, {0x10000000 - WSO}
    s_mov_b32 s35, 0x20000
    s_mov_b32 s40, s76
    s_mov_b32 s41, s77
    s_mov_b32 s42, 256
    s_mov_b32 s43, 0x20000""")
def consumer_ids():
    if CM:
        a("s_bfe_u32 s84, s2, 0x30003"); a("s_and_b32 s85, s2, 7"); a("s_lshl_b32 s85, s85, 2"); a("s_lshr_b32 s86, s2, 6"); a("s_add_u32 s85, s85, s86")
    else:
        a("s_and_b32 s84, s20, 7"); a("s_lshl_b32 s85, s21, 1"); a("s_lshr_b32 s86, s20, 3"); a("s_add_u32 s85, s85, s86")
def pf_setup(isw_scc_cmp, vdst, vt, soff, sstep, lblx, lble):
    a(f"""s_lshr_b32 s44, s2, 3
    {isw_scc_cmp}
    s_cbranch_scc0 {lblx}
    v_mul_u32_u24 v{vt}, 13108, v1
    v_lshrrev_b32 v{vt}, 16, v{vt}
    v_mul_u32_u24 v{vt}, 640, v{vt}
    v_lshl_add_u32 v{vdst}, v1, 7, v{vt}
    s_mul_i32 {soff}, s44, 15360
    s_and_b32 s45, s2, 1
    s_mul_i32 s45, s45, 640
    s_add_u32 {soff}, {soff}, s45
    s_mov_b32 {sstep}, 491520
    s_cmp_ge_u32 s20, 8
    s_cselect_b32 s88, s12, s6
    s_cselect_b32 s89, s13, s7
    s_mov_b32 s90, 2457600
    s_branch {lble}
    {lblx}:
    v_lshrrev_b32 v{vt}, 1, v1
    v_mul_u32_u24 v{vt}, 1280, v{vt}
    v_and_b32 v{vdst}, 1, v1
    v_lshl_add_u32 v{vdst}, v{vdst}, 7, v{vt}
    s_and_b32 s45, s2, 4
    s_lshl_b32 s45, s45, 3
    s_add_u32 s44, s44, s45
    s_mul_i32 {soff}, s44, 40960
    s_mov_b32 {sstep}, 256
    s_mov_b32 s88, s4
    s_mov_b32 s89, s5
    s_mov_b32 s90, 2621440
    {lble}:
    s_mov_b32 s91, 0x20000""")
def rotbit(dst):
    a(f"s_xor_b32 {dst}, s84, s85"); a(f"s_and_b32 {dst}, {dst}, {R2}")
a(f"{KN}:")
if STAMP: a("s_memrealtime s[66:67]"); a("s_memtime s[68:69]")
a("""v_readfirstlane_b32 s22, v0
s_load_dwordx8 s[4:11], s[0:1], 0
s_load_dwordx8 s[12:19], s[0:1], 32""")
if not STAMP: a("s_lshr_b32 s3, s2, 8"); a("s_cbranch_scc1 L_END")
a("""s_lshr_b32 s22, s22, 6
s_cmp_eq_u32 s22, 3
s_cbranch_scc1 L_HOP
s_cmp_lt_u32 s22, 4
s_cbranch_scc1 L_COMPUTE""")
ECP = int(OPT.get("ecp", 1))
a("v_and_b32 v1, 63, v0"); a("s_lshr_b32 s44, s2, 3")
if ECP:
    a(f"""s_cmp_lg_u32 s22, 6
    s_cbranch_scc1 L_E0
    s_getpc_b64 s[70:71]
    L_PC0:
    s_mul_i32 s45, s44, 6
    v_min_u32 v3, 5, v1
    v_add_lshl_u32 v3, v3, s45, 7""")
    if not STAMP: a("v_min_u32 v3, CODE_END - L_PC0 - 4, v3")
    a("global_load_dword v41, v3, s[70:71]"); a("L_E0:")
a("""v_mul_u32_u24 v3, 13108, v1
v_lshrrev_b32 v3, 16, v3
v_mul_u32_u24 v3, 640, v3
v_lshlrev_b32 v4, 7, v1
v_add_u32 v40, v4, v3
v_lshrrev_b32 v3, 1, v1
v_lshl_add_u32 v42, v3, 10, v4
s_mul_i32 s92, s44, 24
s_and_b32 s45, s2, 1
s_add_u32 s92, s92, s45
s_mulk_i32 s92, 640
s_and_b32 s45, s2, 4
s_lshl_b32 s45, s45, 3
s_add_u32 s44, s44, s45
s_mul_i32 s93, s44, 40960
s_mov_b32 s26, 2457600
s_mov_b32 s30, 2621440
s_mov_b32 s31, 0x20000
s_mov_b32 s27, s31
s_bitcmp1_b32 s2, 1
s_waitcnt lgkmcnt(0)
s_cselect_b64 s[24:25], s[12:13], s[6:7]
s_mov_b64 s[28:29], s[4:5]
""")
if PP[0] == "1":
    a("""s_cmp_lg_u32 s22, 4
s_cbranch_scc1 L_E1
buffer_load_dword v41, v42, s[28:31], s93 offen
L_E1:
s_cmp_lg_u32 s22, 5
s_cbranch_scc1 L_LD0
buffer_load_dword v41, v40, s[24:27], s92 offen
s_branch L_LD0
""")
else:
    a("""s_bfe_u32 s45, s22, 0x10001
    s_bitcmp1_b32 s22, 0
    s_cbranch_scc1 L_E1
    s_lshl_b32 s45, s45, 8
    s_add_u32 s45, s45, s93
    buffer_load_dword v41, v42, s[28:31], s45 offen
    s_branch L_LD0
    L_E1:
    s_mul_i32 s45, s45, 491520
    s_add_u32 s45, s45, s92
    buffer_load_dword v41, v40, s[24:27], s45 offen
    s_branch L_LD0""")
a(""".p2align 8
L_HOP:
s_branch L_COMPUTE
L_LD0:
""")
a(f"s_setprio {OPT.get('pl', 2)}")
stamp0(a); stamp(a, 3)
ids()
a("""v_lshrrev_b32 v3, 3, v1
v_mul_u32_u24 v3, 2560, v3
v_lshrrev_b32 v4, 4, v0
v_xor_b32 v4, v4, v1
v_xor_b32 v4, 4, v4
v_and_b32 v4, 7, v4
v_lshl_add_u32 v11, v4, 4, v3
s_and_b32 s64, s22, 3
s_lshr_b32 s44, s21, 1
s_or_b32 s45, s44, s64
s_cselect_b32 s52, -20480, 0
s_lshl_b32 s44, s44, 8
s_and_b32 s45, s21, 1
s_add_u32 s44, s44, s45
s_lshl_b32 s45, s64, 4
s_add_u32 s44, s44, s45
s_mul_i32 s47, s44, 1280
s_lshl_b32 s53, s64, 10
v_mul_u32_u24 v3, 6554, v1
v_lshrrev_b32 v3, 16, v3
v_mul_u32_u24 v4, 1120, v3
v_lshl_add_u32 v10, v1, 4, v4
s_and_b32 s46, s20, 7
s_mul_i32 s46, s46, 160
s_mul_i32 s44, s64, 61440
s_add_u32 s46, s46, s44
s_mul_i32 s48, s64, 7680
s_mov_b32 s49, 0
s_mov_b32 s50, 0
s_mov_b32 s87, 0
s_mov_b32 s86, 15""")
stamp(a, 2)
a("s_load_dwordx4 s[76:79], s[0:1], 64")
a("L_LD_ISSUE:")
a(f"s_add_u32 m0, s53, {XOFF + 1024}"); a("s_add_u32 s51, s47, s52"); a(f"buffer_load_dwordx4 v11, s[28:31], s51 offen {XNT}lds")
for qq in range(1, 4):
    a(f"s_add_u32 m0, s53, {XOFF + 1024 + 4096*qq}"); a(f"s_add_u32 s51, s47, {(64*qq-16)*1280}"); a(f"buffer_load_dwordx4 v11, s[28:31], s51 offen {XNT}lds")
a("s_mov_b32 exec_hi, 0x0fffffff")
for qq in range(8):
    if str(qq) in KS0 + KS1:
        a(f"s_cmp_eq_u32 s86, {qq}"); a(f"s_cbranch_scc1 L_HK{qq}"); a(f"L_HR{qq}:")
    r = 2 * qq; k = (r & 0x33) | ((r & 4) << 1) | ((r & 8) >> 1)
    a(f"s_add_u32 m0, s48, {960*qq}"); a(f"s_add_u32 s51, s46, {k*3840}"); a(f"buffer_load_dwordx4 v10, s[24:27], s51 offen {WNT}lds")
a("s_mov_b32 exec_hi, -1")
a("s_cmp_lg_u32 s64, 0"); a("s_cbranch_scc1 L_LD_W")
a(f"s_add_u32 m0, s53, {XOFF + 1024 + 4096*4}"); a(f"s_add_u32 s51, s47, {(64*4-16)*1280}"); a(f"buffer_load_dwordx4 v11, s[28:31], s51 offen {XNT}lds")
a("L_LD_W:")
a(f"""s_mov_b32 s63, {STAGE}
s_add_u32 s46, s46, 245760
s_add_u32 s47, s47, 128
s_add_u32 s49, s49, 1
s_cmp_eq_u32 s49, 3
s_cselect_b32 s51, {(-2*STAGE) & 0xffffffff}, s63
s_cselect_b32 s49, 0, s49
s_add_u32 s48, s48, s51
s_add_u32 s53, s53, s51
s_add_u32 s50, s50, 1""")
def lstamp(base):
    if STAMP == 1: a("s_memtime s[68:69]"); a("s_waitcnt lgkmcnt(0)"); a(f"s_add_u32 m0, s50, {base}"); a(f"v_writelane_b32 v{SV}, s68, m0")
lstamp(9)
a(f"""s_cmp_lt_u32 s50, 2
s_cbranch_scc1 L_LD_PRE0
L_DISP:
s_cmp_eq_u32 s50, s96
s_cbranch_scc1 L_SIDE_A
L_SA_RET:
s_cmp_eq_u32 s50, s97
s_cbranch_scc1 L_TOK_A
s_cmp_eq_u32 s50, s98
s_cbranch_scc1 L_TOK_B
s_cmp_eq_u32 s50, {10 if LP else 9}
s_cbranch_scc1 L_WOF_A
s_cmp_eq_u32 s50, 10
s_cbranch_scc1 L_WOF_B""")
a("L_LD_WAIT:")
a("L_LD_BAR:")
a("L_LD_PRE:")
a("s_bitcmp1_b32 s94, s50"); a("s_cbranch_scc0 L_LD_TOP")
a(f"s_add_u32 s87, s87, {STG}")
PW = int(OPT.get("pw", 6))
if PW < 60: a(f"s_waitcnt vmcnt({PW})")
TT = int(OPT.get("tt", 0))
if TT: a("s_cmp_eq_u32 s64, 3"); a("s_cbranch_scc1 L_PFT")
a("s_cmp_eq_u32 s64, 0"); a("s_cbranch_scc1 L_PFX")
for n in range(STG):
    a("buffer_load_dword v41, v40, s[24:27], s92 offen"); a(f"s_add_u32 s92, s92, {15360 if n < STG-1 else STG*491520 - (STG-1)*15360}")
a("s_branch L_LD_TOP")
a("L_PFX:")
for n in range(STG):
    a("buffer_load_dword v41, v42, s[28:31], s93 offen"); a(f"s_add_u32 s93, s93, {40960 if n < STG-1 else (STG*256 - (STG-1)*40960) & 0xffffffff}")
a("s_branch L_LD_TOP")
if TT:
    a("L_PFT:")
    srd_ws_dbg()
    a(f"s_mov_b32 s34, {WS_WOT}")
    a("""s_mov_b32 s88, s18
    s_mov_b32 s89, s19
    s_mov_b32 s90, 2621440
    s_mov_b32 s91, 0x20000
    s_lshr_b32 s44, s2, 3
    s_lshl_b32 s44, s44, 15
    v_lshlrev_b32 v16, 20, v1
    s_mov_b64 exec, 0xff
    buffer_load_dword v41, v16, s[32:35], s44 offen
    buffer_load_dword v41, v16, s[88:91], s44 offen
    s_mov_b64 exec, -1
    s_mov_b32 s94, 0""")
a("L_LD_TOP:")
a("s_and_b32 s86, s100, 15"); a("s_lshr_b64 s[100:101], s[100:101], 4")
a("s_cmp_lg_u32 s86, 10"); a("s_cbranch_scc1 L_LD_ISSUE")
ES = (1, 2, 3, 6, 9 if int(OPT.get('pt', 0)) else 8)
def hook(nm, base, ret):
    for e_ in ES: a(f"s_cmp_eq_u32 s87, {e_}"); a(f"s_cbranch_scc1 L_H{nm}_{e_}")
    a(f"s_waitcnt vmcnt({base})")
    a(f"L_H{nm}_B:")
    if STAMP == 1: a("s_memtime s[68:69]"); a("s_waitcnt lgkmcnt(0)"); a(f"s_add_u32 m0, s50, 19"); a(f"v_writelane_b32 v{SV}, s68, m0")
    a("s_barrier")
    if STAMP == 1: a("s_memrealtime s[68:69]"); a("s_waitcnt lgkmcnt(0)"); a(f"s_add_u32 m0, s50, 39"); a(f"v_writelane_b32 v{SV}, s68, m0")
    a("s_mov_b32 s87, 0"); a(f"s_branch {ret}")
    for e_ in ES: a(f"L_H{nm}_{e_}:"); a(f"s_waitcnt vmcnt({base + e_})"); a(f"s_branch L_H{nm}_B")
hook("A", 0, "L_LD_ISSUE")
for qq in range(8):
    if str(qq) in KS0 + KS1: a(f"L_HK{qq}:"); hook(str(qq), 4 + qq, f"L_HR{qq}")
a("L_LD_PRE0:")
a("v_lshlrev_b32 v12, 4, v1"); a("v_mov_b32 v13, 0")
pos = [c for c in range(1, 10) if PP[c] != "0"]
if STG > 1: a(f"s_bfe_u32 s45, s2, 0x{(STG.bit_length()-1):x}0003")
else: a("s_mov_b32 s45, 0")
a(f"s_mul_i32 s44, s45, {491520 - 15360}"); a("s_add_u32 s92, s92, s44"); a(f"s_add_u32 s92, s92, {491520*int(PP[0])}")
a(f"s_mul_i32 s44, s45, {40960 - 256}"); a("s_sub_u32 s93, s93, s44"); a(f"s_add_u32 s93, s93, {256*int(PP[0])}")
a("s_mov_b32 s94, 0")
for g_ in range(STG):
    mask = sum(1 << c for k, c in enumerate(pos) if k % STG == g_)
    a(f"s_cmp_eq_u32 s45, {g_}"); a(f"s_cselect_b32 s94, {mask}, s94")
if TT: a("s_cmp_eq_u32 s64, 2")
else: a("s_cmp_ge_u32 s64, 2")
a("s_cselect_b32 s94, 0, s94")
a("s_waitcnt lgkmcnt(0)")
SA0 = int(OPT.get("sa0", SA)); SB0 = int(OPT.get("sb0", SB))
a("s_bitcmp1_b32 s2, 3"); a(f"s_cselect_b32 s96, {SA}, {SA0}"); a(f"s_cselect_b32 s97, {SB}, {SB0}")
a("s_add_u32 s98, s97, 2")
def pk(ks): return sum(int(c, 16) << (4 * i) for i, c in enumerate(ks[1:]))
assert STG == 2 and len(KS0) == 10 and len(KS1) == 10
a(f"s_mov_b32 s100, {pk(KS0) & 0xffffffff}"); a(f"s_mov_b32 s101, {pk(KS0) >> 32}")
a("s_bitcmp1_b32 s2, 3"); a(f"s_cselect_b32 s100, {pk(KS1) & 0xffffffff}, s100"); a(f"s_cselect_b32 s101, {pk(KS1) >> 32}, s101")
a("s_branch L_DISP")
a("L_SIDE_A:")
if int(OPT.get("u2", 1)):
    a("""s_mov_b32 s56, 0
    s_cmp_lt_u32 s64, 2
    s_cbranch_scc1 L_SA_RET
    s_mov_b32 s57, s2
    s_cmp_eq_u32 s64, 2
    s_cbranch_scc1 L_SA_GO
    s_bitcmp""" + ("1" if OPT.get("u2", "1") == "2" else "0") + """_b32 s2, 3
    s_cbranch_scc1 L_SA_RET
    s_lshr_b32 s44, s2, 4
    s_sub_u32 s44, s44, 4
    s_cmp_ge_u32 s44, 8
    s_cbranch_scc1 L_SA_RET
    s_lshl_b32 s44, s44, 3
    s_and_b32 s57, s2, 7
    s_add_u32 s57, s57, s44
    s_add_u32 s57, s57, 256
    L_SA_GO:""")
else:
    a("""s_mov_b32 s56, 0
    s_sub_u32 s44, s64, 2
    s_lshl_b32 s57, s44, 8
    s_add_u32 s57, s57, s2
    s_cmp_ge_u32 s57, 320
    s_cbranch_scc1 L_SA_RET""")
a("""s_mov_b32 s56, 1
s_mov_b32 s39, 0x20000
s_and_b32 s45, s57, 7
s_lshr_b32 s44, s57, 3
s_mul_i32 s58, s44, 52
s_lshr_b32 s58, s58, 8
s_mul_i32 s59, s58, 5
s_sub_u32 s59, s44, s59
s_cmp_ge_u32 s58, 4
s_cselect_b32 s36, s14, s8
s_cselect_b32 s37, s15, s9
s_mov_b32 s38, 819200
s_and_b32 s58, s58, 3
s_mul_i32 s58, s58, 160
s_mul_i32 s60, s59, 40
s_cmp_eq_u32 s59, 4
s_cselect_b32 s60, 16, s60
s_cselect_b32 s54, 80, 20
s_cselect_b32 s55, 20, 4
s_add_u32 s58, s58, s60
s_mul_i32 s58, s58, 1280
s_mul_i32 s60, s45, 160
s_add_u32 s58, s58, s60
s_mul_i32 s54, s54, 1280
s_mul_i32 s55, s55, 1280""")
a(f"s_mul_i32 s62, s64, 5120"); a(f"s_add_u32 s62, s62, {SCR_LDS - 10240}")
a("s_mov_b32 exec_hi, 0xff")
for g in range(4):
    for jh in range(2):
        a(f"s_add_u32 m0, s62, {(16*(g>>1) + 8*jh + 4*(g&1))*160}")
        if jh == 0: a("s_add_u32 s51, s58, s54"); a(f"buffer_load_dwordx4 v10, s[36:39], s58 offen {SNT}lds")
        else: a("s_add_u32 s58, s58, s55"); a(f"buffer_load_dwordx4 v10, s[36:39], s51 offen {SNT}lds")
a("s_mov_b32 exec_hi, -1")
a(f"""s_mul_i32 s61, s45, 204800
s_mul_i32 s58, s44, 5120
s_add_u32 s61, s61, s58
s_add_u32 s61, s61, {WS_WOT}
""")
if int(OPT.get("pt", 0)):
    srd_ws_dbg()
    a("v_lshlrev_b32 v16, 7, v1"); a("s_mov_b32 exec_hi, 0xff")
    a("buffer_load_dword v17, v16, s[32:35], s61 offen"); a("s_mov_b32 exec_hi, -1")
    a("s_mov_b32 s87, 9"); a("s_branch L_LD_BAR")
else: a("s_mov_b32 s87, 8"); a("s_branch L_LD_BAR")
a("L_SIDE_B:")
assert SB >= SA + 2
a("""v_lshrrev_b32 v16, 5, v1
v_lshlrev_b32 v16, 4, v16
v_bfe_u32 v17, v1, 4, 1
v_lshl_add_u32 v16, v17, 2, v16
v_bfe_u32 v17, v1, 2, 2
v_add_u32 v16, v16, v17
v_mul_u32_u24 v16, 160, v16
v_add_u32 v16, s62, v16
v_and_b32 v17, 3, v1
v_lshl_add_u32 v18, v17, 4, v16
v_lshl_add_u32 v19, v17, 3, v16""")
for T in range(5):
    for j in range(2):
        if T < 4: a(f"ds_read_b64_tr_b16 v[{20+4*T+2*j}:{21+4*T+2*j}], v18 offset:{j*1280 + 64*(T>>1) + 8*(T&1)}")
        else: a(f"ds_read_b64_tr_b16 v[{20+4*T+2*j}:{21+4*T+2*j}], v19 offset:{j*1280 + 128}")
a("s_waitcnt lgkmcnt(0)")
for T in range(4): a(f"buffer_store_dwordx4 v[{20+4*T}:{23+4*T}], v12, s[32:35], s61 offen offset:{1024*T} sc1")
a("s_add_u32 s61, s61, 4096")
a(f"buffer_store_dwordx4 v[36:39], v12, s[32:35], s61 offen sc1")
a("s_mov_b32 s87, 6"); a("s_branch L_LD_BAR")
a("L_TOK_A:")
srd_ws_dbg()
a("""v_lshlrev_b32 v12, 4, v1
v_mov_b32 v13, 0
s_mov_b64 exec, 1
buffer_load_dword v15, v13, s[40:43], 0 offen sc1
s_mov_b64 exec, -1
s_cmp_lg_u32 s56, 0
s_cbranch_scc1 L_SIDE_B
s_mov_b32 s87, 1
s_branch L_LD_BAR""")
a("L_TOK_B:")
srd_ws_dbg()
a(f"""s_mov_b32 s60, 0
v_mov_b32 v13, 0
L_TOK_CHK:
v_readlane_b32 s75, v15, 0
s_add_u32 s60, s60, 1
s_cmp_lg_u32 s75, 0
s_cbranch_scc1 L_TOK_OK
s_cmp_ge_u32 s60, {SPIN_MAX}
s_cbranch_scc1 L_TOK_OK
s_sleep 4
s_mov_b64 exec, 1
buffer_load_dword v15, v13, s[40:43], 0 offen sc1
s_mov_b64 exec, -1
s_waitcnt vmcnt(0)
s_branch L_TOK_CHK
L_TOK_OK:
v_mov_b32 v14, {TOK_LDS}
v_mov_b32 v15, s75
ds_write_b32 v14, v15
s_cmp_eq_u32 s56, 0
s_waitcnt lgkmcnt(0)
s_cbranch_scc1 L_LD_WAIT
s_and_b32 s45, s57, 7
s_lshl_b32 s45, s45, 13
s_lshr_b32 s44, s57, 3
s_lshl_b32 s44, s44, 7
s_add_u32 s45, s45, s44
s_add_u32 s45, s45, {WS_FW}
v_lshlrev_b32 v13, 2, v1
s_mov_b32 exec_hi, 0
buffer_store_dword v15, v13, s[32:35], s45 offen sc1
s_mov_b32 exec_hi, -1
s_mov_b32 s87, 1
s_branch L_LD_BAR""")
a("L_WOF_A:")
srd_ws_dbg()
consumer_ids()
a(f"""s_lshl_b32 s59, s84, 13
s_add_u32 s59, s59, {WS_FW}
s_lshr_b32 s44, s64, 1
s_mul_i32 s44, s44, 2560
s_add_u32 s59, s59, s44
v_lshlrev_b32 v13, 7, v1
v_lshlrev_b32 v12, 4, v1
s_mov_b64 exec, 0xfffff
buffer_load_dword v14, v13, s[32:35], s59 offen sc1
s_mov_b64 exec, -1""")
if LP: a("s_waitcnt vmcnt(1)"); a("s_barrier")
else: a("s_mov_b32 s87, 1"); a("s_branch L_LD_BAR")
a("L_WOF_B:")
srd_ws_dbg()
a("""v_lshlrev_b32 v12, 4, v1
v_lshlrev_b32 v13, 7, v1
s_mov_b64 exec, 0xfffff
s_mov_b32 s60, 0""")
a(f"s_waitcnt vmcnt({0 if LP else 12})")
a(f"""L_WO_POLL:
v_cmp_ne_u32 vcc, s75, v14
s_cbranch_vccz L_WO_OK
s_add_u32 s60, s60, 1
s_cmp_ge_u32 s60, {SPIN_MAX}
s_cbranch_scc1 L_WO_OK
s_sleep 4
buffer_load_dword v14, v13, s[32:35], s59 offen sc1
s_waitcnt vmcnt(0)
s_branch L_WO_POLL
L_WO_OK:
s_mov_b64 exec, -1
s_setprio 0""")
stamp(a, 29)
CL = {"S1": (0, 24, 49152, 24576), "S2": (24, 14, 98304, 14336), "S0": (38, 24, 0, 24576), "TOP": (62, 6, 151552, 6144), "TB": (68, 2, 147456, 2048),
      "R1": (70, 24, 49152, 24576), "R2": (94, 6, 98304, 14336)}
a(f"""s_mul_i32 s58, s84, 204800
s_add_u32 s58, s58, {WS_WOT}
s_lshr_b32 s44, s64, 1
s_and_b32 s45, s64, 1
s_lshl_b32 s45, s45, 10
s_mul_i32 s59, s44, 102400
s_add_u32 s59, s59, s58
s_add_u32 s59, s59, s45""")
rotbit("s54"); a("s_mul_i32 s54, s54, 51200"); a("s_sub_u32 s55, s59, s54"); a("s_add_u32 s59, s59, s54")
def dma_class(nm, lo=0, hi=None):
    l0, n, base, delta = CL[nm]
    a(f"s_mul_i32 s53, s44, {delta}"); a("s_add_u32 s53, s53, s45")
    for j in range(lo, n if hi is None else hi, 2):
        a(f"s_add_u32 m0, s53, {base + j*1024}"); a(f"s_add_u32 s51, {'s59' if l0 + j < 50 else 's55'}, {(l0 + j)*1024}")
        a(f"buffer_load_dwordx4 v12, s[32:35], s51 offen sc1 lds")
dma_class("S1", 0, NS1)
if not LP: a(f"s_waitcnt vmcnt({NS1//2})"); a("s_barrier")
dma_class("S1", NS1); dma_class("S2"); dma_class("TOP")
a("s_waitcnt vmcnt(7)")
stamp(a, 30)
a("s_barrier")
dma_class("S0"); dma_class("TB")
TOK = 253
a(f"v_mov_b32 v{TOK}, s75")
a("s_branch L_P2_PRE")
a("L_COMPUTE:")
a("s_load_dwordx4 s[76:79], s[0:1], 64")
ev(a, "start")
a(f"s_setprio {OPT.get('cprio', 3)}")
ids()
a("""s_mov_b32 s39, 0x20000
s_mov_b32 s56, 0
s_cmp_eq_u32 s22, 3
s_cbranch_scc1 L_C_GW
s_cmp_eq_u32 s22, 2
s_cbranch_scc1 L_C_TOK""")
if int(OPT.get("wpe", 0)):
    a("""s_cmp_eq_u32 s22, 1
    s_cselect_b32 s36, s14, s8
    s_cselect_b32 s37, s15, s9
    s_mov_b32 s38, 819200
    v_lshlrev_b32 v140, 7, v1
    v_lshrrev_b32 v141, 1, v1
    v_lshl_add_u32 v140, v141, 10, v140
    s_lshr_b32 s44, s2, 3
    s_mul_i32 s44, s44, 25600
    s_and_b32 s45, s2, 7
    s_mul_i32 s45, s45, 160
    s_add_u32 s44, s44, s45
    s_mov_b32 exec_hi, 0xff
    buffer_load_dword v241, v140, s[36:39], s44 offen
    s_mov_b32 exec_hi, -1""")
a("s_branch L_C_SETUP")
a("L_C_GW:")
a(f"""s_waitcnt lgkmcnt(0)
s_mov_b32 s36, s16
s_mov_b32 s37, s17
s_mov_b32 s38, 1280
v_lshlrev_b32 v140, 4, v1
s_mov_b32 m0, {GW_LDS}
v_mov_b64 v[144:145], 0
buffer_load_dwordx4 v140, s[36:39], 0 offen lds
buffer_load_dwordx4 v140, s[36:39], 0 offen offset:1024 lds
v_mov_b64 v[146:147], 0
ds_write_b128 v140, v[144:147] offset:{XOFF}
v_add_u32 v140, {STAGE}, v140
ds_write_b128 v140, v[144:147] offset:{XOFF}
v_add_u32 v140, {STAGE}, v140
ds_write_b128 v140, v[144:147] offset:{XOFF}
s_branch L_C_SETUP""")
a("L_C_TOK:")
a("""s_cmp_lg_u32 s2, 0
s_cbranch_scc1 L_C_CPF
s_memrealtime s[44:45]
v_mov_b32 v147, 0
s_waitcnt lgkmcnt(0)""")
srd_ws_dbg()
a("""s_or_b32 s44, s44, 1
v_mov_b32 v146, s44
s_mov_b64 exec, 1
buffer_atomic_cmpswap v[146:147], v147, s[40:43], 0 offen sc1
s_mov_b64 exec, -1
L_C_CPF:
s_getpc_b64 s[70:71]
L_PC:
s_sub_u32 s70, s70, L_PC - L_SIDE_B
s_subb_u32 s71, s71, 0
""")
if ECP: pass
elif int(OPT.get("ccp", 1)):
    a(f"""s_lshr_b32 s44, s2, 3
    s_mul_i32 s44, s44, 6
    v_min_u32 v140, 5, v1
    v_add_lshl_u32 v140, v140, s44, 7
    v_min_u32 v140, CODE_END - L_SIDE_B - 4, v140
    global_load_dword v241, v140, s[70:71]""")
else:
    a("""v_lshlrev_b32 v140, 7, v1
v_add_u32 v141, 8192, v140
v_add_u32 v142, 16384, v140
v_min_u32 v140, CODE_END - L_SIDE_B - 4, v140
v_min_u32 v141, CODE_END - L_SIDE_B - 4, v141
v_min_u32 v142, CODE_END - L_SIDE_B - 4, v142
global_load_dword v241, v140, s[70:71]
global_load_dword v241, v141, s[70:71]
global_load_dword v241, v142, s[70:71]""")
a("L_C_SETUP:")
if COV == 2:
    a("s_cmp_eq_u32 s56, 0"); a("s_cbranch_scc1 L_C_S2")
    a("buffer_load_dword v241, v252, s[36:39], s57 offen")
    a("L_C_S2:")
VWA, VWB, VX0, VX1, VGX0, VGX1, VGW = 2, 3, 4, 5, 6, 7, 240
ACCQ, ACCK, ACCV, ACCH = 8, 48, 88, 128
RING, XB, GX = 140, 180, 204
MC, MP, MP0, AM, ONES = 220, 224, 228, 232, 236
def acc(seg, t, T): return (ACCQ, ACCK, ACCV)[seg] + t * 20 + T * 4
a("s_setprio 0")
a(f"""v_lshrrev_b32 v140, 4, v1
v_and_b32 v141, 15, v1
v_lshrrev_b32 v142, 5, v1
v_lshlrev_b32 v142, 4, v142
v_and_b32 v143, 1, v140
v_lshl_add_u32 v142, v143, 2, v142
v_lshrrev_b32 v143, 2, v141
v_add_u32 v142, v142, v143
v_mul_u32_u24 v145, 480, v142
v_and_b32 v143, 3, v141
v_lshl_add_u32 v{VWA}, v143, 3, v145
v_mul_u32_u24 v144, 40, v143
v_add3_u32 v{VWB}, v145, v144, 32
v_lshrrev_b32 v144, 1, v141
v_xor_b32 v144, v144, v140
v_lshlrev_b32 v144, 4, v144
v_lshl_add_u32 v{VX0}, v141, 7, v144
v_xor_b32 v{VX1}, 64, v{VX0}
s_and_b32 s44, s20, 7
s_lshl_b32 s44, s44, 11
v_add_u32 v{VGX0}, s44, v{VX0}
v_add_u32 v{VGX1}, s44, v{VX1}
v_lshlrev_b32 v{VGW}, 4, v140
v_add_u32 v{VGW}, {GW_LDS}, v{VGW}""")
a(f"s_mov_b32 s44, {NEG}")
a(f"v_mov_b32 v146, s44")
a("s_lshr_b32 s45, s21, 1"); a("s_or_b32 s45, s45, s22")
a("v_lshlrev_b32 v145, 2, v140"); a("v_sub_u32 v145, v141, v145")
for r in range(4): a(f"v_subrev_u32 v{150+r}, {r}, v145")
for r in range(4):
    a(f"v_cmp_gt_u32 vcc, 8, v{150+r}"); a(f"v_cmp_gt_i32 s[72:73], -8, v{150+r}")
    a(f"v_mov_b32 v{ONES+r}, 0x3f803f80")
    a(f"v_cndmask_b32 v{MC+r}, v146, 0, vcc"); a(f"v_cndmask_b32 v{MP+r}, v146, 0, s[72:73]")
a("s_cmp_eq_u32 s45, 0"); a("s_cselect_b64 vcc, -1, 0")
for r in range(4): a(f"v_cndmask_b32 v{MP0+r}, v{MP+r}, v146, vcc")
a("s_mov_b32 s44, 0xffff0000")
for h in range(2):
    a(f"v_ashrrev_i32 v154, 31, v{150+2*h}"); a(f"v_ashrrev_i32 v155, 31, v{151+2*h}")
    a(f"v_bfi_b32 v{AM+h}, s44, v155, v154"); a(f"v_not_b32 v{AM+2+h}, v{AM+h}")
a(f"""s_mov_b64 s[48:49], 0xffff
s_mov_b32 s50, 0xffff0000
s_mov_b32 s51, 0
s_mov_b32 s52, 0
s_mov_b32 s53, 0xffff
s_mov_b32 s54, 0
s_mov_b32 s55, 0xffff0000
s_mov_b32 s63, {STAGE}
s_mov_b32 s74, 128
s_mov_b32 s92, {CEXP}
s_mov_b32 s93, {CEXP}
s_lshl_b32 s94, s21, 3
s_lshl_b32 s95, s22, 1
s_add_u32 s94, s94, s95
s_mul_i32 s94, s94, {OTT}
s_mul_i32 s95, s20, {OBLK}
s_add_u32 s94, s94, s95
s_add_u32 s95, s94, {OTT}""")
for r in range(ACCQ, ACCH + 12, 2): a(f"v_mov_b64 v[{r}:{r+1}], 0")
a("s_waitcnt vmcnt(0) lgkmcnt(0)")
stamp0(a)
srd_ws_dbg()
stamp(a, 4)
if COV in (1, 3):
    a("s_cmp_eq_u32 s56, 0"); a("s_cbranch_scc1 L_C_GO")
    if COV == 3: a("s_setprio 3")
    a("buffer_load_dword v241, v252, s[36:39], s57 offen")
a("s_setprio 0")
a("L_C_GO:")
a("""s_mov_b32 s44, 0
s_mov_b32 s45, 0""")
for w in range(1, 4):
    a(f"s_cmp_eq_u32 s22, {w}"); a(f"s_cbranch_scc1 L_W{w}")
KOP = {1: 140, 0: 156, -1: 204}
VOP = 172; QOP = {1: 68, 0: 108}
def kop(t, h): return KOP[t] + 4 * h
def vop(T, t): return VOP + 6 * T + 2 * (t + 1)
def qop(t, h): return QOP[t] + 4 * h
def cv2(d, s): return [f"v_cvt_pk_bf16_f32 v{d}, v{s}, v{s+1}", f"v_cvt_pk_bf16_f32 v{d+1}, v{s+2}, v{s+3}"]
HALO = [[(1,0),(1,1),(1,2)], [(1,3),(1,4),(2,0)], [(2,1),(2,2)], [(2,3),(2,4)]] if OPT.get('hal') == '0' else [[(1,0),(1,2),(2,0)], [(1,1),(1,3),(2,1)], [(1,4),(2,2),(2,3)], [(2,4)]]
D = 5
def istep(f): return f - 5 if f <= 14 else (f - 6 if f <= 21 else f - 7)
for w in range(4):
    gate = (w == 3)
    q = []
    def rdW(f):
        ks, seg, T = f // 15, (f % 15) // 5, f % 5
        d = RING + (f % 10) * 4
        if "nods" in XP: return [("s_nop 0", ("W", f))] * 2
        if "ds9" in XP and T in (1, 3):
            if seg < 2 and T == 1: return [(f"ds_read_b128 v[{d}:{d+3}], v{(VX0, VX1)[ks]} offset:{XOFF + 4096}", ("W", f))]
            return []
        return [(f"ds_read_b64_tr_b16 v[{d+2*j}:{d+2*j+1}], v{VWA if T < 4 else VWB} offset:{seg*160 + ks*15360 + j*3840 + (40*T if T < 4 else 0)}", ("W", f)) for j in range(2)]
    def rdX(ks):
        o = []
        for n, tile in enumerate((1 + 2 * w, 2 + 2 * w, 0)):
            d = XB + (ks * 3 + n) * 4
            o.append((f"ds_read_b128 v[{d}:{d+3}], v{(VX0, VX1)[ks]} offset:{XOFF + tile*2048}", ("X", ks)))
        if gate:
            d = GX + ks * 8
            o.append((f"ds_read_b128 v[{d}:{d+3}], v{(VGX0, VGX1)[ks]} offset:{XOFF + 2048}", ("X", ks)))
            o.append((f"ds_read_b128 v[{d+4}:{d+7}], v{VGW} offset:{ks*64}", ("X", ks)))
        return o
    def wait(b, tags):
        if not any(t in tags for t in q): return
        last = max(i for i, t in enumerate(q) if t in tags)
        b(f"s_waitcnt lgkmcnt({min(len(q) - 1 - last, 15)})")
    def mm(f):
        ks, seg, T = f // 15, (f % 15) // 5, f % 5
        wf = vr(RING + (f % 10) * 4); o = []
        def one(dst, xf):
            o.append(f"{MF} {vr(dst)}, {wf}, {xf}, {vr(dst)}" if seg < 2 else f"{MF} {vr(dst)}, {xf}, {wf}, {vr(dst)}")
        one(acc(seg, 0, T), vr(XB + (ks * 3) * 4)); one(acc(seg, 1, T), vr(XB + (ks * 3 + 1) * 4))
        if (seg, T) in HALO[w]: one(ACCH + 4 * HALO[w].index((seg, T)), vr(XB + (ks * 3 + 2) * 4))
        if gate and seg == 0 and T == 2:
            d = GX + ks * 8
            o.append(f"{MF} {vr(ACCH+8)}, {vr(d+4)}, {vr(d)}, {vr(ACCH+8)}")
        return o
    def weave(b, ms, fs, lastless=True):
        n = len(ms)
        if OPT.get("wv", "1") == "1":
            ds = [t for t in fs if t[1] is not None]; ot = [t for t in fs if t[1] is None]
            per = [[] for _ in range(n)]
            cnt = [0] * n
            for i in range(len(ds)): cnt[i % n] += 1
            it = iter(ds)
            for j in range(n):
                for _ in range(cnt[j]): per[j].append(next(it))
            lo = 0
            for t in ot:
                load = [len(per[j]) + (1 if (lastless and j == n - 1) else 0) for j in range(n)]
                j = min(range(lo, n), key=lambda k: load[k]); lo = j
                per[j].append(t)
            for m_, p_ in zip(ms, per):
                b(m_)
                for t in p_:
                    b(t[0])
                    if t[1] is not None: q.append(t[1])
            return
        k = len(fs)
        cnt = [0] * n
        for i in range(k):
            load = [cnt[j] + (1 if (lastless and j == n - 1) else 0) for j in range(n)]
            cnt[load.index(min(load))] += 1
        it = iter(fs)
        for m_, c_ in zip(ms, cnt):
            b(m_)
            for _ in range(c_):
                t = next(it)
                b(t[0])
                if t[1] is not None: q.append(t[1])
    FA = {s: [] for s in range(25, 30)}
    x0 = rdX(0)
    FA[25] = x0[:2] + rdW(0); FA[26] = x0[2:4] + rdW(1); FA[27] = x0[4:] + rdW(2); FA[28] = rdW(3); FA[29] = rdW(4)
    FB = {s: [] for s in range(25)}
    for f in range(D, 30): FB[istep(f)] += rdW(f)
    x1 = rdX(1)
    for i, t in enumerate(x1): FB[2 + i].append(t)
    sal = ["s_add_u32 s45, s45, 1", "s_cmp_eq_u32 s45, 3", f"s_cselect_b32 s46, {(-2*STAGE) & 0xffffffff}, s63", "s_cselect_b32 s45, 0, s45"]
    for i, t in enumerate(sal): FB[10 + i].append((t, None))
    if gate:
        FB[20].append((f"v_add_u32 v{VGW}, s74, v{VGW}", None))
        FB[21].append((f"v_add_u32 v{VGX0}, s46, v{VGX0}", None)); FB[22].append((f"v_add_u32 v{VGX1}, s46, v{VGX1}", None))
    FB[20].append((f"v_add_u32 v{VX0}, s46, v{VX0}", None)) if not gate else FB[14].append((f"v_add_u32 v{VX0}, s46, v{VX0}", None))
    FB[23] += [(f"v_add_u32 v{VX1}, s46, v{VX1}", None), (f"v_add_u32 v{VWA}, s46, v{VWA}", None), (f"v_add_u32 v{VWB}, s46, v{VWB}", None)]
    FB[24] += [("s_add_u32 s44, s44, 1", None), ("s_cmp_eq_u32 s44, 10", None)]
    pre = Asm(); pa = Asm(); pb = Asm(); tail = Asm()
    stamp(pre, 5)
    pre("s_barrier")
    if STAMP: stamp2(pre, 6, 50)
    ev(pre, "b0")
    for s in range(25, 30):
        for t in FA[s]: pre(t[0])
    q.clear()
    if not LS: pa("s_waitcnt lgkmcnt(0)")
    pa("s_barrier")
    for s in range(25, 30): weave(pa, mm(s), FA[s], lastless=(s == 29))
    if LS: pre(f"s_branch L_LB{w}")
    else: pa(f"s_branch L_LB{w}")
    for s in range(25):
        tags = [("W", s)] + ([("X", 0)] if s == 0 else []) + ([("X", 1)] if s == 15 else [])
        wait(pb, tags); weave(pb, mm(s), FB[s])
    if LS: pb("s_waitcnt lgkmcnt(0)"); pb(f"s_cbranch_scc0 L_LA{w}")
    else: pb(f"s_cbranch_scc1 L_T{w}")
    tail(f"v_mov_b32 v{TOK}, {TOK_LDS}")
    tail("s_waitcnt lgkmcnt(0)")
    tail(f"ds_read_b32 v{TOK}, v{TOK}")
    tm = [m_ for s in range(25, 30) for m_ in mm(s)]
    fl = [f"v_lshlrev_b32 v{VWA}, 3, v1", f"v_add_u32 v{VX1}, {XCH}, v{VWA}"]
    if TOV:
        fl += [f"v_add_u32 v{VWB}, {XCH + 5120*w}, v{VWA}", f"v_add_u32 v{VX0}, {XCH + 5120*(w+1)}, v{VWA}"]
        for h in (0, 1, 2, 3, 4):
            d = 140 + 4 * h if h < 4 else 142; sr = acc(1, 1, h)
            fl += [f"v_cvt_pk_bf16_f32 v{d}, v{sr}, v{sr+1}", f"v_cvt_pk_bf16_f32 v{d+1}, v{sr+2}, v{sr+3}"]
            if w < 3: fl.append(f"ds_write_b64 v{VX0}, v[{d}:{d+1}] offset:{h*512}")
        for h in (1, 2, 3):
            d = 142 + 4 * h; sr = acc(1, 1, 4)
            fl += [f"v_cvt_pk_bf16_f32 v{d}, v{sr}, v{sr+1}", f"v_cvt_pk_bf16_f32 v{d+1}, v{sr+2}, v{sr+3}"]
    for n_, m_ in enumerate(tm):
        tail(m_)
        for x in fl[2*n_:2*n_+2]: tail(x)
    for x in fl[2*len(tm):]: tail(x)
    if gate:
        z = ACCH + 8
        tail(f"""v_cvt_pk_bf16_f32 v248, v{z}, v{z}
        v_and_b32 v248, 0xffff0000, v248
        v_mul_f32 v248, {LOG2E ^ 0x80000000}, v248
        v_exp_f32 v248, v248
        s_lshl_b32 s46, s21, 3
        v_add_f32 v248, 1.0, v248
        v_rcp_f32 v248, v248
        s_add_u32 s46, s46, s20
        v_cvt_pk_bf16_f32 v248, v248, v248
        v_and_b32 v248, 0xffff0000, v248
        s_lshl_b32 s46, s46, 7
        s_add_u32 s46, s46, {WS_G}
        s_waitcnt lgkmcnt(0)
        v_sub_u32 v249, v{TOK}, v248""")
    snd = []
    for n, (seg, T) in enumerate(HALO[w]):
        snd.append(cv2(242 + 2*n, ACCH + 4*n) + [f"ds_write_b64 v{VX1}, v[{242+2*n}:{243+2*n}] offset:{((seg-1)*5+T)*512}"])
    for T in range(5):
        snd.append(cv2(vop(T, 1), acc(2, 1, T)) + ([f"ds_write_b64 v{VX0}, v[{vop(T,1)}:{vop(T,1)+1}] offset:{(5+T)*512}"] if w < 3 else []))
    nh = len(HALO[w])
    if w >= 2: snd = snd[nh:] + snd[:nh]
    rest = ["s_setprio 2"] + cv2(250, acc(0, 1, 4))
    for h in range(4): rest += cv2(qop(1, h), acc(0, 1, h))
    for h in range(4):
        for j in range(2): rest.append(f"v_cndmask_b32 v{qop(1,h)+2+j}, 0, v{250+j}, s[{48+2*h}:{49+2*h}]")
    for k_, x in enumerate(snd):
        for l in x + rest[2*k_:2*k_+2]: tail(l)
    for l in rest[2*len(snd):]: tail(l)
    if gate:
        tail(f"""s_cmp_ge_u32 s20, 8
        s_cbranch_scc1 L_ATT
        s_mov_b64 exec, 0xffff
        buffer_store_dwordx2 v[248:249], v{VWA}, s[32:35], s46 offen sc1
        s_mov_b64 exec, -1""")
    else: tail("s_branch L_ATT")
    if w > 0: a(f"L_W{w}:")
    if LS:
        a.extend(pre); a(f".p2align {AL}"); a(f"L_LA{w}:"); a.extend(pa); a(f"L_LB{w}:"); a.extend(pb); a(f"L_T{w}:"); a.extend(tail)
    else:
        a.extend(pre); a(f".p2align {AL}"); a(f"L_LB{w}:"); a.extend(pb); a.extend(pa); a(f"L_T{w}:"); a.extend(tail)
    traces.append(pre.L + pb.L + pa.L + pb.L + fix(tail.L)[0])
a("L_ATT:")
if STAMP: stamp2(a, 30, 51)
ev(a, "gemm")
KOP = {1: 140, 0: 156, -1: 204}
VOP = 172; QOP = {1: 68, 0: 108}
def kop(t, h): return KOP[t] + 4 * h
def vop(T, t): return VOP + 6 * T + 2 * (t + 1)
def qop(t, h): return QOP[t] + 4 * h
g = Asm()
def cvt(d, s): g(f"v_cvt_pk_bf16_f32 v{d}, v{s}, v{s+1}"); g(f"v_cvt_pk_bf16_f32 v{d+1}, v{s+2}, v{s+3}")
def flush(name):
    global g
    o, t = schedule(g.L, st_lat=STL); print(f"; sched {name}: {len(o)} instrs, est {t} cycles", file=sys.stderr)
    for n, l in enumerate(o):
        if OPT.get("astamp") and n and n % 45 == 0: a(f"s_memtime s[{86 + 2*(n//45)}:{87 + 2*(n//45)}]") if n // 45 < 8 else None
        a(l)
    if OPT.get("astamp"):
        a("s_waitcnt lgkmcnt(0)")
        for k in range(1, 8): a(f"v_writelane_b32 v{SV}, s{86+2*k}, {9+k}")
    g = Asm()
stamp(a, 31)
a("s_waitcnt lgkmcnt(0)"); a("s_barrier")
stamp(a, 32)
for h in range(4):
    g(f"ds_read_b64 v[{kop(-1,h)}:{kop(-1,h)+1}], v{VWB} offset:{h*512}")
    g(f"ds_read_b64 v[{kop(-1,h)+2}:{kop(-1,h)+3}], v{VWB} offset:{4*512}")
for T in range(5): g(f"ds_read_b64 v[{vop(T,-1)}:{vop(T,-1)+1}], v{VWB} offset:{(5+T)*512}")
g("@wait")
g(f"v_lshlrev_b32 v{VX0}, 4, v1"); g(f"v_mul_u32_u24 v{VWA}, 12, v1")
for h in range(4): cvt(kop(0, h), acc(1, 0, h)); cvt(kop(0, h) + 2, acc(1, 0, 4))
for T in range(5): cvt(vop(T, 0), acc(2, 0, T))
cvt(246, acc(0, 0, 4))
for h in range(4): cvt(qop(0, h), acc(0, 0, h))
for h in range(4):
    for j in range(2): g(f"v_cndmask_b32 v{qop(0,h)+2+j}, 0, v{246+j}, s[{48+2*h}:{49+2*h}]")
SR = {1: [28, 32, 36, 40, 44, 48, 52, 56], 0: [8, 12, 16, 20, 24, 88, 92, 96]}
def dc(t, h): return SR[t][h]
def dp(t, h): return SR[t][4 + h]
MX = {1: 84, 0: 124}; TMP = {1: 128, 0: 132}
OREG = {1: [68, 72, 76, 80, 140, 144, 148, 152, 60, 64, 100, 104], 0: [108, 112, 116, 120, 156, 160, 164, 168, 204, 208, 212, 216]}
def oo(t, h, k): return OREG[t][k * 4 + h]
for t in (1, 0):
    for h in range(4):
        g(f"{MF} {vr(dc(t,h))}, {vr(kop(t,h))}, {vr(qop(t,h))}, {vr(MC)}")
        g(f"{MF} {vr(dp(t,h))}, {vr(kop(t-1,h))}, {vr(qop(t,h))}, {vr(MP if t else MP0)}")
for t in (1, 0):
    for h in range(4):
        for r in range(4): g(f"v_max_f32 v{dc(t,h)+r}, v{dc(t,h)+r}, v{dp(t,h)+r}")
        g(f"v_max3_f32 v{MX[t]+h}, v{dc(t,h)}, v{dc(t,h)+1}, v{dc(t,h)+2}")
        g(f"v_max_f32 v{MX[t]+h}, v{MX[t]+h}, v{dc(t,h)+3}")
    m = MX[t]
    g(f"""v_permlane32_swap_b32 v{m}, v{m+1}
    v_permlane32_swap_b32 v{m+2}, v{m+3}
    v_max_f32 v{m}, v{m}, v{m+1}
    v_max_f32 v{m+2}, v{m+2}, v{m+3}
    v_permlane16_swap_b32 v{m}, v{m+2}
    v_max_f32 v{m}, v{m}, v{m+2}
    v_mul_f32 v{m+2}, s92, v{m}
    v_mul_f32 v{m}, s92, v{m}
    v_permlane16_swap_b32 v{m}, v{m+2}
    v_mov_b32 v{m+1}, v{m}
    v_mov_b32 v{m+3}, v{m+2}
    v_permlane32_swap_b32 v{m}, v{m+1}
    v_permlane32_swap_b32 v{m+2}, v{m+3}""")
    for h in range(4):
        d = dc(t, h); p = dp(t, h)
        if PK:
            mp_ = m + (h & 2); e = h & 1
            for r in (0, 2): g(f"v_pk_fma_f32 v[{d+r}:{d+r+1}], v[{d+r}:{d+r+1}], s[92:93], v[{mp_}:{mp_+1}] op_sel:[0,0,{e}] op_sel_hi:[1,1,{e}] neg_lo:[0,0,1] neg_hi:[0,0,1]")
        else:
            for r in range(4): g(f"v_fma_f32 v{d+r}, v{d+r}, s92, -v{m+h}")
        for r in range(4): g(f"v_exp_f32 v{d+r}, v{d+r}")
        g(f"v_cvt_pk_bf16_f32 v{d}, v{d}, v{d+1}"); g(f"v_cvt_pk_bf16_f32 v{d+2}, v{d+2}, v{d+3}")
        g(f"v_and_b32 v{p}, v{AM}, v{d}"); g(f"v_and_b32 v{p+1}, v{AM+1}, v{d+2}")
        g(f"v_and_b32 v{p+2}, v{AM+2}, v{d}"); g(f"v_and_b32 v{p+3}, v{AM+3}, v{d+2}")
    for h in range(4):
        g(f"{MF} {vr(oo(t,h,2))}, {vr(ONES)}, {vr(dp(t,h))}, 0")
        g(f"{MF} {vr(oo(t,h,0))}, {vr(vop(h,t-1))}, {vr(dp(t,h))}, 0")
        g(f"{MF} {vr(oo(t,h,1))}, {vr(vop(4,t-1))}, {vr(dp(t,h))}, 0")
    for h in range(4):
        o0 = oo(t, h, 0); rc = oo(t, h, 2)
        g(f"v_rcp_f32 v{rc}, v{rc}")
        if PK:
            for r in (0, 2): g(f"v_pk_mul_f32 v[{o0+r}:{o0+r+1}], v[{o0+r}:{o0+r+1}], v[{rc}:{rc+1}] op_sel_hi:[1,0]")
        else:
            for r in range(4): g(f"v_mul_f32 v{o0+r}, v{o0+r}, v{rc}")
        for r in range(4): g(f"v_mul_f32_dpp v{TMP[t]+r}, v{oo(t,h,1)+r}, v{rc} quad_perm:[0,1,2,3] row_mask:{hex(1<<h)} bank_mask:0xf")
        cvt(dc(t, h >> 1) + 2 * (h & 1), o0)
    cvt(dc(t, 2), TMP[t])
    so = "s95" if t else "s94"
    c = dc(t, 2)
    for p in range(2):
        g(f"buffer_store_dwordx4 {vr(dc(t, p))}, v{VX0}, s[32:35], {so} offen offset:{1024*p} {OSF}")
    d = dc(t, 0); e = dc(t, 1)
    g(f"v_add3_u32 v{c+2}, v{d}, v{d+1}, v{d+2}"); g(f"v_add3_u32 v{c+3}, v{e}, v{e+1}, v{e+2}")
    g(f"v_add3_u32 v{c+2}, v{c+2}, v{d+3}, v{e+3}"); g(f"v_add3_u32 v{c+2}, v{c+2}, v{c+3}, v{TOK}")
    g(f"v_add3_u32 v{c+2}, v{c+2}, v{c}, v{c+1}")
    g(f"buffer_store_dwordx3 {vr(c,3)}, v{VWA}, s[32:35], {so} offen offset:2048 {OSF}")
WR = 48
def rd_reg(l): return f"ds_read_b128 {vr(WR+4*l)}, v{248 if l < 24 else 249} offset:{(l % 24)*1024}"
if HR:
    g(f"v_add_u32 v248, {CL['S1'][2]}, v{VX0}"); g(f"v_add_u32 v249, {CL['S2'][2]}, v{VX0}")
    early = [22, 9, 0, 1, 2, 5, 6, 7, 8, 3, 4, 13, 14, 23, 24, 25, 26, 20]
    for l in early + [l for l in (19, 10, 11, 12, 15, 16, 17, 18, 27, 28, 29, 21)]: g(rd_reg(l))
flush("attention")
if STAMP: stamp2(a, 35, 52)
ev(a, "att")
WR = 48
NRK = 6
OR_ = 168
AC = 224
CK = 244
BA = {"S1": 248, "S2": 249, "S0": 250, "TOP": 251, "R1": 248, "R2": 249, "TB": 252}
def lring(l):
    k = (l - 30) % 15
    return 8 + 4 * k
if HR: a("s_branch L_P2_PRE2")
a("L_P2_PRE:")
a("v_lshlrev_b32 v2, 4, v1")
a("s_lshr_b32 s64, s22, 2")
a(f"s_mul_i32 s60, s64, {CL['S1'][3]}"); a(f"s_add_u32 s60, s60, {CL['S1'][2]}"); a(f"v_add_u32 v{BA['S1']}, s60, v2")
a(f"s_mul_i32 s60, s64, {CL['S2'][3]}"); a(f"s_add_u32 s60, s60, {CL['S2'][2]}"); a(f"v_add_u32 v{BA['S2']}, s60, v2")
for l in range(30): a(rd_reg(l))
a("L_P2_PRE2:")
if HR:
    a("s_waitcnt lgkmcnt(0)"); stamp(a, 36); a("s_barrier"); stamp(a, 37)
    a("s_cmp_lt_u32 s22, 4"); a("s_cbranch_scc1 L_P2_C")
    dma_class("R1"); dma_class("R2")
    a("L_P2_C:")
    a("v_lshlrev_b32 v2, 4, v1"); a("s_lshr_b32 s64, s22, 2")
for nm in ("S0", "TOP", "TB"):
    a(f"s_mul_i32 s60, s64, {CL[nm][3]}"); a(f"s_add_u32 s60, s60, {CL[nm][2]}"); a(f"v_add_u32 v{BA[nm]}, s60, v2")
consumer_ids()
rotbit("s86")
a(f"""s_and_b32 s65, s22, 3
s_lshl_b32 s67, s85, 2
s_add_u32 s67, s67, s65
s_mul_i32 s80, s67, {OTT}
s_mul_i32 s60, s64, {8*OBLK}
s_add_u32 s80, s80, s60
v_mul_u32_u24 v3, 12, v1
v_add_u32 v3, 2048, v3
v_and_b32 v4, 15, v1
v_lshlrev_b32 v5, 3, v4
s_lshl_b32 s62, s67, 7
s_add_u32 s62, s62, {WS_G}
v_sub_u32 v254, 0, v{TOK}
s_add_u32 s82, s80, {4*OBLK}
s_mul_i32 s86, s86, {4*OBLK}
s_add_u32 s80, s80, s86
s_sub_u32 s82, s82, s86
s_add_u32 s81, s80, {2*OBLK}
s_add_u32 s83, s82, {2*OBLK}
s_mov_b32 s28, s18
s_mov_b32 s29, s19
s_mov_b32 s30, 2621440
s_mov_b32 s31, 0x20000
s_mov_b32 s61, 0""")
if HR:
    a("s_setprio 0"); a("s_waitcnt vmcnt(0)"); stamp(a, 38)
else:
    stamp(a, 36)
    a("s_waitcnt lgkmcnt(0)")
    a("s_barrier")
    stamp(a, 37)
    a("s_cmp_lt_u32 s22, 4"); a("s_cbranch_scc1 L_P2_C")
    dma_class("R1"); dma_class("R2")
    a(f"s_setprio {OPT.get('pb', 0)}")
    if OWAIT >= 2: a("s_waitcnt vmcnt(0)"); stamp(a, 38)
    a("s_branch L_P2_GO")
    a("L_P2_C:")
    if OWAIT: a("s_waitcnt vmcnt(0)"); stamp(a, 38)
    a(f"s_setprio {OPT.get('pa', 0)}")
a("L_P2_GO:")
if OWAIT >= 2: a("s_barrier")
if OWAIT >= 3: a(f"s_sleep {OWAIT}")
if STAMP: stamp2(a, 39, 53)
ev(a, "bp")
TB = 216
def og(u, k): return OR_ + (u & 3) * 12 + k * 4
def ld_unit(u):
    m, e = u >> 1, u & 1
    return [f"buffer_load_dwordx4 {vr(og(u, k))}, v2, s[32:35], s{80+m} offen offset:{e*OBLK + k*1024} {OF}" for k in range(2)] + \
           [f"buffer_load_dwordx3 {vr(og(u, 2), 3)}, v3, s[32:35], s{80+m} offen offset:{e*OBLK} {OF}"]
def chk_unit(u):
    d = og(u, 0); f = og(u, 1); c = og(u, 2); x = CK
    return [f"v_add3_u32 v{x}, v{d}, v{d+1}, v{d+2}", f"v_add3_u32 v{x+1}, v{f}, v{f+1}, v{f+2}", f"v_add3_u32 v{x+2}, v{c}, v{c+1}, v{TOK}",
            f"v_add3_u32 v{x}, v{x}, v{d+3}, v{f+3}", f"v_add3_u32 v{x}, v{x}, v{x+1}, v{x+2}", f"v_cmp_ne_u32 vcc, v{x}, v{c+2}"]
def ld_w(i):
    if i < NRK or i >= 20: return []
    o = []
    for T in range(5):
        l = i * 5 + T
        nm = [k for k, v in CL.items() if v[0] <= l < v[0] + v[1]][0]
        o.append(f"ds_read_b128 {vr(lring(l))}, v{BA[nm]} offset:{(l - CL[nm][0]) * 1024}")
    return o
GLD = "buffer_load_dwordx2 v[6:7], v5, s[32:35], s62 offen sc1"
PRE = ["s_lshr_b32 s46, s67, 4", "s_lshl_b32 s46, s46, 8", "s_bfe_u32 s47, s67, 0x10003", "s_add_u32 s46, s46, s47", "s_and_b32 s47, s67, 7",
       "s_lshl_b32 s47, s47, 5", "s_add_u32 s46, s46, s47", "s_mul_i32 s46, s46, 1280", "s_mul_i32 s47, s84, 160", "s_add_u32 s46, s46, s47",
       "s_mul_i32 s60, s65, 5120", f"s_add_u32 s60, s60, {XCH}", f"v_add_u32 v{WR+76}, s60, v2", "v_mul_u32_u24 v4, 2560, v4", f"v_lshrrev_b32 v{WR+79}, 4, v1",
       f"v_lshl_add_u32 v{WR+77}, v{WR+79}, 4, v4", f"v_lshl_add_u32 v{WR+78}, v{WR+79}, 3, v4",
       "s_waitcnt vmcnt(0)", f"v_add3_u32 v{CK}, v6, v7, v254", f"v_cmp_ne_u32 vcc, 0, v{CK}"]
vq = []
def issue(u):
    if u < 8:
        for x in (ld_unit(u)[:2] if "no3" in XP else ld_unit(u)): a(x); vq.append(u)
    if u == 4: a(GLD); vq.append(8)
nxt_u = 0
for _ in range(U0): issue(nxt_u); nxt_u += 1
npre = 0
for u in range(8):
    m, e = u >> 1, u & 1
    last = max(k for k, t in enumerate(vq) if t == u)
    a(f"s_waitcnt vmcnt({len(vq) - 1 - last})")
    while nxt_u <= u + UD: issue(nxt_u); nxt_u += 1
    if u == 0: stamp(a, 33)
    for x in chk_unit(u): a(x)
    if "no3" not in XP: a(f"s_cbranch_vccnz L_RETRY{u}")
    a(f"L_OK{u}:")
    if u == 0: stamp(a, 34)
    tb = TB + 4 * (m & 1)
    a(f"v_mov_b64 v[{tb+2*e}:{tb+2*e+1}], v[{og(u,2)}:{og(u,2)+1}]")
    for ss in ([0, 1] if e == 0 else [2, 3, 4]):
        i = m * 5 + ss
        if i >= ET: continue
        nxt = ld_w(i + 2)
        if i >= NRK: a(f"s_waitcnt lgkmcnt({5 if i < 19 else 0})")
        of = og(u, ss & 1) if ss < 4 else tb
        for T in range(5):
            wf = vr(lring(i * 5 + T)) if i >= NRK else vr(WR + (i * 5 + T) * 4)
            if "nomf" not in XP or i == 0: a(f"{MF} {vr(AC+4*T)}, {wf}, {vr(of)}, {'0' if i == 0 else vr(AC+4*T)}")
            if nxt and "nold" not in XP: a(nxt[T])
            if 10 <= i < 15 and npre < len(PRE) - 3: a(PRE[npre]); npre += 1
            if i == min(18, ET - 1) and T >= 2: a(PRE[len(PRE) - 5 + T])
assert npre == len(PRE) - 3
if STAMP and ET > 19: stamp2(a, 56, 54)
a("s_cbranch_vccnz L_RETRYG")
a("L_OKG:")
a("s_cmp_eq_u32 s64, 0")
a("s_cbranch_scc1 L_EPI_A")
def epi(send, keep, sc):
    RA, O4, O2 = WR + 76, WR + 77, WR + 78
    for T in send:
        for r in (0, 2): a(f"v_pk_mul_f32 v[{AC+4*T+r}:{AC+4*T+r+1}], v[{AC+4*T+r}:{AC+4*T+r+1}], v[{sc}:{sc+1}] op_sel_hi:[1,0]")
    a("s_barrier")
    for T in send: a(f"ds_write_b128 v{RA}, {vr(AC+4*T)} offset:{T*1024}")
    a("s_waitcnt lgkmcnt(0)"); a("s_barrier")
    for n, T in enumerate(keep): a(f"ds_read_b128 {vr(8+4*n)}, v{RA} offset:{T*1024}")
    for n, T in enumerate(keep):
        a(f"s_waitcnt lgkmcnt({len(keep)-1-n})")
        for r in (0, 2): a(f"v_pk_fma_f32 v[{8+4*n+r}:{8+4*n+r+1}], v[{AC+4*T+r}:{AC+4*T+r+1}], v[{sc}:{sc+1}], v[{8+4*n+r}:{8+4*n+r+1}] op_sel_hi:[1,0,1]")
        a(f"v_cvt_pk_bf16_f32 v{OR_+2*n}, v{8+4*n}, v{8+4*n+1}"); a(f"v_cvt_pk_bf16_f32 v{OR_+2*n+1}, v{8+4*n+2}, v{8+4*n+3}")
        if n == 1: a(f"buffer_store_dwordx4 {vr(OR_)}, v{O4}, s[28:31], s46 offen offset:{32*keep[0]} {SF}")
        if n == 2: a(f"buffer_store_dwordx2 {vr(OR_+4,2)}, v{O2}, s[28:31], s46 offen offset:128 {SF}")
if EP:
    RA, O4, O2 = WR + 76, WR + 77, WR + 78
    def last_steps(fill, lg19):
        for i in range(ET, 20):
            a(f"s_waitcnt lgkmcnt({5 if i < 19 else lg19})")
            if i == ET and fill: a("s_barrier")
            of = og(7, 1) if i == 18 else TB + 4
            for T in range(5):
                a(f"{MF} {vr(AC+4*T)}, {vr(lring(i * 5 + T))}, {vr(of)}, {vr(AC+4*T)}")
                k = (i - ET) * 5 + T
                if k < len(fill): a(fill[k])
        if STAMP: stamp2(a, 56, 54)
    rds = [f"ds_read_b128 {vr(72+4*T)}, v{RA} offset:{T*1024}" for T in range(5)]
    scl = ["v_sub_f32 v6, 1.0, v6", "v_cvt_pk_bf16_f32 v6, v6, v6", "v_and_b32 v6, 0xffff0000, v6"]
    if ET == 18: last_steps(rds + scl, 5)
    else:
        a("s_barrier")
        for x in rds + scl: a(x)
    for T in range(5):
        a(f"s_waitcnt lgkmcnt({4-T})")
        for r in (0, 2): a(f"v_pk_fma_f32 v[{72+4*T+r}:{72+4*T+r+1}], v[{AC+4*T+r}:{AC+4*T+r+1}], v[6:7], v[{72+4*T+r}:{72+4*T+r+1}] op_sel_hi:[1,0,1]")
        a(f"v_cvt_pk_bf16_f32 v{OR_+2*T}, v{72+4*T}, v{72+4*T+1}"); a(f"v_cvt_pk_bf16_f32 v{OR_+2*T+1}, v{72+4*T+2}, v{72+4*T+3}")
        if T == 1: a(f"buffer_store_dwordx4 {vr(OR_)}, v{O4}, s[28:31], s46 offen {SF}")
        if T == 3: a(f"buffer_store_dwordx4 {vr(OR_+4)}, v{O4}, s[28:31], s46 offen offset:64 {SF}")
    a(f"buffer_store_dwordx2 {vr(OR_+8,2)}, v{O2}, s[28:31], s46 offen offset:128 {SF}")
    a("s_branch L_FIN")
    a("L_EPI_A:")
    if ET == 18: last_steps([], 0)
    else: a("s_nop 1")
    for T in range(5):
        for r in (0, 2): a(f"v_pk_mul_f32 v[{AC+4*T+r}:{AC+4*T+r+1}], v[{AC+4*T+r}:{AC+4*T+r+1}], v[6:7] op_sel_hi:[1,0]")
        a(f"ds_write_b128 v{RA}, {vr(AC+4*T)} offset:{T*1024}")
    a("s_waitcnt lgkmcnt(0)"); a("s_barrier")
else:
    a("v_sub_f32 v6, 1.0, v6"); a("v_cvt_pk_bf16_f32 v6, v6, v6"); a("v_and_b32 v6, 0xffff0000, v6")
    epi([0, 1], [2, 3, 4], 6)
    a("s_branch L_FIN")
    a("L_EPI_A:")
    a("s_nop 4")
    epi([2, 3, 4], [0, 1], 6)
ev(a, "end")
if SPIN:
    a("""s_mov_b32 s60, 0
    L_SPIN:
    s_memrealtime s[98:99]
    s_waitcnt lgkmcnt(0)
    s_sub_u32 s98, s98, s96
    s_add_u32 s60, s60, 1
    s_cmp_ge_u32 s60, 20000
    s_cbranch_scc1 L_FIN
    s_cmp_lt_u32 s98, 4000
    s_cbranch_scc1 L_SPIN""")
a("L_FIN:")
if STAMP:
    stamp(a, 57)
    a("s_add_u32 s61, s61, 1"); a(f"v_writelane_b32 v{SV}, s61, 61")
    a("s_waitcnt vmcnt(0)")
    stamp(a, 62); stamp(a, 63, True)
    a(f"s_lshl_b32 s46, s2, 3"); a(f"s_add_u32 s46, s46, s22"); a("s_lshl_b32 s46, s46, 8"); a(f"s_add_u32 s46, s46, {WS_ST}")
    a(f"v_lshlrev_b32 v2, 2, v1")
    a(f"buffer_store_dword v{SV}, v2, s[32:35], s46 offen")
a("L_END:"); a("s_endpgm")
for u in range(8):
    a(f"L_RETRY{u}:")
    a("s_add_u32 s61, s61, 1"); a(f"s_cmp_ge_u32 s61, {SPIN_MAX}"); a(f"s_cbranch_scc1 L_OK{u}")
    a(f"s_sleep {RSLEEP}")
    for x in ld_unit(u): a(x)
    a("s_waitcnt vmcnt(0)")
    for x in chk_unit(u): a(x)
    a(f"s_cbranch_vccnz L_RETRY{u}"); a(f"s_branch L_OK{u}")
a("L_RETRYG:")
a("s_add_u32 s61, s61, 1"); a(f"s_cmp_ge_u32 s61, {SPIN_MAX}"); a("s_cbranch_scc1 L_OKG")
a(f"s_sleep {RSLEEP}")
a("buffer_load_dwordx2 v[6:7], v5, s[32:35], s62 offen sc1"); a("s_waitcnt vmcnt(0)")
a(f"v_add3_u32 v{CK}, v6, v7, v254"); a(f"v_cmp_ne_u32 vcc, 0, v{CK}")
a("s_cbranch_vccnz L_RETRYG"); a("s_branch L_OKG")

l1, _ = fix(a.L)
for tr in traces:
    _, iss_ = fix(tr, verify=True)
    for x in iss_: print("; TRACE HAZARD", x, file=sys.stderr)
print(f"""; gated mix of two dilated sliding-window attention blocks (generated by gen/gen18.py)
; @launch grid=(256,1,1) block=(512,1,1) lds={LDS_TOTAL}
.amdgcn_target "amdgcn-amd-amdhsa--gfx950"
.text
.globl {KN}
.p2align 8
.type {KN},@function""")
print("\n".join(l1))
print("CODE_END:")
if STAMP: print(".fill 2048, 4, 0xBF800000")
print('.section .rodata,"a"')
print(kd(KN, 256, 102, 256))
```

```python
import sys, struct, math
sys.path.insert(0, "gen")
from asmlib import *
NAME = "gated_mix__sliding_local_dilated__sliding_local_dilated__prompt"
KN = NAME + "_kernel"
OPT = dict(a.split("=") for a in sys.argv[1:])
STAMP = int(OPT.get("stamp", 0)); CM = int(OPT.get("cm", 1)); PK = int(OPT.get("pk", 1))
NS1 = int(OPT.get("ns1", 12)); RSLEEP = int(OPT.get("rsleep", 2)); OWAIT = int(OPT.get("owait", 2)); SB = int(OPT.get("sb", 4)); SA = int(OPT.get("sa", 2)); XP = OPT.get("xp", ""); R2 = int(OPT.get("r2", 1)); WNT = "nt " if int(OPT.get("wnt", 0)) else ""; XNT = "nt " if int(OPT.get("xnt", 0)) else ""; SNT = "nt " if int(OPT.get("snt", 0)) else ""; STG = int(OPT.get("stg", 2)); PP = OPT.get("pp", "1101010100").replace("-", ""); ROT = int(OPT.get("rot", 0 if PP else 1)); EP = 1; OSF = OPT.get("osf", "sc1").replace("+", " "); OF = OPT.get("of", "sc1").replace("+", " ").replace("-", ""); KS0 = OPT.get("ks0", "-A555A5555"); KS1 = OPT.get("ks1", "-55A555A55"); ET = int(OPT.get("et", 18)); UD = int(OPT.get("ud", 2)); U0 = int(OPT.get("u0", 2)); HA = int(OPT.get("ha", 1)); LS = int(OPT.get("ls", 1)); AL = int(OPT.get("al", 6)); HR = int(OPT.get("hr", 0)); LP = int(OPT.get("lp", 0)); KP = int(OPT.get("kp", 5)); STL = int(OPT.get("stl", 60)); TOV = 1; LPOS = int(OPT.get("lpos", 2)); COV = int(OPT.get("cov", 0)); SF = OPT.get("sf", "nt").replace("+", " "); PD = int(OPT.get("pd", 1))
def f2u(x): return struct.unpack("<I", struct.pack("<f", x))[0]
STAGE = 49152; XOFF = 30720
GW_LDS = 147456; TOK_LDS = GW_LDS + 1536; SCR_LDS = 149504; LDS_TOTAL = 163840
XCH = 126976
RED = 98304
OBLK = 2816; OTT = 16 * OBLK
WS_WOT = 0x580000; WS_G = 0x710000; WS_FW = 0x720000; WS_ST = 0x1000000
NEG = f2u(-1e30)
CEXP = f2u(20 ** -0.5 * math.log2(math.e))
LOG2E = f2u(math.log2(math.e))
MF = "v_mfma_f32_16x16x32_bf16"
SPIN_MAX = 1 << 17
SV = 255
LITE = {50: 100, 51: 88, 52: 90, 53: 98}
def stamp(a, idx, real=False):
    if not STAMP: return
    if STAMP == 3 and idx != 63:
        if idx in LITE: a(f"s_memrealtime s[{LITE[idx]}:{LITE[idx]+1}]")
        return
    a(f"{'s_memrealtime' if real else 's_memtime'} s[68:69]"); a("s_waitcnt lgkmcnt(0)"); a(f"v_writelane_b32 v{SV}, s68, {idx}")
SPIN = OPT.get("spin", "")
def ev(a, name):
    if SPIN == name: a("s_memrealtime s[96:97]"); a("s_waitcnt lgkmcnt(0)")
def stamp2(a, idx, ridx):
    stamp(a, idx); stamp(a, ridx, True)
def stamp0(a):
    if STAMP: a(f"v_mov_b32 v{SV}, 0"); a(f"v_writelane_b32 v{SV}, s66, 0"); a(f"v_writelane_b32 v{SV}, s68, 1")

a = Asm()
traces = []
def ids():
    a("""v_and_b32 v1, 63, v0
    s_and_b32 s20, s2, 3
    s_lshl_b32 s20, s20, 2
    s_bfe_u32 s46, s2, 0x20003
    s_add_u32 s20, s20, s46
    s_lshr_b32 s47, s2, 5
    s_and_b32 s21, s2, 4
    s_lshl_b32 s21, s21, 1
    s_add_u32 s21, s21, s47""")
def srd_ws_dbg():
    WSO = int(OPT.get("wso", 0)) << 20
    a(f"""s_add_u32 s32, s78, {WSO}
    s_addc_u32 s33, s79, 0
    s_mov_b32 s34, {0x10000000 - WSO}
    s_mov_b32 s35, 0x20000
    s_mov_b32 s40, s76
    s_mov_b32 s41, s77
    s_mov_b32 s42, 256
    s_mov_b32 s43, 0x20000""")
def consumer_ids():
    if CM:
        a("s_bfe_u32 s84, s2, 0x30003"); a("s_and_b32 s85, s2, 7"); a("s_lshl_b32 s85, s85, 2"); a("s_lshr_b32 s86, s2, 6"); a("s_add_u32 s85, s85, s86")
    else:
        a("s_and_b32 s84, s20, 7"); a("s_lshl_b32 s85, s21, 1"); a("s_lshr_b32 s86, s20, 3"); a("s_add_u32 s85, s85, s86")
def pf_setup(isw_scc_cmp, vdst, vt, soff, sstep, lblx, lble):
    a(f"""s_lshr_b32 s44, s2, 3
    {isw_scc_cmp}
    s_cbranch_scc0 {lblx}
    v_mul_u32_u24 v{vt}, 13108, v1
    v_lshrrev_b32 v{vt}, 16, v{vt}
    v_mul_u32_u24 v{vt}, 640, v{vt}
    v_lshl_add_u32 v{vdst}, v1, 7, v{vt}
    s_mul_i32 {soff}, s44, 15360
    s_and_b32 s45, s2, 1
    s_mul_i32 s45, s45, 640
    s_add_u32 {soff}, {soff}, s45
    s_mov_b32 {sstep}, 491520
    s_cmp_ge_u32 s20, 8
    s_cselect_b32 s88, s12, s6
    s_cselect_b32 s89, s13, s7
    s_mov_b32 s90, 2457600
    s_branch {lble}
    {lblx}:
    v_lshrrev_b32 v{vt}, 1, v1
    v_mul_u32_u24 v{vt}, 1280, v{vt}
    v_and_b32 v{vdst}, 1, v1
    v_lshl_add_u32 v{vdst}, v{vdst}, 7, v{vt}
    s_and_b32 s45, s2, 4
    s_lshl_b32 s45, s45, 3
    s_add_u32 s44, s44, s45
    s_mul_i32 {soff}, s44, 40960
    s_mov_b32 {sstep}, 256
    s_mov_b32 s88, s4
    s_mov_b32 s89, s5
    s_mov_b32 s90, 2621440
    {lble}:
    s_mov_b32 s91, 0x20000""")
def rotbit(dst):
    a(f"s_xor_b32 {dst}, s84, s85"); a(f"s_and_b32 {dst}, {dst}, {R2}")
a(f"{KN}:")
if STAMP: a("s_memrealtime s[66:67]"); a("s_memtime s[68:69]")
a("""v_readfirstlane_b32 s22, v0
s_load_dwordx8 s[4:11], s[0:1], 0
s_load_dwordx8 s[12:19], s[0:1], 32""")
if not STAMP: a("s_lshr_b32 s3, s2, 8"); a("s_cbranch_scc1 L_END")
a("""s_lshr_b32 s22, s22, 6
s_cmp_eq_u32 s22, 3
s_cbranch_scc1 L_HOP
s_cmp_lt_u32 s22, 4
s_cbranch_scc1 L_COMPUTE""")
ECP = int(OPT.get("ecp", 1))
a("v_and_b32 v1, 63, v0"); a("s_lshr_b32 s44, s2, 3")
if ECP:
    a(f"""s_cmp_lg_u32 s22, 6
    s_cbranch_scc1 L_E0
    s_getpc_b64 s[70:71]
    L_PC0:
    s_mul_i32 s45, s44, 6
    v_min_u32 v3, 5, v1
    v_add_lshl_u32 v3, v3, s45, 7""")
    if not STAMP: a("v_min_u32 v3, CODE_END - L_PC0 - 4, v3")
    a("global_load_dword v41, v3, s[70:71]"); a("L_E0:")
a("""v_mul_u32_u24 v3, 13108, v1
v_lshrrev_b32 v3, 16, v3
v_mul_u32_u24 v3, 640, v3
v_lshlrev_b32 v4, 7, v1
v_add_u32 v40, v4, v3
v_lshrrev_b32 v3, 1, v1
v_lshl_add_u32 v42, v3, 10, v4
s_mul_i32 s92, s44, 24
s_and_b32 s45, s2, 1
s_add_u32 s92, s92, s45
s_mulk_i32 s92, 640
s_and_b32 s45, s2, 4
s_lshl_b32 s45, s45, 3
s_add_u32 s44, s44, s45
s_mul_i32 s93, s44, 40960
s_mov_b32 s26, 2457600
s_mov_b32 s30, 2621440
s_mov_b32 s31, 0x20000
s_mov_b32 s27, s31
s_bitcmp1_b32 s2, 1
s_waitcnt lgkmcnt(0)
s_cselect_b64 s[24:25], s[12:13], s[6:7]
s_mov_b64 s[28:29], s[4:5]
""")
if PP[0] == "1":
    a("""s_cmp_lg_u32 s22, 4
s_cbranch_scc1 L_E1
buffer_load_dword v41, v42, s[28:31], s93 offen
L_E1:
s_cmp_lg_u32 s22, 5
s_cbranch_scc1 L_LD0
buffer_load_dword v41, v40, s[24:27], s92 offen
s_branch L_LD0
""")
else:
    a("""s_bfe_u32 s45, s22, 0x10001
    s_bitcmp1_b32 s22, 0
    s_cbranch_scc1 L_E1
    s_lshl_b32 s45, s45, 8
    s_add_u32 s45, s45, s93
    buffer_load_dword v41, v42, s[28:31], s45 offen
    s_branch L_LD0
    L_E1:
    s_mul_i32 s45, s45, 491520
    s_add_u32 s45, s45, s92
    buffer_load_dword v41, v40, s[24:27], s45 offen
    s_branch L_LD0""")
a(""".p2align 8
L_HOP:
s_branch L_COMPUTE
L_LD0:
""")
a(f"s_setprio {OPT.get('pl', 2)}")
stamp0(a); stamp(a, 3)
ids()
a("""v_lshrrev_b32 v3, 3, v1
v_mul_u32_u24 v3, 2560, v3
v_lshrrev_b32 v4, 4, v0
v_xor_b32 v4, v4, v1
v_xor_b32 v4, 4, v4
v_and_b32 v4, 7, v4
v_lshl_add_u32 v11, v4, 4, v3
s_and_b32 s64, s22, 3
s_lshr_b32 s44, s21, 1
s_or_b32 s45, s44, s64
s_cselect_b32 s52, -20480, 0
s_lshl_b32 s44, s44, 8
s_and_b32 s45, s21, 1
s_add_u32 s44, s44, s45
s_lshl_b32 s45, s64, 4
s_add_u32 s44, s44, s45
s_mul_i32 s47, s44, 1280
s_lshl_b32 s53, s64, 10
v_mul_u32_u24 v3, 6554, v1
v_lshrrev_b32 v3, 16, v3
v_mul_u32_u24 v4, 1120, v3
v_lshl_add_u32 v10, v1, 4, v4
s_and_b32 s46, s20, 7
s_mul_i32 s46, s46, 160
s_mul_i32 s44, s64, 61440
s_add_u32 s46, s46, s44
s_mul_i32 s48, s64, 7680
s_mov_b32 s49, 0
s_mov_b32 s50, 0
s_mov_b32 s87, 0
s_mov_b32 s86, 15""")
stamp(a, 2)
a("s_load_dwordx4 s[76:79], s[0:1], 64")
a("L_LD_ISSUE:")
a(f"s_add_u32 m0, s53, {XOFF + 1024}"); a("s_add_u32 s51, s47, s52"); a(f"buffer_load_dwordx4 v11, s[28:31], s51 offen {XNT}lds")
for qq in range(1, 4):
    a(f"s_add_u32 m0, s53, {XOFF + 1024 + 4096*qq}"); a(f"s_add_u32 s51, s47, {(64*qq-16)*1280}"); a(f"buffer_load_dwordx4 v11, s[28:31], s51 offen {XNT}lds")
a("s_mov_b32 exec_hi, 0x0fffffff")
for qq in range(8):
    if str(qq) in KS0 + KS1:
        a(f"s_cmp_eq_u32 s86, {qq}"); a(f"s_cbranch_scc1 L_HK{qq}"); a(f"L_HR{qq}:")
    r = 2 * qq; k = (r & 0x33) | ((r & 4) << 1) | ((r & 8) >> 1)
    a(f"s_add_u32 m0, s48, {960*qq}"); a(f"s_add_u32 s51, s46, {k*3840}"); a(f"buffer_load_dwordx4 v10, s[24:27], s51 offen {WNT}lds")
a("s_mov_b32 exec_hi, -1")
a("s_cmp_lg_u32 s64, 0"); a("s_cbranch_scc1 L_LD_W")
a(f"s_add_u32 m0, s53, {XOFF + 1024 + 4096*4}"); a(f"s_add_u32 s51, s47, {(64*4-16)*1280}"); a(f"buffer_load_dwordx4 v11, s[28:31], s51 offen {XNT}lds")
a("L_LD_W:")
a(f"""s_mov_b32 s63, {STAGE}
s_add_u32 s46, s46, 245760
s_add_u32 s47, s47, 128
s_add_u32 s49, s49, 1
s_cmp_eq_u32 s49, 3
s_cselect_b32 s51, {(-2*STAGE) & 0xffffffff}, s63
s_cselect_b32 s49, 0, s49
s_add_u32 s48, s48, s51
s_add_u32 s53, s53, s51
s_add_u32 s50, s50, 1""")
def lstamp(base):
    if STAMP == 1: a("s_memtime s[68:69]"); a("s_waitcnt lgkmcnt(0)"); a(f"s_add_u32 m0, s50, {base}"); a(f"v_writelane_b32 v{SV}, s68, m0")
lstamp(9)
a(f"""s_cmp_lt_u32 s50, 2
s_cbranch_scc1 L_LD_PRE0
L_DISP:
s_cmp_eq_u32 s50, s96
s_cbranch_scc1 L_SIDE_A
L_SA_RET:
s_cmp_eq_u32 s50, s97
s_cbranch_scc1 L_TOK_A
s_cmp_eq_u32 s50, s98
s_cbranch_scc1 L_TOK_B
s_cmp_eq_u32 s50, {10 if LP else 9}
s_cbranch_scc1 L_WOF_A
s_cmp_eq_u32 s50, 10
s_cbranch_scc1 L_WOF_B""")
a("L_LD_WAIT:")
a("L_LD_BAR:")
a("L_LD_PRE:")
a("s_bitcmp1_b32 s94, s50"); a("s_cbranch_scc0 L_LD_TOP")
a(f"s_add_u32 s87, s87, {STG}")
PW = int(OPT.get("pw", 6))
if PW < 60: a(f"s_waitcnt vmcnt({PW})")
TT = int(OPT.get("tt", 0))
if TT: a("s_cmp_eq_u32 s64, 3"); a("s_cbranch_scc1 L_PFT")
a("s_cmp_eq_u32 s64, 0"); a("s_cbranch_scc1 L_PFX")
for n in range(STG):
    a("buffer_load_dword v41, v40, s[24:27], s92 offen"); a(f"s_add_u32 s92, s92, {15360 if n < STG-1 else STG*491520 - (STG-1)*15360}")
a("s_branch L_LD_TOP")
a("L_PFX:")
for n in range(STG):
    a("buffer_load_dword v41, v42, s[28:31], s93 offen"); a(f"s_add_u32 s93, s93, {40960 if n < STG-1 else (STG*256 - (STG-1)*40960) & 0xffffffff}")
a("s_branch L_LD_TOP")
if TT:
    a("L_PFT:")
    srd_ws_dbg()
    a(f"s_mov_b32 s34, {WS_WOT}")
    a("""s_mov_b32 s88, s18
    s_mov_b32 s89, s19
    s_mov_b32 s90, 2621440
    s_mov_b32 s91, 0x20000
    s_lshr_b32 s44, s2, 3
    s_lshl_b32 s44, s44, 15
    v_lshlrev_b32 v16, 20, v1
    s_mov_b64 exec, 0xff
    buffer_load_dword v41, v16, s[32:35], s44 offen
    buffer_load_dword v41, v16, s[88:91], s44 offen
    s_mov_b64 exec, -1
    s_mov_b32 s94, 0""")
a("L_LD_TOP:")
a("s_and_b32 s86, s100, 15"); a("s_lshr_b64 s[100:101], s[100:101], 4")
a("s_cmp_lg_u32 s86, 10"); a("s_cbranch_scc1 L_LD_ISSUE")
ES = (1, 2, 3, 6, 9 if int(OPT.get('pt', 0)) else 8)
def hook(nm, base, ret):
    for e_ in ES: a(f"s_cmp_eq_u32 s87, {e_}"); a(f"s_cbranch_scc1 L_H{nm}_{e_}")
    a(f"s_waitcnt vmcnt({base})")
    a(f"L_H{nm}_B:")
    if STAMP == 1: a("s_memtime s[68:69]"); a("s_waitcnt lgkmcnt(0)"); a(f"s_add_u32 m0, s50, 19"); a(f"v_writelane_b32 v{SV}, s68, m0")
    a("s_barrier")
    if STAMP == 1: a("s_memrealtime s[68:69]"); a("s_waitcnt lgkmcnt(0)"); a(f"s_add_u32 m0, s50, 39"); a(f"v_writelane_b32 v{SV}, s68, m0")
    a("s_mov_b32 s87, 0"); a(f"s_branch {ret}")
    for e_ in ES: a(f"L_H{nm}_{e_}:"); a(f"s_waitcnt vmcnt({base + e_})"); a(f"s_branch L_H{nm}_B")
hook("A", 0, "L_LD_ISSUE")
for qq in range(8):
    if str(qq) in KS0 + KS1: a(f"L_HK{qq}:"); hook(str(qq), 4 + qq, f"L_HR{qq}")
a("L_LD_PRE0:")
a("v_lshlrev_b32 v12, 4, v1"); a("v_mov_b32 v13, 0")
pos = [c for c in range(1, 10) if PP[c] != "0"]
if STG > 1: a(f"s_bfe_u32 s45, s2, 0x{(STG.bit_length()-1):x}0003")
else: a("s_mov_b32 s45, 0")
a(f"s_mul_i32 s44, s45, {491520 - 15360}"); a("s_add_u32 s92, s92, s44"); a(f"s_add_u32 s92, s92, {491520*int(PP[0])}")
a(f"s_mul_i32 s44, s45, {40960 - 256}"); a("s_sub_u32 s93, s93, s44"); a(f"s_add_u32 s93, s93, {256*int(PP[0])}")
a("s_mov_b32 s94, 0")
for g_ in range(STG):
    mask = sum(1 << c for k, c in enumerate(pos) if k % STG == g_)
    a(f"s_cmp_eq_u32 s45, {g_}"); a(f"s_cselect_b32 s94, {mask}, s94")
if TT: a("s_cmp_eq_u32 s64, 2")
else: a("s_cmp_ge_u32 s64, 2")
a("s_cselect_b32 s94, 0, s94")
a("s_waitcnt lgkmcnt(0)")
SA0 = int(OPT.get("sa0", SA)); SB0 = int(OPT.get("sb0", SB))
a("s_bitcmp1_b32 s2, 3"); a(f"s_cselect_b32 s96, {SA}, {SA0}"); a(f"s_cselect_b32 s97, {SB}, {SB0}")
a("s_add_u32 s98, s97, 2")
def pk(ks): return sum(int(c, 16) << (4 * i) for i, c in enumerate(ks[1:]))
assert STG == 2 and len(KS0) == 10 and len(KS1) == 10
a(f"s_mov_b32 s100, {pk(KS0) & 0xffffffff}"); a(f"s_mov_b32 s101, {pk(KS0) >> 32}")
a("s_bitcmp1_b32 s2, 3"); a(f"s_cselect_b32 s100, {pk(KS1) & 0xffffffff}, s100"); a(f"s_cselect_b32 s101, {pk(KS1) >> 32}, s101")
a("s_branch L_DISP")
a("L_SIDE_A:")
if int(OPT.get("u2", 1)):
    a("""s_mov_b32 s56, 0
    s_cmp_lt_u32 s64, 2
    s_cbranch_scc1 L_SA_RET
    s_mov_b32 s57, s2
    s_cmp_eq_u32 s64, 2
    s_cbranch_scc1 L_SA_GO
    s_bitcmp""" + ("1" if OPT.get("u2", "1") == "2" else "0") + """_b32 s2, 3
    s_cbranch_scc1 L_SA_RET
    s_lshr_b32 s44, s2, 4
    s_sub_u32 s44, s44, 4
    s_cmp_ge_u32 s44, 8
    s_cbranch_scc1 L_SA_RET
    s_lshl_b32 s44, s44, 3
    s_and_b32 s57, s2, 7
    s_add_u32 s57, s57, s44
    s_add_u32 s57, s57, 256
    L_SA_GO:""")
else:
    a("""s_mov_b32 s56, 0
    s_sub_u32 s44, s64, 2
    s_lshl_b32 s57, s44, 8
    s_add_u32 s57, s57, s2
    s_cmp_ge_u32 s57, 320
    s_cbranch_scc1 L_SA_RET""")
a("""s_mov_b32 s56, 1
s_mov_b32 s39, 0x20000
s_and_b32 s45, s57, 7
s_lshr_b32 s44, s57, 3
s_mul_i32 s58, s44, 52
s_lshr_b32 s58, s58, 8
s_mul_i32 s59, s58, 5
s_sub_u32 s59, s44, s59
s_cmp_ge_u32 s58, 4
s_cselect_b32 s36, s14, s8
s_cselect_b32 s37, s15, s9
s_mov_b32 s38, 819200
s_and_b32 s58, s58, 3
s_mul_i32 s58, s58, 160
s_mul_i32 s60, s59, 40
s_cmp_eq_u32 s59, 4
s_cselect_b32 s60, 16, s60
s_cselect_b32 s54, 80, 20
s_cselect_b32 s55, 20, 4
s_add_u32 s58, s58, s60
s_mul_i32 s58, s58, 1280
s_mul_i32 s60, s45, 160
s_add_u32 s58, s58, s60
s_mul_i32 s54, s54, 1280
s_mul_i32 s55, s55, 1280""")
a(f"s_mul_i32 s62, s64, 5120"); a(f"s_add_u32 s62, s62, {SCR_LDS - 10240}")
a("s_mov_b32 exec_hi, 0xff")
for g in range(4):
    for jh in range(2):
        a(f"s_add_u32 m0, s62, {(16*(g>>1) + 8*jh + 4*(g&1))*160}")
        if jh == 0: a("s_add_u32 s51, s58, s54"); a(f"buffer_load_dwordx4 v10, s[36:39], s58 offen {SNT}lds")
        else: a("s_add_u32 s58, s58, s55"); a(f"buffer_load_dwordx4 v10, s[36:39], s51 offen {SNT}lds")
a("s_mov_b32 exec_hi, -1")
a(f"""s_mul_i32 s61, s45, 204800
s_mul_i32 s58, s44, 5120
s_add_u32 s61, s61, s58
s_add_u32 s61, s61, {WS_WOT}
""")
if int(OPT.get("pt", 0)):
    srd_ws_dbg()
    a("v_lshlrev_b32 v16, 7, v1"); a("s_mov_b32 exec_hi, 0xff")
    a("buffer_load_dword v17, v16, s[32:35], s61 offen"); a("s_mov_b32 exec_hi, -1")
    a("s_mov_b32 s87, 9"); a("s_branch L_LD_BAR")
else: a("s_mov_b32 s87, 8"); a("s_branch L_LD_BAR")
a("L_SIDE_B:")
assert SB >= SA + 2
a("""v_lshrrev_b32 v16, 5, v1
v_lshlrev_b32 v16, 4, v16
v_bfe_u32 v17, v1, 4, 1
v_lshl_add_u32 v16, v17, 2, v16
v_bfe_u32 v17, v1, 2, 2
v_add_u32 v16, v16, v17
v_mul_u32_u24 v16, 160, v16
v_add_u32 v16, s62, v16
v_and_b32 v17, 3, v1
v_lshl_add_u32 v18, v17, 4, v16
v_lshl_add_u32 v19, v17, 3, v16""")
for T in range(5):
    for j in range(2):
        if T < 4: a(f"ds_read_b64_tr_b16 v[{20+4*T+2*j}:{21+4*T+2*j}], v18 offset:{j*1280 + 64*(T>>1) + 8*(T&1)}")
        else: a(f"ds_read_b64_tr_b16 v[{20+4*T+2*j}:{21+4*T+2*j}], v19 offset:{j*1280 + 128}")
a("s_waitcnt lgkmcnt(0)")
for T in range(4): a(f"buffer_store_dwordx4 v[{20+4*T}:{23+4*T}], v12, s[32:35], s61 offen offset:{1024*T} sc1")
a("s_add_u32 s61, s61, 4096")
a(f"buffer_store_dwordx4 v[36:39], v12, s[32:35], s61 offen sc1")
a("s_mov_b32 s87, 6"); a("s_branch L_LD_BAR")
a("L_TOK_A:")
srd_ws_dbg()
a("""v_lshlrev_b32 v12, 4, v1
v_mov_b32 v13, 0
s_mov_b64 exec, 1
buffer_load_dword v15, v13, s[40:43], 0 offen sc1
s_mov_b64 exec, -1
s_cmp_lg_u32 s56, 0
s_cbranch_scc1 L_SIDE_B
s_mov_b32 s87, 1
s_branch L_LD_BAR""")
a("L_TOK_B:")
srd_ws_dbg()
a(f"""s_mov_b32 s60, 0
v_mov_b32 v13, 0
L_TOK_CHK:
v_readlane_b32 s75, v15, 0
s_add_u32 s60, s60, 1
s_cmp_lg_u32 s75, 0
s_cbranch_scc1 L_TOK_OK
s_cmp_ge_u32 s60, {SPIN_MAX}
s_cbranch_scc1 L_TOK_OK
s_sleep 4
s_mov_b64 exec, 1
buffer_load_dword v15, v13, s[40:43], 0 offen sc1
s_mov_b64 exec, -1
s_waitcnt vmcnt(0)
s_branch L_TOK_CHK
L_TOK_OK:
v_mov_b32 v14, {TOK_LDS}
v_mov_b32 v15, s75
ds_write_b32 v14, v15
s_cmp_eq_u32 s56, 0
s_waitcnt lgkmcnt(0)
s_cbranch_scc1 L_LD_WAIT
s_and_b32 s45, s57, 7
s_lshl_b32 s45, s45, 13
s_lshr_b32 s44, s57, 3
s_lshl_b32 s44, s44, 7
s_add_u32 s45, s45, s44
s_add_u32 s45, s45, {WS_FW}
v_lshlrev_b32 v13, 2, v1
s_mov_b32 exec_hi, 0
buffer_store_dword v15, v13, s[32:35], s45 offen sc1
s_mov_b32 exec_hi, -1
s_mov_b32 s87, 1
s_branch L_LD_BAR""")
a("L_WOF_A:")
srd_ws_dbg()
consumer_ids()
a(f"""s_lshl_b32 s59, s84, 13
s_add_u32 s59, s59, {WS_FW}
s_lshr_b32 s44, s64, 1
s_mul_i32 s44, s44, 2560
s_add_u32 s59, s59, s44
v_lshlrev_b32 v13, 7, v1
v_lshlrev_b32 v12, 4, v1
s_mov_b64 exec, 0xfffff
buffer_load_dword v14, v13, s[32:35], s59 offen sc1
s_mov_b64 exec, -1""")
if LP: a("s_waitcnt vmcnt(1)"); a("s_barrier")
else: a("s_mov_b32 s87, 1"); a("s_branch L_LD_BAR")
a("L_WOF_B:")
srd_ws_dbg()
a("""v_lshlrev_b32 v12, 4, v1
v_lshlrev_b32 v13, 7, v1
s_mov_b64 exec, 0xfffff
s_mov_b32 s60, 0""")
a(f"s_waitcnt vmcnt({0 if LP else 12})")
a(f"""L_WO_POLL:
v_cmp_ne_u32 vcc, s75, v14
s_cbranch_vccz L_WO_OK
s_add_u32 s60, s60, 1
s_cmp_ge_u32 s60, {SPIN_MAX}
s_cbranch_scc1 L_WO_OK
s_sleep 4
buffer_load_dword v14, v13, s[32:35], s59 offen sc1
s_waitcnt vmcnt(0)
s_branch L_WO_POLL
L_WO_OK:
s_mov_b64 exec, -1
s_setprio 0""")
stamp(a, 29)
CL = {"S1": (0, 24, 49152, 24576), "S2": (24, 14, 98304, 14336), "S0": (38, 24, 0, 24576), "TOP": (62, 6, 151552, 6144), "TB": (68, 2, 147456, 2048),
      "R1": (70, 24, 49152, 24576), "R2": (94, 6, 98304, 14336)}
a(f"""s_mul_i32 s58, s84, 204800
s_add_u32 s58, s58, {WS_WOT}
s_lshr_b32 s44, s64, 1
s_and_b32 s45, s64, 1
s_lshl_b32 s45, s45, 10
s_mul_i32 s59, s44, 102400
s_add_u32 s59, s59, s58
s_add_u32 s59, s59, s45""")
rotbit("s54"); a("s_mul_i32 s54, s54, 51200"); a("s_sub_u32 s55, s59, s54"); a("s_add_u32 s59, s59, s54")
def dma_class(nm, lo=0, hi=None):
    l0, n, base, delta = CL[nm]
    a(f"s_mul_i32 s53, s44, {delta}"); a("s_add_u32 s53, s53, s45")
    for j in range(lo, n if hi is None else hi, 2):
        a(f"s_add_u32 m0, s53, {base + j*1024}"); a(f"s_add_u32 s51, {'s59' if l0 + j < 50 else 's55'}, {(l0 + j)*1024}")
        a(f"buffer_load_dwordx4 v12, s[32:35], s51 offen sc1 lds")
dma_class("S1", 0, NS1)
if not LP: a(f"s_waitcnt vmcnt({NS1//2})"); a("s_barrier")
dma_class("S1", NS1); dma_class("S2"); dma_class("TOP")
a("s_waitcnt vmcnt(7)")
stamp(a, 30)
a("s_barrier")
dma_class("S0"); dma_class("TB")
TOK = 253
a(f"v_mov_b32 v{TOK}, s75")
a("s_branch L_P2_PRE")
a("L_COMPUTE:")
a("s_load_dwordx4 s[76:79], s[0:1], 64")
ev(a, "start")
a(f"s_setprio {OPT.get('cprio', 3)}")
ids()
a("""s_mov_b32 s39, 0x20000
s_mov_b32 s56, 0
s_cmp_eq_u32 s22, 3
s_cbranch_scc1 L_C_GW
s_cmp_eq_u32 s22, 2
s_cbranch_scc1 L_C_TOK""")
if int(OPT.get("wpe", 0)):
    a("""s_cmp_eq_u32 s22, 1
    s_cselect_b32 s36, s14, s8
    s_cselect_b32 s37, s15, s9
    s_mov_b32 s38, 819200
    v_lshlrev_b32 v140, 7, v1
    v_lshrrev_b32 v141, 1, v1
    v_lshl_add_u32 v140, v141, 10, v140
    s_lshr_b32 s44, s2, 3
    s_mul_i32 s44, s44, 25600
    s_and_b32 s45, s2, 7
    s_mul_i32 s45, s45, 160
    s_add_u32 s44, s44, s45
    s_mov_b32 exec_hi, 0xff
    buffer_load_dword v241, v140, s[36:39], s44 offen
    s_mov_b32 exec_hi, -1""")
a("s_branch L_C_SETUP")
a("L_C_GW:")
a(f"""s_waitcnt lgkmcnt(0)
s_mov_b32 s36, s16
s_mov_b32 s37, s17
s_mov_b32 s38, 1280
v_lshlrev_b32 v140, 4, v1
s_mov_b32 m0, {GW_LDS}
v_mov_b64 v[144:145], 0
buffer_load_dwordx4 v140, s[36:39], 0 offen lds
buffer_load_dwordx4 v140, s[36:39], 0 offen offset:1024 lds
v_mov_b64 v[146:147], 0
ds_write_b128 v140, v[144:147] offset:{XOFF}
v_add_u32 v140, {STAGE}, v140
ds_write_b128 v140, v[144:147] offset:{XOFF}
v_add_u32 v140, {STAGE}, v140
ds_write_b128 v140, v[144:147] offset:{XOFF}
s_branch L_C_SETUP""")
a("L_C_TOK:")
a("""s_cmp_lg_u32 s2, 0
s_cbranch_scc1 L_C_CPF
s_memrealtime s[44:45]
v_mov_b32 v147, 0
s_waitcnt lgkmcnt(0)""")
srd_ws_dbg()
a("""s_or_b32 s44, s44, 1
v_mov_b32 v146, s44
s_mov_b64 exec, 1
buffer_atomic_cmpswap v[146:147], v147, s[40:43], 0 offen sc1
s_mov_b64 exec, -1
L_C_CPF:
s_getpc_b64 s[70:71]
L_PC:
s_sub_u32 s70, s70, L_PC - L_SIDE_B
s_subb_u32 s71, s71, 0
""")
if ECP: pass
elif int(OPT.get("ccp", 1)):
    a(f"""s_lshr_b32 s44, s2, 3
    s_mul_i32 s44, s44, 6
    v_min_u32 v140, 5, v1
    v_add_lshl_u32 v140, v140, s44, 7
    v_min_u32 v140, CODE_END - L_SIDE_B - 4, v140
    global_load_dword v241, v140, s[70:71]""")
else:
    a("""v_lshlrev_b32 v140, 7, v1
v_add_u32 v141, 8192, v140
v_add_u32 v142, 16384, v140
v_min_u32 v140, CODE_END - L_SIDE_B - 4, v140
v_min_u32 v141, CODE_END - L_SIDE_B - 4, v141
v_min_u32 v142, CODE_END - L_SIDE_B - 4, v142
global_load_dword v241, v140, s[70:71]
global_load_dword v241, v141, s[70:71]
global_load_dword v241, v142, s[70:71]""")
a("L_C_SETUP:")
if COV == 2:
    a("s_cmp_eq_u32 s56, 0"); a("s_cbranch_scc1 L_C_S2")
    a("buffer_load_dword v241, v252, s[36:39], s57 offen")
    a("L_C_S2:")
VWA, VWB, VX0, VX1, VGX0, VGX1, VGW = 2, 3, 4, 5, 6, 7, 240
ACCQ, ACCK, ACCV, ACCH = 8, 48, 88, 128
RING, XB, GX = 140, 180, 204
MC, MP, MP0, AM, ONES = 220, 224, 228, 232, 236
def acc(seg, t, T): return (ACCQ, ACCK, ACCV)[seg] + t * 20 + T * 4
a("s_setprio 0")
a(f"""v_lshrrev_b32 v140, 4, v1
v_and_b32 v141, 15, v1
v_lshrrev_b32 v142, 5, v1
v_lshlrev_b32 v142, 4, v142
v_and_b32 v143, 1, v140
v_lshl_add_u32 v142, v143, 2, v142
v_lshrrev_b32 v143, 2, v141
v_add_u32 v142, v142, v143
v_mul_u32_u24 v145, 480, v142
v_and_b32 v143, 3, v141
v_lshl_add_u32 v{VWA}, v143, 3, v145
v_mul_u32_u24 v144, 40, v143
v_add3_u32 v{VWB}, v145, v144, 32
v_lshrrev_b32 v144, 1, v141
v_xor_b32 v144, v144, v140
v_lshlrev_b32 v144, 4, v144
v_lshl_add_u32 v{VX0}, v141, 7, v144
v_xor_b32 v{VX1}, 64, v{VX0}
s_and_b32 s44, s20, 7
s_lshl_b32 s44, s44, 11
v_add_u32 v{VGX0}, s44, v{VX0}
v_add_u32 v{VGX1}, s44, v{VX1}
v_lshlrev_b32 v{VGW}, 4, v140
v_add_u32 v{VGW}, {GW_LDS}, v{VGW}""")
a(f"s_mov_b32 s44, {NEG}")
a(f"v_mov_b32 v146, s44")
a("s_lshr_b32 s45, s21, 1"); a("s_or_b32 s45, s45, s22")
a("v_lshlrev_b32 v145, 2, v140"); a("v_sub_u32 v145, v141, v145")
for r in range(4): a(f"v_subrev_u32 v{150+r}, {r}, v145")
for r in range(4):
    a(f"v_cmp_gt_u32 vcc, 8, v{150+r}"); a(f"v_cmp_gt_i32 s[72:73], -8, v{150+r}")
    a(f"v_mov_b32 v{ONES+r}, 0x3f803f80")
    a(f"v_cndmask_b32 v{MC+r}, v146, 0, vcc"); a(f"v_cndmask_b32 v{MP+r}, v146, 0, s[72:73]")
a("s_cmp_eq_u32 s45, 0"); a("s_cselect_b64 vcc, -1, 0")
for r in range(4): a(f"v_cndmask_b32 v{MP0+r}, v{MP+r}, v146, vcc")
a("s_mov_b32 s44, 0xffff0000")
for h in range(2):
    a(f"v_ashrrev_i32 v154, 31, v{150+2*h}"); a(f"v_ashrrev_i32 v155, 31, v{151+2*h}")
    a(f"v_bfi_b32 v{AM+h}, s44, v155, v154"); a(f"v_not_b32 v{AM+2+h}, v{AM+h}")
a(f"""s_mov_b64 s[48:49], 0xffff
s_mov_b32 s50, 0xffff0000
s_mov_b32 s51, 0
s_mov_b32 s52, 0
s_mov_b32 s53, 0xffff
s_mov_b32 s54, 0
s_mov_b32 s55, 0xffff0000
s_mov_b32 s63, {STAGE}
s_mov_b32 s74, 128
s_mov_b32 s92, {CEXP}
s_mov_b32 s93, {CEXP}
s_lshl_b32 s94, s21, 3
s_lshl_b32 s95, s22, 1
s_add_u32 s94, s94, s95
s_mul_i32 s94, s94, {OTT}
s_mul_i32 s95, s20, {OBLK}
s_add_u32 s94, s94, s95
s_add_u32 s95, s94, {OTT}""")
for r in range(ACCQ, ACCH + 12, 2): a(f"v_mov_b64 v[{r}:{r+1}], 0")
a("s_waitcnt vmcnt(0) lgkmcnt(0)")
stamp0(a)
srd_ws_dbg()
stamp(a, 4)
if COV in (1, 3):
    a("s_cmp_eq_u32 s56, 0"); a("s_cbranch_scc1 L_C_GO")
    if COV == 3: a("s_setprio 3")
    a("buffer_load_dword v241, v252, s[36:39], s57 offen")
a("s_setprio 0")
a("L_C_GO:")
a("""s_mov_b32 s44, 0
s_mov_b32 s45, 0""")
for w in range(1, 4):
    a(f"s_cmp_eq_u32 s22, {w}"); a(f"s_cbranch_scc1 L_W{w}")
KOP = {1: 140, 0: 156, -1: 204}
VOP = 172; QOP = {1: 68, 0: 108}
def kop(t, h): return KOP[t] + 4 * h
def vop(T, t): return VOP + 6 * T + 2 * (t + 1)
def qop(t, h): return QOP[t] + 4 * h
def cv2(d, s): return [f"v_cvt_pk_bf16_f32 v{d}, v{s}, v{s+1}", f"v_cvt_pk_bf16_f32 v{d+1}, v{s+2}, v{s+3}"]
HALO = [[(1,0),(1,1),(1,2)], [(1,3),(1,4),(2,0)], [(2,1),(2,2)], [(2,3),(2,4)]] if OPT.get('hal') == '0' else [[(1,0),(1,2),(2,0)], [(1,1),(1,3),(2,1)], [(1,4),(2,2),(2,3)], [(2,4)]]
D = 5
def istep(f): return f - 5 if f <= 14 else (f - 6 if f <= 21 else f - 7)
for w in range(4):
    gate = (w == 3)
    q = []
    def rdW(f):
        ks, seg, T = f // 15, (f % 15) // 5, f % 5
        d = RING + (f % 10) * 4
        if "nods" in XP: return [("s_nop 0", ("W", f))] * 2
        if "ds9" in XP and T in (1, 3):
            if seg < 2 and T == 1: return [(f"ds_read_b128 v[{d}:{d+3}], v{(VX0, VX1)[ks]} offset:{XOFF + 4096}", ("W", f))]
            return []
        return [(f"ds_read_b64_tr_b16 v[{d+2*j}:{d+2*j+1}], v{VWA if T < 4 else VWB} offset:{seg*160 + ks*15360 + j*3840 + (40*T if T < 4 else 0)}", ("W", f)) for j in range(2)]
    def rdX(ks):
        o = []
        for n, tile in enumerate((1 + 2 * w, 2 + 2 * w, 0)):
            d = XB + (ks * 3 + n) * 4
            o.append((f"ds_read_b128 v[{d}:{d+3}], v{(VX0, VX1)[ks]} offset:{XOFF + tile*2048}", ("X", ks)))
        if gate:
            d = GX + ks * 8
            o.append((f"ds_read_b128 v[{d}:{d+3}], v{(VGX0, VGX1)[ks]} offset:{XOFF + 2048}", ("X", ks)))
            o.append((f"ds_read_b128 v[{d+4}:{d+7}], v{VGW} offset:{ks*64}", ("X", ks)))
        return o
    def wait(b, tags):
        if not any(t in tags for t in q): return
        last = max(i for i, t in enumerate(q) if t in tags)
        b(f"s_waitcnt lgkmcnt({min(len(q) - 1 - last, 15)})")
    def mm(f):
        ks, seg, T = f // 15, (f % 15) // 5, f % 5
        wf = vr(RING + (f % 10) * 4); o = []
        def one(dst, xf):
            o.append(f"{MF} {vr(dst)}, {wf}, {xf}, {vr(dst)}" if seg < 2 else f"{MF} {vr(dst)}, {xf}, {wf}, {vr(dst)}")
        one(acc(seg, 0, T), vr(XB + (ks * 3) * 4)); one(acc(seg, 1, T), vr(XB + (ks * 3 + 1) * 4))
        if (seg, T) in HALO[w]: one(ACCH + 4 * HALO[w].index((seg, T)), vr(XB + (ks * 3 + 2) * 4))
        if gate and seg == 0 and T == 2:
            d = GX + ks * 8
            o.append(f"{MF} {vr(ACCH+8)}, {vr(d+4)}, {vr(d)}, {vr(ACCH+8)}")
        return o
    def weave(b, ms, fs, lastless=True):
        n = len(ms)
        if OPT.get("wv", "1") == "1":
            ds = [t for t in fs if t[1] is not None]; ot = [t for t in fs if t[1] is None]
            per = [[] for _ in range(n)]
            cnt = [0] * n
            for i in range(len(ds)): cnt[i % n] += 1
            it = iter(ds)
            for j in range(n):
                for _ in range(cnt[j]): per[j].append(next(it))
            lo = 0
            for t in ot:
                load = [len(per[j]) + (1 if (lastless and j == n - 1) else 0) for j in range(n)]
                j = min(range(lo, n), key=lambda k: load[k]); lo = j
                per[j].append(t)
            for m_, p_ in zip(ms, per):
                b(m_)
                for t in p_:
                    b(t[0])
                    if t[1] is not None: q.append(t[1])
            return
        k = len(fs)
        cnt = [0] * n
        for i in range(k):
            load = [cnt[j] + (1 if (lastless and j == n - 1) else 0) for j in range(n)]
            cnt[load.index(min(load))] += 1
        it = iter(fs)
        for m_, c_ in zip(ms, cnt):
            b(m_)
            for _ in range(c_):
                t = next(it)
                b(t[0])
                if t[1] is not None: q.append(t[1])
    FA = {s: [] for s in range(25, 30)}
    x0 = rdX(0)
    FA[25] = x0[:2] + rdW(0); FA[26] = x0[2:4] + rdW(1); FA[27] = x0[4:] + rdW(2); FA[28] = rdW(3); FA[29] = rdW(4)
    FB = {s: [] for s in range(25)}
    for f in range(D, 30): FB[istep(f)] += rdW(f)
    x1 = rdX(1)
    for i, t in enumerate(x1): FB[2 + i].append(t)
    sal = ["s_add_u32 s45, s45, 1", "s_cmp_eq_u32 s45, 3", f"s_cselect_b32 s46, {(-2*STAGE) & 0xffffffff}, s63", "s_cselect_b32 s45, 0, s45"]
    for i, t in enumerate(sal): FB[10 + i].append((t, None))
    if gate:
        FB[20].append((f"v_add_u32 v{VGW}, s74, v{VGW}", None))
        FB[21].append((f"v_add_u32 v{VGX0}, s46, v{VGX0}", None)); FB[22].append((f"v_add_u32 v{VGX1}, s46, v{VGX1}", None))
    FB[20].append((f"v_add_u32 v{VX0}, s46, v{VX0}", None)) if not gate else FB[14].append((f"v_add_u32 v{VX0}, s46, v{VX0}", None))
    FB[23] += [(f"v_add_u32 v{VX1}, s46, v{VX1}", None), (f"v_add_u32 v{VWA}, s46, v{VWA}", None), (f"v_add_u32 v{VWB}, s46, v{VWB}", None)]
    FB[24] += [("s_add_u32 s44, s44, 1", None), ("s_cmp_eq_u32 s44, 10", None)]
    pre = Asm(); pa = Asm(); pb = Asm(); tail = Asm()
    stamp(pre, 5)
    pre("s_barrier")
    if STAMP: stamp2(pre, 6, 50)
    ev(pre, "b0")
    for s in range(25, 30):
        for t in FA[s]: pre(t[0])
    q.clear()
    if not LS: pa("s_waitcnt lgkmcnt(0)")
    pa("s_barrier")
    for s in range(25, 30): weave(pa, mm(s), FA[s], lastless=(s == 29))
    if LS: pre(f"s_branch L_LB{w}")
    else: pa(f"s_branch L_LB{w}")
    for s in range(25):
        tags = [("W", s)] + ([("X", 0)] if s == 0 else []) + ([("X", 1)] if s == 15 else [])
        wait(pb, tags); weave(pb, mm(s), FB[s])
    if LS: pb("s_waitcnt lgkmcnt(0)"); pb(f"s_cbranch_scc0 L_LA{w}")
    else: pb(f"s_cbranch_scc1 L_T{w}")
    tail(f"v_mov_b32 v{TOK}, {TOK_LDS}")
    tail("s_waitcnt lgkmcnt(0)")
    tail(f"ds_read_b32 v{TOK}, v{TOK}")
    tm = [m_ for s in range(25, 30) for m_ in mm(s)]
    fl = [f"v_lshlrev_b32 v{VWA}, 3, v1", f"v_add_u32 v{VX1}, {XCH}, v{VWA}"]
    if TOV:
        fl += [f"v_add_u32 v{VWB}, {XCH + 5120*w}, v{VWA}", f"v_add_u32 v{VX0}, {XCH + 5120*(w+1)}, v{VWA}"]
        for h in (0, 1, 2, 3, 4):
            d = 140 + 4 * h if h < 4 else 142; sr = acc(1, 1, h)
            fl += [f"v_cvt_pk_bf16_f32 v{d}, v{sr}, v{sr+1}", f"v_cvt_pk_bf16_f32 v{d+1}, v{sr+2}, v{sr+3}"]
            if w < 3: fl.append(f"ds_write_b64 v{VX0}, v[{d}:{d+1}] offset:{h*512}")
        for h in (1, 2, 3):
            d = 142 + 4 * h; sr = acc(1, 1, 4)
            fl += [f"v_cvt_pk_bf16_f32 v{d}, v{sr}, v{sr+1}", f"v_cvt_pk_bf16_f32 v{d+1}, v{sr+2}, v{sr+3}"]
    for n_, m_ in enumerate(tm):
        tail(m_)
        for x in fl[2*n_:2*n_+2]: tail(x)
    for x in fl[2*len(tm):]: tail(x)
    if gate:
        z = ACCH + 8
        tail(f"""v_cvt_pk_bf16_f32 v248, v{z}, v{z}
        v_and_b32 v248, 0xffff0000, v248
        v_mul_f32 v248, {LOG2E ^ 0x80000000}, v248
        v_exp_f32 v248, v248
        s_lshl_b32 s46, s21, 3
        v_add_f32 v248, 1.0, v248
        v_rcp_f32 v248, v248
        s_add_u32 s46, s46, s20
        v_cvt_pk_bf16_f32 v248, v248, v248
        v_and_b32 v248, 0xffff0000, v248
        s_lshl_b32 s46, s46, 7
        s_add_u32 s46, s46, {WS_G}
        s_waitcnt lgkmcnt(0)
        v_sub_u32 v249, v{TOK}, v248""")
    snd = []
    for n, (seg, T) in enumerate(HALO[w]):
        snd.append(cv2(242 + 2*n, ACCH + 4*n) + [f"ds_write_b64 v{VX1}, v[{242+2*n}:{243+2*n}] offset:{((seg-1)*5+T)*512}"])
    for T in range(5):
        snd.append(cv2(vop(T, 1), acc(2, 1, T)) + ([f"ds_write_b64 v{VX0}, v[{vop(T,1)}:{vop(T,1)+1}] offset:{(5+T)*512}"] if w < 3 else []))
    nh = len(HALO[w])
    if w >= 2: snd = snd[nh:] + snd[:nh]
    rest = ["s_setprio 2"] + cv2(250, acc(0, 1, 4))
    for h in range(4): rest += cv2(qop(1, h), acc(0, 1, h))
    for h in range(4):
        for j in range(2): rest.append(f"v_cndmask_b32 v{qop(1,h)+2+j}, 0, v{250+j}, s[{48+2*h}:{49+2*h}]")
    for k_, x in enumerate(snd):
        for l in x + rest[2*k_:2*k_+2]: tail(l)
    for l in rest[2*len(snd):]: tail(l)
    if gate:
        tail(f"""s_cmp_ge_u32 s20, 8
        s_cbranch_scc1 L_ATT
        s_mov_b64 exec, 0xffff
        buffer_store_dwordx2 v[248:249], v{VWA}, s[32:35], s46 offen sc1
        s_mov_b64 exec, -1""")
    else: tail("s_branch L_ATT")
    if w > 0: a(f"L_W{w}:")
    if LS:
        a.extend(pre); a(f".p2align {AL}"); a(f"L_LA{w}:"); a.extend(pa); a(f"L_LB{w}:"); a.extend(pb); a(f"L_T{w}:"); a.extend(tail)
    else:
        a.extend(pre); a(f".p2align {AL}"); a(f"L_LB{w}:"); a.extend(pb); a.extend(pa); a(f"L_T{w}:"); a.extend(tail)
    traces.append(pre.L + pb.L + pa.L + pb.L + fix(tail.L)[0])
a("L_ATT:")
if STAMP: stamp2(a, 30, 51)
ev(a, "gemm")
KOP = {1: 140, 0: 156, -1: 204}
VOP = 172; QOP = {1: 68, 0: 108}
def kop(t, h): return KOP[t] + 4 * h
def vop(T, t): return VOP + 6 * T + 2 * (t + 1)
def qop(t, h): return QOP[t] + 4 * h
g = Asm()
def cvt(d, s): g(f"v_cvt_pk_bf16_f32 v{d}, v{s}, v{s+1}"); g(f"v_cvt_pk_bf16_f32 v{d+1}, v{s+2}, v{s+3}")
def flush(name):
    global g
    o, t = schedule(g.L, st_lat=STL); print(f"; sched {name}: {len(o)} instrs, est {t} cycles", file=sys.stderr)
    for n, l in enumerate(o):
        if OPT.get("astamp") and n and n % 45 == 0: a(f"s_memtime s[{86 + 2*(n//45)}:{87 + 2*(n//45)}]") if n // 45 < 8 else None
        a(l)
    if OPT.get("astamp"):
        a("s_waitcnt lgkmcnt(0)")
        for k in range(1, 8): a(f"v_writelane_b32 v{SV}, s{86+2*k}, {9+k}")
    g = Asm()
stamp(a, 31)
a("s_waitcnt lgkmcnt(0)"); a("s_barrier")
stamp(a, 32)
for h in range(4):
    g(f"ds_read_b64 v[{kop(-1,h)}:{kop(-1,h)+1}], v{VWB} offset:{h*512}")
    g(f"ds_read_b64 v[{kop(-1,h)+2}:{kop(-1,h)+3}], v{VWB} offset:{4*512}")
for T in range(5): g(f"ds_read_b64 v[{vop(T,-1)}:{vop(T,-1)+1}], v{VWB} offset:{(5+T)*512}")
g("@wait")
g(f"v_lshlrev_b32 v{VX0}, 4, v1"); g(f"v_mul_u32_u24 v{VWA}, 12, v1")
for h in range(4): cvt(kop(0, h), acc(1, 0, h)); cvt(kop(0, h) + 2, acc(1, 0, 4))
for T in range(5): cvt(vop(T, 0), acc(2, 0, T))
cvt(246, acc(0, 0, 4))
for h in range(4): cvt(qop(0, h), acc(0, 0, h))
for h in range(4):
    for j in range(2): g(f"v_cndmask_b32 v{qop(0,h)+2+j}, 0, v{246+j}, s[{48+2*h}:{49+2*h}]")
SR = {1: [28, 32, 36, 40, 44, 48, 52, 56], 0: [8, 12, 16, 20, 24, 88, 92, 96]}
def dc(t, h): return SR[t][h]
def dp(t, h): return SR[t][4 + h]
MX = {1: 84, 0: 124}; TMP = {1: 128, 0: 132}
OREG = {1: [68, 72, 76, 80, 140, 144, 148, 152, 60, 64, 100, 104], 0: [108, 112, 116, 120, 156, 160, 164, 168, 204, 208, 212, 216]}
def oo(t, h, k): return OREG[t][k * 4 + h]
for t in (1, 0):
    for h in range(4):
        g(f"{MF} {vr(dc(t,h))}, {vr(kop(t,h))}, {vr(qop(t,h))}, {vr(MC)}")
        g(f"{MF} {vr(dp(t,h))}, {vr(kop(t-1,h))}, {vr(qop(t,h))}, {vr(MP if t else MP0)}")
for t in (1, 0):
    for h in range(4):
        for r in range(4): g(f"v_max_f32 v{dc(t,h)+r}, v{dc(t,h)+r}, v{dp(t,h)+r}")
        g(f"v_max3_f32 v{MX[t]+h}, v{dc(t,h)}, v{dc(t,h)+1}, v{dc(t,h)+2}")
        g(f"v_max_f32 v{MX[t]+h}, v{MX[t]+h}, v{dc(t,h)+3}")
    m = MX[t]
    g(f"""v_permlane32_swap_b32 v{m}, v{m+1}
    v_permlane32_swap_b32 v{m+2}, v{m+3}
    v_max_f32 v{m}, v{m}, v{m+1}
    v_max_f32 v{m+2}, v{m+2}, v{m+3}
    v_permlane16_swap_b32 v{m}, v{m+2}
    v_max_f32 v{m}, v{m}, v{m+2}
    v_mul_f32 v{m+2}, s92, v{m}
    v_mul_f32 v{m}, s92, v{m}
    v_permlane16_swap_b32 v{m}, v{m+2}
    v_mov_b32 v{m+1}, v{m}
    v_mov_b32 v{m+3}, v{m+2}
    v_permlane32_swap_b32 v{m}, v{m+1}
    v_permlane32_swap_b32 v{m+2}, v{m+3}""")
    for h in range(4):
        d = dc(t, h); p = dp(t, h)
        if PK:
            mp_ = m + (h & 2); e = h & 1
            for r in (0, 2): g(f"v_pk_fma_f32 v[{d+r}:{d+r+1}], v[{d+r}:{d+r+1}], s[92:93], v[{mp_}:{mp_+1}] op_sel:[0,0,{e}] op_sel_hi:[1,1,{e}] neg_lo:[0,0,1] neg_hi:[0,0,1]")
        else:
            for r in range(4): g(f"v_fma_f32 v{d+r}, v{d+r}, s92, -v{m+h}")
        for r in range(4): g(f"v_exp_f32 v{d+r}, v{d+r}")
        g(f"v_cvt_pk_bf16_f32 v{d}, v{d}, v{d+1}"); g(f"v_cvt_pk_bf16_f32 v{d+2}, v{d+2}, v{d+3}")
        g(f"v_and_b32 v{p}, v{AM}, v{d}"); g(f"v_and_b32 v{p+1}, v{AM+1}, v{d+2}")
        g(f"v_and_b32 v{p+2}, v{AM+2}, v{d}"); g(f"v_and_b32 v{p+3}, v{AM+3}, v{d+2}")
    for h in range(4):
        g(f"{MF} {vr(oo(t,h,2))}, {vr(ONES)}, {vr(dp(t,h))}, 0")
        g(f"{MF} {vr(oo(t,h,0))}, {vr(vop(h,t-1))}, {vr(dp(t,h))}, 0")
        g(f"{MF} {vr(oo(t,h,1))}, {vr(vop(4,t-1))}, {vr(dp(t,h))}, 0")
    for h in range(4):
        o0 = oo(t, h, 0); rc = oo(t, h, 2)
        g(f"v_rcp_f32 v{rc}, v{rc}")
        if PK:
            for r in (0, 2): g(f"v_pk_mul_f32 v[{o0+r}:{o0+r+1}], v[{o0+r}:{o0+r+1}], v[{rc}:{rc+1}] op_sel_hi:[1,0]")
        else:
            for r in range(4): g(f"v_mul_f32 v{o0+r}, v{o0+r}, v{rc}")
        for r in range(4): g(f"v_mul_f32_dpp v{TMP[t]+r}, v{oo(t,h,1)+r}, v{rc} quad_perm:[0,1,2,3] row_mask:{hex(1<<h)} bank_mask:0xf")
        cvt(dc(t, h >> 1) + 2 * (h & 1), o0)
    cvt(dc(t, 2), TMP[t])
    so = "s95" if t else "s94"
    c = dc(t, 2)
    for p in range(2):
        g(f"buffer_store_dwordx4 {vr(dc(t, p))}, v{VX0}, s[32:35], {so} offen offset:{1024*p} {OSF}")
    d = dc(t, 0); e = dc(t, 1)
    g(f"v_add3_u32 v{c+2}, v{d}, v{d+1}, v{d+2}"); g(f"v_add3_u32 v{c+3}, v{e}, v{e+1}, v{e+2}")
    g(f"v_add3_u32 v{c+2}, v{c+2}, v{d+3}, v{e+3}"); g(f"v_add3_u32 v{c+2}, v{c+2}, v{c+3}, v{TOK}")
    g(f"v_add3_u32 v{c+2}, v{c+2}, v{c}, v{c+1}")
    g(f"buffer_store_dwordx3 {vr(c,3)}, v{VWA}, s[32:35], {so} offen offset:2048 {OSF}")
WR = 48
def rd_reg(l): return f"ds_read_b128 {vr(WR+4*l)}, v{248 if l < 24 else 249} offset:{(l % 24)*1024}"
if HR:
    g(f"v_add_u32 v248, {CL['S1'][2]}, v{VX0}"); g(f"v_add_u32 v249, {CL['S2'][2]}, v{VX0}")
    early = [22, 9, 0, 1, 2, 5, 6, 7, 8, 3, 4, 13, 14, 23, 24, 25, 26, 20]
    for l in early + [l for l in (19, 10, 11, 12, 15, 16, 17, 18, 27, 28, 29, 21)]: g(rd_reg(l))
flush("attention")
if STAMP: stamp2(a, 35, 52)
ev(a, "att")
WR = 48
NRK = 6
OR_ = 168
AC = 224
CK = 244
BA = {"S1": 248, "S2": 249, "S0": 250, "TOP": 251, "R1": 248, "R2": 249, "TB": 252}
def lring(l):
    k = (l - 30) % 15
    return 8 + 4 * k
if HR: a("s_branch L_P2_PRE2")
a("L_P2_PRE:")
a("v_lshlrev_b32 v2, 4, v1")
a("s_lshr_b32 s64, s22, 2")
a(f"s_mul_i32 s60, s64, {CL['S1'][3]}"); a(f"s_add_u32 s60, s60, {CL['S1'][2]}"); a(f"v_add_u32 v{BA['S1']}, s60, v2")
a(f"s_mul_i32 s60, s64, {CL['S2'][3]}"); a(f"s_add_u32 s60, s60, {CL['S2'][2]}"); a(f"v_add_u32 v{BA['S2']}, s60, v2")
for l in range(30): a(rd_reg(l))
a("L_P2_PRE2:")
if HR:
    a("s_waitcnt lgkmcnt(0)"); stamp(a, 36); a("s_barrier"); stamp(a, 37)
    a("s_cmp_lt_u32 s22, 4"); a("s_cbranch_scc1 L_P2_C")
    dma_class("R1"); dma_class("R2")
    a("L_P2_C:")
    a("v_lshlrev_b32 v2, 4, v1"); a("s_lshr_b32 s64, s22, 2")
for nm in ("S0", "TOP", "TB"):
    a(f"s_mul_i32 s60, s64, {CL[nm][3]}"); a(f"s_add_u32 s60, s60, {CL[nm][2]}"); a(f"v_add_u32 v{BA[nm]}, s60, v2")
consumer_ids()
rotbit("s86")
a(f"""s_and_b32 s65, s22, 3
s_lshl_b32 s67, s85, 2
s_add_u32 s67, s67, s65
s_mul_i32 s80, s67, {OTT}
s_mul_i32 s60, s64, {8*OBLK}
s_add_u32 s80, s80, s60
v_mul_u32_u24 v3, 12, v1
v_add_u32 v3, 2048, v3
v_and_b32 v4, 15, v1
v_lshlrev_b32 v5, 3, v4
s_lshl_b32 s62, s67, 7
s_add_u32 s62, s62, {WS_G}
v_sub_u32 v254, 0, v{TOK}
s_add_u32 s82, s80, {4*OBLK}
s_mul_i32 s86, s86, {4*OBLK}
s_add_u32 s80, s80, s86
s_sub_u32 s82, s82, s86
s_add_u32 s81, s80, {2*OBLK}
s_add_u32 s83, s82, {2*OBLK}
s_mov_b32 s28, s18
s_mov_b32 s29, s19
s_mov_b32 s30, 2621440
s_mov_b32 s31, 0x20000
s_mov_b32 s61, 0""")
if HR:
    a("s_setprio 0"); a("s_waitcnt vmcnt(0)"); stamp(a, 38)
else:
    stamp(a, 36)
    a("s_waitcnt lgkmcnt(0)")
    a("s_barrier")
    stamp(a, 37)
    a("s_cmp_lt_u32 s22, 4"); a("s_cbranch_scc1 L_P2_C")
    dma_class("R1"); dma_class("R2")
    a(f"s_setprio {OPT.get('pb', 0)}")
    if OWAIT >= 2: a("s_waitcnt vmcnt(0)"); stamp(a, 38)
    a("s_branch L_P2_GO")
    a("L_P2_C:")
    if OWAIT: a("s_waitcnt vmcnt(0)"); stamp(a, 38)
    a(f"s_setprio {OPT.get('pa', 0)}")
a("L_P2_GO:")
if OWAIT >= 2: a("s_barrier")
if OWAIT >= 3: a(f"s_sleep {OWAIT}")
if STAMP: stamp2(a, 39, 53)
ev(a, "bp")
TB = 216
def og(u, k): return OR_ + (u & 3) * 12 + k * 4
def ld_unit(u):
    m, e = u >> 1, u & 1
    return [f"buffer_load_dwordx4 {vr(og(u, k))}, v2, s[32:35], s{80+m} offen offset:{e*OBLK + k*1024} {OF}" for k in range(2)] + \
           [f"buffer_load_dwordx3 {vr(og(u, 2), 3)}, v3, s[32:35], s{80+m} offen offset:{e*OBLK} {OF}"]
def chk_unit(u):
    d = og(u, 0); f = og(u, 1); c = og(u, 2); x = CK
    return [f"v_add3_u32 v{x}, v{d}, v{d+1}, v{d+2}", f"v_add3_u32 v{x+1}, v{f}, v{f+1}, v{f+2}", f"v_add3_u32 v{x+2}, v{c}, v{c+1}, v{TOK}",
            f"v_add3_u32 v{x}, v{x}, v{d+3}, v{f+3}", f"v_add3_u32 v{x}, v{x}, v{x+1}, v{x+2}", f"v_cmp_ne_u32 vcc, v{x}, v{c+2}"]
def ld_w(i):
    if i < NRK or i >= 20: return []
    o = []
    for T in range(5):
        l = i * 5 + T
        nm = [k for k, v in CL.items() if v[0] <= l < v[0] + v[1]][0]
        o.append(f"ds_read_b128 {vr(lring(l))}, v{BA[nm]} offset:{(l - CL[nm][0]) * 1024}")
    return o
GLD = "buffer_load_dwordx2 v[6:7], v5, s[32:35], s62 offen sc1"
PRE = ["s_lshr_b32 s46, s67, 4", "s_lshl_b32 s46, s46, 8", "s_bfe_u32 s47, s67, 0x10003", "s_add_u32 s46, s46, s47", "s_and_b32 s47, s67, 7",
       "s_lshl_b32 s47, s47, 5", "s_add_u32 s46, s46, s47", "s_mul_i32 s46, s46, 1280", "s_mul_i32 s47, s84, 160", "s_add_u32 s46, s46, s47",
       "s_mul_i32 s60, s65, 5120", f"s_add_u32 s60, s60, {XCH}", f"v_add_u32 v{WR+76}, s60, v2", "v_mul_u32_u24 v4, 2560, v4", f"v_lshrrev_b32 v{WR+79}, 4, v1",
       f"v_lshl_add_u32 v{WR+77}, v{WR+79}, 4, v4", f"v_lshl_add_u32 v{WR+78}, v{WR+79}, 3, v4",
       "s_waitcnt vmcnt(0)", f"v_add3_u32 v{CK}, v6, v7, v254", f"v_cmp_ne_u32 vcc, 0, v{CK}"]
vq = []
def issue(u):
    if u < 8:
        for x in (ld_unit(u)[:2] if "no3" in XP else ld_unit(u)): a(x); vq.append(u)
    if u == 4: a(GLD); vq.append(8)
nxt_u = 0
for _ in range(U0): issue(nxt_u); nxt_u += 1
npre = 0
for u in range(8):
    m, e = u >> 1, u & 1
    last = max(k for k, t in enumerate(vq) if t == u)
    a(f"s_waitcnt vmcnt({len(vq) - 1 - last})")
    while nxt_u <= u + UD: issue(nxt_u); nxt_u += 1
    if u == 0: stamp(a, 33)
    for x in chk_unit(u): a(x)
    if "no3" not in XP: a(f"s_cbranch_vccnz L_RETRY{u}")
    a(f"L_OK{u}:")
    if u == 0: stamp(a, 34)
    tb = TB + 4 * (m & 1)
    a(f"v_mov_b64 v[{tb+2*e}:{tb+2*e+1}], v[{og(u,2)}:{og(u,2)+1}]")
    for ss in ([0, 1] if e == 0 else [2, 3, 4]):
        i = m * 5 + ss
        if i >= ET: continue
        nxt = ld_w(i + 2)
        if i >= NRK: a(f"s_waitcnt lgkmcnt({5 if i < 19 else 0})")
        of = og(u, ss & 1) if ss < 4 else tb
        for T in range(5):
            wf = vr(lring(i * 5 + T)) if i >= NRK else vr(WR + (i * 5 + T) * 4)
            if "nomf" not in XP or i == 0: a(f"{MF} {vr(AC+4*T)}, {wf}, {vr(of)}, {'0' if i == 0 else vr(AC+4*T)}")
            if nxt and "nold" not in XP: a(nxt[T])
            if 10 <= i < 15 and npre < len(PRE) - 3: a(PRE[npre]); npre += 1
            if i == min(18, ET - 1) and T >= 2: a(PRE[len(PRE) - 5 + T])
assert npre == len(PRE) - 3
if STAMP and ET > 19: stamp2(a, 56, 54)
a("s_cbranch_vccnz L_RETRYG")
a("L_OKG:")
a("s_cmp_eq_u32 s64, 0")
a("s_cbranch_scc1 L_EPI_A")
def epi(send, keep, sc):
    RA, O4, O2 = WR + 76, WR + 77, WR + 78
    for T in send:
        for r in (0, 2): a(f"v_pk_mul_f32 v[{AC+4*T+r}:{AC+4*T+r+1}], v[{AC+4*T+r}:{AC+4*T+r+1}], v[{sc}:{sc+1}] op_sel_hi:[1,0]")
    a("s_barrier")
    for T in send: a(f"ds_write_b128 v{RA}, {vr(AC+4*T)} offset:{T*1024}")
    a("s_waitcnt lgkmcnt(0)"); a("s_barrier")
    for n, T in enumerate(keep): a(f"ds_read_b128 {vr(8+4*n)}, v{RA} offset:{T*1024}")
    for n, T in enumerate(keep):
        a(f"s_waitcnt lgkmcnt({len(keep)-1-n})")
        for r in (0, 2): a(f"v_pk_fma_f32 v[{8+4*n+r}:{8+4*n+r+1}], v[{AC+4*T+r}:{AC+4*T+r+1}], v[{sc}:{sc+1}], v[{8+4*n+r}:{8+4*n+r+1}] op_sel_hi:[1,0,1]")
        a(f"v_cvt_pk_bf16_f32 v{OR_+2*n}, v{8+4*n}, v{8+4*n+1}"); a(f"v_cvt_pk_bf16_f32 v{OR_+2*n+1}, v{8+4*n+2}, v{8+4*n+3}")
        if n == 1: a(f"buffer_store_dwordx4 {vr(OR_)}, v{O4}, s[28:31], s46 offen offset:{32*keep[0]} {SF}")
        if n == 2: a(f"buffer_store_dwordx2 {vr(OR_+4,2)}, v{O2}, s[28:31], s46 offen offset:128 {SF}")
if EP:
    RA, O4, O2 = WR + 76, WR + 77, WR + 78
    def last_steps(fill, lg19):
        for i in range(ET, 20):
            a(f"s_waitcnt lgkmcnt({5 if i < 19 else lg19})")
            if i == ET and fill: a("s_barrier")
            of = og(7, 1) if i == 18 else TB + 4
            for T in range(5):
                a(f"{MF} {vr(AC+4*T)}, {vr(lring(i * 5 + T))}, {vr(of)}, {vr(AC+4*T)}")
                k = (i - ET) * 5 + T
                if k < len(fill): a(fill[k])
        if STAMP: stamp2(a, 56, 54)
    rds = [f"ds_read_b128 {vr(72+4*T)}, v{RA} offset:{T*1024}" for T in range(5)]
    scl = ["v_sub_f32 v6, 1.0, v6", "v_cvt_pk_bf16_f32 v6, v6, v6", "v_and_b32 v6, 0xffff0000, v6"]
    if ET == 18: last_steps(rds + scl, 5)
    else:
        a("s_barrier")
        for x in rds + scl: a(x)
    for T in range(5):
        a(f"s_waitcnt lgkmcnt({4-T})")
        for r in (0, 2): a(f"v_pk_fma_f32 v[{72+4*T+r}:{72+4*T+r+1}], v[{AC+4*T+r}:{AC+4*T+r+1}], v[6:7], v[{72+4*T+r}:{72+4*T+r+1}] op_sel_hi:[1,0,1]")
        a(f"v_cvt_pk_bf16_f32 v{OR_+2*T}, v{72+4*T}, v{72+4*T+1}"); a(f"v_cvt_pk_bf16_f32 v{OR_+2*T+1}, v{72+4*T+2}, v{72+4*T+3}")
        if T == 1: a(f"buffer_store_dwordx4 {vr(OR_)}, v{O4}, s[28:31], s46 offen {SF}")
        if T == 3: a(f"buffer_store_dwordx4 {vr(OR_+4)}, v{O4}, s[28:31], s46 offen offset:64 {SF}")
    a(f"buffer_store_dwordx2 {vr(OR_+8,2)}, v{O2}, s[28:31], s46 offen offset:128 {SF}")
    a("s_branch L_FIN")
    a("L_EPI_A:")
    if ET == 18: last_steps([], 0)
    else: a("s_nop 1")
    for T in range(5):
        for r in (0, 2): a(f"v_pk_mul_f32 v[{AC+4*T+r}:{AC+4*T+r+1}], v[{AC+4*T+r}:{AC+4*T+r+1}], v[6:7] op_sel_hi:[1,0]")
        a(f"ds_write_b128 v{RA}, {vr(AC+4*T)} offset:{T*1024}")
    a("s_waitcnt lgkmcnt(0)"); a("s_barrier")
else:
    a("v_sub_f32 v6, 1.0, v6"); a("v_cvt_pk_bf16_f32 v6, v6, v6"); a("v_and_b32 v6, 0xffff0000, v6")
    epi([0, 1], [2, 3, 4], 6)
    a("s_branch L_FIN")
    a("L_EPI_A:")
    a("s_nop 4")
    epi([2, 3, 4], [0, 1], 6)
ev(a, "end")
if SPIN:
    a("""s_mov_b32 s60, 0
    L_SPIN:
    s_memrealtime s[98:99]
    s_waitcnt lgkmcnt(0)
    s_sub_u32 s98, s98, s96
    s_add_u32 s60, s60, 1
    s_cmp_ge_u32 s60, 20000
    s_cbranch_scc1 L_FIN
    s_cmp_lt_u32 s98, 4000
    s_cbranch_scc1 L_SPIN""")
a("L_FIN:")
if STAMP:
    stamp(a, 57)
    a("s_add_u32 s61, s61, 1"); a(f"v_writelane_b32 v{SV}, s61, 61")
    if STAMP == 3:
        a("s_waitcnt lgkmcnt(0)")
        for k_, r_ in LITE.items(): a(f"v_writelane_b32 v{SV}, s{r_}, {k_}")
    a("s_waitcnt vmcnt(0)")
    stamp(a, 62); stamp(a, 63, True)
    a(f"s_lshl_b32 s46, s2, 3"); a(f"s_add_u32 s46, s46, s22"); a("s_lshl_b32 s46, s46, 8"); a(f"s_add_u32 s46, s46, {WS_ST}")
    a(f"v_lshlrev_b32 v2, 2, v1")
    a(f"buffer_store_dword v{SV}, v2, s[32:35], s46 offen")
a("L_END:"); a("s_endpgm")
for u in range(8):
    a(f"L_RETRY{u}:")
    a("s_add_u32 s61, s61, 1"); a(f"s_cmp_ge_u32 s61, {SPIN_MAX}"); a(f"s_cbranch_scc1 L_OK{u}")
    a(f"s_sleep {RSLEEP}")
    for x in ld_unit(u): a(x)
    a("s_waitcnt vmcnt(0)")
    for x in chk_unit(u): a(x)
    a(f"s_cbranch_vccnz L_RETRY{u}"); a(f"s_branch L_OK{u}")
a("L_RETRYG:")
a("s_add_u32 s61, s61, 1"); a(f"s_cmp_ge_u32 s61, {SPIN_MAX}"); a("s_cbranch_scc1 L_OKG")
a(f"s_sleep {RSLEEP}")
a("buffer_load_dwordx2 v[6:7], v5, s[32:35], s62 offen sc1"); a("s_waitcnt vmcnt(0)")
a(f"v_add3_u32 v{CK}, v6, v7, v254"); a(f"v_cmp_ne_u32 vcc, 0, v{CK}")
a("s_cbranch_vccnz L_RETRYG"); a("s_branch L_OKG")

l1, _ = fix(a.L)
for tr in traces:
    _, iss_ = fix(tr, verify=True)
    for x in iss_: print("; TRACE HAZARD", x, file=sys.stderr)
print(f"""; gated mix of two dilated sliding-window attention blocks (generated by gen/gen18.py)
; @launch grid=(256,1,1) block=(512,1,1) lds={LDS_TOTAL}
.amdgcn_target "amdgcn-amd-amdhsa--gfx950"
.text
.globl {KN}
.p2align 8
.type {KN},@function""")
print("\n".join(l1))
print("CODE_END:")
if STAMP: print(".fill 2048, 4, 0xBF800000")
print('.section .rodata,"a"')
print(kd(KN, 256, 102, 256))
```

```python
import sys, struct, math
sys.path.insert(0, "gen")
from asmlib import *
NAME = "gated_mix__sliding_local_dilated__sliding_local_dilated__prompt"
KN = NAME + "_kernel"
OPT = dict(a.split("=") for a in sys.argv[1:])
STAMP = int(OPT.get("stamp", 0)); CM = int(OPT.get("cm", 1)); PK = int(OPT.get("pk", 1))
NS1 = int(OPT.get("ns1", 12)); RSLEEP = int(OPT.get("rsleep", 2)); OWAIT = int(OPT.get("owait", 2)); SB = int(OPT.get("sb", 4)); SA = int(OPT.get("sa", 2)); XP = OPT.get("xp", ""); R2 = int(OPT.get("r2", 0)); WNT = "nt " if int(OPT.get("wnt", 0)) else ""; XNT = "nt " if int(OPT.get("xnt", 0)) else ""; SNT = "nt " if int(OPT.get("snt", 0)) else ""; STG = int(OPT.get("stg", 2)); PP = OPT.get("pp", "1101010100").replace("-", ""); ROT = int(OPT.get("rot", 0 if PP else 1)); EP = 1; OSF = OPT.get("osf", "sc1").replace("+", " "); OF = OPT.get("of", "sc1").replace("+", " ").replace("-", ""); KS0 = OPT.get("ks0", "-A555A5555"); KS1 = OPT.get("ks1", "-55A555A55"); ET = int(OPT.get("et", 18)); UD = int(OPT.get("ud", 2)); U0 = int(OPT.get("u0", 2)); HA = int(OPT.get("ha", 1)); LS = int(OPT.get("ls", 1)); AL = int(OPT.get("al", 6)); HR = int(OPT.get("hr", 0)); LP = int(OPT.get("lp", 0)); KP = int(OPT.get("kp", 5)); STL = int(OPT.get("stl", 60)); TOV = 1; LPOS = int(OPT.get("lpos", 2)); COV = int(OPT.get("cov", 0)); SF = OPT.get("sf", "").replace("+", " "); PD = int(OPT.get("pd", 1))
def f2u(x): return struct.unpack("<I", struct.pack("<f", x))[0]
STAGE = 49152; XOFF = 30720
GW_LDS = 147456; TOK_LDS = GW_LDS + 1536; SCR_LDS = 149504; LDS_TOTAL = 163840
XCH = 126976
RED = 98304
OBLK = 2816; OTT = 16 * OBLK
WS_WOT = 0x580000; WS_G = 0x710000; WS_FW = 0x720000; WS_ST = 0x1000000
NEG = f2u(-1e30)
CEXP = f2u(20 ** -0.5 * math.log2(math.e))
LOG2E = f2u(math.log2(math.e))
MF = "v_mfma_f32_16x16x32_bf16"
SPIN_MAX = 1 << 17
SV = 255
LITE = {50: 100, 51: 88, 52: 90, 53: 98}
def stamp(a, idx, real=False):
    if not STAMP: return
    if STAMP == 3 and idx != 63:
        if idx in LITE: a(f"s_memrealtime s[{LITE[idx]}:{LITE[idx]+1}]")
        return
    a(f"{'s_memrealtime' if real else 's_memtime'} s[68:69]"); a("s_waitcnt lgkmcnt(0)"); a(f"v_writelane_b32 v{SV}, s68, {idx}")
SPIN = OPT.get("spin", "")
def ev(a, name):
    if SPIN == name: a("s_memrealtime s[96:97]"); a("s_waitcnt lgkmcnt(0)")
def stamp2(a, idx, ridx):
    stamp(a, idx); stamp(a, ridx, True)
def stamp0(a):
    if STAMP: a(f"v_mov_b32 v{SV}, 0"); a(f"v_writelane_b32 v{SV}, s66, 0"); a(f"v_writelane_b32 v{SV}, s68, 1")

a = Asm()
traces = []
def ids():
    a("""v_and_b32 v1, 63, v0
    s_and_b32 s20, s2, 3
    s_lshl_b32 s20, s20, 2
    s_bfe_u32 s46, s2, 0x20003
    s_add_u32 s20, s20, s46
    s_lshr_b32 s47, s2, 5
    s_and_b32 s21, s2, 4
    s_lshl_b32 s21, s21, 1
    s_add_u32 s21, s21, s47""")
def srd_ws_dbg():
    WSO = int(OPT.get("wso", 0)) << 20
    a(f"""s_add_u32 s32, s78, {WSO}
    s_addc_u32 s33, s79, 0
    s_mov_b32 s34, {0x10000000 - WSO}
    s_mov_b32 s35, 0x20000
    s_mov_b32 s40, s76
    s_mov_b32 s41, s77
    s_mov_b32 s42, 256
    s_mov_b32 s43, 0x20000""")
def consumer_ids():
    if CM:
        a("s_bfe_u32 s84, s2, 0x30003"); a("s_and_b32 s85, s2, 7"); a("s_lshl_b32 s85, s85, 2"); a("s_lshr_b32 s86, s2, 6"); a("s_add_u32 s85, s85, s86")
    else:
        a("s_and_b32 s84, s20, 7"); a("s_lshl_b32 s85, s21, 1"); a("s_lshr_b32 s86, s20, 3"); a("s_add_u32 s85, s85, s86")
def pf_setup(isw_scc_cmp, vdst, vt, soff, sstep, lblx, lble):
    a(f"""s_lshr_b32 s44, s2, 3
    {isw_scc_cmp}
    s_cbranch_scc0 {lblx}
    v_mul_u32_u24 v{vt}, 13108, v1
    v_lshrrev_b32 v{vt}, 16, v{vt}
    v_mul_u32_u24 v{vt}, 640, v{vt}
    v_lshl_add_u32 v{vdst}, v1, 7, v{vt}
    s_mul_i32 {soff}, s44, 15360
    s_and_b32 s45, s2, 1
    s_mul_i32 s45, s45, 640
    s_add_u32 {soff}, {soff}, s45
    s_mov_b32 {sstep}, 491520
    s_cmp_ge_u32 s20, 8
    s_cselect_b32 s88, s12, s6
    s_cselect_b32 s89, s13, s7
    s_mov_b32 s90, 2457600
    s_branch {lble}
    {lblx}:
    v_lshrrev_b32 v{vt}, 1, v1
    v_mul_u32_u24 v{vt}, 1280, v{vt}
    v_and_b32 v{vdst}, 1, v1
    v_lshl_add_u32 v{vdst}, v{vdst}, 7, v{vt}
    s_and_b32 s45, s2, 4
    s_lshl_b32 s45, s45, 3
    s_add_u32 s44, s44, s45
    s_mul_i32 {soff}, s44, 40960
    s_mov_b32 {sstep}, 256
    s_mov_b32 s88, s4
    s_mov_b32 s89, s5
    s_mov_b32 s90, 2621440
    {lble}:
    s_mov_b32 s91, 0x20000""")
def rotbit(dst):
    a(f"s_xor_b32 {dst}, s84, s85"); a(f"s_and_b32 {dst}, {dst}, {R2}")
a(f"{KN}:")
if STAMP: a("s_memrealtime s[66:67]"); a("s_memtime s[68:69]")
a("""v_readfirstlane_b32 s22, v0
s_load_dwordx8 s[4:11], s[0:1], 0
s_load_dwordx8 s[12:19], s[0:1], 32""")
if not STAMP: a("s_lshr_b32 s3, s2, 8"); a("s_cbranch_scc1 L_END")
a("""s_lshr_b32 s22, s22, 6
s_cmp_eq_u32 s22, 3
s_cbranch_scc1 L_HOP
s_cmp_lt_u32 s22, 4
s_cbranch_scc1 L_COMPUTE""")
ECP = int(OPT.get("ecp", 1))
a("v_and_b32 v1, 63, v0"); a("s_lshr_b32 s44, s2, 3")
if ECP:
    a(f"""s_cmp_lg_u32 s22, 6
    s_cbranch_scc1 L_E0
    s_getpc_b64 s[70:71]
    L_PC0:
    s_mul_i32 s45, s44, 6
    v_min_u32 v3, 5, v1
    v_add_lshl_u32 v3, v3, s45, 7""")
    if not STAMP: a("v_min_u32 v3, CODE_END - L_PC0 - 4, v3")
    a("global_load_dword v41, v3, s[70:71]"); a("L_E0:")
a("""v_mul_u32_u24 v3, 13108, v1
v_lshrrev_b32 v3, 16, v3
v_mul_u32_u24 v3, 640, v3
v_lshlrev_b32 v4, 7, v1
v_add_u32 v40, v4, v3
v_lshrrev_b32 v3, 1, v1
v_lshl_add_u32 v42, v3, 10, v4
s_mul_i32 s92, s44, 24
s_and_b32 s45, s2, 1
s_add_u32 s92, s92, s45
s_mulk_i32 s92, 640
s_and_b32 s45, s2, 4
s_lshl_b32 s45, s45, 3
s_add_u32 s44, s44, s45
s_mul_i32 s93, s44, 40960
s_mov_b32 s26, 2457600
s_mov_b32 s30, 2621440
s_mov_b32 s31, 0x20000
s_mov_b32 s27, s31
s_bitcmp1_b32 s2, 1
s_waitcnt lgkmcnt(0)
s_cselect_b64 s[24:25], s[12:13], s[6:7]
s_mov_b64 s[28:29], s[4:5]
""")
if PP[0] == "1":
    a("""s_cmp_lg_u32 s22, 4
s_cbranch_scc1 L_E1
buffer_load_dword v41, v42, s[28:31], s93 offen
L_E1:
s_cmp_lg_u32 s22, 5
s_cbranch_scc1 L_LD0
buffer_load_dword v41, v40, s[24:27], s92 offen
s_branch L_LD0
""")
else:
    a("""s_bfe_u32 s45, s22, 0x10001
    s_bitcmp1_b32 s22, 0
    s_cbranch_scc1 L_E1
    s_lshl_b32 s45, s45, 8
    s_add_u32 s45, s45, s93
    buffer_load_dword v41, v42, s[28:31], s45 offen
    s_branch L_LD0
    L_E1:
    s_mul_i32 s45, s45, 491520
    s_add_u32 s45, s45, s92
    buffer_load_dword v41, v40, s[24:27], s45 offen
    s_branch L_LD0""")
a(""".p2align 8
L_HOP:
s_branch L_COMPUTE
L_LD0:
""")
a(f"s_setprio {OPT.get('pl', 2)}")
GL = int(OPT.get("gl", 1))
if GL:
    a(f"""s_cmp_lg_u32 s22, 7
    s_cbranch_scc1 L_NGW
    s_mov_b32 s36, s16
    s_mov_b32 s37, s17
    s_mov_b32 s38, 1280
    s_mov_b32 s39, 0x20000
    s_mov_b32 m0, {GW_LDS}
    v_lshlrev_b32 v12, 4, v1
    buffer_load_dwordx4 v12, s[36:39], 0 offen lds
    buffer_load_dwordx4 v12, s[36:39], 0 offen offset:1024 lds
    L_NGW:""")
stamp0(a); stamp(a, 3)
ids()
a("""v_lshrrev_b32 v3, 3, v1
v_mul_u32_u24 v3, 2560, v3
v_lshrrev_b32 v4, 4, v0
v_xor_b32 v4, v4, v1
v_xor_b32 v4, 4, v4
v_and_b32 v4, 7, v4
v_lshl_add_u32 v11, v4, 4, v3
s_and_b32 s64, s22, 3
s_lshr_b32 s44, s21, 1
s_or_b32 s45, s44, s64
s_cselect_b32 s52, -20480, 0
s_lshl_b32 s44, s44, 8
s_and_b32 s45, s21, 1
s_add_u32 s44, s44, s45
s_lshl_b32 s45, s64, 4
s_add_u32 s44, s44, s45
s_mul_i32 s47, s44, 1280
s_lshl_b32 s53, s64, 10
v_mul_u32_u24 v3, 6554, v1
v_lshrrev_b32 v3, 16, v3
v_mul_u32_u24 v4, 1120, v3
v_lshl_add_u32 v10, v1, 4, v4
s_and_b32 s46, s20, 7
s_mul_i32 s46, s46, 160
s_mul_i32 s44, s64, 61440
s_add_u32 s46, s46, s44
s_mul_i32 s48, s64, 7680
s_mov_b32 s49, 0
s_mov_b32 s50, 0
s_mov_b32 s87, 0
s_mov_b32 s86, 15""")
stamp(a, 2)
a("s_load_dwordx4 s[76:79], s[0:1], 64")
a("L_LD_ISSUE:")
a(f"s_add_u32 m0, s53, {XOFF + 1024}"); a("s_add_u32 s51, s47, s52"); a(f"buffer_load_dwordx4 v11, s[28:31], s51 offen {XNT}lds")
for qq in range(1, 4):
    a(f"s_add_u32 m0, s53, {XOFF + 1024 + 4096*qq}"); a(f"s_add_u32 s51, s47, {(64*qq-16)*1280}"); a(f"buffer_load_dwordx4 v11, s[28:31], s51 offen {XNT}lds")
a("s_mov_b32 exec_hi, 0x0fffffff")
for qq in range(8):
    if str(qq) in KS0 + KS1:
        a(f"s_cmp_eq_u32 s86, {qq}"); a(f"s_cbranch_scc1 L_HK{qq}"); a(f"L_HR{qq}:")
    r = 2 * qq; k = (r & 0x33) | ((r & 4) << 1) | ((r & 8) >> 1)
    a(f"s_add_u32 m0, s48, {960*qq}"); a(f"s_add_u32 s51, s46, {k*3840}"); a(f"buffer_load_dwordx4 v10, s[24:27], s51 offen {WNT}lds")
a("s_mov_b32 exec_hi, -1")
a("s_cmp_lg_u32 s64, 0"); a("s_cbranch_scc1 L_LD_W")
a(f"s_add_u32 m0, s53, {XOFF + 1024 + 4096*4}"); a(f"s_add_u32 s51, s47, {(64*4-16)*1280}"); a(f"buffer_load_dwordx4 v11, s[28:31], s51 offen {XNT}lds")
a("L_LD_W:")
a(f"""s_mov_b32 s63, {STAGE}
s_add_u32 s46, s46, 245760
s_add_u32 s47, s47, 128
s_add_u32 s49, s49, 1
s_cmp_eq_u32 s49, 3
s_cselect_b32 s51, {(-2*STAGE) & 0xffffffff}, s63
s_cselect_b32 s49, 0, s49
s_add_u32 s48, s48, s51
s_add_u32 s53, s53, s51
s_add_u32 s50, s50, 1""")
def lstamp(base):
    if STAMP == 1: a("s_memtime s[68:69]"); a("s_waitcnt lgkmcnt(0)"); a(f"s_add_u32 m0, s50, {base}"); a(f"v_writelane_b32 v{SV}, s68, m0")
lstamp(9)
a(f"""s_cmp_lt_u32 s50, 2
s_cbranch_scc1 L_LD_PRE0
L_DISP:
s_cmp_eq_u32 s50, s96
s_cbranch_scc1 L_SIDE_A
L_SA_RET:
s_cmp_eq_u32 s50, s97
s_cbranch_scc1 L_TOK_A
s_cmp_eq_u32 s50, s98
s_cbranch_scc1 L_TOK_B
s_cmp_eq_u32 s50, {10 if LP else 9}
s_cbranch_scc1 L_WOF_A
s_cmp_eq_u32 s50, 10
s_cbranch_scc1 L_WOF_B""")
a("L_LD_WAIT:")
a("L_LD_BAR:")
a("L_LD_PRE:")
a("s_bitcmp1_b32 s94, s50"); a("s_cbranch_scc0 L_LD_TOP")
a(f"s_add_u32 s87, s87, {STG}")
PW = int(OPT.get("pw", 6))
if PW < 60: a(f"s_waitcnt vmcnt({PW})")
TT = int(OPT.get("tt", 0))
if TT: a("s_cmp_eq_u32 s64, 3"); a("s_cbranch_scc1 L_PFT")
a("s_cmp_eq_u32 s64, 0"); a("s_cbranch_scc1 L_PFX")
for n in range(STG):
    a("buffer_load_dword v41, v40, s[24:27], s92 offen"); a(f"s_add_u32 s92, s92, {15360 if n < STG-1 else STG*491520 - (STG-1)*15360}")
a("s_branch L_LD_TOP")
a("L_PFX:")
for n in range(STG):
    a("buffer_load_dword v41, v42, s[28:31], s93 offen"); a(f"s_add_u32 s93, s93, {40960 if n < STG-1 else (STG*256 - (STG-1)*40960) & 0xffffffff}")
a("s_branch L_LD_TOP")
if TT:
    a("L_PFT:")
    srd_ws_dbg()
    a(f"s_mov_b32 s34, {WS_WOT}")
    a("""s_mov_b32 s88, s18
    s_mov_b32 s89, s19
    s_mov_b32 s90, 2621440
    s_mov_b32 s91, 0x20000
    s_lshr_b32 s44, s2, 3
    s_lshl_b32 s44, s44, 15
    v_lshlrev_b32 v16, 20, v1
    s_mov_b64 exec, 0xff
    buffer_load_dword v41, v16, s[32:35], s44 offen
    buffer_load_dword v41, v16, s[88:91], s44 offen
    s_mov_b64 exec, -1
    s_mov_b32 s94, 0""")
a("L_LD_TOP:")
a("s_and_b32 s86, s100, 15"); a("s_lshr_b64 s[100:101], s[100:101], 4")
a("s_cmp_lg_u32 s86, 10"); a("s_cbranch_scc1 L_LD_ISSUE")
ES = (1, 2, 3, 6, 9 if int(OPT.get('pt', 0)) else 8)
def hook(nm, base, ret):
    for e_ in ES: a(f"s_cmp_eq_u32 s87, {e_}"); a(f"s_cbranch_scc1 L_H{nm}_{e_}")
    a(f"s_waitcnt vmcnt({base})")
    a(f"L_H{nm}_B:")
    if STAMP == 1: a("s_memtime s[68:69]"); a("s_waitcnt lgkmcnt(0)"); a(f"s_add_u32 m0, s50, 19"); a(f"v_writelane_b32 v{SV}, s68, m0")
    a("s_barrier")
    if STAMP == 1: a("s_memrealtime s[68:69]"); a("s_waitcnt lgkmcnt(0)"); a(f"s_add_u32 m0, s50, 39"); a(f"v_writelane_b32 v{SV}, s68, m0")
    a("s_mov_b32 s87, 0"); a(f"s_branch {ret}")
    for e_ in ES: a(f"L_H{nm}_{e_}:"); a(f"s_waitcnt vmcnt({base + e_})"); a(f"s_branch L_H{nm}_B")
hook("A", 0, "L_LD_ISSUE")
for qq in range(8):
    if str(qq) in KS0 + KS1: a(f"L_HK{qq}:"); hook(str(qq), 4 + qq, f"L_HR{qq}")
a("L_LD_PRE0:")
a("v_lshlrev_b32 v12, 4, v1"); a("v_mov_b32 v13, 0")
pos = [c for c in range(1, 10) if PP[c] != "0"]
if STG > 1: a(f"s_bfe_u32 s45, s2, 0x{(STG.bit_length()-1):x}0003")
else: a("s_mov_b32 s45, 0")
a(f"s_mul_i32 s44, s45, {491520 - 15360}"); a("s_add_u32 s92, s92, s44"); a(f"s_add_u32 s92, s92, {491520*int(PP[0])}")
a(f"s_mul_i32 s44, s45, {40960 - 256}"); a("s_sub_u32 s93, s93, s44"); a(f"s_add_u32 s93, s93, {256*int(PP[0])}")
CB = OPT.get("cb", "")
if CB:
    a("s_lshr_b32 s44, s2, 2"); a("s_xor_b32 s44, s44, s2"); a("s_and_b32 s44, s44, 1"); a("s_lshl_b32 s45, s45, 1"); a("s_add_u32 s45, s45, s44")
    for n_, cs in enumerate(CB.split(".")):
        mask = sum(1 << int(c) for c in cs)
        ks = sum((10 if str(i) in cs else 5) << (4 * (i - 1)) for i in range(1, 10))
        a(f"s_cmp_eq_u32 s45, {n_}"); a(f"s_cselect_b32 s94, {mask}, s94"); a(f"s_cselect_b32 s100, {ks & 0xffffffff}, s100")
    a("s_mov_b32 s101, 5")
else:
    a("s_mov_b32 s94, 0")
    for g_ in range(STG):
        mask = sum(1 << c for k, c in enumerate(pos) if k % STG == g_)
        a(f"s_cmp_eq_u32 s45, {g_}"); a(f"s_cselect_b32 s94, {mask}, s94")
if TT: a("s_cmp_eq_u32 s64, 2")
else: a("s_cmp_ge_u32 s64, 2")
a("s_cselect_b32 s94, 0, s94")
a("s_waitcnt lgkmcnt(0)")
SA0 = int(OPT.get("sa0", SA)); SB0 = int(OPT.get("sb0", SB))
a("s_bitcmp1_b32 s2, 3"); a(f"s_cselect_b32 s96, {SA}, {SA0}"); a(f"s_cselect_b32 s97, {SB}, {SB0}")
a("s_add_u32 s98, s97, 2")
def pk(ks): return sum(int(c, 16) << (4 * i) for i, c in enumerate(ks[1:]))
assert STG == 2 and len(KS0) == 10 and len(KS1) == 10
if not CB:
    a(f"s_mov_b32 s100, {pk(KS0) & 0xffffffff}"); a(f"s_mov_b32 s101, {pk(KS0) >> 32}")
    a("s_bitcmp1_b32 s2, 3"); a(f"s_cselect_b32 s100, {pk(KS1) & 0xffffffff}, s100"); a(f"s_cselect_b32 s101, {pk(KS1) >> 32}, s101")
a("s_branch L_DISP")
a("L_SIDE_A:")
if int(OPT.get("u2", 1)):
    a("""s_mov_b32 s56, 0
    s_cmp_lt_u32 s64, 2
    s_cbranch_scc1 L_SA_RET
    s_mov_b32 s57, s2
    s_cmp_eq_u32 s64, 2
    s_cbranch_scc1 L_SA_GO
    s_bitcmp""" + ("1" if OPT.get("u2", "1") == "2" else "0") + """_b32 s2, 3
    s_cbranch_scc1 L_SA_RET
    s_lshr_b32 s44, s2, 4
    s_sub_u32 s44, s44, 4
    s_cmp_ge_u32 s44, 8
    s_cbranch_scc1 L_SA_RET
    s_lshl_b32 s44, s44, 3
    s_and_b32 s57, s2, 7
    s_add_u32 s57, s57, s44
    s_add_u32 s57, s57, 256
    L_SA_GO:""")
else:
    a("""s_mov_b32 s56, 0
    s_sub_u32 s44, s64, 2
    s_lshl_b32 s57, s44, 8
    s_add_u32 s57, s57, s2
    s_cmp_ge_u32 s57, 320
    s_cbranch_scc1 L_SA_RET""")
a("""s_mov_b32 s56, 1
s_mov_b32 s39, 0x20000
s_and_b32 s45, s57, 7
s_lshr_b32 s44, s57, 3
s_mul_i32 s58, s44, 52
s_lshr_b32 s58, s58, 8
s_mul_i32 s59, s58, 5
s_sub_u32 s59, s44, s59
s_cmp_ge_u32 s58, 4
s_cselect_b32 s36, s14, s8
s_cselect_b32 s37, s15, s9
s_mov_b32 s38, 819200
s_and_b32 s58, s58, 3
s_mul_i32 s58, s58, 160
s_mul_i32 s60, s59, 40
s_cmp_eq_u32 s59, 4
s_cselect_b32 s60, 16, s60
s_cselect_b32 s54, 80, 20
s_cselect_b32 s55, 20, 4
s_add_u32 s58, s58, s60
s_mul_i32 s58, s58, 1280
s_mul_i32 s60, s45, 160
s_add_u32 s58, s58, s60
s_mul_i32 s54, s54, 1280
s_mul_i32 s55, s55, 1280""")
a(f"s_mul_i32 s62, s64, 5120"); a(f"s_add_u32 s62, s62, {SCR_LDS - 10240}")
a("s_mov_b32 exec_hi, 0xff")
for g in range(4):
    for jh in range(2):
        a(f"s_add_u32 m0, s62, {(16*(g>>1) + 8*jh + 4*(g&1))*160}")
        if jh == 0: a("s_add_u32 s51, s58, s54"); a(f"buffer_load_dwordx4 v10, s[36:39], s58 offen {SNT}lds")
        else: a("s_add_u32 s58, s58, s55"); a(f"buffer_load_dwordx4 v10, s[36:39], s51 offen {SNT}lds")
a("s_mov_b32 exec_hi, -1")
a(f"""s_mul_i32 s61, s45, 204800
s_mul_i32 s58, s44, 5120
s_add_u32 s61, s61, s58
s_add_u32 s61, s61, {WS_WOT}
""")
if int(OPT.get("pt", 0)):
    srd_ws_dbg()
    a("v_lshlrev_b32 v16, 7, v1"); a("s_mov_b32 exec_hi, 0xff")
    a("buffer_load_dword v17, v16, s[32:35], s61 offen"); a("s_mov_b32 exec_hi, -1")
    a("s_mov_b32 s87, 9"); a("s_branch L_LD_BAR")
else: a("s_mov_b32 s87, 8"); a("s_branch L_LD_BAR")
a("L_SIDE_B:")
assert SB >= SA + 2
a("""v_lshrrev_b32 v16, 5, v1
v_lshlrev_b32 v16, 4, v16
v_bfe_u32 v17, v1, 4, 1
v_lshl_add_u32 v16, v17, 2, v16
v_bfe_u32 v17, v1, 2, 2
v_add_u32 v16, v16, v17
v_mul_u32_u24 v16, 160, v16
v_add_u32 v16, s62, v16
v_and_b32 v17, 3, v1
v_lshl_add_u32 v18, v17, 4, v16
v_lshl_add_u32 v19, v17, 3, v16""")
for T in range(5):
    for j in range(2):
        if T < 4: a(f"ds_read_b64_tr_b16 v[{20+4*T+2*j}:{21+4*T+2*j}], v18 offset:{j*1280 + 64*(T>>1) + 8*(T&1)}")
        else: a(f"ds_read_b64_tr_b16 v[{20+4*T+2*j}:{21+4*T+2*j}], v19 offset:{j*1280 + 128}")
a("s_waitcnt lgkmcnt(0)")
for T in range(4): a(f"buffer_store_dwordx4 v[{20+4*T}:{23+4*T}], v12, s[32:35], s61 offen offset:{1024*T} sc1")
a("s_add_u32 s61, s61, 4096")
a(f"buffer_store_dwordx4 v[36:39], v12, s[32:35], s61 offen sc1")
a("s_mov_b32 s87, 6"); a("s_branch L_LD_BAR")
a("L_TOK_A:")
srd_ws_dbg()
a("""v_lshlrev_b32 v12, 4, v1
v_mov_b32 v13, 0
s_mov_b64 exec, 1
buffer_load_dword v15, v13, s[40:43], 0 offen sc1
s_mov_b64 exec, -1
s_cmp_lg_u32 s56, 0
s_cbranch_scc1 L_SIDE_B
s_mov_b32 s87, 1
s_branch L_LD_BAR""")
a("L_TOK_B:")
srd_ws_dbg()
a(f"""s_mov_b32 s60, 0
v_mov_b32 v13, 0
L_TOK_CHK:
v_readlane_b32 s75, v15, 0
s_add_u32 s60, s60, 1
s_cmp_lg_u32 s75, 0
s_cbranch_scc1 L_TOK_OK
s_cmp_ge_u32 s60, {SPIN_MAX}
s_cbranch_scc1 L_TOK_OK
s_sleep 4
s_mov_b64 exec, 1
buffer_load_dword v15, v13, s[40:43], 0 offen sc1
s_mov_b64 exec, -1
s_waitcnt vmcnt(0)
s_branch L_TOK_CHK
L_TOK_OK:
v_mov_b32 v14, {TOK_LDS}
v_mov_b32 v15, s75
ds_write_b32 v14, v15
s_cmp_eq_u32 s56, 0
s_waitcnt lgkmcnt(0)
s_cbranch_scc1 L_LD_WAIT
s_and_b32 s45, s57, 7
s_lshl_b32 s45, s45, 13
s_lshr_b32 s44, s57, 3
s_lshl_b32 s44, s44, 7
s_add_u32 s45, s45, s44
s_add_u32 s45, s45, {WS_FW}
v_lshlrev_b32 v13, 2, v1
s_mov_b32 exec_hi, 0
buffer_store_dword v15, v13, s[32:35], s45 offen sc1
s_mov_b32 exec_hi, -1
s_mov_b32 s87, 1
s_branch L_LD_BAR""")
a("L_WOF_A:")
srd_ws_dbg()
consumer_ids()
a(f"""s_lshl_b32 s59, s84, 13
s_add_u32 s59, s59, {WS_FW}
s_lshr_b32 s44, s64, 1
s_mul_i32 s44, s44, 2560
s_add_u32 s59, s59, s44
v_lshlrev_b32 v13, 7, v1
v_lshlrev_b32 v12, 4, v1
s_mov_b64 exec, 0xfffff
buffer_load_dword v14, v13, s[32:35], s59 offen sc1
s_mov_b64 exec, -1""")
if LP: a("s_waitcnt vmcnt(1)"); a("s_barrier")
else: a("s_mov_b32 s87, 1"); a("s_branch L_LD_BAR")
a("L_WOF_B:")
srd_ws_dbg()
a("""v_lshlrev_b32 v12, 4, v1
v_lshlrev_b32 v13, 7, v1
s_mov_b64 exec, 0xfffff
s_mov_b32 s60, 0""")
a(f"s_waitcnt vmcnt({0 if LP else 12})")
a(f"""L_WO_POLL:
v_cmp_ne_u32 vcc, s75, v14
s_cbranch_vccz L_WO_OK
s_add_u32 s60, s60, 1
s_cmp_ge_u32 s60, {SPIN_MAX}
s_cbranch_scc1 L_WO_OK
s_sleep 4
buffer_load_dword v14, v13, s[32:35], s59 offen sc1
s_waitcnt vmcnt(0)
s_branch L_WO_POLL
L_WO_OK:
s_mov_b64 exec, -1
s_setprio 0""")
stamp(a, 29)
CL = {"S1": (0, 24, 49152, 24576), "S2": (24, 14, 98304, 14336), "S0": (38, 24, 0, 24576), "TOP": (62, 6, 151552, 6144), "TB": (68, 2, 147456, 2048),
      "R1": (70, 24, 49152, 24576), "R2": (94, 6, 98304, 14336)}
a(f"""s_mul_i32 s58, s84, 204800
s_add_u32 s58, s58, {WS_WOT}
s_lshr_b32 s44, s64, 1
s_and_b32 s45, s64, 1
s_lshl_b32 s45, s45, 10
s_mul_i32 s59, s44, 102400
s_add_u32 s59, s59, s58
s_add_u32 s59, s59, s45""")
rotbit("s54"); a("s_mul_i32 s54, s54, 51200"); a("s_sub_u32 s55, s59, s54"); a("s_add_u32 s59, s59, s54")
def dma_class(nm, lo=0, hi=None):
    l0, n, base, delta = CL[nm]
    a(f"s_mul_i32 s53, s44, {delta}"); a("s_add_u32 s53, s53, s45")
    for j in range(lo, n if hi is None else hi, 2):
        a(f"s_add_u32 m0, s53, {base + j*1024}"); a(f"s_add_u32 s51, {'s59' if l0 + j < 50 else 's55'}, {(l0 + j)*1024}")
        a(f"buffer_load_dwordx4 v12, s[32:35], s51 offen sc1 lds")
dma_class("S1", 0, NS1)
if not LP: a(f"s_waitcnt vmcnt({NS1//2})"); a("s_barrier")
dma_class("S1", NS1); dma_class("S2"); dma_class("TOP")
a("s_waitcnt vmcnt(7)")
stamp(a, 30)
a("s_barrier")
dma_class("S0"); dma_class("TB")
TOK = 253
a(f"v_mov_b32 v{TOK}, s75")
a("s_branch L_P2_PRE")
a("L_COMPUTE:")
a("s_load_dwordx4 s[76:79], s[0:1], 64")
ev(a, "start")
a(f"s_setprio {OPT.get('cprio', 3)}")
ids()
a("""s_mov_b32 s39, 0x20000
s_mov_b32 s56, 0
s_cmp_eq_u32 s22, 3
s_cbranch_scc1 L_C_GW
s_cmp_eq_u32 s22, 2
s_cbranch_scc1 L_C_TOK""")
if int(OPT.get("wpe", 0)):
    a("""s_cmp_eq_u32 s22, 1
    s_cselect_b32 s36, s14, s8
    s_cselect_b32 s37, s15, s9
    s_mov_b32 s38, 819200
    v_lshlrev_b32 v140, 7, v1
    v_lshrrev_b32 v141, 1, v1
    v_lshl_add_u32 v140, v141, 10, v140
    s_lshr_b32 s44, s2, 3
    s_mul_i32 s44, s44, 25600
    s_and_b32 s45, s2, 7
    s_mul_i32 s45, s45, 160
    s_add_u32 s44, s44, s45
    s_mov_b32 exec_hi, 0xff
    buffer_load_dword v241, v140, s[36:39], s44 offen
    s_mov_b32 exec_hi, -1""")
a("s_branch L_C_SETUP")
a("L_C_GW:")
if GL: a("v_lshlrev_b32 v140, 4, v1"); a("v_mov_b64 v[144:145], 0")
else:
    a(f"""s_waitcnt lgkmcnt(0)
    s_mov_b32 s36, s16
    s_mov_b32 s37, s17
    s_mov_b32 s38, 1280
    v_lshlrev_b32 v140, 4, v1
    s_mov_b32 m0, {GW_LDS}
    v_mov_b64 v[144:145], 0
    buffer_load_dwordx4 v140, s[36:39], 0 offen lds
    buffer_load_dwordx4 v140, s[36:39], 0 offen offset:1024 lds""")
a(f"""v_mov_b64 v[146:147], 0
ds_write_b128 v140, v[144:147] offset:{XOFF}
v_add_u32 v140, {STAGE}, v140
ds_write_b128 v140, v[144:147] offset:{XOFF}
v_add_u32 v140, {STAGE}, v140
ds_write_b128 v140, v[144:147] offset:{XOFF}
s_branch L_C_SETUP""")
a("L_C_TOK:")
a("""s_cmp_lg_u32 s2, 0
s_cbranch_scc1 L_C_CPF
s_memrealtime s[44:45]
v_mov_b32 v147, 0
s_waitcnt lgkmcnt(0)""")
srd_ws_dbg()
a("""s_or_b32 s44, s44, 1
v_mov_b32 v146, s44
s_mov_b64 exec, 1
buffer_atomic_cmpswap v[146:147], v147, s[40:43], 0 offen sc1
s_mov_b64 exec, -1
L_C_CPF:
s_getpc_b64 s[70:71]
L_PC:
s_sub_u32 s70, s70, L_PC - L_SIDE_B
s_subb_u32 s71, s71, 0
""")
if ECP: pass
elif int(OPT.get("ccp", 1)):
    a(f"""s_lshr_b32 s44, s2, 3
    s_mul_i32 s44, s44, 6
    v_min_u32 v140, 5, v1
    v_add_lshl_u32 v140, v140, s44, 7
    v_min_u32 v140, CODE_END - L_SIDE_B - 4, v140
    global_load_dword v241, v140, s[70:71]""")
else:
    a("""v_lshlrev_b32 v140, 7, v1
v_add_u32 v141, 8192, v140
v_add_u32 v142, 16384, v140
v_min_u32 v140, CODE_END - L_SIDE_B - 4, v140
v_min_u32 v141, CODE_END - L_SIDE_B - 4, v141
v_min_u32 v142, CODE_END - L_SIDE_B - 4, v142
global_load_dword v241, v140, s[70:71]
global_load_dword v241, v141, s[70:71]
global_load_dword v241, v142, s[70:71]""")
a("L_C_SETUP:")
if COV == 2:
    a("s_cmp_eq_u32 s56, 0"); a("s_cbranch_scc1 L_C_S2")
    a("buffer_load_dword v241, v252, s[36:39], s57 offen")
    a("L_C_S2:")
VWA, VWB, VX0, VX1, VGX0, VGX1, VGW = 2, 3, 4, 5, 6, 7, 240
ACCQ, ACCK, ACCV, ACCH = 8, 48, 88, 128
RING, XB, GX = 140, 180, 204
MC, MP, MP0, AM, ONES = 220, 224, 228, 232, 236
def acc(seg, t, T): return (ACCQ, ACCK, ACCV)[seg] + t * 20 + T * 4
a("s_setprio 0")
a(f"""v_lshrrev_b32 v140, 4, v1
v_and_b32 v141, 15, v1
v_lshrrev_b32 v142, 5, v1
v_lshlrev_b32 v142, 4, v142
v_and_b32 v143, 1, v140
v_lshl_add_u32 v142, v143, 2, v142
v_lshrrev_b32 v143, 2, v141
v_add_u32 v142, v142, v143
v_mul_u32_u24 v145, 480, v142
v_and_b32 v143, 3, v141
v_lshl_add_u32 v{VWA}, v143, 3, v145
v_mul_u32_u24 v144, 40, v143
v_add3_u32 v{VWB}, v145, v144, 32
v_lshrrev_b32 v144, 1, v141
v_xor_b32 v144, v144, v140
v_lshlrev_b32 v144, 4, v144
v_lshl_add_u32 v{VX0}, v141, 7, v144
v_xor_b32 v{VX1}, 64, v{VX0}
s_and_b32 s44, s20, 7
s_lshl_b32 s44, s44, 11
v_add_u32 v{VGX0}, s44, v{VX0}
v_add_u32 v{VGX1}, s44, v{VX1}
v_lshlrev_b32 v{VGW}, 4, v140
v_add_u32 v{VGW}, {GW_LDS}, v{VGW}""")
a(f"s_mov_b32 s44, {NEG}")
a(f"v_mov_b32 v146, s44")
a("s_lshr_b32 s45, s21, 1"); a("s_or_b32 s45, s45, s22")
a("v_lshlrev_b32 v145, 2, v140"); a("v_sub_u32 v145, v141, v145")
for r in range(4): a(f"v_subrev_u32 v{150+r}, {r}, v145")
for r in range(4):
    a(f"v_cmp_gt_u32 vcc, 8, v{150+r}"); a(f"v_cmp_gt_i32 s[72:73], -8, v{150+r}")
    a(f"v_mov_b32 v{ONES+r}, 0x3f803f80")
    a(f"v_cndmask_b32 v{MC+r}, v146, 0, vcc"); a(f"v_cndmask_b32 v{MP+r}, v146, 0, s[72:73]")
a("s_cmp_eq_u32 s45, 0"); a("s_cselect_b64 vcc, -1, 0")
for r in range(4): a(f"v_cndmask_b32 v{MP0+r}, v{MP+r}, v146, vcc")
a("s_mov_b32 s44, 0xffff0000")
for h in range(2):
    a(f"v_ashrrev_i32 v154, 31, v{150+2*h}"); a(f"v_ashrrev_i32 v155, 31, v{151+2*h}")
    a(f"v_bfi_b32 v{AM+h}, s44, v155, v154"); a(f"v_not_b32 v{AM+2+h}, v{AM+h}")
a(f"""s_mov_b64 s[48:49], 0xffff
s_mov_b32 s50, 0xffff0000
s_mov_b32 s51, 0
s_mov_b32 s52, 0
s_mov_b32 s53, 0xffff
s_mov_b32 s54, 0
s_mov_b32 s55, 0xffff0000
s_mov_b32 s63, {STAGE}
s_mov_b32 s74, 128
s_mov_b32 s92, {CEXP}
s_mov_b32 s93, {CEXP}
s_lshl_b32 s94, s21, 3
s_lshl_b32 s95, s22, 1
s_add_u32 s94, s94, s95
s_mul_i32 s94, s94, {OTT}
s_mul_i32 s95, s20, {OBLK}
s_add_u32 s94, s94, s95
s_add_u32 s95, s94, {OTT}""")
for r in range(ACCQ, ACCH + 12, 2): a(f"v_mov_b64 v[{r}:{r+1}], 0")
a("s_waitcnt vmcnt(0) lgkmcnt(0)")
stamp0(a)
srd_ws_dbg()
stamp(a, 4)
if COV in (1, 3):
    a("s_cmp_eq_u32 s56, 0"); a("s_cbranch_scc1 L_C_GO")
    if COV == 3: a("s_setprio 3")
    a("buffer_load_dword v241, v252, s[36:39], s57 offen")
a("s_setprio 0")
a("L_C_GO:")
a("""s_mov_b32 s44, 0
s_mov_b32 s45, 0""")
for w in range(1, 4):
    a(f"s_cmp_eq_u32 s22, {w}"); a(f"s_cbranch_scc1 L_W{w}")
KOP = {1: 140, 0: 156, -1: 204}
VOP = 172; QOP = {1: 68, 0: 108}
def kop(t, h): return KOP[t] + 4 * h
def vop(T, t): return VOP + 6 * T + 2 * (t + 1)
def qop(t, h): return QOP[t] + 4 * h
def cv2(d, s): return [f"v_cvt_pk_bf16_f32 v{d}, v{s}, v{s+1}", f"v_cvt_pk_bf16_f32 v{d+1}, v{s+2}, v{s+3}"]
HALO = [[(1,0),(1,1),(1,2)], [(1,3),(1,4),(2,0)], [(2,1),(2,2)], [(2,3),(2,4)]] if OPT.get('hal') == '0' else [[(1,0),(1,2),(2,0)], [(1,1),(1,3),(2,1)], [(1,4),(2,2),(2,3)], [(2,4)]]
D = 5
def istep(f): return f - 5 if f <= 14 else (f - 6 if f <= 21 else f - 7)
for w in range(4):
    gate = (w == 3)
    q = []
    def rdW(f):
        ks, seg, T = f // 15, (f % 15) // 5, f % 5
        d = RING + (f % 10) * 4
        if "nods" in XP: return [("s_nop 0", ("W", f))] * 2
        if "ds9" in XP and T in (1, 3):
            if seg < 2 and T == 1: return [(f"ds_read_b128 v[{d}:{d+3}], v{(VX0, VX1)[ks]} offset:{XOFF + 4096}", ("W", f))]
            return []
        return [(f"ds_read_b64_tr_b16 v[{d+2*j}:{d+2*j+1}], v{VWA if T < 4 else VWB} offset:{seg*160 + ks*15360 + j*3840 + (40*T if T < 4 else 0)}", ("W", f)) for j in range(2)]
    def rdX(ks):
        o = []
        for n, tile in enumerate((1 + 2 * w, 2 + 2 * w, 0)):
            d = XB + (ks * 3 + n) * 4
            o.append((f"ds_read_b128 v[{d}:{d+3}], v{(VX0, VX1)[ks]} offset:{XOFF + tile*2048}", ("X", ks)))
        if gate:
            d = GX + ks * 8
            o.append((f"ds_read_b128 v[{d}:{d+3}], v{(VGX0, VGX1)[ks]} offset:{XOFF + 2048}", ("X", ks)))
            o.append((f"ds_read_b128 v[{d+4}:{d+7}], v{VGW} offset:{ks*64}", ("X", ks)))
        return o
    def wait(b, tags):
        if not any(t in tags for t in q): return
        last = max(i for i, t in enumerate(q) if t in tags)
        b(f"s_waitcnt lgkmcnt({min(len(q) - 1 - last, 15)})")
    def mm(f):
        ks, seg, T = f // 15, (f % 15) // 5, f % 5
        wf = vr(RING + (f % 10) * 4); o = []
        def one(dst, xf):
            o.append(f"{MF} {vr(dst)}, {wf}, {xf}, {vr(dst)}" if seg < 2 else f"{MF} {vr(dst)}, {xf}, {wf}, {vr(dst)}")
        one(acc(seg, 0, T), vr(XB + (ks * 3) * 4)); one(acc(seg, 1, T), vr(XB + (ks * 3 + 1) * 4))
        if (seg, T) in HALO[w]: one(ACCH + 4 * HALO[w].index((seg, T)), vr(XB + (ks * 3 + 2) * 4))
        if gate and seg == 0 and T == 2:
            d = GX + ks * 8
            o.append(f"{MF} {vr(ACCH+8)}, {vr(d+4)}, {vr(d)}, {vr(ACCH+8)}")
        return o
    def weave(b, ms, fs, lastless=True):
        n = len(ms)
        if OPT.get("wv", "1") == "1":
            ds = [t for t in fs if t[1] is not None]; ot = [t for t in fs if t[1] is None]
            per = [[] for _ in range(n)]
            cnt = [0] * n
            for i in range(len(ds)): cnt[i % n] += 1
            it = iter(ds)
            for j in range(n):
                for _ in range(cnt[j]): per[j].append(next(it))
            lo = 0
            for t in ot:
                load = [len(per[j]) + (1 if (lastless and j == n - 1) else 0) for j in range(n)]
                j = min(range(lo, n), key=lambda k: load[k]); lo = j
                per[j].append(t)
            for m_, p_ in zip(ms, per):
                b(m_)
                for t in p_:
                    b(t[0])
                    if t[1] is not None: q.append(t[1])
            return
        k = len(fs)
        cnt = [0] * n
        for i in range(k):
            load = [cnt[j] + (1 if (lastless and j == n - 1) else 0) for j in range(n)]
            cnt[load.index(min(load))] += 1
        it = iter(fs)
        for m_, c_ in zip(ms, cnt):
            b(m_)
            for _ in range(c_):
                t = next(it)
                b(t[0])
                if t[1] is not None: q.append(t[1])
    FA = {s: [] for s in range(25, 30)}
    x0 = rdX(0)
    FA[25] = x0[:2] + rdW(0); FA[26] = x0[2:4] + rdW(1); FA[27] = x0[4:] + rdW(2); FA[28] = rdW(3); FA[29] = rdW(4)
    FB = {s: [] for s in range(25)}
    for f in range(D, 30): FB[istep(f)] += rdW(f)
    x1 = rdX(1)
    for i, t in enumerate(x1): FB[2 + i].append(t)
    sal = ["s_add_u32 s45, s45, 1", "s_cmp_eq_u32 s45, 3", f"s_cselect_b32 s46, {(-2*STAGE) & 0xffffffff}, s63", "s_cselect_b32 s45, 0, s45"]
    for i, t in enumerate(sal): FB[10 + i].append((t, None))
    if gate:
        FB[20].append((f"v_add_u32 v{VGW}, s74, v{VGW}", None))
        FB[21].append((f"v_add_u32 v{VGX0}, s46, v{VGX0}", None)); FB[22].append((f"v_add_u32 v{VGX1}, s46, v{VGX1}", None))
    FB[20].append((f"v_add_u32 v{VX0}, s46, v{VX0}", None)) if not gate else FB[14].append((f"v_add_u32 v{VX0}, s46, v{VX0}", None))
    FB[23] += [(f"v_add_u32 v{VX1}, s46, v{VX1}", None), (f"v_add_u32 v{VWA}, s46, v{VWA}", None), (f"v_add_u32 v{VWB}, s46, v{VWB}", None)]
    FB[24] += [("s_add_u32 s44, s44, 1", None), ("s_cmp_eq_u32 s44, 10", None)]
    pre = Asm(); pa = Asm(); pb = Asm(); tail = Asm()
    stamp(pre, 5)
    pre("s_barrier")
    if STAMP: stamp2(pre, 6, 50)
    ev(pre, "b0")
    for s in range(25, 30):
        for t in FA[s]: pre(t[0])
    q.clear()
    if not LS: pa("s_waitcnt lgkmcnt(0)")
    pa("s_barrier")
    for s in range(25, 30): weave(pa, mm(s), FA[s], lastless=(s == 29))
    if LS: pre(f"s_branch L_LB{w}")
    else: pa(f"s_branch L_LB{w}")
    for s in range(25):
        tags = [("W", s)] + ([("X", 0)] if s == 0 else []) + ([("X", 1)] if s == 15 else [])
        wait(pb, tags); weave(pb, mm(s), FB[s])
    if LS: pb("s_waitcnt lgkmcnt(0)"); pb(f"s_cbranch_scc0 L_LA{w}")
    else: pb(f"s_cbranch_scc1 L_T{w}")
    tail(f"v_mov_b32 v{TOK}, {TOK_LDS}")
    tail("s_waitcnt lgkmcnt(0)")
    tail(f"ds_read_b32 v{TOK}, v{TOK}")
    tm = [m_ for s in range(25, 30) for m_ in mm(s)]
    fl = [f"v_lshlrev_b32 v{VWA}, 3, v1", f"v_add_u32 v{VX1}, {XCH}, v{VWA}"]
    if TOV:
        fl += [f"v_add_u32 v{VWB}, {XCH + 5120*w}, v{VWA}", f"v_add_u32 v{VX0}, {XCH + 5120*(w+1)}, v{VWA}"]
        for h in (0, 1, 2, 3, 4):
            d = 140 + 4 * h if h < 4 else 142; sr = acc(1, 1, h)
            fl += [f"v_cvt_pk_bf16_f32 v{d}, v{sr}, v{sr+1}", f"v_cvt_pk_bf16_f32 v{d+1}, v{sr+2}, v{sr+3}"]
            if w < 3: fl.append(f"ds_write_b64 v{VX0}, v[{d}:{d+1}] offset:{h*512}")
        for h in (1, 2, 3):
            d = 142 + 4 * h; sr = acc(1, 1, 4)
            fl += [f"v_cvt_pk_bf16_f32 v{d}, v{sr}, v{sr+1}", f"v_cvt_pk_bf16_f32 v{d+1}, v{sr+2}, v{sr+3}"]
    for n_, m_ in enumerate(tm):
        tail(m_)
        for x in fl[2*n_:2*n_+2]: tail(x)
    for x in fl[2*len(tm):]: tail(x)
    if gate:
        z = ACCH + 8
        tail(f"""v_cvt_pk_bf16_f32 v248, v{z}, v{z}
        v_and_b32 v248, 0xffff0000, v248
        v_mul_f32 v248, {LOG2E ^ 0x80000000}, v248
        v_exp_f32 v248, v248
        s_lshl_b32 s46, s21, 3
        v_add_f32 v248, 1.0, v248
        v_rcp_f32 v248, v248
        s_add_u32 s46, s46, s20
        v_cvt_pk_bf16_f32 v248, v248, v248
        v_and_b32 v248, 0xffff0000, v248
        s_lshl_b32 s46, s46, 7
        s_add_u32 s46, s46, {WS_G}
        s_waitcnt lgkmcnt(0)
        v_sub_u32 v249, v{TOK}, v248""")
    snd = []
    for n, (seg, T) in enumerate(HALO[w]):
        snd.append(cv2(242 + 2*n, ACCH + 4*n) + [f"ds_write_b64 v{VX1}, v[{242+2*n}:{243+2*n}] offset:{((seg-1)*5+T)*512}"])
    for T in range(5):
        snd.append(cv2(vop(T, 1), acc(2, 1, T)) + ([f"ds_write_b64 v{VX0}, v[{vop(T,1)}:{vop(T,1)+1}] offset:{(5+T)*512}"] if w < 3 else []))
    nh = len(HALO[w])
    if w >= 2: snd = snd[nh:] + snd[:nh]
    rest = ["s_setprio 2"] + cv2(250, acc(0, 1, 4))
    for h in range(4): rest += cv2(qop(1, h), acc(0, 1, h))
    for h in range(4):
        for j in range(2): rest.append(f"v_cndmask_b32 v{qop(1,h)+2+j}, 0, v{250+j}, s[{48+2*h}:{49+2*h}]")
    for k_, x in enumerate(snd):
        for l in x + rest[2*k_:2*k_+2]: tail(l)
    for l in rest[2*len(snd):]: tail(l)
    if gate:
        tail(f"""s_cmp_ge_u32 s20, 8
        s_cbranch_scc1 L_ATT
        s_mov_b64 exec, 0xffff
        buffer_store_dwordx2 v[248:249], v{VWA}, s[32:35], s46 offen sc1
        s_mov_b64 exec, -1""")
    else: tail("s_branch L_ATT")
    if w > 0: a(f"L_W{w}:")
    if LS:
        a.extend(pre); a(f".p2align {AL}"); a(f"L_LA{w}:"); a.extend(pa); a(f"L_LB{w}:"); a.extend(pb); a(f"L_T{w}:"); a.extend(tail)
    else:
        a.extend(pre); a(f".p2align {AL}"); a(f"L_LB{w}:"); a.extend(pb); a.extend(pa); a(f"L_T{w}:"); a.extend(tail)
    traces.append(pre.L + pb.L + pa.L + pb.L + fix(tail.L)[0])
a("L_ATT:")
if STAMP: stamp2(a, 30, 51)
ev(a, "gemm")
KOP = {1: 140, 0: 156, -1: 204}
VOP = 172; QOP = {1: 68, 0: 108}
def kop(t, h): return KOP[t] + 4 * h
def vop(T, t): return VOP + 6 * T + 2 * (t + 1)
def qop(t, h): return QOP[t] + 4 * h
g = Asm()
def cvt(d, s): g(f"v_cvt_pk_bf16_f32 v{d}, v{s}, v{s+1}"); g(f"v_cvt_pk_bf16_f32 v{d+1}, v{s+2}, v{s+3}")
def flush(name):
    global g
    o, t = schedule(g.L, st_lat=STL); print(f"; sched {name}: {len(o)} instrs, est {t} cycles", file=sys.stderr)
    for n, l in enumerate(o):
        if OPT.get("astamp") and n and n % 45 == 0: a(f"s_memtime s[{86 + 2*(n//45)}:{87 + 2*(n//45)}]") if n // 45 < 8 else None
        a(l)
    if OPT.get("astamp"):
        a("s_waitcnt lgkmcnt(0)")
        for k in range(1, 8): a(f"v_writelane_b32 v{SV}, s{86+2*k}, {9+k}")
    g = Asm()
stamp(a, 31)
a("s_waitcnt lgkmcnt(0)"); a("s_barrier")
stamp(a, 32)
for h in range(4):
    g(f"ds_read_b64 v[{kop(-1,h)}:{kop(-1,h)+1}], v{VWB} offset:{h*512}")
    g(f"ds_read_b64 v[{kop(-1,h)+2}:{kop(-1,h)+3}], v{VWB} offset:{4*512}")
for T in range(5): g(f"ds_read_b64 v[{vop(T,-1)}:{vop(T,-1)+1}], v{VWB} offset:{(5+T)*512}")
g("@wait")
g(f"v_lshlrev_b32 v{VX0}, 4, v1"); g(f"v_mul_u32_u24 v{VWA}, 12, v1")
for h in range(4): cvt(kop(0, h), acc(1, 0, h)); cvt(kop(0, h) + 2, acc(1, 0, 4))
for T in range(5): cvt(vop(T, 0), acc(2, 0, T))
cvt(246, acc(0, 0, 4))
for h in range(4): cvt(qop(0, h), acc(0, 0, h))
for h in range(4):
    for j in range(2): g(f"v_cndmask_b32 v{qop(0,h)+2+j}, 0, v{246+j}, s[{48+2*h}:{49+2*h}]")
SR = {1: [28, 32, 36, 40, 44, 48, 52, 56], 0: [8, 12, 16, 20, 24, 88, 92, 96]}
def dc(t, h): return SR[t][h]
def dp(t, h): return SR[t][4 + h]
MX = {1: 84, 0: 124}; TMP = {1: 128, 0: 132}
OREG = {1: [68, 72, 76, 80, 140, 144, 148, 152, 60, 64, 100, 104], 0: [108, 112, 116, 120, 156, 160, 164, 168, 204, 208, 212, 216]}
def oo(t, h, k): return OREG[t][k * 4 + h]
for t in (1, 0):
    for h in range(4):
        g(f"{MF} {vr(dc(t,h))}, {vr(kop(t,h))}, {vr(qop(t,h))}, {vr(MC)}")
        g(f"{MF} {vr(dp(t,h))}, {vr(kop(t-1,h))}, {vr(qop(t,h))}, {vr(MP if t else MP0)}")
for t in (1, 0):
    for h in range(4):
        for r in range(4): g(f"v_max_f32 v{dc(t,h)+r}, v{dc(t,h)+r}, v{dp(t,h)+r}")
        g(f"v_max3_f32 v{MX[t]+h}, v{dc(t,h)}, v{dc(t,h)+1}, v{dc(t,h)+2}")
        g(f"v_max_f32 v{MX[t]+h}, v{MX[t]+h}, v{dc(t,h)+3}")
    m = MX[t]
    g(f"""v_permlane32_swap_b32 v{m}, v{m+1}
    v_permlane32_swap_b32 v{m+2}, v{m+3}
    v_max_f32 v{m}, v{m}, v{m+1}
    v_max_f32 v{m+2}, v{m+2}, v{m+3}
    v_permlane16_swap_b32 v{m}, v{m+2}
    v_max_f32 v{m}, v{m}, v{m+2}
    v_mul_f32 v{m+2}, s92, v{m}
    v_mul_f32 v{m}, s92, v{m}
    v_permlane16_swap_b32 v{m}, v{m+2}
    v_mov_b32 v{m+1}, v{m}
    v_mov_b32 v{m+3}, v{m+2}
    v_permlane32_swap_b32 v{m}, v{m+1}
    v_permlane32_swap_b32 v{m+2}, v{m+3}""")
    for h in range(4):
        d = dc(t, h); p = dp(t, h)
        if PK:
            mp_ = m + (h & 2); e = h & 1
            for r in (0, 2): g(f"v_pk_fma_f32 v[{d+r}:{d+r+1}], v[{d+r}:{d+r+1}], s[92:93], v[{mp_}:{mp_+1}] op_sel:[0,0,{e}] op_sel_hi:[1,1,{e}] neg_lo:[0,0,1] neg_hi:[0,0,1]")
        else:
            for r in range(4): g(f"v_fma_f32 v{d+r}, v{d+r}, s92, -v{m+h}")
        for r in range(4): g(f"v_exp_f32 v{d+r}, v{d+r}")
        g(f"v_cvt_pk_bf16_f32 v{d}, v{d}, v{d+1}"); g(f"v_cvt_pk_bf16_f32 v{d+2}, v{d+2}, v{d+3}")
        g(f"v_and_b32 v{p}, v{AM}, v{d}"); g(f"v_and_b32 v{p+1}, v{AM+1}, v{d+2}")
        g(f"v_and_b32 v{p+2}, v{AM+2}, v{d}"); g(f"v_and_b32 v{p+3}, v{AM+3}, v{d+2}")
    for h in range(4):
        g(f"{MF} {vr(oo(t,h,2))}, {vr(ONES)}, {vr(dp(t,h))}, 0")
        g(f"{MF} {vr(oo(t,h,0))}, {vr(vop(h,t-1))}, {vr(dp(t,h))}, 0")
        g(f"{MF} {vr(oo(t,h,1))}, {vr(vop(4,t-1))}, {vr(dp(t,h))}, 0")
    for h in range(4):
        o0 = oo(t, h, 0); rc = oo(t, h, 2)
        g(f"v_rcp_f32 v{rc}, v{rc}")
        if PK:
            for r in (0, 2): g(f"v_pk_mul_f32 v[{o0+r}:{o0+r+1}], v[{o0+r}:{o0+r+1}], v[{rc}:{rc+1}] op_sel_hi:[1,0]")
        else:
            for r in range(4): g(f"v_mul_f32 v{o0+r}, v{o0+r}, v{rc}")
        for r in range(4): g(f"v_mul_f32_dpp v{TMP[t]+r}, v{oo(t,h,1)+r}, v{rc} quad_perm:[0,1,2,3] row_mask:{hex(1<<h)} bank_mask:0xf")
        cvt(dc(t, h >> 1) + 2 * (h & 1), o0)
    cvt(dc(t, 2), TMP[t])
    so = "s95" if t else "s94"
    c = dc(t, 2)
    for p in range(2):
        g(f"buffer_store_dwordx4 {vr(dc(t, p))}, v{VX0}, s[32:35], {so} offen offset:{1024*p} {OSF}")
    d = dc(t, 0); e = dc(t, 1)
    g(f"v_add3_u32 v{c+2}, v{d}, v{d+1}, v{d+2}"); g(f"v_add3_u32 v{c+3}, v{e}, v{e+1}, v{e+2}")
    g(f"v_add3_u32 v{c+2}, v{c+2}, v{d+3}, v{e+3}"); g(f"v_add3_u32 v{c+2}, v{c+2}, v{c+3}, v{TOK}")
    g(f"v_add3_u32 v{c+2}, v{c+2}, v{c}, v{c+1}")
    g(f"buffer_store_dwordx3 {vr(c,3)}, v{VWA}, s[32:35], {so} offen offset:2048 {OSF}")
WR = 48
def rd_reg(l): return f"ds_read_b128 {vr(WR+4*l)}, v{248 if l < 24 else 249} offset:{(l % 24)*1024}"
if HR:
    g(f"v_add_u32 v248, {CL['S1'][2]}, v{VX0}"); g(f"v_add_u32 v249, {CL['S2'][2]}, v{VX0}")
    early = [22, 9, 0, 1, 2, 5, 6, 7, 8, 3, 4, 13, 14, 23, 24, 25, 26, 20]
    for l in early + [l for l in (19, 10, 11, 12, 15, 16, 17, 18, 27, 28, 29, 21)]: g(rd_reg(l))
flush("attention")
if STAMP: stamp2(a, 35, 52)
ev(a, "att")
WR = 48
NRK = 6
OR_ = 168
AC = 224
CK = 244
BA = {"S1": 248, "S2": 249, "S0": 250, "TOP": 251, "R1": 248, "R2": 249, "TB": 252}
def lring(l):
    k = (l - 30) % 15
    return 8 + 4 * k
if HR: a("s_branch L_P2_PRE2")
a("L_P2_PRE:")
a("v_lshlrev_b32 v2, 4, v1")
a("s_lshr_b32 s64, s22, 2")
a(f"s_mul_i32 s60, s64, {CL['S1'][3]}"); a(f"s_add_u32 s60, s60, {CL['S1'][2]}"); a(f"v_add_u32 v{BA['S1']}, s60, v2")
a(f"s_mul_i32 s60, s64, {CL['S2'][3]}"); a(f"s_add_u32 s60, s60, {CL['S2'][2]}"); a(f"v_add_u32 v{BA['S2']}, s60, v2")
for l in range(30): a(rd_reg(l))
a("L_P2_PRE2:")
if HR:
    a("s_waitcnt lgkmcnt(0)"); stamp(a, 36); a("s_barrier"); stamp(a, 37)
    a("s_cmp_lt_u32 s22, 4"); a("s_cbranch_scc1 L_P2_C")
    dma_class("R1"); dma_class("R2")
    a("L_P2_C:")
    a("v_lshlrev_b32 v2, 4, v1"); a("s_lshr_b32 s64, s22, 2")
for nm in ("S0", "TOP", "TB"):
    a(f"s_mul_i32 s60, s64, {CL[nm][3]}"); a(f"s_add_u32 s60, s60, {CL[nm][2]}"); a(f"v_add_u32 v{BA[nm]}, s60, v2")
consumer_ids()
rotbit("s86")
a(f"""s_and_b32 s65, s22, 3
s_lshl_b32 s67, s85, 2
s_add_u32 s67, s67, s65
s_mul_i32 s80, s67, {OTT}
s_mul_i32 s60, s64, {8*OBLK}
s_add_u32 s80, s80, s60
v_mul_u32_u24 v3, 12, v1
v_add_u32 v3, 2048, v3
v_and_b32 v4, 15, v1
v_lshlrev_b32 v5, 3, v4
s_lshl_b32 s62, s67, 7
s_add_u32 s62, s62, {WS_G}
v_sub_u32 v254, 0, v{TOK}
s_add_u32 s82, s80, {4*OBLK}
s_mul_i32 s86, s86, {4*OBLK}
s_add_u32 s80, s80, s86
s_sub_u32 s82, s82, s86
s_add_u32 s81, s80, {2*OBLK}
s_add_u32 s83, s82, {2*OBLK}
s_mov_b32 s28, s18
s_mov_b32 s29, s19
s_mov_b32 s30, 2621440
s_mov_b32 s31, 0x20000
s_mov_b32 s61, 0""")
if HR:
    a("s_setprio 0"); a("s_waitcnt vmcnt(0)"); stamp(a, 38)
else:
    stamp(a, 36)
    a("s_waitcnt lgkmcnt(0)")
    a("s_barrier")
    stamp(a, 37)
    a("s_cmp_lt_u32 s22, 4"); a("s_cbranch_scc1 L_P2_C")
    dma_class("R1"); dma_class("R2")
    a(f"s_setprio {OPT.get('pb', 0)}")
    if OWAIT >= 2: a("s_waitcnt vmcnt(0)"); stamp(a, 38)
    a("s_branch L_P2_GO")
    a("L_P2_C:")
    if OWAIT: a("s_waitcnt vmcnt(0)"); stamp(a, 38)
    a(f"s_setprio {OPT.get('pa', 0)}")
a("L_P2_GO:")
if OWAIT >= 2: a("s_barrier")
if OWAIT >= 3: a(f"s_sleep {OWAIT}")
if STAMP: stamp2(a, 39, 53)
ev(a, "bp")
TB = 216
def og(u, k): return OR_ + (u & 3) * 12 + k * 4
def ld_unit(u):
    m, e = u >> 1, u & 1
    return [f"buffer_load_dwordx4 {vr(og(u, k))}, v2, s[32:35], s{80+m} offen offset:{e*OBLK + k*1024} {OF}" for k in range(2)] + \
           [f"buffer_load_dwordx3 {vr(og(u, 2), 3)}, v3, s[32:35], s{80+m} offen offset:{e*OBLK} {OF}"]
def chk_unit(u):
    d = og(u, 0); f = og(u, 1); c = og(u, 2); x = CK
    return [f"v_add3_u32 v{x}, v{d}, v{d+1}, v{d+2}", f"v_add3_u32 v{x+1}, v{f}, v{f+1}, v{f+2}", f"v_add3_u32 v{x+2}, v{c}, v{c+1}, v{TOK}",
            f"v_add3_u32 v{x}, v{x}, v{d+3}, v{f+3}", f"v_add3_u32 v{x}, v{x}, v{x+1}, v{x+2}", f"v_cmp_ne_u32 vcc, v{x}, v{c+2}"]
def ld_w(i):
    if i < NRK or i >= 20: return []
    o = []
    for T in range(5):
        l = i * 5 + T
        nm = [k for k, v in CL.items() if v[0] <= l < v[0] + v[1]][0]
        o.append(f"ds_read_b128 {vr(lring(l))}, v{BA[nm]} offset:{(l - CL[nm][0]) * 1024}")
    return o
GLD = "buffer_load_dwordx2 v[6:7], v5, s[32:35], s62 offen sc1"
PRE = ["s_lshr_b32 s46, s67, 4", "s_lshl_b32 s46, s46, 8", "s_bfe_u32 s47, s67, 0x10003", "s_add_u32 s46, s46, s47", "s_and_b32 s47, s67, 7",
       "s_lshl_b32 s47, s47, 5", "s_add_u32 s46, s46, s47", "s_mul_i32 s46, s46, 1280", "s_mul_i32 s47, s84, 160", "s_add_u32 s46, s46, s47",
       "s_mul_i32 s60, s65, 5120", f"s_add_u32 s60, s60, {XCH}", f"v_add_u32 v{WR+76}, s60, v2", "v_mul_u32_u24 v4, 2560, v4", f"v_lshrrev_b32 v{WR+79}, 4, v1",
       f"v_lshl_add_u32 v{WR+77}, v{WR+79}, 4, v4", f"v_lshl_add_u32 v{WR+78}, v{WR+79}, 3, v4",
       "s_waitcnt vmcnt(0)", f"v_add3_u32 v{CK}, v6, v7, v254", f"v_cmp_ne_u32 vcc, 0, v{CK}"]
vq = []
def issue(u):
    if u < 8:
        for x in (ld_unit(u)[:2] if "no3" in XP else ld_unit(u)): a(x); vq.append(u)
    if u == 4: a(GLD); vq.append(8)
nxt_u = 0
for _ in range(U0): issue(nxt_u); nxt_u += 1
npre = 0
for u in range(8):
    m, e = u >> 1, u & 1
    last = max(k for k, t in enumerate(vq) if t == u)
    a(f"s_waitcnt vmcnt({len(vq) - 1 - last})")
    while nxt_u <= u + UD: issue(nxt_u); nxt_u += 1
    if u == 0: stamp(a, 33)
    for x in chk_unit(u): a(x)
    if "no3" not in XP: a(f"s_cbranch_vccnz L_RETRY{u}")
    a(f"L_OK{u}:")
    if u == 0: stamp(a, 34)
    tb = TB + 4 * (m & 1)
    a(f"v_mov_b64 v[{tb+2*e}:{tb+2*e+1}], v[{og(u,2)}:{og(u,2)+1}]")
    for ss in ([0, 1] if e == 0 else [2, 3, 4]):
        i = m * 5 + ss
        if i >= ET: continue
        nxt = ld_w(i + 2)
        if i >= NRK: a(f"s_waitcnt lgkmcnt({5 if i < 19 else 0})")
        of = og(u, ss & 1) if ss < 4 else tb
        for T in range(5):
            wf = vr(lring(i * 5 + T)) if i >= NRK else vr(WR + (i * 5 + T) * 4)
            if "nomf" not in XP or i == 0: a(f"{MF} {vr(AC+4*T)}, {wf}, {vr(of)}, {'0' if i == 0 else vr(AC+4*T)}")
            if nxt and "nold" not in XP: a(nxt[T])
            if 10 <= i < 15 and npre < len(PRE) - 3: a(PRE[npre]); npre += 1
            if i == min(18, ET - 1) and T >= 2: a(PRE[len(PRE) - 5 + T])
assert npre == len(PRE) - 3
if STAMP and ET > 19: stamp2(a, 56, 54)
a("s_cbranch_vccnz L_RETRYG")
a("L_OKG:")
a("s_cmp_eq_u32 s64, 0")
a("s_cbranch_scc1 L_EPI_A")
def epi(send, keep, sc):
    RA, O4, O2 = WR + 76, WR + 77, WR + 78
    for T in send:
        for r in (0, 2): a(f"v_pk_mul_f32 v[{AC+4*T+r}:{AC+4*T+r+1}], v[{AC+4*T+r}:{AC+4*T+r+1}], v[{sc}:{sc+1}] op_sel_hi:[1,0]")
    a("s_barrier")
    for T in send: a(f"ds_write_b128 v{RA}, {vr(AC+4*T)} offset:{T*1024}")
    a("s_waitcnt lgkmcnt(0)"); a("s_barrier")
    for n, T in enumerate(keep): a(f"ds_read_b128 {vr(8+4*n)}, v{RA} offset:{T*1024}")
    for n, T in enumerate(keep):
        a(f"s_waitcnt lgkmcnt({len(keep)-1-n})")
        for r in (0, 2): a(f"v_pk_fma_f32 v[{8+4*n+r}:{8+4*n+r+1}], v[{AC+4*T+r}:{AC+4*T+r+1}], v[{sc}:{sc+1}], v[{8+4*n+r}:{8+4*n+r+1}] op_sel_hi:[1,0,1]")
        a(f"v_cvt_pk_bf16_f32 v{OR_+2*n}, v{8+4*n}, v{8+4*n+1}"); a(f"v_cvt_pk_bf16_f32 v{OR_+2*n+1}, v{8+4*n+2}, v{8+4*n+3}")
        if n == 1: a(f"buffer_store_dwordx4 {vr(OR_)}, v{O4}, s[28:31], s46 offen offset:{32*keep[0]} {SF}")
        if n == 2: a(f"buffer_store_dwordx2 {vr(OR_+4,2)}, v{O2}, s[28:31], s46 offen offset:128 {SF}")
if EP:
    RA, O4, O2 = WR + 76, WR + 77, WR + 78
    def last_steps(fill, lg19):
        for i in range(ET, 20):
            a(f"s_waitcnt lgkmcnt({5 if i < 19 else lg19})")
            if i == ET and fill: a("s_barrier")
            of = og(7, 1) if i == 18 else TB + 4
            for T in range(5):
                a(f"{MF} {vr(AC+4*T)}, {vr(lring(i * 5 + T))}, {vr(of)}, {vr(AC+4*T)}")
                k = (i - ET) * 5 + T
                if k < len(fill): a(fill[k])
        if STAMP: stamp2(a, 56, 54)
    rds = [f"ds_read_b128 {vr(72+4*T)}, v{RA} offset:{T*1024}" for T in range(5)]
    scl = ["v_sub_f32 v6, 1.0, v6", "v_cvt_pk_bf16_f32 v6, v6, v6", "v_and_b32 v6, 0xffff0000, v6"]
    if ET == 18: last_steps(rds + scl, 5)
    else:
        a("s_barrier")
        for x in rds + scl: a(x)
    for T in range(5):
        a(f"s_waitcnt lgkmcnt({4-T})")
        for r in (0, 2): a(f"v_pk_fma_f32 v[{72+4*T+r}:{72+4*T+r+1}], v[{AC+4*T+r}:{AC+4*T+r+1}], v[6:7], v[{72+4*T+r}:{72+4*T+r+1}] op_sel_hi:[1,0,1]")
        a(f"v_cvt_pk_bf16_f32 v{OR_+2*T}, v{72+4*T}, v{72+4*T+1}"); a(f"v_cvt_pk_bf16_f32 v{OR_+2*T+1}, v{72+4*T+2}, v{72+4*T+3}")
        if T == 1: a(f"buffer_store_dwordx4 {vr(OR_)}, v{O4}, s[28:31], s46 offen {SF}")
        if T == 3: a(f"buffer_store_dwordx4 {vr(OR_+4)}, v{O4}, s[28:31], s46 offen offset:64 {SF}")
    a(f"buffer_store_dwordx2 {vr(OR_+8,2)}, v{O2}, s[28:31], s46 offen offset:128 {SF}")
    a("s_branch L_FIN")
    a("L_EPI_A:")
    if ET == 18: last_steps([], 0)
    else: a("s_nop 1")
    for T in range(5):
        for r in (0, 2): a(f"v_pk_mul_f32 v[{AC+4*T+r}:{AC+4*T+r+1}], v[{AC+4*T+r}:{AC+4*T+r+1}], v[6:7] op_sel_hi:[1,0]")
        a(f"ds_write_b128 v{RA}, {vr(AC+4*T)} offset:{T*1024}")
    a("s_waitcnt lgkmcnt(0)"); a("s_barrier")
else:
    a("v_sub_f32 v6, 1.0, v6"); a("v_cvt_pk_bf16_f32 v6, v6, v6"); a("v_and_b32 v6, 0xffff0000, v6")
    epi([0, 1], [2, 3, 4], 6)
    a("s_branch L_FIN")
    a("L_EPI_A:")
    a("s_nop 4")
    epi([2, 3, 4], [0, 1], 6)
ev(a, "end")
if SPIN:
    a("""s_mov_b32 s60, 0
    L_SPIN:
    s_memrealtime s[98:99]
    s_waitcnt lgkmcnt(0)
    s_sub_u32 s98, s98, s96
    s_add_u32 s60, s60, 1
    s_cmp_ge_u32 s60, 20000
    s_cbranch_scc1 L_FIN
    s_cmp_lt_u32 s98, 4000
    s_cbranch_scc1 L_SPIN""")
a("L_FIN:")
if STAMP:
    stamp(a, 57)
    a("s_add_u32 s61, s61, 1"); a(f"v_writelane_b32 v{SV}, s61, 61")
    if STAMP == 3:
        a("s_waitcnt lgkmcnt(0)")
        for k_, r_ in LITE.items(): a(f"v_writelane_b32 v{SV}, s{r_}, {k_}")
    a("s_waitcnt vmcnt(0)")
    stamp(a, 62); stamp(a, 63, True)
    a(f"s_lshl_b32 s46, s2, 3"); a(f"s_add_u32 s46, s46, s22"); a("s_lshl_b32 s46, s46, 8"); a(f"s_add_u32 s46, s46, {WS_ST}")
    a(f"v_lshlrev_b32 v2, 2, v1")
    a(f"buffer_store_dword v{SV}, v2, s[32:35], s46 offen")
a("L_END:"); a("s_endpgm")
for u in range(8):
    a(f"L_RETRY{u}:")
    a("s_add_u32 s61, s61, 1"); a(f"s_cmp_ge_u32 s61, {SPIN_MAX}"); a(f"s_cbranch_scc1 L_OK{u}")
    a(f"s_sleep {RSLEEP}")
    for x in ld_unit(u): a(x)
    a("s_waitcnt vmcnt(0)")
    for x in chk_unit(u): a(x)
    a(f"s_cbranch_vccnz L_RETRY{u}"); a(f"s_branch L_OK{u}")
a("L_RETRYG:")
a("s_add_u32 s61, s61, 1"); a(f"s_cmp_ge_u32 s61, {SPIN_MAX}"); a("s_cbranch_scc1 L_OKG")
a(f"s_sleep {RSLEEP}")
a("buffer_load_dwordx2 v[6:7], v5, s[32:35], s62 offen sc1"); a("s_waitcnt vmcnt(0)")
a(f"v_add3_u32 v{CK}, v6, v7, v254"); a(f"v_cmp_ne_u32 vcc, 0, v{CK}")
a("s_cbranch_vccnz L_RETRYG"); a("s_branch L_OKG")

l1, _ = fix(a.L)
for tr in traces:
    _, iss_ = fix(tr, verify=True)
    for x in iss_: print("; TRACE HAZARD", x, file=sys.stderr)
print(f"""; Gated mix of two dilated sliding-window attention blocks, one fused kernel (generated by gen/gen18.py).
; @launch grid=(256,1,1) block=(512,1,1) lds={LDS_TOTAL}
.amdgcn_target "amdgcn-amd-amdhsa--gfx950"
.text
.globl {KN}
.p2align 8
.type {KN},@function""")
print("\n".join(l1))
print("CODE_END:")
if STAMP: print(".fill 2048, 4, 0xBF800000")
print('.section .rodata,"a"')
print(kd(KN, 256, 102, 256))
```

```python
import sys, struct, math
sys.path.insert(0, "gen")
from asmlib import *
NAME = "gated_mix__sliding_local_dilated__sliding_local_dilated__prompt"
KN = NAME + "_kernel"
OPT = dict(a.split("=") for a in sys.argv[1:])
STAMP = int(OPT.get("stamp", 0)); CM = int(OPT.get("cm", 1)); PK = int(OPT.get("pk", 1))
NS1 = int(OPT.get("ns1", 12)); RSLEEP = int(OPT.get("rsleep", 2)); OWAIT = int(OPT.get("owait", 2)); SB = int(OPT.get("sb", 4)); SA = int(OPT.get("sa", 2)); XP = OPT.get("xp", ""); R2 = int(OPT.get("r2", 0)); WNT = "nt " if int(OPT.get("wnt", 0)) else ""; XNT = "nt " if int(OPT.get("xnt", 0)) else ""; SNT = "nt " if int(OPT.get("snt", 0)) else ""; STG = int(OPT.get("stg", 2)); PP = OPT.get("pp", "1101010100").replace("-", ""); ROT = int(OPT.get("rot", 0 if PP else 1)); EP = 1; OSF = OPT.get("osf", "sc1").replace("+", " "); OF = OPT.get("of", "sc1").replace("+", " ").replace("-", ""); KS0 = OPT.get("ks0", "-A555A5555"); KS1 = OPT.get("ks1", "-55A555A55"); ET = int(OPT.get("et", 18)); UD = int(OPT.get("ud", 2)); U0 = int(OPT.get("u0", 2)); HA = int(OPT.get("ha", 1)); LS = int(OPT.get("ls", 1)); AL = int(OPT.get("al", 6)); HR = int(OPT.get("hr", 0)); LP = int(OPT.get("lp", 0)); KP = int(OPT.get("kp", 5)); STL = int(OPT.get("stl", 45)); TOV = 1; LPOS = int(OPT.get("lpos", 2)); COV = int(OPT.get("cov", 0)); SF = OPT.get("sf", "").replace("+", " "); PD = int(OPT.get("pd", 1))
def f2u(x): return struct.unpack("<I", struct.pack("<f", x))[0]
STAGE = 49152; XOFF = 30720
GW_LDS = 147456; TOK_LDS = GW_LDS + 1536; SCR_LDS = 149504; LDS_TOTAL = 163840
XCH = 126976
RED = 98304
OBLK = 2816; OTT = 16 * OBLK
WS_WOT = 0x580000; WS_G = 0x710000; WS_FW = 0x720000; WS_ST = 0x1000000
NEG = f2u(-1e30)
CEXP = f2u(20 ** -0.5 * math.log2(math.e))
LOG2E = f2u(math.log2(math.e))
MF = "v_mfma_f32_16x16x32_bf16"
SPIN_MAX = 1 << 17
SV = 255
LITE = {50: 100, 51: 88, 52: 90, 53: 98}
def stamp(a, idx, real=False):
    if not STAMP: return
    if STAMP == 3 and idx != 63:
        if idx in LITE: a(f"s_memrealtime s[{LITE[idx]}:{LITE[idx]+1}]")
        return
    a(f"{'s_memrealtime' if real else 's_memtime'} s[68:69]"); a("s_waitcnt lgkmcnt(0)"); a(f"v_writelane_b32 v{SV}, s68, {idx}")
SPIN = OPT.get("spin", "")
def ev(a, name):
    if SPIN == name: a("s_memrealtime s[96:97]"); a("s_waitcnt lgkmcnt(0)")
def stamp2(a, idx, ridx):
    stamp(a, idx); stamp(a, ridx, True)
def stamp0(a):
    if STAMP: a(f"v_mov_b32 v{SV}, 0"); a(f"v_writelane_b32 v{SV}, s66, 0"); a(f"v_writelane_b32 v{SV}, s68, 1")

a = Asm()
traces = []
def ids():
    a("""v_and_b32 v1, 63, v0
    s_and_b32 s20, s2, 3
    s_lshl_b32 s20, s20, 2
    s_bfe_u32 s46, s2, 0x20003
    s_add_u32 s20, s20, s46
    s_lshr_b32 s47, s2, 5
    s_and_b32 s21, s2, 4
    s_lshl_b32 s21, s21, 1
    s_add_u32 s21, s21, s47""")
def srd_ws_dbg():
    WSO = int(OPT.get("wso", 0)) << 20
    a(f"""s_add_u32 s32, s78, {WSO}
    s_addc_u32 s33, s79, 0
    s_mov_b32 s34, {0x10000000 - WSO}
    s_mov_b32 s35, 0x20000
    s_mov_b32 s40, s76
    s_mov_b32 s41, s77
    s_mov_b32 s42, 256
    s_mov_b32 s43, 0x20000""")
def consumer_ids():
    if CM:
        a("s_bfe_u32 s84, s2, 0x30003"); a("s_and_b32 s85, s2, 7"); a("s_lshl_b32 s85, s85, 2"); a("s_lshr_b32 s86, s2, 6"); a("s_add_u32 s85, s85, s86")
    else:
        a("s_and_b32 s84, s20, 7"); a("s_lshl_b32 s85, s21, 1"); a("s_lshr_b32 s86, s20, 3"); a("s_add_u32 s85, s85, s86")
def pf_setup(isw_scc_cmp, vdst, vt, soff, sstep, lblx, lble):
    a(f"""s_lshr_b32 s44, s2, 3
    {isw_scc_cmp}
    s_cbranch_scc0 {lblx}
    v_mul_u32_u24 v{vt}, 13108, v1
    v_lshrrev_b32 v{vt}, 16, v{vt}
    v_mul_u32_u24 v{vt}, 640, v{vt}
    v_lshl_add_u32 v{vdst}, v1, 7, v{vt}
    s_mul_i32 {soff}, s44, 15360
    s_and_b32 s45, s2, 1
    s_mul_i32 s45, s45, 640
    s_add_u32 {soff}, {soff}, s45
    s_mov_b32 {sstep}, 491520
    s_cmp_ge_u32 s20, 8
    s_cselect_b32 s88, s12, s6
    s_cselect_b32 s89, s13, s7
    s_mov_b32 s90, 2457600
    s_branch {lble}
    {lblx}:
    v_lshrrev_b32 v{vt}, 1, v1
    v_mul_u32_u24 v{vt}, 1280, v{vt}
    v_and_b32 v{vdst}, 1, v1
    v_lshl_add_u32 v{vdst}, v{vdst}, 7, v{vt}
    s_and_b32 s45, s2, 4
    s_lshl_b32 s45, s45, 3
    s_add_u32 s44, s44, s45
    s_mul_i32 {soff}, s44, 40960
    s_mov_b32 {sstep}, 256
    s_mov_b32 s88, s4
    s_mov_b32 s89, s5
    s_mov_b32 s90, 2621440
    {lble}:
    s_mov_b32 s91, 0x20000""")
def rotbit(dst):
    a(f"s_xor_b32 {dst}, s84, s85"); a(f"s_and_b32 {dst}, {dst}, {R2}")
a(f"{KN}:")
if STAMP: a("s_memrealtime s[66:67]"); a("s_memtime s[68:69]")
a("""v_readfirstlane_b32 s22, v0
s_load_dwordx8 s[4:11], s[0:1], 0
s_load_dwordx8 s[12:19], s[0:1], 32""")
if not STAMP: a("s_lshr_b32 s3, s2, 8"); a("s_cbranch_scc1 L_END")
a("""s_lshr_b32 s22, s22, 6
s_cmp_eq_u32 s22, 3
s_cbranch_scc1 L_HOP
s_cmp_lt_u32 s22, 4
s_cbranch_scc1 L_COMPUTE""")
ECP = int(OPT.get("ecp", 1))
a("v_and_b32 v1, 63, v0"); a("s_lshr_b32 s44, s2, 3")
if ECP:
    a(f"""s_cmp_lg_u32 s22, 6
    s_cbranch_scc1 L_E0
    s_getpc_b64 s[70:71]
    L_PC0:
    s_mul_i32 s45, s44, 6
    v_min_u32 v3, 5, v1
    v_add_lshl_u32 v3, v3, s45, 7""")
    if not STAMP: a("v_min_u32 v3, CODE_END - L_PC0 - 4, v3")
    a("global_load_dword v41, v3, s[70:71]"); a("L_E0:")
a("""v_mul_u32_u24 v3, 13108, v1
v_lshrrev_b32 v3, 16, v3
v_mul_u32_u24 v3, 640, v3
v_lshlrev_b32 v4, 7, v1
v_add_u32 v40, v4, v3
v_lshrrev_b32 v3, 1, v1
v_lshl_add_u32 v42, v3, 10, v4
s_mul_i32 s92, s44, 24
s_and_b32 s45, s2, 1
s_add_u32 s92, s92, s45
s_mulk_i32 s92, 640
s_and_b32 s45, s2, 4
s_lshl_b32 s45, s45, 3
s_add_u32 s44, s44, s45
s_mul_i32 s93, s44, 40960
s_mov_b32 s26, 2457600
s_mov_b32 s30, 2621440
s_mov_b32 s31, 0x20000
s_mov_b32 s27, s31
s_bitcmp1_b32 s2, 1
s_waitcnt lgkmcnt(0)
s_cselect_b64 s[24:25], s[12:13], s[6:7]
s_mov_b64 s[28:29], s[4:5]
""")
if PP[0] == "1":
    a("""s_cmp_lg_u32 s22, 4
s_cbranch_scc1 L_E1
buffer_load_dword v41, v42, s[28:31], s93 offen
L_E1:
s_cmp_lg_u32 s22, 5
s_cbranch_scc1 L_LD0
buffer_load_dword v41, v40, s[24:27], s92 offen
s_branch L_LD0
""")
else:
    a("""s_bfe_u32 s45, s22, 0x10001
    s_bitcmp1_b32 s22, 0
    s_cbranch_scc1 L_E1
    s_lshl_b32 s45, s45, 8
    s_add_u32 s45, s45, s93
    buffer_load_dword v41, v42, s[28:31], s45 offen
    s_branch L_LD0
    L_E1:
    s_mul_i32 s45, s45, 491520
    s_add_u32 s45, s45, s92
    buffer_load_dword v41, v40, s[24:27], s45 offen
    s_branch L_LD0""")
a(""".p2align 8
L_HOP:
s_branch L_COMPUTE
L_LD0:
""")
a(f"s_setprio {OPT.get('pl', 2)}")
GL = int(OPT.get("gl", 1))
if GL:
    a(f"""s_cmp_lg_u32 s22, 7
    s_cbranch_scc1 L_NGW
    s_mov_b32 s36, s16
    s_mov_b32 s37, s17
    s_mov_b32 s38, 1280
    s_mov_b32 s39, 0x20000
    s_mov_b32 m0, {GW_LDS}
    v_lshlrev_b32 v12, 4, v1
    buffer_load_dwordx4 v12, s[36:39], 0 offen lds
    buffer_load_dwordx4 v12, s[36:39], 0 offen offset:1024 lds
    L_NGW:""")
stamp0(a); stamp(a, 3)
ids()
a("""v_lshrrev_b32 v3, 3, v1
v_mul_u32_u24 v3, 2560, v3
v_lshrrev_b32 v4, 4, v0
v_xor_b32 v4, v4, v1
v_xor_b32 v4, 4, v4
v_and_b32 v4, 7, v4
v_lshl_add_u32 v11, v4, 4, v3
s_and_b32 s64, s22, 3
s_lshr_b32 s44, s21, 1
s_or_b32 s45, s44, s64
s_cselect_b32 s52, -20480, 0
s_lshl_b32 s44, s44, 8
s_and_b32 s45, s21, 1
s_add_u32 s44, s44, s45
s_lshl_b32 s45, s64, 4
s_add_u32 s44, s44, s45
s_mul_i32 s47, s44, 1280
s_lshl_b32 s53, s64, 10
v_mul_u32_u24 v3, 6554, v1
v_lshrrev_b32 v3, 16, v3
v_mul_u32_u24 v4, 1120, v3
v_lshl_add_u32 v10, v1, 4, v4
s_and_b32 s46, s20, 7
s_mul_i32 s46, s46, 160
s_mul_i32 s44, s64, 61440
s_add_u32 s46, s46, s44
s_mul_i32 s48, s64, 7680
s_mov_b32 s49, 0
s_mov_b32 s50, 0
s_mov_b32 s87, 0
s_mov_b32 s86, 15""")
stamp(a, 2)
a("s_load_dwordx4 s[76:79], s[0:1], 64")
a("L_LD_ISSUE:")
a(f"s_add_u32 m0, s53, {XOFF + 1024}"); a("s_add_u32 s51, s47, s52"); a(f"buffer_load_dwordx4 v11, s[28:31], s51 offen {XNT}lds")
for qq in range(1, 4):
    a(f"s_add_u32 m0, s53, {XOFF + 1024 + 4096*qq}"); a(f"s_add_u32 s51, s47, {(64*qq-16)*1280}"); a(f"buffer_load_dwordx4 v11, s[28:31], s51 offen {XNT}lds")
a("s_mov_b32 exec_hi, 0x0fffffff")
for qq in range(8):
    if str(qq) in KS0 + KS1:
        a(f"s_cmp_eq_u32 s86, {qq}"); a(f"s_cbranch_scc1 L_HK{qq}"); a(f"L_HR{qq}:")
    r = 2 * qq; k = (r & 0x33) | ((r & 4) << 1) | ((r & 8) >> 1)
    a(f"s_add_u32 m0, s48, {960*qq}"); a(f"s_add_u32 s51, s46, {k*3840}"); a(f"buffer_load_dwordx4 v10, s[24:27], s51 offen {WNT}lds")
a("s_mov_b32 exec_hi, -1")
a("s_cmp_lg_u32 s64, 0"); a("s_cbranch_scc1 L_LD_W")
a(f"s_add_u32 m0, s53, {XOFF + 1024 + 4096*4}"); a(f"s_add_u32 s51, s47, {(64*4-16)*1280}"); a(f"buffer_load_dwordx4 v11, s[28:31], s51 offen {XNT}lds")
a("L_LD_W:")
a(f"""s_mov_b32 s63, {STAGE}
s_add_u32 s46, s46, 245760
s_add_u32 s47, s47, 128
s_add_u32 s49, s49, 1
s_cmp_eq_u32 s49, 3
s_cselect_b32 s51, {(-2*STAGE) & 0xffffffff}, s63
s_cselect_b32 s49, 0, s49
s_add_u32 s48, s48, s51
s_add_u32 s53, s53, s51
s_add_u32 s50, s50, 1""")
def lstamp(base):
    if STAMP == 1: a("s_memtime s[68:69]"); a("s_waitcnt lgkmcnt(0)"); a(f"s_add_u32 m0, s50, {base}"); a(f"v_writelane_b32 v{SV}, s68, m0")
lstamp(9)
a(f"""s_cmp_lt_u32 s50, 2
s_cbranch_scc1 L_LD_PRE0
L_DISP:
s_cmp_eq_u32 s50, s96
s_cbranch_scc1 L_SIDE_A
L_SA_RET:
s_cmp_eq_u32 s50, s97
s_cbranch_scc1 L_TOK_A
s_cmp_eq_u32 s50, s98
s_cbranch_scc1 L_TOK_B
s_cmp_eq_u32 s50, {10 if LP else 9}
s_cbranch_scc1 L_WOF_A
s_cmp_eq_u32 s50, 10
s_cbranch_scc1 L_WOF_B""")
a("L_LD_WAIT:")
a("L_LD_BAR:")
a("L_LD_PRE:")
a("s_bitcmp1_b32 s94, s50"); a("s_cbranch_scc0 L_LD_TOP")
a(f"s_add_u32 s87, s87, {STG}")
PW = int(OPT.get("pw", 6))
if PW < 60: a(f"s_waitcnt vmcnt({PW})")
TT = int(OPT.get("tt", 0))
if TT: a("s_cmp_eq_u32 s64, 3"); a("s_cbranch_scc1 L_PFT")
a("s_cmp_eq_u32 s64, 0"); a("s_cbranch_scc1 L_PFX")
for n in range(STG):
    a("buffer_load_dword v41, v40, s[24:27], s92 offen"); a(f"s_add_u32 s92, s92, {15360 if n < STG-1 else STG*491520 - (STG-1)*15360}")
a("s_branch L_LD_TOP")
a("L_PFX:")
for n in range(STG):
    a("buffer_load_dword v41, v42, s[28:31], s93 offen"); a(f"s_add_u32 s93, s93, {40960 if n < STG-1 else (STG*256 - (STG-1)*40960) & 0xffffffff}")
a("s_branch L_LD_TOP")
if TT:
    a("L_PFT:")
    srd_ws_dbg()
    a(f"s_mov_b32 s34, {WS_WOT}")
    a("""s_mov_b32 s88, s18
    s_mov_b32 s89, s19
    s_mov_b32 s90, 2621440
    s_mov_b32 s91, 0x20000
    s_lshr_b32 s44, s2, 3
    s_lshl_b32 s44, s44, 15
    v_lshlrev_b32 v16, 20, v1
    s_mov_b64 exec, 0xff
    buffer_load_dword v41, v16, s[32:35], s44 offen
    buffer_load_dword v41, v16, s[88:91], s44 offen
    s_mov_b64 exec, -1
    s_mov_b32 s94, 0""")
a("L_LD_TOP:")
a("s_and_b32 s86, s100, 15"); a("s_lshr_b64 s[100:101], s[100:101], 4")
a("s_cmp_lg_u32 s86, 10"); a("s_cbranch_scc1 L_LD_ISSUE")
ES = (1, 2, 3, 6, 9 if int(OPT.get('pt', 0)) else 8)
def hook(nm, base, ret):
    for e_ in ES: a(f"s_cmp_eq_u32 s87, {e_}"); a(f"s_cbranch_scc1 L_H{nm}_{e_}")
    a(f"s_waitcnt vmcnt({base})")
    a(f"L_H{nm}_B:")
    if STAMP == 1: a("s_memtime s[68:69]"); a("s_waitcnt lgkmcnt(0)"); a(f"s_add_u32 m0, s50, 19"); a(f"v_writelane_b32 v{SV}, s68, m0")
    a("s_barrier")
    if STAMP == 1: a("s_memrealtime s[68:69]"); a("s_waitcnt lgkmcnt(0)"); a(f"s_add_u32 m0, s50, 39"); a(f"v_writelane_b32 v{SV}, s68, m0")
    a("s_mov_b32 s87, 0"); a(f"s_branch {ret}")
    for e_ in ES: a(f"L_H{nm}_{e_}:"); a(f"s_waitcnt vmcnt({base + e_})"); a(f"s_branch L_H{nm}_B")
hook("A", 0, "L_LD_ISSUE")
for qq in range(8):
    if str(qq) in KS0 + KS1: a(f"L_HK{qq}:"); hook(str(qq), 4 + qq, f"L_HR{qq}")
a("L_LD_PRE0:")
a("v_lshlrev_b32 v12, 4, v1"); a("v_mov_b32 v13, 0")
pos = [c for c in range(1, 10) if PP[c] != "0"]
if STG > 1: a(f"s_bfe_u32 s45, s2, 0x{(STG.bit_length()-1):x}0003")
else: a("s_mov_b32 s45, 0")
a(f"s_mul_i32 s44, s45, {491520 - 15360}"); a("s_add_u32 s92, s92, s44"); a(f"s_add_u32 s92, s92, {491520*int(PP[0])}")
a(f"s_mul_i32 s44, s45, {40960 - 256}"); a("s_sub_u32 s93, s93, s44"); a(f"s_add_u32 s93, s93, {256*int(PP[0])}")
a("s_mov_b32 s94, 0")
for g_ in range(STG):
    mask = sum(1 << c for k, c in enumerate(pos) if k % STG == g_)
    a(f"s_cmp_eq_u32 s45, {g_}"); a(f"s_cselect_b32 s94, {mask}, s94")
if TT: a("s_cmp_eq_u32 s64, 2")
else: a("s_cmp_ge_u32 s64, 2")
a("s_cselect_b32 s94, 0, s94")
a("s_waitcnt lgkmcnt(0)")
SA0 = int(OPT.get("sa0", SA)); SB0 = int(OPT.get("sb0", SB))
a("s_bitcmp1_b32 s2, 3"); a(f"s_cselect_b32 s96, {SA}, {SA0}"); a(f"s_cselect_b32 s97, {SB}, {SB0}")
a("s_add_u32 s98, s97, 2")
def pk(ks): return sum(int(c, 16) << (4 * i) for i, c in enumerate(ks[1:]))
assert STG == 2 and len(KS0) == 10 and len(KS1) == 10
a(f"s_mov_b32 s100, {pk(KS0) & 0xffffffff}"); a(f"s_mov_b32 s101, {pk(KS0) >> 32}")
a("s_bitcmp1_b32 s2, 3"); a(f"s_cselect_b32 s100, {pk(KS1) & 0xffffffff}, s100"); a(f"s_cselect_b32 s101, {pk(KS1) >> 32}, s101")
a("s_branch L_DISP")
a("L_SIDE_A:")
if int(OPT.get("u2", 1)):
    a("""s_mov_b32 s56, 0
    s_cmp_lt_u32 s64, 2
    s_cbranch_scc1 L_SA_RET
    s_mov_b32 s57, s2
    s_cmp_eq_u32 s64, 2
    s_cbranch_scc1 L_SA_GO
    s_bitcmp""" + ("1" if OPT.get("u2", "1") == "2" else "0") + """_b32 s2, 3
    s_cbranch_scc1 L_SA_RET
    s_lshr_b32 s44, s2, 4
    s_sub_u32 s44, s44, 4
    s_cmp_ge_u32 s44, 8
    s_cbranch_scc1 L_SA_RET
    s_lshl_b32 s44, s44, 3
    s_and_b32 s57, s2, 7
    s_add_u32 s57, s57, s44
    s_add_u32 s57, s57, 256
    L_SA_GO:""")
else:
    a("""s_mov_b32 s56, 0
    s_sub_u32 s44, s64, 2
    s_lshl_b32 s57, s44, 8
    s_add_u32 s57, s57, s2
    s_cmp_ge_u32 s57, 320
    s_cbranch_scc1 L_SA_RET""")
a("""s_mov_b32 s56, 1
s_mov_b32 s39, 0x20000
s_and_b32 s45, s57, 7
s_lshr_b32 s44, s57, 3
s_mul_i32 s58, s44, 52
s_lshr_b32 s58, s58, 8
s_mul_i32 s59, s58, 5
s_sub_u32 s59, s44, s59
s_cmp_ge_u32 s58, 4
s_cselect_b32 s36, s14, s8
s_cselect_b32 s37, s15, s9
s_mov_b32 s38, 819200
s_and_b32 s58, s58, 3
s_mul_i32 s58, s58, 160
s_mul_i32 s60, s59, 40
s_cmp_eq_u32 s59, 4
s_cselect_b32 s60, 16, s60
s_cselect_b32 s54, 80, 20
s_cselect_b32 s55, 20, 4
s_add_u32 s58, s58, s60
s_mul_i32 s58, s58, 1280
s_mul_i32 s60, s45, 160
s_add_u32 s58, s58, s60
s_mul_i32 s54, s54, 1280
s_mul_i32 s55, s55, 1280""")
a(f"s_mul_i32 s62, s64, 5120"); a(f"s_add_u32 s62, s62, {SCR_LDS - 10240}")
a("s_mov_b32 exec_hi, 0xff")
for g in range(4):
    for jh in range(2):
        a(f"s_add_u32 m0, s62, {(16*(g>>1) + 8*jh + 4*(g&1))*160}")
        if jh == 0: a("s_add_u32 s51, s58, s54"); a(f"buffer_load_dwordx4 v10, s[36:39], s58 offen {SNT}lds")
        else: a("s_add_u32 s58, s58, s55"); a(f"buffer_load_dwordx4 v10, s[36:39], s51 offen {SNT}lds")
a("s_mov_b32 exec_hi, -1")
a(f"""s_mul_i32 s61, s45, 204800
s_mul_i32 s58, s44, 5120
s_add_u32 s61, s61, s58
s_add_u32 s61, s61, {WS_WOT}
""")
if int(OPT.get("pt", 0)):
    srd_ws_dbg()
    a("v_lshlrev_b32 v16, 7, v1"); a("s_mov_b32 exec_hi, 0xff")
    a("buffer_load_dword v17, v16, s[32:35], s61 offen"); a("s_mov_b32 exec_hi, -1")
    a("s_mov_b32 s87, 9"); a("s_branch L_LD_BAR")
else: a("s_mov_b32 s87, 8"); a("s_branch L_LD_BAR")
a("L_SIDE_B:")
assert SB >= SA + 2
a("""v_lshrrev_b32 v16, 5, v1
v_lshlrev_b32 v16, 4, v16
v_bfe_u32 v17, v1, 4, 1
v_lshl_add_u32 v16, v17, 2, v16
v_bfe_u32 v17, v1, 2, 2
v_add_u32 v16, v16, v17
v_mul_u32_u24 v16, 160, v16
v_add_u32 v16, s62, v16
v_and_b32 v17, 3, v1
v_lshl_add_u32 v18, v17, 4, v16
v_lshl_add_u32 v19, v17, 3, v16""")
for T in range(5):
    for j in range(2):
        if T < 4: a(f"ds_read_b64_tr_b16 v[{20+4*T+2*j}:{21+4*T+2*j}], v18 offset:{j*1280 + 64*(T>>1) + 8*(T&1)}")
        else: a(f"ds_read_b64_tr_b16 v[{20+4*T+2*j}:{21+4*T+2*j}], v19 offset:{j*1280 + 128}")
a("s_waitcnt lgkmcnt(0)")
for T in range(4): a(f"buffer_store_dwordx4 v[{20+4*T}:{23+4*T}], v12, s[32:35], s61 offen offset:{1024*T} sc1")
a("s_add_u32 s61, s61, 4096")
a(f"buffer_store_dwordx4 v[36:39], v12, s[32:35], s61 offen sc1")
a("s_mov_b32 s87, 6"); a("s_branch L_LD_BAR")
a("L_TOK_A:")
srd_ws_dbg()
a("""v_lshlrev_b32 v12, 4, v1
v_mov_b32 v13, 0
s_mov_b64 exec, 1
buffer_load_dword v15, v13, s[40:43], 0 offen sc1
s_mov_b64 exec, -1
s_cmp_lg_u32 s56, 0
s_cbranch_scc1 L_SIDE_B
s_mov_b32 s87, 1
s_branch L_LD_BAR""")
a("L_TOK_B:")
srd_ws_dbg()
a(f"""s_mov_b32 s60, 0
v_mov_b32 v13, 0
L_TOK_CHK:
v_readlane_b32 s75, v15, 0
s_add_u32 s60, s60, 1
s_cmp_lg_u32 s75, 0
s_cbranch_scc1 L_TOK_OK
s_cmp_ge_u32 s60, {SPIN_MAX}
s_cbranch_scc1 L_TOK_OK
s_sleep 4
s_mov_b64 exec, 1
buffer_load_dword v15, v13, s[40:43], 0 offen sc1
s_mov_b64 exec, -1
s_waitcnt vmcnt(0)
s_branch L_TOK_CHK
L_TOK_OK:
v_mov_b32 v14, {TOK_LDS}
v_mov_b32 v15, s75
ds_write_b32 v14, v15
s_cmp_eq_u32 s56, 0
s_waitcnt lgkmcnt(0)
s_cbranch_scc1 L_LD_WAIT
s_and_b32 s45, s57, 7
s_lshl_b32 s45, s45, 13
s_lshr_b32 s44, s57, 3
s_lshl_b32 s44, s44, 7
s_add_u32 s45, s45, s44
s_add_u32 s45, s45, {WS_FW}
v_lshlrev_b32 v13, 2, v1
s_mov_b32 exec_hi, 0
buffer_store_dword v15, v13, s[32:35], s45 offen sc1
s_mov_b32 exec_hi, -1
s_mov_b32 s87, 1
s_branch L_LD_BAR""")
a("L_WOF_A:")
srd_ws_dbg()
consumer_ids()
a(f"""s_lshl_b32 s59, s84, 13
s_add_u32 s59, s59, {WS_FW}
s_lshr_b32 s44, s64, 1
s_mul_i32 s44, s44, 2560
s_add_u32 s59, s59, s44
v_lshlrev_b32 v13, 7, v1
v_lshlrev_b32 v12, 4, v1
s_mov_b64 exec, 0xfffff
buffer_load_dword v14, v13, s[32:35], s59 offen sc1
s_mov_b64 exec, -1""")
if LP: a("s_waitcnt vmcnt(1)"); a("s_barrier")
else: a("s_mov_b32 s87, 1"); a("s_branch L_LD_BAR")
a("L_WOF_B:")
srd_ws_dbg()
a("""v_lshlrev_b32 v12, 4, v1
v_lshlrev_b32 v13, 7, v1
s_mov_b64 exec, 0xfffff
s_mov_b32 s60, 0""")
a(f"s_waitcnt vmcnt({0 if LP else 12})")
a(f"""L_WO_POLL:
v_cmp_ne_u32 vcc, s75, v14
s_cbranch_vccz L_WO_OK
s_add_u32 s60, s60, 1
s_cmp_ge_u32 s60, {SPIN_MAX}
s_cbranch_scc1 L_WO_OK
s_sleep 4
buffer_load_dword v14, v13, s[32:35], s59 offen sc1
s_waitcnt vmcnt(0)
s_branch L_WO_POLL
L_WO_OK:
s_mov_b64 exec, -1
s_setprio 0""")
stamp(a, 29)
CL = {"S1": (0, 24, 49152, 24576), "S2": (24, 14, 98304, 14336), "S0": (38, 24, 0, 24576), "TOP": (62, 6, 151552, 6144), "TB": (68, 2, 147456, 2048),
      "R1": (70, 24, 49152, 24576), "R2": (94, 6, 98304, 14336)}
a(f"""s_mul_i32 s58, s84, 204800
s_add_u32 s58, s58, {WS_WOT}
s_lshr_b32 s44, s64, 1
s_and_b32 s45, s64, 1
s_lshl_b32 s45, s45, 10
s_mul_i32 s59, s44, 102400
s_add_u32 s59, s59, s58
s_add_u32 s59, s59, s45""")
rotbit("s54"); a("s_mul_i32 s54, s54, 51200"); a("s_sub_u32 s55, s59, s54"); a("s_add_u32 s59, s59, s54")
def dma_class(nm, lo=0, hi=None):
    l0, n, base, delta = CL[nm]
    a(f"s_mul_i32 s53, s44, {delta}"); a("s_add_u32 s53, s53, s45")
    for j in range(lo, n if hi is None else hi, 2):
        a(f"s_add_u32 m0, s53, {base + j*1024}"); a(f"s_add_u32 s51, {'s59' if l0 + j < 50 else 's55'}, {(l0 + j)*1024}")
        a(f"buffer_load_dwordx4 v12, s[32:35], s51 offen sc1 lds")
dma_class("S1", 0, NS1)
if not LP: a(f"s_waitcnt vmcnt({NS1//2})"); a("s_barrier")
dma_class("S1", NS1); dma_class("S2"); dma_class("TOP")
a("s_waitcnt vmcnt(7)")
stamp(a, 30)
a("s_barrier")
dma_class("S0"); dma_class("TB")
TOK = 253
a(f"v_mov_b32 v{TOK}, s75")
a("s_branch L_P2_PRE")
a("L_COMPUTE:")
a("s_load_dwordx4 s[76:79], s[0:1], 64")
ev(a, "start")
a(f"s_setprio {OPT.get('cprio', 3)}")
ids()
a("""s_mov_b32 s39, 0x20000
s_mov_b32 s56, 0
s_cmp_eq_u32 s22, 3
s_cbranch_scc1 L_C_GW
s_cmp_eq_u32 s22, 2
s_cbranch_scc1 L_C_TOK""")
if int(OPT.get("wpe", 0)):
    a("""s_cmp_eq_u32 s22, 1
    s_cselect_b32 s36, s14, s8
    s_cselect_b32 s37, s15, s9
    s_mov_b32 s38, 819200
    v_lshlrev_b32 v140, 7, v1
    v_lshrrev_b32 v141, 1, v1
    v_lshl_add_u32 v140, v141, 10, v140
    s_lshr_b32 s44, s2, 3
    s_mul_i32 s44, s44, 25600
    s_and_b32 s45, s2, 7
    s_mul_i32 s45, s45, 160
    s_add_u32 s44, s44, s45
    s_mov_b32 exec_hi, 0xff
    buffer_load_dword v241, v140, s[36:39], s44 offen
    s_mov_b32 exec_hi, -1""")
a("s_branch L_C_SETUP")
a("L_C_GW:")
if GL: a("v_lshlrev_b32 v140, 4, v1"); a("v_mov_b64 v[144:145], 0")
else:
    a(f"""s_waitcnt lgkmcnt(0)
    s_mov_b32 s36, s16
    s_mov_b32 s37, s17
    s_mov_b32 s38, 1280
    v_lshlrev_b32 v140, 4, v1
    s_mov_b32 m0, {GW_LDS}
    v_mov_b64 v[144:145], 0
    buffer_load_dwordx4 v140, s[36:39], 0 offen lds
    buffer_load_dwordx4 v140, s[36:39], 0 offen offset:1024 lds""")
a(f"""v_mov_b64 v[146:147], 0
ds_write_b128 v140, v[144:147] offset:{XOFF}
v_add_u32 v140, {STAGE}, v140
ds_write_b128 v140, v[144:147] offset:{XOFF}
v_add_u32 v140, {STAGE}, v140
ds_write_b128 v140, v[144:147] offset:{XOFF}
s_branch L_C_SETUP""")
a("L_C_TOK:")
a("""s_cmp_lg_u32 s2, 0
s_cbranch_scc1 L_C_CPF
s_memrealtime s[44:45]
v_mov_b32 v147, 0
s_waitcnt lgkmcnt(0)""")
srd_ws_dbg()
a("""s_or_b32 s44, s44, 1
v_mov_b32 v146, s44
s_mov_b64 exec, 1
buffer_atomic_cmpswap v[146:147], v147, s[40:43], 0 offen sc1
s_mov_b64 exec, -1
L_C_CPF:
s_getpc_b64 s[70:71]
L_PC:
s_sub_u32 s70, s70, L_PC - L_SIDE_B
s_subb_u32 s71, s71, 0
""")
if ECP: pass
elif int(OPT.get("ccp", 1)):
    a(f"""s_lshr_b32 s44, s2, 3
    s_mul_i32 s44, s44, 6
    v_min_u32 v140, 5, v1
    v_add_lshl_u32 v140, v140, s44, 7
    v_min_u32 v140, CODE_END - L_SIDE_B - 4, v140
    global_load_dword v241, v140, s[70:71]""")
else:
    a("""v_lshlrev_b32 v140, 7, v1
v_add_u32 v141, 8192, v140
v_add_u32 v142, 16384, v140
v_min_u32 v140, CODE_END - L_SIDE_B - 4, v140
v_min_u32 v141, CODE_END - L_SIDE_B - 4, v141
v_min_u32 v142, CODE_END - L_SIDE_B - 4, v142
global_load_dword v241, v140, s[70:71]
global_load_dword v241, v141, s[70:71]
global_load_dword v241, v142, s[70:71]""")
a("L_C_SETUP:")
if COV == 2:
    a("s_cmp_eq_u32 s56, 0"); a("s_cbranch_scc1 L_C_S2")
    a("buffer_load_dword v241, v252, s[36:39], s57 offen")
    a("L_C_S2:")
VWA, VWB, VX0, VX1, VGX0, VGX1, VGW = 2, 3, 4, 5, 6, 7, 240
ACCQ, ACCK, ACCV, ACCH = 8, 48, 88, 128
RING, XB, GX = 140, 164, 204
MC, MP, MP0, AM, ONES = 220, 224, 228, 232, 236
def acc(seg, t, T): return (ACCQ, ACCK, ACCV)[seg] + t * 20 + T * 4
a("s_setprio 0")
a(f"""v_lshrrev_b32 v140, 4, v1
v_and_b32 v141, 15, v1
v_lshrrev_b32 v142, 5, v1
v_lshlrev_b32 v142, 4, v142
v_and_b32 v143, 1, v140
v_lshl_add_u32 v142, v143, 2, v142
v_lshrrev_b32 v143, 2, v141
v_add_u32 v142, v142, v143
v_mul_u32_u24 v145, 480, v142
v_and_b32 v143, 3, v141
v_lshl_add_u32 v{VWA}, v143, 3, v145
v_mul_u32_u24 v144, 40, v143
v_add3_u32 v{VWB}, v145, v144, 32
v_lshrrev_b32 v144, 1, v141
v_xor_b32 v144, v144, v140
v_lshlrev_b32 v144, 4, v144
v_lshl_add_u32 v{VX0}, v141, 7, v144
v_xor_b32 v{VX1}, 64, v{VX0}
s_and_b32 s44, s20, 7
s_lshl_b32 s44, s44, 11
v_add_u32 v{VGX0}, s44, v{VX0}
v_add_u32 v{VGX1}, s44, v{VX1}
v_lshlrev_b32 v{VGW}, 4, v140
v_add_u32 v{VGW}, {GW_LDS}, v{VGW}""")
a(f"s_mov_b32 s44, {NEG}")
a(f"v_mov_b32 v146, s44")
a("s_or_b32 s45, s21, s22"); a("s_lshr_b32 s45, s45, 1")
a("v_lshlrev_b32 v145, 2, v140"); a("v_sub_u32 v145, v141, v145")
for r in range(4): a(f"v_subrev_u32 v{150+r}, {r}, v145")
for r in range(4):
    a(f"v_cmp_gt_u32 vcc, 8, v{150+r}"); a(f"v_cmp_gt_i32 s[72:73], -8, v{150+r}")
    a(f"v_mov_b32 v{ONES+r}, 0x3f803f80")
    a(f"v_cndmask_b32 v{MC+r}, v146, 0, vcc"); a(f"v_cndmask_b32 v{MP+r}, v146, 0, s[72:73]")
a("s_cmp_eq_u32 s45, 0"); a("s_cselect_b64 vcc, -1, 0")
for r in range(4): a(f"v_cndmask_b32 v{MP0+r}, v{MP+r}, v146, vcc")
a("s_mov_b32 s44, 0xffff0000")
for h in range(2):
    a(f"v_ashrrev_i32 v154, 31, v{150+2*h}"); a(f"v_ashrrev_i32 v155, 31, v{151+2*h}")
    a(f"v_bfi_b32 v{AM+h}, s44, v155, v154"); a(f"v_not_b32 v{AM+2+h}, v{AM+h}")
a(f"""s_and_b32 s44, s22, 1
s_lshl_b32 s44, s44, 5
s_mov_b64 s[48:49], 0xffff
s_lshl_b64 s[48:49], s[48:49], s44
s_lshl_b64 s[50:51], s[48:49], 16
s_mov_b32 s63, {STAGE}
s_mov_b32 s74, 128
s_mov_b32 s92, {CEXP}
s_mov_b32 s93, {CEXP}
s_lshl_b32 s94, s21, 3
s_and_b32 s95, s22, 2
s_lshl_b32 s95, s95, 1
s_add_u32 s94, s94, s95
s_mul_i32 s94, s94, {OTT}
s_mul_i32 s95, s20, {OBLK}
s_add_u32 s52, s94, s95
s_add_u32 s53, s52, {OTT}
s_add_u32 s54, s53, {OTT}
s_add_u32 s55, s54, {OTT}""")
for r in range(ACCQ, ACCH + 12, 2): a(f"v_mov_b64 v[{r}:{r+1}], 0")
a("s_waitcnt vmcnt(0) lgkmcnt(0)")
stamp0(a)
srd_ws_dbg()
stamp(a, 4)
if COV in (1, 3):
    a("s_cmp_eq_u32 s56, 0"); a("s_cbranch_scc1 L_C_GO")
    if COV == 3: a("s_setprio 3")
    a("buffer_load_dword v241, v252, s[36:39], s57 offen")
a("s_setprio 0")
a("L_C_GO:")
a("""s_mov_b32 s44, 0
s_mov_b32 s45, 0""")
for w in range(1, 4):
    a(f"s_cmp_eq_u32 s22, {w}"); a(f"s_cbranch_scc1 L_W{w}")
def acco(seg, hh, t): return 8 + ((seg * 2 + hh) * 4 + t) * 4
def acc4(seg, tt): return 104 + (seg * 2 + tt) * 4
def kop(t): return 140 + 6 * (3 - t)
def vop(k, t): return 170 + 10 * k + 2 * (t + 1)
def qop(t, hh): return 40 + 8 * t + 4 * hh
Q4R = 200
def cv2(d, s): return [f"v_cvt_pk_bf16_f32 v{d}, v{s}, v{s+1}", f"v_cvt_pk_bf16_f32 v{d+1}, v{s+2}, v{s+3}"]
FR = [(0, 0), (0, 4), (0, 1), (1, 0), (1, 4), (1, 1), (2, 4), (2, 0), (2, 1)]
HALO = [[(1, 0), (1, 1), (2, 0)], [(1, 0), (1, 1), (2, 0)], [(1, 4), (2, 1)], [(2, 4), (2, 1)]]
NS = 18; SB_ = 15
VB1, VB2, VB3, VST, VSH = VWB, VX0, VX1, VGX0, VGX1
def istep(f): return f - 3 if f <= 8 else f - 4
for w in range(4):
    gate = (w == 3); th, hp = w >> 1, w & 1
    q = []
    def rdW(f):
        ks = f // 9; seg, k = FR[f % 9]
        d = RING + (f % 6) * 4
        return [(f"ds_read_b64_tr_b16 v[{d+2*j}:{d+2*j+1}], v{VWA if k < 4 else VWB} offset:{seg*160 + ks*15360 + j*3840 + (40*(2*hp+k) if k < 4 else 0)}", ("W", f)) for j in range(2)]
    def xb(ks, n): return XB + (ks * 5 + n) * 4
    def rdX(ks, late):
        o = []
        for n in ((3, 2, 1, 0) if not late else (4,)):
            tile = 1 + 4 * th + n if n < 4 else 0
            o.append((f"ds_read_b128 {vr(xb(ks, n))}, v{(VX0, VX1)[ks]} offset:{XOFF + tile*2048}", ("X" if not late else "H", ks)))
        if gate and late:
            d = GX + ks * 8
            o.append((f"ds_read_b128 v[{d}:{d+3}], v{(VGX0, VGX1)[ks]} offset:{XOFF + 2048}", ("H", ks)))
            o.append((f"ds_read_b128 v[{d+4}:{d+7}], v{VGW} offset:{ks*64}", ("H", ks)))
        return o
    def wait(b, tags):
        last = max(i for i, t in enumerate(q) if t in tags)
        b(f"s_waitcnt lgkmcnt({min(len(q) - 1 - last, 15)})")
    def mm(f):
        ks = f // 9; seg, k = FR[f % 9]
        wf = vr(RING + (f % 6) * 4); o = []
        def one(dst, xf):
            o.append(f"{MF} {vr(dst)}, {wf}, {xf}, {vr(dst)}" if seg < 2 else f"{MF} {vr(dst)}, {xf}, {wf}, {vr(dst)}")
        if (seg, k) in HALO[w]: one(ACCH + 4 * HALO[w].index((seg, k)), vr(xb(ks, 4)))
        if k < 4:
            for t in (3, 2, 1, 0): one(acco(seg, k, t), vr(xb(ks, t)))
        else:
            for tt in (1, 0): one(acc4(seg, tt), vr(xb(ks, 2*hp + tt)))
        if gate and (seg, k) == (1, 4):
            d = GX + ks * 8
            o.append(f"{MF} {vr(ACCH+8)}, {vr(d+4)}, {vr(d)}, {vr(ACCH+8)}")
        return o
    def weave(b, ms, fs, lastless=True):
        n = len(ms)
        if OPT.get("wv", "1") == "1":
            ds = [t for t in fs if t[1] is not None]; ot = [t for t in fs if t[1] is None]
            per = [[] for _ in range(n)]
            cnt = [0] * n
            for i in range(len(ds)): cnt[i % n] += 1
            it = iter(ds)
            for j in range(n):
                for _ in range(cnt[j]): per[j].append(next(it))
            lo = 0
            for t in ot:
                load = [len(per[j]) + (1 if (lastless and j == n - 1) else 0) for j in range(n)]
                j = min(range(lo, n), key=lambda k: load[k]); lo = j
                per[j].append(t)
            for m_, p_ in zip(ms, per):
                b(m_)
                for t in p_:
                    b(t[0])
                    if t[1] is not None: q.append(t[1])
            return
        k = len(fs)
        cnt = [0] * n
        for i in range(k):
            load = [cnt[j] + (1 if (lastless and j == n - 1) else 0) for j in range(n)]
            cnt[load.index(min(load))] += 1
        it = iter(fs)
        for m_, c_ in zip(ms, cnt):
            b(m_)
            for _ in range(c_):
                t = next(it)
                b(t[0])
                if t[1] is not None: q.append(t[1])
    x0 = rdX(0, False)
    FA = {15: rdW(0), 16: x0, 17: rdW(1) + rdW(2)}
    FB = {s: [] for s in range(SB_)}
    for f in range(3, NS): FB[istep(f)] += rdW(f)
    h0 = rdX(0, True); FB[0] = h0[:1] + FB[0] + h0[1:2]; FB[1] += h0[2:]
    x1 = rdX(1, False); FB[2] += x1[:2]; FB[3] += x1[2:]
    h1 = rdX(1, True); FB[7] += h1[:2]; FB[8] += h1[2:]
    sal = ["s_add_u32 s45, s45, 1", "s_cmp_eq_u32 s45, 3", f"s_cselect_b32 s46, {(-2*STAGE) & 0xffffffff}, s63", "s_cselect_b32 s45, 0, s45"]
    FB[8] += [(t, None) for t in sal[:2]]; FB[9] += [(t, None) for t in sal[2:]]
    FB[11] += [(f"v_add_u32 v{VX0}, s46, v{VX0}", None), (f"v_add_u32 v{VX1}, s46, v{VX1}", None)]
    if gate: FB[12] += [(f"v_add_u32 v{VGW}, s74, v{VGW}", None), (f"v_add_u32 v{VGX0}, s46, v{VGX0}", None), (f"v_add_u32 v{VGX1}, s46, v{VGX1}", None)]
    FB[14] += [(f"v_add_u32 v{VWA}, s46, v{VWA}", None), (f"v_add_u32 v{VWB}, s46, v{VWB}", None), ("s_add_u32 s44, s44, 1", None), ("s_cmp_eq_u32 s44, 10", None)]
    pre = Asm(); pa = Asm(); pb = Asm(); tail = Asm()
    stamp(pre, 5)
    pre("s_barrier")
    if STAMP: stamp2(pre, 6, 50)
    ev(pre, "b0")
    for s in range(SB_, NS):
        for t in FA[s]: pre(t[0])
    q.clear()
    pa("s_barrier")
    for s in range(SB_, NS): weave(pa, mm(s), FA[s], lastless=(s == NS - 1))
    pre(f"s_branch L_LB{w}")
    for s in range(SB_):
        tags = [("W", s)] + ([("X", 0)] if s == 0 else []) + ([("X", 1)] if s == 9 else []) + ([("H", s // 9)] if s % 9 >= 3 else [])
        wait(pb, tags); weave(pb, mm(s), FB[s])
    pb("s_waitcnt lgkmcnt(0)"); pb(f"s_cbranch_scc0 L_LA{w}")
    tl = [f"v_mov_b32 v{TOK}, {TOK_LDS}", f"ds_read_b32 v{TOK}, v{TOK}", f"v_lshlrev_b32 v{VWA}, 3, v1", f"v_add_u32 v{VGW}, {XCH}, v{VWA}"]
    tl += [m_ for s in range(SB_, NS) for m_ in mm(s)]
    def send(r, blk): tl.append(f"ds_write_b64 v{VGW}, v[{r}:{r+1}] offset:{blk*512}")
    tmp = iter(range(204, 220, 2))
    def t4(seg, tt):
        r = next(tmp); tl.extend(cv2(r, acc4(seg, tt))); g_ = 4*th + 2*hp + tt
        send(r, (18 + g_, 1 + g_, 10 + g_)[seg])
    for tt in range(2): t4(0, tt); t4(1, tt)
    for hh in range(2):
        tl.extend(cv2(kop(3) + 4*hh, acco(1, hh, 3)))
        if th == 0: send(kop(3) + 4*hh, 30 + 3*hp + hh)
    if w == 2: r = next(tmp); tl.extend(cv2(r, ACCH)); send(r, 0)
    if w == 3: r = next(tmp); tl.extend(cv2(r, ACCH)); send(r, 9)
    for tt in range(2): t4(2, tt)
    tl.extend(cv2(vop(0, 3), acco(2, 0, 3)))
    if th == 0: send(vop(0, 3), 30 + 3*hp + 2)
    if th == 1: r = next(tmp); tl.extend(cv2(r, ACCH + 4)); send(r, 26 + hp)
    tl.extend(cv2(vop(1, 3), acco(2, 1, 3)))
    if th == 0: send(vop(1, 3), 28 + hp)
    if th == 0: tl += cv2(kop(-1), ACCH) + cv2(kop(-1) + 4, ACCH + 4) + cv2(vop(0, -1), ACCH + 8)
    for hh in range(2): tl.extend(cv2(kop(2) + 4*hh, acco(1, hh, 2)))
    tl += [f"v_add_u32 v{VB1}, {XCH + th*2048}, v{VWA}", f"v_add_u32 v{VB2}, {XCH + (26 + 2*th + hp)*512}, v{VWA}", f"v_add_u32 v{VB3}, {XCH + (30 + 3*hp)*512}, v{VWA}",
           f"v_lshlrev_b32 v{VST}, 4, v1", f"v_add_u32 v{VST}, {hp*1024}, v{VST}", f"v_mul_u32_u24 v{VSH}, 12, v1",
           f"v_lshlrev_b32 v250, 25, v1", f"v_xor_b32 v250, {hp << 30}, v250", f"v_and_b32 v250, 2.0, v250", f"v_or_b32 v{VSH}, v{VSH}, v250"]
    if gate:
        z = ACCH + 8
        tl += f"""v_cvt_pk_bf16_f32 v248, v{z}, v{z}
        v_and_b32 v248, 0xffff0000, v248
        v_mul_f32 v248, {LOG2E ^ 0x80000000}, v248
        v_exp_f32 v248, v248
        v_add_f32 v248, 1.0, v248
        v_rcp_f32 v248, v248
        v_cvt_pk_bf16_f32 v248, v248, v248
        v_and_b32 v248, 0xffff0000, v248
        s_lshl_b32 s46, s21, 3
        s_add_u32 s46, s46, s20
        s_lshl_b32 s46, s46, 7
        s_add_u32 s46, s46, {WS_G}""".replace("        ", "").split("\n")
    o_, t_ = schedule(tl); print(f"; tail {w}: {len(o_)} instrs est {t_}", file=sys.stderr)
    tail("s_setprio 2")
    for l in o_: tail(l)
    if gate:
        tail(f"""s_cmp_ge_u32 s20, 8
        s_cbranch_scc1 L_ATT
        s_waitcnt lgkmcnt(0)
        v_sub_u32 v249, v{TOK}, v248
        s_mov_b64 exec, 0xffff
        buffer_store_dwordx2 v[248:249], v{VWA}, s[32:35], s46 offen sc1
        s_mov_b64 exec, -1""")
    else: tail("s_branch L_ATT")
    if w > 0: a(f"L_W{w}:")
    a.extend(pre); a(f".p2align {AL}"); a(f"L_LA{w}:"); a.extend(pa); a(f"L_LB{w}:"); a.extend(pb); a(f"L_T{w}:"); a.extend(tail)
    traces.append(pre.L + pb.L + pa.L + pb.L)
a("L_ATT:")
if STAMP: stamp2(a, 30, 51)
ev(a, "gemm")
g = Asm()
def cvt(d, s):
    for l in cv2(d, s): g(l)
def flush(name):
    global g
    o, t = schedule(g.L, st_lat=STL); print(f"; sched {name}: {len(o)} instrs, est {t} cycles", file=sys.stderr)
    for l in o: a(l)
    g = Asm()
stamp(a, 31)
a("s_cmp_lt_u32 s22, 2")
a("s_waitcnt lgkmcnt(0)"); a("s_barrier")
stamp(a, 32)
a("s_cbranch_scc1 L_NOPREV")
a(f"ds_read_b64 v[{kop(-1)}:{kop(-1)+1}], v{VB3}"); a(f"ds_read_b64 v[{kop(-1)+4}:{kop(-1)+5}], v{VB3} offset:512"); a(f"ds_read_b64 v[{vop(0,-1)}:{vop(0,-1)+1}], v{VB3} offset:1024")
a("L_NOPREV:")
rds = []
for t in (3, 2, 1, 0):
    rds.append((Q4R + 2*t, VB1, 18 + t)); rds.append((kop(t) + 2, VB1, 1 + t))
rds.append((kop(-1) + 2, VB1, 0))
for r_, b_, k_ in rds: g(f"ds_read_b64 v[{r_}:{r_+1}], v{b_} offset:{k_*512}")
g("@wait")
for t in (3, 2, 1, 0, -1): g(f"ds_read_b64 v[{vop(2,t)}:{vop(2,t)+1}], v{VB1} offset:{(10 + t)*512}")
g(f"ds_read_b64 v[{vop(1,-1)}:{vop(1,-1)+1}], v{VB2}")
g("@wait")
for t in (1, 0):
    for hh in range(2): cvt(kop(t) + 4*hh, acco(1, hh, t))
for t in (3, 2, 1, 0):
    cvt(qop(t, 0), acco(0, 0, t)); cvt(qop(t, 1) + 2, acco(0, 1, t))
    for j in range(2):
        g(f"v_cndmask_b32 v{qop(t,0)+2+j}, 0, v{Q4R+2*t+j}, s[48:49]"); g(f"v_cndmask_b32 v{qop(t,1)+j}, 0, v{Q4R+2*t+j}, s[50:51]")
for t in (2, 1, 0):
    for hh in range(2): cvt(vop(hh, t), acco(2, hh, t))
def dc(t, hh): return acco(0, hh, t)
def dp(t, hh): return acco(2, hh, t)
OPOOL = {3: [64, 68, 140, 112, 116, 120], 2: [56, 60, 144, 124, 128, 132], 1: [48, 52, 148, 136, 208, 212], 0: [40, 44, 152, 156, 160, 164]}
def oo(t, hh, k): return OPOOL[t][k * 2 + hh]
for t in (3, 2, 1, 0):
    for hh in range(2):
        g(f"{MF} {vr(dc(t,hh))}, {vr(kop(t) + 2*hh)}, {vr(qop(t,hh))}, {vr(MC)}")
        g(f"{MF} {vr(dp(t,hh))}, {vr(kop(t-1) + 2*hh)}, {vr(qop(t,hh))}, {vr(MP if t else MP0)}")
for gi, tiles in enumerate(((3, 2), (1, 0))):
    m = 104 + 4 * gi
    units = [(t, hh) for t in tiles for hh in range(2)]
    for h, (t, hh) in enumerate(units):
        d = dc(t, hh)
        for r in range(4): g(f"v_max_f32 v{d+r}, v{d+r}, v{dp(t,hh)+r}")
        g(f"v_max3_f32 v{m+h}, v{d}, v{d+1}, v{d+2}"); g(f"v_max_f32 v{m+h}, v{m+h}, v{d+3}")
    g(f"""v_permlane32_swap_b32 v{m}, v{m+1}
    v_permlane32_swap_b32 v{m+2}, v{m+3}
    v_max_f32 v{m}, v{m}, v{m+1}
    v_max_f32 v{m+2}, v{m+2}, v{m+3}
    v_permlane16_swap_b32 v{m}, v{m+2}
    v_max_f32 v{m}, v{m}, v{m+2}
    v_mul_f32 v{m+2}, s92, v{m}
    v_mul_f32 v{m}, s92, v{m}
    v_permlane16_swap_b32 v{m}, v{m+2}
    v_mov_b32 v{m+1}, v{m}
    v_mov_b32 v{m+3}, v{m+2}
    v_permlane32_swap_b32 v{m}, v{m+1}
    v_permlane32_swap_b32 v{m+2}, v{m+3}""")
    for h, (t, hh) in enumerate(units):
        d = dc(t, hh); p = dp(t, hh)
        mp_ = m + (h & 2); e = h & 1
        for r in (0, 2): g(f"v_pk_fma_f32 v[{d+r}:{d+r+1}], v[{d+r}:{d+r+1}], s[92:93], v[{mp_}:{mp_+1}] op_sel:[0,0,{e}] op_sel_hi:[1,1,{e}] neg_lo:[0,0,1] neg_hi:[0,0,1]")
        for r in range(4): g(f"v_exp_f32 v{d+r}, v{d+r}")
        g(f"v_cvt_pk_bf16_f32 v{d}, v{d}, v{d+1}"); g(f"v_cvt_pk_bf16_f32 v{d+2}, v{d+2}, v{d+3}")
        g(f"v_and_b32 v{p}, v{AM}, v{d}"); g(f"v_and_b32 v{p+1}, v{AM+1}, v{d+2}")
        g(f"v_and_b32 v{p+2}, v{AM+2}, v{d}"); g(f"v_and_b32 v{p+3}, v{AM+3}, v{d+2}")
        g(f"{MF} {vr(oo(t,hh,2))}, {vr(ONES)}, {vr(p)}, 0")
        g(f"{MF} {vr(oo(t,hh,0))}, {vr(vop(hh,t-1))}, {vr(p)}, 0")
        g(f"{MF} {vr(oo(t,hh,1))}, {vr(vop(2,t-1))}, {vr(p)}, 0")
    for t in tiles:
        G = dc(t, 0); T3 = dc(t, 1)
        for hh in range(2):
            o0 = oo(t, hh, 0); rc = oo(t, hh, 2)
            g(f"v_rcp_f32 v{rc}, v{rc}")
            for r in (0, 2): g(f"v_pk_mul_f32 v[{o0+r}:{o0+r+1}], v[{o0+r}:{o0+r+1}], v[{rc}:{rc+1}] op_sel_hi:[1,0]")
            cvt(G + 2*hh, o0)
        g(f"buffer_store_dwordx4 {vr(G)}, v{VST}, s[32:35], s{52+t} offen {OSF}")
        x = oo(t, 0, 1); y = oo(t, 1, 1); rs = oo(t, 0, 2) + 2
        g(f"v_cndmask_b32 v{rs}, v{oo(t,0,2)}, v{oo(t,1,2)}, s[50:51]")
        for r in range(4): g(f"v_cndmask_b32 v{x+r}, v{x+r}, v{y+r}, s[50:51]")
        for r in (0, 2): g(f"v_pk_mul_f32 v[{x+r}:{x+r+1}], v[{x+r}:{x+r+1}], v[{rs}:{rs+1}] op_sel_hi:[1,0]")
        cvt(T3, x)
        g(f"v_add3_u32 v{y}, v{G}, v{G+1}, v{G+2}"); g(f"v_add_u32 v{y+1}, v{y}, v{G+3}"); g(f"v_add_u32 v{y}, v{y}, v{G+3}")
        g(f"v_permlane32_swap_b32 v{y}, v{y+1}")
        g(f"v_add3_u32 v{y}, v{y}, v{y+1}, v{TOK}"); g(f"v_add3_u32 v{T3+2}, v{y}, v{T3}, v{T3+1}")
        g(f"buffer_store_dwordx3 {vr(T3,3)}, v{VSH}, s[32:35], s{52+t} offen offset:2048 {OSF}")
WR = 48
def rd_reg(l): return f"ds_read_b128 {vr(WR+4*l)}, v{248 if l < 24 else 249} offset:{(l % 24)*1024}"
if HR:
    g(f"v_add_u32 v248, {CL['S1'][2]}, v{VX0}"); g(f"v_add_u32 v249, {CL['S2'][2]}, v{VX0}")
    early = [22, 9, 0, 1, 2, 5, 6, 7, 8, 3, 4, 13, 14, 23, 24, 25, 26, 20]
    for l in early + [l for l in (19, 10, 11, 12, 15, 16, 17, 18, 27, 28, 29, 21)]: g(rd_reg(l))
flush("attention")
if STAMP: stamp2(a, 35, 52)
ev(a, "att")
WR = 48
NRK = 6
OR_ = 168
AC = 224
CK = 244
BA = {"S1": 248, "S2": 249, "S0": 250, "TOP": 251, "R1": 248, "R2": 249, "TB": 252}
def lring(l):
    k = (l - 30) % 15
    return 8 + 4 * k
if HR: a("s_branch L_P2_PRE2")
a("L_P2_PRE:")
a("v_lshlrev_b32 v2, 4, v1")
a("s_lshr_b32 s64, s22, 2")
a(f"s_mul_i32 s60, s64, {CL['S1'][3]}"); a(f"s_add_u32 s60, s60, {CL['S1'][2]}"); a(f"v_add_u32 v{BA['S1']}, s60, v2")
a(f"s_mul_i32 s60, s64, {CL['S2'][3]}"); a(f"s_add_u32 s60, s60, {CL['S2'][2]}"); a(f"v_add_u32 v{BA['S2']}, s60, v2")
for l in range(30): a(rd_reg(l))
a("L_P2_PRE2:")
if HR:
    a("s_waitcnt lgkmcnt(0)"); stamp(a, 36); a("s_barrier"); stamp(a, 37)
    a("s_cmp_lt_u32 s22, 4"); a("s_cbranch_scc1 L_P2_C")
    dma_class("R1"); dma_class("R2")
    a("L_P2_C:")
    a("v_lshlrev_b32 v2, 4, v1"); a("s_lshr_b32 s64, s22, 2")
for nm in ("S0", "TOP", "TB"):
    a(f"s_mul_i32 s60, s64, {CL[nm][3]}"); a(f"s_add_u32 s60, s60, {CL[nm][2]}"); a(f"v_add_u32 v{BA[nm]}, s60, v2")
consumer_ids()
rotbit("s86")
a(f"""s_and_b32 s65, s22, 3
s_lshl_b32 s67, s85, 2
s_add_u32 s67, s67, s65
s_mul_i32 s80, s67, {OTT}
s_mul_i32 s60, s64, {8*OBLK}
s_add_u32 s80, s80, s60
v_mul_u32_u24 v3, 12, v1
v_add_u32 v3, 2048, v3
v_and_b32 v4, 15, v1
v_lshlrev_b32 v5, 3, v4
s_lshl_b32 s62, s67, 7
s_add_u32 s62, s62, {WS_G}
v_sub_u32 v254, 0, v{TOK}
s_add_u32 s82, s80, {4*OBLK}
s_mul_i32 s86, s86, {4*OBLK}
s_add_u32 s80, s80, s86
s_sub_u32 s82, s82, s86
s_add_u32 s81, s80, {2*OBLK}
s_add_u32 s83, s82, {2*OBLK}
s_mov_b32 s28, s18
s_mov_b32 s29, s19
s_mov_b32 s30, 2621440
s_mov_b32 s31, 0x20000
s_mov_b32 s61, 0""")
if HR:
    a("s_setprio 0"); a("s_waitcnt vmcnt(0)"); stamp(a, 38)
else:
    stamp(a, 36)
    a("s_waitcnt lgkmcnt(0)")
    a("s_barrier")
    stamp(a, 37)
    a("s_cmp_lt_u32 s22, 4"); a("s_cbranch_scc1 L_P2_C")
    dma_class("R1"); dma_class("R2")
    a(f"s_setprio {OPT.get('pb', 0)}")
    if OWAIT >= 2: a("s_waitcnt vmcnt(0)"); stamp(a, 38)
    a("s_branch L_P2_GO")
    a("L_P2_C:")
    if OWAIT: a("s_waitcnt vmcnt(0)"); stamp(a, 38)
    a(f"s_setprio {OPT.get('pa', 0)}")
a("L_P2_GO:")
if OWAIT >= 2: a("s_barrier")
if OWAIT >= 3: a(f"s_sleep {OWAIT}")
if STAMP: stamp2(a, 39, 53)
ev(a, "bp")
TB = 216
def og(u, k): return OR_ + (u & 3) * 12 + k * 4
def ld_unit(u):
    m, e = u >> 1, u & 1
    return [f"buffer_load_dwordx4 {vr(og(u, k))}, v2, s[32:35], s{80+m} offen offset:{e*OBLK + k*1024} {OF}" for k in range(2)] + \
           [f"buffer_load_dwordx3 {vr(og(u, 2), 3)}, v3, s[32:35], s{80+m} offen offset:{e*OBLK} {OF}"]
def chk_unit(u):
    d = og(u, 0); f = og(u, 1); c = og(u, 2); x = CK
    return [f"v_add3_u32 v{x}, v{d}, v{d+1}, v{d+2}", f"v_add3_u32 v{x+1}, v{f}, v{f+1}, v{f+2}",
            f"v_add_u32 v{x}, v{x}, v{d+3}", f"v_add_u32 v{x+1}, v{x+1}, v{f+3}", f"v_add3_u32 v{x+2}, v{c}, v{c+1}, v{TOK}",
            f"v_permlane32_swap_b32 v{x}, v{x+1}", f"v_add3_u32 v{x}, v{x}, v{x+1}, v{x+2}", f"v_cmp_ne_u32 vcc, v{x}, v{c+2}"]
def ld_w(i):
    if i < NRK or i >= 20: return []
    o = []
    for T in range(5):
        l = i * 5 + T
        nm = [k for k, v in CL.items() if v[0] <= l < v[0] + v[1]][0]
        o.append(f"ds_read_b128 {vr(lring(l))}, v{BA[nm]} offset:{(l - CL[nm][0]) * 1024}")
    return o
GLD = "buffer_load_dwordx2 v[6:7], v5, s[32:35], s62 offen sc1"
PRE = ["s_lshr_b32 s46, s67, 4", "s_lshl_b32 s46, s46, 8", "s_bfe_u32 s47, s67, 0x10003", "s_add_u32 s46, s46, s47", "s_and_b32 s47, s67, 7",
       "s_lshl_b32 s47, s47, 5", "s_add_u32 s46, s46, s47", "s_mul_i32 s46, s46, 1280", "s_mul_i32 s47, s84, 160", "s_add_u32 s46, s46, s47",
       "s_mul_i32 s60, s65, 5120", f"s_add_u32 s60, s60, {XCH}", f"v_add_u32 v{WR+76}, s60, v2", "v_mul_u32_u24 v4, 2560, v4", f"v_lshrrev_b32 v{WR+79}, 4, v1",
       f"v_lshl_add_u32 v{WR+77}, v{WR+79}, 4, v4", f"v_lshl_add_u32 v{WR+78}, v{WR+79}, 3, v4",
       "s_waitcnt vmcnt(0)", f"v_add3_u32 v{CK}, v6, v7, v254", f"v_cmp_ne_u32 vcc, 0, v{CK}"]
vq = []
def issue(u):
    if u < 8:
        for x in (ld_unit(u)[:2] if "no3" in XP else ld_unit(u)): a(x); vq.append(u)
    if u == 4: a(GLD); vq.append(8)
nxt_u = 0
for _ in range(U0): issue(nxt_u); nxt_u += 1
npre = 0
for u in range(8):
    m, e = u >> 1, u & 1
    last = max(k for k, t in enumerate(vq) if t == u)
    a(f"s_waitcnt vmcnt({len(vq) - 1 - last})")
    while nxt_u <= u + UD: issue(nxt_u); nxt_u += 1
    if u == 0: stamp(a, 33)
    for x in chk_unit(u): a(x)
    if "no3" not in XP: a(f"s_cbranch_vccnz L_RETRY{u}")
    a(f"L_OK{u}:")
    if u == 0: stamp(a, 34)
    tb = TB + 4 * (m & 1)
    a(f"v_mov_b64 v[{tb+2*e}:{tb+2*e+1}], v[{og(u,2)}:{og(u,2)+1}]")
    for ss in ([0, 1] if e == 0 else [2, 3, 4]):
        i = m * 5 + ss
        if i >= ET: continue
        nxt = ld_w(i + 2)
        if i >= NRK: a(f"s_waitcnt lgkmcnt({5 if i < 19 else 0})")
        of = og(u, ss & 1) if ss < 4 else tb
        for T in range(5):
            wf = vr(lring(i * 5 + T)) if i >= NRK else vr(WR + (i * 5 + T) * 4)
            if "nomf" not in XP or i == 0: a(f"{MF} {vr(AC+4*T)}, {wf}, {vr(of)}, {'0' if i == 0 else vr(AC+4*T)}")
            if nxt and "nold" not in XP: a(nxt[T])
            if 10 <= i < 15 and npre < len(PRE) - 3: a(PRE[npre]); npre += 1
            if i == min(18, ET - 1) and T >= 2: a(PRE[len(PRE) - 5 + T])
assert npre == len(PRE) - 3
if STAMP and ET > 19: stamp2(a, 56, 54)
a("s_cbranch_vccnz L_RETRYG")
a("L_OKG:")
a("s_cmp_eq_u32 s64, 0")
a("s_cbranch_scc1 L_EPI_A")
def epi(send, keep, sc):
    RA, O4, O2 = WR + 76, WR + 77, WR + 78
    for T in send:
        for r in (0, 2): a(f"v_pk_mul_f32 v[{AC+4*T+r}:{AC+4*T+r+1}], v[{AC+4*T+r}:{AC+4*T+r+1}], v[{sc}:{sc+1}] op_sel_hi:[1,0]")
    a("s_barrier")
    for T in send: a(f"ds_write_b128 v{RA}, {vr(AC+4*T)} offset:{T*1024}")
    a("s_waitcnt lgkmcnt(0)"); a("s_barrier")
    for n, T in enumerate(keep): a(f"ds_read_b128 {vr(8+4*n)}, v{RA} offset:{T*1024}")
    for n, T in enumerate(keep):
        a(f"s_waitcnt lgkmcnt({len(keep)-1-n})")
        for r in (0, 2): a(f"v_pk_fma_f32 v[{8+4*n+r}:{8+4*n+r+1}], v[{AC+4*T+r}:{AC+4*T+r+1}], v[{sc}:{sc+1}], v[{8+4*n+r}:{8+4*n+r+1}] op_sel_hi:[1,0,1]")
        a(f"v_cvt_pk_bf16_f32 v{OR_+2*n}, v{8+4*n}, v{8+4*n+1}"); a(f"v_cvt_pk_bf16_f32 v{OR_+2*n+1}, v{8+4*n+2}, v{8+4*n+3}")
        if n == 1: a(f"buffer_store_dwordx4 {vr(OR_)}, v{O4}, s[28:31], s46 offen offset:{32*keep[0]} {SF}")
        if n == 2: a(f"buffer_store_dwordx2 {vr(OR_+4,2)}, v{O2}, s[28:31], s46 offen offset:128 {SF}")
if EP:
    RA, O4, O2 = WR + 76, WR + 77, WR + 78
    def last_steps(fill, lg19):
        for i in range(ET, 20):
            a(f"s_waitcnt lgkmcnt({5 if i < 19 else lg19})")
            if i == ET and fill: a("s_barrier")
            of = og(7, 1) if i == 18 else TB + 4
            for T in range(5):
                a(f"{MF} {vr(AC+4*T)}, {vr(lring(i * 5 + T))}, {vr(of)}, {vr(AC+4*T)}")
                k = (i - ET) * 5 + T
                if k < len(fill): a(fill[k])
        if STAMP: stamp2(a, 56, 54)
    rds = [f"ds_read_b128 {vr(72+4*T)}, v{RA} offset:{T*1024}" for T in range(5)]
    scl = ["v_sub_f32 v6, 1.0, v6", "v_cvt_pk_bf16_f32 v6, v6, v6", "v_and_b32 v6, 0xffff0000, v6"]
    if ET == 18: last_steps(rds + scl, 5)
    else:
        a("s_barrier")
        for x in rds + scl: a(x)
    for T in range(5):
        a(f"s_waitcnt lgkmcnt({4-T})")
        for r in (0, 2): a(f"v_pk_fma_f32 v[{72+4*T+r}:{72+4*T+r+1}], v[{AC+4*T+r}:{AC+4*T+r+1}], v[6:7], v[{72+4*T+r}:{72+4*T+r+1}] op_sel_hi:[1,0,1]")
        a(f"v_cvt_pk_bf16_f32 v{OR_+2*T}, v{72+4*T}, v{72+4*T+1}"); a(f"v_cvt_pk_bf16_f32 v{OR_+2*T+1}, v{72+4*T+2}, v{72+4*T+3}")
        if T == 1: a(f"buffer_store_dwordx4 {vr(OR_)}, v{O4}, s[28:31], s46 offen {SF}")
        if T == 3: a(f"buffer_store_dwordx4 {vr(OR_+4)}, v{O4}, s[28:31], s46 offen offset:64 {SF}")
    a(f"buffer_store_dwordx2 {vr(OR_+8,2)}, v{O2}, s[28:31], s46 offen offset:128 {SF}")
    a("s_branch L_FIN")
    a("L_EPI_A:")
    if ET == 18: last_steps([], 0)
    else: a("s_nop 1")
    for T in range(5):
        for r in (0, 2): a(f"v_pk_mul_f32 v[{AC+4*T+r}:{AC+4*T+r+1}], v[{AC+4*T+r}:{AC+4*T+r+1}], v[6:7] op_sel_hi:[1,0]")
        a(f"ds_write_b128 v{RA}, {vr(AC+4*T)} offset:{T*1024}")
    a("s_waitcnt lgkmcnt(0)"); a("s_barrier")
else:
    a("v_sub_f32 v6, 1.0, v6"); a("v_cvt_pk_bf16_f32 v6, v6, v6"); a("v_and_b32 v6, 0xffff0000, v6")
    epi([0, 1], [2, 3, 4], 6)
    a("s_branch L_FIN")
    a("L_EPI_A:")
    a("s_nop 4")
    epi([2, 3, 4], [0, 1], 6)
ev(a, "end")
if SPIN:
    a("""s_mov_b32 s60, 0
    L_SPIN:
    s_memrealtime s[98:99]
    s_waitcnt lgkmcnt(0)
    s_sub_u32 s98, s98, s96
    s_add_u32 s60, s60, 1
    s_cmp_ge_u32 s60, 20000
    s_cbranch_scc1 L_FIN
    s_cmp_lt_u32 s98, 4000
    s_cbranch_scc1 L_SPIN""")
a("L_FIN:")
if STAMP:
    stamp(a, 57)
    a("s_add_u32 s61, s61, 1"); a(f"v_writelane_b32 v{SV}, s61, 61")
    if STAMP == 3:
        a("s_waitcnt lgkmcnt(0)")
        for k_, r_ in LITE.items(): a(f"v_writelane_b32 v{SV}, s{r_}, {k_}")
    a("s_waitcnt vmcnt(0)")
    stamp(a, 62); stamp(a, 63, True)
    a(f"s_lshl_b32 s46, s2, 3"); a(f"s_add_u32 s46, s46, s22"); a("s_lshl_b32 s46, s46, 8"); a(f"s_add_u32 s46, s46, {WS_ST}")
    a(f"v_lshlrev_b32 v2, 2, v1")
    a(f"buffer_store_dword v{SV}, v2, s[32:35], s46 offen")
a("L_END:"); a("s_endpgm")
for u in range(8):
    a(f"L_RETRY{u}:")
    a("s_add_u32 s61, s61, 1"); a(f"s_cmp_ge_u32 s61, {SPIN_MAX}"); a(f"s_cbranch_scc1 L_OK{u}")
    a(f"s_sleep {RSLEEP}")
    for x in ld_unit(u): a(x)
    a("s_waitcnt vmcnt(0)")
    for x in chk_unit(u): a(x)
    a(f"s_cbranch_vccnz L_RETRY{u}"); a(f"s_branch L_OK{u}")
a("L_RETRYG:")
a("s_add_u32 s61, s61, 1"); a(f"s_cmp_ge_u32 s61, {SPIN_MAX}"); a("s_cbranch_scc1 L_OKG")
a(f"s_sleep {RSLEEP}")
a("buffer_load_dwordx2 v[6:7], v5, s[32:35], s62 offen sc1"); a("s_waitcnt vmcnt(0)")
a(f"v_add3_u32 v{CK}, v6, v7, v254"); a(f"v_cmp_ne_u32 vcc, 0, v{CK}")
a("s_cbranch_vccnz L_RETRYG"); a("s_branch L_OKG")

l1, _ = fix(a.L)
for tr in traces:
    _, iss_ = fix(tr, verify=True)
    for x in iss_: print("; TRACE HAZARD", x, file=sys.stderr)
print(f"""; gated mix of two dilated sliding-window attention blocks (generated by gen/gen19.py)
; @launch grid=(256,1,1) block=(512,1,1) lds={LDS_TOTAL}
.amdgcn_target "amdgcn-amd-amdhsa--gfx950"
.text
.globl {KN}
.p2align 8
.type {KN},@function""")
print("\n".join(l1))
print("CODE_END:")
if STAMP: print(".fill 2048, 4, 0xBF800000")
print('.section .rodata,"a"')
print(kd(KN, 256, 102, 256))
```

```python
import sys, struct, math
sys.path.insert(0, "gen")
from asmlib import *
NAME = "gated_mix__sliding_local_dilated__sliding_local_dilated__prompt"
KN = NAME + "_kernel"
OPT = dict(a.split("=") for a in sys.argv[1:])
STAMP = int(OPT.get("stamp", 0)); CM = int(OPT.get("cm", 1)); PK = int(OPT.get("pk", 1))
NS1 = int(OPT.get("ns1", 12)); RSLEEP = int(OPT.get("rsleep", 2)); OWAIT = int(OPT.get("owait", 2)); SB = int(OPT.get("sb", 4)); SA = int(OPT.get("sa", 2)); XP = OPT.get("xp", ""); R2 = int(OPT.get("r2", 0)); WNT = "nt " if int(OPT.get("wnt", 0)) else ""; XNT = "nt " if int(OPT.get("xnt", 0)) else ""; SNT = "nt " if int(OPT.get("snt", 0)) else ""; STG = int(OPT.get("stg", 2)); PP = OPT.get("pp", "1101010100").replace("-", ""); ROT = int(OPT.get("rot", 0 if PP else 1)); EP = 1; OSF = OPT.get("osf", "sc1").replace("+", " "); OF = OPT.get("of", "sc1").replace("+", " ").replace("-", ""); KS0 = OPT.get("ks0", "-A555A5555"); KS1 = OPT.get("ks1", "-55A555A55"); ET = int(OPT.get("et", 18)); UD = int(OPT.get("ud", 2)); U0 = int(OPT.get("u0", 2)); HA = int(OPT.get("ha", 1)); LS = int(OPT.get("ls", 1)); AL = int(OPT.get("al", 6)); HR = int(OPT.get("hr", 0)); LP = int(OPT.get("lp", 0)); KP = int(OPT.get("kp", 5)); STL = int(OPT.get("stl", 60)); TOV = 1; LPOS = int(OPT.get("lpos", 2)); COV = int(OPT.get("cov", 0)); SF = OPT.get("sf", "").replace("+", " "); PD = int(OPT.get("pd", 1))
def f2u(x): return struct.unpack("<I", struct.pack("<f", x))[0]
STAGE = 49152; XOFF = 30720
GW_LDS = 147456; TOK_LDS = GW_LDS + 1536; SCR_LDS = 149504; LDS_TOTAL = 163840
XCH = 126976
RED = 98304
OBLK = 2816; OTT = 16 * OBLK
WS_WOT = 0x580000; WS_G = 0x710000; WS_FW = 0x720000; WS_ST = 0x1000000
NEG = f2u(-1e30)
CEXP = f2u(20 ** -0.5 * math.log2(math.e))
LOG2E = f2u(math.log2(math.e))
MF = "v_mfma_f32_16x16x32_bf16"
SPIN_MAX = 1 << 17
SV = 255
LITE = {50: 100, 51: 88, 52: 90, 53: 98}
def stamp(a, idx, real=False):
    if not STAMP: return
    if STAMP == 3 and idx != 63:
        if idx in LITE: a(f"s_memrealtime s[{LITE[idx]}:{LITE[idx]+1}]")
        return
    a(f"{'s_memrealtime' if real else 's_memtime'} s[68:69]"); a("s_waitcnt lgkmcnt(0)"); a(f"v_writelane_b32 v{SV}, s68, {idx}")
SPIN = OPT.get("spin", "")
def ev(a, name):
    if SPIN == name: a("s_memrealtime s[96:97]"); a("s_waitcnt lgkmcnt(0)")
def stamp2(a, idx, ridx):
    stamp(a, idx); stamp(a, ridx, True)
def stamp0(a):
    if STAMP: a(f"v_mov_b32 v{SV}, 0"); a(f"v_writelane_b32 v{SV}, s66, 0"); a(f"v_writelane_b32 v{SV}, s68, 1")

a = Asm()
traces = []
def ids():
    a("""v_and_b32 v1, 63, v0
    s_and_b32 s20, s2, 3
    s_lshl_b32 s20, s20, 2
    s_bfe_u32 s46, s2, 0x20003
    s_add_u32 s20, s20, s46
    s_lshr_b32 s47, s2, 5
    s_and_b32 s21, s2, 4
    s_lshl_b32 s21, s21, 1
    s_add_u32 s21, s21, s47""")
def srd_ws_dbg():
    WSO = int(OPT.get("wso", 0)) << 20
    a(f"""s_add_u32 s32, s78, {WSO}
    s_addc_u32 s33, s79, 0
    s_mov_b32 s34, {0x10000000 - WSO}
    s_mov_b32 s35, 0x20000
    s_mov_b32 s40, s76
    s_mov_b32 s41, s77
    s_mov_b32 s42, 256
    s_mov_b32 s43, 0x20000""")
def consumer_ids():
    if CM:
        a("s_bfe_u32 s84, s2, 0x30003"); a("s_and_b32 s85, s2, 7"); a("s_lshl_b32 s85, s85, 2"); a("s_lshr_b32 s86, s2, 6"); a("s_add_u32 s85, s85, s86")
    else:
        a("s_and_b32 s84, s20, 7"); a("s_lshl_b32 s85, s21, 1"); a("s_lshr_b32 s86, s20, 3"); a("s_add_u32 s85, s85, s86")
def pf_setup(isw_scc_cmp, vdst, vt, soff, sstep, lblx, lble):
    a(f"""s_lshr_b32 s44, s2, 3
    {isw_scc_cmp}
    s_cbranch_scc0 {lblx}
    v_mul_u32_u24 v{vt}, 13108, v1
    v_lshrrev_b32 v{vt}, 16, v{vt}
    v_mul_u32_u24 v{vt}, 640, v{vt}
    v_lshl_add_u32 v{vdst}, v1, 7, v{vt}
    s_mul_i32 {soff}, s44, 15360
    s_and_b32 s45, s2, 1
    s_mul_i32 s45, s45, 640
    s_add_u32 {soff}, {soff}, s45
    s_mov_b32 {sstep}, 491520
    s_cmp_ge_u32 s20, 8
    s_cselect_b32 s88, s12, s6
    s_cselect_b32 s89, s13, s7
    s_mov_b32 s90, 2457600
    s_branch {lble}
    {lblx}:
    v_lshrrev_b32 v{vt}, 1, v1
    v_mul_u32_u24 v{vt}, 1280, v{vt}
    v_and_b32 v{vdst}, 1, v1
    v_lshl_add_u32 v{vdst}, v{vdst}, 7, v{vt}
    s_and_b32 s45, s2, 4
    s_lshl_b32 s45, s45, 3
    s_add_u32 s44, s44, s45
    s_mul_i32 {soff}, s44, 40960
    s_mov_b32 {sstep}, 256
    s_mov_b32 s88, s4
    s_mov_b32 s89, s5
    s_mov_b32 s90, 2621440
    {lble}:
    s_mov_b32 s91, 0x20000""")
def rotbit(dst):
    a(f"s_xor_b32 {dst}, s84, s85"); a(f"s_and_b32 {dst}, {dst}, {R2}")
a(f"{KN}:")
if STAMP: a("s_memrealtime s[66:67]"); a("s_memtime s[68:69]")
a("""v_readfirstlane_b32 s22, v0
s_load_dwordx8 s[4:11], s[0:1], 0
s_load_dwordx8 s[12:19], s[0:1], 32""")
if not STAMP: a("s_lshr_b32 s3, s2, 8"); a("s_cbranch_scc1 L_END")
a("""s_lshr_b32 s22, s22, 6
s_cmp_eq_u32 s22, 3
s_cbranch_scc1 L_HOP
s_cmp_lt_u32 s22, 4
s_cbranch_scc1 L_COMPUTE""")
ECP = int(OPT.get("ecp", 1))
a("v_and_b32 v1, 63, v0"); a("s_lshr_b32 s44, s2, 3")
if ECP:
    a(f"""s_cmp_lg_u32 s22, 6
    s_cbranch_scc1 L_E0
    s_getpc_b64 s[70:71]
    L_PC0:
    s_mul_i32 s45, s44, 6
    v_min_u32 v3, 5, v1
    v_add_lshl_u32 v3, v3, s45, 7""")
    if not STAMP: a("v_min_u32 v3, CODE_END - L_PC0 - 4, v3")
    a("global_load_dword v41, v3, s[70:71]"); a("L_E0:")
a("""v_mul_u32_u24 v3, 13108, v1
v_lshrrev_b32 v3, 16, v3
v_mul_u32_u24 v3, 640, v3
v_lshlrev_b32 v4, 7, v1
v_add_u32 v40, v4, v3
v_lshrrev_b32 v3, 1, v1
v_lshl_add_u32 v42, v3, 10, v4
s_mul_i32 s92, s44, 24
s_and_b32 s45, s2, 1
s_add_u32 s92, s92, s45
s_mulk_i32 s92, 640
s_and_b32 s45, s2, 4
s_lshl_b32 s45, s45, 3
s_add_u32 s44, s44, s45
s_mul_i32 s93, s44, 40960
s_mov_b32 s26, 2457600
s_mov_b32 s30, 2621440
s_mov_b32 s31, 0x20000
s_mov_b32 s27, s31
s_bitcmp1_b32 s2, 1
s_waitcnt lgkmcnt(0)
s_cselect_b64 s[24:25], s[12:13], s[6:7]
s_mov_b64 s[28:29], s[4:5]
""")
if PP[0] == "1":
    a("""s_cmp_lg_u32 s22, 4
s_cbranch_scc1 L_E1
buffer_load_dword v41, v42, s[28:31], s93 offen
L_E1:
s_cmp_lg_u32 s22, 5
s_cbranch_scc1 L_LD0
buffer_load_dword v41, v40, s[24:27], s92 offen
s_branch L_LD0
""")
else:
    a("""s_bfe_u32 s45, s22, 0x10001
    s_bitcmp1_b32 s22, 0
    s_cbranch_scc1 L_E1
    s_lshl_b32 s45, s45, 8
    s_add_u32 s45, s45, s93
    buffer_load_dword v41, v42, s[28:31], s45 offen
    s_branch L_LD0
    L_E1:
    s_mul_i32 s45, s45, 491520
    s_add_u32 s45, s45, s92
    buffer_load_dword v41, v40, s[24:27], s45 offen
    s_branch L_LD0""")
a(""".p2align 8
L_HOP:
s_branch L_COMPUTE
L_LD0:
""")
a(f"s_setprio {OPT.get('pl', 2)}")
GL = int(OPT.get("gl", 1))
if GL:
    a(f"""s_cmp_lg_u32 s22, 7
    s_cbranch_scc1 L_NGW
    s_mov_b32 s36, s16
    s_mov_b32 s37, s17
    s_mov_b32 s38, 1280
    s_mov_b32 s39, 0x20000
    s_mov_b32 m0, {GW_LDS}
    v_lshlrev_b32 v12, 4, v1
    buffer_load_dwordx4 v12, s[36:39], 0 offen lds
    buffer_load_dwordx4 v12, s[36:39], 0 offen offset:1024 lds
    L_NGW:""")
stamp0(a); stamp(a, 3)
ids()
a("""v_lshrrev_b32 v3, 3, v1
v_mul_u32_u24 v3, 2560, v3
v_lshrrev_b32 v4, 4, v0
v_xor_b32 v4, v4, v1
v_xor_b32 v4, 4, v4
v_and_b32 v4, 7, v4
v_lshl_add_u32 v11, v4, 4, v3
s_and_b32 s64, s22, 3
s_lshr_b32 s44, s21, 1
s_or_b32 s45, s44, s64
s_cselect_b32 s52, -20480, 0
s_lshl_b32 s44, s44, 8
s_and_b32 s45, s21, 1
s_add_u32 s44, s44, s45
s_lshl_b32 s45, s64, 4
s_add_u32 s44, s44, s45
s_mul_i32 s47, s44, 1280
s_lshl_b32 s53, s64, 10
v_mul_u32_u24 v3, 6554, v1
v_lshrrev_b32 v3, 16, v3
v_mul_u32_u24 v4, 1120, v3
v_lshl_add_u32 v10, v1, 4, v4
s_and_b32 s46, s20, 7
s_mul_i32 s46, s46, 160
s_mul_i32 s44, s64, 61440
s_add_u32 s46, s46, s44
s_mul_i32 s48, s64, 7680
s_mov_b32 s49, 0
s_mov_b32 s50, 0
s_mov_b32 s87, 0
s_mov_b32 s86, 15""")
stamp(a, 2)
a("s_load_dwordx4 s[76:79], s[0:1], 64")
a("L_LD_ISSUE:")
a(f"s_add_u32 m0, s53, {XOFF + 1024}"); a("s_add_u32 s51, s47, s52"); a(f"buffer_load_dwordx4 v11, s[28:31], s51 offen {XNT}lds")
for qq in range(1, 4):
    a(f"s_add_u32 m0, s53, {XOFF + 1024 + 4096*qq}"); a(f"s_add_u32 s51, s47, {(64*qq-16)*1280}"); a(f"buffer_load_dwordx4 v11, s[28:31], s51 offen {XNT}lds")
a("s_mov_b32 exec_hi, 0x0fffffff")
for qq in range(8):
    if str(qq) in KS0 + KS1:
        a(f"s_cmp_eq_u32 s86, {qq}"); a(f"s_cbranch_scc1 L_HK{qq}"); a(f"L_HR{qq}:")
    r = 2 * qq; k = (r & 0x33) | ((r & 4) << 1) | ((r & 8) >> 1)
    a(f"s_add_u32 m0, s48, {960*qq}"); a(f"s_add_u32 s51, s46, {k*3840}"); a(f"buffer_load_dwordx4 v10, s[24:27], s51 offen {WNT}lds")
a("s_mov_b32 exec_hi, -1")
a("s_cmp_lg_u32 s64, 0"); a("s_cbranch_scc1 L_LD_W")
a(f"s_add_u32 m0, s53, {XOFF + 1024 + 4096*4}"); a(f"s_add_u32 s51, s47, {(64*4-16)*1280}"); a(f"buffer_load_dwordx4 v11, s[28:31], s51 offen {XNT}lds")
a("L_LD_W:")
a(f"""s_mov_b32 s63, {STAGE}
s_add_u32 s46, s46, 245760
s_add_u32 s47, s47, 128
s_add_u32 s49, s49, 1
s_cmp_eq_u32 s49, 3
s_cselect_b32 s51, {(-2*STAGE) & 0xffffffff}, s63
s_cselect_b32 s49, 0, s49
s_add_u32 s48, s48, s51
s_add_u32 s53, s53, s51
s_add_u32 s50, s50, 1""")
def lstamp(base):
    if STAMP == 1: a("s_memtime s[68:69]"); a("s_waitcnt lgkmcnt(0)"); a(f"s_add_u32 m0, s50, {base}"); a(f"v_writelane_b32 v{SV}, s68, m0")
lstamp(9)
a(f"""s_cmp_lt_u32 s50, 2
s_cbranch_scc1 L_LD_PRE0
L_DISP:
s_cmp_eq_u32 s50, s96
s_cbranch_scc1 L_SIDE_A
L_SA_RET:
s_cmp_eq_u32 s50, s97
s_cbranch_scc1 L_TOK_A
s_cmp_eq_u32 s50, s98
s_cbranch_scc1 L_TOK_B
s_cmp_eq_u32 s50, {10 if LP else 9}
s_cbranch_scc1 L_WOF_A
s_cmp_eq_u32 s50, 10
s_cbranch_scc1 L_WOF_B""")
a("L_LD_WAIT:")
a("L_LD_BAR:")
a("L_LD_PRE:")
a("s_bitcmp1_b32 s94, s50"); a("s_cbranch_scc0 L_LD_TOP")
a(f"s_add_u32 s87, s87, {STG}")
PW = int(OPT.get("pw", 6))
if PW < 60: a(f"s_waitcnt vmcnt({PW})")
TT = int(OPT.get("tt", 0))
if TT: a("s_cmp_eq_u32 s64, 3"); a("s_cbranch_scc1 L_PFT")
a("s_cmp_eq_u32 s64, 0"); a("s_cbranch_scc1 L_PFX")
for n in range(STG):
    a("buffer_load_dword v41, v40, s[24:27], s92 offen"); a(f"s_add_u32 s92, s92, {15360 if n < STG-1 else STG*491520 - (STG-1)*15360}")
a("s_branch L_LD_TOP")
a("L_PFX:")
for n in range(STG):
    a("buffer_load_dword v41, v42, s[28:31], s93 offen"); a(f"s_add_u32 s93, s93, {40960 if n < STG-1 else (STG*256 - (STG-1)*40960) & 0xffffffff}")
a("s_branch L_LD_TOP")
if TT:
    a("L_PFT:")
    srd_ws_dbg()
    a(f"s_mov_b32 s34, {WS_WOT}")
    a("""s_mov_b32 s88, s18
    s_mov_b32 s89, s19
    s_mov_b32 s90, 2621440
    s_mov_b32 s91, 0x20000
    s_lshr_b32 s44, s2, 3
    s_lshl_b32 s44, s44, 15
    v_lshlrev_b32 v16, 20, v1
    s_mov_b64 exec, 0xff
    buffer_load_dword v41, v16, s[32:35], s44 offen
    buffer_load_dword v41, v16, s[88:91], s44 offen
    s_mov_b64 exec, -1
    s_mov_b32 s94, 0""")
a("L_LD_TOP:")
a("s_and_b32 s86, s100, 15"); a("s_lshr_b64 s[100:101], s[100:101], 4")
a("s_cmp_lg_u32 s86, 10"); a("s_cbranch_scc1 L_LD_ISSUE")
ES = (1, 2, 3, 6, 9 if int(OPT.get('pt', 0)) else 8)
def hook(nm, base, ret):
    for e_ in ES: a(f"s_cmp_eq_u32 s87, {e_}"); a(f"s_cbranch_scc1 L_H{nm}_{e_}")
    a(f"s_waitcnt vmcnt({base})")
    a(f"L_H{nm}_B:")
    if STAMP == 1: a("s_memtime s[68:69]"); a("s_waitcnt lgkmcnt(0)"); a(f"s_add_u32 m0, s50, 19"); a(f"v_writelane_b32 v{SV}, s68, m0")
    a("s_barrier")
    if STAMP == 1: a("s_memrealtime s[68:69]"); a("s_waitcnt lgkmcnt(0)"); a(f"s_add_u32 m0, s50, 39"); a(f"v_writelane_b32 v{SV}, s68, m0")
    a("s_mov_b32 s87, 0"); a(f"s_branch {ret}")
    for e_ in ES: a(f"L_H{nm}_{e_}:"); a(f"s_waitcnt vmcnt({base + e_})"); a(f"s_branch L_H{nm}_B")
hook("A", 0, "L_LD_ISSUE")
for qq in range(8):
    if str(qq) in KS0 + KS1: a(f"L_HK{qq}:"); hook(str(qq), 4 + qq, f"L_HR{qq}")
a("L_LD_PRE0:")
a("v_lshlrev_b32 v12, 4, v1"); a("v_mov_b32 v13, 0")
pos = [c for c in range(1, 10) if PP[c] != "0"]
if STG > 1: a(f"s_bfe_u32 s45, s2, 0x{(STG.bit_length()-1):x}0003")
else: a("s_mov_b32 s45, 0")
a(f"s_mul_i32 s44, s45, {491520 - 15360}"); a("s_add_u32 s92, s92, s44"); a(f"s_add_u32 s92, s92, {491520*int(PP[0])}")
a(f"s_mul_i32 s44, s45, {40960 - 256}"); a("s_sub_u32 s93, s93, s44"); a(f"s_add_u32 s93, s93, {256*int(PP[0])}")
CB = OPT.get("cb", "")
if CB:
    a("s_lshr_b32 s44, s2, 2"); a("s_xor_b32 s44, s44, s2"); a("s_and_b32 s44, s44, 1"); a("s_lshl_b32 s45, s45, 1"); a("s_add_u32 s45, s45, s44")
    for n_, cs in enumerate(CB.split(".")):
        mask = sum(1 << int(c) for c in cs)
        ks = sum((10 if str(i) in cs else 5) << (4 * (i - 1)) for i in range(1, 10))
        a(f"s_cmp_eq_u32 s45, {n_}"); a(f"s_cselect_b32 s94, {mask}, s94"); a(f"s_cselect_b32 s100, {ks & 0xffffffff}, s100")
    a("s_mov_b32 s101, 5")
else:
    a("s_mov_b32 s94, 0")
    for g_ in range(STG):
        mask = sum(1 << c for k, c in enumerate(pos) if k % STG == g_)
        a(f"s_cmp_eq_u32 s45, {g_}"); a(f"s_cselect_b32 s94, {mask}, s94")
if TT: a("s_cmp_eq_u32 s64, 2")
else: a("s_cmp_ge_u32 s64, 2")
a("s_cselect_b32 s94, 0, s94")
a("s_waitcnt lgkmcnt(0)")
SA0 = int(OPT.get("sa0", SA)); SB0 = int(OPT.get("sb0", SB))
a("s_bitcmp1_b32 s2, 3"); a(f"s_cselect_b32 s96, {SA}, {SA0}"); a(f"s_cselect_b32 s97, {SB}, {SB0}")
a("s_add_u32 s98, s97, 2")
def pk(ks): return sum(int(c, 16) << (4 * i) for i, c in enumerate(ks[1:]))
assert STG == 2 and len(KS0) == 10 and len(KS1) == 10
if not CB:
    a(f"s_mov_b32 s100, {pk(KS0) & 0xffffffff}"); a(f"s_mov_b32 s101, {pk(KS0) >> 32}")
    a("s_bitcmp1_b32 s2, 3"); a(f"s_cselect_b32 s100, {pk(KS1) & 0xffffffff}, s100"); a(f"s_cselect_b32 s101, {pk(KS1) >> 32}, s101")
a("s_branch L_DISP")
a("L_SIDE_A:")
if int(OPT.get("u2", 1)):
    a("""s_mov_b32 s56, 0
    s_cmp_lt_u32 s64, 2
    s_cbranch_scc1 L_SA_RET
    s_mov_b32 s57, s2
    s_cmp_eq_u32 s64, 2
    s_cbranch_scc1 L_SA_GO
    s_bitcmp""" + ("1" if OPT.get("u2", "1") == "2" else "0") + """_b32 s2, 3
    s_cbranch_scc1 L_SA_RET
    s_lshr_b32 s44, s2, 4
    s_sub_u32 s44, s44, 4
    s_cmp_ge_u32 s44, 8
    s_cbranch_scc1 L_SA_RET
    s_lshl_b32 s44, s44, 3
    s_and_b32 s57, s2, 7
    s_add_u32 s57, s57, s44
    s_add_u32 s57, s57, 256
    L_SA_GO:""")
else:
    a("""s_mov_b32 s56, 0
    s_sub_u32 s44, s64, 2
    s_lshl_b32 s57, s44, 8
    s_add_u32 s57, s57, s2
    s_cmp_ge_u32 s57, 320
    s_cbranch_scc1 L_SA_RET""")
a("""s_mov_b32 s56, 1
s_mov_b32 s39, 0x20000
s_and_b32 s45, s57, 7
s_lshr_b32 s44, s57, 3
s_mul_i32 s58, s44, 52
s_lshr_b32 s58, s58, 8
s_mul_i32 s59, s58, 5
s_sub_u32 s59, s44, s59
s_cmp_ge_u32 s58, 4
s_cselect_b32 s36, s14, s8
s_cselect_b32 s37, s15, s9
s_mov_b32 s38, 819200
s_and_b32 s58, s58, 3
s_mul_i32 s58, s58, 160
s_mul_i32 s60, s59, 40
s_cmp_eq_u32 s59, 4
s_cselect_b32 s60, 16, s60
s_cselect_b32 s54, 80, 20
s_cselect_b32 s55, 20, 4
s_add_u32 s58, s58, s60
s_mul_i32 s58, s58, 1280
s_mul_i32 s60, s45, 160
s_add_u32 s58, s58, s60
s_mul_i32 s54, s54, 1280
s_mul_i32 s55, s55, 1280""")
a(f"s_mul_i32 s62, s64, 5120"); a(f"s_add_u32 s62, s62, {SCR_LDS - 10240}")
a("s_mov_b32 exec_hi, 0xff")
for g in range(4):
    for jh in range(2):
        a(f"s_add_u32 m0, s62, {(16*(g>>1) + 8*jh + 4*(g&1))*160}")
        if jh == 0: a("s_add_u32 s51, s58, s54"); a(f"buffer_load_dwordx4 v10, s[36:39], s58 offen {SNT}lds")
        else: a("s_add_u32 s58, s58, s55"); a(f"buffer_load_dwordx4 v10, s[36:39], s51 offen {SNT}lds")
a("s_mov_b32 exec_hi, -1")
a(f"""s_mul_i32 s61, s45, 204800
s_mul_i32 s58, s44, 5120
s_add_u32 s61, s61, s58
s_add_u32 s61, s61, {WS_WOT}
""")
if int(OPT.get("pt", 0)):
    srd_ws_dbg()
    a("v_lshlrev_b32 v16, 7, v1"); a("s_mov_b32 exec_hi, 0xff")
    a("buffer_load_dword v17, v16, s[32:35], s61 offen"); a("s_mov_b32 exec_hi, -1")
    a("s_mov_b32 s87, 9"); a("s_branch L_LD_BAR")
else: a("s_mov_b32 s87, 8"); a("s_branch L_LD_BAR")
a("L_SIDE_B:")
assert SB >= SA + 2
a("""v_lshrrev_b32 v16, 5, v1
v_lshlrev_b32 v16, 4, v16
v_bfe_u32 v17, v1, 4, 1
v_lshl_add_u32 v16, v17, 2, v16
v_bfe_u32 v17, v1, 2, 2
v_add_u32 v16, v16, v17
v_mul_u32_u24 v16, 160, v16
v_add_u32 v16, s62, v16
v_and_b32 v17, 3, v1
v_lshl_add_u32 v18, v17, 4, v16
v_lshl_add_u32 v19, v17, 3, v16""")
for T in range(5):
    for j in range(2):
        if T < 4: a(f"ds_read_b64_tr_b16 v[{20+4*T+2*j}:{21+4*T+2*j}], v18 offset:{j*1280 + 64*(T>>1) + 8*(T&1)}")
        else: a(f"ds_read_b64_tr_b16 v[{20+4*T+2*j}:{21+4*T+2*j}], v19 offset:{j*1280 + 128}")
a("s_waitcnt lgkmcnt(0)")
for T in range(4): a(f"buffer_store_dwordx4 v[{20+4*T}:{23+4*T}], v12, s[32:35], s61 offen offset:{1024*T} sc1")
a("s_add_u32 s61, s61, 4096")
a(f"buffer_store_dwordx4 v[36:39], v12, s[32:35], s61 offen sc1")
a("s_mov_b32 s87, 6"); a("s_branch L_LD_BAR")
a("L_TOK_A:")
srd_ws_dbg()
a("""v_lshlrev_b32 v12, 4, v1
v_mov_b32 v13, 0
s_mov_b64 exec, 1
buffer_load_dword v15, v13, s[40:43], 0 offen sc1
s_mov_b64 exec, -1
s_cmp_lg_u32 s56, 0
s_cbranch_scc1 L_SIDE_B
s_mov_b32 s87, 1
s_branch L_LD_BAR""")
a("L_TOK_B:")
srd_ws_dbg()
a(f"""s_mov_b32 s60, 0
v_mov_b32 v13, 0
L_TOK_CHK:
v_readlane_b32 s75, v15, 0
s_add_u32 s60, s60, 1
s_cmp_lg_u32 s75, 0
s_cbranch_scc1 L_TOK_OK
s_cmp_ge_u32 s60, {SPIN_MAX}
s_cbranch_scc1 L_TOK_OK
s_sleep 4
s_mov_b64 exec, 1
buffer_load_dword v15, v13, s[40:43], 0 offen sc1
s_mov_b64 exec, -1
s_waitcnt vmcnt(0)
s_branch L_TOK_CHK
L_TOK_OK:
v_mov_b32 v14, {TOK_LDS}
v_mov_b32 v15, s75
ds_write_b32 v14, v15
s_cmp_eq_u32 s56, 0
s_waitcnt lgkmcnt(0)
s_cbranch_scc1 L_LD_WAIT
s_and_b32 s45, s57, 7
s_lshl_b32 s45, s45, 13
s_lshr_b32 s44, s57, 3
s_lshl_b32 s44, s44, 7
s_add_u32 s45, s45, s44
s_add_u32 s45, s45, {WS_FW}
v_lshlrev_b32 v13, 2, v1
s_mov_b32 exec_hi, 0
buffer_store_dword v15, v13, s[32:35], s45 offen sc1
s_mov_b32 exec_hi, -1
s_mov_b32 s87, 1
s_branch L_LD_BAR""")
a("L_WOF_A:")
srd_ws_dbg()
consumer_ids()
a(f"""s_lshl_b32 s59, s84, 13
s_add_u32 s59, s59, {WS_FW}
s_lshr_b32 s44, s64, 1
s_mul_i32 s44, s44, 2560
s_add_u32 s59, s59, s44
v_lshlrev_b32 v13, 7, v1
v_lshlrev_b32 v12, 4, v1
s_mov_b64 exec, 0xfffff
buffer_load_dword v14, v13, s[32:35], s59 offen sc1
s_mov_b64 exec, -1""")
if LP: a("s_waitcnt vmcnt(1)"); a("s_barrier")
else: a("s_mov_b32 s87, 1"); a("s_branch L_LD_BAR")
a("L_WOF_B:")
srd_ws_dbg()
a("""v_lshlrev_b32 v12, 4, v1
v_lshlrev_b32 v13, 7, v1
s_mov_b64 exec, 0xfffff
s_mov_b32 s60, 0""")
a(f"s_waitcnt vmcnt({0 if LP else 12})")
a(f"""L_WO_POLL:
v_cmp_ne_u32 vcc, s75, v14
s_cbranch_vccz L_WO_OK
s_add_u32 s60, s60, 1
s_cmp_ge_u32 s60, {SPIN_MAX}
s_cbranch_scc1 L_WO_OK
s_sleep 4
buffer_load_dword v14, v13, s[32:35], s59 offen sc1
s_waitcnt vmcnt(0)
s_branch L_WO_POLL
L_WO_OK:
s_mov_b64 exec, -1
s_setprio 0""")
stamp(a, 29)
CL = {"S1": (0, 24, 49152, 24576), "S2": (24, 14, 98304, 14336), "S0": (38, 24, 0, 24576), "TOP": (62, 6, 151552, 6144), "TB": (68, 2, 147456, 2048),
      "R1": (70, 24, 49152, 24576), "R2": (94, 6, 98304, 14336)}
a(f"""s_mul_i32 s58, s84, 204800
s_add_u32 s58, s58, {WS_WOT}
s_lshr_b32 s44, s64, 1
s_and_b32 s45, s64, 1
s_lshl_b32 s45, s45, 10
s_mul_i32 s59, s44, 102400
s_add_u32 s59, s59, s58
s_add_u32 s59, s59, s45""")
rotbit("s54"); a("s_mul_i32 s54, s54, 51200"); a("s_sub_u32 s55, s59, s54"); a("s_add_u32 s59, s59, s54")
def dma_class(nm, lo=0, hi=None):
    l0, n, base, delta = CL[nm]
    a(f"s_mul_i32 s53, s44, {delta}"); a("s_add_u32 s53, s53, s45")
    for j in range(lo, n if hi is None else hi, 2):
        a(f"s_add_u32 m0, s53, {base + j*1024}"); a(f"s_add_u32 s51, {'s59' if l0 + j < 50 else 's55'}, {(l0 + j)*1024}")
        a(f"buffer_load_dwordx4 v12, s[32:35], s51 offen sc1 lds")
dma_class("S1", 0, NS1)
if not LP: a(f"s_waitcnt vmcnt({NS1//2})"); a("s_barrier")
dma_class("S1", NS1); dma_class("S2"); dma_class("TOP")
a("s_waitcnt vmcnt(7)")
stamp(a, 30)
a("s_barrier")
dma_class("S0"); dma_class("TB")
TOK = 253
a(f"v_mov_b32 v{TOK}, s75")
a("s_branch L_P2_PRE")
a("L_COMPUTE:")
a("s_load_dwordx4 s[76:79], s[0:1], 64")
ev(a, "start")
a(f"s_setprio {OPT.get('cprio', 3)}")
ids()
a("""s_mov_b32 s39, 0x20000
s_mov_b32 s56, 0
s_cmp_eq_u32 s22, 3
s_cbranch_scc1 L_C_GW
s_cmp_eq_u32 s22, 2
s_cbranch_scc1 L_C_TOK""")
if int(OPT.get("wpe", 0)):
    a("""s_cmp_eq_u32 s22, 1
    s_cselect_b32 s36, s14, s8
    s_cselect_b32 s37, s15, s9
    s_mov_b32 s38, 819200
    v_lshlrev_b32 v140, 7, v1
    v_lshrrev_b32 v141, 1, v1
    v_lshl_add_u32 v140, v141, 10, v140
    s_lshr_b32 s44, s2, 3
    s_mul_i32 s44, s44, 25600
    s_and_b32 s45, s2, 7
    s_mul_i32 s45, s45, 160
    s_add_u32 s44, s44, s45
    s_mov_b32 exec_hi, 0xff
    buffer_load_dword v241, v140, s[36:39], s44 offen
    s_mov_b32 exec_hi, -1""")
a("s_branch L_C_SETUP")
a("L_C_GW:")
if GL: a("v_lshlrev_b32 v140, 4, v1"); a("v_mov_b64 v[144:145], 0")
else:
    a(f"""s_waitcnt lgkmcnt(0)
    s_mov_b32 s36, s16
    s_mov_b32 s37, s17
    s_mov_b32 s38, 1280
    v_lshlrev_b32 v140, 4, v1
    s_mov_b32 m0, {GW_LDS}
    v_mov_b64 v[144:145], 0
    buffer_load_dwordx4 v140, s[36:39], 0 offen lds
    buffer_load_dwordx4 v140, s[36:39], 0 offen offset:1024 lds""")
a(f"""v_mov_b64 v[146:147], 0
ds_write_b128 v140, v[144:147] offset:{XOFF}
v_add_u32 v140, {STAGE}, v140
ds_write_b128 v140, v[144:147] offset:{XOFF}
v_add_u32 v140, {STAGE}, v140
ds_write_b128 v140, v[144:147] offset:{XOFF}
s_branch L_C_SETUP""")
a("L_C_TOK:")
a("""s_cmp_lg_u32 s2, 0
s_cbranch_scc1 L_C_CPF
s_memrealtime s[44:45]
v_mov_b32 v147, 0
s_waitcnt lgkmcnt(0)""")
srd_ws_dbg()
a("""s_or_b32 s44, s44, 1
v_mov_b32 v146, s44
s_mov_b64 exec, 1
buffer_atomic_cmpswap v[146:147], v147, s[40:43], 0 offen sc1
s_mov_b64 exec, -1
L_C_CPF:
s_getpc_b64 s[70:71]
L_PC:
s_sub_u32 s70, s70, L_PC - L_SIDE_B
s_subb_u32 s71, s71, 0
""")
if ECP: pass
elif int(OPT.get("ccp", 1)):
    a(f"""s_lshr_b32 s44, s2, 3
    s_mul_i32 s44, s44, 6
    v_min_u32 v140, 5, v1
    v_add_lshl_u32 v140, v140, s44, 7
    v_min_u32 v140, CODE_END - L_SIDE_B - 4, v140
    global_load_dword v241, v140, s[70:71]""")
else:
    a("""v_lshlrev_b32 v140, 7, v1
v_add_u32 v141, 8192, v140
v_add_u32 v142, 16384, v140
v_min_u32 v140, CODE_END - L_SIDE_B - 4, v140
v_min_u32 v141, CODE_END - L_SIDE_B - 4, v141
v_min_u32 v142, CODE_END - L_SIDE_B - 4, v142
global_load_dword v241, v140, s[70:71]
global_load_dword v241, v141, s[70:71]
global_load_dword v241, v142, s[70:71]""")
a("L_C_SETUP:")
if COV == 2:
    a("s_cmp_eq_u32 s56, 0"); a("s_cbranch_scc1 L_C_S2")
    a("buffer_load_dword v241, v252, s[36:39], s57 offen")
    a("L_C_S2:")
VWA, VWB, VX0, VX1, VGX0, VGX1, VGW = 2, 3, 4, 5, 6, 7, 240
ACCQ, ACCK, ACCV, ACCH = 8, 48, 88, 128
RING, XB, GX = 140, 180, 204
MC, MP, MP0, AM, ONES = 220, 224, 228, 232, 236
def acc(seg, t, T): return (ACCQ, ACCK, ACCV)[seg] + t * 20 + T * 4
a("s_setprio 0")
a(f"""v_lshrrev_b32 v140, 4, v1
v_and_b32 v141, 15, v1
v_lshrrev_b32 v142, 5, v1
v_lshlrev_b32 v142, 4, v142
v_and_b32 v143, 1, v140
v_lshl_add_u32 v142, v143, 2, v142
v_lshrrev_b32 v143, 2, v141
v_add_u32 v142, v142, v143
v_mul_u32_u24 v145, 480, v142
v_and_b32 v143, 3, v141
v_lshl_add_u32 v{VWA}, v143, 3, v145
v_mul_u32_u24 v144, 40, v143
v_add3_u32 v{VWB}, v145, v144, 32
v_lshrrev_b32 v144, 1, v141
v_xor_b32 v144, v144, v140
v_lshlrev_b32 v144, 4, v144
v_lshl_add_u32 v{VX0}, v141, 7, v144
v_xor_b32 v{VX1}, 64, v{VX0}
s_and_b32 s44, s20, 7
s_lshl_b32 s44, s44, 11
v_add_u32 v{VGX0}, s44, v{VX0}
v_add_u32 v{VGX1}, s44, v{VX1}
v_lshlrev_b32 v{VGW}, 4, v140
v_add_u32 v{VGW}, {GW_LDS}, v{VGW}""")
a(f"s_mov_b32 s44, {NEG}")
a(f"v_mov_b32 v146, s44")
a("s_lshr_b32 s45, s21, 1"); a("s_or_b32 s45, s45, s22")
a("v_lshlrev_b32 v145, 2, v140"); a("v_sub_u32 v145, v141, v145")
for r in range(4): a(f"v_subrev_u32 v{150+r}, {r}, v145")
for r in range(4):
    a(f"v_cmp_gt_u32 vcc, 8, v{150+r}"); a(f"v_cmp_gt_i32 s[72:73], -8, v{150+r}")
    a(f"v_mov_b32 v{ONES+r}, 0x3f803f80")
    a(f"v_cndmask_b32 v{MC+r}, v146, 0, vcc"); a(f"v_cndmask_b32 v{MP+r}, v146, 0, s[72:73]")
a("s_cmp_eq_u32 s45, 0"); a("s_cselect_b64 vcc, -1, 0")
for r in range(4): a(f"v_cndmask_b32 v{MP0+r}, v{MP+r}, v146, vcc")
a("s_mov_b32 s44, 0xffff0000")
for h in range(2):
    a(f"v_ashrrev_i32 v154, 31, v{150+2*h}"); a(f"v_ashrrev_i32 v155, 31, v{151+2*h}")
    a(f"v_bfi_b32 v{AM+h}, s44, v155, v154"); a(f"v_not_b32 v{AM+2+h}, v{AM+h}")
a(f"""s_mov_b64 s[48:49], 0xffff
s_mov_b32 s50, 0xffff0000
s_mov_b32 s51, 0
s_mov_b32 s52, 0
s_mov_b32 s53, 0xffff
s_mov_b32 s54, 0
s_mov_b32 s55, 0xffff0000
s_mov_b32 s63, {STAGE}
s_mov_b32 s74, 128
s_mov_b32 s92, {CEXP}
s_mov_b32 s93, {CEXP}
s_lshl_b32 s94, s21, 3
s_lshl_b32 s95, s22, 1
s_add_u32 s94, s94, s95
s_mul_i32 s94, s94, {OTT}
s_mul_i32 s95, s20, {OBLK}
s_add_u32 s94, s94, s95
s_add_u32 s95, s94, {OTT}""")
for r in range(ACCQ, ACCH + 12, 2): a(f"v_mov_b64 v[{r}:{r+1}], 0")
a("s_waitcnt vmcnt(0) lgkmcnt(0)")
stamp0(a)
srd_ws_dbg()
stamp(a, 4)
if COV in (1, 3):
    a("s_cmp_eq_u32 s56, 0"); a("s_cbranch_scc1 L_C_GO")
    if COV == 3: a("s_setprio 3")
    a("buffer_load_dword v241, v252, s[36:39], s57 offen")
a("s_setprio 0")
a("L_C_GO:")
a("""s_mov_b32 s44, 0
s_mov_b32 s45, 0""")
for w in range(1, 4):
    a(f"s_cmp_eq_u32 s22, {w}"); a(f"s_cbranch_scc1 L_W{w}")
KOP = {1: 140, 0: 156, -1: 204}
VOP = 172; QOP = {1: 68, 0: 108}
def kop(t, h): return KOP[t] + 4 * h
def vop(T, t): return VOP + 6 * T + 2 * (t + 1)
def qop(t, h): return QOP[t] + 4 * h
def cv2(d, s): return [f"v_cvt_pk_bf16_f32 v{d}, v{s}, v{s+1}", f"v_cvt_pk_bf16_f32 v{d+1}, v{s+2}, v{s+3}"]
HALO = [[(1,0),(1,1),(1,2)], [(1,3),(1,4),(2,0)], [(2,1),(2,2)], [(2,3),(2,4)]] if OPT.get('hal') == '0' else [[(1,0),(1,2),(2,0)], [(1,1),(1,3),(2,1)], [(1,4),(2,2),(2,3)], [(2,4)]]
D = 5
def istep(f): return f - 5 if f <= 14 else (f - 6 if f <= 21 else f - 7)
for w in range(4):
    gate = (w == 3)
    q = []
    def rdW(f):
        ks, seg, T = f // 15, (f % 15) // 5, f % 5
        d = RING + (f % 10) * 4
        if "nods" in XP: return [("s_nop 0", ("W", f))] * 2
        if "ds9" in XP and T in (1, 3):
            if seg < 2 and T == 1: return [(f"ds_read_b128 v[{d}:{d+3}], v{(VX0, VX1)[ks]} offset:{XOFF + 4096}", ("W", f))]
            return []
        return [(f"ds_read_b64_tr_b16 v[{d+2*j}:{d+2*j+1}], v{VWA if T < 4 else VWB} offset:{seg*160 + ks*15360 + j*3840 + (40*T if T < 4 else 0)}", ("W", f)) for j in range(2)]
    def rdX(ks):
        o = []
        for n, tile in enumerate((1 + 2 * w, 2 + 2 * w, 0)):
            d = XB + (ks * 3 + n) * 4
            o.append((f"ds_read_b128 v[{d}:{d+3}], v{(VX0, VX1)[ks]} offset:{XOFF + tile*2048}", ("X", ks)))
        if gate:
            d = GX + ks * 8
            o.append((f"ds_read_b128 v[{d}:{d+3}], v{(VGX0, VGX1)[ks]} offset:{XOFF + 2048}", ("X", ks)))
            o.append((f"ds_read_b128 v[{d+4}:{d+7}], v{VGW} offset:{ks*64}", ("X", ks)))
        return o
    def wait(b, tags):
        if not any(t in tags for t in q): return
        last = max(i for i, t in enumerate(q) if t in tags)
        b(f"s_waitcnt lgkmcnt({min(len(q) - 1 - last, 15)})")
    def mm(f):
        ks, seg, T = f // 15, (f % 15) // 5, f % 5
        wf = vr(RING + (f % 10) * 4); o = []
        def one(dst, xf):
            o.append(f"{MF} {vr(dst)}, {wf}, {xf}, {vr(dst)}" if seg < 2 else f"{MF} {vr(dst)}, {xf}, {wf}, {vr(dst)}")
        one(acc(seg, 0, T), vr(XB + (ks * 3) * 4)); one(acc(seg, 1, T), vr(XB + (ks * 3 + 1) * 4))
        if (seg, T) in HALO[w]: one(ACCH + 4 * HALO[w].index((seg, T)), vr(XB + (ks * 3 + 2) * 4))
        if gate and seg == 0 and T == 2:
            d = GX + ks * 8
            o.append(f"{MF} {vr(ACCH+8)}, {vr(d+4)}, {vr(d)}, {vr(ACCH+8)}")
        return o
    def weave(b, ms, fs, lastless=True):
        n = len(ms)
        if OPT.get("wv", "1") == "1":
            ds = [t for t in fs if t[1] is not None]; ot = [t for t in fs if t[1] is None]
            per = [[] for _ in range(n)]
            cnt = [0] * n
            for i in range(len(ds)): cnt[i % n] += 1
            it = iter(ds)
            for j in range(n):
                for _ in range(cnt[j]): per[j].append(next(it))
            lo = 0
            for t in ot:
                load = [len(per[j]) + (1 if (lastless and j == n - 1) else 0) for j in range(n)]
                j = min(range(lo, n), key=lambda k: load[k]); lo = j
                per[j].append(t)
            for m_, p_ in zip(ms, per):
                b(m_)
                for t in p_:
                    b(t[0])
                    if t[1] is not None: q.append(t[1])
            return
        k = len(fs)
        cnt = [0] * n
        for i in range(k):
            load = [cnt[j] + (1 if (lastless and j == n - 1) else 0) for j in range(n)]
            cnt[load.index(min(load))] += 1
        it = iter(fs)
        for m_, c_ in zip(ms, cnt):
            b(m_)
            for _ in range(c_):
                t = next(it)
                b(t[0])
                if t[1] is not None: q.append(t[1])
    FA = {s: [] for s in range(25, 30)}
    x0 = rdX(0)
    FA[25] = x0[:2] + rdW(0); FA[26] = x0[2:4] + rdW(1); FA[27] = x0[4:] + rdW(2); FA[28] = rdW(3); FA[29] = rdW(4)
    FB = {s: [] for s in range(25)}
    for f in range(D, 30): FB[istep(f)] += rdW(f)
    x1 = rdX(1)
    for i, t in enumerate(x1): FB[2 + i].append(t)
    sal = ["s_add_u32 s45, s45, 1", "s_cmp_eq_u32 s45, 3", f"s_cselect_b32 s46, {(-2*STAGE) & 0xffffffff}, s63", "s_cselect_b32 s45, 0, s45"]
    for i, t in enumerate(sal): FB[10 + i].append((t, None))
    if gate:
        FB[20].append((f"v_add_u32 v{VGW}, s74, v{VGW}", None))
        FB[21].append((f"v_add_u32 v{VGX0}, s46, v{VGX0}", None)); FB[22].append((f"v_add_u32 v{VGX1}, s46, v{VGX1}", None))
    FB[20].append((f"v_add_u32 v{VX0}, s46, v{VX0}", None)) if not gate else FB[14].append((f"v_add_u32 v{VX0}, s46, v{VX0}", None))
    FB[23] += [(f"v_add_u32 v{VX1}, s46, v{VX1}", None), (f"v_add_u32 v{VWA}, s46, v{VWA}", None), (f"v_add_u32 v{VWB}, s46, v{VWB}", None)]
    FB[24] += [("s_add_u32 s44, s44, 1", None), ("s_cmp_eq_u32 s44, 10", None)]
    pre = Asm(); pa = Asm(); pb = Asm(); tail = Asm()
    stamp(pre, 5)
    pre("s_barrier")
    if STAMP: stamp2(pre, 6, 50)
    ev(pre, "b0")
    for s in range(25, 30):
        for t in FA[s]: pre(t[0])
    q.clear()
    if not LS: pa("s_waitcnt lgkmcnt(0)")
    pa("s_barrier")
    for s in range(25, 30): weave(pa, mm(s), FA[s], lastless=(s == 29))
    if LS: pre(f"s_branch L_LB{w}")
    else: pa(f"s_branch L_LB{w}")
    for s in range(25):
        tags = [("W", s)] + ([("X", 0)] if s == 0 else []) + ([("X", 1)] if s == 15 else [])
        wait(pb, tags); weave(pb, mm(s), FB[s])
    if LS: pb("s_waitcnt lgkmcnt(0)"); pb(f"s_cbranch_scc0 L_LA{w}")
    else: pb(f"s_cbranch_scc1 L_T{w}")
    tail(f"v_mov_b32 v{TOK}, {TOK_LDS}")
    tail("s_waitcnt lgkmcnt(0)")
    tail(f"ds_read_b32 v{TOK}, v{TOK}")
    tm = [m_ for s in range(25, 30) for m_ in mm(s)]
    fl = [f"v_lshlrev_b32 v{VWA}, 3, v1", f"v_add_u32 v{VX1}, {XCH}, v{VWA}"]
    if TOV:
        fl += [f"v_add_u32 v{VWB}, {XCH + 5120*w}, v{VWA}", f"v_add_u32 v{VX0}, {XCH + 5120*(w+1)}, v{VWA}"]
        for h in (0, 1, 2, 3, 4):
            d = 140 + 4 * h if h < 4 else 142; sr = acc(1, 1, h)
            fl += [f"v_cvt_pk_bf16_f32 v{d}, v{sr}, v{sr+1}", f"v_cvt_pk_bf16_f32 v{d+1}, v{sr+2}, v{sr+3}"]
            if w < 3: fl.append(f"ds_write_b64 v{VX0}, v[{d}:{d+1}] offset:{h*512}")
        for h in (1, 2, 3):
            d = 142 + 4 * h; sr = acc(1, 1, 4)
            fl += [f"v_cvt_pk_bf16_f32 v{d}, v{sr}, v{sr+1}", f"v_cvt_pk_bf16_f32 v{d+1}, v{sr+2}, v{sr+3}"]
    for n_, m_ in enumerate(tm):
        tail(m_)
        for x in fl[2*n_:2*n_+2]: tail(x)
    for x in fl[2*len(tm):]: tail(x)
    if gate:
        z = ACCH + 8
        tail(f"""v_cvt_pk_bf16_f32 v248, v{z}, v{z}
        v_and_b32 v248, 0xffff0000, v248
        v_mul_f32 v248, {LOG2E ^ 0x80000000}, v248
        v_exp_f32 v248, v248
        s_lshl_b32 s46, s21, 3
        v_add_f32 v248, 1.0, v248
        v_rcp_f32 v248, v248
        s_add_u32 s46, s46, s20
        v_cvt_pk_bf16_f32 v248, v248, v248
        v_and_b32 v248, 0xffff0000, v248
        s_lshl_b32 s46, s46, 7
        s_add_u32 s46, s46, {WS_G}
        s_waitcnt lgkmcnt(0)
        v_sub_u32 v249, v{TOK}, v248""")
    snd = []
    for n, (seg, T) in enumerate(HALO[w]):
        snd.append(cv2(242 + 2*n, ACCH + 4*n) + [f"ds_write_b64 v{VX1}, v[{242+2*n}:{243+2*n}] offset:{((seg-1)*5+T)*512}"])
    for T in range(5):
        snd.append(cv2(vop(T, 1), acc(2, 1, T)) + ([f"ds_write_b64 v{VX0}, v[{vop(T,1)}:{vop(T,1)+1}] offset:{(5+T)*512}"] if w < 3 else []))
    nh = len(HALO[w])
    if w >= 2: snd = snd[nh:] + snd[:nh]
    rest = ["s_setprio 2"] + cv2(250, acc(0, 1, 4))
    for h in range(4): rest += cv2(qop(1, h), acc(0, 1, h))
    for h in range(4):
        for j in range(2): rest.append(f"v_cndmask_b32 v{qop(1,h)+2+j}, 0, v{250+j}, s[{48+2*h}:{49+2*h}]")
    for k_, x in enumerate(snd):
        for l in x + rest[2*k_:2*k_+2]: tail(l)
    for l in rest[2*len(snd):]: tail(l)
    if gate:
        tail(f"""s_cmp_ge_u32 s20, 8
        s_cbranch_scc1 L_ATT
        s_mov_b64 exec, 0xffff
        buffer_store_dwordx2 v[248:249], v{VWA}, s[32:35], s46 offen sc1
        s_mov_b64 exec, -1""")
    else: tail("s_branch L_ATT")
    if w > 0: a(f"L_W{w}:")
    if LS:
        a.extend(pre); a(f".p2align {AL}"); a(f"L_LA{w}:"); a.extend(pa); a(f"L_LB{w}:"); a.extend(pb); a(f"L_T{w}:"); a.extend(tail)
    else:
        a.extend(pre); a(f".p2align {AL}"); a(f"L_LB{w}:"); a.extend(pb); a.extend(pa); a(f"L_T{w}:"); a.extend(tail)
    traces.append(pre.L + pb.L + pa.L + pb.L + fix(tail.L)[0])
a("L_ATT:")
if STAMP: stamp2(a, 30, 51)
ev(a, "gemm")
KOP = {1: 140, 0: 156, -1: 204}
VOP = 172; QOP = {1: 68, 0: 108}
def kop(t, h): return KOP[t] + 4 * h
def vop(T, t): return VOP + 6 * T + 2 * (t + 1)
def qop(t, h): return QOP[t] + 4 * h
g = Asm()
def cvt(d, s): g(f"v_cvt_pk_bf16_f32 v{d}, v{s}, v{s+1}"); g(f"v_cvt_pk_bf16_f32 v{d+1}, v{s+2}, v{s+3}")
def flush(name):
    global g
    o, t = schedule(g.L, st_lat=STL); print(f"; sched {name}: {len(o)} instrs, est {t} cycles", file=sys.stderr)
    for n, l in enumerate(o):
        if OPT.get("astamp") and n and n % 45 == 0: a(f"s_memtime s[{86 + 2*(n//45)}:{87 + 2*(n//45)}]") if n // 45 < 8 else None
        a(l)
    if OPT.get("astamp"):
        a("s_waitcnt lgkmcnt(0)")
        for k in range(1, 8): a(f"v_writelane_b32 v{SV}, s{86+2*k}, {9+k}")
    g = Asm()
stamp(a, 31)
a("s_waitcnt lgkmcnt(0)"); a("s_barrier")
stamp(a, 32)
for h in range(4):
    g(f"ds_read_b64 v[{kop(-1,h)}:{kop(-1,h)+1}], v{VWB} offset:{h*512}")
    g(f"ds_read_b64 v[{kop(-1,h)+2}:{kop(-1,h)+3}], v{VWB} offset:{4*512}")
for T in range(5): g(f"ds_read_b64 v[{vop(T,-1)}:{vop(T,-1)+1}], v{VWB} offset:{(5+T)*512}")
g("@wait")
g(f"v_lshlrev_b32 v{VX0}, 4, v1"); g(f"v_mul_u32_u24 v{VWA}, 12, v1")
for h in range(4): cvt(kop(0, h), acc(1, 0, h)); cvt(kop(0, h) + 2, acc(1, 0, 4))
for T in range(5): cvt(vop(T, 0), acc(2, 0, T))
cvt(246, acc(0, 0, 4))
for h in range(4): cvt(qop(0, h), acc(0, 0, h))
for h in range(4):
    for j in range(2): g(f"v_cndmask_b32 v{qop(0,h)+2+j}, 0, v{246+j}, s[{48+2*h}:{49+2*h}]")
SR = {1: [28, 32, 36, 40, 44, 48, 52, 56], 0: [8, 12, 16, 20, 24, 88, 92, 96]}
def dc(t, h): return SR[t][h]
def dp(t, h): return SR[t][4 + h]
MX = {1: 84, 0: 124}; TMP = {1: 128, 0: 132}
OREG = {1: [68, 72, 76, 80, 140, 144, 148, 152, 60, 64, 100, 104], 0: [108, 112, 116, 120, 156, 160, 164, 168, 204, 208, 212, 216]}
def oo(t, h, k): return OREG[t][k * 4 + h]
for t in (1, 0):
    for h in range(4):
        g(f"{MF} {vr(dc(t,h))}, {vr(kop(t,h))}, {vr(qop(t,h))}, {vr(MC)}")
        g(f"{MF} {vr(dp(t,h))}, {vr(kop(t-1,h))}, {vr(qop(t,h))}, {vr(MP if t else MP0)}")
for t in (1, 0):
    for h in range(4):
        for r in range(4): g(f"v_max_f32 v{dc(t,h)+r}, v{dc(t,h)+r}, v{dp(t,h)+r}")
        g(f"v_max3_f32 v{MX[t]+h}, v{dc(t,h)}, v{dc(t,h)+1}, v{dc(t,h)+2}")
        g(f"v_max_f32 v{MX[t]+h}, v{MX[t]+h}, v{dc(t,h)+3}")
    m = MX[t]
    g(f"""v_permlane32_swap_b32 v{m}, v{m+1}
    v_permlane32_swap_b32 v{m+2}, v{m+3}
    v_max_f32 v{m}, v{m}, v{m+1}
    v_max_f32 v{m+2}, v{m+2}, v{m+3}
    v_permlane16_swap_b32 v{m}, v{m+2}
    v_max_f32 v{m}, v{m}, v{m+2}
    v_mul_f32 v{m+2}, s92, v{m}
    v_mul_f32 v{m}, s92, v{m}
    v_permlane16_swap_b32 v{m}, v{m+2}
    v_mov_b32 v{m+1}, v{m}
    v_mov_b32 v{m+3}, v{m+2}
    v_permlane32_swap_b32 v{m}, v{m+1}
    v_permlane32_swap_b32 v{m+2}, v{m+3}""")
    for h in range(4):
        d = dc(t, h); p = dp(t, h)
        if PK:
            mp_ = m + (h & 2); e = h & 1
            for r in (0, 2): g(f"v_pk_fma_f32 v[{d+r}:{d+r+1}], v[{d+r}:{d+r+1}], s[92:93], v[{mp_}:{mp_+1}] op_sel:[0,0,{e}] op_sel_hi:[1,1,{e}] neg_lo:[0,0,1] neg_hi:[0,0,1]")
        else:
            for r in range(4): g(f"v_fma_f32 v{d+r}, v{d+r}, s92, -v{m+h}")
        for r in range(4): g(f"v_exp_f32 v{d+r}, v{d+r}")
        g(f"v_cvt_pk_bf16_f32 v{d}, v{d}, v{d+1}"); g(f"v_cvt_pk_bf16_f32 v{d+2}, v{d+2}, v{d+3}")
        g(f"v_and_b32 v{p}, v{AM}, v{d}"); g(f"v_and_b32 v{p+1}, v{AM+1}, v{d+2}")
        g(f"v_and_b32 v{p+2}, v{AM+2}, v{d}"); g(f"v_and_b32 v{p+3}, v{AM+3}, v{d+2}")
    for h in range(4):
        g(f"{MF} {vr(oo(t,h,2))}, {vr(ONES)}, {vr(dp(t,h))}, 0")
        g(f"{MF} {vr(oo(t,h,0))}, {vr(vop(h,t-1))}, {vr(dp(t,h))}, 0")
        g(f"{MF} {vr(oo(t,h,1))}, {vr(vop(4,t-1))}, {vr(dp(t,h))}, 0")
    for h in range(4):
        o0 = oo(t, h, 0); rc = oo(t, h, 2)
        g(f"v_rcp_f32 v{rc}, v{rc}")
        if PK:
            for r in (0, 2): g(f"v_pk_mul_f32 v[{o0+r}:{o0+r+1}], v[{o0+r}:{o0+r+1}], v[{rc}:{rc+1}] op_sel_hi:[1,0]")
        else:
            for r in range(4): g(f"v_mul_f32 v{o0+r}, v{o0+r}, v{rc}")
        for r in range(4): g(f"v_mul_f32_dpp v{TMP[t]+r}, v{oo(t,h,1)+r}, v{rc} quad_perm:[0,1,2,3] row_mask:{hex(1<<h)} bank_mask:0xf")
        cvt(dc(t, h >> 1) + 2 * (h & 1), o0)
    cvt(dc(t, 2), TMP[t])
    so = "s95" if t else "s94"
    c = dc(t, 2)
    for p in range(2):
        g(f"buffer_store_dwordx4 {vr(dc(t, p))}, v{VX0}, s[32:35], {so} offen offset:{1024*p} {OSF}")
    d = dc(t, 0); e = dc(t, 1)
    g(f"v_add3_u32 v{c+2}, v{d}, v{d+1}, v{d+2}"); g(f"v_add3_u32 v{c+3}, v{e}, v{e+1}, v{e+2}")
    g(f"v_add3_u32 v{c+2}, v{c+2}, v{d+3}, v{e+3}"); g(f"v_add3_u32 v{c+2}, v{c+2}, v{c+3}, v{TOK}")
    g(f"v_add3_u32 v{c+2}, v{c+2}, v{c}, v{c+1}")
    g(f"buffer_store_dwordx3 {vr(c,3)}, v{VWA}, s[32:35], {so} offen offset:2048 {OSF}")
WR = 48
def rd_reg(l): return f"ds_read_b128 {vr(WR+4*l)}, v{248 if l < 24 else 249} offset:{(l % 24)*1024}"
if HR:
    g(f"v_add_u32 v248, {CL['S1'][2]}, v{VX0}"); g(f"v_add_u32 v249, {CL['S2'][2]}, v{VX0}")
    early = [22, 9, 0, 1, 2, 5, 6, 7, 8, 3, 4, 13, 14, 23, 24, 25, 26, 20]
    for l in early + [l for l in (19, 10, 11, 12, 15, 16, 17, 18, 27, 28, 29, 21)]: g(rd_reg(l))
flush("attention")
if STAMP: stamp2(a, 35, 52)
ev(a, "att")
WR = 48
NRK = 6
OR_ = 168
AC = 224
CK = 244
BA = {"S1": 248, "S2": 249, "S0": 250, "TOP": 251, "R1": 248, "R2": 249, "TB": 252}
def lring(l):
    k = (l - 30) % 15
    return 8 + 4 * k
if HR: a("s_branch L_P2_PRE2")
a("L_P2_PRE:")
a("v_lshlrev_b32 v2, 4, v1")
a("s_lshr_b32 s64, s22, 2")
a(f"s_mul_i32 s60, s64, {CL['S1'][3]}"); a(f"s_add_u32 s60, s60, {CL['S1'][2]}"); a(f"v_add_u32 v{BA['S1']}, s60, v2")
a(f"s_mul_i32 s60, s64, {CL['S2'][3]}"); a(f"s_add_u32 s60, s60, {CL['S2'][2]}"); a(f"v_add_u32 v{BA['S2']}, s60, v2")
for l in range(30): a(rd_reg(l))
a("L_P2_PRE2:")
if HR:
    a("s_waitcnt lgkmcnt(0)"); stamp(a, 36); a("s_barrier"); stamp(a, 37)
    a("s_cmp_lt_u32 s22, 4"); a("s_cbranch_scc1 L_P2_C")
    dma_class("R1"); dma_class("R2")
    a("L_P2_C:")
    a("v_lshlrev_b32 v2, 4, v1"); a("s_lshr_b32 s64, s22, 2")
for nm in ("S0", "TOP", "TB"):
    a(f"s_mul_i32 s60, s64, {CL[nm][3]}"); a(f"s_add_u32 s60, s60, {CL[nm][2]}"); a(f"v_add_u32 v{BA[nm]}, s60, v2")
consumer_ids()
rotbit("s86")
a(f"""s_and_b32 s65, s22, 3
s_lshl_b32 s67, s85, 2
s_add_u32 s67, s67, s65
s_mul_i32 s80, s67, {OTT}
s_mul_i32 s60, s64, {8*OBLK}
s_add_u32 s80, s80, s60
v_mul_u32_u24 v3, 12, v1
v_add_u32 v3, 2048, v3
v_and_b32 v4, 15, v1
v_lshlrev_b32 v5, 3, v4
s_lshl_b32 s62, s67, 7
s_add_u32 s62, s62, {WS_G}
v_sub_u32 v254, 0, v{TOK}
s_add_u32 s82, s80, {4*OBLK}
s_mul_i32 s86, s86, {4*OBLK}
s_add_u32 s80, s80, s86
s_sub_u32 s82, s82, s86
s_add_u32 s81, s80, {2*OBLK}
s_add_u32 s83, s82, {2*OBLK}
s_mov_b32 s28, s18
s_mov_b32 s29, s19
s_mov_b32 s30, 2621440
s_mov_b32 s31, 0x20000
s_mov_b32 s61, 0""")
if HR:
    a("s_setprio 0"); a("s_waitcnt vmcnt(0)"); stamp(a, 38)
else:
    stamp(a, 36)
    a("s_waitcnt lgkmcnt(0)")
    a("s_barrier")
    stamp(a, 37)
    a("s_cmp_lt_u32 s22, 4"); a("s_cbranch_scc1 L_P2_C")
    dma_class("R1"); dma_class("R2")
    a(f"s_setprio {OPT.get('pb', 0)}")
    if OWAIT >= 2: a("s_waitcnt vmcnt(0)"); stamp(a, 38)
    a("s_branch L_P2_GO")
    a("L_P2_C:")
    if OWAIT: a("s_waitcnt vmcnt(0)"); stamp(a, 38)
    a(f"s_setprio {OPT.get('pa', 0)}")
a("L_P2_GO:")
if OWAIT >= 2: a("s_barrier")
if OWAIT >= 3: a(f"s_sleep {OWAIT}")
if STAMP: stamp2(a, 39, 53)
ev(a, "bp")
TB = 216
def og(u, k): return OR_ + (u & 3) * 12 + k * 4
def ld_unit(u):
    m, e = u >> 1, u & 1
    return [f"buffer_load_dwordx4 {vr(og(u, k))}, v2, s[32:35], s{80+m} offen offset:{e*OBLK + k*1024} {OF}" for k in range(2)] + \
           [f"buffer_load_dwordx3 {vr(og(u, 2), 3)}, v3, s[32:35], s{80+m} offen offset:{e*OBLK} {OF}"]
def chk_unit(u):
    d = og(u, 0); f = og(u, 1); c = og(u, 2); x = CK
    return [f"v_add3_u32 v{x}, v{d}, v{d+1}, v{d+2}", f"v_add3_u32 v{x+1}, v{f}, v{f+1}, v{f+2}", f"v_add3_u32 v{x+2}, v{c}, v{c+1}, v{TOK}",
            f"v_add3_u32 v{x}, v{x}, v{d+3}, v{f+3}", f"v_add3_u32 v{x}, v{x}, v{x+1}, v{x+2}", f"v_cmp_ne_u32 vcc, v{x}, v{c+2}"]
def ld_w(i):
    if i < NRK or i >= 20: return []
    o = []
    for T in range(5):
        l = i * 5 + T
        nm = [k for k, v in CL.items() if v[0] <= l < v[0] + v[1]][0]
        o.append(f"ds_read_b128 {vr(lring(l))}, v{BA[nm]} offset:{(l - CL[nm][0]) * 1024}")
    return o
GLD = "buffer_load_dwordx2 v[6:7], v5, s[32:35], s62 offen sc1"
PRE = ["s_lshr_b32 s46, s67, 4", "s_lshl_b32 s46, s46, 8", "s_bfe_u32 s47, s67, 0x10003", "s_add_u32 s46, s46, s47", "s_and_b32 s47, s67, 7",
       "s_lshl_b32 s47, s47, 5", "s_add_u32 s46, s46, s47", "s_mul_i32 s46, s46, 1280", "s_mul_i32 s47, s84, 160", "s_add_u32 s46, s46, s47",
       "s_mul_i32 s60, s65, 5120", f"s_add_u32 s60, s60, {XCH}", f"v_add_u32 v{WR+76}, s60, v2", "v_mul_u32_u24 v4, 2560, v4", f"v_lshrrev_b32 v{WR+79}, 4, v1",
       f"v_lshl_add_u32 v{WR+77}, v{WR+79}, 4, v4", f"v_lshl_add_u32 v{WR+78}, v{WR+79}, 3, v4",
       "s_waitcnt vmcnt(0)", f"v_add3_u32 v{CK}, v6, v7, v254", f"v_cmp_ne_u32 vcc, 0, v{CK}"]
BP = int(OPT.get("bp", 1))
if BP:
    PRE[13:17] = [f"v_lshrrev_b32 v{WR+75}, 2, v1", f"v_mul_u32_u24 v4, 2560, v{WR+75}", f"v_and_b32 v{WR+79}, 3, v1",
                  f"v_lshl_add_u32 v{WR+77}, v{WR+79}, 4, v4", f"v_lshl_add_u32 v{WR+78}, v{WR+79}, 3, v4",
                  f"v_lshl_add_u32 v{WR+75}, v{WR+79}, 4, v{WR+75}", f"v_lshlrev_b32 v{WR+75}, 2, v{WR+75}"]
vq = []
def issue(u):
    if u < 8:
        for x in (ld_unit(u)[:2] if "no3" in XP else ld_unit(u)): a(x); vq.append(u)
    if u == 4: a(GLD); vq.append(8)
nxt_u = 0
for _ in range(U0): issue(nxt_u); nxt_u += 1
npre = 0
for u in range(8):
    m, e = u >> 1, u & 1
    last = max(k for k, t in enumerate(vq) if t == u)
    a(f"s_waitcnt vmcnt({len(vq) - 1 - last})")
    while nxt_u <= u + UD: issue(nxt_u); nxt_u += 1
    if u == 0: stamp(a, 33)
    for x in chk_unit(u): a(x)
    if "no3" not in XP: a(f"s_cbranch_vccnz L_RETRY{u}")
    a(f"L_OK{u}:")
    if u == 0: stamp(a, 34)
    tb = TB + 4 * (m & 1)
    a(f"v_mov_b64 v[{tb+2*e}:{tb+2*e+1}], v[{og(u,2)}:{og(u,2)+1}]")
    for ss in ([0, 1] if e == 0 else [2, 3, 4]):
        i = m * 5 + ss
        if i >= ET: continue
        nxt = ld_w(i + 2)
        if i >= NRK: a(f"s_waitcnt lgkmcnt({5 if i < 19 else 0})")
        of = og(u, ss & 1) if ss < 4 else tb
        for T in range(5):
            wf = vr(lring(i * 5 + T)) if i >= NRK else vr(WR + (i * 5 + T) * 4)
            if "nomf" not in XP or i == 0: a(f"{MF} {vr(AC+4*T)}, {wf}, {vr(of)}, {'0' if i == 0 else vr(AC+4*T)}")
            if nxt and "nold" not in XP: a(nxt[T])
            if 10 <= i < 15 and npre < len(PRE) - 3: a(PRE[npre]); npre += 1
            if i == min(18, ET - 1) and T >= 2: a(PRE[len(PRE) - 5 + T])
assert npre == len(PRE) - 3
if STAMP and ET > 19: stamp2(a, 56, 54)
a("s_cbranch_vccnz L_RETRYG")
a("L_OKG:")
a("s_cmp_eq_u32 s64, 0")
a("s_cbranch_scc1 L_EPI_A")
def epi(send, keep, sc):
    RA, O4, O2 = WR + 76, WR + 77, WR + 78
    for T in send:
        for r in (0, 2): a(f"v_pk_mul_f32 v[{AC+4*T+r}:{AC+4*T+r+1}], v[{AC+4*T+r}:{AC+4*T+r+1}], v[{sc}:{sc+1}] op_sel_hi:[1,0]")
    a("s_barrier")
    for T in send: a(f"ds_write_b128 v{RA}, {vr(AC+4*T)} offset:{T*1024}")
    a("s_waitcnt lgkmcnt(0)"); a("s_barrier")
    for n, T in enumerate(keep): a(f"ds_read_b128 {vr(8+4*n)}, v{RA} offset:{T*1024}")
    for n, T in enumerate(keep):
        a(f"s_waitcnt lgkmcnt({len(keep)-1-n})")
        for r in (0, 2): a(f"v_pk_fma_f32 v[{8+4*n+r}:{8+4*n+r+1}], v[{AC+4*T+r}:{AC+4*T+r+1}], v[{sc}:{sc+1}], v[{8+4*n+r}:{8+4*n+r+1}] op_sel_hi:[1,0,1]")
        a(f"v_cvt_pk_bf16_f32 v{OR_+2*n}, v{8+4*n}, v{8+4*n+1}"); a(f"v_cvt_pk_bf16_f32 v{OR_+2*n+1}, v{8+4*n+2}, v{8+4*n+3}")
        if n == 1: a(f"buffer_store_dwordx4 {vr(OR_)}, v{O4}, s[28:31], s46 offen offset:{32*keep[0]} {SF}")
        if n == 2: a(f"buffer_store_dwordx2 {vr(OR_+4,2)}, v{O2}, s[28:31], s46 offen offset:128 {SF}")
if EP:
    RA, O4, O2 = WR + 76, WR + 77, WR + 78
    def last_steps(fill, lg19):
        for i in range(ET, 20):
            a(f"s_waitcnt lgkmcnt({5 if i < 19 else lg19})")
            if i == ET and fill: a("s_barrier")
            of = og(7, 1) if i == 18 else TB + 4
            for T in range(5):
                a(f"{MF} {vr(AC+4*T)}, {vr(lring(i * 5 + T))}, {vr(of)}, {vr(AC+4*T)}")
                k = (i - ET) * 5 + T
                if k < len(fill): a(fill[k])
        if STAMP: stamp2(a, 56, 54)
    rds = [f"ds_read_b128 {vr(72+4*T)}, v{RA} offset:{T*1024}" for T in range(5)]
    scl = ["v_sub_f32 v6, 1.0, v6", "v_cvt_pk_bf16_f32 v6, v6, v6", "v_and_b32 v6, 0xffff0000, v6"]
    if ET == 18: last_steps(rds + scl, 5)
    else:
        a("s_barrier")
        for x in rds + scl: a(x)
    if BP:
        a("s_waitcnt lgkmcnt(0)")
        for T in range(5):
            for r in (0, 2): a(f"v_pk_fma_f32 v[{72+4*T+r}:{72+4*T+r+1}], v[{AC+4*T+r}:{AC+4*T+r+1}], v[6:7], v[{72+4*T+r}:{72+4*T+r+1}] op_sel_hi:[1,0,1]")
            for j in range(2):
                a(f"v_cvt_pk_bf16_f32 v{OR_+2*T+j}, v{72+4*T+2*j}, v{72+4*T+2*j+1}")
            if T == 4: a("s_waitcnt lgkmcnt(4)"); a(f"buffer_store_dwordx4 {vr(OR_+12)}, v{O4}, s[28:31], s46 offen {SF}")
            for j in range(2): a(f"ds_bpermute_b32 v{OR_+12+2*T+j}, v{WR+75}, v{OR_+2*T+j}")
        a("s_waitcnt lgkmcnt(2)"); a(f"buffer_store_dwordx4 {vr(OR_+16)}, v{O4}, s[28:31], s46 offen offset:64 {SF}")
        a("s_waitcnt lgkmcnt(0)"); a(f"buffer_store_dwordx2 {vr(OR_+20,2)}, v{O2}, s[28:31], s46 offen offset:128 {SF}")
    else:
        for T in range(5):
            a(f"s_waitcnt lgkmcnt({4-T})")
            for r in (0, 2): a(f"v_pk_fma_f32 v[{72+4*T+r}:{72+4*T+r+1}], v[{AC+4*T+r}:{AC+4*T+r+1}], v[6:7], v[{72+4*T+r}:{72+4*T+r+1}] op_sel_hi:[1,0,1]")
            a(f"v_cvt_pk_bf16_f32 v{OR_+2*T}, v{72+4*T}, v{72+4*T+1}"); a(f"v_cvt_pk_bf16_f32 v{OR_+2*T+1}, v{72+4*T+2}, v{72+4*T+3}")
            if T == 1: a(f"buffer_store_dwordx4 {vr(OR_)}, v{O4}, s[28:31], s46 offen {SF}")
            if T == 3: a(f"buffer_store_dwordx4 {vr(OR_+4)}, v{O4}, s[28:31], s46 offen offset:64 {SF}")
        a(f"buffer_store_dwordx2 {vr(OR_+8,2)}, v{O2}, s[28:31], s46 offen offset:128 {SF}")
    a("s_branch L_FIN")
    a("L_EPI_A:")
    if ET == 18: last_steps([], 0)
    else: a("s_nop 1")
    for T in range(5):
        for r in (0, 2): a(f"v_pk_mul_f32 v[{AC+4*T+r}:{AC+4*T+r+1}], v[{AC+4*T+r}:{AC+4*T+r+1}], v[6:7] op_sel_hi:[1,0]")
        a(f"ds_write_b128 v{RA}, {vr(AC+4*T)} offset:{T*1024}")
    a("s_waitcnt lgkmcnt(0)"); a("s_barrier")
else:
    a("v_sub_f32 v6, 1.0, v6"); a("v_cvt_pk_bf16_f32 v6, v6, v6"); a("v_and_b32 v6, 0xffff0000, v6")
    epi([0, 1], [2, 3, 4], 6)
    a("s_branch L_FIN")
    a("L_EPI_A:")
    a("s_nop 4")
    epi([2, 3, 4], [0, 1], 6)
ev(a, "end")
if SPIN:
    a("""s_mov_b32 s60, 0
    L_SPIN:
    s_memrealtime s[98:99]
    s_waitcnt lgkmcnt(0)
    s_sub_u32 s98, s98, s96
    s_add_u32 s60, s60, 1
    s_cmp_ge_u32 s60, 20000
    s_cbranch_scc1 L_FIN
    s_cmp_lt_u32 s98, 4000
    s_cbranch_scc1 L_SPIN""")
a("L_FIN:")
if STAMP:
    stamp(a, 57)
    a("s_add_u32 s61, s61, 1"); a(f"v_writelane_b32 v{SV}, s61, 61")
    if STAMP == 3:
        a("s_waitcnt lgkmcnt(0)")
        for k_, r_ in LITE.items(): a(f"v_writelane_b32 v{SV}, s{r_}, {k_}")
    a("s_waitcnt vmcnt(0)")
    stamp(a, 62); stamp(a, 63, True)
    a(f"s_lshl_b32 s46, s2, 3"); a(f"s_add_u32 s46, s46, s22"); a("s_lshl_b32 s46, s46, 8"); a(f"s_add_u32 s46, s46, {WS_ST}")
    a(f"v_lshlrev_b32 v2, 2, v1")
    a(f"buffer_store_dword v{SV}, v2, s[32:35], s46 offen")
a("L_END:"); a("s_endpgm")
for u in range(8):
    a(f"L_RETRY{u}:")
    a("s_add_u32 s61, s61, 1"); a(f"s_cmp_ge_u32 s61, {SPIN_MAX}"); a(f"s_cbranch_scc1 L_OK{u}")
    a(f"s_sleep {RSLEEP}")
    for x in ld_unit(u): a(x)
    a("s_waitcnt vmcnt(0)")
    for x in chk_unit(u): a(x)
    a(f"s_cbranch_vccnz L_RETRY{u}"); a(f"s_branch L_OK{u}")
a("L_RETRYG:")
a("s_add_u32 s61, s61, 1"); a(f"s_cmp_ge_u32 s61, {SPIN_MAX}"); a("s_cbranch_scc1 L_OKG")
a(f"s_sleep {RSLEEP}")
a("buffer_load_dwordx2 v[6:7], v5, s[32:35], s62 offen sc1"); a("s_waitcnt vmcnt(0)")
a(f"v_add3_u32 v{CK}, v6, v7, v254"); a(f"v_cmp_ne_u32 vcc, 0, v{CK}")
a("s_cbranch_vccnz L_RETRYG"); a("s_branch L_OKG")

l1, _ = fix(a.L)
for tr in traces:
    _, iss_ = fix(tr, verify=True)
    for x in iss_: print("; TRACE HAZARD", x, file=sys.stderr)
print(f"""; Gated mix of two dilated sliding-window attention blocks, one fused kernel (generated by gen/gen18.py).
; @launch grid=(256,1,1) block=(512,1,1) lds={LDS_TOTAL}
.amdgcn_target "amdgcn-amd-amdhsa--gfx950"
.text
.globl {KN}
.p2align 8
.type {KN},@function""")
print("\n".join(l1))
print("CODE_END:")
if STAMP: print(".fill 2048, 4, 0xBF800000")
print('.section .rodata,"a"')
print(kd(KN, 256, 102, 256))
```

```python
import sys, struct, math
sys.path.insert(0, "gen")
from asmlib import *
NAME = "gated_mix__sliding_local_dilated__sliding_local_dilated__prompt"
KN = NAME + "_kernel"
OPT = dict(a.split("=") for a in sys.argv[1:])
STAMP = int(OPT.get("stamp", 0)); CM = int(OPT.get("cm", 1)); PK = int(OPT.get("pk", 1))
NS1 = int(OPT.get("ns1", 12)); RSLEEP = int(OPT.get("rsleep", 2)); OWAIT = int(OPT.get("owait", 2)); SB = int(OPT.get("sb", 4)); SA = int(OPT.get("sa", 2)); XP = OPT.get("xp", ""); R2 = int(OPT.get("r2", 0)); WNT = "nt " if int(OPT.get("wnt", 0)) else ""; XNT = "nt " if int(OPT.get("xnt", 0)) else ""; SNT = "nt " if int(OPT.get("snt", 0)) else ""; STG = int(OPT.get("stg", 2)); PP = OPT.get("pp", "1101010100").replace("-", ""); ROT = int(OPT.get("rot", 0 if PP else 1)); EP = 1; OSF = OPT.get("osf", "sc1").replace("+", " "); OF = OPT.get("of", "sc1").replace("+", " ").replace("-", ""); KS0 = OPT.get("ks0", "-A555A5555"); KS1 = OPT.get("ks1", "-55A555A55"); ET = int(OPT.get("et", 18)); UD = int(OPT.get("ud", 2)); U0 = int(OPT.get("u0", 2)); HA = int(OPT.get("ha", 1)); LS = int(OPT.get("ls", 1)); AL = int(OPT.get("al", 6)); HR = int(OPT.get("hr", 0)); LP = int(OPT.get("lp", 0)); KP = int(OPT.get("kp", 5)); STL = int(OPT.get("stl", 60)); TOV = 1; LPOS = int(OPT.get("lpos", 2)); COV = int(OPT.get("cov", 0)); SF = OPT.get("sf", "").replace("+", " "); PD = int(OPT.get("pd", 1))
def f2u(x): return struct.unpack("<I", struct.pack("<f", x))[0]
STAGE = 49152; XOFF = 30720
GW_LDS = 147456; TOK_LDS = GW_LDS + 1536; SCR_LDS = 149504; LDS_TOTAL = 163840
XCH = 126976
RED = 98304
OBLK = 2816; OTT = 16 * OBLK
WS_WOT = 0x580000; WS_G = 0x710000; WS_FW = 0x720000; WS_ST = 0x1000000
NEG = f2u(-1e30)
CEXP = f2u(20 ** -0.5 * math.log2(math.e))
LOG2E = f2u(math.log2(math.e))
MF = "v_mfma_f32_16x16x32_bf16"
SPIN_MAX = 1 << 17
SV = 255
LITE = {50: 100, 51: 88, 52: 90, 53: 98}
def stamp(a, idx, real=False):
    if not STAMP: return
    if STAMP == 3 and idx != 63:
        if idx in LITE: a(f"s_memrealtime s[{LITE[idx]}:{LITE[idx]+1}]")
        return
    a(f"{'s_memrealtime' if real else 's_memtime'} s[68:69]"); a("s_waitcnt lgkmcnt(0)"); a(f"v_writelane_b32 v{SV}, s68, {idx}")
SPIN = OPT.get("spin", "")
def ev(a, name):
    if SPIN == name: a("s_memrealtime s[96:97]"); a("s_waitcnt lgkmcnt(0)")
def stamp2(a, idx, ridx):
    stamp(a, idx); stamp(a, ridx, True)
def stamp0(a):
    if STAMP: a(f"v_mov_b32 v{SV}, 0"); a(f"v_writelane_b32 v{SV}, s66, 0"); a(f"v_writelane_b32 v{SV}, s68, 1")

a = Asm()
traces = []
def ids():
    a("""v_and_b32 v1, 63, v0
    s_and_b32 s20, s2, 3
    s_lshl_b32 s20, s20, 2
    s_bfe_u32 s46, s2, 0x20003
    s_add_u32 s20, s20, s46
    s_lshr_b32 s47, s2, 5
    s_and_b32 s21, s2, 4
    s_lshl_b32 s21, s21, 1
    s_add_u32 s21, s21, s47""")
def srd_ws_dbg():
    WSO = int(OPT.get("wso", 0)) << 20
    a(f"""s_add_u32 s32, s78, {WSO}
    s_addc_u32 s33, s79, 0
    s_mov_b32 s34, {0x10000000 - WSO}
    s_mov_b32 s35, 0x20000
    s_mov_b32 s40, s76
    s_mov_b32 s41, s77
    s_mov_b32 s42, 256
    s_mov_b32 s43, 0x20000""")
def consumer_ids():
    if CM:
        a("s_bfe_u32 s84, s2, 0x30003"); a("s_and_b32 s85, s2, 7"); a("s_lshl_b32 s85, s85, 2"); a("s_lshr_b32 s86, s2, 6"); a("s_add_u32 s85, s85, s86")
    else:
        a("s_and_b32 s84, s20, 7"); a("s_lshl_b32 s85, s21, 1"); a("s_lshr_b32 s86, s20, 3"); a("s_add_u32 s85, s85, s86")
def pf_setup(isw_scc_cmp, vdst, vt, soff, sstep, lblx, lble):
    a(f"""s_lshr_b32 s44, s2, 3
    {isw_scc_cmp}
    s_cbranch_scc0 {lblx}
    v_mul_u32_u24 v{vt}, 13108, v1
    v_lshrrev_b32 v{vt}, 16, v{vt}
    v_mul_u32_u24 v{vt}, 640, v{vt}
    v_lshl_add_u32 v{vdst}, v1, 7, v{vt}
    s_mul_i32 {soff}, s44, 15360
    s_and_b32 s45, s2, 1
    s_mul_i32 s45, s45, 640
    s_add_u32 {soff}, {soff}, s45
    s_mov_b32 {sstep}, 491520
    s_cmp_ge_u32 s20, 8
    s_cselect_b32 s88, s12, s6
    s_cselect_b32 s89, s13, s7
    s_mov_b32 s90, 2457600
    s_branch {lble}
    {lblx}:
    v_lshrrev_b32 v{vt}, 1, v1
    v_mul_u32_u24 v{vt}, 1280, v{vt}
    v_and_b32 v{vdst}, 1, v1
    v_lshl_add_u32 v{vdst}, v{vdst}, 7, v{vt}
    s_and_b32 s45, s2, 4
    s_lshl_b32 s45, s45, 3
    s_add_u32 s44, s44, s45
    s_mul_i32 {soff}, s44, 40960
    s_mov_b32 {sstep}, 256
    s_mov_b32 s88, s4
    s_mov_b32 s89, s5
    s_mov_b32 s90, 2621440
    {lble}:
    s_mov_b32 s91, 0x20000""")
def rotbit(dst):
    a(f"s_xor_b32 {dst}, s84, s85"); a(f"s_and_b32 {dst}, {dst}, {R2}")
a(f"{KN}:")
if STAMP: a("s_memrealtime s[66:67]"); a("s_memtime s[68:69]")
a("""v_readfirstlane_b32 s22, v0
s_load_dwordx8 s[4:11], s[0:1], 0
s_load_dwordx8 s[12:19], s[0:1], 32""")
if not STAMP: a("s_lshr_b32 s3, s2, 8"); a("s_cbranch_scc1 L_END")
a("""s_lshr_b32 s22, s22, 6
s_cmp_eq_u32 s22, 3
s_cbranch_scc1 L_HOP
s_cmp_lt_u32 s22, 4
s_cbranch_scc1 L_COMPUTE""")
ECP = int(OPT.get("ecp", 1))
a("v_and_b32 v1, 63, v0"); a("s_lshr_b32 s44, s2, 3")
if ECP:
    a(f"""s_cmp_lg_u32 s22, 6
    s_cbranch_scc1 L_E0
    s_getpc_b64 s[70:71]
    L_PC0:
    s_mul_i32 s45, s44, 6
    v_min_u32 v3, 5, v1
    v_add_lshl_u32 v3, v3, s45, 7""")
    if not STAMP: a("v_min_u32 v3, CODE_END - L_PC0 - 4, v3")
    a("global_load_dword v41, v3, s[70:71]"); a("L_E0:")
a("""v_mul_u32_u24 v3, 13108, v1
v_lshrrev_b32 v3, 16, v3
v_mul_u32_u24 v3, 640, v3
v_lshlrev_b32 v4, 7, v1
v_add_u32 v40, v4, v3
v_lshrrev_b32 v3, 1, v1
v_lshl_add_u32 v42, v3, 10, v4
""")
if "pack" in XP:
    a("""v_mov_b32 v40, v4
    s_lshr_b32 s92, s44, 4
    s_lshl_b32 s92, s92, 4
    s_add_u32 s92, s92, s44
    s_mulk_i32 s92, 7680""")
else:
    a("""s_mul_i32 s92, s44, 24
    s_and_b32 s45, s2, 1
    s_add_u32 s92, s92, s45
    s_mulk_i32 s92, 640""")
a("""
s_and_b32 s45, s2, 4
s_lshl_b32 s45, s45, 3
s_add_u32 s44, s44, s45
s_mul_i32 s93, s44, 40960
s_mov_b32 s26, 2457600
s_mov_b32 s30, 2621440
s_mov_b32 s31, 0x20000
s_mov_b32 s27, s31
s_bitcmp1_b32 s2, 1
s_waitcnt lgkmcnt(0)
s_cselect_b64 s[24:25], s[12:13], s[6:7]
s_mov_b64 s[28:29], s[4:5]
""")
if PP[0] == "1":
    a("""s_cmp_lg_u32 s22, 4
s_cbranch_scc1 L_E1
buffer_load_dword v41, v42, s[28:31], s93 offen
L_E1:
s_cmp_lg_u32 s22, 5
s_cbranch_scc1 L_LD0
buffer_load_dword v41, v40, s[24:27], s92 offen
s_branch L_LD0
""")
else:
    a("""s_bfe_u32 s45, s22, 0x10001
    s_bitcmp1_b32 s22, 0
    s_cbranch_scc1 L_E1
    s_lshl_b32 s45, s45, 8
    s_add_u32 s45, s45, s93
    buffer_load_dword v41, v42, s[28:31], s45 offen
    s_branch L_LD0
    L_E1:
    s_mul_i32 s45, s45, 491520
    s_add_u32 s45, s45, s92
    buffer_load_dword v41, v40, s[24:27], s45 offen
    s_branch L_LD0""")
a(""".p2align 8
L_HOP:
s_branch L_COMPUTE
L_LD0:
""")
a(f"s_setprio {OPT.get('pl', 2)}")
def jitter(tag, mask, n):
    if OPT.get("jit"):
        a(f"s_and_b32 s44, s2, {mask}"); a(f"s_cbranch_scc1 L_J{tag}")
        for _ in range(n): a("s_sleep 127")
        a(f"L_J{tag}:")
jitter("a", 0x29, 3)
GL = int(OPT.get("gl", 1))
if GL:
    a(f"""s_cmp_lg_u32 s22, 7
    s_cbranch_scc1 L_NGW
    s_mov_b32 s36, s16
    s_mov_b32 s37, s17
    s_mov_b32 s38, 1280
    s_mov_b32 s39, 0x20000
    s_mov_b32 m0, {GW_LDS}
    v_lshlrev_b32 v12, 4, v1
    buffer_load_dwordx4 v12, s[36:39], 0 offen lds
    buffer_load_dwordx4 v12, s[36:39], 0 offen offset:1024 lds
    L_NGW:""")
stamp0(a); stamp(a, 3)
ids()
a("""v_lshrrev_b32 v3, 3, v1
v_mul_u32_u24 v3, 2560, v3
v_lshrrev_b32 v4, 4, v0
v_xor_b32 v4, v4, v1
v_xor_b32 v4, 4, v4
v_and_b32 v4, 7, v4
v_lshl_add_u32 v11, v4, 4, v3
s_and_b32 s64, s22, 3
s_lshr_b32 s44, s21, 1
s_or_b32 s45, s44, s64
s_cselect_b32 s52, -20480, 0
s_lshl_b32 s44, s44, 8
s_and_b32 s45, s21, 1
s_add_u32 s44, s44, s45
s_lshl_b32 s45, s64, 4
s_add_u32 s44, s44, s45
s_mul_i32 s47, s44, 1280
s_lshl_b32 s53, s64, 10
v_mul_u32_u24 v3, 6554, v1
v_lshrrev_b32 v3, 16, v3
v_mul_u32_u24 v4, 1120, v3
v_lshl_add_u32 v10, v1, 4, v4
s_and_b32 s46, s20, 7
s_mul_i32 s46, s46, 160
s_mul_i32 s44, s64, 61440
s_add_u32 s46, s46, s44
s_mul_i32 s48, s64, 7680""")
if "pack" in XP:
    a("""v_lshlrev_b32 v43, 4, v1
    s_and_b32 s46, s20, 3
    s_mul_i32 s46, s46, 30720
    s_add_u32 s46, s46, s48""")
a("""s_mov_b32 s49, 0
s_mov_b32 s50, 0
s_mov_b32 s87, 0
s_mov_b32 s86, 15""")
stamp(a, 2)
a("s_load_dwordx4 s[76:79], s[0:1], 64")
a("L_LD_ISSUE:")
a(f"s_add_u32 m0, s53, {XOFF + 1024}"); a("s_add_u32 s51, s47, s52"); a(f"buffer_load_dwordx4 v11, s[28:31], s51 offen {XNT}lds")
for qq in range(1, 4):
    a(f"s_add_u32 m0, s53, {XOFF + 1024 + 4096*qq}"); a(f"s_add_u32 s51, s47, {(64*qq-16)*1280}"); a(f"buffer_load_dwordx4 v11, s[28:31], s51 offen {XNT}lds")
a("s_mov_b32 exec_hi, 0x0fffffff")
for qq in range(8):
    if str(qq) in KS0 + KS1:
        a(f"s_cmp_eq_u32 s86, {qq}"); a(f"s_cbranch_scc1 L_HK{qq}"); a(f"L_HR{qq}:")
    r = 2 * qq; k = (r & 0x33) | ((r & 4) << 1) | ((r & 8) >> 1)
    a(f"s_add_u32 m0, s48, {960*qq}"); a(f"s_add_u32 s51, s46, {960*qq if 'pack' in XP else k*3840}"); a(f"buffer_load_dwordx4 v{43 if 'pack' in XP else 10}, s[24:27], s51 offen {WNT}lds")
a("s_mov_b32 exec_hi, -1")
a("s_cmp_lg_u32 s64, 0"); a("s_cbranch_scc1 L_LD_W")
a(f"s_add_u32 m0, s53, {XOFF + 1024 + 4096*4}"); a(f"s_add_u32 s51, s47, {(64*4-16)*1280}"); a(f"buffer_load_dwordx4 v11, s[28:31], s51 offen {XNT}lds")
a("L_LD_W:")
a(f"""s_mov_b32 s63, {STAGE}
s_add_u32 s46, s46, 245760
s_add_u32 s47, s47, 128
s_add_u32 s49, s49, 1
s_cmp_eq_u32 s49, 3
s_cselect_b32 s51, {(-2*STAGE) & 0xffffffff}, s63
s_cselect_b32 s49, 0, s49
s_add_u32 s48, s48, s51
s_add_u32 s53, s53, s51
s_add_u32 s50, s50, 1""")
def lstamp(base):
    if STAMP == 1: a("s_memtime s[68:69]"); a("s_waitcnt lgkmcnt(0)"); a(f"s_add_u32 m0, s50, {base}"); a(f"v_writelane_b32 v{SV}, s68, m0")
lstamp(9)
a(f"""s_cmp_lt_u32 s50, 2
s_cbranch_scc1 L_LD_PRE0
L_DISP:
s_cmp_eq_u32 s50, s96
s_cbranch_scc1 L_SIDE_A
L_SA_RET:
s_cmp_eq_u32 s50, s97
s_cbranch_scc1 L_TOK_A
s_cmp_eq_u32 s50, s98
s_cbranch_scc1 L_TOK_B
s_cmp_eq_u32 s50, {10 if LP else 9}
s_cbranch_scc1 L_WOF_A
s_cmp_eq_u32 s50, 10
s_cbranch_scc1 L_WOF_B""")
a("L_LD_WAIT:")
a("L_LD_BAR:")
WSH = 7680 if "pack" in XP else 15360
a("L_LD_PRE:")
a("s_bitcmp1_b32 s94, s50"); a("s_cbranch_scc0 L_LD_TOP")
a(f"s_add_u32 s87, s87, {STG}")
PW = int(OPT.get("pw", 6))
if PW < 60: a(f"s_waitcnt vmcnt({PW})")
TT = int(OPT.get("tt", 0))
if TT: a("s_cmp_eq_u32 s64, 3"); a("s_cbranch_scc1 L_PFT")
a("s_cmp_eq_u32 s64, 0"); a("s_cbranch_scc1 L_PFX")
for n in range(STG):
    a("buffer_load_dword v41, v40, s[24:27], s92 offen"); a(f"s_add_u32 s92, s92, {WSH if n < STG-1 else STG*491520 - (STG-1)*WSH}")
a("s_branch L_LD_TOP")
a("L_PFX:")
for n in range(STG):
    a("buffer_load_dword v41, v42, s[28:31], s93 offen"); a(f"s_add_u32 s93, s93, {40960 if n < STG-1 else (STG*256 - (STG-1)*40960) & 0xffffffff}")
a("s_branch L_LD_TOP")
if TT:
    a("L_PFT:")
    srd_ws_dbg()
    a(f"s_mov_b32 s34, {WS_WOT}")
    a("""s_mov_b32 s88, s18
    s_mov_b32 s89, s19
    s_mov_b32 s90, 2621440
    s_mov_b32 s91, 0x20000
    s_lshr_b32 s44, s2, 3
    s_lshl_b32 s44, s44, 15
    v_lshlrev_b32 v16, 20, v1
    s_mov_b64 exec, 0xff
    buffer_load_dword v41, v16, s[32:35], s44 offen
    buffer_load_dword v41, v16, s[88:91], s44 offen
    s_mov_b64 exec, -1
    s_mov_b32 s94, 0""")
a("L_LD_TOP:")
a("s_and_b32 s86, s100, 15"); a("s_lshr_b64 s[100:101], s[100:101], 4")
a("s_cmp_lg_u32 s86, 10"); a("s_cbranch_scc1 L_LD_ISSUE")
ES = (1, 2, 3, 6, 9 if int(OPT.get('pt', 0)) else 8)
def hook(nm, base, ret):
    for e_ in ES: a(f"s_cmp_eq_u32 s87, {e_}"); a(f"s_cbranch_scc1 L_H{nm}_{e_}")
    a(f"s_waitcnt vmcnt({base})")
    a(f"L_H{nm}_B:")
    if STAMP == 1: a("s_memtime s[68:69]"); a("s_waitcnt lgkmcnt(0)"); a(f"s_add_u32 m0, s50, 19"); a(f"v_writelane_b32 v{SV}, s68, m0")
    a("s_barrier")
    if STAMP == 1: a("s_memrealtime s[68:69]"); a("s_waitcnt lgkmcnt(0)"); a(f"s_add_u32 m0, s50, 39"); a(f"v_writelane_b32 v{SV}, s68, m0")
    a("s_mov_b32 s87, 0"); a(f"s_branch {ret}")
    for e_ in ES: a(f"L_H{nm}_{e_}:"); a(f"s_waitcnt vmcnt({base + e_})"); a(f"s_branch L_H{nm}_B")
hook("A", 0, "L_LD_ISSUE")
for qq in range(8):
    if str(qq) in KS0 + KS1: a(f"L_HK{qq}:"); hook(str(qq), 4 + qq, f"L_HR{qq}")
a("L_LD_PRE0:")
a("v_lshlrev_b32 v12, 4, v1"); a("v_mov_b32 v13, 0")
pos = [c for c in range(1, 10) if PP[c] != "0"]
if STG > 1: a(f"s_bfe_u32 s45, s2, 0x{(STG.bit_length()-1):x}0003")
else: a("s_mov_b32 s45, 0")
a(f"s_mul_i32 s44, s45, {491520 - WSH}"); a("s_add_u32 s92, s92, s44"); a(f"s_add_u32 s92, s92, {491520*int(PP[0])}")
a(f"s_mul_i32 s44, s45, {40960 - 256}"); a("s_sub_u32 s93, s93, s44"); a(f"s_add_u32 s93, s93, {256*int(PP[0])}")
CB = OPT.get("cb", "")
if CB:
    a("s_lshr_b32 s44, s2, 2"); a("s_xor_b32 s44, s44, s2"); a("s_and_b32 s44, s44, 1"); a("s_lshl_b32 s45, s45, 1"); a("s_add_u32 s45, s45, s44")
    for n_, cs in enumerate(CB.split(".")):
        mask = sum(1 << int(c) for c in cs)
        ks = sum((10 if str(i) in cs else 5) << (4 * (i - 1)) for i in range(1, 10))
        a(f"s_cmp_eq_u32 s45, {n_}"); a(f"s_cselect_b32 s94, {mask}, s94"); a(f"s_cselect_b32 s100, {ks & 0xffffffff}, s100")
    a("s_mov_b32 s101, 5")
else:
    a("s_mov_b32 s94, 0")
    for g_ in range(STG):
        mask = sum(1 << c for k, c in enumerate(pos) if k % STG == g_)
        a(f"s_cmp_eq_u32 s45, {g_}"); a(f"s_cselect_b32 s94, {mask}, s94")
if TT: a("s_cmp_eq_u32 s64, 2")
else: a("s_cmp_ge_u32 s64, 2")
a("s_cselect_b32 s94, 0, s94")
a("s_waitcnt lgkmcnt(0)")
SA0 = int(OPT.get("sa0", SA)); SB0 = int(OPT.get("sb0", SB))
a("s_bitcmp1_b32 s2, 3"); a(f"s_cselect_b32 s96, {SA}, {SA0}"); a(f"s_cselect_b32 s97, {SB}, {SB0}")
a("s_add_u32 s98, s97, 2")
def pk(ks): return sum(int(c, 16) << (4 * i) for i, c in enumerate(ks[1:]))
assert STG == 2 and len(KS0) == 10 and len(KS1) == 10
if not CB:
    a(f"s_mov_b32 s100, {pk(KS0) & 0xffffffff}"); a(f"s_mov_b32 s101, {pk(KS0) >> 32}")
    a("s_bitcmp1_b32 s2, 3"); a(f"s_cselect_b32 s100, {pk(KS1) & 0xffffffff}, s100"); a(f"s_cselect_b32 s101, {pk(KS1) >> 32}, s101")
a("s_branch L_DISP")
a("L_SIDE_A:")
if int(OPT.get("u2", 1)):
    a("""s_mov_b32 s56, 0
    s_cmp_lt_u32 s64, 2
    s_cbranch_scc1 L_SA_RET
    s_mov_b32 s57, s2
    s_cmp_eq_u32 s64, 2
    s_cbranch_scc1 L_SA_GO
    s_bitcmp""" + ("1" if OPT.get("u2", "1") == "2" else "0") + """_b32 s2, 3
    s_cbranch_scc1 L_SA_RET
    s_lshr_b32 s44, s2, 4
    s_sub_u32 s44, s44, 4
    s_cmp_ge_u32 s44, 8
    s_cbranch_scc1 L_SA_RET
    s_lshl_b32 s44, s44, 3
    s_and_b32 s57, s2, 7
    s_add_u32 s57, s57, s44
    s_add_u32 s57, s57, 256
    L_SA_GO:""")
else:
    a("""s_mov_b32 s56, 0
    s_sub_u32 s44, s64, 2
    s_lshl_b32 s57, s44, 8
    s_add_u32 s57, s57, s2
    s_cmp_ge_u32 s57, 320
    s_cbranch_scc1 L_SA_RET""")
a("""s_mov_b32 s56, 1
s_mov_b32 s39, 0x20000
s_and_b32 s45, s57, 7
s_lshr_b32 s44, s57, 3
s_mul_i32 s58, s44, 52
s_lshr_b32 s58, s58, 8
s_mul_i32 s59, s58, 5
s_sub_u32 s59, s44, s59
s_cmp_ge_u32 s58, 4
s_cselect_b32 s36, s14, s8
s_cselect_b32 s37, s15, s9
s_mov_b32 s38, 819200
s_and_b32 s58, s58, 3
s_mul_i32 s58, s58, 160
s_mul_i32 s60, s59, 40
s_cmp_eq_u32 s59, 4
s_cselect_b32 s60, 16, s60
s_cselect_b32 s54, 80, 20
s_cselect_b32 s55, 20, 4
s_add_u32 s58, s58, s60
s_mul_i32 s58, s58, 1280
s_mul_i32 s60, s45, 160
s_add_u32 s58, s58, s60
s_mul_i32 s54, s54, 1280
s_mul_i32 s55, s55, 1280""")
a(f"s_mul_i32 s62, s64, 5120"); a(f"s_add_u32 s62, s62, {SCR_LDS - 10240}")
a("s_mov_b32 exec_hi, 0xff")
for g in range(4):
    for jh in range(2):
        a(f"s_add_u32 m0, s62, {(16*(g>>1) + 8*jh + 4*(g&1))*160}")
        if jh == 0: a("s_add_u32 s51, s58, s54"); a(f"buffer_load_dwordx4 v10, s[36:39], s58 offen {SNT}lds")
        else: a("s_add_u32 s58, s58, s55"); a(f"buffer_load_dwordx4 v10, s[36:39], s51 offen {SNT}lds")
a("s_mov_b32 exec_hi, -1")
a(f"""s_mul_i32 s61, s45, 204800
s_mul_i32 s58, s44, 5120
s_add_u32 s61, s61, s58
s_add_u32 s61, s61, {WS_WOT}
""")
if int(OPT.get("pt", 0)):
    srd_ws_dbg()
    a("v_lshlrev_b32 v16, 7, v1"); a("s_mov_b32 exec_hi, 0xff")
    a("buffer_load_dword v17, v16, s[32:35], s61 offen"); a("s_mov_b32 exec_hi, -1")
    a("s_mov_b32 s87, 9"); a("s_branch L_LD_BAR")
else: a("s_mov_b32 s87, 8"); a("s_branch L_LD_BAR")
a("L_SIDE_B:")
assert SB >= SA + 2
a("""v_lshrrev_b32 v16, 5, v1
v_lshlrev_b32 v16, 4, v16
v_bfe_u32 v17, v1, 4, 1
v_lshl_add_u32 v16, v17, 2, v16
v_bfe_u32 v17, v1, 2, 2
v_add_u32 v16, v16, v17
v_mul_u32_u24 v16, 160, v16
v_add_u32 v16, s62, v16
v_and_b32 v17, 3, v1
v_lshl_add_u32 v18, v17, 4, v16
v_lshl_add_u32 v19, v17, 3, v16""")
for T in range(5):
    for j in range(2):
        if T < 4: a(f"ds_read_b64_tr_b16 v[{20+4*T+2*j}:{21+4*T+2*j}], v18 offset:{j*1280 + 64*(T>>1) + 8*(T&1)}")
        else: a(f"ds_read_b64_tr_b16 v[{20+4*T+2*j}:{21+4*T+2*j}], v19 offset:{j*1280 + 128}")
a("s_waitcnt lgkmcnt(0)")
for T in range(4): a(f"buffer_store_dwordx4 v[{20+4*T}:{23+4*T}], v12, s[32:35], s61 offen offset:{1024*T} sc1")
a("s_add_u32 s61, s61, 4096")
a(f"buffer_store_dwordx4 v[36:39], v12, s[32:35], s61 offen sc1")
a("s_mov_b32 s87, 6"); a("s_branch L_LD_BAR")
a("L_TOK_A:")
srd_ws_dbg()
a("""v_lshlrev_b32 v12, 4, v1
v_mov_b32 v13, 0
s_mov_b64 exec, 1
buffer_load_dword v15, v13, s[40:43], 0 offen sc1
s_mov_b64 exec, -1
s_cmp_lg_u32 s56, 0
s_cbranch_scc1 L_SIDE_B
s_mov_b32 s87, 1
s_branch L_LD_BAR""")
a("L_TOK_B:")
srd_ws_dbg()
a(f"""s_mov_b32 s60, 0
v_mov_b32 v13, 0
L_TOK_CHK:
v_readlane_b32 s75, v15, 0
s_add_u32 s60, s60, 1
s_cmp_lg_u32 s75, 0
s_cbranch_scc1 L_TOK_OK
s_cmp_ge_u32 s60, {SPIN_MAX}
s_cbranch_scc1 L_TOK_OK
s_sleep 4
s_mov_b64 exec, 1
buffer_load_dword v15, v13, s[40:43], 0 offen sc1
s_mov_b64 exec, -1
s_waitcnt vmcnt(0)
s_branch L_TOK_CHK
L_TOK_OK:
v_mov_b32 v14, {TOK_LDS}
v_mov_b32 v15, s75
ds_write_b32 v14, v15
s_cmp_eq_u32 s56, 0
s_waitcnt lgkmcnt(0)
s_cbranch_scc1 L_LD_WAIT
s_and_b32 s45, s57, 7
s_lshl_b32 s45, s45, 13
s_lshr_b32 s44, s57, 3
s_lshl_b32 s44, s44, 7
s_add_u32 s45, s45, s44
s_add_u32 s45, s45, {WS_FW}
v_lshlrev_b32 v13, 2, v1
s_mov_b32 exec_hi, 0
buffer_store_dword v15, v13, s[32:35], s45 offen sc1
s_mov_b32 exec_hi, -1
s_mov_b32 s87, 1
s_branch L_LD_BAR""")
a("L_WOF_A:")
srd_ws_dbg()
consumer_ids()
a(f"""s_lshl_b32 s59, s84, 13
s_add_u32 s59, s59, {WS_FW}
s_lshr_b32 s44, s64, 1
s_mul_i32 s44, s44, 2560
s_add_u32 s59, s59, s44
v_lshlrev_b32 v13, 7, v1
v_lshlrev_b32 v12, 4, v1
s_mov_b64 exec, 0xfffff
buffer_load_dword v14, v13, s[32:35], s59 offen sc1
s_mov_b64 exec, -1""")
if LP: a("s_waitcnt vmcnt(1)"); a("s_barrier")
else: a("s_mov_b32 s87, 1"); a("s_branch L_LD_BAR")
a("L_WOF_B:")
srd_ws_dbg()
a("""v_lshlrev_b32 v12, 4, v1
v_lshlrev_b32 v13, 7, v1
s_mov_b64 exec, 0xfffff
s_mov_b32 s60, 0""")
a(f"s_waitcnt vmcnt({0 if LP else 12})")
a(f"""L_WO_POLL:
v_cmp_ne_u32 vcc, s75, v14
s_cbranch_vccz L_WO_OK
s_add_u32 s60, s60, 1
s_cmp_ge_u32 s60, {SPIN_MAX}
s_cbranch_scc1 L_WO_OK
s_sleep 4
buffer_load_dword v14, v13, s[32:35], s59 offen sc1
s_waitcnt vmcnt(0)
s_branch L_WO_POLL
L_WO_OK:
s_mov_b64 exec, -1
s_setprio 0""")
stamp(a, 29)
CL = {"S1": (0, 24, 49152, 24576), "S2": (24, 14, 98304, 14336), "S0": (38, 24, 0, 24576), "TOP": (62, 6, 151552, 6144), "TB": (68, 2, 147456, 2048),
      "R1": (70, 24, 49152, 24576), "R2": (94, 6, 98304, 14336)}
a(f"""s_mul_i32 s58, s84, 204800
s_add_u32 s58, s58, {WS_WOT}
s_lshr_b32 s44, s64, 1
s_and_b32 s45, s64, 1
s_lshl_b32 s45, s45, 10
s_mul_i32 s59, s44, 102400
s_add_u32 s59, s59, s58
s_add_u32 s59, s59, s45""")
rotbit("s54"); a("s_mul_i32 s54, s54, 51200"); a("s_sub_u32 s55, s59, s54"); a("s_add_u32 s59, s59, s54")
def dma_class(nm, lo=0, hi=None):
    l0, n, base, delta = CL[nm]
    a(f"s_mul_i32 s53, s44, {delta}"); a("s_add_u32 s53, s53, s45")
    for j in range(lo, n if hi is None else hi, 2):
        a(f"s_add_u32 m0, s53, {base + j*1024}"); a(f"s_add_u32 s51, {'s59' if l0 + j < 50 else 's55'}, {(l0 + j)*1024}")
        a(f"buffer_load_dwordx4 v12, s[32:35], s51 offen sc1 lds")
dma_class("S1", 0, NS1)
if not LP: a(f"s_waitcnt vmcnt({NS1//2})"); a("s_barrier")
dma_class("S1", NS1); dma_class("S2"); dma_class("TOP")
a("s_waitcnt vmcnt(7)")
stamp(a, 30)
a("s_barrier")
dma_class("S0"); dma_class("TB")
TOK = 253
a(f"v_mov_b32 v{TOK}, s75")
a("s_branch L_P2_PRE")
a("L_COMPUTE:")
a("s_load_dwordx4 s[76:79], s[0:1], 64")
ev(a, "start")
a(f"s_setprio {OPT.get('cprio', 3)}")
ids()
a("""s_mov_b32 s39, 0x20000
s_mov_b32 s56, 0
s_cmp_eq_u32 s22, 3
s_cbranch_scc1 L_C_GW
s_cmp_eq_u32 s22, 2
s_cbranch_scc1 L_C_TOK""")
if int(OPT.get("wpe", 0)):
    a("""s_cmp_eq_u32 s22, 1
    s_cselect_b32 s36, s14, s8
    s_cselect_b32 s37, s15, s9
    s_mov_b32 s38, 819200
    v_lshlrev_b32 v140, 7, v1
    v_lshrrev_b32 v141, 1, v1
    v_lshl_add_u32 v140, v141, 10, v140
    s_lshr_b32 s44, s2, 3
    s_mul_i32 s44, s44, 25600
    s_and_b32 s45, s2, 7
    s_mul_i32 s45, s45, 160
    s_add_u32 s44, s44, s45
    s_mov_b32 exec_hi, 0xff
    buffer_load_dword v241, v140, s[36:39], s44 offen
    s_mov_b32 exec_hi, -1""")
a("s_branch L_C_SETUP")
a("L_C_GW:")
if GL: a("v_lshlrev_b32 v140, 4, v1"); a("v_mov_b64 v[144:145], 0")
else:
    a(f"""s_waitcnt lgkmcnt(0)
    s_mov_b32 s36, s16
    s_mov_b32 s37, s17
    s_mov_b32 s38, 1280
    v_lshlrev_b32 v140, 4, v1
    s_mov_b32 m0, {GW_LDS}
    v_mov_b64 v[144:145], 0
    buffer_load_dwordx4 v140, s[36:39], 0 offen lds
    buffer_load_dwordx4 v140, s[36:39], 0 offen offset:1024 lds""")
a(f"""v_mov_b64 v[146:147], 0
ds_write_b128 v140, v[144:147] offset:{XOFF}
v_add_u32 v140, {STAGE}, v140
ds_write_b128 v140, v[144:147] offset:{XOFF}
v_add_u32 v140, {STAGE}, v140
ds_write_b128 v140, v[144:147] offset:{XOFF}
s_branch L_C_SETUP""")
a("L_C_TOK:")
jitter("b", 0x29, 3)
a("""s_cmp_lg_u32 s2, 0
s_cbranch_scc1 L_C_CPF
s_memrealtime s[44:45]
v_mov_b32 v147, 0
s_waitcnt lgkmcnt(0)""")
srd_ws_dbg()
a("""s_or_b32 s44, s44, 1
v_mov_b32 v146, s44
s_mov_b64 exec, 1
buffer_atomic_cmpswap v[146:147], v147, s[40:43], 0 offen sc1
s_mov_b64 exec, -1
L_C_CPF:
s_getpc_b64 s[70:71]
L_PC:
s_sub_u32 s70, s70, L_PC - L_SIDE_B
s_subb_u32 s71, s71, 0
""")
if ECP: pass
elif int(OPT.get("ccp", 1)):
    a(f"""s_lshr_b32 s44, s2, 3
    s_mul_i32 s44, s44, 6
    v_min_u32 v140, 5, v1
    v_add_lshl_u32 v140, v140, s44, 7
    v_min_u32 v140, CODE_END - L_SIDE_B - 4, v140
    global_load_dword v241, v140, s[70:71]""")
else:
    a("""v_lshlrev_b32 v140, 7, v1
v_add_u32 v141, 8192, v140
v_add_u32 v142, 16384, v140
v_min_u32 v140, CODE_END - L_SIDE_B - 4, v140
v_min_u32 v141, CODE_END - L_SIDE_B - 4, v141
v_min_u32 v142, CODE_END - L_SIDE_B - 4, v142
global_load_dword v241, v140, s[70:71]
global_load_dword v241, v141, s[70:71]
global_load_dword v241, v142, s[70:71]""")
a("L_C_SETUP:")
if COV == 2:
    a("s_cmp_eq_u32 s56, 0"); a("s_cbranch_scc1 L_C_S2")
    a("buffer_load_dword v241, v252, s[36:39], s57 offen")
    a("L_C_S2:")
VWA, VWB, VX0, VX1, VGX0, VGX1, VGW = 2, 3, 4, 5, 6, 7, 240
ACCQ, ACCK, ACCV, ACCH = 8, 48, 88, 128
RING, XB, GX = 140, 180, 204
MC, MP, MP0, AM, ONES = 220, 224, 228, 232, 236
def acc(seg, t, T): return (ACCQ, ACCK, ACCV)[seg] + t * 20 + T * 4
a("s_setprio 0")
a(f"""v_lshrrev_b32 v140, 4, v1
v_and_b32 v141, 15, v1
v_lshrrev_b32 v142, 5, v1
v_lshlrev_b32 v142, 4, v142
v_and_b32 v143, 1, v140
v_lshl_add_u32 v142, v143, 2, v142
v_lshrrev_b32 v143, 2, v141
v_add_u32 v142, v142, v143
v_mul_u32_u24 v145, 480, v142
v_and_b32 v143, 3, v141
v_lshl_add_u32 v{VWA}, v143, 3, v145
v_mul_u32_u24 v144, 40, v143
v_add3_u32 v{VWB}, v145, v144, 32
v_lshrrev_b32 v144, 1, v141
v_xor_b32 v144, v144, v140
v_lshlrev_b32 v144, 4, v144
v_lshl_add_u32 v{VX0}, v141, 7, v144
v_xor_b32 v{VX1}, 64, v{VX0}
s_and_b32 s44, s20, 7
s_lshl_b32 s44, s44, 11
v_add_u32 v{VGX0}, s44, v{VX0}
v_add_u32 v{VGX1}, s44, v{VX1}
v_lshlrev_b32 v{VGW}, 4, v140
v_add_u32 v{VGW}, {GW_LDS}, v{VGW}""")
a(f"s_mov_b32 s44, {NEG}")
a(f"v_mov_b32 v146, s44")
a("s_lshr_b32 s45, s21, 1"); a("s_or_b32 s45, s45, s22")
a("v_lshlrev_b32 v145, 2, v140"); a("v_sub_u32 v145, v141, v145")
for r in range(4): a(f"v_subrev_u32 v{150+r}, {r}, v145")
for r in range(4):
    a(f"v_cmp_gt_u32 vcc, 8, v{150+r}"); a(f"v_cmp_gt_i32 s[72:73], -8, v{150+r}")
    a(f"v_mov_b32 v{ONES+r}, 0x3f803f80")
    a(f"v_cndmask_b32 v{MC+r}, v146, 0, vcc"); a(f"v_cndmask_b32 v{MP+r}, v146, 0, s[72:73]")
a("s_cmp_eq_u32 s45, 0"); a("s_cselect_b64 vcc, -1, 0")
for r in range(4): a(f"v_cndmask_b32 v{MP0+r}, v{MP+r}, v146, vcc")
a("s_mov_b32 s44, 0xffff0000")
for h in range(2):
    a(f"v_ashrrev_i32 v154, 31, v{150+2*h}"); a(f"v_ashrrev_i32 v155, 31, v{151+2*h}")
    a(f"v_bfi_b32 v{AM+h}, s44, v155, v154"); a(f"v_not_b32 v{AM+2+h}, v{AM+h}")
a(f"""s_mov_b64 s[48:49], 0xffff
s_mov_b32 s50, 0xffff0000
s_mov_b32 s51, 0
s_mov_b32 s52, 0
s_mov_b32 s53, 0xffff
s_mov_b32 s54, 0
s_mov_b32 s55, 0xffff0000
s_mov_b32 s63, {STAGE}
s_mov_b32 s74, 128
s_mov_b32 s92, {CEXP}
s_mov_b32 s93, {CEXP}
s_lshl_b32 s94, s21, 3
s_lshl_b32 s95, s22, 1
s_add_u32 s94, s94, s95
s_mul_i32 s94, s94, {OTT}
s_mul_i32 s95, s20, {OBLK}
s_add_u32 s94, s94, s95
s_add_u32 s95, s94, {OTT}""")
for r in range(ACCQ, ACCH + 12, 2): a(f"v_mov_b64 v[{r}:{r+1}], 0")
a("s_waitcnt vmcnt(0) lgkmcnt(0)")
stamp0(a)
srd_ws_dbg()
stamp(a, 4)
if COV in (1, 3):
    a("s_cmp_eq_u32 s56, 0"); a("s_cbranch_scc1 L_C_GO")
    if COV == 3: a("s_setprio 3")
    a("buffer_load_dword v241, v252, s[36:39], s57 offen")
a("s_setprio 0")
a("L_C_GO:")
a("""s_mov_b32 s44, 0
s_mov_b32 s45, 0""")
for w in range(1, 4):
    a(f"s_cmp_eq_u32 s22, {w}"); a(f"s_cbranch_scc1 L_W{w}")
KOP = {1: 140, 0: 156, -1: 204}
VOP = 172; QOP = {1: 68, 0: 108}
def kop(t, h): return KOP[t] + 4 * h
def vop(T, t): return VOP + 6 * T + 2 * (t + 1)
def qop(t, h): return QOP[t] + 4 * h
def cv2(d, s): return [f"v_cvt_pk_bf16_f32 v{d}, v{s}, v{s+1}", f"v_cvt_pk_bf16_f32 v{d+1}, v{s+2}, v{s+3}"]
HALO = [[(1,0),(1,1),(1,2)], [(1,3),(1,4),(2,0)], [(2,1),(2,2)], [(2,3),(2,4)]] if OPT.get('hal') == '0' else [[(1,0),(1,2),(2,0)], [(1,1),(1,3),(2,1)], [(1,4),(2,2),(2,3)], [(2,4)]]
D = 5
def istep(f): return f - 5 if f <= 14 else (f - 6 if f <= 21 else f - 7)
for w in range(4):
    gate = (w == 3)
    q = []
    def rdW(f):
        ks, seg, T = f // 15, (f % 15) // 5, f % 5
        d = RING + (f % 10) * 4
        if "nods" in XP: return [("s_nop 0", ("W", f))] * 2
        if "ds9" in XP and T in (1, 3):
            if seg < 2 and T == 1: return [(f"ds_read_b128 v[{d}:{d+3}], v{(VX0, VX1)[ks]} offset:{XOFF + 4096}", ("W", f))]
            return []
        return [(f"ds_read_b64_tr_b16 v[{d+2*j}:{d+2*j+1}], v{VWA if T < 4 else VWB} offset:{seg*160 + ks*15360 + j*3840 + (40*T if T < 4 else 0)}", ("W", f)) for j in range(2)]
    def rdX(ks):
        o = []
        for n, tile in enumerate((1 + 2 * w, 2 + 2 * w, 0)):
            d = XB + (ks * 3 + n) * 4
            o.append((f"ds_read_b128 v[{d}:{d+3}], v{(VX0, VX1)[ks]} offset:{XOFF + tile*2048}", ("X", ks)))
        if gate:
            d = GX + ks * 8
            o.append((f"ds_read_b128 v[{d}:{d+3}], v{(VGX0, VGX1)[ks]} offset:{XOFF + 2048}", ("X", ks)))
            o.append((f"ds_read_b128 v[{d+4}:{d+7}], v{VGW} offset:{ks*64}", ("X", ks)))
        return o
    def wait(b, tags):
        if not any(t in tags for t in q): return
        last = max(i for i, t in enumerate(q) if t in tags)
        b(f"s_waitcnt lgkmcnt({min(len(q) - 1 - last, 15)})")
    def mm(f):
        ks, seg, T = f // 15, (f % 15) // 5, f % 5
        wf = vr(RING + (f % 10) * 4); o = []
        def one(dst, xf):
            o.append(f"{MF} {vr(dst)}, {wf}, {xf}, {vr(dst)}" if seg < 2 else f"{MF} {vr(dst)}, {xf}, {wf}, {vr(dst)}")
        one(acc(seg, 0, T), vr(XB + (ks * 3) * 4)); one(acc(seg, 1, T), vr(XB + (ks * 3 + 1) * 4))
        if (seg, T) in HALO[w]: one(ACCH + 4 * HALO[w].index((seg, T)), vr(XB + (ks * 3 + 2) * 4))
        if gate and seg == 0 and T == 2:
            d = GX + ks * 8
            o.append(f"{MF} {vr(ACCH+8)}, {vr(d+4)}, {vr(d)}, {vr(ACCH+8)}")
        return o
    def weave(b, ms, fs, lastless=True):
        n = len(ms)
        if OPT.get("wv", "1") == "1":
            ds = [t for t in fs if t[1] is not None]; ot = [t for t in fs if t[1] is None]
            per = [[] for _ in range(n)]
            cnt = [0] * n
            for i in range(len(ds)): cnt[i % n] += 1
            it = iter(ds)
            for j in range(n):
                for _ in range(cnt[j]): per[j].append(next(it))
            lo = 0
            for t in ot:
                load = [len(per[j]) + (1 if (lastless and j == n - 1) else 0) for j in range(n)]
                j = min(range(lo, n), key=lambda k: load[k]); lo = j
                per[j].append(t)
            for m_, p_ in zip(ms, per):
                b(m_)
                for t in p_:
                    b(t[0])
                    if t[1] is not None: q.append(t[1])
            return
        k = len(fs)
        cnt = [0] * n
        for i in range(k):
            load = [cnt[j] + (1 if (lastless and j == n - 1) else 0) for j in range(n)]
            cnt[load.index(min(load))] += 1
        it = iter(fs)
        for m_, c_ in zip(ms, cnt):
            b(m_)
            for _ in range(c_):
                t = next(it)
                b(t[0])
                if t[1] is not None: q.append(t[1])
    FA = {s: [] for s in range(25, 30)}
    x0 = rdX(0)
    FA[25] = x0[:2] + rdW(0); FA[26] = x0[2:4] + rdW(1); FA[27] = x0[4:] + rdW(2); FA[28] = rdW(3); FA[29] = rdW(4)
    FB = {s: [] for s in range(25)}
    for f in range(D, 30): FB[istep(f)] += rdW(f)
    x1 = rdX(1)
    for i, t in enumerate(x1): FB[2 + i].append(t)
    sal = ["s_add_u32 s45, s45, 1", "s_cmp_eq_u32 s45, 3", f"s_cselect_b32 s46, {(-2*STAGE) & 0xffffffff}, s63", "s_cselect_b32 s45, 0, s45"]
    for i, t in enumerate(sal): FB[10 + i].append((t, None))
    if gate:
        FB[20].append((f"v_add_u32 v{VGW}, s74, v{VGW}", None))
        FB[21].append((f"v_add_u32 v{VGX0}, s46, v{VGX0}", None)); FB[22].append((f"v_add_u32 v{VGX1}, s46, v{VGX1}", None))
    FB[20].append((f"v_add_u32 v{VX0}, s46, v{VX0}", None)) if not gate else FB[14].append((f"v_add_u32 v{VX0}, s46, v{VX0}", None))
    FB[23] += [(f"v_add_u32 v{VX1}, s46, v{VX1}", None), (f"v_add_u32 v{VWA}, s46, v{VWA}", None), (f"v_add_u32 v{VWB}, s46, v{VWB}", None)]
    FB[24] += [("s_add_u32 s44, s44, 1", None), ("s_cmp_eq_u32 s44, 10", None)]
    pre = Asm(); pa = Asm(); pb = Asm(); tail = Asm()
    stamp(pre, 5)
    pre("s_barrier")
    if STAMP: stamp2(pre, 6, 50)
    ev(pre, "b0")
    for s in range(25, 30):
        for t in FA[s]: pre(t[0])
    q.clear()
    if not LS: pa("s_waitcnt lgkmcnt(0)")
    pa("s_barrier")
    for s in range(25, 30): weave(pa, mm(s), FA[s], lastless=(s == 29))
    if LS: pre(f"s_branch L_LB{w}")
    else: pa(f"s_branch L_LB{w}")
    for s in range(25):
        tags = [("W", s)] + ([("X", 0)] if s == 0 else []) + ([("X", 1)] if s == 15 else [])
        wait(pb, tags); weave(pb, mm(s), FB[s])
    if LS: pb("s_waitcnt lgkmcnt(0)"); pb(f"s_cbranch_scc0 L_LA{w}")
    else: pb(f"s_cbranch_scc1 L_T{w}")
    tail(f"v_mov_b32 v{TOK}, {TOK_LDS}")
    tail("s_waitcnt lgkmcnt(0)")
    tail(f"ds_read_b32 v{TOK}, v{TOK}")
    tm = [m_ for s in range(25, 30) for m_ in mm(s)]
    fl = [f"v_lshlrev_b32 v{VWA}, 3, v1", f"v_add_u32 v{VX1}, {XCH}, v{VWA}"]
    if TOV:
        fl += [f"v_add_u32 v{VWB}, {XCH + 5120*w}, v{VWA}", f"v_add_u32 v{VX0}, {XCH + 5120*(w+1)}, v{VWA}"]
        for h in (0, 1, 2, 3, 4):
            d = 140 + 4 * h if h < 4 else 142; sr = acc(1, 1, h)
            fl += [f"v_cvt_pk_bf16_f32 v{d}, v{sr}, v{sr+1}", f"v_cvt_pk_bf16_f32 v{d+1}, v{sr+2}, v{sr+3}"]
            if w < 3: fl.append(f"ds_write_b64 v{VX0}, v[{d}:{d+1}] offset:{h*512}")
        for h in (1, 2, 3):
            d = 142 + 4 * h; sr = acc(1, 1, 4)
            fl += [f"v_cvt_pk_bf16_f32 v{d}, v{sr}, v{sr+1}", f"v_cvt_pk_bf16_f32 v{d+1}, v{sr+2}, v{sr+3}"]
    for n_, m_ in enumerate(tm):
        tail(m_)
        for x in fl[2*n_:2*n_+2]: tail(x)
    for x in fl[2*len(tm):]: tail(x)
    if gate:
        z = ACCH + 8
        tail(f"""v_cvt_pk_bf16_f32 v248, v{z}, v{z}
        v_and_b32 v248, 0xffff0000, v248
        v_mul_f32 v248, {LOG2E ^ 0x80000000}, v248
        v_exp_f32 v248, v248
        s_lshl_b32 s46, s21, 3
        v_add_f32 v248, 1.0, v248
        v_rcp_f32 v248, v248
        s_add_u32 s46, s46, s20
        v_cvt_pk_bf16_f32 v248, v248, v248
        v_and_b32 v248, 0xffff0000, v248
        s_lshl_b32 s46, s46, 7
        s_add_u32 s46, s46, {WS_G}
        s_waitcnt lgkmcnt(0)
        v_sub_u32 v249, v{TOK}, v248""")
    snd = []
    for n, (seg, T) in enumerate(HALO[w]):
        snd.append(cv2(242 + 2*n, ACCH + 4*n) + [f"ds_write_b64 v{VX1}, v[{242+2*n}:{243+2*n}] offset:{((seg-1)*5+T)*512}"])
    for T in range(5):
        snd.append(cv2(vop(T, 1), acc(2, 1, T)) + ([f"ds_write_b64 v{VX0}, v[{vop(T,1)}:{vop(T,1)+1}] offset:{(5+T)*512}"] if w < 3 else []))
    nh = len(HALO[w])
    if w >= 2: snd = snd[nh:] + snd[:nh]
    rest = ["s_setprio 2"] + cv2(250, acc(0, 1, 4))
    for h in range(4): rest += cv2(qop(1, h), acc(0, 1, h))
    for h in range(4):
        for j in range(2): rest.append(f"v_cndmask_b32 v{qop(1,h)+2+j}, 0, v{250+j}, s[{48+2*h}:{49+2*h}]")
    for k_, x in enumerate(snd):
        for l in x + rest[2*k_:2*k_+2]: tail(l)
    for l in rest[2*len(snd):]: tail(l)
    if gate:
        tail(f"""s_cmp_ge_u32 s20, 8
        s_cbranch_scc1 L_ATT
        s_mov_b64 exec, 0xffff
        buffer_store_dwordx2 v[248:249], v{VWA}, s[32:35], s46 offen sc1
        s_mov_b64 exec, -1""")
    else: tail("s_branch L_ATT")
    if w > 0: a(f"L_W{w}:")
    if LS:
        a.extend(pre); a(f".p2align {AL}"); a(f"L_LA{w}:"); a.extend(pa); a(f"L_LB{w}:"); a.extend(pb); a(f"L_T{w}:"); a.extend(tail)
    else:
        a.extend(pre); a(f".p2align {AL}"); a(f"L_LB{w}:"); a.extend(pb); a.extend(pa); a(f"L_T{w}:"); a.extend(tail)
    traces.append(pre.L + pb.L + pa.L + pb.L + fix(tail.L)[0])
a("L_ATT:")
if STAMP: stamp2(a, 30, 51)
ev(a, "gemm")
KOP = {1: 140, 0: 156, -1: 204}
VOP = 172; QOP = {1: 68, 0: 108}
def kop(t, h): return KOP[t] + 4 * h
def vop(T, t): return VOP + 6 * T + 2 * (t + 1)
def qop(t, h): return QOP[t] + 4 * h
g = Asm()
def cvt(d, s): g(f"v_cvt_pk_bf16_f32 v{d}, v{s}, v{s+1}"); g(f"v_cvt_pk_bf16_f32 v{d+1}, v{s+2}, v{s+3}")
def flush(name):
    global g
    o, t = schedule(g.L, st_lat=STL); print(f"; sched {name}: {len(o)} instrs, est {t} cycles", file=sys.stderr)
    for n, l in enumerate(o):
        if OPT.get("astamp") and n and n % 45 == 0: a(f"s_memtime s[{86 + 2*(n//45)}:{87 + 2*(n//45)}]") if n // 45 < 8 else None
        a(l)
    if OPT.get("astamp"):
        a("s_waitcnt lgkmcnt(0)")
        for k in range(1, 8): a(f"v_writelane_b32 v{SV}, s{86+2*k}, {9+k}")
    g = Asm()
stamp(a, 31)
a("s_waitcnt lgkmcnt(0)"); a("s_barrier")
stamp(a, 32)
jitter("c", 0x56, 1)
for h in range(4):
    g(f"ds_read_b64 v[{kop(-1,h)}:{kop(-1,h)+1}], v{VWB} offset:{h*512}")
    g(f"ds_read_b64 v[{kop(-1,h)+2}:{kop(-1,h)+3}], v{VWB} offset:{4*512}")
for T in range(5): g(f"ds_read_b64 v[{vop(T,-1)}:{vop(T,-1)+1}], v{VWB} offset:{(5+T)*512}")
g("@wait")
g(f"v_lshlrev_b32 v{VX0}, 4, v1"); g(f"v_mul_u32_u24 v{VWA}, 12, v1")
for h in range(4): cvt(kop(0, h), acc(1, 0, h)); cvt(kop(0, h) + 2, acc(1, 0, 4))
for T in range(5): cvt(vop(T, 0), acc(2, 0, T))
cvt(246, acc(0, 0, 4))
for h in range(4): cvt(qop(0, h), acc(0, 0, h))
for h in range(4):
    for j in range(2): g(f"v_cndmask_b32 v{qop(0,h)+2+j}, 0, v{246+j}, s[{48+2*h}:{49+2*h}]")
SR = {1: [28, 32, 36, 40, 44, 48, 52, 56], 0: [8, 12, 16, 20, 24, 88, 92, 96]}
def dc(t, h): return SR[t][h]
def dp(t, h): return SR[t][4 + h]
MX = {1: 84, 0: 124}; TMP = {1: 128, 0: 132}
OREG = {1: [68, 72, 76, 80, 140, 144, 148, 152, 60, 64, 100, 104], 0: [108, 112, 116, 120, 156, 160, 164, 168, 204, 208, 212, 216]}
def oo(t, h, k): return OREG[t][k * 4 + h]
for t in (1, 0):
    for h in range(4):
        g(f"{MF} {vr(dc(t,h))}, {vr(kop(t,h))}, {vr(qop(t,h))}, {vr(MC)}")
        g(f"{MF} {vr(dp(t,h))}, {vr(kop(t-1,h))}, {vr(qop(t,h))}, {vr(MP if t else MP0)}")
for t in (1, 0):
    for h in range(4):
        for r in range(4): g(f"v_max_f32 v{dc(t,h)+r}, v{dc(t,h)+r}, v{dp(t,h)+r}")
        g(f"v_max3_f32 v{MX[t]+h}, v{dc(t,h)}, v{dc(t,h)+1}, v{dc(t,h)+2}")
        g(f"v_max_f32 v{MX[t]+h}, v{MX[t]+h}, v{dc(t,h)+3}")
    m = MX[t]
    g(f"""v_permlane32_swap_b32 v{m}, v{m+1}
    v_permlane32_swap_b32 v{m+2}, v{m+3}
    v_max_f32 v{m}, v{m}, v{m+1}
    v_max_f32 v{m+2}, v{m+2}, v{m+3}
    v_permlane16_swap_b32 v{m}, v{m+2}
    v_max_f32 v{m}, v{m}, v{m+2}
    v_mul_f32 v{m+2}, s92, v{m}
    v_mul_f32 v{m}, s92, v{m}
    v_permlane16_swap_b32 v{m}, v{m+2}
    v_mov_b32 v{m+1}, v{m}
    v_mov_b32 v{m+3}, v{m+2}
    v_permlane32_swap_b32 v{m}, v{m+1}
    v_permlane32_swap_b32 v{m+2}, v{m+3}""")
    for h in range(4):
        d = dc(t, h); p = dp(t, h)
        if PK:
            mp_ = m + (h & 2); e = h & 1
            for r in (0, 2): g(f"v_pk_fma_f32 v[{d+r}:{d+r+1}], v[{d+r}:{d+r+1}], s[92:93], v[{mp_}:{mp_+1}] op_sel:[0,0,{e}] op_sel_hi:[1,1,{e}] neg_lo:[0,0,1] neg_hi:[0,0,1]")
        else:
            for r in range(4): g(f"v_fma_f32 v{d+r}, v{d+r}, s92, -v{m+h}")
        for r in range(4): g(f"v_exp_f32 v{d+r}, v{d+r}")
        g(f"v_cvt_pk_bf16_f32 v{d}, v{d}, v{d+1}"); g(f"v_cvt_pk_bf16_f32 v{d+2}, v{d+2}, v{d+3}")
        g(f"v_and_b32 v{p}, v{AM}, v{d}"); g(f"v_and_b32 v{p+1}, v{AM+1}, v{d+2}")
        g(f"v_and_b32 v{p+2}, v{AM+2}, v{d}"); g(f"v_and_b32 v{p+3}, v{AM+3}, v{d+2}")
    for h in range(4):
        g(f"{MF} {vr(oo(t,h,2))}, {vr(ONES)}, {vr(dp(t,h))}, 0")
        g(f"{MF} {vr(oo(t,h,0))}, {vr(vop(h,t-1))}, {vr(dp(t,h))}, 0")
        g(f"{MF} {vr(oo(t,h,1))}, {vr(vop(4,t-1))}, {vr(dp(t,h))}, 0")
    for h in range(4):
        o0 = oo(t, h, 0); rc = oo(t, h, 2)
        g(f"v_rcp_f32 v{rc}, v{rc}")
        if PK:
            for r in (0, 2): g(f"v_pk_mul_f32 v[{o0+r}:{o0+r+1}], v[{o0+r}:{o0+r+1}], v[{rc}:{rc+1}] op_sel_hi:[1,0]")
        else:
            for r in range(4): g(f"v_mul_f32 v{o0+r}, v{o0+r}, v{rc}")
        for r in range(4): g(f"v_mul_f32_dpp v{TMP[t]+r}, v{oo(t,h,1)+r}, v{rc} quad_perm:[0,1,2,3] row_mask:{hex(1<<h)} bank_mask:0xf")
        cvt(dc(t, h >> 1) + 2 * (h & 1), o0)
    cvt(dc(t, 2), TMP[t])
    so = "s95" if t else "s94"
    c = dc(t, 2)
    for p in range(2):
        g(f"buffer_store_dwordx4 {vr(dc(t, p))}, v{VX0}, s[32:35], {so} offen offset:{1024*p} {OSF}")
    d = dc(t, 0); e = dc(t, 1)
    g(f"v_add3_u32 v{c+2}, v{d}, v{d+1}, v{d+2}"); g(f"v_add3_u32 v{c+3}, v{e}, v{e+1}, v{e+2}")
    g(f"v_add3_u32 v{c+2}, v{c+2}, v{d+3}, v{e+3}"); g(f"v_add3_u32 v{c+2}, v{c+2}, v{c+3}, v{TOK}")
    g(f"v_add3_u32 v{c+2}, v{c+2}, v{c}, v{c+1}")
    g(f"buffer_store_dwordx3 {vr(c,3)}, v{VWA}, s[32:35], {so} offen offset:2048 {OSF}")
WR = 48
def rd_reg(l): return f"ds_read_b128 {vr(WR+4*l)}, v{248 if l < 24 else 249} offset:{(l % 24)*1024}"
if HR:
    g(f"v_add_u32 v248, {CL['S1'][2]}, v{VX0}"); g(f"v_add_u32 v249, {CL['S2'][2]}, v{VX0}")
    early = [22, 9, 0, 1, 2, 5, 6, 7, 8, 3, 4, 13, 14, 23, 24, 25, 26, 20]
    for l in early + [l for l in (19, 10, 11, 12, 15, 16, 17, 18, 27, 28, 29, 21)]: g(rd_reg(l))
flush("attention")
if STAMP: stamp2(a, 35, 52)
ev(a, "att")
WR = 48
NRK = 6
OR_ = 168
AC = 224
CK = 244
BA = {"S1": 248, "S2": 249, "S0": 250, "TOP": 251, "R1": 248, "R2": 249, "TB": 252}
def lring(l):
    k = (l - 30) % 15
    return 8 + 4 * k
if HR: a("s_branch L_P2_PRE2")
a("L_P2_PRE:")
a("v_lshlrev_b32 v2, 4, v1")
a("s_lshr_b32 s64, s22, 2")
a(f"s_mul_i32 s60, s64, {CL['S1'][3]}"); a(f"s_add_u32 s60, s60, {CL['S1'][2]}"); a(f"v_add_u32 v{BA['S1']}, s60, v2")
a(f"s_mul_i32 s60, s64, {CL['S2'][3]}"); a(f"s_add_u32 s60, s60, {CL['S2'][2]}"); a(f"v_add_u32 v{BA['S2']}, s60, v2")
for l in range(30): a(rd_reg(l))
a("L_P2_PRE2:")
if HR:
    a("s_waitcnt lgkmcnt(0)"); stamp(a, 36); a("s_barrier"); stamp(a, 37)
    a("s_cmp_lt_u32 s22, 4"); a("s_cbranch_scc1 L_P2_C")
    dma_class("R1"); dma_class("R2")
    a("L_P2_C:")
    a("v_lshlrev_b32 v2, 4, v1"); a("s_lshr_b32 s64, s22, 2")
for nm in ("S0", "TOP", "TB"):
    a(f"s_mul_i32 s60, s64, {CL[nm][3]}"); a(f"s_add_u32 s60, s60, {CL[nm][2]}"); a(f"v_add_u32 v{BA[nm]}, s60, v2")
consumer_ids()
rotbit("s86")
a(f"""s_and_b32 s65, s22, 3
s_lshl_b32 s67, s85, 2
s_add_u32 s67, s67, s65
s_mul_i32 s80, s67, {OTT}
s_mul_i32 s60, s64, {8*OBLK}
s_add_u32 s80, s80, s60
v_mul_u32_u24 v3, 12, v1
v_add_u32 v3, 2048, v3
v_and_b32 v4, 15, v1
v_lshlrev_b32 v5, 3, v4
s_lshl_b32 s62, s67, 7
s_add_u32 s62, s62, {WS_G}
v_sub_u32 v254, 0, v{TOK}
s_add_u32 s82, s80, {4*OBLK}
s_mul_i32 s86, s86, {4*OBLK}
s_add_u32 s80, s80, s86
s_sub_u32 s82, s82, s86
s_add_u32 s81, s80, {2*OBLK}
s_add_u32 s83, s82, {2*OBLK}
s_mov_b32 s28, s18
s_mov_b32 s29, s19
s_mov_b32 s30, 2621440
s_mov_b32 s31, 0x20000
s_mov_b32 s61, 0""")
if HR:
    a("s_setprio 0"); a("s_waitcnt vmcnt(0)"); stamp(a, 38)
else:
    stamp(a, 36)
    a("s_waitcnt lgkmcnt(0)")
    a("s_barrier")
    stamp(a, 37)
    a("s_cmp_lt_u32 s22, 4"); a("s_cbranch_scc1 L_P2_C")
    dma_class("R1"); dma_class("R2")
    a(f"s_setprio {OPT.get('pb', 0)}")
    if OWAIT >= 2: a("s_waitcnt vmcnt(0)"); stamp(a, 38)
    a("s_branch L_P2_GO")
    a("L_P2_C:")
    if OWAIT: a("s_waitcnt vmcnt(0)"); stamp(a, 38)
    a(f"s_setprio {OPT.get('pa', 0)}")
a("L_P2_GO:")
if OWAIT >= 2: a("s_barrier")
if OWAIT >= 3: a(f"s_sleep {OWAIT}")
if STAMP: stamp2(a, 39, 53)
ev(a, "bp")
TB = 216
def og(u, k): return OR_ + (u & 3) * 12 + k * 4
def ld_unit(u):
    m, e = u >> 1, u & 1
    return [f"buffer_load_dwordx4 {vr(og(u, k))}, v2, s[32:35], s{80+m} offen offset:{e*OBLK + k*1024} {OF}" for k in range(2)] + \
           [f"buffer_load_dwordx3 {vr(og(u, 2), 3)}, v3, s[32:35], s{80+m} offen offset:{e*OBLK} {OF}"]
def chk_unit(u):
    d = og(u, 0); f = og(u, 1); c = og(u, 2); x = CK
    return [f"v_add3_u32 v{x}, v{d}, v{d+1}, v{d+2}", f"v_add3_u32 v{x+1}, v{f}, v{f+1}, v{f+2}", f"v_add3_u32 v{x+2}, v{c}, v{c+1}, v{TOK}",
            f"v_add3_u32 v{x}, v{x}, v{d+3}, v{f+3}", f"v_add3_u32 v{x}, v{x}, v{x+1}, v{x+2}", f"v_cmp_ne_u32 vcc, v{x}, v{c+2}"]
def ld_w(i):
    if i < NRK or i >= 20: return []
    o = []
    for T in range(5):
        l = i * 5 + T
        nm = [k for k, v in CL.items() if v[0] <= l < v[0] + v[1]][0]
        o.append(f"ds_read_b128 {vr(lring(l))}, v{BA[nm]} offset:{(l - CL[nm][0]) * 1024}")
    return o
GLD = "buffer_load_dwordx2 v[6:7], v5, s[32:35], s62 offen sc1"
PRE = ["s_lshr_b32 s46, s67, 4", "s_lshl_b32 s46, s46, 8", "s_bfe_u32 s47, s67, 0x10003", "s_add_u32 s46, s46, s47", "s_and_b32 s47, s67, 7",
       "s_lshl_b32 s47, s47, 5", "s_add_u32 s46, s46, s47", "s_mul_i32 s46, s46, 1280", "s_mul_i32 s47, s84, 160", "s_add_u32 s46, s46, s47",
       "s_mul_i32 s60, s65, 5120", f"s_add_u32 s60, s60, {XCH}", f"v_add_u32 v{WR+76}, s60, v2", "v_mul_u32_u24 v4, 2560, v4", f"v_lshrrev_b32 v{WR+79}, 4, v1",
       f"v_lshl_add_u32 v{WR+77}, v{WR+79}, 4, v4", f"v_lshl_add_u32 v{WR+78}, v{WR+79}, 3, v4",
       "s_waitcnt vmcnt(0)", f"v_add3_u32 v{CK}, v6, v7, v254", f"v_cmp_ne_u32 vcc, 0, v{CK}"]
BP = int(OPT.get("bp", 1))
if BP:
    PRE[13:17] = [f"v_lshrrev_b32 v{WR+75}, 2, v1", f"v_mul_u32_u24 v4, 2560, v{WR+75}", f"v_and_b32 v{WR+79}, 3, v1",
                  f"v_lshl_add_u32 v{WR+77}, v{WR+79}, 4, v4", f"v_lshl_add_u32 v{WR+78}, v{WR+79}, 3, v4",
                  f"v_lshl_add_u32 v{WR+75}, v{WR+79}, 4, v{WR+75}", f"v_lshlrev_b32 v{WR+75}, 2, v{WR+75}"]
vq = []
def issue(u):
    if u < 8:
        for x in (ld_unit(u)[:2] if "no3" in XP else ld_unit(u)): a(x); vq.append(u)
    if u == 4: a(GLD); vq.append(8)
IC = int(OPT.get("ic", 8))
nxt_u = 0
for _ in range(U0): issue(nxt_u); nxt_u += 1
npre = 0
for u in range(8):
    m, e = u >> 1, u & 1
    if u < IC:
        last = max(k for k, t in enumerate(vq) if t == u)
        a(f"s_waitcnt vmcnt({len(vq) - 1 - last})")
        while nxt_u <= u + UD: issue(nxt_u); nxt_u += 1
        if u == 0: stamp(a, 33)
        for x in chk_unit(u): a(x)
    if "no3" not in XP: a(f"s_cbranch_vccnz L_RETRY{u}")
    a(f"L_OK{u}:")
    if u == 0: stamp(a, 34)
    tb = TB + 4 * (m & 1)
    a(f"v_mov_b64 v[{tb+2*e}:{tb+2*e+1}], v[{og(u,2)}:{og(u,2)+1}]")
    for ss in ([0, 1] if e == 0 else [2, 3, 4]):
        i = m * 5 + ss
        if i >= ET: continue
        nxt = ld_w(i + 2)
        if i >= NRK: a(f"s_waitcnt lgkmcnt({5 if i < 19 else 0})")
        of = og(u, ss & 1) if ss < 4 else tb
        inl = []
        if ss in (1, 4) and u + 1 >= IC and u < 7:
            last = max(k for k, t in enumerate(vq) if t == u + 1)
            a(f"s_waitcnt vmcnt({len(vq) - 1 - last})")
            inl = chk_unit(u + 1)
        for T in range(5):
            wf = vr(lring(i * 5 + T)) if i >= NRK else vr(WR + (i * 5 + T) * 4)
            if "nomf" not in XP or i == 0: a(f"{MF} {vr(AC+4*T)}, {wf}, {vr(of)}, {'0' if i == 0 else vr(AC+4*T)}")
            if nxt and "nold" not in XP: a(nxt[T])
            for x in inl[T*6//5:(T+1)*6//5]: a(x)
            if u >= IC and ss in (0, 2) and T == 0:
                while nxt_u <= u + UD: issue(nxt_u); nxt_u += 1
            if 6 <= i < 15 and i % 5 not in (1, 4) and npre < len(PRE) - 3: a(PRE[npre]); npre += 1
            if i == min(18, ET - 1) and T >= 2: a(PRE[len(PRE) - 5 + T])
assert npre == len(PRE) - 3
if STAMP and ET > 19: stamp2(a, 56, 54)
a("s_cbranch_vccnz L_RETRYG")
a("L_OKG:")
a("s_cmp_eq_u32 s64, 0")
a("s_cbranch_scc1 L_EPI_A")
def epi(send, keep, sc):
    RA, O4, O2 = WR + 76, WR + 77, WR + 78
    for T in send:
        for r in (0, 2): a(f"v_pk_mul_f32 v[{AC+4*T+r}:{AC+4*T+r+1}], v[{AC+4*T+r}:{AC+4*T+r+1}], v[{sc}:{sc+1}] op_sel_hi:[1,0]")
    a("s_barrier")
    for T in send: a(f"ds_write_b128 v{RA}, {vr(AC+4*T)} offset:{T*1024}")
    a("s_waitcnt lgkmcnt(0)"); a("s_barrier")
    for n, T in enumerate(keep): a(f"ds_read_b128 {vr(8+4*n)}, v{RA} offset:{T*1024}")
    for n, T in enumerate(keep):
        a(f"s_waitcnt lgkmcnt({len(keep)-1-n})")
        for r in (0, 2): a(f"v_pk_fma_f32 v[{8+4*n+r}:{8+4*n+r+1}], v[{AC+4*T+r}:{AC+4*T+r+1}], v[{sc}:{sc+1}], v[{8+4*n+r}:{8+4*n+r+1}] op_sel_hi:[1,0,1]")
        a(f"v_cvt_pk_bf16_f32 v{OR_+2*n}, v{8+4*n}, v{8+4*n+1}"); a(f"v_cvt_pk_bf16_f32 v{OR_+2*n+1}, v{8+4*n+2}, v{8+4*n+3}")
        if n == 1: a(f"buffer_store_dwordx4 {vr(OR_)}, v{O4}, s[28:31], s46 offen offset:{32*keep[0]} {SF}")
        if n == 2: a(f"buffer_store_dwordx2 {vr(OR_+4,2)}, v{O2}, s[28:31], s46 offen offset:128 {SF}")
if EP:
    RA, O4, O2 = WR + 76, WR + 77, WR + 78
    def last_steps(fill, lg19):
        for i in range(ET, 20):
            a(f"s_waitcnt lgkmcnt({5 if i < 19 else lg19})")
            if i == ET and fill: a("s_barrier")
            of = og(7, 1) if i == 18 else TB + 4
            for T in range(5):
                a(f"{MF} {vr(AC+4*T)}, {vr(lring(i * 5 + T))}, {vr(of)}, {vr(AC+4*T)}")
                k = (i - ET) * 5 + T
                if k < len(fill): a(fill[k])
        if STAMP: stamp2(a, 56, 54)
    rds = [f"ds_read_b128 {vr(72+4*T)}, v{RA} offset:{T*1024}" for T in range(5)]
    scl = ["v_sub_f32 v6, 1.0, v6", "v_cvt_pk_bf16_f32 v6, v6, v6", "v_and_b32 v6, 0xffff0000, v6"]
    if ET == 18: last_steps(rds + scl, 5)
    else:
        a("s_barrier")
        for x in rds + scl: a(x)
    if BP:
        a("s_waitcnt lgkmcnt(0)")
        for T in range(5):
            for r in (0, 2): a(f"v_pk_fma_f32 v[{72+4*T+r}:{72+4*T+r+1}], v[{AC+4*T+r}:{AC+4*T+r+1}], v[6:7], v[{72+4*T+r}:{72+4*T+r+1}] op_sel_hi:[1,0,1]")
            for j in range(2):
                a(f"v_cvt_pk_bf16_f32 v{OR_+2*T+j}, v{72+4*T+2*j}, v{72+4*T+2*j+1}")
            if T == 4: a("s_waitcnt lgkmcnt(4)"); a(f"buffer_store_dwordx4 {vr(OR_+12)}, v{O4}, s[28:31], s46 offen {SF}")
            for j in range(2): a(f"ds_bpermute_b32 v{OR_+12+2*T+j}, v{WR+75}, v{OR_+2*T+j}")
        a("s_waitcnt lgkmcnt(2)"); a(f"buffer_store_dwordx4 {vr(OR_+16)}, v{O4}, s[28:31], s46 offen offset:64 {SF}")
        a("s_waitcnt lgkmcnt(0)"); a(f"buffer_store_dwordx2 {vr(OR_+20,2)}, v{O2}, s[28:31], s46 offen offset:128 {SF}")
    else:
        for T in range(5):
            a(f"s_waitcnt lgkmcnt({4-T})")
            for r in (0, 2): a(f"v_pk_fma_f32 v[{72+4*T+r}:{72+4*T+r+1}], v[{AC+4*T+r}:{AC+4*T+r+1}], v[6:7], v[{72+4*T+r}:{72+4*T+r+1}] op_sel_hi:[1,0,1]")
            a(f"v_cvt_pk_bf16_f32 v{OR_+2*T}, v{72+4*T}, v{72+4*T+1}"); a(f"v_cvt_pk_bf16_f32 v{OR_+2*T+1}, v{72+4*T+2}, v{72+4*T+3}")
            if T == 1: a(f"buffer_store_dwordx4 {vr(OR_)}, v{O4}, s[28:31], s46 offen {SF}")
            if T == 3: a(f"buffer_store_dwordx4 {vr(OR_+4)}, v{O4}, s[28:31], s46 offen offset:64 {SF}")
        a(f"buffer_store_dwordx2 {vr(OR_+8,2)}, v{O2}, s[28:31], s46 offen offset:128 {SF}")
    a("s_branch L_FIN")
    a("L_EPI_A:")
    if ET == 18: last_steps([], 0)
    else: a("s_nop 1")
    for T in range(5):
        for r in (0, 2): a(f"v_pk_mul_f32 v[{AC+4*T+r}:{AC+4*T+r+1}], v[{AC+4*T+r}:{AC+4*T+r+1}], v[6:7] op_sel_hi:[1,0]")
        a(f"ds_write_b128 v{RA}, {vr(AC+4*T)} offset:{T*1024}")
    a("s_waitcnt lgkmcnt(0)"); a("s_barrier")
else:
    a("v_sub_f32 v6, 1.0, v6"); a("v_cvt_pk_bf16_f32 v6, v6, v6"); a("v_and_b32 v6, 0xffff0000, v6")
    epi([0, 1], [2, 3, 4], 6)
    a("s_branch L_FIN")
    a("L_EPI_A:")
    a("s_nop 4")
    epi([2, 3, 4], [0, 1], 6)
ev(a, "end")
if SPIN:
    a("""s_mov_b32 s60, 0
    L_SPIN:
    s_memrealtime s[98:99]
    s_waitcnt lgkmcnt(0)
    s_sub_u32 s98, s98, s96
    s_add_u32 s60, s60, 1
    s_cmp_ge_u32 s60, 20000
    s_cbranch_scc1 L_FIN
    s_cmp_lt_u32 s98, 4000
    s_cbranch_scc1 L_SPIN""")
a("L_FIN:")
if STAMP:
    stamp(a, 57)
    a("s_add_u32 s61, s61, 1"); a(f"v_writelane_b32 v{SV}, s61, 61")
    if STAMP == 3:
        a("s_waitcnt lgkmcnt(0)")
        for k_, r_ in LITE.items(): a(f"v_writelane_b32 v{SV}, s{r_}, {k_}")
    a("s_waitcnt vmcnt(0)")
    stamp(a, 62); stamp(a, 63, True)
    a(f"s_lshl_b32 s46, s2, 3"); a(f"s_add_u32 s46, s46, s22"); a("s_lshl_b32 s46, s46, 8"); a(f"s_add_u32 s46, s46, {WS_ST}")
    a(f"v_lshlrev_b32 v2, 2, v1")
    a(f"buffer_store_dword v{SV}, v2, s[32:35], s46 offen")
a("L_END:"); a("s_endpgm")
for u in range(8):
    a(f"L_RETRY{u}:")
    a("s_add_u32 s61, s61, 1"); a(f"s_cmp_ge_u32 s61, {SPIN_MAX}"); a(f"s_cbranch_scc1 L_OK{u}")
    a(f"s_sleep {RSLEEP}")
    for x in ld_unit(u): a(x)
    a("s_waitcnt vmcnt(0)")
    for x in chk_unit(u): a(x)
    a(f"s_cbranch_vccnz L_RETRY{u}"); a(f"s_branch L_OK{u}")
a("L_RETRYG:")
a("s_add_u32 s61, s61, 1"); a(f"s_cmp_ge_u32 s61, {SPIN_MAX}"); a("s_cbranch_scc1 L_OKG")
a(f"s_sleep {RSLEEP}")
a("buffer_load_dwordx2 v[6:7], v5, s[32:35], s62 offen sc1"); a("s_waitcnt vmcnt(0)")
a(f"v_add3_u32 v{CK}, v6, v7, v254"); a(f"v_cmp_ne_u32 vcc, 0, v{CK}")
a("s_cbranch_vccnz L_RETRYG"); a("s_branch L_OKG")

l1, _ = fix(a.L)
for tr in traces:
    _, iss_ = fix(tr, verify=True)
    for x in iss_: print("; TRACE HAZARD", x, file=sys.stderr)
print(f"""; Gated mix of two dilated sliding-window attention blocks, one fused kernel (generated by gen/gen18.py).
; @launch grid=(256,1,1) block=(512,1,1) lds={LDS_TOTAL}
.amdgcn_target "amdgcn-amd-amdhsa--gfx950"
.text
.globl {KN}
.p2align 8
.type {KN},@function""")
print("\n".join(l1))
print("CODE_END:")
if STAMP: print(".fill 2048, 4, 0xBF800000")
print('.section .rodata,"a"')
print(kd(KN, 256, 102, 256))
```
